```python
import torch

def _softmax(x, axis=-1):
    return torch.softmax(x, dim=axis)
def _gelu(x):
    return torch.nn.functional.gelu(x, approximate="tanh")
def _silu(x):
    return torch.nn.functional.silu(x)
def _sigmoid(x):
    return torch.sigmoid(x)
def _layernorm(x, axis=-1, eps=1e-5):
    m = x.mean(dim=axis, keepdim=True)
    v = x.var(dim=axis, keepdim=True, unbiased=False)
    return (x - m) / torch.sqrt(v + eps)
def _scatter_add(tgt, idx, src, axis=0):
    return tgt.clone().index_add_(axis, idx, src)
def _segment_sum(src, seg, n):
    out = torch.zeros((n,) + src.shape[1:], dtype=src.dtype)
    return out.index_add_(0, seg, src)
def _pad(x, pw):
    flat = tuple(v for pair in reversed(pw) for v in pair)
    return torch.nn.functional.pad(x, flat)

kernel_name = 'standalone__mha_softmax__near_ridge'

def setup_inputs():

    _w = (lambda a: (lambda t: t.to(torch.bfloat16) if t.is_floating_point() else t)(torch.as_tensor(a)))
    B, H, Sq, Sk, D = 8, 32, 1312, 512, 128
    return {
        "q": _w((lambda *s: torch.randn(*s, dtype=torch.bfloat16) * 0.8)(B, H, Sq, D)),
        "k": _w((lambda *s: torch.randn(*s, dtype=torch.bfloat16) * 0.8)(B, H, Sk, D)),
        "v": _w((lambda *s: torch.randn(*s, dtype=torch.bfloat16) * 0.05)(B, H, Sk, D)),
    }

def reference(q, k, v):
    scale = q.shape[-1] ** -0.5
    scores = torch.einsum("bhqd,bhkd->bhqk", q, k) * scale
    p = _softmax(scores, axis=-1)
    return torch.einsum("bhqk,bhkd->bhqd", p, v)
```

```python
import re

def regs(spec):
    m = re.fullmatch(r"([vas])\[(\d+):(\d+)\]", spec)
    if m: return [f"{m.group(1)}{k}" for k in range(int(m.group(2)), int(m.group(3)) + 1)]
    return [spec]

def R(kind, base, n=1):
    return f"{kind}{base}" if n == 1 else f"{kind}[{base}:{base+n-1}]"

class I:
    __slots__ = ("text", "kind", "rd", "wr", "needs", "key", "cost", "pref", "seg", "nowait", "acc", "block", "fast")
    def __init__(self, text, kind, rd=(), wr=(), needs=(), key=None, cost=None, acc=False):
        self.text = text; self.kind = kind
        self.rd = set(r for s in rd for r in regs(s))
        self.wr = set(r for s in wr for r in regs(s))
        self.needs = list(needs)
        self.key = key; self.pref = None; self.seg = None; self.nowait = False; self.block = False; self.fast = False
        self.acc = acc
        self.cost = cost if cost is not None else {"valu": 4, "trans": 8, "dsr": 4, "dsw": 4, "vld": 12, "dma": 12,
                                                   "vst": 28, "salu": 4, "bar": 4, "mfma": 0, "smf": 0, "nop": 4,
                                                   "wait": 4, "label": 0, "br": 4, "perm": 8}[kind]
    def __repr__(self): return f"<{self.text}>"

VALU = ("valu", "trans", "perm")
MAT = ("mfma", "smf")
LGKM = ("dsr", "dsw")
VM = ("vld", "dma", "vst")

def insert_waits(linear, verbose=False):
    waits = {}
    changed = True
    it = 0
    while changed:
        changed = False; it += 1
        assert it < 200
        vm_q, lg_q = [], []
        pend = {}
        last = {}
        hist = []
        nvm = nlg = 0
        done_vm = done_lg = 0
        anchor = 0
        restart = False
        for pos, ins in enumerate(linear):
            w = waits.get(id(ins))
            if w:
                if w[0] is not None: done_vm = max(done_vm, nvm - w[0])
                if w[1] is not None: done_lg = max(done_lg, nlg - w[1])
            hist.append((nvm, nlg))
            if ins.kind == "wait":
                m = re.search(r"vmcnt\((\d+)\)", ins.text)
                if m: done_vm = max(done_vm, nvm - int(m.group(1)))
                m = re.search(r"lgkmcnt\((\d+)\)", ins.text)
                if m: done_lg = max(done_lg, nlg - int(m.group(1)))
            need = []
            for r in sorted(ins.rd | ins.wr):
                e = pend.get(r)
                if e is not None and not (ins.nowait and r in ins.wr): need.append(e)
            for o in ins.needs:
                e = last.get(id(o))
                if e is not None: need.append(e)
            for cls, seq, ppos in need:
                if (cls == "vm" and seq < done_vm) or (cls == "lg" and seq < done_lg): continue
                ip = anchor if (ppos < anchor and not ins.block) else pos
                tgt = linear[ip]
                n = (hist[ip][0] if cls == "vm" else hist[ip][1]) - seq - 1
                n = min(n, 63 if cls == "vm" else 15)
                old = waits.get(id(tgt), (None, None))
                new = (n if (old[0] is None or n < old[0]) else old[0], old[1]) if cls == "vm" else \
                      (old[0], n if (old[1] is None or n < old[1]) else old[1])
                if new != old:
                    waits[id(tgt)] = new; changed = True
                if cls == "vm": done_vm = max(done_vm, hist[ip][0] - new[0])
                else: done_lg = max(done_lg, hist[ip][1] - new[1])
            if ins.kind in VM:
                e = ("vm", nvm, pos); nvm += 1; last[id(ins)] = e
                if ins.kind == "vld":
                    for r in ins.wr: pend[r] = e
            elif ins.kind in LGKM:
                e = ("lg", nlg, pos); nlg += 1; last[id(ins)] = e
                if ins.kind == "dsr":
                    for r in ins.wr: pend[r] = e
            if ins.kind in MAT: anchor = pos + 1
            if ins.kind in ("label", "br") or (ins.kind == "bar" and anchor != pos): anchor = pos + 1
    return waits

def wait_text(w):
    t = "s_waitcnt"
    if w[0] is not None: t += f" vmcnt({w[0]})"
    if w[1] is not None: t += f" lgkmcnt({w[1]})"
    return t

def required_gap(p, c):
    need = 0
    pw, pr, cw, cr = p.wr, p.rd, c.wr, c.rd
    if p.kind in VALU:
        vw = {r for r in pw if r[0] in "va" and r != "vcc"}
        if c.kind in MAT and vw & cr: need = max(need, 2)
        if c.kind == "perm" and vw & cr: need = max(need, 2)
        if p.kind == "trans" and c.kind in ("valu", "perm") and vw & (cr | cw): need = max(need, 1)
        if "readlane" in c.text or "readfirstlane" in c.text:
            if vw & cr: need = max(need, 1)
        sw = {r for r in pw if r[0] == "s" or r == "vcc"}
        if sw & cr:
            if c.kind in VM: need = max(need, 5)
            elif c.kind in VALU: need = max(need, 2)
            elif c.kind in ("salu", "br"): need = max(need, 2)
    if p.kind in MAT:
        lat = 8 if p.kind == "mfma" else 12
        if c.kind in MAT:
            cC = c.wr if c.acc else set()
            ab = cr - cC
            if pw & ab: need = max(need, lat)
            if pw & cC and pw != cC: need = max(need, lat)
            if pw & cC and p.kind != c.kind: need = max(need, lat)
            if (not c.acc) and pw & cw: need = max(need, 2)
        elif c.kind in VALU or c.kind in VM or c.kind in LGKM:
            if pw & (cr | cw): need = max(need, lat)
            if p.acc and c.kind in VALU and pw & cw: need = max(need, 3)
    if p.kind == "vst" and c.kind in VALU + MAT + ("dsr", "vld") and pr & cw & {r for r in pr if r[0] in "va"}:
        need = max(need, 2)
    if p.kind == "salu" and "m0" in pw and c.kind == "dma": need = max(need, 1)
    return need

def fix_hazards(linear, waits):
    nops = {}
    changed = True
    while changed:
        changed = False
        win = []
        for ins in linear:
            extra = (1 if id(ins) in waits else 0) + nops.get(id(ins), 0)
            if ins.kind == "label":
                continue
            dist = extra
            worst = 0
            for p in reversed(win):
                g = required_gap(p, ins)
                if g > dist: worst = max(worst, g - dist)
                dist += 1 + (1 if id(p) in waits else 0) + nops.get(id(p), 0)
                if p.kind == "nop":
                    m = re.search(r"s_nop (\d+)", p.text); dist += int(m.group(1))
                if dist > 14: break
            if worst:
                nops[id(ins)] = nops.get(id(ins), 0) + worst; changed = True
            win.append(ins)
            if len(win) > 16: win.pop(0)
    return nops

def render(seq, waits, nops):
    out = []
    for ins in seq:
        if ins.kind == "label":
            out.append(ins.text); continue
        n = nops.get(id(ins), 0)
        if id(ins) in waits: out.append("    " + wait_text(waits[id(ins)]))
        while n > 0:
            k = min(n, 16); out.append(f"    s_nop {k-1}"); n -= k
        out.append("    " + ins.text)
    return out
```

```python
import sys, struct, math
from core import *

class Cfg:
    dmap = "B"
    LK = 6
    LV = 4
    lead = 2
    qflags = ""
    oflags = ""
    kvflags = ""
    pf_period = 11
    stamps = False
    force_fallback = False
    vahead = 2
    codepf = False
cfg = Cfg()
for a in sys.argv[2:]:
    k, v = a.split("=", 1)
    old = getattr(cfg, k)
    setattr(cfg, k, (v == "1") if isinstance(old, bool) else type(old)(v.replace("+", " ")))

KNAME = "standalone__mha_softmax__near_ridge_kernel"
SQ, SK, D = 1312, 512, 128
HEADQ = SQ * D * 2
HEADK = SK * D * 2
RING = 131072
CSCALE = struct.unpack("<I", struct.pack("<f", math.log2(math.e) / math.sqrt(D)))[0]

vO, vP, vS, vVf = 0, 160, 200, 208
vVA = 224
vKR, vKW, vQA, vOA, vPF, vIDX, vVD = 228, 229, 230, 231, 232, 233, 234
vT = 235
vKt = [236, 244]; vKx = [252, 253]
vW = [236, 240, 244]
vRI = 248
vL0, vL1, vDUM = 253, 254, 255
aQ, aST, aKf, aL, aSA = 0, 80, 208, 240, 252
def O(qs, b): return vO + 32 * qs + 4 * b
def P(T, qs): return vP + 20 * (T % 2) + 4 * qs
def S(c): return vS + 4 * (c % 2)
def Vf(f): return vVf + 4 * (f % 4)
def Q(qs, s): return aQ + 16 * qs + 4 * s
def Kf(blk, s): return aKf + 16 * blk + 4 * s
def ST(j, e): return aST + 8 * (j % 16) + 4 * e
def L(p): return aL + 4 * p
sQ, sK, sV, sO = 8, 12, 16, 20
sW = 24; sC = 25; sMASK = 26; sFAIL = 27; sBIT = 28; sCNT = 29
sOr = 30
sQn = 35
sKo, sVo, sM0 = 40, 41, 42
sT0, sT1, sT2 = 43, 44, 45
sLO, sRNG = 46, 47
sTS = 48
def off(s): return 64 * s if cfg.dmap == "A" else 128 * (s >> 1) + 16 * (s & 1)
GST = 16 if cfg.dmap == "A" else 32

def n_of(T): return 5 if T < 16 else 4

def mfma(d, a, b, zero, dk="v", ak="a", bk="a"):
    D_, A_, B_ = R(dk, d, 4), R(ak, a, 4), R(bk, b, 4)
    return I(f"v_mfma_f32_16x16x32_bf16 {D_}, {A_}, {B_}, {'0' if zero else D_}", "mfma",
             rd=[A_, B_] + ([] if zero else [D_]), wr=[D_], acc=not zero)
def valu(text, rd, wr, kind="valu"): return I(text, kind, rd=rd, wr=wr)
def salu(text, rd=(), wr=()): return I(text, "salu", rd=rd, wr=wr)

class Item:
    __slots__ = ("ins", "after", "dead", "prio", "early", "tag", "placed", "T", "seq")
    def __init__(self, ins, after=(), dead=None, early=None, tag="", prio=0):
        self.ins = ins; self.after = list(after); self.dead = dead; self.early = early
        self.tag = tag; self.prio = prio; self.placed = False

QKm, PVm, SMm, BARm, VCm = {}, {}, {}, {}, {}
def mk_qk(T):
    n = n_of(T)
    for g in range(2 * n):
        blk, qs = divmod(g, n)
        for s in range(4):
            QKm[T, blk, qs, s] = mfma(S(g), Kf(blk, s), Q(qs, s), s == 0)
def mk_pv(T):
    for b in range(8):
        for qs in range(n_of(T)):
            PVm[T, b, qs] = mfma(O(qs, b), Vf(b), P(T, qs), T % 16 == 0, ak="v", bk="v")
def pairs(T): return [0, 1, 2] if n_of(T) == 5 else [0, 1]
def pair_lo(p): return 3 if p == 2 else 2 * p
def mk_sm(T):
    for p in pairs(T):
        d, b = R("a", L(p), 4), R("v", P(T, pair_lo(p)), 8)
        SMm[T, p] = I(f"v_smfmac_f32_16x16x64_bf16 {d}, {R('a', aSA, 4)}, {b}, v{vIDX}", "smf",
                      rd=[d, b, R("a", aSA, 4), f"v{vIDX}"], wr=[d], acc=True)
def pvlist(T): return [PVm[T, b, qs] for b in range(8) for qs in range(n_of(T))]

def backbone_period(T, tail=False):
    pv = []
    if T >= 2: pv += pvlist(T - 2)[-4:]
    if T >= 1: pv += pvlist(T - 1) if tail else pvlist(T - 1)[:-4]
    sm = [SMm[T - 1, p] for p in pairs(T - 1)] if T >= 1 else []
    out = []
    if tail:
        out += pv[:4] + [sm[0]] + pv[4:8] + sm[1:]
        rest = pv[8:]
        vc = [VCm[j] for j in range(32)]
        out += rest + vc
        for k, m in enumerate(out): m.pref = "T" if (k < 4) else "D"
        return out
    n = n_of(T); G = 2 * n
    boundary = T > 0 and T % 16 == 0
    if boundary:
        nl = 4 * cfg.lead
        head = pv[:nl]; pv = pv[nl:]
        if cfg.lead >= 2:
            head = head[:4] + [sm[0]] + head[4:8] + sm[1:] + head[8:]
            sm = []
        for k, m in enumerate(head): m.pref = "T" if k < 4 else "D"
        out += head
    if T == 1: cnt = [0] + [4] * (G - 1)
    else:
        cnt = [len(pv) // G + (1 if g < len(pv) % G else 0) for g in range(G)]
    smpos = {}
    if sm:
        if boundary: spots = [0, 1, 1]
        else: spots = [1, G // 2 + 1, G - 2] if len(sm) == 3 else [1, G // 2 + 1]
        for m, g in zip(sm, spots): smpos.setdefault(g, []).append(m)
    k = 0
    for g in range(G):
        blk, qs = divmod(g, n)
        grp = [QKm[T, blk, qs, s] for s in range(4)] + pv[k:k + cnt[g]]
        k += cnt[g]
        for j, m in enumerate(grp): m.pref = "T" if (j % 2 == 0 and j < 8) else "D"
        if len(grp) == 4:
            for m in grp: m.pref = "T"
        out += grp
        for m in smpos.get(g, []):
            m.pref = "D"; out.append(m)
    return out

items = []
curT = [-200]
ordn = {}
def add(ins, **kw):
    it = Item(ins, **kw); ordn[curT[0]] = ordn.get(curT[0], 0) + 1; it.T = (curT[0], ordn[curT[0]]); it.seq = len(items); items.append(it); return it

cvts = {}
def items_softmax(T):
    n = n_of(T)
    for g in range(2 * n):
        blk, qs = divmod(g, n)
        last = QKm[T, blk, qs, 3]
        if g + 2 < 2 * n: b2, q2 = divmod(g + 2, n); nxt = QKm[T, b2, q2, 0]
        else: nxt = QKm.get((T + 1, 0, g + 2 - 2 * n, 0))
        use = PVm[T, 0, qs]
        if g + 1 < 2 * n: b1, q1 = divmod(g + 1, n); ng = QKm[T, b1, q1, 0]
        elif (T + 1) % 16 == 0 and cfg.lead >= 1: ng = pvlist(T - 1)[-4]
        else: ng = QKm[T + 1, 0, 0, 0]
        ex = []
        for r in range(4):
            v = f"v{S(g)+r}"
            ex.append(add(valu(f"v_exp_f32 {v}, {v}", [v], [v], "trans"), after=[(last, 8), (ng, 0)] + ([(ex[-1].ins, 0)] if ex else []),
                          dead=[nxt, use], tag="sm"))
        cl = []
        for h in range(2):
            d = f"v{P(T, qs) + 2*blk + h}"; a, b = f"v{S(g)+2*h}", f"v{S(g)+2*h+1}"
            aft = [(ex[2*h].ins, 1), (ex[2*h+1].ins, 1)]
            if (T - 2, 7, qs) in PVm: aft.append((PVm[T - 2, 7, qs], 0))
            for p in pairs(T - 2) if T >= 2 else []:
                if pair_lo(p) <= qs <= pair_lo(p) + 1: aft.append((SMm[T - 2, p], 0))
            dl = [nxt, use] + [SMm[T, p] for p in pairs(T) if pair_lo(p) <= qs <= pair_lo(p) + 1]
            cl.append(add(valu(f"v_cvt_pk_bf16_f32 {d}, {a}, {b}", [a, b], [d]), after=aft, dead=dl, tag="sm"))
        cvts[T, blk, qs] = cl

kreads = {}
def bar_pub(T):
    return BARm[(T // 2) * 2 - 1]
def items_kread(T):
    n = n_of(T)
    for blk in range(2):
        for s in range(4):
            d = R("a", Kf(blk, s), 4)
            ins = I(f"ds_read_b128 {d}, v{vKR} offset:{(T % 4) * 8192 + (4*blk+s) * 1024}", "dsr", rd=[f"v{vKR}"], wr=[d])
            aft = [(bar_pub(T), 0)]
            if T >= 1: aft.append((QKm[T - 1, blk, n_of(T - 1) - 1, s], 0))
            dl = [QKm[T, blk, 0, 0]]
            if blk == 1 and T % 2 == 1: dl.append(BARm[T])
            kreads[T, blk, s] = add(ins, after=aft, dead=dl, tag="qk", prio=-6)
vreads = {}
vtog = {}
def vbar(T):
    if T == 0: return BARm["V0"]
    return BARm[T - 1 if T % 2 == 0 else T]
def items_vread(T):
    for b in range(8):
        f = 8 * T + b
        pT, pb = divmod(f - 4, 8)
        aft = []
        if f >= 4: aft.append((PVm[pT, pb, n_of(pT) - 1], 0))
        aT, ab = divmod(f - cfg.vahead - 1, 8)
        if f - cfg.vahead - 1 >= 0: aft.append((PVm[aT, ab, n_of(aT) - 1], 0))
        if T < 16: aft.append((vbar(T), 0))
        c, dh = b & 3, b >> 2
        if T % 8 == 0 and T > 0 and dh == 0: aft.append((vtog[T, c].ins, 0))
        prev = None
        for blk in range(2):
            d = R("v", Vf(f) + 2 * blk, 2)
            ins = I(f"ds_read_b64_tr_b16 {d}, v{vVA+c} offset:{dh*32768 + (T % 8)*4096 + blk*2048}", "dsr",
                    rd=[f"v{vVA+c}"], wr=[d])
            vreads[T, b, blk] = add(ins, after=aft + ([(prev, 0)] if prev else []), dead=[PVm[T, b, 0]], tag="v", prio=-6)
            prev = ins
def items_vtoggle(T):
    for c in range(4):
        v = f"v{vVA+c}"
        vtog[T, c] = add(valu(f"v_xor_b32 {v}, 0x10000, {v}", [v], [v]), after=[(vreads[T - 1, 4 + c, 1].ins, 0)],
                         dead=[PVm[T, c, 0]], tag="v", prio=-12)

kwrites = {}
kloads = {}
def items_kwrite(T):
    m = T // 2
    opn, cls = BARm[2 * m - 3], BARm[2 * m - 1]
    ws = []
    if T < 16:
        st = vKt[T % 2]
        prev_w = kwrites.get(T - 2)
        for r in range(8):
            a = f"a{ST(T, 0) + r}"; x = f"v{st + r}"; t = f"v{vKx[r % 2]}"
            aft = [(kloads[T][r // 4], 0)]
            if prev_w: aft.append((prev_w[r].ins, 0))
            if r >= 2: aft.append((chain_prev[r % 2], 0))
            aft.append((start_of(T - 3) if T >= 4 else QKm[0, 0, 4, 3] if T == 2 else QKm[0, 1, 1, 0], 0))
            i0 = add(valu(f"v_accvgpr_read_b32 {x}, {a}", [a], [x]), after=aft, dead=[cls], tag="qk", prio=-40)
            i1 = add(valu(f"v_lshlrev_b32 {t}, 16, {x}", [x], [t]), after=[(i0.ins, 0)] + ([(chain_prev[r % 2], 0)] if chain_prev[r % 2] else []), dead=[cls], tag="qk", prio=-39)
            i2 = add(valu(f"v_and_b32 {x}, s{sMASK}, {x}", [x, f"s{sMASK}"], [x]), after=[(i1.ins, 0)], dead=[cls], tag="qk", prio=-38)
            i3 = add(valu(f"v_mul_f32 {t}, s{sC}, {t}", [t, f"s{sC}"], [t]), after=[(i1.ins, 0)], dead=[cls], tag="qk", prio=-37)
            i4 = add(valu(f"v_mul_f32 {x}, s{sC}, {x}", [x, f"s{sC}"], [x]), after=[(i2.ins, 0)], dead=[cls], tag="qk", prio=-36)
            i5 = add(valu(f"v_cvt_pk_bf16_f32 {x}, {t}, {x}", [t, x], [x]), after=[(i3.ins, 0), (i4.ins, 0)], dead=[cls], tag="qk", prio=-35)
            chain_prev[r % 2] = i5.ins
            w = I(f"ds_write_b32 v{vKW}, {x} offset:{(T % 4)*8192 + (r//4)*1024 + (r % 4)*4}", "dsw", rd=[f"v{vKW}", x])
            ws.append(add(w, after=[(opn, 0), (i5.ins, 0)], dead=[cls], tag="qk", prio=-20))
        rb = []
        for e in range(2):
            d = R("a", ST(T, e), 4)
            ins = I(f"ds_read_b128 {d}, v{vKW} offset:{(T % 4)*8192 + e*1024}", "dsr", rd=[f"v{vKW}"], wr=[d])
            rb.append(add(ins, after=[(ws[4*e + k].ins, 0) for k in range(4)], dead=[cls], tag="qk", prio=-8))
        readback[T] = rb
    else:
        for r in range(8):
            a = f"a{ST(T, 0) + r}"
            w = I(f"ds_write_b32 v{vKW}, {a} offset:{(T % 4)*8192 + (r//4)*1024 + (r % 4)*4}", "dsw", rd=[f"v{vKW}", a])
            ws.append(add(w, after=[(opn, 0)] + ([(ws[-1].ins, 0)] if ws else ([(kwrites[T-1][-1].ins, 0)] if T % 2 else [])),
                          dead=[cls], tag="qk", prio=-10))
    kwrites[T] = ws
chain_prev = [None, None]
readback = {}
def mid_of(T): return QKm[T, 1, 0, 0]
def start_of(T): return QKm[T, 0, 0, 0]

def kload_ins(j):
    out = []
    for e in range(2):
        d = R("a", ST(j, e), 4)
        out.append(I(f"buffer_load_dwordx4 {d}, v{vQA}, s[{sK}:{sK+3}], s{sKo} offen offset:{off(1)*e}{cfg.kvflags}", "vld",
                     rd=[f"v{vQA}", f"s{sKo}", f"s[{sK}:{sK+3}]"], wr=[d]))
    return out
def vdma_ins(j):
    out = []
    for dh in range(2):
        m0 = (j >> 3) * 65536 + dh * (32768 - 128) + (j & 7) * 4096
        out.append((salu(f"s_add_u32 m0, s{sM0}, {m0}", [f"s{sM0}"], ["m0", "scc"]),
                    I(f"buffer_load_dwordx4 v{vVD}, s[{sV}:{sV+3}], s{sVo} offen offset:{128*dh} lds{cfg.kvflags}", "dma",
                      rd=[f"v{vVD}", f"s{sVo}", "m0", f"s[{sV}:{sV+3}]"])))
    return out
vdmas = {}
last_vm = [None]
def items_loads(T):
    j = T + cfg.LK
    if j < 16:
        up = add(salu(f"s_add_u32 s{sKo}, s{sKo}, 8192", [f"s{sKo}"], [f"s{sKo}", "scc"]),
                 after=[(start_of(T), 0)] + ([(last_vm[0], 0)] if last_vm[0] else []), dead=[mid_of(T)], tag="ld", prio=-30)
        ins = kload_ins(j); kloads[j] = ins
        prev = up.ins
        for x in ins:
            add(x, after=[(prev, 0)], dead=[mid_of(T)], tag="ld", prio=-25); prev = x
        last_vm[0] = prev
    j = T + cfg.LV
    if j < 16:
        up = add(salu(f"s_add_u32 s{sVo}, s{sVo}, 8192", [f"s{sVo}"], [f"s{sVo}", "scc"]),
                 after=[(mid_of(T), 0)] + ([(last_vm[0], 0)] if last_vm[0] else []), dead=[start_of(T + 1)], tag="ld", prio=-30)
        prev = up.ins; vdmas[j] = []
        for sm0, dm in vdma_ins(j):
            add(sm0, after=[(prev, 0)], dead=[start_of(T + 1)], tag="ld", prio=-28)
            add(dm, after=[(sm0, 1)], dead=[start_of(T + 1)], tag="ld", prio=-25); prev = dm
            vdmas[j].append(dm)
        last_vm[0] = prev

def qload_ins(qs):
    out = []
    for s in range(4):
        d = R("a", Q(qs, s), 4)
        out.append(I(f"buffer_load_dwordx4 {d}, v{vQA}, s[{sQ}:{sQ+3}], s{sQn+qs} offen offset:{off(s)}{cfg.qflags}", "vld",
                     rd=[f"v{vQA}", f"s{sQn+qs}", f"s[{sQ}:{sQ+3}]"], wr=[d]))
    return out
def items_qjit(T):
    n = n_of(T)
    for qs in range(4):
        g = n + qs
        for s, ins in enumerate(qload_ins(qs)):
            gd = g + 1
            dl = QKm[T, 1, qs + 1, 3] if qs + 1 < n else None
            add(ins, after=[(QKm[T, 1, qs, s], 0)], dead=[dl] if dl else [PVm[T - 1, 7, n_of(T - 1) - 1]], tag="qj", prio=-60)
def items_pf(T):
    a = add(salu(f"s_add_u32 s{sT0}, s{sQn}, 8192", [f"s{sQn}"], [f"s{sT0}", "scc"]), after=[(start_of(T), 0)], dead=[mid_of(T)], tag="pf")
    for k, so in enumerate((sQn, sT0)):
        ins = I(f"buffer_load_dword v{vDUM}, v{vPF}, s[{sQ}:{sQ+3}], s{so} offen", "vld", rd=[f"v{vPF}", f"s{so}", f"s[{sQ}:{sQ+3}]"], wr=[f"v{vDUM}"], cost=8)
        ins.nowait = True
        add(ins, after=[(a.ins, 0)], dead=[start_of(T + 1)], tag="pf")
def items_rowadv(T):
    for qs in range(4):
        a = add(salu(f"s_add_u32 s{sOr+qs}, s{sOr+qs}, 65536", [f"s{sOr+qs}"], [f"s{sOr+qs}", "scc"]), after=[(start_of(T), 0)], dead=[start_of(T + 2)], tag="adv", prio=50)
        add(salu(f"s_add_u32 s{sQn+qs}, s{sOr+qs}, 65536", [f"s{sOr+qs}"], [f"s{sQn+qs}", "scc"]), after=[(a.ins, 0)], dead=[start_of(T + 2)], tag="adv", prio=50)

wrot = [0]
def items_epilogue(T, endins):
    n = n_of(T)
    ri = {}
    prev = None
    for qs in range(n):
        p = 2 if qs == 4 else qs // 2
        h = 1 if qs == 4 else qs % 2
        la, lb = f"a{L(p) + 2*h}", f"a{L(p) + 2*h + 1}"
        x, y, r = f"v{vL0}", f"v{vL1}", f"v{vRI+qs}"
        dl = [PVm.get((T + 1, 0, qs), endins), endins]
        pa = [(prev, 0)] if prev else []
        i0 = add(valu(f"v_accvgpr_read_b32 {x}, {la}", [la], [x]), after=[(SMm[T, p], 12)] + pa, dead=dl, tag="ep", prio=-400)
        i1 = add(valu(f"v_accvgpr_read_b32 {y}, {lb}", [lb], [y]), after=[(SMm[T, p], 12)] + pa, dead=dl, tag="ep", prio=-400)
        i2 = add(valu(f"v_add_f32 {x}, {x}, {y}", [x, y], [x]), after=[(i0.ins, 0), (i1.ins, 0)], dead=dl, tag="ep", prio=-400)
        i3 = add(valu(f"v_rcp_f32 {r}, {x}", [x], [r], "trans"), after=[(i2.ins, 0)], dead=dl, tag="ep", prio=-400)
        i4 = add(valu(f"v_subrev_u32 {y}, s{sLO}, {x}", [x, f"s{sLO}"], [y]), after=[(i2.ins, 0)], dead=dl, tag="ep", prio=-399)
        i5 = add(valu(f"v_cmp_lt_u32 vcc, s{sRNG}, {y}", [y, f"s{sRNG}"], ["vcc"]), after=[(i4.ins, 0), (i3.ins, 0)], dead=dl, tag="ep", prio=-399)
        j0 = add(salu("s_cmp_lg_u64 vcc, 0", ["vcc"], ["scc"]), after=[(i5.ins, 2)], dead=dl, tag="ep", prio=-399)
        j0.ins.text += f"\n    s_cselect_b32 s{sT1}, s{sBIT}, 0\n    s_or_b32 s{sFAIL}, s{sFAIL}, s{sT1}\n    s_lshl_b32 s{sBIT}, s{sBIT}, 1"
        j0.ins.cost = 16
        prev = j0.ins
        ri[qs] = i3.ins
        zs = []
        if not (qs == 3 and n == 5 and False):
            for reg in (la, lb):
                dz = [SMm.get((T + 1, min(p, len(pairs(T + 1)) - 1)), endins), endins]
                add(valu(f"v_accvgpr_write_b32 {reg}, 0", [], [reg]), after=[(i0.ins, 0), (i1.ins, 0)], dead=dz, tag="ep", prio=0)
    lastst = {}
    for pb in range(4):
        for qs in range(n):
            w = vW[wrot[0] % 3]; wi = wrot[0] % 3; wrot[0] += 1
            cv = []
            for e in range(2):
                b = 2 * pb + e
                dl = [PVm.get((T + 1, b, qs), endins), endins]
                ms = []
                for r in range(4):
                    v = f"v{O(qs, b) + r}"
                    ms.append(add(valu(f"v_mul_f32 {v}, {v}, v{vRI+qs}", [v, f"v{vRI+qs}"], [v]),
                                  after=[(PVm[T, b, qs], 8), (ri[qs], 1)], dead=dl, tag="ep"))
                for h in range(2):
                    d = f"v{w + 2*e + h}"; a_, b_ = f"v{O(qs, b) + 2*h}", f"v{O(qs, b) + 2*h + 1}"
                    aft = [(ms[2*h].ins, 0), (ms[2*h+1].ins, 0)]
                    if wi in lastst: aft.append((lastst[wi], 2))
                    cv.append(add(valu(f"v_cvt_pk_bf16_f32 {d}, {a_}, {b_}", [a_, b_], [d]), after=aft, dead=dl, tag="ep"))
            dl = [PVm.get((T + 1, 2 * pb + 1, qs), endins), endins]
            sw = []
            for h in range(2):
                x, y = f"v{w + h}", f"v{w + 2 + h}"
                sw.append(add(valu(f"v_permlane16_swap_b32 {x}, {y}", [x, y], [x, y], "perm"),
                              after=[(cv[h].ins, 2), (cv[2 + h].ins, 2)], dead=dl, tag="ep", prio=-1))
            st = I(f"buffer_store_dwordx4 {R('v', w, 4)}, v{vOA}, s[{sO}:{sO+3}], s{sOr+qs} offen offset:{64*pb}{cfg.oflags}", "vst",
                   rd=[R("v", w, 4), f"v{vOA}", f"s{sOr+qs}", f"s[{sO}:{sO+3}]"])
            add(st, after=[(sw[0].ins, 0), (sw[1].ins, 0)], dead=dl, tag="ep", prio=-2)
            lastst[wi] = st

class Sched:
    def __init__(self, stream):
        self.stream = stream
        self.pos = {id(x): k for k, x in enumerate(stream)}
        self.over = 0
    def run(self, bb, its, fixed_after, marks=None, endins=None):
        stream, pos = self.stream, self.pos
        idx = {id(m): j for j, m in enumerate(bb)}
        for mid, lst in fixed_after.items():
            if mid in idx:
                for f in lst: idx[id(f)] = idx[mid]
        for j, lst in (marks or {}).items():
            for f in lst: idx[id(f)] = j
        if endins is not None: idx[id(endins)] = len(bb)
        waiting, act, bydead = {}, [], {}
        byins = {}
        for it in its:
            if it.placed: continue
            byins[id(it.ins)] = it
            d = min([idx[id(x)] for x in it.dead if x is not None and id(x) in idx] or [1 << 30])
            it.early = d + it.prio
            bydead.setdefault(d, []).append(it)
            w = {id(a) for a, _ in it.after if id(a) not in pos}
            nw[id(it)] = len(w)
            for a in w: waiting.setdefault(a, []).append(it)
            if not w: act.append(it)
        st = {"budget": 8, "first": True, "valu": False}
        def emit(x):
            pos[id(x)] = len(stream); stream.append(x)
            for it in waiting.pop(id(x), []):
                nw[id(it)] -= 1
                if nw[id(it)] == 0: act.append(it)
        def ready(it):
            n = len(stream)
            return all(n - pos[id(a)] - 1 >= dist for a, dist in it.after)
        def place(it):
            c = it.ins.cost; kd = it.ins.kind
            if kd == "salu" and st["first"]: c -= 4
            if kd in LGKM + VM and st["valu"]: c += 8
            if kd in VALU: st["valu"] = True
            act.remove(it); it.placed = True
            emit(it.ins); st["budget"] -= c; st["first"] = False
        def cands(pred):
            return sorted([it for it in act if pred(it) and ready(it)], key=lambda x: (x.early, x.seq))
        def force(limit):
            while True:
                due = [it for d in list(bydead) if d <= limit for it in bydead[d] if not it.placed]
                for d in [d for d in bydead if d <= limit]:
                    bydead[d] = [it for it in bydead[d] if not it.placed]
                    if not bydead[d]: del bydead[d]
                if not due: return
                stack = list(due); seen = set(); need = []
                while stack:
                    it = stack.pop()
                    if id(it) in seen: continue
                    seen.add(id(it)); need.append(it)
                    for a_, _ in it.after:
                        o = byins.get(id(a_))
                        if o is not None and not o.placed: stack.append(o)
                av = [it for it in need if nw[id(it)] == 0]
                if not av:
                    raise RuntimeError("deadlock: " + "; ".join(it.ins.text + " AFTER " + str([a for a, _ in it.after if id(a) not in pos]) for it in need[:6]))
                rs = [it for it in av if ready(it)]
                if not rs:
                    rs = cands(lambda x: x.ins.kind in VALU)[:1] or av
                rs.sort(key=lambda x: (0 if (x.ins.kind in LGKM + VM and not st["valu"]) else 1, x.early, x.seq))
                place(rs[0])
        force(0)
        for k, m in enumerate(bb):
            for f in (marks or {}).get(k, []): emit(f)
            emit(m)
            st.update(budget=8, first=True, valu=False)
            for f in fixed_after.get(id(m), []):
                emit(f); st["first"] = False
            c = cands(lambda x: x.ins.kind == "salu")
            if c and st["first"] and k + 1 < len(bb) and not getattr(cfg, "nosalu", False): place(c[0])
            tr = cands(lambda x: x.ins.kind == "trans")
            if m.pref == "T" and tr and st["budget"] >= 8:
                place(tr[0])
            else:
                mem = cands(lambda x: x.ins.kind in LGKM + VM)
                if mem and st["budget"] >= 4:
                    x = mem[0]
                    if x.ins.cost <= st["budget"] or x.early <= k + 8: place(x)
                while st["budget"] >= 4:
                    a = cands(lambda x: x.ins.kind in ("valu", "perm") or (x.ins.kind == "trans" and st["budget"] >= 8))
                    if not a: break
                    place(a[0])
            force(k + 1)
            if st["budget"] < 0: self.over -= st["budget"]
        if endins is not None: force(1 << 29)
nw = {}

sVC = 49
sTSB = 60
def stamp(k, cyc=False):
    if not cfg.stamps: return []
    r = sTSB + 2 * k
    return [I(f"s_mem{'time' if cyc else 'realtime'} s[{r}:{r+1}]", "salu", wr=[f"s[{r}:{r+1}]"])]

def V(text, rd, wr, kind="valu"): return I(text, kind, rd=rd, wr=wr)
def prologue():
    o = []
    o.append(I("s_cmp_ge_u32 s2, 256\n    s_cbranch_scc1 L_end", "br"))
    o += stamp(0) + stamp(1, True)
    o.append(salu("s_load_dwordx8 s[52:59], s[0:1], 0"))
    l, t, u, g = "v1", "v2", "v3", "v4"
    o += [V(f"v_lshrrev_b32 {t}, 6, v0", ["v0"], [t]),
          V(f"v_and_b32 {l}, 63, v0", ["v0"], [l]),
          V(f"v_readfirstlane_b32 s{sW}, {t}", [t], [f"s{sW}"]),
          V(f"v_lshrrev_b32 {g}, 4, {l}", [l], [g]),
          V(f"v_and_b32 {t}, 15, {l}", [l], [t]),
          V(f"v_lshlrev_b32 {t}, 8, {t}", [t], [t]),
          V(f"v_mul_u32_u24 {u}, {GST}, {g}", [g], [u]),
          V(f"v_add_u32 v{vQA}, {t}, {u}", [t, u], [f"v{vQA}"]),
          V(f"v_and_b32 {u}, 1, {g}", [g], [u]),
          V(f"v_lshl_add_u32 {t}, {u}, 5, {t}", [u, t], [t]),
          V(f"v_lshrrev_b32 {u}, 1, {g}", [g], [u]),
          V(f"v_lshl_add_u32 v{vOA}, {u}, 4, {t}", [u, t], [f"v{vOA}"]),
          V(f"v_bfe_u32 {t}, {l}, 1, 2", [l], [t]),
          V(f"v_xor_b32 {t}, {t}, {g}", [t, g], [t]),
          V(f"v_lshlrev_b32 {t}, 5, {t}", [t], [t]),
          V(f"v_lshrrev_b32 {u}, 3, {l}", [l], [u]),
          V(f"v_lshl_add_u32 {t}, {u}, 8, {t}", [u, t], [t]),
          V(f"v_and_b32 {u}, 1, {l}", [l], [u]),
          V(f"v_lshl_add_u32 v{vVD}, {u}, 4, {t}", [u, t], [f"v{vVD}"]),
          ]
    o += [salu(f"s_mul_i32 s{sT0}, s2, {HEADQ}", [], [f"s{sT0}"]),
          salu(f"s_lshl_b32 s{sT1}, s2, 17", [], [f"s{sT1}"]),
          salu(f"s_lshl_b32 s{sM0}, s{sW}, 10", [f"s{sW}"], [f"s{sM0}"]),
          salu(f"s_lshl_b32 s{sVo}, s{sW}, 11", [f"s{sW}"], [f"s{sVo}"]),
          salu(f"s_lshr_b32 s{sKo}, s{sW}, 1", [f"s{sW}"], [f"s{sKo}"]),
          salu(f"s_lshl_b32 s{sKo}, s{sKo}, 12"),
          salu(f"s_and_b32 s{sT2}, s{sW}, 1"),
          salu(f"s_lshl_b32 s{sT2}, s{sT2}, 7"),
          salu(f"s_add_u32 s{sKo}, s{sKo}, s{sT2}"),
          salu(f"s_lshl_b32 s{sOr}, s{sW}, 14"),
          salu(f"s_add_u32 s{sOr+1}, s{sOr}, 4096"),
          salu(f"s_add_u32 s{sOr+2}, s{sOr}, 8192"),
          salu(f"s_add_u32 s{sOr+3}, s{sOr}, 12288"),
          salu(f"s_lshl_b32 s{sOr+4}, s{sW}, 12"),
          salu(f"s_add_u32 s{sOr+4}, s{sOr+4}, {1280*256}"),
          ]
    o += [salu(f"s_mov_b32 s{sQn+k}, s{sOr+k}") for k in range(5)]
    o.append(I("s_waitcnt lgkmcnt(0)", "wait"))
    for srd, p, so, size in ((sK, 54, sT1, HEADK), (sQ, 52, sT0, HEADQ), (sV, 56, sT1, HEADK), (sO, 58, sT0, HEADQ)):
        o += [salu(f"s_add_u32 s{srd}, s{p}, s{so}"), salu(f"s_addc_u32 s{srd+1}, s{p+1}, 0"),
              salu(f"s_mov_b32 s{srd+2}, {size}"), salu(f"s_mov_b32 s{srd+3}, 0x20000")]
    def kl(j):
        r = [] if j == 0 else [salu(f"s_add_u32 s{sKo}, s{sKo}, 8192")]
        kloads[j] = kload_ins(j); return r + kloads[j]
    def vl(j):
        r = [] if j == 0 else [salu(f"s_add_u32 s{sVo}, s{sVo}, 8192")]
        vdmas[j] = []
        for a, b in vdma_ins(j): r += [a, b]; vdmas[j].append(b)
        return r
    o += kl(0) + qload_ins(0) + kl(1)
    for qs in range(1, 5): o += qload_ins(qs)
    kj, vj = 2, 0
    while kj < cfg.LK or vj < cfg.LV:
        if vj < cfg.LV: o += vl(vj); vj += 1
        if kj < cfg.LK: o += kl(kj); kj += 1
    o += [salu(f"s_add_u32 s{sQn+k}, s{sOr+k}, 65536") for k in range(4)]
    if cfg.codepf:
        o.append(I(f"s_getpc_b64 s[50:51]\n    s_and_b32 s50, s50, 0xffffff00", "salu"))
        o.append(V(f"v_lshlrev_b32 v5, 7, v0", ["v0"], ["v5"]))
        for k in range(2):
            x = I(f"global_load_dword v{vDUM}, v5, s[50:51]", "vld", rd=["v5"], wr=[f"v{vDUM}"]); x.nowait = True
            o.append(x)
            if k == 0: o.append(V("v_add_u32 v5, 0x8000, v5", ["v5"], ["v5"]))
    o += [salu(f"s_mov_b32 s{sC}, {CSCALE:#x}"), salu(f"s_mov_b32 s{sMASK}, 0xffff0000"),
          salu(f"s_mov_b32 s{sFAIL}, {0x1fffff if cfg.force_fallback else 0}"), salu(f"s_mov_b32 s{sBIT}, 1"), salu(f"s_mov_b32 s{sCNT}, 4"),
          salu(f"s_mov_b32 s{sLO}, 0x3f800000"), salu(f"s_mov_b32 s{sRNG}, 0x1e000000"),
          salu(f"s_lshl_b32 s{sVC}, s{sW}, 15"), salu(f"s_sub_u32 s{sVC}, s{sVC}, {RING}"),
          salu(f"s_lshl_b32 s{sT2}, s{sW}, 11")]
    o += [V(f"v_lshlrev_b32 {t}, 4, {l}", [l], [t]),
          V(f"v_add_u32 v{vKR}, {RING}, {t}", [t], [f"v{vKR}"]),
          V(f"v_add_u32 v{vKW}, s{sT2}, v{vKR}", [f"v{vKR}"], [f"v{vKW}"]),
          V(f"v_lshlrev_b32 v{vPF}, 7, {l}", [l], [f"v{vPF}"]),
          V(f"v_lshrrev_b32 {t}, 2, {l}", [l], [t]),
          V(f"v_lshlrev_b32 {t}, 7, {t}", [t], [t]),
          V(f"v_and_b32 {u}, 3, {l}", [l], [u]),
          V(f"v_lshl_add_u32 {t}, {u}, 3, {t}", [u, t], [t]),
          V(f"v_bfe_u32 {u}, {l}, 3, 2", [l], [u]),
          V(f"v_lshl_add_u32 v{vVA}, {u}, 5, {t}", [u, t], [f"v{vVA}"])]
    o += [V(f"v_xor_b32 v{vVA+c}, {32*c}, v{vVA}", [f"v{vVA}"], [f"v{vVA+c}"]) for c in range(1, 4)]
    o += [V(f"v_lshrrev_b32 {t}, 4, {l}", [l], [t]),
          V(f"v_xor_b32 {t}, {t}, {l}", [t, l], [t]),
          V(f"v_bfe_u32 {t}, {t}, 1, 1", [t], [t]),
          V(f"v_add_u32 {t}, -1, {t}", [t], [t]),
          V(f"v_and_b32 {t}, 0x3f803f80, {t}", [t], [t])]
    o += [V(f"v_accvgpr_write_b32 a{aSA+k}, {t}", [t], [f"a{aSA+k}"]) for k in range(4)]
    o += [V(f"v_and_b32 {u}, 1, {l}", [l], [u]),
          V(f"v_mul_u32_u24 {u}, 0xaaaa, {u}", [u], [u]),
          V(f"v_add_u32 v{vIDX}, 0x4444, {u}", [u], [f"v{vIDX}"])]
    o += [V(f"v_accvgpr_write_b32 a{aL+k}, 0", [], [f"a{aL+k}"]) for k in range(12)]
    for T in range(2):
        st = vKt[T]; ws = []
        for r in range(8):
            a = f"a{ST(T, 0) + r}"; x = f"v{st + r}"; tt = f"v{vKx[r % 2]}"
            o += [V(f"v_accvgpr_read_b32 {x}, {a}", [a], [x]),
                  V(f"v_lshlrev_b32 {tt}, 16, {x}", [x], [tt]),
                  V(f"v_and_b32 {x}, s{sMASK}, {x}", [x], [x]),
                  V(f"v_mul_f32 {tt}, s{sC}, {tt}", [tt], [tt]),
                  V(f"v_mul_f32 {x}, s{sC}, {x}", [x], [x]),
                  V(f"v_cvt_pk_bf16_f32 {x}, {tt}, {x}", [tt, x], [x])]
        for e in range(2):
            w = I(f"ds_write_b128 v{vKW}, {R('v', st + 4*e, 4)} offset:{T*8192 + e*1024}", "dsw", rd=[f"v{vKW}", R('v', st + 4*e, 4)])
            o.append(w); ws += [Item(w)] * 4
        rb = []
        for e in range(2):
            d = R("a", ST(T, e), 4)
            x = I(f"ds_read_b128 {d}, v{vKW} offset:{T*8192 + e*1024}", "dsr", rd=[f"v{vKW}"], wr=[d])
            o.append(x); rb.append(Item(x))
        kwrites[T] = ws; readback[T] = rb
    return o

def finale():
    a = L(2)
    t = []
    t.append("    s_nop 7\n    s_nop 3")
    t += [f"    v_accvgpr_read_b32 v{k}, a{a+k}" for k in range(4)]
    t += [f"    v_and_b32 v{k}, 0x7fffffff, v{k}" for k in range(4)]
    t += ["    v_max_u32 v0, v0, v1", "    v_max3_u32 v0, v0, v2, v3",
          "    v_cmp_le_u32 vcc, 0x7f800000, v0",
          "    s_nop 1",
          "    s_cmp_lg_u64 vcc, 0",
          f"    s_cselect_b32 s{sT0}, 1, 0",
          f"    s_lshl_b32 s{sT1}, s{sW}, 2",
          f"    s_add_u32 s{sT1}, s{sT1}, {RING}",
          f"    v_mov_b32 v0, s{sT0}", f"    v_mov_b32 v1, s{sT1}", f"    v_mov_b32 v2, {RING}",
          "    ds_write_b32 v1, v0", "    s_waitcnt lgkmcnt(0)", "    s_barrier",
          "    ds_read_b128 v[4:7], v2", "    s_waitcnt lgkmcnt(0)",
          "    v_or3_b32 v4, v4, v5, v6", "    v_or_b32 v4, v4, v7", "    s_nop 0",
          f"    v_readfirstlane_b32 s{sT0}, v4", "    s_nop 1",
          f"    s_cmp_lg_u32 s{sT0}, 0",
          f"    s_cselect_b32 s{sFAIL}, 0x1fffff, s{sFAIL}"]
    if cfg.stamps:
        t += ["    s_memrealtime s[%d:%d]" % (sTSB + 22, sTSB + 23), "    s_waitcnt vmcnt(0)",
              "    s_memrealtime s[%d:%d]" % (sTSB + 24, sTSB + 25), "    s_memtime s[%d:%d]" % (sTSB + 26, sTSB + 27),
              "    s_load_dwordx2 s[4:5], s[0:1], 40", "    s_waitcnt lgkmcnt(0)",
              "    s_mov_b32 s6, 0x100000", "    s_mov_b32 s7, 0x20000",
              f"    s_lshl_b32 s{sT0}, s2, 2", f"    s_add_u32 s{sT0}, s{sT0}, s{sW}", f"    s_lshl_b32 s{sT0}, s{sT0}, 6",
              "    v_mov_b32 v1, 0"]
        for k in range(14):
            t += [f"    v_mov_b32 v0, s{sTSB + 2*k}", f"    buffer_store_dword v0, v1, s[4:7], s{sT0} offen offset:{4*k}"]
    t += [f"    s_cmp_eq_u32 s{sFAIL}, 0", "    s_cbranch_scc1 L_end"]
    sJ, sRow, sKb, sVt = sT0, sT1, sT2, sKo
    f = ["    ; ---- slow path: rows whose unshifted exponent sum left the safe range are redone with the true max",
         "    s_waitcnt vmcnt(0)"]
    f += [f"    v_and_b32 v{vVA+c}, 0xffff, v{vVA+c}" for c in range(4)]
    f += ["L_fb_next:",
          f"    s_ff1_i32_b32 s{sJ}, s{sFAIL}", f"    s_bitset0_b32 s{sFAIL}, s{sJ}",
          f"    s_cmp_gt_u32 s{sJ}, 4", f"    s_cselect_b32 s{sKb}, 1, 0", f"    s_sub_u32 s{sKb}, s{sJ}, s{sKb}",
          f"    s_lshr_b32 s{sRow}, s{sKb}, 2", f"    s_lshl_b32 s{sRow}, s{sRow}, 16",
          f"    s_and_b32 s{sKb}, s{sKb}, 3", f"    s_lshl_b32 s{sKb}, s{sKb}, 12", f"    s_add_u32 s{sRow}, s{sRow}, s{sKb}",
          f"    s_lshl_b32 s{sKb}, s{sW}, 14", f"    s_add_u32 s{sRow}, s{sRow}, s{sKb}",
          f"    s_cmp_eq_u32 s{sJ}, 4", f"    s_cselect_b32 s{sRow}, s{sOr+4}, s{sRow}"]
    f += [f"    buffer_load_dwordx4 v[{4*s}:{4*s+3}], v{vQA}, s[{sQ}:{sQ+3}], s{sRow} offen offset:{off(s)}" for s in range(4)]
    def qk(dst, extra):
        r = [f"    buffer_load_dwordx4 v[{20+4*s}:{23+4*s}], v{vQA}, s[{sK}:{sK+3}], s{sKb} offen offset:{off(s)}" for s in range(4)]
        r += ["    s_waitcnt vmcnt(0)"]
        r += [f"    v_mfma_f32_16x16x32_bf16 v[{dst}:{dst+3}], v[{20+4*s}:{23+4*s}], v[{4*s}:{4*s+3}], {'0' if s == 0 else f'v[{dst}:{dst+3}]'}" for s in range(4)]
        r += [f"    s_add_u32 s{sKb}, s{sKb}, 4096", "    s_nop 9"]
        return r
    f += ["    v_mov_b32 v16, 0xff800000", f"    s_mov_b32 s{sKb}, 0", "L_fb_max:"]
    f += qk(36, None)
    f += ["    v_max3_f32 v16, v16, v36, v37", "    v_max3_f32 v16, v16, v38, v39",
          f"    s_cmp_lt_u32 s{sKb}, {HEADK}", "    s_cbranch_scc1 L_fb_max"]
    def xlane(reg, tmp, op):
        return [f"    v_mov_b32 v{tmp}, v{reg}", "    s_nop 1", f"    v_permlane16_swap_b32 v{reg}, v{tmp}", "    s_nop 1", f"    {op} v{reg}, v{reg}, v{tmp}",
                f"    v_mov_b32 v{tmp}, v{reg}", "    s_nop 1", f"    v_permlane32_swap_b32 v{reg}, v{tmp}", "    s_nop 1", f"    {op} v{reg}, v{reg}, v{tmp}"]
    f += xlane(16, 17, "v_max_f32")
    f += [f"    v_mul_f32 v17, s{sC}, v16", "    v_mov_b32 v18, 0"]
    f += [f"    v_mov_b32 v{64+k}, 0" for k in range(32)]
    f += [f"    s_mov_b32 s{sKb}, 0", f"    s_mov_b32 s{sVt}, 0", "L_fb_pv:"]
    f += qk(36, None) + qk(40, None)
    f += [f"    v_fma_f32 v{36+k}, v{36+k}, s{sC}, -v17" for k in range(8)]
    f += [f"    v_exp_f32 v{36+k}, v{36+k}" for k in range(8)]
    f += ["    s_nop 0"] + [f"    v_add_f32 v18, v18, v{36+k}" for k in range(8)]
    f += [f"    v_cvt_pk_bf16_f32 v{44+k}, v{36+2*k}, v{37+2*k}" for k in range(4)]
    f += [f"    v_add_u32 v{52+c}, s{sVt}, v{vVA+c}" for c in range(4)]
    for b in range(8):
        f += [f"    ds_read_b64_tr_b16 v[{48+2*blk}:{49+2*blk}], v{52+(b&3)} offset:{(b>>2)*32768 + blk*2048}" for blk in range(2)]
        f += ["    s_waitcnt lgkmcnt(0)", f"    v_mfma_f32_16x16x32_bf16 v[{64+4*b}:{67+4*b}], v[48:51], v[44:47], v[{64+4*b}:{67+4*b}]"]
    f += [f"    s_add_u32 s{sVt}, s{sVt}, 4096", f"    s_cmp_eq_u32 s{sVt}, 32768", f"    s_cselect_b32 s{sVt}, 65536, s{sVt}",
          f"    s_cmp_lt_u32 s{sKb}, {HEADK}", "    s_cbranch_scc1 L_fb_pv"]
    f += xlane(18, 17, "v_add_f32")
    f += ["    v_rcp_f32 v18, v18", "    s_nop 7"]
    f += [f"    v_mul_f32 v{64+k}, v{64+k}, v18" for k in range(32)]
    f += [f"    v_cvt_pk_bf16_f32 v{96+k}, v{64+2*k}, v{65+2*k}" for k in range(16)]
    f += ["    s_nop 1"]
    for pb in range(4):
        f += [f"    v_permlane16_swap_b32 v{96+4*pb+h}, v{98+4*pb+h}" for h in range(2)]
    f += [f"    buffer_store_dwordx4 v[{96+4*pb}:{99+4*pb}], v{vOA}, s[{sO}:{sO+3}], s{sRow} offen offset:{64*pb}" for pb in range(4)]
    f += ["    s_waitcnt vmcnt(0)", f"    s_cmp_lg_u32 s{sFAIL}, 0", "    s_cbranch_scc1 L_fb_next"]
    return t + f

def build():
    NT = 50
    for T in range(NT + 2): mk_qk(T); mk_pv(T); mk_sm(T)
    BARm[-1] = I("s_barrier", "bar"); BARm["V0"] = I("s_barrier", "bar")
    for T in range(1, NT + 2, 2): BARm[T] = I("s_barrier", "bar")
    pro = prologue()
    pro.append(BARm[-1]); pro += stamp(2)
    bb, start = [], {}
    for T in range(NT):
        start[T] = len(bb); bb += backbone_period(T)
    fixed = {id(QKm[T, 0, n_of(T) - 1, 3]): [BARm[T]] for T in range(1, NT, 2)}
    fixed[id(QKm[0, 1, 2, 3])] = [BARm["V0"]]
    labL = I("L_loop:", "label"); labL2 = I("; second instance", "label")
    def chk():
        pre = ""
        if cfg.stamps:
            r = sTSB + 12
            pre = "".join(f"s_mov_b64 s[{r+2*k+2}:{r+2*k+3}], s[{r+2*k}:{r+2*k+1}]\n    " for k in (2, 1, 0)) + f"s_memrealtime s[{r}:{r+1}]\n    "
        return I(pre + f"s_sub_u32 s{sCNT}, s{sCNT}, 1\n    s_cmp_eq_u32 s{sCNT}, 0\n    s_cbranch_scc1 L_tail", "br")
    chk1, chk2 = chk(), chk()
    brL = I("s_branch L_loop", "br")
    marks = {start[18]: stamp(5) + [labL], start[32]: [chk1], start[34]: [brL, labL2], start[48]: [chk2]}
    if cfg.stamps:
        marks[start[1]] = stamp(3); marks[start[16]] = stamp(4) + stamp(10, True)
    for T in range(16): items_loads(T)
    for T in range(NT):
        curT[0] = T
        items_softmax(T); items_kread(T)
        if T % 8 == 0 and T > 0: items_vtoggle(T)
        items_vread(T)
        if T % 16 == 15: items_qjit(T)
        if T % 16 == cfg.pf_period: items_pf(T)
        if T % 16 == 2 and T > 16: items_rowadv(T)
    for T in range(2, NT + 2): curT[0] = T; items_kwrite(T)
    curT[0] = -100
    items_epilogue(15, marks[start[18]][0]); items_epilogue(31, brL)
    BARm[-1].needs = [x.ins for T in (0, 1) for x in kwrites[T]]
    BARm["V0"].needs = list(vdmas[0])
    for T in range(1, NT, 2):
        nd = [kreads[t, blk, s].ins for t in (T - 1, T) for blk in range(2) for s in range(4)]
        nd += [x.ins for t in (T + 1, T + 2) for x in kwrites[t]]
        nd += [x.ins for t in (T - 1, T) if t in readback for x in readback[t]]
        nd += [x for t in (T, T + 1) if t in vdmas and t > 0 for x in vdmas[t]]
        BARm[T].needs = nd
    stream = list(pro)
    sc = Sched(stream)
    sc.run(bb, items, fixed, marks)
    p = {id(x): k for k, x in enumerate(stream)}
    ref = {(it.T[0] - 16, it.T[1]): p[id(it.ins)] < p[id(brL)] for it in items if it.placed and 32 <= it.T[0] < 40}
    cut = marks[start[18]][0]
    for it in items:
        r = ref.get(it.T)
        if r is True: it.dead = list(it.dead) + [cut]
        elif r is False: it.after.append((labL, 0))
        it.placed = False
    stream = list(pro)
    sc = Sched(stream)
    sc.run(bb, items, fixed, marks)
    sys.stderr.write(f"overflow cycles (periods 0..{NT-1}): {sc.over}\n")
    p = {id(x): k for k, x in enumerate(stream)}
    iL, iC1, iBr, iL2, iC2 = p[id(labL)], p[id(chk1)], p[id(brL)], p[id(labL2)], p[id(chk2)]
    segP = stream[:iL]; segL = stream[iL:iC1 + 1]; segB = stream[iC1 + 1:iBr + 1]; segL2 = stream[iL2:iC2 + 1]
    a = [x.text for x in segL[1:]]; b = [x.text for x in segL2[1:]]
    if a != b:
        for k, (x, y) in enumerate(zip(a, b)):
            if x != y: sys.stderr.write(f"loop mismatch at {k}: {x} | {y}\n"); break
        raise SystemExit("loop instances differ")
    mp = {id(y): x for x, y in zip(segL, segL2)}
    for x, y in zip(segL, segL2): x.needs = x.needs + [mp.get(id(z), z) for z in y.needs]
    for it in items:
        if it.placed and p[id(it.ins)] > iC2: it.placed = False
    keep = [it for it in items if not it.placed and it.tag in ("sm", "v") and
            all(id(a_) in p and p[id(a_)] <= iC2 or True for a_, _ in it.after)]
    TL = 47
    keep = [it for it in keep if any(id(d) in {id(PVm[t, b, q]) for t in (TL - 1, TL) for b in range(8) for q in range(4)} for d in it.dead if d is not None)]
    items.clear(); items.extend(keep)
    endT = I("; end of tail", "label")
    va = add(valu(f"v_add_u32 v{vVD}, s{sVC}, v{vKR}", [f"v{vKR}"], [f"v{vVD}"]), dead=[PVm[TL, 2, 0]], tag="vc")
    for j in range(32):
        buf = Kf(0, 0) + 4 * (j % 8)
        VCm[j] = mfma(L(2), buf, buf, j == 0, dk="a")
    for j in range(32):
        d = R("a", Kf(0, 0) + 4 * (j % 8), 4)
        add(I(f"ds_read_b128 {d}, v{vVD} offset:{j*1024}", "dsr", rd=[f"v{vVD}"], wr=[d]),
            after=[(va.ins, 0)] + ([(VCm[j - 8], 0)] if j >= 8 else []), dead=[VCm[j]], tag="vc", prio=-6)
    items_epilogue(TL, endT)
    tbb = backbone_period(48, tail=True)
    known = {id(x) for x in stream[:iC2 + 1]} | {id(x) for x in tbb} | {id(it.ins) for it in items}
    for it in items: it.after = [(a_, d_) for a_, d_ in it.after if id(a_) in known]
    tstream = stream[:iC2 + 1]
    sc2 = Sched(tstream)
    labT = I("L_tail:", "label")
    sc2.run(tbb, items, {}, {0: [labT]}, endins=endT)
    segT = tstream[iC2 + 1:]
    assert segT[0] is labT, segT[:3]
    for x in segT: x.needs = [mp.get(id(z), z) for z in x.needs]
    linear = segP + segL + segB + segL + segT
    waits = insert_waits(linear)
    nops = fix_hazards(linear, waits)
    sys.stderr.write(f"instr: P {len(segP)} L {len(segL)} B {len(segB)} T {len(segT)}; waits {len(waits)}; nops {sum(nops.values())} at {len(nops)} sites\n")
    body = render(segP, waits, nops) + render(segL, waits, nops) + render(segB, waits, nops) + render(segT, waits, nops)
    return body

HEADER = open("standalone__mha_softmax__near_ridge.s.ref").read().split("; Override launch")[0]
def main():
    body = build()
    out = HEADER + f"""; One workgroup (4 waves x 512 registers) per (batch, head).  V stays in LDS, K (pre-scaled by log2(e)/sqrt(D))
; stays in registers and is re-published through a small LDS ring; generated by my own scheduling script.
; @launch grid=(256,1,1) block=(256,1,1) lds=163840
.amdgcn_target "amdgcn-amd-amdhsa--gfx950"
.text
.globl {KNAME}
.p2align 8
.type {KNAME},@function
{KNAME}:
""" + "\n".join(body) + "\n" + "\n".join(finale()) + f"""
L_end:
    s_endpgm
.section .rodata,"a"
.p2align 6
.amdhsa_kernel {KNAME}
  .amdhsa_next_free_vgpr 512
  .amdhsa_next_free_sgpr 102
  .amdhsa_accum_offset 256
  .amdhsa_group_segment_fixed_size 0
  .amdhsa_kernarg_size 48
  .amdhsa_user_sgpr_count 2
  .amdhsa_user_sgpr_kernarg_segment_ptr 1
  .amdhsa_system_sgpr_workgroup_id_x 1
.end_amdhsa_kernel
"""
    open(sys.argv[1], "w").write(out)
main()
```

```python
import sys, struct, math
from core import *

class Cfg:
    dmap = "B"
    LK = 5
    LV = 3
    CUT = 6
    leadT = 11
    ta_slow = 250
    ta_fast = 90
    v0first = False
    qpf0 = 8
    lead = 2
    qflags = " nt"
    oflags = ""
    kvflags = " nt"
    pfflags = " nt"
    pf_period = 11
    stamps = 0
    dbg = -1
    force_fallback = False
    vahead = 2
    codepf = False
cfg = Cfg()
for a in sys.argv[2:]:
    k, v = a.split("=", 1)
    old = getattr(cfg, k)
    setattr(cfg, k, (v == "1") if isinstance(old, bool) else type(old)(v.replace("+", " ")))

KNAME = "standalone__mha_softmax__near_ridge_kernel"
SQ, SK, D = 1312, 512, 128
HEADQ = SQ * D * 2
HEADK = SK * D * 2
RING = 131072
CSCALE = struct.unpack("<I", struct.pack("<f", math.log2(math.e) / math.sqrt(D)))[0]

vO, vP, vS, vVf = 0, 160, 200, 208
vVA = 224
vKR, vKW, vQA, vOA, vPF, vIDX, vVD = 228, 229, 230, 231, 232, 233, 234
vT = 235
vKt = [236, 244]; vKx = [252, 253]
vW = [236, 240, 244]
vRI = 248
vL0, vL1, vDUM = 253, 254, 255
aQ, aST, aKf, aL, aSA = 0, 80, 208, 240, 252
def O(qs, b): return vO + 32 * qs + 4 * b
def P(T, qs): return vP + 20 * (T % 2) + 4 * qs
def S(c): return vS + 4 * (c % 2)
def Vf(f): return vVf + 4 * (f % 4)
def Q(qs, s): return aQ + 16 * qs + 4 * s
def Kf(blk, s): return aKf + 16 * blk + 4 * s
def ST(j, e): return aST + 8 * (j % 16) + 4 * e
def L(p): return aL + 4 * p
sQ, sK, sV, sO = 8, 12, 16, 20
sW = 24; sC = 25; sMASK = 26; sFAIL = 27; sBIT = 28; sCNT = 29
sOr = 30
sQn = 35
sKo, sVo, sM0 = 40, 41, 42
sT0, sT1, sT2 = 43, 44, 45
sLO, sRNG = 46, 47
sTS = 48
def off(s): return 64 * s if cfg.dmap == "A" else 128 * (s >> 1) + 16 * (s & 1)
GST = 16 if cfg.dmap == "A" else 32

def n_of(T): return 5 if T < 16 else 4

def mfma(d, a, b, zero, dk="v", ak="a", bk="a"):
    D_, A_, B_ = R(dk, d, 4), R(ak, a, 4), R(bk, b, 4)
    return I(f"v_mfma_f32_16x16x32_bf16 {D_}, {A_}, {B_}, {'0' if zero else D_}", "mfma",
             rd=[A_, B_] + ([] if zero else [D_]), wr=[D_], acc=not zero)
def valu(text, rd, wr, kind="valu"): return I(text, kind, rd=rd, wr=wr)
def salu(text, rd=(), wr=()): return I(text, "salu", rd=rd, wr=wr)

class Item:
    __slots__ = ("ins", "after", "dead", "prio", "early", "tag", "placed", "T", "seq")
    def __init__(self, ins, after=(), dead=None, early=None, tag="", prio=0):
        self.ins = ins; self.after = list(after); self.dead = dead; self.early = early
        self.tag = tag; self.prio = prio; self.placed = False

QKm, PVm, SMm, BARm, VCm = {}, {}, {}, {}, {}
def chain(T, g):
    if T == 15: return (g % 2, g // 2)
    return divmod(g, n_of(T))
def lastchain(T, blk): return (blk, n_of(T) - 1)
def mk_qk(T):
    n = n_of(T)
    for g in range(2 * n):
        blk, qs = chain(T, g)
        for s in range(4):
            QKm[T, blk, qs, s] = mfma(S(g), Kf(blk, s), Q(qs, s), s == 0)
def mk_pv(T):
    for b in range(8):
        for qs in range(n_of(T)):
            PVm[T, b, qs] = mfma(O(qs, b), Vf(b), P(T, qs), T % 16 == 0, ak="v", bk="v")
def pairs(T): return [0, 1, 2] if n_of(T) == 5 else [0, 1]
def pair_lo(p): return 3 if p == 2 else 2 * p
def mk_sm(T):
    for p in pairs(T):
        d, b = R("a", L(p), 4), R("v", P(T, pair_lo(p)), 8)
        SMm[T, p] = I(f"v_smfmac_f32_16x16x64_bf16 {d}, {R('a', aSA, 4)}, {b}, v{vIDX}", "smf",
                      rd=[d, b, R("a", aSA, 4), f"v{vIDX}"], wr=[d], acc=True)
def pvlist(T): return [PVm[T, b, qs] for b in range(8) for qs in range(n_of(T))]

def backbone_period(T, tail=False):
    pv = []
    if T >= 2: pv += pvlist(T - 2)[-4:]
    if T >= 1: pv += pvlist(T - 1) if tail else pvlist(T - 1)[:-4]
    sm = [SMm[T - 1, p] for p in pairs(T - 1)] if T >= 1 else []
    out = []
    if tail:
        out += pv[:4] + [sm[0]] + pv[4:8] + sm[1:]
        rest = pv[8:]
        vc = [VCm[j] for j in range(32)]
        out += rest + vc
        for k, m in enumerate(out): m.pref = "T" if (k < 4) else "D"
        return out
    n = n_of(T); G = 2 * n
    boundary = T > 0 and T % 16 == 0
    if boundary:
        lead = cfg.leadT if T == 16 else cfg.lead
        nl = 4 * lead
        head = pv[:nl]; pv = pv[nl:]
        if lead >= 2:
            head = head[:4] + [sm[0]] + head[4:8] + sm[1:] + head[8:]
            sm = []
        for k, m in enumerate(head): m.pref = "T" if k < 4 else "D"
        out += head
    if T == 1: cnt = [0] + [4] * (G - 1)
    else:
        cnt = [len(pv) // G + (1 if g < len(pv) % G else 0) for g in range(G)]
    smpos = {}
    if sm:
        if boundary: spots = [0, 1, 1]
        else: spots = [1, G // 2 + 1, G - 2] if len(sm) == 3 else [1, G // 2 + 1]
        for m, g in zip(sm, spots): smpos.setdefault(g, []).append(m)
    k = 0
    for g in range(G):
        blk, qs = chain(T, g)
        grp = [QKm[T, blk, qs, s] for s in range(4)] + pv[k:k + cnt[g]]
        k += cnt[g]
        for j, m in enumerate(grp): m.pref = "T" if (j % 2 == 0 and j < 8) else "D"
        if len(grp) == 4:
            for m in grp: m.pref = "T"
        out += grp
        for m in smpos.get(g, []):
            m.pref = "D"; out.append(m)
    return out

items = []
curT = [-200]
ordn = {}
def add(ins, **kw):
    it = Item(ins, **kw); ordn[curT[0]] = ordn.get(curT[0], 0) + 1; it.T = (curT[0], ordn[curT[0]]); it.seq = len(items); items.append(it); return it

cvts = {}
def items_softmax(T):
    n = n_of(T)
    for g in range(2 * n):
        blk, qs = chain(T, g)
        last = QKm[T, blk, qs, 3]
        if g + 2 < 2 * n: b2, q2 = chain(T, g + 2); nxt = QKm[T, b2, q2, 0]
        else: nxt = QKm.get((T + 1,) + chain(T + 1, g + 2 - 2 * n) + (0,))
        use = PVm[T, 0, qs]
        if g + 1 < 2 * n: b1, q1 = chain(T, g + 1); ng = QKm[T, b1, q1, 0]
        elif (T + 1) % 16 == 0 and cfg.lead >= 1: ng = pvlist(T - 1)[-4]
        else: ng = QKm[T + 1, 0, 0, 0]
        ex = []
        for r in range(4):
            v = f"v{S(g)+r}"
            ex.append(add(valu(f"v_exp_f32 {v}, {v}", [v], [v], "trans"), after=[(last, 8), (ng, 0)] + ([(ex[-1].ins, 0)] if ex else []),
                          dead=[nxt, use], tag="sm"))
        cl = []
        for h in range(2):
            d = f"v{P(T, qs) + 2*blk + h}"; a, b = f"v{S(g)+2*h}", f"v{S(g)+2*h+1}"
            aft = [(ex[2*h].ins, 1), (ex[2*h+1].ins, 1)]
            if (T - 2, 7, qs) in PVm: aft.append((PVm[T - 2, 7, qs], 0))
            for p in pairs(T - 2) if T >= 2 else []:
                if pair_lo(p) <= qs <= pair_lo(p) + 1: aft.append((SMm[T - 2, p], 0))
            dl = [nxt, use] + [SMm[T, p] for p in pairs(T) if pair_lo(p) <= qs <= pair_lo(p) + 1]
            cl.append(add(valu(f"v_cvt_pk_bf16_f32 {d}, {a}, {b}", [a, b], [d]), after=aft, dead=dl, tag="sm"))
        cvts[T, blk, qs] = cl

kreads = {}
def bar_pub(T):
    return BARm[T - 1] if T < 16 else BARm[(T // 2) * 2 - 1]
def items_kread(T):
    n = n_of(T)
    for blk in range(2):
        for s in range(4):
            d = R("a", Kf(blk, s), 4)
            ins = I(f"ds_read_b128 {d}, v{vKR} offset:{(T % 4) * 8192 + (4*blk+s) * 1024}", "dsr", rd=[f"v{vKR}"], wr=[d])
            aft = [(bar_pub(T), 0)]
            if T >= 1: aft.append((QKm[T - 1, blk, n_of(T - 1) - 1, s], 0))
            dl = [QKm[T, blk, 0, 0]]
            if blk == 1 and T % 2 == 1 and T != 15: dl.append(BARm[T])
            kreads[T, blk, s] = add(ins, after=aft, dead=dl, tag="qk", prio=-6)
vreads = {}
vtog = {}
def vbar(T):
    if T == 0: return BARm["V0"]
    return BARm[T]
def items_vread(T):
    for b in range(8):
        f = 8 * T + b
        pT, pb = divmod(f - 4, 8)
        aft = []
        if f >= 4: aft.append((PVm[pT, pb, n_of(pT) - 1], 0))
        aT, ab = divmod(f - cfg.vahead - 1, 8)
        if f - cfg.vahead - 1 >= 0: aft.append((PVm[aT, ab, n_of(aT) - 1], 0))
        if T < 16: aft.append((vbar(T), 0))
        c, dh = b & 3, b >> 2
        if T % 8 == 0 and T > 0 and dh == 0: aft.append((vtog[T, c].ins, 0))
        prev = None
        for blk in range(2):
            d = R("v", Vf(f) + 2 * blk, 2)
            ins = I(f"ds_read_b64_tr_b16 {d}, v{vVA+c} offset:{dh*32768 + (T % 8)*4096 + blk*2048}", "dsr",
                    rd=[f"v{vVA+c}"], wr=[d])
            vreads[T, b, blk] = add(ins, after=aft + ([(prev, 0)] if prev else []), dead=[PVm[T, b, 0]], tag="v", prio=-6)
            prev = ins
def items_vtoggle(T):
    for c in range(4):
        v = f"v{vVA+c}"
        vtog[T, c] = add(valu(f"v_xor_b32 {v}, 0x10000, {v}", [v], [v]), after=[(vreads[T - 1, 4 + c, 1].ins, 0)],
                         dead=[PVm[T, c, 0]], tag="v", prio=-12)

kwrites = {}
kloads = {}
def items_kwrite(T):
    m = T // 2
    if T < 16: opn, cls = BARm[max(T - 3, -1)], BARm[T - 1]
    else: opn, cls = BARm[2 * m - 3], BARm[2 * m - 1]
    ws = []
    if T < 16:
        st = vKt[T % 2]
        prev_w = kwrites.get(T - 2)
        for r in range(8):
            a = f"a{ST(T, 0) + r}"; x = f"v{st + r}"; t = f"v{vKx[r % 2]}"
            aft = [(kloads[T][r // 4], 0)]
            if prev_w: aft.append((prev_w[r].ins, 0))
            if r >= 2: aft.append((chain_prev[r % 2], 0))
            aft.append((mid_of(T - 2) if T >= 2 else QKm[0, 0, 1, 3], 0))
            i0 = add(valu(f"v_accvgpr_read_b32 {x}, {a}", [a], [x]), after=aft, dead=[cls], tag="qk", prio=-40)
            i1 = add(valu(f"v_lshlrev_b32 {t}, 16, {x}", [x], [t]), after=[(i0.ins, 0)] + ([(chain_prev[r % 2], 0)] if chain_prev[r % 2] else []), dead=[cls], tag="qk", prio=-39)
            i2 = add(valu(f"v_and_b32 {x}, s{sMASK}, {x}", [x, f"s{sMASK}"], [x]), after=[(i1.ins, 0)], dead=[cls], tag="qk", prio=-38)
            i3 = add(valu(f"v_mul_f32 {t}, s{sC}, {t}", [t, f"s{sC}"], [t]), after=[(i1.ins, 0)], dead=[cls], tag="qk", prio=-37)
            i4 = add(valu(f"v_mul_f32 {x}, s{sC}, {x}", [x, f"s{sC}"], [x]), after=[(i2.ins, 0)], dead=[cls], tag="qk", prio=-36)
            i5 = add(valu(f"v_cvt_pk_bf16_f32 {x}, {t}, {x}", [t, x], [x]), after=[(i3.ins, 0), (i4.ins, 0)], dead=[cls], tag="qk", prio=-35)
            chain_prev[r % 2] = i5.ins
            w = I(f"ds_write_b32 v{vKW}, {x} offset:{(T % 4)*8192 + (r//4)*1024 + (r % 4)*4}", "dsw", rd=[f"v{vKW}", x])
            ws.append(add(w, after=[(opn, 0), (i5.ins, 0)], dead=[cls], tag="qk", prio=-20))
        rb = []
        for e in range(2):
            d = R("a", ST(T, e), 4)
            ins = I(f"ds_read_b128 {d}, v{vKW} offset:{(T % 4)*8192 + e*1024}", "dsr", rd=[f"v{vKW}"], wr=[d])
            rb.append(add(ins, after=[(ws[4*e + k].ins, 0) for k in range(4)], dead=[cls], tag="qk", prio=-8))
        readback[T] = rb
    else:
        for r in range(8):
            a = f"a{ST(T, 0) + r}"
            w = I(f"ds_write_b32 v{vKW}, {a} offset:{(T % 4)*8192 + (r//4)*1024 + (r % 4)*4}", "dsw", rd=[f"v{vKW}", a])
            ws.append(add(w, after=[(opn, 0)] + ([(ws[-1].ins, 0)] if ws else ([(kwrites[T-1][-1].ins, 0)] if T % 2 else [])),
                          dead=[cls], tag="qk", prio=-10))
    kwrites[T] = ws
chain_prev = [None, None]
readback = {}
def mid_of(T): return QKm[(T,) + chain(T, n_of(T)) + (0,)]
def bar_spot(T): return QKm[(T,) + chain(T, n_of(T) - 1) + (3,)]
def start_of(T): return QKm[T, 0, 0, 0]

def kload_ins(j):
    out = []
    for e in range(2):
        d = R("a", ST(j, e), 4)
        out.append(I(f"buffer_load_dwordx4 {d}, v{vQA}, s[{sK}:{sK+3}], s{sKo} offen offset:{off(1)*e}{cfg.kvflags}", "vld",
                     rd=[f"v{vQA}", f"s{sKo}", f"s[{sK}:{sK+3}]"], wr=[d]))
    return out
def vdma_ins(j):
    out = []
    for dh in range(2):
        m0 = (j >> 3) * 65536 + dh * (32768 - 128) + (j & 7) * 4096
        out.append((salu(f"s_add_u32 m0, s{sM0}, {m0}", [f"s{sM0}"], ["m0", "scc"]),
                    I(f"buffer_load_dwordx4 v{vVD}, s[{sV}:{sV+3}], s{sVo} offen offset:{128*dh}{cfg.kvflags} lds", "dma",
                      rd=[f"v{vVD}", f"s{sVo}", "m0", f"s[{sV}:{sV+3}]"])))
    return out
vdmas = {}
last_vm = [None]
def add_kload(j, after, dead):
    up = add(salu(f"s_add_u32 s{sKo}, s{sKo}, 8192", [f"s{sKo}"], [f"s{sKo}", "scc"]),
             after=after + ([(last_vm[0], 0)] if last_vm[0] else []), dead=dead, tag="ld", prio=-30)
    ins = kload_ins(j); kloads[j] = ins
    prev = up.ins
    for x in ins:
        add(x, after=[(prev, 0)], dead=dead, tag="ld", prio=-25); prev = x
    last_vm[0] = prev
def add_vdma(j, after, dead):
    prev = last_vm[0]
    if j > 0:
        prev = add(salu(f"s_add_u32 s{sVo}, s{sVo}, 8192", [f"s{sVo}"], [f"s{sVo}", "scc"]),
                   after=after + ([(prev, 0)] if prev else []), dead=dead, tag="ld", prio=-30).ins
    vdmas[j] = []
    for sm0, dm in vdma_ins(j):
        add(sm0, after=after + [(prev, 0)], dead=dead, tag="ld", prio=-28)
        add(dm, after=[(sm0, 1)], dead=dead, tag="ld", prio=-25); prev = dm
        vdmas[j].append(dm)
    last_vm[0] = prev
def items_loads(T):
    if T == 0:
        def spot(g): return QKm[(0,) + chain(0, g) + (0,)], QKm[(0,) + chain(0, g) + (1,)]
        a, d = spot(0)
        for x in qload_ins(4):
            add(x, after=[(a, 0)] + ([(last_vm[0], 0)] if last_vm[0] else []), dead=[d], tag="ld", prio=-50); last_vm[0] = x
        kj, vj, g = 2, 0, 1
        while kj < cfg.LK or vj < cfg.LV:
            a, d = spot(g); g += 1
            if cfg.v0first and vj < cfg.LV: add_vdma(vj, [(a, 0)], [d]); vj += 1
            if kj < cfg.LK: add_kload(kj, [(a, 0)], [d]); kj += 1
            if not cfg.v0first and vj < cfg.LV: add_vdma(vj, [(a, 0)], [d]); vj += 1
        a, d = spot(max(g, 5))
        if cfg.LK < 16: add_kload(cfg.LK, [(a, 0)], [d])
        a, d = spot(max(g + 1, 7))
        if cfg.LV < 16: add_vdma(cfg.LV, [(a, 0)], [d])
        return
    if T + cfg.LK < 16: add_kload(T + cfg.LK, [(start_of(T), 0)], [start_of(T + 1)])
    if T + cfg.LV < 16: add_vdma(T + cfg.LV, [(mid_of(T), 0)], [mid_of(T + 1)])

def qload_ins(qs, dst=None):
    out = []
    for s in range(4):
        d = R("a", Q(qs, s), 4) if dst is None else R(dst[s][0], dst[s][1], 4)
        out.append(I(f"buffer_load_dwordx4 {d}, v{vQA}, s[{sQ}:{sQ+3}], s{sQn+qs} offen offset:{off(s)}{cfg.qflags}", "vld",
                     rd=[f"v{vQA}", f"s{sQn+qs}", f"s[{sQ}:{sQ+3}]"], wr=[d]))
    return out
def items_qjit(T):
    prev = None
    for qs in range(4):
        for s_, ins in enumerate(qload_ins(qs)):
            add(ins, after=[(QKm[T, 1, qs, s_], 0)] + ([(prev, 0)] if prev else []), dead=[QKm[T + 1, 0, qs, 0]], tag="qj", prio=-200)
            prev = ins
UNITS = [O(4, b) for b in range(8)] + [P(0, 4), P(1, 4)] + [236, 240, 244]
QBUF = {(qs, s_): ("v", UNITS[4 * qs + s_]) for qs in range(3) for s_ in range(4)}
QBUF.update({(3, s_): ("a", Q(4, s_)) for s_ in range(4)})
unit_free = {}
def items_qpf(T):
    base = T - 15
    prev = None
    for qs in range(4):
        lds_ = qload_ins(qs, [QBUF[qs, s_] for s_ in range(4)])
        for s_, ins in enumerate(lds_):
            k = 4 * qs + s_
            add(ins, after=[(start_of(base + cfg.qpf0), 0), (rowadv_done[base], 0)] + ([(prev, 0)] if prev else []),
                dead=[start_of(base + 14)], tag="qp", prio=-200 + k)
            prev = ins
            kind, r0 = QBUF[qs, s_]
            for r in range(4):
                d, a_ = f"a{Q(qs, s_) + r}", f"{kind}{r0 + r}"
                op = "v_accvgpr_write_b32" if kind == "v" else "v_accvgpr_mov_b32"
                c = add(valu(f"{op} {d}, {a_}", [a_], [d]), after=[(QKm[T, 1, qs, s_], 0)], dead=[QKm[T + 1, 0, qs, s_]], tag="qc", prio=-3)
                if kind == "v": unit_free.setdefault((T, r0), []).append(c.ins)
rowadv_done = {}
def items_rowadv(T):
    for qs in range(4):
        a = add(salu(f"s_add_u32 s{sOr+qs}, s{sOr+qs}, 65536", [f"s{sOr+qs}"], [f"s{sOr+qs}", "scc"]), after=[(start_of(T), 0)], dead=[start_of(T + 2)], tag="adv", prio=50)
        b = add(salu(f"s_add_u32 s{sQn+qs}, s{sOr+qs}, 65536", [f"s{sOr+qs}"], [f"s{sQn+qs}", "scc"]),
                after=[(a.ins, 0)] + ([(rowadv_done[T - T % 16], 0)] if qs else []), dead=[start_of(T + 2)], tag="adv", prio=50)
        rowadv_done[T - T % 16] = b.ins

wrot = [0]
def items_epilogue(T, endins):
    n = n_of(T)
    ri = {}
    prev = None
    for qs in range(n):
        p = 2 if qs == 4 else qs // 2
        h = 1 if qs == 4 else qs % 2
        la, lb = f"a{L(p) + 2*h}", f"a{L(p) + 2*h + 1}"
        x, y, r = f"v{vL0}", f"v{vL1}", f"v{vRI+qs}"
        dl = [PVm.get((T + 1, 0, qs), endins), endins]
        pa = [(prev, 0)] if prev else []
        i0 = add(valu(f"v_accvgpr_read_b32 {x}, {la}", [la], [x]), after=[(SMm[T, p], 12)] + pa, dead=dl, tag="ep", prio=-400)
        i1 = add(valu(f"v_accvgpr_read_b32 {y}, {lb}", [lb], [y]), after=[(SMm[T, p], 12)] + pa, dead=dl, tag="ep", prio=-400)
        i2 = add(valu(f"v_add_f32 {x}, {x}, {y}", [x, y], [x]), after=[(i0.ins, 0), (i1.ins, 0)], dead=dl, tag="ep", prio=-400)
        i3 = add(valu(f"v_rcp_f32 {r}, {x}", [x], [r], "trans"), after=[(i2.ins, 0)], dead=dl, tag="ep", prio=-400)
        i4 = add(valu(f"v_subrev_u32 {y}, s{sLO}, {x}", [x, f"s{sLO}"], [y]), after=[(i2.ins, 0)], dead=dl, tag="ep", prio=-399)
        i5 = add(valu(f"v_cmp_lt_u32 vcc, s{sRNG}, {y}", [y, f"s{sRNG}"], ["vcc"]), after=[(i4.ins, 0), (i3.ins, 0)], dead=dl, tag="ep", prio=-399)
        j0 = add(salu("s_cmp_lg_u64 vcc, 0", ["vcc"], ["scc"]), after=[(i5.ins, 2)], dead=dl, tag="ep", prio=-399)
        j0.ins.text += f"\n    s_cselect_b32 s{sT1}, s{sBIT}, 0\n    s_or_b32 s{sFAIL}, s{sFAIL}, s{sT1}\n    s_lshl_b32 s{sBIT}, s{sBIT}, 1"
        j0.ins.cost = 16
        prev = j0.ins
        ri[qs] = i3.ins
        zs = []
        if not (qs == 3 and n == 5 and False):
            for reg in (la, lb):
                dz = [SMm.get((T + 1, min(p, len(pairs(T + 1)) - 1)), endins), endins]
                add(valu(f"v_accvgpr_write_b32 {reg}, 0", [], [reg]), after=[(i0.ins, 0), (i1.ins, 0)], dead=dz, tag="ep", prio=0)
    if n == 5: pool = [(u, []) for u in (236, 240, 244)] + [(P(T - 1, 4), [(PVm[T - 1, 7, 4], 0), (SMm[T - 1, 2], 0)])]
    else: pool = [(u, [(x, 0) for x in unit_free.get((T, u), [])]) for u in UNITS[-1:] + UNITS[:-1]]
    prevst = None
    order = [(pb, qs) for pb in range(4) for qs in ([4, 0, 1, 2, 3] if n == 5 else range(4))]
    late = []
    for pb, qs in order:
        if qs == 4: w, wa = O(4, 2 * pb), []
        else: w, wa = pool.pop(0)
        cv = []
        for e in range(2):
            b = 2 * pb + e
            dl = [PVm.get((T + 1, b, qs), PVm.get((T + 1, b, 0), endins)), endins]
            ms = []
            for r in range(4):
                v = f"v{O(qs, b) + r}"
                ms.append(add(valu(f"v_mul_f32 {v}, {v}, v{vRI+qs}", [v, f"v{vRI+qs}"], [v]),
                              after=[(PVm[T, b, qs], 8), (ri[qs], 1)], dead=dl, tag="ep"))
            for h in range(2):
                d = f"v{w + 2*e + h}"; a_, b_ = f"v{O(qs, b) + 2*h}", f"v{O(qs, b) + 2*h + 1}"
                aft = [(ms[2*h].ins, 0), (ms[2*h+1].ins, 0)] + wa + ([(cv[-1].ins, 0)] if (qs == 4 and cv) else [])
                cv.append(add(valu(f"v_cvt_pk_bf16_f32 {d}, {a_}, {b_}", [a_, b_], [d]), after=aft, dead=dl, tag="ep"))
        sw = []
        for h in range(2):
            x, y = f"v{w + h}", f"v{w + 2 + h}"
            sw.append(add(valu(f"v_permlane16_swap_b32 {x}, {y}", [x, y], [x, y], "perm"),
                          after=[(cv[h].ins, 2), (cv[2 + h].ins, 2)], dead=[endins], tag="ep", prio=-300 + 8 * len(late) + (200 if qs == 4 else 0)))
        st = I(f"buffer_store_dwordx4 {R('v', w, 4)}, v{vOA}, s[{sO}:{sO+3}], s{sOr+qs} offen offset:{64*pb}{cfg.oflags}", "vst",
               rd=[R("v", w, 4), f"v{vOA}", f"s{sOr+qs}", f"s[{sO}:{sO+3}]"])
        add(st, after=[(sw[0].ins, 0), (sw[1].ins, 0)], dead=[endins], tag="ep", prio=-300 + 8 * len(late) + (200 if qs == 4 else 0))
        late.append(st)
        if qs == 4: pool.append((O(4, 2 * pb + 1), [(cv[3].ins, 0)]))
        else: pool.append((w, [(st, 2)]))
        if n == 5 and pb == 3 and qs == 4: pass

class Sched:
    def __init__(self, stream):
        self.stream = stream
        self.pos = {id(x): k for k, x in enumerate(stream)}
        self.over = 0
        self.cyc = 0; self.ta = 0; self.log = []
    def run(self, bb, its, fixed_after, marks=None, endins=None):
        stream, pos = self.stream, self.pos
        idx = {id(m): j for j, m in enumerate(bb)}
        for mid, lst in fixed_after.items():
            if mid in idx:
                for f in lst: idx[id(f)] = idx[mid]
        for j, lst in (marks or {}).items():
            for f in lst: idx[id(f)] = j
        if endins is not None: idx[id(endins)] = len(bb)
        waiting, act, bydead = {}, [], {}
        byins = {}
        for it in its:
            if it.placed: continue
            byins[id(it.ins)] = it
            d = min([idx[id(x)] for x in it.dead if x is not None and id(x) in idx] or [1 << 30])
            it.early = d + it.prio
            bydead.setdefault(d, []).append(it)
            w = {id(a) for a, _ in it.after if id(a) not in pos}
            nw[id(it)] = len(w)
            for a in w: waiting.setdefault(a, []).append(it)
            if not w: act.append(it)
        st = {"budget": 8, "first": True, "valu": False}
        def emit(x):
            pos[id(x)] = len(stream); stream.append(x)
            for it in waiting.pop(id(x), []):
                nw[id(it)] -= 1
                if nw[id(it)] == 0: act.append(it)
        def ready(it):
            n = len(stream)
            return all(n - pos[id(a)] - 1 >= dist for a, dist in it.after)
        def place(it):
            c = it.ins.cost; kd = it.ins.kind
            if kd == "salu" and st["first"]: c -= 4
            if kd in LGKM + VM and st["valu"]: c += 8
            if kd in VALU: st["valu"] = True
            act.remove(it); it.placed = True
            if kd in VM:
                now = self.cyc + 8 + (8 - st["budget"])
                self.ta = (max(self.ta, now) if now < self.ta + 1 and it.tag != "ld" else now) + (cfg.ta_fast if kd == "dma" else cfg.ta_slow)
            emit(it.ins); st["budget"] -= c; st["first"] = False
        def cands(pred):
            return sorted([it for it in act if pred(it) and ready(it)], key=lambda x: (x.early, x.seq))
        def force(limit):
            while True:
                due = [it for d in list(bydead) if d <= limit for it in bydead[d] if not it.placed]
                for d in [d for d in bydead if d <= limit]:
                    bydead[d] = [it for it in bydead[d] if not it.placed]
                    if not bydead[d]: del bydead[d]
                if not due: return
                stack = list(due); seen = set(); need = []
                while stack:
                    it = stack.pop()
                    if id(it) in seen: continue
                    seen.add(id(it)); need.append(it)
                    for a_, _ in it.after:
                        o = byins.get(id(a_))
                        if o is not None and not o.placed: stack.append(o)
                av = [it for it in need if nw[id(it)] == 0]
                if not av:
                    raise RuntimeError("deadlock: " + "; ".join(it.ins.text + " AFTER " + str([a for a, _ in it.after if id(a) not in pos]) for it in need[:6]))
                rs = [it for it in av if ready(it)]
                if not rs:
                    rs = cands(lambda x: x.ins.kind in VALU)[:1] or av
                rs.sort(key=lambda x: (0 if (x.ins.kind in LGKM + VM and not st["valu"]) else 1, x.early, x.seq))
                place(rs[0])
        force(0)
        for k, m in enumerate(bb):
            for f in (marks or {}).get(k, []): emit(f)
            emit(m)
            st.update(budget=8, first=True, valu=False)
            for f in fixed_after.get(id(m), []):
                emit(f); st["first"] = False
            c = cands(lambda x: x.ins.kind == "salu")
            if c and st["first"] and k + 1 < len(bb) and not getattr(cfg, "nosalu", False): place(c[0])
            tr = cands(lambda x: x.ins.kind == "trans")
            if m.pref == "T" and tr and st["budget"] >= 8:
                place(tr[0])
            else:
                mem = cands(lambda x: x.ins.kind in LGKM or (x.ins.kind in VM and self.ta <= self.cyc))
                if mem and st["budget"] >= 4:
                    vm = [x for x in mem if x.ins.kind in VM]
                    ds = [x for x in mem if x.ins.kind in LGKM]
                    x = vm[0] if vm and not (ds and ds[0].early <= k + 4) else (ds[0] if ds else vm[0])
                    place(x)
                while st["budget"] >= 4:
                    a = cands(lambda x: x.ins.kind in ("valu", "perm") or (x.ins.kind == "trans" and st["budget"] >= 8))
                    if not a: break
                    place(a[0])
            force(k + 1)
            if st["budget"] < 0: self.over -= st["budget"]
            self.cyc += max(16, 16 - st["budget"])
            self.log.append(self.cyc)
        if endins is not None: force(1 << 29)
nw = {}

sVC = 49
sTSB = 60
def stamp(k, cyc=False, mode=1):
    if cfg.stamps != mode: return []
    r = sTSB + 2 * k
    return [I(f"s_mem{'time' if cyc else 'realtime'} s[{r}:{r+1}]", "salu", wr=[f"s[{r}:{r+1}]"])]

def V(text, rd, wr, kind="valu"): return I(text, kind, rd=rd, wr=wr)
def prologue():
    o = []
    o.append(I("s_cmp_ge_u32 s2, 256\n    s_cbranch_scc1 L_end", "br"))
    o += stamp(0) + stamp(1, True)
    o.append(salu("s_load_dwordx8 s[52:59], s[0:1], 0"))
    l, t, u, g = "v1", "v2", "v3", "v4"
    o += [V(f"v_lshrrev_b32 {t}, 6, v0", ["v0"], [t]),
          V(f"v_and_b32 {l}, 63, v0", ["v0"], [l]),
          V(f"v_readfirstlane_b32 s{sW}, {t}", [t], [f"s{sW}"]),
          V(f"v_lshrrev_b32 {g}, 4, {l}", [l], [g]),
          V(f"v_and_b32 {t}, 15, {l}", [l], [t]),
          V(f"v_lshlrev_b32 {t}, 8, {t}", [t], [t]),
          V(f"v_mul_u32_u24 {u}, {GST}, {g}", [g], [u]),
          V(f"v_add_u32 v{vQA}, {t}, {u}", [t, u], [f"v{vQA}"]),
          V(f"v_and_b32 {u}, 1, {g}", [g], [u]),
          V(f"v_lshl_add_u32 {t}, {u}, 5, {t}", [u, t], [t]),
          V(f"v_lshrrev_b32 {u}, 1, {g}", [g], [u]),
          V(f"v_lshl_add_u32 v{vOA}, {u}, 4, {t}", [u, t], [f"v{vOA}"]),
          V(f"v_bfe_u32 {t}, {l}, 1, 2", [l], [t]),
          V(f"v_xor_b32 {t}, {t}, {g}", [t, g], [t]),
          V(f"v_lshlrev_b32 {t}, 5, {t}", [t], [t]),
          V(f"v_lshrrev_b32 {u}, 3, {l}", [l], [u]),
          V(f"v_lshl_add_u32 {t}, {u}, 8, {t}", [u, t], [t]),
          V(f"v_and_b32 {u}, 1, {l}", [l], [u]),
          V(f"v_lshl_add_u32 v{vVD}, {u}, 4, {t}", [u, t], [f"v{vVD}"]),
          ]
    o += [salu(f"s_mul_i32 s{sT0}, s2, {HEADQ}", [], [f"s{sT0}"]),
          salu(f"s_lshl_b32 s{sT1}, s2, 17", [], [f"s{sT1}"]),
          salu(f"s_lshl_b32 s{sM0}, s{sW}, 10", [f"s{sW}"], [f"s{sM0}"]),
          salu(f"s_lshl_b32 s{sVo}, s{sW}, 11", [f"s{sW}"], [f"s{sVo}"]),
          salu(f"s_lshr_b32 s{sKo}, s{sW}, 1", [f"s{sW}"], [f"s{sKo}"]),
          salu(f"s_lshl_b32 s{sKo}, s{sKo}, 12"),
          salu(f"s_and_b32 s{sT2}, s{sW}, 1"),
          salu(f"s_lshl_b32 s{sT2}, s{sT2}, 7"),
          salu(f"s_add_u32 s{sKo}, s{sKo}, s{sT2}"),
          salu(f"s_lshl_b32 s{sOr}, s{sW}, 14"),
          salu(f"s_add_u32 s{sOr+1}, s{sOr}, 4096"),
          salu(f"s_add_u32 s{sOr+2}, s{sOr}, 8192"),
          salu(f"s_add_u32 s{sOr+3}, s{sOr}, 12288"),
          salu(f"s_lshl_b32 s{sOr+4}, s{sW}, 12"),
          salu(f"s_add_u32 s{sOr+4}, s{sOr+4}, {1280*256}"),
          ]
    o += [salu(f"s_mov_b32 s{sQn+k}, s{sOr+k}") for k in range(5)]
    o.append(I("s_waitcnt lgkmcnt(0)", "wait"))
    for srd, p, so, size in ((sK, 54, sT1, HEADK), (sQ, 52, sT0, HEADQ), (sV, 56, sT1, HEADK), (sO, 58, sT0, HEADQ)):
        o += [salu(f"s_add_u32 s{srd}, s{p}, s{so}"), salu(f"s_addc_u32 s{srd+1}, s{p+1}, 0"),
              salu(f"s_mov_b32 s{srd+2}, {size}"), salu(f"s_mov_b32 s{srd+3}, 0x20000")]
    kloads[0] = kload_ins(0); kloads[1] = kload_ins(1)
    o += kloads[0] + qload_ins(0) + qload_ins(1)[:2]
    later = [qload_ins(1)[2:] + [salu(f"s_add_u32 s{sKo}, s{sKo}, 8192")] + kloads[1], qload_ins(2), qload_ins(3)]
    if cfg.codepf:
        o.append(I(f"s_getpc_b64 s[50:51]\n    s_and_b32 s50, s50, 0xffffff00", "salu"))
        o.append(V(f"v_lshlrev_b32 v5, 7, v0", ["v0"], ["v5"]))
        for k in range(2):
            x = I(f"global_load_dword v{vDUM}, v5, s[50:51]", "vld", rd=["v5"], wr=[f"v{vDUM}"]); x.nowait = True
            o.append(x)
            if k == 0: o.append(V("v_add_u32 v5, 0x8000, v5", ["v5"], ["v5"]))
    o += [salu(f"s_mov_b32 s{sC}, {CSCALE:#x}"), salu(f"s_mov_b32 s{sMASK}, 0xffff0000"),
          salu(f"s_mov_b32 s{sFAIL}, {0x1fffff if cfg.force_fallback else 0}"), salu(f"s_mov_b32 s{sBIT}, 1"), salu(f"s_mov_b32 s{sCNT}, 4"),
          salu(f"s_mov_b32 s{sLO}, 0x3f800000"), salu(f"s_mov_b32 s{sRNG}, 0x1e000000"),
          salu(f"s_lshl_b32 s{sVC}, s{sW}, 15"), salu(f"s_sub_u32 s{sVC}, s{sVC}, {RING}"),
          salu(f"s_lshl_b32 s{sT2}, s{sW}, 11")]
    o += [V(f"v_lshlrev_b32 {t}, 4, {l}", [l], [t]),
          V(f"v_add_u32 v{vKR}, {RING}, {t}", [t], [f"v{vKR}"]),
          V(f"v_add_u32 v{vKW}, s{sT2}, v{vKR}", [f"v{vKR}"], [f"v{vKW}"]),
          V(f"v_lshlrev_b32 v{vPF}, 7, {l}", [l], [f"v{vPF}"]),
          V(f"v_lshrrev_b32 {t}, 2, {l}", [l], [t]),
          V(f"v_lshlrev_b32 {t}, 7, {t}", [t], [t]),
          V(f"v_and_b32 {u}, 3, {l}", [l], [u]),
          V(f"v_lshl_add_u32 {t}, {u}, 3, {t}", [u, t], [t]),
          V(f"v_bfe_u32 {u}, {l}, 3, 2", [l], [u]),
          V(f"v_lshl_add_u32 v{vVA}, {u}, 5, {t}", [u, t], [f"v{vVA}"])]
    o += [V(f"v_xor_b32 v{vVA+c}, {32*c}, v{vVA}", [f"v{vVA}"], [f"v{vVA+c}"]) for c in range(1, 4)]
    o += [V(f"v_lshrrev_b32 {t}, 4, {l}", [l], [t]),
          V(f"v_xor_b32 {t}, {t}, {l}", [t, l], [t]),
          V(f"v_bfe_u32 {t}, {t}, 1, 1", [t], [t]),
          V(f"v_add_u32 {t}, -1, {t}", [t], [t]),
          V(f"v_and_b32 {t}, 0x3f803f80, {t}", [t], [t])]
    o += [V(f"v_accvgpr_write_b32 a{aSA+k}, {t}", [t], [f"a{aSA+k}"]) for k in range(4)]
    o += [V(f"v_and_b32 {u}, 1, {l}", [l], [u]),
          V(f"v_mul_u32_u24 {u}, 0xaaaa, {u}", [u], [u]),
          V(f"v_add_u32 v{vIDX}, 0x4444, {u}", [u], [f"v{vIDX}"])]
    o += [V(f"v_accvgpr_write_b32 a{aL+k}, 0", [], [f"a{aL+k}"]) for k in range(12)]
    o += later[0]
    for T in range(1):
        st = vKt[T]; ws = []
        for r in range(8):
            a = f"a{ST(T, 0) + r}"; x = f"v{st + r}"; tt = f"v{vKx[r % 2]}"
            o += [V(f"v_accvgpr_read_b32 {x}, {a}", [a], [x]),
                  V(f"v_lshlrev_b32 {tt}, 16, {x}", [x], [tt]),
                  V(f"v_and_b32 {x}, s{sMASK}, {x}", [x], [x]),
                  V(f"v_mul_f32 {tt}, s{sC}, {tt}", [tt], [tt]),
                  V(f"v_mul_f32 {x}, s{sC}, {x}", [x], [x]),
                  V(f"v_cvt_pk_bf16_f32 {x}, {tt}, {x}", [tt, x], [x])]
        for e in range(2):
            w = I(f"ds_write_b128 v{vKW}, {R('v', st + 4*e, 4)} offset:{T*8192 + e*1024}", "dsw", rd=[f"v{vKW}", R('v', st + 4*e, 4)])
            o.append(w); ws += [Item(w)] * 4
        rb = []
        for e in range(2):
            d = R("a", ST(T, e), 4)
            x = I(f"ds_read_b128 {d}, v{vKW} offset:{T*8192 + e*1024}", "dsr", rd=[f"v{vKW}"], wr=[d])
            o.append(x); rb.append(Item(x))
        kwrites[T] = ws; readback[T] = rb
    o += later[1]
    pro_tail.extend(later[2] + [salu(f"s_add_u32 s{sQn+k}, s{sOr+k}, 65536") for k in range(4)])
    return o
pro_tail = []

def finale():
    a = L(2)
    t = []
    t.append("    s_nop 7\n    s_nop 3")
    t += [f"    v_accvgpr_read_b32 v{k}, a{a+k}" for k in range(4)]
    t += [f"    v_and_b32 v{k}, 0x7fffffff, v{k}" for k in range(4)]
    t += ["    v_max_u32 v0, v0, v1", "    v_max3_u32 v0, v0, v2, v3",
          "    v_cmp_le_u32 vcc, 0x7f800000, v0",
          "    s_nop 1",
          "    s_cmp_lg_u64 vcc, 0",
          f"    s_cselect_b32 s{sT0}, 1, 0",
          f"    s_lshl_b32 s{sT1}, s{sW}, 2",
          f"    s_add_u32 s{sT1}, s{sT1}, {RING}",
          f"    v_mov_b32 v0, s{sT0}", f"    v_mov_b32 v1, s{sT1}", f"    v_mov_b32 v2, {RING}",
          "    ds_write_b32 v1, v0", "    s_waitcnt lgkmcnt(0)", "    s_barrier",
          "    ds_read_b128 v[4:7], v2", "    s_waitcnt lgkmcnt(0)",
          "    v_or3_b32 v4, v4, v5, v6", "    v_or_b32 v4, v4, v7", "    s_nop 0",
          f"    v_readfirstlane_b32 s{sT0}, v4", "    s_nop 1",
          f"    s_cmp_lg_u32 s{sT0}, 0",
          f"    s_cselect_b32 s{sFAIL}, 0x1fffff, s{sFAIL}"]
    if cfg.stamps == 1:
        t += ["    s_memrealtime s[%d:%d]" % (sTSB + 22, sTSB + 23), "    s_waitcnt vmcnt(0)",
              "    s_memrealtime s[%d:%d]" % (sTSB + 24, sTSB + 25), "    s_memtime s[%d:%d]" % (sTSB + 26, sTSB + 27)]
    if cfg.stamps:
        t += ["    s_load_dwordx2 s[4:5], s[0:1], 40", "    s_waitcnt lgkmcnt(0)",
              "    s_mov_b32 s6, 0x100000", "    s_mov_b32 s7, 0x20000",
              f"    s_lshl_b32 s{sT0}, s2, 2", f"    s_add_u32 s{sT0}, s{sT0}, s{sW}", f"    s_lshl_b32 s{sT0}, s{sT0}, 7",
              "    v_mov_b32 v1, 0"]
        for k in range(21):
            t += [f"    v_mov_b32 v0, s{sTSB + 2*k}", f"    buffer_store_dword v0, v1, s[4:7], s{sT0} offen offset:{4*k}"]
    if cfg.dbg >= 0:
        t += [f"    s_cmp_lg_u32 s2, {cfg.dbg}", "    s_cbranch_scc1 L_nodbg", f"    s_cmp_lg_u32 s{sW}, 0", "    s_cbranch_scc1 L_nodbg",
              "    s_load_dwordx2 s[4:5], s[0:1], 32", "    s_waitcnt lgkmcnt(0)", "    s_mov_b32 s6, 256", "    s_mov_b32 s7, 0x20000"]
        lst = [(2, 0), (3, 0), (4, 0), (5, 0), (9, 0), (8, 0), (7, 0), (6, 0), (11, 0), (12, 0), (10, 1), (13, 10)]
        for k, (a_, b_) in enumerate(lst):
            t += [f"    s_sub_u32 s{sT1}, s{sTSB + 2*a_}, s{sTSB + 2*b_}", f"    v_mov_b32 v0, s{sT1}", f"    buffer_store_dword v0, v1, s[4:7], 0 offen offset:{4*k}"]
        t += ["L_nodbg:"]
    t += [f"    s_cmp_eq_u32 s{sFAIL}, 0", "    s_cbranch_scc1 L_end"]
    sJ, sRow, sKb, sVt = sT0, sT1, sT2, sKo
    f = ["    ; ---- slow path: rows whose unshifted exponent sum left the safe range are redone with the true max",
         "    s_waitcnt vmcnt(0)"]
    f += [f"    v_and_b32 v{vVA+c}, 0xffff, v{vVA+c}" for c in range(4)]
    f += ["L_fb_next:",
          f"    s_ff1_i32_b32 s{sJ}, s{sFAIL}", f"    s_bitset0_b32 s{sFAIL}, s{sJ}",
          f"    s_cmp_gt_u32 s{sJ}, 4", f"    s_cselect_b32 s{sKb}, 1, 0", f"    s_sub_u32 s{sKb}, s{sJ}, s{sKb}",
          f"    s_lshr_b32 s{sRow}, s{sKb}, 2", f"    s_lshl_b32 s{sRow}, s{sRow}, 16",
          f"    s_and_b32 s{sKb}, s{sKb}, 3", f"    s_lshl_b32 s{sKb}, s{sKb}, 12", f"    s_add_u32 s{sRow}, s{sRow}, s{sKb}",
          f"    s_lshl_b32 s{sKb}, s{sW}, 14", f"    s_add_u32 s{sRow}, s{sRow}, s{sKb}",
          f"    s_cmp_eq_u32 s{sJ}, 4", f"    s_cselect_b32 s{sRow}, s{sOr+4}, s{sRow}"]
    f += [f"    buffer_load_dwordx4 v[{4*s}:{4*s+3}], v{vQA}, s[{sQ}:{sQ+3}], s{sRow} offen offset:{off(s)}" for s in range(4)]
    def qk(dst, extra):
        r = [f"    buffer_load_dwordx4 v[{20+4*s}:{23+4*s}], v{vQA}, s[{sK}:{sK+3}], s{sKb} offen offset:{off(s)}" for s in range(4)]
        r += ["    s_waitcnt vmcnt(0)"]
        r += [f"    v_mfma_f32_16x16x32_bf16 v[{dst}:{dst+3}], v[{20+4*s}:{23+4*s}], v[{4*s}:{4*s+3}], {'0' if s == 0 else f'v[{dst}:{dst+3}]'}" for s in range(4)]
        r += [f"    s_add_u32 s{sKb}, s{sKb}, 4096", "    s_nop 9"]
        return r
    f += ["    v_mov_b32 v16, 0xff800000", f"    s_mov_b32 s{sKb}, 0", "L_fb_max:"]
    f += qk(36, None)
    f += ["    v_max3_f32 v16, v16, v36, v37", "    v_max3_f32 v16, v16, v38, v39",
          f"    s_cmp_lt_u32 s{sKb}, {HEADK}", "    s_cbranch_scc1 L_fb_max"]
    def xlane(reg, tmp, op):
        return [f"    v_mov_b32 v{tmp}, v{reg}", "    s_nop 1", f"    v_permlane16_swap_b32 v{reg}, v{tmp}", "    s_nop 1", f"    {op} v{reg}, v{reg}, v{tmp}",
                f"    v_mov_b32 v{tmp}, v{reg}", "    s_nop 1", f"    v_permlane32_swap_b32 v{reg}, v{tmp}", "    s_nop 1", f"    {op} v{reg}, v{reg}, v{tmp}"]
    f += xlane(16, 17, "v_max_f32")
    f += [f"    v_mul_f32 v17, s{sC}, v16", "    v_mov_b32 v18, 0"]
    f += [f"    v_mov_b32 v{64+k}, 0" for k in range(32)]
    f += [f"    s_mov_b32 s{sKb}, 0", f"    s_mov_b32 s{sVt}, 0", "L_fb_pv:"]
    f += qk(36, None) + qk(40, None)
    f += [f"    v_fma_f32 v{36+k}, v{36+k}, s{sC}, -v17" for k in range(8)]
    f += [f"    v_exp_f32 v{36+k}, v{36+k}" for k in range(8)]
    f += ["    s_nop 0"] + [f"    v_add_f32 v18, v18, v{36+k}" for k in range(8)]
    f += [f"    v_cvt_pk_bf16_f32 v{44+k}, v{36+2*k}, v{37+2*k}" for k in range(4)]
    f += [f"    v_add_u32 v{52+c}, s{sVt}, v{vVA+c}" for c in range(4)]
    for b in range(8):
        f += [f"    ds_read_b64_tr_b16 v[{48+2*blk}:{49+2*blk}], v{52+(b&3)} offset:{(b>>2)*32768 + blk*2048}" for blk in range(2)]
        f += ["    s_waitcnt lgkmcnt(0)", f"    v_mfma_f32_16x16x32_bf16 v[{64+4*b}:{67+4*b}], v[48:51], v[44:47], v[{64+4*b}:{67+4*b}]"]
    f += [f"    s_add_u32 s{sVt}, s{sVt}, 4096", f"    s_cmp_eq_u32 s{sVt}, 32768", f"    s_cselect_b32 s{sVt}, 65536, s{sVt}",
          f"    s_cmp_lt_u32 s{sKb}, {HEADK}", "    s_cbranch_scc1 L_fb_pv"]
    f += xlane(18, 17, "v_add_f32")
    f += ["    v_rcp_f32 v18, v18", "    s_nop 7"]
    f += [f"    v_mul_f32 v{64+k}, v{64+k}, v18" for k in range(32)]
    f += [f"    v_cvt_pk_bf16_f32 v{96+k}, v{64+2*k}, v{65+2*k}" for k in range(16)]
    f += ["    s_nop 1"]
    for pb in range(4):
        f += [f"    v_permlane16_swap_b32 v{96+4*pb+h}, v{98+4*pb+h}" for h in range(2)]
    f += [f"    buffer_store_dwordx4 v[{96+4*pb}:{99+4*pb}], v{vOA}, s[{sO}:{sO+3}], s{sRow} offen offset:{64*pb}" for pb in range(4)]
    f += ["    s_waitcnt vmcnt(0)", f"    s_cmp_lg_u32 s{sFAIL}, 0", "    s_cbranch_scc1 L_fb_next"]
    return t + f

def build():
    NT = 50; C = cfg.CUT
    for T in range(NT + 2): mk_qk(T); mk_pv(T); mk_sm(T)
    BARm[-1] = I("s_barrier", "bar"); BARm["V0"] = I("s_barrier", "bar")
    for T in list(range(0, 15, 2)) + list(range(1, NT + 2, 2)): BARm[T] = I("s_barrier", "bar")
    pro = prologue()
    pro.append(BARm[-1]); pro += stamp(2) + pro_tail
    bb, start = [], {}
    for T in range(NT):
        start[T] = len(bb); bb += backbone_period(T)
    fixed = {id(bar_spot(T)): [BARm[T]] for T in range(NT) if T in BARm}
    fixed[id(QKm[0, 1, 2, 3])] = [BARm["V0"]]
    labL = I("L_loop:", "label"); labL2 = I("; second instance", "label")
    def chk():
        pre = ""
        if cfg.stamps == 2:
            pre = f"s_memtime s[{sTSB+32}:{sTSB+33}]\n    "
        if cfg.stamps == 1:
            r = sTSB + 12
            pre = "".join(f"s_mov_b64 s[{r+2*k+2}:{r+2*k+3}], s[{r+2*k}:{r+2*k+1}]\n    " for k in (2, 1, 0)) + f"s_memrealtime s[{r}:{r+1}]\n    "
        return I(pre + f"s_sub_u32 s{sCNT}, s{sCNT}, 1\n    s_cmp_eq_u32 s{sCNT}, 0\n    s_cbranch_scc1 L_tail", "br")
    chk1, chk2 = chk(), chk()
    brL = I("s_branch L_loop", "br")
    marks = {start[16 + C]: stamp(5) + [labL], start[32]: [chk1], start[32 + C]: [brL, labL2], start[48]: [chk2]}
    if cfg.stamps == 1:
        marks[start[1]] = stamp(3); marks[start[16]] = stamp(4) + stamp(10, True)
    if cfg.stamps == 2:
        for T in range(16 + C, 32):
            for U in (T, T + 16): marks.setdefault(start[U], []).append(stamp(T - 16, True, 2)[0])
        for T in range(32, 32 + C): marks.setdefault(start[T], []).append(stamp(T - 32, True, 2)[0])
    if cfg.stamps == 3:
        for T in range(0, 18): marks.setdefault(start[T], []).insert(0, stamp(T, False, 3)[0])
        pro.insert(1, stamp(18, False, 3)[0])
    for T in range(16): items_loads(T)
    for T in range(NT):
        curT[0] = T
        items_softmax(T); items_kread(T)
        if T % 8 == 0 and T > 0: items_vtoggle(T)
        items_vread(T)
        if T == 15: items_qjit(T)
        if T % 16 == C and T > 16: items_rowadv(T)
        if T % 16 == 15 and T > 16: items_qpf(T)
    for T in range(1, NT + 2): curT[0] = T; items_kwrite(T)
    curT[0] = -100
    items_epilogue(15, marks[start[16 + C]][0]); items_epilogue(31, marks[start[32 + C]][0])
    BARm[-1].needs = [x.ins for x in kwrites[0]]
    BARm["V0"].needs = list(vdmas[0])
    for T in range(NT):
        if T not in BARm: continue
        pub = (T + 1,) if T < 15 else (T + 1, T + 2)
        nd = [x.ins for t in pub for x in kwrites[t]]
        if T in vdmas and T > 0: nd += vdmas[T]
        done = (T - 1, T) if (T >= 13 and T != 15) else (T - 1,) if T >= 1 else ()
        if T == 17: done = (15, 16, 17)
        nd += [kreads[t, blk, s_].ins for t in done for blk in range(2) for s_ in range(4)]
        nd += [x.ins for t in done if t in readback for x in readback[t]]
        BARm[T].needs = nd
    stream = list(pro)
    sc = Sched(stream)
    sc.run(bb, items, fixed, marks)
    p = {id(x): k for k, x in enumerate(stream)}
    ref = {(it.T[0] - 16, it.T[1]): p[id(it.ins)] < p[id(brL)] for it in items if it.placed and 32 <= it.T[0] < 48}
    cut = marks[start[16 + C]][0]
    for it in items:
        r = ref.get(it.T)
        if r is True: it.dead = list(it.dead) + [cut]
        elif r is False: it.after.append((labL, 0))
        it.placed = False
    stream = list(pro)
    sc = Sched(stream)
    sc.run(bb, items, fixed, marks)
    est = [sc.log[start[T + 1] - 1] - (sc.log[start[T] - 1] if T else 0) for T in range(NT - 1)]
    sys.stderr.write(f"est cycles/period: {est[:38]}\n")
    p = {id(x): k for k, x in enumerate(stream)}
    iL, iC1, iBr, iL2, iC2 = p[id(labL)], p[id(chk1)], p[id(brL)], p[id(labL2)], p[id(chk2)]
    segP = stream[:iL]; segL = stream[iL:iC1 + 1]; segB = stream[iC1 + 1:iBr + 1]; segL2 = stream[iL2:iC2 + 1]
    a = [x.text for x in segL[1:]]; b = [x.text for x in segL2[1:]]
    if a != b:
        for k, (x, y) in enumerate(zip(a, b)):
            if x != y: sys.stderr.write(f"loop mismatch at {k}: {x} | {y}\n"); break
        raise SystemExit("loop instances differ")
    mp = {id(y): x for x, y in zip(segL, segL2)}
    for x, y in zip(segL, segL2): x.needs = x.needs + [mp.get(id(z), z) for z in y.needs]
    for it in items:
        if it.placed and p[id(it.ins)] > iC2: it.placed = False
    keep = [it for it in items if not it.placed and it.tag in ("sm", "v") and
            all(id(a_) in p and p[id(a_)] <= iC2 or True for a_, _ in it.after)]
    TL = 47
    keep = [it for it in keep if any(id(d) in {id(PVm[t, b, q]) for t in (TL - 1, TL) for b in range(8) for q in range(4)} for d in it.dead if d is not None)]
    items.clear(); items.extend(keep)
    endT = I("; end of tail", "label")
    va = add(valu(f"v_add_u32 v{vVD}, s{sVC}, v{vKR}", [f"v{vKR}"], [f"v{vVD}"]), dead=[PVm[TL, 2, 0]], tag="vc")
    for j in range(32):
        buf = Kf(0, 0) + 4 * (j % 8)
        VCm[j] = mfma(L(2), buf, buf, j == 0, dk="a")
    for j in range(32):
        d = R("a", Kf(0, 0) + 4 * (j % 8), 4)
        add(I(f"ds_read_b128 {d}, v{vVD} offset:{j*1024}", "dsr", rd=[f"v{vVD}"], wr=[d]),
            after=[(va.ins, 0)] + ([(VCm[j - 8], 0)] if j >= 8 else []), dead=[VCm[j]], tag="vc", prio=-6)
    items_epilogue(TL, endT)
    tbb = backbone_period(48, tail=True)
    known = {id(x) for x in stream[:iC2 + 1]} | {id(x) for x in tbb} | {id(it.ins) for it in items}
    for it in items: it.after = [(a_, d_) for a_, d_ in it.after if id(a_) in known]
    tstream = stream[:iC2 + 1]
    sc2 = Sched(tstream)
    labT = I("L_tail:", "label")
    sc2.run(tbb, items, {}, {0: [labT]}, endins=endT)
    segT = tstream[iC2 + 1:]
    assert segT[0] is labT, segT[:3]
    for x in segT: x.needs = [mp.get(id(z), z) for z in x.needs]
    linear = segP + segL + segB + segL + segT
    waits = insert_waits(linear)
    nops = fix_hazards(linear, waits)
    sys.stderr.write(f"instr: P {len(segP)} L {len(segL)} B {len(segB)} T {len(segT)}; waits {len(waits)}; nops {sum(nops.values())} at {len(nops)} sites\n")
    body = render(segP, waits, nops) + render(segL, waits, nops) + render(segB, waits, nops) + render(segT, waits, nops)
    return body

HEADER = open("standalone__mha_softmax__near_ridge.s.ref").read().split("; Override launch")[0]
def main():
    body = build()
    out = HEADER + f"""; One workgroup (4 waves x 512 registers) per (batch, head).  V stays in LDS, K (pre-scaled by log2(e)/sqrt(D))
; stays in registers and is re-published through a small LDS ring; generated by my own scheduling script.
; @launch grid=(256,1,1) block=(256,1,1) lds=163840
.amdgcn_target "amdgcn-amd-amdhsa--gfx950"
.text
.globl {KNAME}
.p2align 8
.type {KNAME},@function
{KNAME}:
""" + "\n".join(body) + "\n" + "\n".join(finale()) + f"""
L_end:
    s_endpgm
.section .rodata,"a"
.p2align 6
.amdhsa_kernel {KNAME}
  .amdhsa_next_free_vgpr 512
  .amdhsa_next_free_sgpr 102
  .amdhsa_accum_offset 256
  .amdhsa_group_segment_fixed_size 0
  .amdhsa_kernarg_size 48
  .amdhsa_user_sgpr_count 2
  .amdhsa_user_sgpr_kernarg_segment_ptr 1
  .amdhsa_system_sgpr_workgroup_id_x 1
.end_amdhsa_kernel
"""
    open(sys.argv[1], "w").write(out)
main()
```

```python
import sys, struct, math
from core import *

class Cfg:
    dmap = "B"
    LK = 5
    LV = 3
    CUT = 6
    leadT = 11
    ta_slow = 250
    ta_fast = 90
    v0first = False
    qpf0 = 8
    lead = 2
    qflags = " nt"
    oflags = ""
    kvflags = " nt"
    pfflags = " nt"
    pf_period = 11
    stamps = 0
    extra = 0
    dbg = -1
    force_fallback = False
    vahead = 2
    codepf = False
cfg = Cfg()
for a in sys.argv[2:]:
    k, v = a.split("=", 1)
    old = getattr(cfg, k)
    setattr(cfg, k, (v == "1") if isinstance(old, bool) else type(old)(v.replace("+", " ")))

KNAME = "standalone__mha_softmax__near_ridge_kernel"
SQ, SK, D = 1312, 512, 128
HEADQ = SQ * D * 2
HEADK = SK * D * 2
RING = 131072
CSCALE = struct.unpack("<I", struct.pack("<f", math.log2(math.e) / math.sqrt(D)))[0]

vO, vP, vS, vVf = 0, 160, 200, 208
vVA = 224
vKR, vKW, vQA, vOA, vPF, vIDX, vVD = 228, 229, 230, 231, 232, 233, 234
vT = 235
vKt = [236, 244]; vKx = [252, 253]
vW = [236, 240, 244]
vRI = 248
vL0, vL1, vDUM = 253, 254, 255
aQ, aST, aKf, aL, aSA = 0, 80, 208, 240, 252
def O(qs, b): return vO + 32 * qs + 4 * b
def P(T, qs): return vP + 20 * (T % 2) + 4 * qs
def S(c): return vS + 4 * (c % 2)
def Vf(f): return vVf + 4 * (f % 4)
def Q(qs, s): return aQ + 16 * qs + 4 * s
def Kf(blk, s): return aKf + 16 * blk + 4 * s
def ST(j, e): return aST + 8 * (j % 16) + 4 * e
def L(p): return aL + 4 * p
sQ, sK, sV, sO = 8, 12, 16, 20
sW = 24; sC = 25; sMASK = 26; sFAIL = 27; sBIT = 28; sCNT = 29
sOr = 30
sQn = 35
sKo, sVo, sM0 = 40, 41, 42
sT0, sT1, sT2 = 43, 44, 45
sLO, sRNG = 46, 47
sTS = 48
def off(s): return 64 * s if cfg.dmap == "A" else 128 * (s >> 1) + 16 * (s & 1)
GST = 16 if cfg.dmap == "A" else 32

def n_of(T): return 5 if T < 16 else 4

def mfma(d, a, b, zero, dk="v", ak="a", bk="a"):
    D_, A_, B_ = R(dk, d, 4), R(ak, a, 4), R(bk, b, 4)
    return I(f"v_mfma_f32_16x16x32_bf16 {D_}, {A_}, {B_}, {'0' if zero else D_}", "mfma",
             rd=[A_, B_] + ([] if zero else [D_]), wr=[D_], acc=not zero)
def valu(text, rd, wr, kind="valu"): return I(text, kind, rd=rd, wr=wr)
def salu(text, rd=(), wr=()): return I(text, "salu", rd=rd, wr=wr)

class Item:
    __slots__ = ("ins", "after", "dead", "prio", "early", "tag", "placed", "T", "seq")
    def __init__(self, ins, after=(), dead=None, early=None, tag="", prio=0):
        self.ins = ins; self.after = list(after); self.dead = dead; self.early = early
        self.tag = tag; self.prio = prio; self.placed = False

QKm, PVm, SMm, BARm, VCm = {}, {}, {}, {}, {}
def chain(T, g):
    if T == 15: return (g % 2, g // 2)
    return divmod(g, n_of(T))
def lastchain(T, blk): return (blk, n_of(T) - 1)
def mk_qk(T):
    n = n_of(T)
    for g in range(2 * n):
        blk, qs = chain(T, g)
        for s in range(4):
            QKm[T, blk, qs, s] = mfma(S(g), Kf(blk, s), Q(qs, s), s == 0)
def mk_pv(T):
    for b in range(8):
        for qs in range(n_of(T)):
            PVm[T, b, qs] = mfma(O(qs, b), Vf(b), P(T, qs), T % 16 == 0, ak="v", bk="v")
def pairs(T): return [0, 1, 2] if n_of(T) == 5 else [0, 1]
def pair_lo(p): return 3 if p == 2 else 2 * p
def mk_sm(T):
    for p in pairs(T):
        d, b = R("a", L(p), 4), R("v", P(T, pair_lo(p)), 8)
        SMm[T, p] = I(f"v_smfmac_f32_16x16x64_bf16 {d}, {R('a', aSA, 4)}, {b}, v{vIDX}", "smf",
                      rd=[d, b, R("a", aSA, 4), f"v{vIDX}"], wr=[d], acc=True)
def pvlist(T): return [PVm[T, b, qs] for b in range(8) for qs in range(n_of(T))]

def backbone_period(T, tail=False):
    pv = []
    if T >= 2: pv += pvlist(T - 2)[-4:]
    if T >= 1: pv += pvlist(T - 1) if tail else pvlist(T - 1)[:-4]
    sm = [SMm[T - 1, p] for p in pairs(T - 1)] if T >= 1 else []
    out = []
    if tail:
        out += pv[:4] + [sm[0]] + pv[4:8] + sm[1:]
        rest = pv[8:]
        vc = [VCm[j] for j in range(32)]
        out += rest + vc
        for k, m in enumerate(out): m.pref = "T" if (k < 4) else "D"
        return out
    n = n_of(T); G = 2 * n
    boundary = T > 0 and T % 16 == 0
    if boundary:
        lead = cfg.leadT if T == 16 else cfg.lead
        nl = 4 * lead
        head = pv[:nl]; pv = pv[nl:]
        if lead >= 2:
            head = head[:4] + [sm[0]] + head[4:8] + sm[1:] + head[8:]
            sm = []
        for k, m in enumerate(head): m.pref = "T" if k < 4 else "D"
        out += head
    if T == 1: cnt = [0] + [4] * (G - 1)
    else:
        cnt = [len(pv) // G + (1 if g < len(pv) % G else 0) for g in range(G)]
    smpos = {}
    if sm:
        if boundary: spots = [0, 1, 1]
        else: spots = [1, G // 2 + 1, G - 2] if len(sm) == 3 else [1, G // 2 + 1]
        for m, g in zip(sm, spots): smpos.setdefault(g, []).append(m)
    k = 0
    for g in range(G):
        blk, qs = chain(T, g)
        grp = [QKm[T, blk, qs, s] for s in range(4)] + pv[k:k + cnt[g]]
        k += cnt[g]
        for j, m in enumerate(grp): m.pref = "T" if (j % 2 == 0 and j < 8) else "D"
        if len(grp) == 4:
            for m in grp: m.pref = "T"
        out += grp
        for m in smpos.get(g, []):
            m.pref = "D"; out.append(m)
    return out

items = []
curT = [-200]
ordn = {}
def add(ins, **kw):
    it = Item(ins, **kw); ordn[curT[0]] = ordn.get(curT[0], 0) + 1; it.T = (curT[0], ordn[curT[0]]); it.seq = len(items); items.append(it); return it

cvts = {}
def items_softmax(T):
    n = n_of(T)
    for g in range(2 * n):
        blk, qs = chain(T, g)
        last = QKm[T, blk, qs, 3]
        if g + 2 < 2 * n: b2, q2 = chain(T, g + 2); nxt = QKm[T, b2, q2, 0]
        else: nxt = QKm.get((T + 1,) + chain(T + 1, g + 2 - 2 * n) + (0,))
        use = PVm[T, 0, qs]
        if g + 1 < 2 * n: b1, q1 = chain(T, g + 1); ng = QKm[T, b1, q1, 0]
        elif (T + 1) % 16 == 0 and cfg.lead >= 1: ng = pvlist(T - 1)[-4]
        else: ng = QKm[T + 1, 0, 0, 0]
        ex = []
        for r in range(4):
            v = f"v{S(g)+r}"
            ex.append(add(valu(f"v_exp_f32 {v}, {v}", [v], [v], "trans"), after=[(last, 8), (ng, 0)] + ([(ex[-1].ins, 0)] if ex else []),
                          dead=[nxt, use], tag="sm"))
        cl = []
        for h in range(2):
            d = f"v{P(T, qs) + 2*blk + h}"; a, b = f"v{S(g)+2*h}", f"v{S(g)+2*h+1}"
            aft = [(ex[2*h].ins, 1), (ex[2*h+1].ins, 1)]
            if (T - 2, 7, qs) in PVm: aft.append((PVm[T - 2, 7, qs], 0))
            for p in pairs(T - 2) if T >= 2 else []:
                if pair_lo(p) <= qs <= pair_lo(p) + 1: aft.append((SMm[T - 2, p], 0))
            dl = [nxt, use] + [SMm[T, p] for p in pairs(T) if pair_lo(p) <= qs <= pair_lo(p) + 1]
            cl.append(add(valu(f"v_cvt_pk_bf16_f32 {d}, {a}, {b}", [a, b], [d]), after=aft, dead=dl, tag="sm"))
        cvts[T, blk, qs] = cl

kreads = {}
def bar_pub(T):
    return BARm[T - 1] if T < 16 else BARm[(T // 2) * 2 - 1]
def items_kread(T):
    n = n_of(T)
    for blk in range(2):
        for s in range(4):
            d = R("a", Kf(blk, s), 4)
            ins = I(f"ds_read_b128 {d}, v{vKR} offset:{(T % 4) * 8192 + (4*blk+s) * 1024}", "dsr", rd=[f"v{vKR}"], wr=[d])
            aft = [(bar_pub(T), 0)]
            if T >= 1: aft.append((QKm[T - 1, blk, n_of(T - 1) - 1, s], 0))
            dl = [QKm[T, blk, 0, 0]]
            if blk == 1 and T % 2 == 1 and T != 15: dl.append(BARm[T])
            kreads[T, blk, s] = add(ins, after=aft, dead=dl, tag="qk", prio=-6)
vreads = {}
vtog = {}
def vbar(T):
    if T == 0: return BARm["V0"]
    return BARm[T]
def items_vread(T):
    for b in range(8):
        f = 8 * T + b
        pT, pb = divmod(f - 4, 8)
        aft = []
        if f >= 4: aft.append((PVm[pT, pb, n_of(pT) - 1], 0))
        aT, ab = divmod(f - cfg.vahead - 1, 8)
        if f - cfg.vahead - 1 >= 0: aft.append((PVm[aT, ab, n_of(aT) - 1], 0))
        if T < 16: aft.append((vbar(T), 0))
        c, dh = b & 3, b >> 2
        if T % 8 == 0 and T > 0 and dh == 0: aft.append((vtog[T, c].ins, 0))
        prev = None
        for blk in range(2):
            d = R("v", Vf(f) + 2 * blk, 2)
            ins = I(f"ds_read_b64_tr_b16 {d}, v{vVA+c} offset:{dh*32768 + (T % 8)*4096 + blk*2048}", "dsr",
                    rd=[f"v{vVA+c}"], wr=[d])
            vreads[T, b, blk] = add(ins, after=aft + ([(prev, 0)] if prev else []), dead=[PVm[T, b, 0]], tag="v", prio=-6)
            prev = ins
def items_vtoggle(T):
    for c in range(4):
        v = f"v{vVA+c}"
        vtog[T, c] = add(valu(f"v_xor_b32 {v}, 0x10000, {v}", [v], [v]), after=[(vreads[T - 1, 4 + c, 1].ins, 0)],
                         dead=[PVm[T, c, 0]], tag="v", prio=-12)

kwrites = {}
kloads = {}
def items_kwrite(T):
    m = T // 2
    if T < 16: opn, cls = BARm[max(T - 3, -1)], BARm[T - 1]
    else: opn, cls = BARm[2 * m - 3], BARm[2 * m - 1]
    ws = []
    if T < 16:
        st = vKt[T % 2]
        prev_w = kwrites.get(T - 2)
        for r in range(8):
            a = f"a{ST(T, 0) + r}"; x = f"v{st + r}"; t = f"v{vKx[r % 2]}"
            aft = [(kloads[T][r // 4], 0)]
            if prev_w: aft.append((prev_w[r].ins, 0))
            if r >= 2: aft.append((chain_prev[r % 2], 0))
            aft.append((mid_of(T - 2) if T >= 2 else QKm[0, 0, 1, 3], 0))
            i0 = add(valu(f"v_accvgpr_read_b32 {x}, {a}", [a], [x]), after=aft, dead=[cls], tag="qk", prio=-40)
            i1 = add(valu(f"v_lshlrev_b32 {t}, 16, {x}", [x], [t]), after=[(i0.ins, 0)] + ([(chain_prev[r % 2], 0)] if chain_prev[r % 2] else []), dead=[cls], tag="qk", prio=-39)
            i2 = add(valu(f"v_and_b32 {x}, s{sMASK}, {x}", [x, f"s{sMASK}"], [x]), after=[(i1.ins, 0)], dead=[cls], tag="qk", prio=-38)
            i3 = add(valu(f"v_mul_f32 {t}, s{sC}, {t}", [t, f"s{sC}"], [t]), after=[(i1.ins, 0)], dead=[cls], tag="qk", prio=-37)
            i4 = add(valu(f"v_mul_f32 {x}, s{sC}, {x}", [x, f"s{sC}"], [x]), after=[(i2.ins, 0)], dead=[cls], tag="qk", prio=-36)
            i5 = add(valu(f"v_cvt_pk_bf16_f32 {x}, {t}, {x}", [t, x], [x]), after=[(i3.ins, 0), (i4.ins, 0)], dead=[cls], tag="qk", prio=-35)
            chain_prev[r % 2] = i5.ins
            w = I(f"ds_write_b32 v{vKW}, {x} offset:{(T % 4)*8192 + (r//4)*1024 + (r % 4)*4}", "dsw", rd=[f"v{vKW}", x])
            ws.append(add(w, after=[(opn, 0), (i5.ins, 0)], dead=[cls], tag="qk", prio=-20))
        rb = []
        for e in range(2):
            d = R("a", ST(T, e), 4)
            ins = I(f"ds_read_b128 {d}, v{vKW} offset:{(T % 4)*8192 + e*1024}", "dsr", rd=[f"v{vKW}"], wr=[d])
            rb.append(add(ins, after=[(ws[4*e + k].ins, 0) for k in range(4)], dead=[cls], tag="qk", prio=-8))
        readback[T] = rb
    else:
        for r in range(8):
            a = f"a{ST(T, 0) + r}"
            w = I(f"ds_write_b32 v{vKW}, {a} offset:{(T % 4)*8192 + (r//4)*1024 + (r % 4)*4}", "dsw", rd=[f"v{vKW}", a])
            ws.append(add(w, after=[(opn, 0)] + ([(ws[-1].ins, 0)] if ws else ([(kwrites[T-1][-1].ins, 0)] if T % 2 else [])),
                          dead=[cls], tag="qk", prio=-10))
    kwrites[T] = ws
chain_prev = [None, None]
readback = {}
def mid_of(T): return QKm[(T,) + chain(T, n_of(T)) + (0,)]
def bar_spot(T): return QKm[(T,) + chain(T, n_of(T) - 1) + (3,)]
def start_of(T): return QKm[T, 0, 0, 0]

def kload_ins(j):
    out = []
    for e in range(2):
        d = R("a", ST(j, e), 4)
        out.append(I(f"buffer_load_dwordx4 {d}, v{vQA}, s[{sK}:{sK+3}], s{sKo} offen offset:{off(1)*e}{cfg.kvflags}", "vld",
                     rd=[f"v{vQA}", f"s{sKo}", f"s[{sK}:{sK+3}]"], wr=[d]))
    return out
def vdma_ins(j):
    out = []
    for dh in range(2):
        m0 = (j >> 3) * 65536 + dh * (32768 - 128) + (j & 7) * 4096
        out.append((salu(f"s_add_u32 m0, s{sM0}, {m0}", [f"s{sM0}"], ["m0", "scc"]),
                    I(f"buffer_load_dwordx4 v{vVD}, s[{sV}:{sV+3}], s{sVo} offen offset:{128*dh}{cfg.kvflags} lds", "dma",
                      rd=[f"v{vVD}", f"s{sVo}", "m0", f"s[{sV}:{sV+3}]"])))
    return out
vdmas = {}
last_vm = [None]
def add_kload(j, after, dead):
    up = add(salu(f"s_add_u32 s{sKo}, s{sKo}, 8192", [f"s{sKo}"], [f"s{sKo}", "scc"]),
             after=after + ([(last_vm[0], 0)] if last_vm[0] else []), dead=dead, tag="ld", prio=-30)
    ins = kload_ins(j); kloads[j] = ins
    prev = up.ins
    for x in ins:
        add(x, after=[(prev, 0)], dead=dead, tag="ld", prio=-25); prev = x
    last_vm[0] = prev
def add_vdma(j, after, dead):
    prev = last_vm[0]
    if j > 0:
        prev = add(salu(f"s_add_u32 s{sVo}, s{sVo}, 8192", [f"s{sVo}"], [f"s{sVo}", "scc"]),
                   after=after + ([(prev, 0)] if prev else []), dead=dead, tag="ld", prio=-30).ins
    vdmas[j] = []
    for sm0, dm in vdma_ins(j):
        add(sm0, after=after + [(prev, 0)], dead=dead, tag="ld", prio=-28)
        add(dm, after=[(sm0, 1)], dead=dead, tag="ld", prio=-25); prev = dm
        vdmas[j].append(dm)
    last_vm[0] = prev
def items_loads(T):
    if T == 0:
        def spot(g): return QKm[(0,) + chain(0, g) + (0,)], QKm[(0,) + chain(0, g) + (1,)]
        a, d = spot(0)
        for x in qload_ins(4):
            add(x, after=[(a, 0)] + ([(last_vm[0], 0)] if last_vm[0] else []), dead=[d], tag="ld", prio=-50); last_vm[0] = x
        kj, vj, g = 2, 0, 1
        while kj < cfg.LK or vj < cfg.LV:
            a, d = spot(g); g += 1
            if cfg.v0first and vj < cfg.LV: add_vdma(vj, [(a, 0)], [d]); vj += 1
            if kj < cfg.LK: add_kload(kj, [(a, 0)], [d]); kj += 1
            if not cfg.v0first and vj < cfg.LV: add_vdma(vj, [(a, 0)], [d]); vj += 1
        a, d = spot(max(g, 5))
        if cfg.LK < 16: add_kload(cfg.LK, [(a, 0)], [d])
        a, d = spot(max(g + 1, 7))
        if cfg.LV < 16: add_vdma(cfg.LV, [(a, 0)], [d])
        return
    if T + cfg.LK < 16: add_kload(T + cfg.LK, [(start_of(T), 0)], [start_of(T + 1)])
    if T + cfg.LV < 16: add_vdma(T + cfg.LV, [(mid_of(T), 0)], [mid_of(T + 1)])

def qload_ins(qs, dst=None):
    out = []
    for s in range(4):
        d = R("a", Q(qs, s), 4) if dst is None else R(dst[s][0], dst[s][1], 4)
        out.append(I(f"buffer_load_dwordx4 {d}, v{vQA}, s[{sQ}:{sQ+3}], s{sQn+qs} offen offset:{off(s)}{cfg.qflags}", "vld",
                     rd=[f"v{vQA}", f"s{sQn+qs}", f"s[{sQ}:{sQ+3}]"], wr=[d]))
    return out
def items_qjit(T):
    prev = None
    for qs in range(4):
        for s_, ins in enumerate(qload_ins(qs)):
            add(ins, after=[(QKm[T, 1, qs, s_], 0)] + ([(prev, 0)] if prev else []), dead=[QKm[T + 1, 0, qs, 0]], tag="qj", prio=-200)
            prev = ins
UNITS = [O(4, b) for b in range(8)] + [P(0, 4), P(1, 4)] + [236, 240, 244]
QBUF = {(qs, s_): ("v", UNITS[4 * qs + s_]) for qs in range(3) for s_ in range(4)}
QBUF.update({(3, s_): ("a", Q(4, s_)) for s_ in range(4)})
unit_free = {}
def items_qpf(T):
    base = T - 15
    prev = None
    for qs in range(4):
        lds_ = qload_ins(qs, [QBUF[qs, s_] for s_ in range(4)])
        for s_, ins in enumerate(lds_):
            k = 4 * qs + s_
            add(ins, after=[(start_of(base + cfg.qpf0), 0), (rowadv_done[base], 0)] + ([(prev, 0)] if prev else []),
                dead=[start_of(base + 14)], tag="qp", prio=-200 + k)
            prev = ins
            kind, r0 = QBUF[qs, s_]
            for r in range(4):
                d, a_ = f"a{Q(qs, s_) + r}", f"{kind}{r0 + r}"
                op = "v_accvgpr_write_b32" if kind == "v" else "v_accvgpr_mov_b32"
                c = add(valu(f"{op} {d}, {a_}", [a_], [d]), after=[(QKm[T, 1, qs, s_], 0)], dead=[QKm[T + 1, 0, qs, s_]], tag="qc", prio=-3)
                if kind == "v": unit_free.setdefault((T, r0), []).append(c.ins)
rowadv_done = {}
def items_rowadv(T):
    for qs in range(4):
        a = add(salu(f"s_add_u32 s{sOr+qs}, s{sOr+qs}, {'s3' if cfg.extra else 65536}", [f"s{sOr+qs}"], [f"s{sOr+qs}", "scc"]), after=[(start_of(T), 0)], dead=[start_of(T + 2)], tag="adv", prio=50)
        b = add(salu(f"s_add_u32 s{sQn+qs}, s{sOr+qs}, {'s4' if cfg.extra else 65536}" + ("\n    s_mov_b32 s3, s4\n    s_cmp_le_u32 s%d, 5\n    s_cselect_b32 s4, 0x10000, 0" % sCNT if cfg.extra and qs == 3 else ""), [f"s{sOr+qs}"], [f"s{sQn+qs}", "scc"]),
                after=[(a.ins, 0)] + ([(rowadv_done[T - T % 16], 0)] if qs else []), dead=[start_of(T + 2)], tag="adv", prio=50)
        rowadv_done[T - T % 16] = b.ins

wrot = [0]
def items_epilogue(T, endins):
    n = n_of(T)
    ri = {}
    prev = None
    for qs in range(n):
        p = 2 if qs == 4 else qs // 2
        h = 1 if qs == 4 else qs % 2
        la, lb = f"a{L(p) + 2*h}", f"a{L(p) + 2*h + 1}"
        x, y, r = f"v{vL0}", f"v{vL1}", f"v{vRI+qs}"
        dl = [PVm.get((T + 1, 0, qs), endins), endins]
        pa = [(prev, 0)] if prev else []
        i0 = add(valu(f"v_accvgpr_read_b32 {x}, {la}", [la], [x]), after=[(SMm[T, p], 12)] + pa, dead=dl, tag="ep", prio=-400)
        i1 = add(valu(f"v_accvgpr_read_b32 {y}, {lb}", [lb], [y]), after=[(SMm[T, p], 12)] + pa, dead=dl, tag="ep", prio=-400)
        i2 = add(valu(f"v_add_f32 {x}, {x}, {y}", [x, y], [x]), after=[(i0.ins, 0), (i1.ins, 0)], dead=dl, tag="ep", prio=-400)
        i3 = add(valu(f"v_rcp_f32 {r}, {x}", [x], [r], "trans"), after=[(i2.ins, 0)], dead=dl, tag="ep", prio=-400)
        i4 = add(valu(f"v_subrev_u32 {y}, s{sLO}, {x}", [x, f"s{sLO}"], [y]), after=[(i2.ins, 0)], dead=dl, tag="ep", prio=-399)
        i5 = add(valu(f"v_cmp_lt_u32 vcc, s{sRNG}, {y}", [y, f"s{sRNG}"], ["vcc"]), after=[(i4.ins, 0), (i3.ins, 0)], dead=dl, tag="ep", prio=-399)
        j0 = add(salu("s_cmp_lg_u64 vcc, 0", ["vcc"], ["scc"]), after=[(i5.ins, 2)], dead=dl, tag="ep", prio=-399)
        j0.ins.text += f"\n    s_cselect_b32 s{sT1}, s{sBIT}, 0\n    s_or_b32 s{sFAIL}, s{sFAIL}, s{sT1}\n    s_lshl_b32 s{sBIT}, s{sBIT}, 1"
        j0.ins.cost = 16
        prev = j0.ins
        ri[qs] = i3.ins
        zs = []
        if not (qs == 3 and n == 5 and False):
            for reg in (la, lb):
                dz = [SMm.get((T + 1, min(p, len(pairs(T + 1)) - 1)), endins), endins]
                add(valu(f"v_accvgpr_write_b32 {reg}, 0", [], [reg]), after=[(i0.ins, 0), (i1.ins, 0)], dead=dz, tag="ep", prio=0)
    if n == 5: pool = [(u, []) for u in (236, 240, 244)] + [(P(T - 1, 4), [(PVm[T - 1, 7, 4], 0), (SMm[T - 1, 2], 0)])]
    else: pool = [(u, [(x, 0) for x in unit_free.get((T, u), [])]) for u in UNITS[-1:] + UNITS[:-1]]
    prevst = None
    order = [(pb, qs) for pb in range(4) for qs in ([4, 0, 1, 2, 3] if n == 5 else range(4))]
    late = []
    for pb, qs in order:
        if qs == 4: w, wa = O(4, 2 * pb), []
        else: w, wa = pool.pop(0)
        cv = []
        for e in range(2):
            b = 2 * pb + e
            dl = [PVm.get((T + 1, b, qs), PVm.get((T + 1, b, 0), endins)), endins]
            ms = []
            for r in range(4):
                v = f"v{O(qs, b) + r}"
                ms.append(add(valu(f"v_mul_f32 {v}, {v}, v{vRI+qs}", [v, f"v{vRI+qs}"], [v]),
                              after=[(PVm[T, b, qs], 8), (ri[qs], 1)], dead=dl, tag="ep"))
            for h in range(2):
                d = f"v{w + 2*e + h}"; a_, b_ = f"v{O(qs, b) + 2*h}", f"v{O(qs, b) + 2*h + 1}"
                aft = [(ms[2*h].ins, 0), (ms[2*h+1].ins, 0)] + wa + ([(cv[-1].ins, 0)] if (qs == 4 and cv) else [])
                cv.append(add(valu(f"v_cvt_pk_bf16_f32 {d}, {a_}, {b_}", [a_, b_], [d]), after=aft, dead=dl, tag="ep"))
        sw = []
        for h in range(2):
            x, y = f"v{w + h}", f"v{w + 2 + h}"
            sw.append(add(valu(f"v_permlane16_swap_b32 {x}, {y}", [x, y], [x, y], "perm"),
                          after=[(cv[h].ins, 2), (cv[2 + h].ins, 2)], dead=[endins], tag="ep", prio=-300 + 8 * len(late) + (200 if qs == 4 else 0)))
        st = I(f"buffer_store_dwordx4 {R('v', w, 4)}, v{vOA}, s[{sO}:{sO+3}], s{sOr+qs} offen offset:{64*pb}{cfg.oflags}", "vst",
               rd=[R("v", w, 4), f"v{vOA}", f"s{sOr+qs}", f"s[{sO}:{sO+3}]"])
        add(st, after=[(sw[0].ins, 0), (sw[1].ins, 0)], dead=[endins], tag="ep", prio=-300 + 8 * len(late) + (200 if qs == 4 else 0))
        late.append(st)
        if qs == 4: pool.append((O(4, 2 * pb + 1), [(cv[3].ins, 0)]))
        else: pool.append((w, [(st, 2)]))
        if n == 5 and pb == 3 and qs == 4: pass

class Sched:
    def __init__(self, stream):
        self.stream = stream
        self.pos = {id(x): k for k, x in enumerate(stream)}
        self.over = 0
        self.cyc = 0; self.ta = 0; self.log = []
    def run(self, bb, its, fixed_after, marks=None, endins=None):
        stream, pos = self.stream, self.pos
        idx = {id(m): j for j, m in enumerate(bb)}
        for mid, lst in fixed_after.items():
            if mid in idx:
                for f in lst: idx[id(f)] = idx[mid]
        for j, lst in (marks or {}).items():
            for f in lst: idx[id(f)] = j
        if endins is not None: idx[id(endins)] = len(bb)
        waiting, act, bydead = {}, [], {}
        byins = {}
        for it in its:
            if it.placed: continue
            byins[id(it.ins)] = it
            d = min([idx[id(x)] for x in it.dead if x is not None and id(x) in idx] or [1 << 30])
            it.early = d + it.prio
            bydead.setdefault(d, []).append(it)
            w = {id(a) for a, _ in it.after if id(a) not in pos}
            nw[id(it)] = len(w)
            for a in w: waiting.setdefault(a, []).append(it)
            if not w: act.append(it)
        st = {"budget": 8, "first": True, "valu": False}
        def emit(x):
            pos[id(x)] = len(stream); stream.append(x)
            for it in waiting.pop(id(x), []):
                nw[id(it)] -= 1
                if nw[id(it)] == 0: act.append(it)
        def ready(it):
            n = len(stream)
            return all(n - pos[id(a)] - 1 >= dist for a, dist in it.after)
        def place(it):
            c = it.ins.cost; kd = it.ins.kind
            if kd == "salu" and st["first"]: c -= 4
            if kd in LGKM + VM and st["valu"]: c += 8
            if kd in VALU: st["valu"] = True
            act.remove(it); it.placed = True
            if kd in VM:
                now = self.cyc + 8 + (8 - st["budget"])
                self.ta = (max(self.ta, now) if now < self.ta + 1 and it.tag != "ld" else now) + (cfg.ta_fast if kd == "dma" else cfg.ta_slow)
            emit(it.ins); st["budget"] -= c; st["first"] = False
        def cands(pred):
            return sorted([it for it in act if pred(it) and ready(it)], key=lambda x: (x.early, x.seq))
        def force(limit):
            while True:
                due = [it for d in list(bydead) if d <= limit for it in bydead[d] if not it.placed]
                for d in [d for d in bydead if d <= limit]:
                    bydead[d] = [it for it in bydead[d] if not it.placed]
                    if not bydead[d]: del bydead[d]
                if not due: return
                stack = list(due); seen = set(); need = []
                while stack:
                    it = stack.pop()
                    if id(it) in seen: continue
                    seen.add(id(it)); need.append(it)
                    for a_, _ in it.after:
                        o = byins.get(id(a_))
                        if o is not None and not o.placed: stack.append(o)
                av = [it for it in need if nw[id(it)] == 0]
                if not av:
                    raise RuntimeError("deadlock: " + "; ".join(it.ins.text + " AFTER " + str([a for a, _ in it.after if id(a) not in pos]) for it in need[:6]))
                rs = [it for it in av if ready(it)]
                if not rs:
                    rs = cands(lambda x: x.ins.kind in VALU)[:1] or av
                rs.sort(key=lambda x: (0 if (x.ins.kind in LGKM + VM and not st["valu"]) else 1, x.early, x.seq))
                place(rs[0])
        force(0)
        for k, m in enumerate(bb):
            for f in (marks or {}).get(k, []): emit(f)
            emit(m)
            st.update(budget=8, first=True, valu=False)
            for f in fixed_after.get(id(m), []):
                emit(f); st["first"] = False
            c = cands(lambda x: x.ins.kind == "salu")
            if c and st["first"] and k + 1 < len(bb) and not getattr(cfg, "nosalu", False): place(c[0])
            tr = cands(lambda x: x.ins.kind == "trans")
            if m.pref == "T" and tr and st["budget"] >= 8:
                place(tr[0])
            else:
                mem = cands(lambda x: x.ins.kind in LGKM or (x.ins.kind in VM and self.ta <= self.cyc))
                if mem and st["budget"] >= 4:
                    vm = [x for x in mem if x.ins.kind in VM]
                    ds = [x for x in mem if x.ins.kind in LGKM]
                    x = vm[0] if vm and not (ds and ds[0].early <= k + 4) else (ds[0] if ds else vm[0])
                    place(x)
                while st["budget"] >= 4:
                    a = cands(lambda x: x.ins.kind in ("valu", "perm") or (x.ins.kind == "trans" and st["budget"] >= 8))
                    if not a: break
                    place(a[0])
            force(k + 1)
            if st["budget"] < 0: self.over -= st["budget"]
            self.cyc += max(16, 16 - st["budget"])
            self.log.append(self.cyc)
        if endins is not None: force(1 << 29)
nw = {}

sVC = 49
sTSB = 60
def stamp(k, cyc=False, mode=1):
    if cfg.stamps != mode: return []
    r = sTSB + 2 * k
    return [I(f"s_mem{'time' if cyc else 'realtime'} s[{r}:{r+1}]", "salu", wr=[f"s[{r}:{r+1}]"])]

def V(text, rd, wr, kind="valu"): return I(text, kind, rd=rd, wr=wr)
def prologue():
    o = []
    o.append(I("s_cmp_ge_u32 s2, 256\n    s_cbranch_scc1 L_end", "br"))
    o += stamp(0) + stamp(1, True)
    o.append(salu("s_load_dwordx8 s[52:59], s[0:1], 0"))
    l, t, u, g = "v1", "v2", "v3", "v4"
    o += [V(f"v_lshrrev_b32 {t}, 6, v0", ["v0"], [t]),
          V(f"v_and_b32 {l}, 63, v0", ["v0"], [l]),
          V(f"v_readfirstlane_b32 s{sW}, {t}", [t], [f"s{sW}"]),
          V(f"v_lshrrev_b32 {g}, 4, {l}", [l], [g]),
          V(f"v_and_b32 {t}, 15, {l}", [l], [t]),
          V(f"v_lshlrev_b32 {t}, 8, {t}", [t], [t]),
          V(f"v_mul_u32_u24 {u}, {GST}, {g}", [g], [u]),
          V(f"v_add_u32 v{vQA}, {t}, {u}", [t, u], [f"v{vQA}"]),
          V(f"v_and_b32 {u}, 1, {g}", [g], [u]),
          V(f"v_lshl_add_u32 {t}, {u}, 5, {t}", [u, t], [t]),
          V(f"v_lshrrev_b32 {u}, 1, {g}", [g], [u]),
          V(f"v_lshl_add_u32 v{vOA}, {u}, 4, {t}", [u, t], [f"v{vOA}"]),
          V(f"v_bfe_u32 {t}, {l}, 1, 2", [l], [t]),
          V(f"v_xor_b32 {t}, {t}, {g}", [t, g], [t]),
          V(f"v_lshlrev_b32 {t}, 5, {t}", [t], [t]),
          V(f"v_lshrrev_b32 {u}, 3, {l}", [l], [u]),
          V(f"v_lshl_add_u32 {t}, {u}, 8, {t}", [u, t], [t]),
          V(f"v_and_b32 {u}, 1, {l}", [l], [u]),
          V(f"v_lshl_add_u32 v{vVD}, {u}, 4, {t}", [u, t], [f"v{vVD}"]),
          ]
    o += [salu(f"s_mul_i32 s{sT0}, s2, {HEADQ}", [], [f"s{sT0}"]),
          salu(f"s_lshl_b32 s{sT1}, s2, 17", [], [f"s{sT1}"]),
          salu(f"s_lshl_b32 s{sM0}, s{sW}, 10", [f"s{sW}"], [f"s{sM0}"]),
          salu(f"s_lshl_b32 s{sVo}, s{sW}, 11", [f"s{sW}"], [f"s{sVo}"]),
          salu(f"s_lshr_b32 s{sKo}, s{sW}, 1", [f"s{sW}"], [f"s{sKo}"]),
          salu(f"s_lshl_b32 s{sKo}, s{sKo}, 12"),
          salu(f"s_and_b32 s{sT2}, s{sW}, 1"),
          salu(f"s_lshl_b32 s{sT2}, s{sT2}, 7"),
          salu(f"s_add_u32 s{sKo}, s{sKo}, s{sT2}"),
          salu(f"s_lshl_b32 s{sOr}, s{sW}, 14"),
          salu(f"s_add_u32 s{sOr+1}, s{sOr}, 4096"),
          salu(f"s_add_u32 s{sOr+2}, s{sOr}, 8192"),
          salu(f"s_add_u32 s{sOr+3}, s{sOr}, 12288"),
          salu(f"s_lshl_b32 s{sOr+4}, s{sW}, 12"),
          salu(f"s_add_u32 s{sOr+4}, s{sOr+4}, {1280*256}"),
          ]
    o += [salu(f"s_mov_b32 s{sQn+k}, s{sOr+k}") for k in range(5)]
    o.append(I("s_waitcnt lgkmcnt(0)", "wait"))
    for srd, p, so, size in ((sK, 54, sT1, HEADK), (sQ, 52, sT0, HEADQ), (sV, 56, sT1, HEADK), (sO, 58, sT0, HEADQ)):
        o += [salu(f"s_add_u32 s{srd}, s{p}, s{so}"), salu(f"s_addc_u32 s{srd+1}, s{p+1}, 0"),
              salu(f"s_mov_b32 s{srd+2}, {size}"), salu(f"s_mov_b32 s{srd+3}, 0x20000")]
    kloads[0] = kload_ins(0); kloads[1] = kload_ins(1)
    o += kloads[0] + qload_ins(0) + qload_ins(1)[:2]
    later = [qload_ins(1)[2:] + [salu(f"s_add_u32 s{sKo}, s{sKo}, 8192")] + kloads[1], qload_ins(2), qload_ins(3)]
    if cfg.codepf:
        o.append(I(f"s_getpc_b64 s[50:51]\n    s_and_b32 s50, s50, 0xffffff00", "salu"))
        o.append(V(f"v_lshlrev_b32 v5, 7, v0", ["v0"], ["v5"]))
        for k in range(2):
            x = I(f"global_load_dword v{vDUM}, v5, s[50:51]", "vld", rd=["v5"], wr=[f"v{vDUM}"]); x.nowait = True
            o.append(x)
            if k == 0: o.append(V("v_add_u32 v5, 0x8000, v5", ["v5"], ["v5"]))
    o += [salu(f"s_mov_b32 s{sC}, {CSCALE:#x}"), salu(f"s_mov_b32 s{sMASK}, 0xffff0000"),
          salu(f"s_mov_b32 s{sFAIL}, {0x1fffff if cfg.force_fallback else 0}"), salu(f"s_mov_b32 s{sBIT}, 1"), salu(f"s_mov_b32 s{sCNT}, {4 + cfg.extra}"), salu("s_mov_b32 s3, 0x10000"), salu("s_mov_b32 s4, 0"),
          salu(f"s_mov_b32 s{sLO}, 0x3f800000"), salu(f"s_mov_b32 s{sRNG}, 0x1e000000"),
          salu(f"s_lshl_b32 s{sVC}, s{sW}, 15"), salu(f"s_sub_u32 s{sVC}, s{sVC}, {RING}"),
          salu(f"s_lshl_b32 s{sT2}, s{sW}, 11")]
    o += [V(f"v_lshlrev_b32 {t}, 4, {l}", [l], [t]),
          V(f"v_add_u32 v{vKR}, {RING}, {t}", [t], [f"v{vKR}"]),
          V(f"v_add_u32 v{vKW}, s{sT2}, v{vKR}", [f"v{vKR}"], [f"v{vKW}"]),
          V(f"v_lshlrev_b32 v{vPF}, 7, {l}", [l], [f"v{vPF}"]),
          V(f"v_lshrrev_b32 {t}, 2, {l}", [l], [t]),
          V(f"v_lshlrev_b32 {t}, 7, {t}", [t], [t]),
          V(f"v_and_b32 {u}, 3, {l}", [l], [u]),
          V(f"v_lshl_add_u32 {t}, {u}, 3, {t}", [u, t], [t]),
          V(f"v_bfe_u32 {u}, {l}, 3, 2", [l], [u]),
          V(f"v_lshl_add_u32 v{vVA}, {u}, 5, {t}", [u, t], [f"v{vVA}"])]
    o += [V(f"v_xor_b32 v{vVA+c}, {32*c}, v{vVA}", [f"v{vVA}"], [f"v{vVA+c}"]) for c in range(1, 4)]
    o += [V(f"v_lshrrev_b32 {t}, 4, {l}", [l], [t]),
          V(f"v_xor_b32 {t}, {t}, {l}", [t, l], [t]),
          V(f"v_bfe_u32 {t}, {t}, 1, 1", [t], [t]),
          V(f"v_add_u32 {t}, -1, {t}", [t], [t]),
          V(f"v_and_b32 {t}, 0x3f803f80, {t}", [t], [t])]
    o += [V(f"v_accvgpr_write_b32 a{aSA+k}, {t}", [t], [f"a{aSA+k}"]) for k in range(4)]
    o += [V(f"v_and_b32 {u}, 1, {l}", [l], [u]),
          V(f"v_mul_u32_u24 {u}, 0xaaaa, {u}", [u], [u]),
          V(f"v_add_u32 v{vIDX}, 0x4444, {u}", [u], [f"v{vIDX}"])]
    o += [V(f"v_accvgpr_write_b32 a{aL+k}, 0", [], [f"a{aL+k}"]) for k in range(12)]
    o += later[0]
    for T in range(1):
        st = vKt[T]; ws = []
        for r in range(8):
            a = f"a{ST(T, 0) + r}"; x = f"v{st + r}"; tt = f"v{vKx[r % 2]}"
            o += [V(f"v_accvgpr_read_b32 {x}, {a}", [a], [x]),
                  V(f"v_lshlrev_b32 {tt}, 16, {x}", [x], [tt]),
                  V(f"v_and_b32 {x}, s{sMASK}, {x}", [x], [x]),
                  V(f"v_mul_f32 {tt}, s{sC}, {tt}", [tt], [tt]),
                  V(f"v_mul_f32 {x}, s{sC}, {x}", [x], [x]),
                  V(f"v_cvt_pk_bf16_f32 {x}, {tt}, {x}", [tt, x], [x])]
        for e in range(2):
            w = I(f"ds_write_b128 v{vKW}, {R('v', st + 4*e, 4)} offset:{T*8192 + e*1024}", "dsw", rd=[f"v{vKW}", R('v', st + 4*e, 4)])
            o.append(w); ws += [Item(w)] * 4
        rb = []
        for e in range(2):
            d = R("a", ST(T, e), 4)
            x = I(f"ds_read_b128 {d}, v{vKW} offset:{T*8192 + e*1024}", "dsr", rd=[f"v{vKW}"], wr=[d])
            o.append(x); rb.append(Item(x))
        kwrites[T] = ws; readback[T] = rb
    o += later[1]
    pro_tail.extend(later[2] + [salu(f"s_add_u32 s{sQn+k}, s{sOr+k}, 65536") for k in range(4)])
    return o
pro_tail = []

def finale():
    a = L(2)
    t = []
    t.append("    s_nop 7\n    s_nop 3")
    t += [f"    v_accvgpr_read_b32 v{k}, a{a+k}" for k in range(4)]
    t += [f"    v_and_b32 v{k}, 0x7fffffff, v{k}" for k in range(4)]
    t += ["    v_max_u32 v0, v0, v1", "    v_max3_u32 v0, v0, v2, v3",
          "    v_cmp_le_u32 vcc, 0x7f800000, v0",
          "    s_nop 1",
          "    s_cmp_lg_u64 vcc, 0",
          f"    s_cselect_b32 s{sT0}, 1, 0",
          f"    s_lshl_b32 s{sT1}, s{sW}, 2",
          f"    s_add_u32 s{sT1}, s{sT1}, {RING}",
          f"    v_mov_b32 v0, s{sT0}", f"    v_mov_b32 v1, s{sT1}", f"    v_mov_b32 v2, {RING}",
          "    ds_write_b32 v1, v0", "    s_waitcnt lgkmcnt(0)", "    s_barrier",
          "    ds_read_b128 v[4:7], v2", "    s_waitcnt lgkmcnt(0)",
          "    v_or3_b32 v4, v4, v5, v6", "    v_or_b32 v4, v4, v7", "    s_nop 0",
          f"    v_readfirstlane_b32 s{sT0}, v4", "    s_nop 1",
          f"    s_cmp_lg_u32 s{sT0}, 0",
          f"    s_cselect_b32 s{sFAIL}, 0x1fffff, s{sFAIL}"]
    if cfg.stamps == 1:
        t += ["    s_memrealtime s[%d:%d]" % (sTSB + 22, sTSB + 23), "    s_waitcnt vmcnt(0)",
              "    s_memrealtime s[%d:%d]" % (sTSB + 24, sTSB + 25), "    s_memtime s[%d:%d]" % (sTSB + 26, sTSB + 27)]
    if cfg.stamps:
        t += ["    s_load_dwordx2 s[4:5], s[0:1], 40", "    s_waitcnt lgkmcnt(0)",
              "    s_mov_b32 s6, 0x100000", "    s_mov_b32 s7, 0x20000",
              f"    s_lshl_b32 s{sT0}, s2, 2", f"    s_add_u32 s{sT0}, s{sT0}, s{sW}", f"    s_lshl_b32 s{sT0}, s{sT0}, 7",
              "    v_mov_b32 v1, 0"]
        for k in range(21):
            t += [f"    v_mov_b32 v0, s{sTSB + 2*k}", f"    buffer_store_dword v0, v1, s[4:7], s{sT0} offen offset:{4*k}"]
    if cfg.dbg >= 0:
        t += [f"    s_cmp_lg_u32 s2, {cfg.dbg}", "    s_cbranch_scc1 L_nodbg", f"    s_cmp_lg_u32 s{sW}, 0", "    s_cbranch_scc1 L_nodbg",
              "    s_load_dwordx2 s[4:5], s[0:1], 32", "    s_waitcnt lgkmcnt(0)", "    s_mov_b32 s6, 256", "    s_mov_b32 s7, 0x20000"]
        lst = [(2, 0), (3, 0), (4, 0), (5, 0), (9, 0), (8, 0), (7, 0), (6, 0), (11, 0), (12, 0), (10, 1), (13, 10)]
        for k, (a_, b_) in enumerate(lst):
            t += [f"    s_sub_u32 s{sT1}, s{sTSB + 2*a_}, s{sTSB + 2*b_}", f"    v_mov_b32 v0, s{sT1}", f"    buffer_store_dword v0, v1, s[4:7], 0 offen offset:{4*k}"]
        t += ["L_nodbg:"]
    t += [f"    s_cmp_eq_u32 s{sFAIL}, 0", "    s_cbranch_scc1 L_end"]
    sJ, sRow, sKb, sVt = sT0, sT1, sT2, sKo
    f = ["    ; ---- slow path: rows whose unshifted exponent sum left the safe range are redone with the true max",
         "    s_waitcnt vmcnt(0)"]
    f += [f"    v_and_b32 v{vVA+c}, 0xffff, v{vVA+c}" for c in range(4)]
    f += ["L_fb_next:",
          f"    s_ff1_i32_b32 s{sJ}, s{sFAIL}", f"    s_bitset0_b32 s{sFAIL}, s{sJ}",
          f"    s_cmp_gt_u32 s{sJ}, 4", f"    s_cselect_b32 s{sKb}, 1, 0", f"    s_sub_u32 s{sKb}, s{sJ}, s{sKb}",
          f"    s_lshr_b32 s{sRow}, s{sKb}, 2", f"    s_lshl_b32 s{sRow}, s{sRow}, 16",
          f"    s_and_b32 s{sKb}, s{sKb}, 3", f"    s_lshl_b32 s{sKb}, s{sKb}, 12", f"    s_add_u32 s{sRow}, s{sRow}, s{sKb}",
          f"    s_lshl_b32 s{sKb}, s{sW}, 14", f"    s_add_u32 s{sRow}, s{sRow}, s{sKb}",
          f"    s_cmp_eq_u32 s{sJ}, 4", f"    s_cselect_b32 s{sRow}, s{sOr+4}, s{sRow}"]
    f += [f"    buffer_load_dwordx4 v[{4*s}:{4*s+3}], v{vQA}, s[{sQ}:{sQ+3}], s{sRow} offen offset:{off(s)}" for s in range(4)]
    def qk(dst, extra):
        r = [f"    buffer_load_dwordx4 v[{20+4*s}:{23+4*s}], v{vQA}, s[{sK}:{sK+3}], s{sKb} offen offset:{off(s)}" for s in range(4)]
        r += ["    s_waitcnt vmcnt(0)"]
        r += [f"    v_mfma_f32_16x16x32_bf16 v[{dst}:{dst+3}], v[{20+4*s}:{23+4*s}], v[{4*s}:{4*s+3}], {'0' if s == 0 else f'v[{dst}:{dst+3}]'}" for s in range(4)]
        r += [f"    s_add_u32 s{sKb}, s{sKb}, 4096", "    s_nop 9"]
        return r
    f += ["    v_mov_b32 v16, 0xff800000", f"    s_mov_b32 s{sKb}, 0", "L_fb_max:"]
    f += qk(36, None)
    f += ["    v_max3_f32 v16, v16, v36, v37", "    v_max3_f32 v16, v16, v38, v39",
          f"    s_cmp_lt_u32 s{sKb}, {HEADK}", "    s_cbranch_scc1 L_fb_max"]
    def xlane(reg, tmp, op):
        return [f"    v_mov_b32 v{tmp}, v{reg}", "    s_nop 1", f"    v_permlane16_swap_b32 v{reg}, v{tmp}", "    s_nop 1", f"    {op} v{reg}, v{reg}, v{tmp}",
                f"    v_mov_b32 v{tmp}, v{reg}", "    s_nop 1", f"    v_permlane32_swap_b32 v{reg}, v{tmp}", "    s_nop 1", f"    {op} v{reg}, v{reg}, v{tmp}"]
    f += xlane(16, 17, "v_max_f32")
    f += [f"    v_mul_f32 v17, s{sC}, v16", "    v_mov_b32 v18, 0"]
    f += [f"    v_mov_b32 v{64+k}, 0" for k in range(32)]
    f += [f"    s_mov_b32 s{sKb}, 0", f"    s_mov_b32 s{sVt}, 0", "L_fb_pv:"]
    f += qk(36, None) + qk(40, None)
    f += [f"    v_fma_f32 v{36+k}, v{36+k}, s{sC}, -v17" for k in range(8)]
    f += [f"    v_exp_f32 v{36+k}, v{36+k}" for k in range(8)]
    f += ["    s_nop 0"] + [f"    v_add_f32 v18, v18, v{36+k}" for k in range(8)]
    f += [f"    v_cvt_pk_bf16_f32 v{44+k}, v{36+2*k}, v{37+2*k}" for k in range(4)]
    f += [f"    v_add_u32 v{52+c}, s{sVt}, v{vVA+c}" for c in range(4)]
    for b in range(8):
        f += [f"    ds_read_b64_tr_b16 v[{48+2*blk}:{49+2*blk}], v{52+(b&3)} offset:{(b>>2)*32768 + blk*2048}" for blk in range(2)]
        f += ["    s_waitcnt lgkmcnt(0)", f"    v_mfma_f32_16x16x32_bf16 v[{64+4*b}:{67+4*b}], v[48:51], v[44:47], v[{64+4*b}:{67+4*b}]"]
    f += [f"    s_add_u32 s{sVt}, s{sVt}, 4096", f"    s_cmp_eq_u32 s{sVt}, 32768", f"    s_cselect_b32 s{sVt}, 65536, s{sVt}",
          f"    s_cmp_lt_u32 s{sKb}, {HEADK}", "    s_cbranch_scc1 L_fb_pv"]
    f += xlane(18, 17, "v_add_f32")
    f += ["    v_rcp_f32 v18, v18", "    s_nop 7"]
    f += [f"    v_mul_f32 v{64+k}, v{64+k}, v18" for k in range(32)]
    f += [f"    v_cvt_pk_bf16_f32 v{96+k}, v{64+2*k}, v{65+2*k}" for k in range(16)]
    f += ["    s_nop 1"]
    for pb in range(4):
        f += [f"    v_permlane16_swap_b32 v{96+4*pb+h}, v{98+4*pb+h}" for h in range(2)]
    f += [f"    buffer_store_dwordx4 v[{96+4*pb}:{99+4*pb}], v{vOA}, s[{sO}:{sO+3}], s{sRow} offen offset:{64*pb}" for pb in range(4)]
    f += ["    s_waitcnt vmcnt(0)", f"    s_cmp_lg_u32 s{sFAIL}, 0", "    s_cbranch_scc1 L_fb_next"]
    return t + f

def build():
    NT = 50; C = cfg.CUT
    for T in range(NT + 2): mk_qk(T); mk_pv(T); mk_sm(T)
    BARm[-1] = I("s_barrier", "bar"); BARm["V0"] = I("s_barrier", "bar")
    for T in list(range(0, 15, 2)) + list(range(1, NT + 2, 2)): BARm[T] = I("s_barrier", "bar")
    pro = prologue()
    pro.append(BARm[-1]); pro += stamp(2) + pro_tail
    bb, start = [], {}
    for T in range(NT):
        start[T] = len(bb); bb += backbone_period(T)
    fixed = {id(bar_spot(T)): [BARm[T]] for T in range(NT) if T in BARm}
    fixed[id(QKm[0, 1, 2, 3])] = [BARm["V0"]]
    labL = I("L_loop:", "label"); labL2 = I("; second instance", "label")
    def chk():
        pre = ""
        if cfg.stamps == 2:
            pre = f"s_memtime s[{sTSB+32}:{sTSB+33}]\n    "
        if cfg.stamps == 1:
            r = sTSB + 12
            pre = "".join(f"s_mov_b64 s[{r+2*k+2}:{r+2*k+3}], s[{r+2*k}:{r+2*k+1}]\n    " for k in (2, 1, 0)) + f"s_memrealtime s[{r}:{r+1}]\n    "
        return I(pre + f"s_sub_u32 s{sCNT}, s{sCNT}, 1\n    s_cmp_eq_u32 s{sCNT}, 0\n    s_cbranch_scc1 L_tail", "br")
    chk1, chk2 = chk(), chk()
    brL = I("s_branch L_loop", "br")
    marks = {start[16 + C]: stamp(5) + [labL], start[32]: [chk1], start[32 + C]: [brL, labL2], start[48]: [chk2]}
    if cfg.stamps == 1:
        marks[start[1]] = stamp(3); marks[start[16]] = stamp(4) + stamp(10, True)
    if cfg.stamps == 2:
        for T in range(16 + C, 32):
            for U in (T, T + 16): marks.setdefault(start[U], []).append(stamp(T - 16, True, 2)[0])
        for T in range(32, 32 + C): marks.setdefault(start[T], []).append(stamp(T - 32, True, 2)[0])
    if cfg.stamps == 3:
        for T in range(0, 18): marks.setdefault(start[T], []).insert(0, stamp(T, False, 3)[0])
        pro.insert(1, stamp(18, False, 3)[0])
    for T in range(16): items_loads(T)
    for T in range(NT):
        curT[0] = T
        items_softmax(T); items_kread(T)
        if T % 8 == 0 and T > 0: items_vtoggle(T)
        items_vread(T)
        if T == 15: items_qjit(T)
        if T % 16 == C and T > 16: items_rowadv(T)
        if T % 16 == 15 and T > 16: items_qpf(T)
    for T in range(1, NT + 2): curT[0] = T; items_kwrite(T)
    curT[0] = -100
    items_epilogue(15, marks[start[16 + C]][0]); items_epilogue(31, marks[start[32 + C]][0])
    BARm[-1].needs = [x.ins for x in kwrites[0]]
    BARm["V0"].needs = list(vdmas[0])
    for T in range(NT):
        if T not in BARm: continue
        pub = (T + 1,) if T < 15 else (T + 1, T + 2)
        nd = [x.ins for t in pub for x in kwrites[t]]
        if T in vdmas and T > 0: nd += vdmas[T]
        done = (T - 1, T) if (T >= 13 and T != 15) else (T - 1,) if T >= 1 else ()
        if T == 17: done = (15, 16, 17)
        nd += [kreads[t, blk, s_].ins for t in done for blk in range(2) for s_ in range(4)]
        nd += [x.ins for t in done if t in readback for x in readback[t]]
        BARm[T].needs = nd
    stream = list(pro)
    sc = Sched(stream)
    sc.run(bb, items, fixed, marks)
    p = {id(x): k for k, x in enumerate(stream)}
    ref = {(it.T[0] - 16, it.T[1]): p[id(it.ins)] < p[id(brL)] for it in items if it.placed and 32 <= it.T[0] < 48}
    cut = marks[start[16 + C]][0]
    for it in items:
        r = ref.get(it.T)
        if r is True: it.dead = list(it.dead) + [cut]
        elif r is False: it.after.append((labL, 0))
        it.placed = False
    stream = list(pro)
    sc = Sched(stream)
    sc.run(bb, items, fixed, marks)
    est = [sc.log[start[T + 1] - 1] - (sc.log[start[T] - 1] if T else 0) for T in range(NT - 1)]
    sys.stderr.write(f"est cycles/period: {est[:38]}\n")
    p = {id(x): k for k, x in enumerate(stream)}
    iL, iC1, iBr, iL2, iC2 = p[id(labL)], p[id(chk1)], p[id(brL)], p[id(labL2)], p[id(chk2)]
    segP = stream[:iL]; segL = stream[iL:iC1 + 1]; segB = stream[iC1 + 1:iBr + 1]; segL2 = stream[iL2:iC2 + 1]
    a = [x.text for x in segL[1:]]; b = [x.text for x in segL2[1:]]
    if a != b:
        for k, (x, y) in enumerate(zip(a, b)):
            if x != y: sys.stderr.write(f"loop mismatch at {k}: {x} | {y}\n"); break
        raise SystemExit("loop instances differ")
    mp = {id(y): x for x, y in zip(segL, segL2)}
    for x, y in zip(segL, segL2): x.needs = x.needs + [mp.get(id(z), z) for z in y.needs]
    for it in items:
        if it.placed and p[id(it.ins)] > iC2: it.placed = False
    keep = [it for it in items if not it.placed and it.tag in ("sm", "v") and
            all(id(a_) in p and p[id(a_)] <= iC2 or True for a_, _ in it.after)]
    TL = 47
    keep = [it for it in keep if any(id(d) in {id(PVm[t, b, q]) for t in (TL - 1, TL) for b in range(8) for q in range(4)} for d in it.dead if d is not None)]
    items.clear(); items.extend(keep)
    endT = I("; end of tail", "label")
    va = add(valu(f"v_add_u32 v{vVD}, s{sVC}, v{vKR}", [f"v{vKR}"], [f"v{vVD}"]), dead=[PVm[TL, 2, 0]], tag="vc")
    for j in range(32):
        buf = Kf(0, 0) + 4 * (j % 8)
        VCm[j] = mfma(L(2), buf, buf, j == 0, dk="a")
    for j in range(32):
        d = R("a", Kf(0, 0) + 4 * (j % 8), 4)
        add(I(f"ds_read_b128 {d}, v{vVD} offset:{j*1024}", "dsr", rd=[f"v{vVD}"], wr=[d]),
            after=[(va.ins, 0)] + ([(VCm[j - 8], 0)] if j >= 8 else []), dead=[VCm[j]], tag="vc", prio=-6)
    items_epilogue(TL, endT)
    tbb = backbone_period(48, tail=True)
    known = {id(x) for x in stream[:iC2 + 1]} | {id(x) for x in tbb} | {id(it.ins) for it in items}
    for it in items: it.after = [(a_, d_) for a_, d_ in it.after if id(a_) in known]
    tstream = stream[:iC2 + 1]
    sc2 = Sched(tstream)
    labT = I("L_tail:", "label")
    sc2.run(tbb, items, {}, {0: [labT]}, endins=endT)
    segT = tstream[iC2 + 1:]
    assert segT[0] is labT, segT[:3]
    for x in segT: x.needs = [mp.get(id(z), z) for z in x.needs]
    linear = segP + segL + segB + segL + segT
    waits = insert_waits(linear)
    nops = fix_hazards(linear, waits)
    sys.stderr.write(f"instr: P {len(segP)} L {len(segL)} B {len(segB)} T {len(segT)}; waits {len(waits)}; nops {sum(nops.values())} at {len(nops)} sites\n")
    body = render(segP, waits, nops) + render(segL, waits, nops) + render(segB, waits, nops) + render(segT, waits, nops)
    return body

HEADER = open("standalone__mha_softmax__near_ridge.s.ref").read().split("; Override launch")[0]
def main():
    body = build()
    out = HEADER + f"""; One workgroup (4 waves x 512 registers) per (batch, head).  V stays in LDS, K (pre-scaled by log2(e)/sqrt(D))
; stays in registers and is re-published through a small LDS ring; generated by my own scheduling script.
; @launch grid=(256,1,1) block=(256,1,1) lds=163840
.amdgcn_target "amdgcn-amd-amdhsa--gfx950"
.text
.globl {KNAME}
.p2align 8
.type {KNAME},@function
{KNAME}:
""" + "\n".join(body) + "\n" + "\n".join(finale()) + f"""
L_end:
    s_endpgm
.section .rodata,"a"
.p2align 6
.amdhsa_kernel {KNAME}
  .amdhsa_next_free_vgpr 512
  .amdhsa_next_free_sgpr 102
  .amdhsa_accum_offset 256
  .amdhsa_group_segment_fixed_size 0
  .amdhsa_kernarg_size 48
  .amdhsa_user_sgpr_count 2
  .amdhsa_user_sgpr_kernarg_segment_ptr 1
  .amdhsa_system_sgpr_workgroup_id_x 1
.end_amdhsa_kernel
"""
    open(sys.argv[1], "w").write(out)
main()
```

```python
import sys, struct, math
from core import *

class Cfg:
    dmap = "B"
    LK = 5
    LV = 3
    CUT = 6
    leadT = 11
    ta_slow = 250
    ta_fast = 90
    v0first = False
    qpf0 = 8
    lead = 2
    qflags = " nt"
    oflags = ""
    kvflags = " nt"
    pfflags = " nt"
    pf_period = 11
    stamps = 0
    spin = 0
    extra = 0
    dbg = -1
    force_fallback = False
    vahead = 2
    codepf = False
cfg = Cfg()
for a in sys.argv[2:]:
    k, v = a.split("=", 1)
    old = getattr(cfg, k)
    setattr(cfg, k, (v == "1") if isinstance(old, bool) else type(old)(v.replace("+", " ")))

KNAME = "standalone__mha_softmax__near_ridge_kernel"
SQ, SK, D = 1312, 512, 128
HEADQ = SQ * D * 2
HEADK = SK * D * 2
RING = 131072
CSCALE = struct.unpack("<I", struct.pack("<f", math.log2(math.e) / math.sqrt(D)))[0]

vO, vP, vS, vVf = 0, 160, 200, 208
vVA = 224
vKR, vKW, vQA, vOA, vPF, vIDX, vVD = 228, 229, 230, 231, 232, 233, 234
vT = 235
vKt = [236, 244]; vKx = [252, 253]
vW = [236, 240, 244]
vRI = 248
vL0, vL1, vDUM = 253, 254, 255
aQ, aST, aKf, aL, aSA = 0, 80, 208, 240, 252
def O(qs, b): return vO + 32 * qs + 4 * b
def P(T, qs): return vP + 20 * (T % 2) + 4 * qs
def S(c): return vS + 4 * (c % 2)
def Vf(f): return vVf + 4 * (f % 4)
def Q(qs, s): return aQ + 16 * qs + 4 * s
def Kf(blk, s): return aKf + 16 * blk + 4 * s
def ST(j, e): return aST + 8 * (j % 16) + 4 * e
def L(p): return aL + 4 * p
sQ, sK, sV, sO = 8, 12, 16, 20
sW = 24; sC = 25; sMASK = 26; sFAIL = 27; sBIT = 28; sCNT = 29
sOr = 30
sQn = 35
sKo, sVo, sM0 = 40, 41, 42
sT0, sT1, sT2 = 43, 44, 45
sLO, sRNG = 46, 47
sTS = 48
def off(s): return 64 * s if cfg.dmap == "A" else 128 * (s >> 1) + 16 * (s & 1)
GST = 16 if cfg.dmap == "A" else 32

def n_of(T): return 5 if T < 16 else 4

def mfma(d, a, b, zero, dk="v", ak="a", bk="a"):
    D_, A_, B_ = R(dk, d, 4), R(ak, a, 4), R(bk, b, 4)
    return I(f"v_mfma_f32_16x16x32_bf16 {D_}, {A_}, {B_}, {'0' if zero else D_}", "mfma",
             rd=[A_, B_] + ([] if zero else [D_]), wr=[D_], acc=not zero)
def valu(text, rd, wr, kind="valu"): return I(text, kind, rd=rd, wr=wr)
def salu(text, rd=(), wr=()): return I(text, "salu", rd=rd, wr=wr)

class Item:
    __slots__ = ("ins", "after", "dead", "prio", "early", "tag", "placed", "T", "seq")
    def __init__(self, ins, after=(), dead=None, early=None, tag="", prio=0):
        self.ins = ins; self.after = list(after); self.dead = dead; self.early = early
        self.tag = tag; self.prio = prio; self.placed = False

QKm, PVm, SMm, BARm, VCm = {}, {}, {}, {}, {}
def chain(T, g):
    if T == 15: return (g % 2, g // 2)
    return divmod(g, n_of(T))
def lastchain(T, blk): return (blk, n_of(T) - 1)
def mk_qk(T):
    n = n_of(T)
    for g in range(2 * n):
        blk, qs = chain(T, g)
        for s in range(4):
            QKm[T, blk, qs, s] = mfma(S(g), Kf(blk, s), Q(qs, s), s == 0)
def mk_pv(T):
    for b in range(8):
        for qs in range(n_of(T)):
            PVm[T, b, qs] = mfma(O(qs, b), Vf(b), P(T, qs), T % 16 == 0, ak="v", bk="v")
def pairs(T): return [0, 1, 2] if n_of(T) == 5 else [0, 1]
def pair_lo(p): return 3 if p == 2 else 2 * p
def mk_sm(T):
    for p in pairs(T):
        d, b = R("a", L(p), 4), R("v", P(T, pair_lo(p)), 8)
        SMm[T, p] = I(f"v_smfmac_f32_16x16x64_bf16 {d}, {R('a', aSA, 4)}, {b}, v{vIDX}", "smf",
                      rd=[d, b, R("a", aSA, 4), f"v{vIDX}"], wr=[d], acc=True)
def pvlist(T): return [PVm[T, b, qs] for b in range(8) for qs in range(n_of(T))]

def backbone_period(T, tail=False):
    pv = []
    if T >= 2: pv += pvlist(T - 2)[-4:]
    if T >= 1: pv += pvlist(T - 1) if tail else pvlist(T - 1)[:-4]
    sm = [SMm[T - 1, p] for p in pairs(T - 1)] if T >= 1 else []
    out = []
    if tail:
        out += pv[:4] + [sm[0]] + pv[4:8] + sm[1:]
        rest = pv[8:]
        vc = [VCm[j] for j in range(32)]
        out += rest + vc
        for k, m in enumerate(out): m.pref = "T" if (k < 4) else "D"
        return out
    n = n_of(T); G = 2 * n
    boundary = T > 0 and T % 16 == 0
    if boundary:
        lead = cfg.leadT if T == 16 else cfg.lead
        nl = 4 * lead
        head = pv[:nl]; pv = pv[nl:]
        if lead >= 2:
            head = head[:4] + [sm[0]] + head[4:8] + sm[1:] + head[8:]
            sm = []
        for k, m in enumerate(head): m.pref = "T" if k < 4 else "D"
        out += head
    if T == 1: cnt = [0] + [4] * (G - 1)
    else:
        cnt = [len(pv) // G + (1 if g < len(pv) % G else 0) for g in range(G)]
    smpos = {}
    if sm:
        if boundary: spots = [0, 1, 1]
        else: spots = [1, G // 2 + 1, G - 2] if len(sm) == 3 else [1, G // 2 + 1]
        for m, g in zip(sm, spots): smpos.setdefault(g, []).append(m)
    k = 0
    for g in range(G):
        blk, qs = chain(T, g)
        grp = [QKm[T, blk, qs, s] for s in range(4)] + pv[k:k + cnt[g]]
        k += cnt[g]
        for j, m in enumerate(grp): m.pref = "T" if (j % 2 == 0 and j < 8) else "D"
        if len(grp) == 4:
            for m in grp: m.pref = "T"
        out += grp
        for m in smpos.get(g, []):
            m.pref = "D"; out.append(m)
    return out

items = []
curT = [-200]
ordn = {}
def add(ins, **kw):
    it = Item(ins, **kw); ordn[curT[0]] = ordn.get(curT[0], 0) + 1; it.T = (curT[0], ordn[curT[0]]); it.seq = len(items); items.append(it); return it

cvts = {}
def items_softmax(T):
    n = n_of(T)
    for g in range(2 * n):
        blk, qs = chain(T, g)
        last = QKm[T, blk, qs, 3]
        if g + 2 < 2 * n: b2, q2 = chain(T, g + 2); nxt = QKm[T, b2, q2, 0]
        else: nxt = QKm.get((T + 1,) + chain(T + 1, g + 2 - 2 * n) + (0,))
        use = PVm[T, 0, qs]
        if g + 1 < 2 * n: b1, q1 = chain(T, g + 1); ng = QKm[T, b1, q1, 0]
        elif (T + 1) % 16 == 0 and cfg.lead >= 1: ng = pvlist(T - 1)[-4]
        else: ng = QKm[T + 1, 0, 0, 0]
        ex = []
        for r in range(4):
            v = f"v{S(g)+r}"
            ex.append(add(valu(f"v_exp_f32 {v}, {v}", [v], [v], "trans"), after=[(last, 8), (ng, 0)] + ([(ex[-1].ins, 0)] if ex else []),
                          dead=[nxt, use], tag="sm"))
        cl = []
        for h in range(2):
            d = f"v{P(T, qs) + 2*blk + h}"; a, b = f"v{S(g)+2*h}", f"v{S(g)+2*h+1}"
            aft = [(ex[2*h].ins, 1), (ex[2*h+1].ins, 1)]
            if (T - 2, 7, qs) in PVm: aft.append((PVm[T - 2, 7, qs], 0))
            for p in pairs(T - 2) if T >= 2 else []:
                if pair_lo(p) <= qs <= pair_lo(p) + 1: aft.append((SMm[T - 2, p], 0))
            dl = [nxt, use] + [SMm[T, p] for p in pairs(T) if pair_lo(p) <= qs <= pair_lo(p) + 1]
            cl.append(add(valu(f"v_cvt_pk_bf16_f32 {d}, {a}, {b}", [a, b], [d]), after=aft, dead=dl, tag="sm"))
        cvts[T, blk, qs] = cl

kreads = {}
def bar_pub(T):
    return BARm[T - 1] if T < 16 else BARm[(T // 2) * 2 - 1]
def items_kread(T):
    n = n_of(T)
    for blk in range(2):
        for s in range(4):
            d = R("a", Kf(blk, s), 4)
            ins = I(f"ds_read_b128 {d}, v{vKR} offset:{(T % 4) * 8192 + (4*blk+s) * 1024}", "dsr", rd=[f"v{vKR}"], wr=[d])
            aft = [(bar_pub(T), 0)]
            if T >= 1: aft.append((QKm[T - 1, blk, n_of(T - 1) - 1, s], 0))
            dl = [QKm[T, blk, 0, 0]]
            if blk == 1 and T % 2 == 1 and T != 15: dl.append(BARm[T])
            kreads[T, blk, s] = add(ins, after=aft, dead=dl, tag="qk", prio=-6)
vreads = {}
vtog = {}
def vbar(T):
    if T == 0: return BARm["V0"]
    return BARm[T]
def items_vread(T):
    for b in range(8):
        f = 8 * T + b
        pT, pb = divmod(f - 4, 8)
        aft = []
        if f >= 4: aft.append((PVm[pT, pb, n_of(pT) - 1], 0))
        aT, ab = divmod(f - cfg.vahead - 1, 8)
        if f - cfg.vahead - 1 >= 0: aft.append((PVm[aT, ab, n_of(aT) - 1], 0))
        if T < 16: aft.append((vbar(T), 0))
        c, dh = b & 3, b >> 2
        if T % 8 == 0 and T > 0 and dh == 0: aft.append((vtog[T, c].ins, 0))
        prev = None
        for blk in range(2):
            d = R("v", Vf(f) + 2 * blk, 2)
            ins = I(f"ds_read_b64_tr_b16 {d}, v{vVA+c} offset:{dh*32768 + (T % 8)*4096 + blk*2048}", "dsr",
                    rd=[f"v{vVA+c}"], wr=[d])
            vreads[T, b, blk] = add(ins, after=aft + ([(prev, 0)] if prev else []), dead=[PVm[T, b, 0]], tag="v", prio=-6)
            prev = ins
def items_vtoggle(T):
    for c in range(4):
        v = f"v{vVA+c}"
        vtog[T, c] = add(valu(f"v_xor_b32 {v}, 0x10000, {v}", [v], [v]), after=[(vreads[T - 1, 4 + c, 1].ins, 0)],
                         dead=[PVm[T, c, 0]], tag="v", prio=-12)

kwrites = {}
kloads = {}
def items_kwrite(T):
    m = T // 2
    if T < 16: opn, cls = BARm[max(T - 3, -1)], BARm[T - 1]
    else: opn, cls = BARm[2 * m - 3], BARm[2 * m - 1]
    ws = []
    if T < 16:
        st = vKt[T % 2]
        prev_w = kwrites.get(T - 2)
        for r in range(8):
            a = f"a{ST(T, 0) + r}"; x = f"v{st + r}"; t = f"v{vKx[r % 2]}"
            aft = [(kloads[T][r // 4], 0)]
            if prev_w: aft.append((prev_w[r].ins, 0))
            if r >= 2: aft.append((chain_prev[r % 2], 0))
            aft.append((mid_of(T - 2) if T >= 2 else QKm[0, 0, 1, 3], 0))
            i0 = add(valu(f"v_accvgpr_read_b32 {x}, {a}", [a], [x]), after=aft, dead=[cls], tag="qk", prio=-40)
            i1 = add(valu(f"v_lshlrev_b32 {t}, 16, {x}", [x], [t]), after=[(i0.ins, 0)] + ([(chain_prev[r % 2], 0)] if chain_prev[r % 2] else []), dead=[cls], tag="qk", prio=-39)
            i2 = add(valu(f"v_and_b32 {x}, s{sMASK}, {x}", [x, f"s{sMASK}"], [x]), after=[(i1.ins, 0)], dead=[cls], tag="qk", prio=-38)
            i3 = add(valu(f"v_mul_f32 {t}, s{sC}, {t}", [t, f"s{sC}"], [t]), after=[(i1.ins, 0)], dead=[cls], tag="qk", prio=-37)
            i4 = add(valu(f"v_mul_f32 {x}, s{sC}, {x}", [x, f"s{sC}"], [x]), after=[(i2.ins, 0)], dead=[cls], tag="qk", prio=-36)
            i5 = add(valu(f"v_cvt_pk_bf16_f32 {x}, {t}, {x}", [t, x], [x]), after=[(i3.ins, 0), (i4.ins, 0)], dead=[cls], tag="qk", prio=-35)
            chain_prev[r % 2] = i5.ins
            w = I(f"ds_write_b32 v{vKW}, {x} offset:{(T % 4)*8192 + (r//4)*1024 + (r % 4)*4}", "dsw", rd=[f"v{vKW}", x])
            ws.append(add(w, after=[(opn, 0), (i5.ins, 0)], dead=[cls], tag="qk", prio=-20))
        rb = []
        for e in range(2):
            d = R("a", ST(T, e), 4)
            ins = I(f"ds_read_b128 {d}, v{vKW} offset:{(T % 4)*8192 + e*1024}", "dsr", rd=[f"v{vKW}"], wr=[d])
            rb.append(add(ins, after=[(ws[4*e + k].ins, 0) for k in range(4)], dead=[cls], tag="qk", prio=-8))
        readback[T] = rb
    else:
        for r in range(8):
            a = f"a{ST(T, 0) + r}"
            w = I(f"ds_write_b32 v{vKW}, {a} offset:{(T % 4)*8192 + (r//4)*1024 + (r % 4)*4}", "dsw", rd=[f"v{vKW}", a])
            ws.append(add(w, after=[(opn, 0)] + ([(ws[-1].ins, 0)] if ws else ([(kwrites[T-1][-1].ins, 0)] if T % 2 else [])),
                          dead=[cls], tag="qk", prio=-10))
    kwrites[T] = ws
chain_prev = [None, None]
readback = {}
def mid_of(T): return QKm[(T,) + chain(T, n_of(T)) + (0,)]
def bar_spot(T): return QKm[(T,) + chain(T, n_of(T) - 1) + (3,)]
def start_of(T): return QKm[T, 0, 0, 0]

def kload_ins(j):
    out = []
    for e in range(2):
        d = R("a", ST(j, e), 4)
        out.append(I(f"buffer_load_dwordx4 {d}, v{vQA}, s[{sK}:{sK+3}], s{sKo} offen offset:{off(1)*e}{cfg.kvflags}", "vld",
                     rd=[f"v{vQA}", f"s{sKo}", f"s[{sK}:{sK+3}]"], wr=[d]))
    return out
def vdma_ins(j):
    out = []
    for dh in range(2):
        m0 = (j >> 3) * 65536 + dh * (32768 - 128) + (j & 7) * 4096
        out.append((salu(f"s_add_u32 m0, s{sM0}, {m0}", [f"s{sM0}"], ["m0", "scc"]),
                    I(f"buffer_load_dwordx4 v{vVD}, s[{sV}:{sV+3}], s{sVo} offen offset:{128*dh}{cfg.kvflags} lds", "dma",
                      rd=[f"v{vVD}", f"s{sVo}", "m0", f"s[{sV}:{sV+3}]"])))
    return out
vdmas = {}
last_vm = [None]
def add_kload(j, after, dead):
    up = add(salu(f"s_add_u32 s{sKo}, s{sKo}, 8192", [f"s{sKo}"], [f"s{sKo}", "scc"]),
             after=after + ([(last_vm[0], 0)] if last_vm[0] else []), dead=dead, tag="ld", prio=-30)
    ins = kload_ins(j); kloads[j] = ins
    prev = up.ins
    for x in ins:
        add(x, after=[(prev, 0)], dead=dead, tag="ld", prio=-25); prev = x
    last_vm[0] = prev
def add_vdma(j, after, dead):
    prev = last_vm[0]
    if j > 0:
        prev = add(salu(f"s_add_u32 s{sVo}, s{sVo}, 8192", [f"s{sVo}"], [f"s{sVo}", "scc"]),
                   after=after + ([(prev, 0)] if prev else []), dead=dead, tag="ld", prio=-30).ins
    vdmas[j] = []
    for sm0, dm in vdma_ins(j):
        add(sm0, after=after + [(prev, 0)], dead=dead, tag="ld", prio=-28)
        add(dm, after=[(sm0, 1)], dead=dead, tag="ld", prio=-25); prev = dm
        vdmas[j].append(dm)
    last_vm[0] = prev
def items_loads(T):
    if T == 0:
        def spot(g): return QKm[(0,) + chain(0, g) + (0,)], QKm[(0,) + chain(0, g) + (1,)]
        a, d = spot(0)
        for x in qload_ins(4):
            add(x, after=[(a, 0)] + ([(last_vm[0], 0)] if last_vm[0] else []), dead=[d], tag="ld", prio=-50); last_vm[0] = x
        kj, vj, g = 2, 0, 1
        while kj < cfg.LK or vj < cfg.LV:
            a, d = spot(g); g += 1
            if cfg.v0first and vj < cfg.LV: add_vdma(vj, [(a, 0)], [d]); vj += 1
            if kj < cfg.LK: add_kload(kj, [(a, 0)], [d]); kj += 1
            if not cfg.v0first and vj < cfg.LV: add_vdma(vj, [(a, 0)], [d]); vj += 1
        a, d = spot(max(g, 5))
        if cfg.LK < 16: add_kload(cfg.LK, [(a, 0)], [d])
        a, d = spot(max(g + 1, 7))
        if cfg.LV < 16: add_vdma(cfg.LV, [(a, 0)], [d])
        return
    if T + cfg.LK < 16: add_kload(T + cfg.LK, [(start_of(T), 0)], [start_of(T + 1)])
    if T + cfg.LV < 16: add_vdma(T + cfg.LV, [(mid_of(T), 0)], [mid_of(T + 1)])

def qload_ins(qs, dst=None):
    out = []
    for s in range(4):
        d = R("a", Q(qs, s), 4) if dst is None else R(dst[s][0], dst[s][1], 4)
        out.append(I(f"buffer_load_dwordx4 {d}, v{vQA}, s[{sQ}:{sQ+3}], s{sQn+qs} offen offset:{off(s)}{cfg.qflags}", "vld",
                     rd=[f"v{vQA}", f"s{sQn+qs}", f"s[{sQ}:{sQ+3}]"], wr=[d]))
    return out
def items_qjit(T):
    prev = None
    for qs in range(4):
        for s_, ins in enumerate(qload_ins(qs)):
            add(ins, after=[(QKm[T, 1, qs, s_], 0)] + ([(prev, 0)] if prev else []), dead=[QKm[T + 1, 0, qs, 0]], tag="qj", prio=-200)
            prev = ins
UNITS = [O(4, b) for b in range(8)] + [P(0, 4), P(1, 4)] + [236, 240, 244]
QBUF = {(qs, s_): ("v", UNITS[4 * qs + s_]) for qs in range(3) for s_ in range(4)}
QBUF.update({(3, s_): ("a", Q(4, s_)) for s_ in range(4)})
unit_free = {}
def items_qpf(T):
    base = T - 15
    prev = None
    for qs in range(4):
        lds_ = qload_ins(qs, [QBUF[qs, s_] for s_ in range(4)])
        for s_, ins in enumerate(lds_):
            k = 4 * qs + s_
            add(ins, after=[(start_of(base + cfg.qpf0), 0), (rowadv_done[base], 0)] + ([(prev, 0)] if prev else []),
                dead=[start_of(base + 14)], tag="qp", prio=-200 + k)
            prev = ins
            kind, r0 = QBUF[qs, s_]
            for r in range(4):
                d, a_ = f"a{Q(qs, s_) + r}", f"{kind}{r0 + r}"
                op = "v_accvgpr_write_b32" if kind == "v" else "v_accvgpr_mov_b32"
                c = add(valu(f"{op} {d}, {a_}", [a_], [d]), after=[(QKm[T, 1, qs, s_], 0)], dead=[QKm[T + 1, 0, qs, s_]], tag="qc", prio=-3)
                if kind == "v": unit_free.setdefault((T, r0), []).append(c.ins)
rowadv_done = {}
def items_rowadv(T):
    for qs in range(4):
        a = add(salu(f"s_add_u32 s{sOr+qs}, s{sOr+qs}, {'s3' if cfg.extra else 65536}", [f"s{sOr+qs}"], [f"s{sOr+qs}", "scc"]), after=[(start_of(T), 0)], dead=[start_of(T + 2)], tag="adv", prio=50)
        b = add(salu(f"s_add_u32 s{sQn+qs}, s{sOr+qs}, {'s4' if cfg.extra else 65536}" + ("\n    s_mov_b32 s3, s4\n    s_cmp_le_u32 s%d, 5\n    s_cselect_b32 s4, 0x10000, 0" % sCNT if cfg.extra and qs == 3 else ""), [f"s{sOr+qs}"], [f"s{sQn+qs}", "scc"]),
                after=[(a.ins, 0)] + ([(rowadv_done[T - T % 16], 0)] if qs else []), dead=[start_of(T + 2)], tag="adv", prio=50)
        rowadv_done[T - T % 16] = b.ins

wrot = [0]
def items_epilogue(T, endins):
    n = n_of(T)
    ri = {}
    prev = None
    for qs in range(n):
        p = 2 if qs == 4 else qs // 2
        h = 1 if qs == 4 else qs % 2
        la, lb = f"a{L(p) + 2*h}", f"a{L(p) + 2*h + 1}"
        x, y, r = f"v{vL0}", f"v{vL1}", f"v{vRI+qs}"
        dl = [PVm.get((T + 1, 0, qs), endins), endins]
        pa = [(prev, 0)] if prev else []
        i0 = add(valu(f"v_accvgpr_read_b32 {x}, {la}", [la], [x]), after=[(SMm[T, p], 12)] + pa, dead=dl, tag="ep", prio=-400)
        i1 = add(valu(f"v_accvgpr_read_b32 {y}, {lb}", [lb], [y]), after=[(SMm[T, p], 12)] + pa, dead=dl, tag="ep", prio=-400)
        i2 = add(valu(f"v_add_f32 {x}, {x}, {y}", [x, y], [x]), after=[(i0.ins, 0), (i1.ins, 0)], dead=dl, tag="ep", prio=-400)
        i3 = add(valu(f"v_rcp_f32 {r}, {x}", [x], [r], "trans"), after=[(i2.ins, 0)], dead=dl, tag="ep", prio=-400)
        i4 = add(valu(f"v_subrev_u32 {y}, s{sLO}, {x}", [x, f"s{sLO}"], [y]), after=[(i2.ins, 0)], dead=dl, tag="ep", prio=-399)
        i5 = add(valu(f"v_cmp_lt_u32 vcc, s{sRNG}, {y}", [y, f"s{sRNG}"], ["vcc"]), after=[(i4.ins, 0), (i3.ins, 0)], dead=dl, tag="ep", prio=-399)
        j0 = add(salu("s_cmp_lg_u64 vcc, 0", ["vcc"], ["scc"]), after=[(i5.ins, 2)], dead=dl, tag="ep", prio=-399)
        j0.ins.text += f"\n    s_cselect_b32 s{sT1}, s{sBIT}, 0\n    s_or_b32 s{sFAIL}, s{sFAIL}, s{sT1}\n    s_lshl_b32 s{sBIT}, s{sBIT}, 1"
        j0.ins.cost = 16
        prev = j0.ins
        ri[qs] = i3.ins
        zs = []
        if not (qs == 3 and n == 5 and False):
            for reg in (la, lb):
                dz = [SMm.get((T + 1, min(p, len(pairs(T + 1)) - 1)), endins), endins]
                add(valu(f"v_accvgpr_write_b32 {reg}, 0", [], [reg]), after=[(i0.ins, 0), (i1.ins, 0)], dead=dz, tag="ep", prio=0)
    if n == 5: pool = [(u, []) for u in (236, 240, 244)] + [(P(T - 1, 4), [(PVm[T - 1, 7, 4], 0), (SMm[T - 1, 2], 0)])]
    else: pool = [(u, [(x, 0) for x in unit_free.get((T, u), [])]) for u in UNITS[-1:] + UNITS[:-1]]
    prevst = None
    order = [(pb, qs) for pb in range(4) for qs in ([4, 0, 1, 2, 3] if n == 5 else range(4))]
    late = []
    for pb, qs in order:
        if qs == 4: w, wa = O(4, 2 * pb), []
        else: w, wa = pool.pop(0)
        cv = []
        for e in range(2):
            b = 2 * pb + e
            dl = [PVm.get((T + 1, b, qs), PVm.get((T + 1, b, 0), endins)), endins]
            ms = []
            for r in range(4):
                v = f"v{O(qs, b) + r}"
                ms.append(add(valu(f"v_mul_f32 {v}, {v}, v{vRI+qs}", [v, f"v{vRI+qs}"], [v]),
                              after=[(PVm[T, b, qs], 8), (ri[qs], 1)], dead=dl, tag="ep"))
            for h in range(2):
                d = f"v{w + 2*e + h}"; a_, b_ = f"v{O(qs, b) + 2*h}", f"v{O(qs, b) + 2*h + 1}"
                aft = [(ms[2*h].ins, 0), (ms[2*h+1].ins, 0)] + wa + ([(cv[-1].ins, 0)] if (qs == 4 and cv) else [])
                cv.append(add(valu(f"v_cvt_pk_bf16_f32 {d}, {a_}, {b_}", [a_, b_], [d]), after=aft, dead=dl, tag="ep"))
        sw = []
        for h in range(2):
            x, y = f"v{w + h}", f"v{w + 2 + h}"
            sw.append(add(valu(f"v_permlane16_swap_b32 {x}, {y}", [x, y], [x, y], "perm"),
                          after=[(cv[h].ins, 2), (cv[2 + h].ins, 2)], dead=[endins], tag="ep", prio=-300 + 8 * len(late) + (200 if qs == 4 else 0)))
        st = I(f"buffer_store_dwordx4 {R('v', w, 4)}, v{vOA}, s[{sO}:{sO+3}], s{sOr+qs} offen offset:{64*pb}{cfg.oflags}", "vst",
               rd=[R("v", w, 4), f"v{vOA}", f"s{sOr+qs}", f"s[{sO}:{sO+3}]"])
        add(st, after=[(sw[0].ins, 0), (sw[1].ins, 0)], dead=[endins], tag="ep", prio=-300 + 8 * len(late) + (200 if qs == 4 else 0))
        late.append(st)
        if qs == 4: pool.append((O(4, 2 * pb + 1), [(cv[3].ins, 0)]))
        else: pool.append((w, [(st, 2)]))
        if n == 5 and pb == 3 and qs == 4: pass

class Sched:
    def __init__(self, stream):
        self.stream = stream
        self.pos = {id(x): k for k, x in enumerate(stream)}
        self.over = 0
        self.cyc = 0; self.ta = 0; self.log = []
    def run(self, bb, its, fixed_after, marks=None, endins=None):
        stream, pos = self.stream, self.pos
        idx = {id(m): j for j, m in enumerate(bb)}
        for mid, lst in fixed_after.items():
            if mid in idx:
                for f in lst: idx[id(f)] = idx[mid]
        for j, lst in (marks or {}).items():
            for f in lst: idx[id(f)] = j
        if endins is not None: idx[id(endins)] = len(bb)
        waiting, act, bydead = {}, [], {}
        byins = {}
        for it in its:
            if it.placed: continue
            byins[id(it.ins)] = it
            d = min([idx[id(x)] for x in it.dead if x is not None and id(x) in idx] or [1 << 30])
            it.early = d + it.prio
            bydead.setdefault(d, []).append(it)
            w = {id(a) for a, _ in it.after if id(a) not in pos}
            nw[id(it)] = len(w)
            for a in w: waiting.setdefault(a, []).append(it)
            if not w: act.append(it)
        st = {"budget": 8, "first": True, "valu": False}
        def emit(x):
            pos[id(x)] = len(stream); stream.append(x)
            for it in waiting.pop(id(x), []):
                nw[id(it)] -= 1
                if nw[id(it)] == 0: act.append(it)
        def ready(it):
            n = len(stream)
            return all(n - pos[id(a)] - 1 >= dist for a, dist in it.after)
        def place(it):
            c = it.ins.cost; kd = it.ins.kind
            if kd == "salu" and st["first"]: c -= 4
            if kd in LGKM + VM and st["valu"]: c += 8
            if kd in VALU: st["valu"] = True
            act.remove(it); it.placed = True
            if kd in VM:
                now = self.cyc + 8 + (8 - st["budget"])
                self.ta = (max(self.ta, now) if now < self.ta + 1 and it.tag != "ld" else now) + (cfg.ta_fast if kd == "dma" else cfg.ta_slow)
            emit(it.ins); st["budget"] -= c; st["first"] = False
        def cands(pred):
            return sorted([it for it in act if pred(it) and ready(it)], key=lambda x: (x.early, x.seq))
        def force(limit):
            while True:
                due = [it for d in list(bydead) if d <= limit for it in bydead[d] if not it.placed]
                for d in [d for d in bydead if d <= limit]:
                    bydead[d] = [it for it in bydead[d] if not it.placed]
                    if not bydead[d]: del bydead[d]
                if not due: return
                stack = list(due); seen = set(); need = []
                while stack:
                    it = stack.pop()
                    if id(it) in seen: continue
                    seen.add(id(it)); need.append(it)
                    for a_, _ in it.after:
                        o = byins.get(id(a_))
                        if o is not None and not o.placed: stack.append(o)
                av = [it for it in need if nw[id(it)] == 0]
                if not av:
                    raise RuntimeError("deadlock: " + "; ".join(it.ins.text + " AFTER " + str([a for a, _ in it.after if id(a) not in pos]) for it in need[:6]))
                rs = [it for it in av if ready(it)]
                if not rs:
                    rs = cands(lambda x: x.ins.kind in VALU)[:1] or av
                rs.sort(key=lambda x: (0 if (x.ins.kind in LGKM + VM and not st["valu"]) else 1, x.early, x.seq))
                place(rs[0])
        force(0)
        for k, m in enumerate(bb):
            for f in (marks or {}).get(k, []): emit(f)
            emit(m)
            st.update(budget=8, first=True, valu=False)
            for f in fixed_after.get(id(m), []):
                emit(f); st["first"] = False
            c = cands(lambda x: x.ins.kind == "salu")
            if c and st["first"] and k + 1 < len(bb) and not getattr(cfg, "nosalu", False): place(c[0])
            tr = cands(lambda x: x.ins.kind == "trans")
            if m.pref == "T" and tr and st["budget"] >= 8:
                place(tr[0])
            else:
                mem = cands(lambda x: x.ins.kind in LGKM or (x.ins.kind in VM and self.ta <= self.cyc))
                if mem and st["budget"] >= 4:
                    vm = [x for x in mem if x.ins.kind in VM]
                    ds = [x for x in mem if x.ins.kind in LGKM]
                    x = vm[0] if vm and not (ds and ds[0].early <= k + 4) else (ds[0] if ds else vm[0])
                    place(x)
                while st["budget"] >= 4:
                    a = cands(lambda x: x.ins.kind in ("valu", "perm") or (x.ins.kind == "trans" and st["budget"] >= 8))
                    if not a: break
                    place(a[0])
            force(k + 1)
            if st["budget"] < 0: self.over -= st["budget"]
            self.cyc += max(16, 16 - st["budget"])
            self.log.append(self.cyc)
        if endins is not None: force(1 << 29)
nw = {}

sVC = 49
sTSB = 60
def stamp(k, cyc=False, mode=1):
    if cfg.stamps != mode: return []
    r = sTSB + 2 * k
    return [I(f"s_mem{'time' if cyc else 'realtime'} s[{r}:{r+1}]", "salu", wr=[f"s[{r}:{r+1}]"])]

def V(text, rd, wr, kind="valu"): return I(text, kind, rd=rd, wr=wr)
def prologue():
    o = []
    o.append(I("s_cmp_ge_u32 s2, 256\n    s_cbranch_scc1 L_end", "br"))
    o += stamp(0) + stamp(1, True)
    if cfg.spin: o.append(salu("s_memrealtime s[98:99]"))
    o.append(salu("s_load_dwordx8 s[52:59], s[0:1], 0"))
    l, t, u, g = "v1", "v2", "v3", "v4"
    o += [V(f"v_lshrrev_b32 {t}, 6, v0", ["v0"], [t]),
          V(f"v_and_b32 {l}, 63, v0", ["v0"], [l]),
          V(f"v_readfirstlane_b32 s{sW}, {t}", [t], [f"s{sW}"]),
          V(f"v_lshrrev_b32 {g}, 4, {l}", [l], [g]),
          V(f"v_and_b32 {t}, 15, {l}", [l], [t]),
          V(f"v_lshlrev_b32 {t}, 8, {t}", [t], [t]),
          V(f"v_mul_u32_u24 {u}, {GST}, {g}", [g], [u]),
          V(f"v_add_u32 v{vQA}, {t}, {u}", [t, u], [f"v{vQA}"]),
          V(f"v_and_b32 {u}, 1, {g}", [g], [u]),
          V(f"v_lshl_add_u32 {t}, {u}, 5, {t}", [u, t], [t]),
          V(f"v_lshrrev_b32 {u}, 1, {g}", [g], [u]),
          V(f"v_lshl_add_u32 v{vOA}, {u}, 4, {t}", [u, t], [f"v{vOA}"]),
          V(f"v_bfe_u32 {t}, {l}, 1, 2", [l], [t]),
          V(f"v_xor_b32 {t}, {t}, {g}", [t, g], [t]),
          V(f"v_lshlrev_b32 {t}, 5, {t}", [t], [t]),
          V(f"v_lshrrev_b32 {u}, 3, {l}", [l], [u]),
          V(f"v_lshl_add_u32 {t}, {u}, 8, {t}", [u, t], [t]),
          V(f"v_and_b32 {u}, 1, {l}", [l], [u]),
          V(f"v_lshl_add_u32 v{vVD}, {u}, 4, {t}", [u, t], [f"v{vVD}"]),
          ]
    o += [salu(f"s_mul_i32 s{sT0}, s2, {HEADQ}", [], [f"s{sT0}"]),
          salu(f"s_lshl_b32 s{sT1}, s2, 17", [], [f"s{sT1}"]),
          salu(f"s_lshl_b32 s{sM0}, s{sW}, 10", [f"s{sW}"], [f"s{sM0}"]),
          salu(f"s_lshl_b32 s{sVo}, s{sW}, 11", [f"s{sW}"], [f"s{sVo}"]),
          salu(f"s_lshr_b32 s{sKo}, s{sW}, 1", [f"s{sW}"], [f"s{sKo}"]),
          salu(f"s_lshl_b32 s{sKo}, s{sKo}, 12"),
          salu(f"s_and_b32 s{sT2}, s{sW}, 1"),
          salu(f"s_lshl_b32 s{sT2}, s{sT2}, 7"),
          salu(f"s_add_u32 s{sKo}, s{sKo}, s{sT2}"),
          salu(f"s_lshl_b32 s{sOr}, s{sW}, 14"),
          salu(f"s_add_u32 s{sOr+1}, s{sOr}, 4096"),
          salu(f"s_add_u32 s{sOr+2}, s{sOr}, 8192"),
          salu(f"s_add_u32 s{sOr+3}, s{sOr}, 12288"),
          salu(f"s_lshl_b32 s{sOr+4}, s{sW}, 12"),
          salu(f"s_add_u32 s{sOr+4}, s{sOr+4}, {1280*256}"),
          ]
    o += [salu(f"s_mov_b32 s{sQn+k}, s{sOr+k}") for k in range(5)]
    o.append(I("s_waitcnt lgkmcnt(0)", "wait"))
    for srd, p, so, size in ((sK, 54, sT1, HEADK), (sQ, 52, sT0, HEADQ), (sV, 56, sT1, HEADK), (sO, 58, sT0, HEADQ)):
        o += [salu(f"s_add_u32 s{srd}, s{p}, s{so}"), salu(f"s_addc_u32 s{srd+1}, s{p+1}, 0"),
              salu(f"s_mov_b32 s{srd+2}, {size}"), salu(f"s_mov_b32 s{srd+3}, 0x20000")]
    kloads[0] = kload_ins(0); kloads[1] = kload_ins(1)
    o += kloads[0] + qload_ins(0) + qload_ins(1)[:2]
    later = [qload_ins(1)[2:] + [salu(f"s_add_u32 s{sKo}, s{sKo}, 8192")] + kloads[1], qload_ins(2), qload_ins(3)]
    if cfg.codepf:
        o.append(I(f"s_getpc_b64 s[50:51]\n    s_and_b32 s50, s50, 0xffffff00", "salu"))
        o.append(V(f"v_lshlrev_b32 v5, 7, v0", ["v0"], ["v5"]))
        for k in range(2):
            x = I(f"global_load_dword v{vDUM}, v5, s[50:51]", "vld", rd=["v5"], wr=[f"v{vDUM}"]); x.nowait = True
            o.append(x)
            if k == 0: o.append(V("v_add_u32 v5, 0x8000, v5", ["v5"], ["v5"]))
    o += [salu(f"s_mov_b32 s{sC}, {CSCALE:#x}"), salu(f"s_mov_b32 s{sMASK}, 0xffff0000"),
          salu(f"s_mov_b32 s{sFAIL}, {0x1fffff if cfg.force_fallback else 0}"), salu(f"s_mov_b32 s{sBIT}, 1"), salu(f"s_mov_b32 s{sCNT}, {4 + cfg.extra}"), salu("s_mov_b32 s3, 0x10000"), salu("s_mov_b32 s4, 0"),
          salu(f"s_mov_b32 s{sLO}, 0x3f800000"), salu(f"s_mov_b32 s{sRNG}, 0x1e000000"),
          salu(f"s_lshl_b32 s{sVC}, s{sW}, 15"), salu(f"s_sub_u32 s{sVC}, s{sVC}, {RING}"),
          salu(f"s_lshl_b32 s{sT2}, s{sW}, 11")]
    o += [V(f"v_lshlrev_b32 {t}, 4, {l}", [l], [t]),
          V(f"v_add_u32 v{vKR}, {RING}, {t}", [t], [f"v{vKR}"]),
          V(f"v_add_u32 v{vKW}, s{sT2}, v{vKR}", [f"v{vKR}"], [f"v{vKW}"]),
          V(f"v_lshlrev_b32 v{vPF}, 7, {l}", [l], [f"v{vPF}"]),
          V(f"v_lshrrev_b32 {t}, 2, {l}", [l], [t]),
          V(f"v_lshlrev_b32 {t}, 7, {t}", [t], [t]),
          V(f"v_and_b32 {u}, 3, {l}", [l], [u]),
          V(f"v_lshl_add_u32 {t}, {u}, 3, {t}", [u, t], [t]),
          V(f"v_bfe_u32 {u}, {l}, 3, 2", [l], [u]),
          V(f"v_lshl_add_u32 v{vVA}, {u}, 5, {t}", [u, t], [f"v{vVA}"])]
    o += [V(f"v_xor_b32 v{vVA+c}, {32*c}, v{vVA}", [f"v{vVA}"], [f"v{vVA+c}"]) for c in range(1, 4)]
    o += [V(f"v_lshrrev_b32 {t}, 4, {l}", [l], [t]),
          V(f"v_xor_b32 {t}, {t}, {l}", [t, l], [t]),
          V(f"v_bfe_u32 {t}, {t}, 1, 1", [t], [t]),
          V(f"v_add_u32 {t}, -1, {t}", [t], [t]),
          V(f"v_and_b32 {t}, 0x3f803f80, {t}", [t], [t])]
    o += [V(f"v_accvgpr_write_b32 a{aSA+k}, {t}", [t], [f"a{aSA+k}"]) for k in range(4)]
    o += [V(f"v_and_b32 {u}, 1, {l}", [l], [u]),
          V(f"v_mul_u32_u24 {u}, 0xaaaa, {u}", [u], [u]),
          V(f"v_add_u32 v{vIDX}, 0x4444, {u}", [u], [f"v{vIDX}"])]
    o += [V(f"v_accvgpr_write_b32 a{aL+k}, 0", [], [f"a{aL+k}"]) for k in range(12)]
    o += later[0]
    for T in range(1):
        st = vKt[T]; ws = []
        for r in range(8):
            a = f"a{ST(T, 0) + r}"; x = f"v{st + r}"; tt = f"v{vKx[r % 2]}"
            o += [V(f"v_accvgpr_read_b32 {x}, {a}", [a], [x]),
                  V(f"v_lshlrev_b32 {tt}, 16, {x}", [x], [tt]),
                  V(f"v_and_b32 {x}, s{sMASK}, {x}", [x], [x]),
                  V(f"v_mul_f32 {tt}, s{sC}, {tt}", [tt], [tt]),
                  V(f"v_mul_f32 {x}, s{sC}, {x}", [x], [x]),
                  V(f"v_cvt_pk_bf16_f32 {x}, {tt}, {x}", [tt, x], [x])]
        for e in range(2):
            w = I(f"ds_write_b128 v{vKW}, {R('v', st + 4*e, 4)} offset:{T*8192 + e*1024}", "dsw", rd=[f"v{vKW}", R('v', st + 4*e, 4)])
            o.append(w); ws += [Item(w)] * 4
        rb = []
        for e in range(2):
            d = R("a", ST(T, e), 4)
            x = I(f"ds_read_b128 {d}, v{vKW} offset:{T*8192 + e*1024}", "dsr", rd=[f"v{vKW}"], wr=[d])
            o.append(x); rb.append(Item(x))
        kwrites[T] = ws; readback[T] = rb
    o += later[1]
    pro_tail.extend(later[2] + [salu(f"s_add_u32 s{sQn+k}, s{sOr+k}, 65536") for k in range(4)])
    return o
pro_tail = []

def finale():
    a = L(2)
    t = []
    t.append("    s_nop 7\n    s_nop 3")
    t += [f"    v_accvgpr_read_b32 v{k}, a{a+k}" for k in range(4)]
    t += [f"    v_and_b32 v{k}, 0x7fffffff, v{k}" for k in range(4)]
    t += ["    v_max_u32 v0, v0, v1", "    v_max3_u32 v0, v0, v2, v3",
          "    v_cmp_le_u32 vcc, 0x7f800000, v0",
          "    s_nop 1",
          "    s_cmp_lg_u64 vcc, 0",
          f"    s_cselect_b32 s{sT0}, 1, 0",
          f"    s_lshl_b32 s{sT1}, s{sW}, 2",
          f"    s_add_u32 s{sT1}, s{sT1}, {RING}",
          f"    v_mov_b32 v0, s{sT0}", f"    v_mov_b32 v1, s{sT1}", f"    v_mov_b32 v2, {RING}",
          "    ds_write_b32 v1, v0", "    s_waitcnt lgkmcnt(0)", "    s_barrier",
          "    ds_read_b128 v[4:7], v2", "    s_waitcnt lgkmcnt(0)",
          "    v_or3_b32 v4, v4, v5, v6", "    v_or_b32 v4, v4, v7", "    s_nop 0",
          f"    v_readfirstlane_b32 s{sT0}, v4", "    s_nop 1",
          f"    s_cmp_lg_u32 s{sT0}, 0",
          f"    s_cselect_b32 s{sFAIL}, 0x1fffff, s{sFAIL}"]
    if cfg.stamps == 1:
        t += ["    s_memrealtime s[%d:%d]" % (sTSB + 22, sTSB + 23), "    s_waitcnt vmcnt(0)",
              "    s_memrealtime s[%d:%d]" % (sTSB + 24, sTSB + 25), "    s_memtime s[%d:%d]" % (sTSB + 26, sTSB + 27)]
    if cfg.stamps:
        t += ["    s_load_dwordx2 s[4:5], s[0:1], 40", "    s_waitcnt lgkmcnt(0)",
              "    s_mov_b32 s6, 0x100000", "    s_mov_b32 s7, 0x20000",
              f"    s_lshl_b32 s{sT0}, s2, 2", f"    s_add_u32 s{sT0}, s{sT0}, s{sW}", f"    s_lshl_b32 s{sT0}, s{sT0}, 7",
              "    v_mov_b32 v1, 0"]
        for k in range(21):
            t += [f"    v_mov_b32 v0, s{sTSB + 2*k}", f"    buffer_store_dword v0, v1, s[4:7], s{sT0} offen offset:{4*k}"]
    if cfg.spin:
        t += ["L_spin:", "    s_memrealtime s[100:101]", "    s_waitcnt lgkmcnt(0)", "    s_sub_u32 s100, s100, s98", f"    s_cmp_lt_u32 s100, {cfg.spin * 100}", "    s_cbranch_scc1 L_spin"]
    if cfg.dbg >= 0:
        t += [f"    s_cmp_lg_u32 s2, {cfg.dbg}", "    s_cbranch_scc1 L_nodbg", f"    s_cmp_lg_u32 s{sW}, 0", "    s_cbranch_scc1 L_nodbg",
              "    s_load_dwordx2 s[4:5], s[0:1], 32", "    s_waitcnt lgkmcnt(0)", "    s_mov_b32 s6, 256", "    s_mov_b32 s7, 0x20000"]
        lst = [(2, 0), (3, 0), (4, 0), (5, 0), (9, 0), (8, 0), (7, 0), (6, 0), (11, 0), (12, 0), (10, 1), (13, 10)]
        for k, (a_, b_) in enumerate(lst):
            t += [f"    s_sub_u32 s{sT1}, s{sTSB + 2*a_}, s{sTSB + 2*b_}", f"    v_mov_b32 v0, s{sT1}", f"    buffer_store_dword v0, v1, s[4:7], 0 offen offset:{4*k}"]
        t += ["L_nodbg:"]
    t += [f"    s_cmp_eq_u32 s{sFAIL}, 0", "    s_cbranch_scc1 L_end"]
    sJ, sRow, sKb, sVt = sT0, sT1, sT2, sKo
    f = ["    ; ---- slow path: rows whose unshifted exponent sum left the safe range are redone with the true max",
         "    s_waitcnt vmcnt(0)"]
    f += [f"    v_and_b32 v{vVA+c}, 0xffff, v{vVA+c}" for c in range(4)]
    f += ["L_fb_next:",
          f"    s_ff1_i32_b32 s{sJ}, s{sFAIL}", f"    s_bitset0_b32 s{sFAIL}, s{sJ}",
          f"    s_cmp_gt_u32 s{sJ}, 4", f"    s_cselect_b32 s{sKb}, 1, 0", f"    s_sub_u32 s{sKb}, s{sJ}, s{sKb}",
          f"    s_lshr_b32 s{sRow}, s{sKb}, 2", f"    s_lshl_b32 s{sRow}, s{sRow}, 16",
          f"    s_and_b32 s{sKb}, s{sKb}, 3", f"    s_lshl_b32 s{sKb}, s{sKb}, 12", f"    s_add_u32 s{sRow}, s{sRow}, s{sKb}",
          f"    s_lshl_b32 s{sKb}, s{sW}, 14", f"    s_add_u32 s{sRow}, s{sRow}, s{sKb}",
          f"    s_cmp_eq_u32 s{sJ}, 4", f"    s_cselect_b32 s{sRow}, s{sOr+4}, s{sRow}"]
    f += [f"    buffer_load_dwordx4 v[{4*s}:{4*s+3}], v{vQA}, s[{sQ}:{sQ+3}], s{sRow} offen offset:{off(s)}" for s in range(4)]
    def qk(dst, extra):
        r = [f"    buffer_load_dwordx4 v[{20+4*s}:{23+4*s}], v{vQA}, s[{sK}:{sK+3}], s{sKb} offen offset:{off(s)}" for s in range(4)]
        r += ["    s_waitcnt vmcnt(0)"]
        r += [f"    v_mfma_f32_16x16x32_bf16 v[{dst}:{dst+3}], v[{20+4*s}:{23+4*s}], v[{4*s}:{4*s+3}], {'0' if s == 0 else f'v[{dst}:{dst+3}]'}" for s in range(4)]
        r += [f"    s_add_u32 s{sKb}, s{sKb}, 4096", "    s_nop 9"]
        return r
    f += ["    v_mov_b32 v16, 0xff800000", f"    s_mov_b32 s{sKb}, 0", "L_fb_max:"]
    f += qk(36, None)
    f += ["    v_max3_f32 v16, v16, v36, v37", "    v_max3_f32 v16, v16, v38, v39",
          f"    s_cmp_lt_u32 s{sKb}, {HEADK}", "    s_cbranch_scc1 L_fb_max"]
    def xlane(reg, tmp, op):
        return [f"    v_mov_b32 v{tmp}, v{reg}", "    s_nop 1", f"    v_permlane16_swap_b32 v{reg}, v{tmp}", "    s_nop 1", f"    {op} v{reg}, v{reg}, v{tmp}",
                f"    v_mov_b32 v{tmp}, v{reg}", "    s_nop 1", f"    v_permlane32_swap_b32 v{reg}, v{tmp}", "    s_nop 1", f"    {op} v{reg}, v{reg}, v{tmp}"]
    f += xlane(16, 17, "v_max_f32")
    f += [f"    v_mul_f32 v17, s{sC}, v16", "    v_mov_b32 v18, 0"]
    f += [f"    v_mov_b32 v{64+k}, 0" for k in range(32)]
    f += [f"    s_mov_b32 s{sKb}, 0", f"    s_mov_b32 s{sVt}, 0", "L_fb_pv:"]
    f += qk(36, None) + qk(40, None)
    f += [f"    v_fma_f32 v{36+k}, v{36+k}, s{sC}, -v17" for k in range(8)]
    f += [f"    v_exp_f32 v{36+k}, v{36+k}" for k in range(8)]
    f += ["    s_nop 0"] + [f"    v_add_f32 v18, v18, v{36+k}" for k in range(8)]
    f += [f"    v_cvt_pk_bf16_f32 v{44+k}, v{36+2*k}, v{37+2*k}" for k in range(4)]
    f += [f"    v_add_u32 v{52+c}, s{sVt}, v{vVA+c}" for c in range(4)]
    for b in range(8):
        f += [f"    ds_read_b64_tr_b16 v[{48+2*blk}:{49+2*blk}], v{52+(b&3)} offset:{(b>>2)*32768 + blk*2048}" for blk in range(2)]
        f += ["    s_waitcnt lgkmcnt(0)", f"    v_mfma_f32_16x16x32_bf16 v[{64+4*b}:{67+4*b}], v[48:51], v[44:47], v[{64+4*b}:{67+4*b}]"]
    f += [f"    s_add_u32 s{sVt}, s{sVt}, 4096", f"    s_cmp_eq_u32 s{sVt}, 32768", f"    s_cselect_b32 s{sVt}, 65536, s{sVt}",
          f"    s_cmp_lt_u32 s{sKb}, {HEADK}", "    s_cbranch_scc1 L_fb_pv"]
    f += xlane(18, 17, "v_add_f32")
    f += ["    v_rcp_f32 v18, v18", "    s_nop 7"]
    f += [f"    v_mul_f32 v{64+k}, v{64+k}, v18" for k in range(32)]
    f += [f"    v_cvt_pk_bf16_f32 v{96+k}, v{64+2*k}, v{65+2*k}" for k in range(16)]
    f += ["    s_nop 1"]
    for pb in range(4):
        f += [f"    v_permlane16_swap_b32 v{96+4*pb+h}, v{98+4*pb+h}" for h in range(2)]
    f += [f"    buffer_store_dwordx4 v[{96+4*pb}:{99+4*pb}], v{vOA}, s[{sO}:{sO+3}], s{sRow} offen offset:{64*pb}" for pb in range(4)]
    f += ["    s_waitcnt vmcnt(0)", f"    s_cmp_lg_u32 s{sFAIL}, 0", "    s_cbranch_scc1 L_fb_next"]
    return t + f

def build():
    NT = 50; C = cfg.CUT
    for T in range(NT + 2): mk_qk(T); mk_pv(T); mk_sm(T)
    BARm[-1] = I("s_barrier", "bar"); BARm["V0"] = I("s_barrier", "bar")
    for T in list(range(0, 15, 2)) + list(range(1, NT + 2, 2)): BARm[T] = I("s_barrier", "bar")
    pro = prologue()
    pro.append(BARm[-1]); pro += stamp(2) + pro_tail
    bb, start = [], {}
    for T in range(NT):
        start[T] = len(bb); bb += backbone_period(T)
    fixed = {id(bar_spot(T)): [BARm[T]] for T in range(NT) if T in BARm}
    fixed[id(QKm[0, 1, 2, 3])] = [BARm["V0"]]
    labL = I("L_loop:", "label"); labL2 = I("; second instance", "label")
    def chk():
        pre = ""
        if cfg.stamps == 2:
            pre = f"s_memtime s[{sTSB+32}:{sTSB+33}]\n    "
        if cfg.stamps == 1:
            r = sTSB + 12
            pre = "".join(f"s_mov_b64 s[{r+2*k+2}:{r+2*k+3}], s[{r+2*k}:{r+2*k+1}]\n    " for k in (2, 1, 0)) + f"s_memrealtime s[{r}:{r+1}]\n    "
        return I(pre + f"s_sub_u32 s{sCNT}, s{sCNT}, 1\n    s_cmp_eq_u32 s{sCNT}, 0\n    s_cbranch_scc1 L_tail", "br")
    chk1, chk2 = chk(), chk()
    brL = I("s_branch L_loop", "br")
    marks = {start[16 + C]: stamp(5) + [labL], start[32]: [chk1], start[32 + C]: [brL, labL2], start[48]: [chk2]}
    if cfg.stamps == 1:
        marks[start[1]] = stamp(3); marks[start[16]] = stamp(4) + stamp(10, True)
    if cfg.stamps == 2:
        for T in range(16 + C, 32):
            for U in (T, T + 16): marks.setdefault(start[U], []).append(stamp(T - 16, True, 2)[0])
        for T in range(32, 32 + C): marks.setdefault(start[T], []).append(stamp(T - 32, True, 2)[0])
    if cfg.stamps == 3:
        for T in range(0, 18): marks.setdefault(start[T], []).insert(0, stamp(T, False, 3)[0])
        pro.insert(1, stamp(18, False, 3)[0])
    for T in range(16): items_loads(T)
    for T in range(NT):
        curT[0] = T
        items_softmax(T); items_kread(T)
        if T % 8 == 0 and T > 0: items_vtoggle(T)
        items_vread(T)
        if T == 15: items_qjit(T)
        if T % 16 == C and T > 16: items_rowadv(T)
        if T % 16 == 15 and T > 16: items_qpf(T)
    for T in range(1, NT + 2): curT[0] = T; items_kwrite(T)
    curT[0] = -100
    items_epilogue(15, marks[start[16 + C]][0]); items_epilogue(31, marks[start[32 + C]][0])
    BARm[-1].needs = [x.ins for x in kwrites[0]]
    BARm["V0"].needs = list(vdmas[0])
    for T in range(NT):
        if T not in BARm: continue
        pub = (T + 1,) if T < 15 else (T + 1, T + 2)
        nd = [x.ins for t in pub for x in kwrites[t]]
        if T in vdmas and T > 0: nd += vdmas[T]
        done = (T - 1, T) if (T >= 13 and T != 15) else (T - 1,) if T >= 1 else ()
        if T == 17: done = (15, 16, 17)
        nd += [kreads[t, blk, s_].ins for t in done for blk in range(2) for s_ in range(4)]
        nd += [x.ins for t in done if t in readback for x in readback[t]]
        BARm[T].needs = nd
    stream = list(pro)
    sc = Sched(stream)
    sc.run(bb, items, fixed, marks)
    p = {id(x): k for k, x in enumerate(stream)}
    ref = {(it.T[0] - 16, it.T[1]): p[id(it.ins)] < p[id(brL)] for it in items if it.placed and 32 <= it.T[0] < 48}
    cut = marks[start[16 + C]][0]
    for it in items:
        r = ref.get(it.T)
        if r is True: it.dead = list(it.dead) + [cut]
        elif r is False: it.after.append((labL, 0))
        it.placed = False
    stream = list(pro)
    sc = Sched(stream)
    sc.run(bb, items, fixed, marks)
    est = [sc.log[start[T + 1] - 1] - (sc.log[start[T] - 1] if T else 0) for T in range(NT - 1)]
    sys.stderr.write(f"est cycles/period: {est[:38]}\n")
    p = {id(x): k for k, x in enumerate(stream)}
    iL, iC1, iBr, iL2, iC2 = p[id(labL)], p[id(chk1)], p[id(brL)], p[id(labL2)], p[id(chk2)]
    segP = stream[:iL]; segL = stream[iL:iC1 + 1]; segB = stream[iC1 + 1:iBr + 1]; segL2 = stream[iL2:iC2 + 1]
    a = [x.text for x in segL[1:]]; b = [x.text for x in segL2[1:]]
    if a != b:
        for k, (x, y) in enumerate(zip(a, b)):
            if x != y: sys.stderr.write(f"loop mismatch at {k}: {x} | {y}\n"); break
        raise SystemExit("loop instances differ")
    mp = {id(y): x for x, y in zip(segL, segL2)}
    for x, y in zip(segL, segL2): x.needs = x.needs + [mp.get(id(z), z) for z in y.needs]
    for it in items:
        if it.placed and p[id(it.ins)] > iC2: it.placed = False
    keep = [it for it in items if not it.placed and it.tag in ("sm", "v") and
            all(id(a_) in p and p[id(a_)] <= iC2 or True for a_, _ in it.after)]
    TL = 47
    keep = [it for it in keep if any(id(d) in {id(PVm[t, b, q]) for t in (TL - 1, TL) for b in range(8) for q in range(4)} for d in it.dead if d is not None)]
    items.clear(); items.extend(keep)
    endT = I("; end of tail", "label")
    va = add(valu(f"v_add_u32 v{vVD}, s{sVC}, v{vKR}", [f"v{vKR}"], [f"v{vVD}"]), dead=[PVm[TL, 2, 0]], tag="vc")
    for j in range(32):
        buf = Kf(0, 0) + 4 * (j % 8)
        VCm[j] = mfma(L(2), buf, buf, j == 0, dk="a")
    for j in range(32):
        d = R("a", Kf(0, 0) + 4 * (j % 8), 4)
        add(I(f"ds_read_b128 {d}, v{vVD} offset:{j*1024}", "dsr", rd=[f"v{vVD}"], wr=[d]),
            after=[(va.ins, 0)] + ([(VCm[j - 8], 0)] if j >= 8 else []), dead=[VCm[j]], tag="vc", prio=-6)
    items_epilogue(TL, endT)
    tbb = backbone_period(48, tail=True)
    known = {id(x) for x in stream[:iC2 + 1]} | {id(x) for x in tbb} | {id(it.ins) for it in items}
    for it in items: it.after = [(a_, d_) for a_, d_ in it.after if id(a_) in known]
    tstream = stream[:iC2 + 1]
    sc2 = Sched(tstream)
    labT = I("L_tail:", "label")
    sc2.run(tbb, items, {}, {0: [labT]}, endins=endT)
    segT = tstream[iC2 + 1:]
    assert segT[0] is labT, segT[:3]
    for x in segT: x.needs = [mp.get(id(z), z) for z in x.needs]
    linear = segP + segL + segB + segL + segT
    waits = insert_waits(linear)
    nops = fix_hazards(linear, waits)
    sys.stderr.write(f"instr: P {len(segP)} L {len(segL)} B {len(segB)} T {len(segT)}; waits {len(waits)}; nops {sum(nops.values())} at {len(nops)} sites\n")
    body = render(segP, waits, nops) + render(segL, waits, nops) + render(segB, waits, nops) + render(segT, waits, nops)
    return body

HEADER = open("standalone__mha_softmax__near_ridge.s.ref").read().split("; Override launch")[0]
def main():
    body = build()
    out = HEADER + f"""; One workgroup (4 waves x 512 registers) per (batch, head).  V stays in LDS, K (pre-scaled by log2(e)/sqrt(D))
; stays in registers and is re-published through a small LDS ring; generated by my own scheduling script.
; @launch grid=(256,1,1) block=(256,1,1) lds=163840
.amdgcn_target "amdgcn-amd-amdhsa--gfx950"
.text
.globl {KNAME}
.p2align 8
.type {KNAME},@function
{KNAME}:
""" + "\n".join(body) + "\n" + "\n".join(finale()) + f"""
L_end:
    s_endpgm
.section .rodata,"a"
.p2align 6
.amdhsa_kernel {KNAME}
  .amdhsa_next_free_vgpr 512
  .amdhsa_next_free_sgpr 102
  .amdhsa_accum_offset 256
  .amdhsa_group_segment_fixed_size 0
  .amdhsa_kernarg_size 48
  .amdhsa_user_sgpr_count 2
  .amdhsa_user_sgpr_kernarg_segment_ptr 1
  .amdhsa_system_sgpr_workgroup_id_x 1
.end_amdhsa_kernel
"""
    open(sys.argv[1], "w").write(out)
main()
```

```python
import sys, struct, math
from core import *

class Cfg:
    dmap = "B"
    LK = 5
    LV = 3
    delta = 4
    wr64 = False
    CUT = 10
    leadT = 11
    ta_slow = 250
    ta_fast = 90
    v0first = False
    dsmargin = 9
    st3 = 0
    jitfirst = True
    tq0 = 8
    tstep = 15
    st0 = 40
    kdoff = 14
    kstep = 8
    ldslat = 110
    qpf0 = 8
    lead = 0
    qflags = " nt"
    oflags = ""
    kvflags = " nt"
    pfflags = " nt"
    pf_period = 11
    stamps = 0
    spin = 0
    extra = 0
    dbg = -1
    force_fallback = False
    vahead = 2
    codepf = False
cfg = Cfg()
for a in sys.argv[2:]:
    k, v = a.split("=", 1)
    old = getattr(cfg, k)
    setattr(cfg, k, (v == "1") if isinstance(old, bool) else type(old)(v.replace("+", " ")))

KNAME = "standalone__mha_softmax__near_ridge_kernel"
SQ, SK, D = 1312, 512, 128
HEADQ = SQ * D * 2
HEADK = SK * D * 2
RING = 131072
CSCALE = struct.unpack("<I", struct.pack("<f", math.log2(math.e) / math.sqrt(D)))[0]

vO, vP, vS, vVf = 0, 160, 200, 208
vVA = 224
vKR, vKW, vQA, vOA, vPF, vIDX, vVD = 228, 229, 230, 231, 232, 233, 234
vT = 235
vKt = [236, 244]; vKx = [252, 253]
vW = [236, 240, 244]
vRI = 248
vL0, vL1, vDUM = 253, 254, 255
aQ, aST, aKf, aL, aSA = 0, 80, 208, 240, 252
def O(qs, b): return vO + 32 * qs + 4 * b
def P(T, qs): return vP + 20 * (T % 2) + 4 * qs
def S(c): return vS + 4 * (c % 2)
def Vf(f): return vVf + 4 * (f % 4)
def Q(qs, s): return aQ + 16 * qs + 4 * s
def Kf(blk, s): return aKf + 16 * blk + 4 * s
def ST(j, e): return aST + 8 * (j % 16) + 4 * e
def L(p): return aL + 4 * p
sQ, sK, sV, sO = 8, 12, 16, 20
sW = 24; sC = 25; sMASK = 26; sFAIL = 27; sBIT = 28; sCNT = 29
sOr = 30
sQn = 35
sKo, sVo, sM0 = 40, 41, 42
sT0, sT1, sT2 = 43, 44, 45
sLO, sRNG = 46, 47
sTS = 48
def off(s): return 64 * s if cfg.dmap == "A" else 128 * (s >> 1) + 16 * (s & 1)
GST = 16 if cfg.dmap == "A" else 32

DL = cfg.delta
TFIN = [1 << 30]
def act(T):
    if T < 0: return []
    if T < 16: return [0, 1, 2, 3, 4]
    if T >= TFIN[0] + DL: return []
    if T >= TFIN[0]: return [2, 3]
    if T < 16 + DL: return [0, 1]
    if DL and T >= 32 and (T % 16 == 0 or T % 16 == DL - 1): return [2, 3, 0, 1]
    return [0, 1, 2, 3]
def n_of(T): return len(act(T))
def phase(qs): return DL if qs in (2, 3) else 0
def isfirst(T, qs): return T == 0 or (T >= 16 and T % 16 == phase(qs))
def islast(T, qs): return T == 15 or (T > 16 + DL and (T + 1) % 16 == phase(qs))
def nextstart(T, qs):
    return 16 + phase(qs) if T == 15 else T + 1

def mfma(d, a, b, zero, dk="v", ak="a", bk="a"):
    D_, A_, B_ = R(dk, d, 4), R(ak, a, 4), R(bk, b, 4)
    return I(f"v_mfma_f32_16x16x32_bf16 {D_}, {A_}, {B_}, {'0' if zero else D_}", "mfma",
             rd=[A_, B_] + ([] if zero else [D_]), wr=[D_], acc=not zero)
def valu(text, rd, wr, kind="valu"): return I(text, kind, rd=rd, wr=wr)
def salu(text, rd=(), wr=()): return I(text, "salu", rd=rd, wr=wr)

class Item:
    __slots__ = ("ins", "after", "dead", "prio", "early", "tag", "placed", "T", "seq", "soft", "doff", "pace", "dabs")
    def __init__(self, ins, after=(), dead=None, early=None, tag="", prio=0, doff=0, pace=None):
        self.doff = doff; self.pace = pace; self.dabs = None
        self.ins = ins; self.after = list(after); self.dead = dead; self.early = early
        self.tag = tag; self.prio = prio; self.placed = False

QKm, PVm, SMm, BARm, VCm = {}, {}, {}, {}, {}
def chain(T, g):
    a = act(T)
    if T == 15: return (g % 2, a[g // 2])
    return (g // len(a), a[g % len(a)])
def mk_step(T):
    for g in range(2 * n_of(T)):
        blk, qs = chain(T, g)
        for s in range(4):
            QKm[T, blk, qs, s] = mfma(S(g), Kf(blk, s), Q(qs, s), s == 0)
    for b in range(8):
        for qs in act(T):
            PVm[T, b, qs] = mfma(O(qs, b), Vf(b), P(T, qs), isfirst(T, qs), ak="v", bk="v")
    for p in pairs(T):
        d, b = R("a", L(p), 4), R("v", P(T, pair_lo(p)), 8)
        SMm[T, p] = I(f"v_smfmac_f32_16x16x64_bf16 {d}, {R('a', aSA, 4)}, {b}, v{vIDX}", "smf",
                      rd=[d, b, R("a", aSA, 4), f"v{vIDX}"], wr=[d], acc=True)
def pair_of(qs): return 2 if qs == 4 else qs // 2
def pairs(T):
    out = []
    for qs in act(T):
        if pair_of(qs) not in out: out.append(pair_of(qs))
    return out
def pair_lo(p): return 3 if p == 2 else 2 * p
def pvlist(T): return [PVm[T, b, qs] for b in range(8) for qs in act(T)]
firstm = {}

def backbone_period(T):
    tail = n_of(T) == 0
    pv = pvlist(T - 2)[-4:] + (pvlist(T - 1) if tail else pvlist(T - 1)[:-4])
    sm = [SMm[T - 1, p] for p in pairs(T - 1)]
    out = []
    if tail:
        out += pv[:6] + sm + pv[6:] + [VCm[j] for j in range(32)]
        for k, m in enumerate(out): m.pref = "T" if (k < 4) else "D"
        firstm[T] = out[0]
        return out
    n = n_of(T); G = 2 * n
    lead = cfg.leadT if T == 16 else cfg.lead if (T > 16 and any(islast(T - 1, q) for q in act(T - 1))) else 0
    if lead:
        nl = 4 * lead
        head = pv[:nl]; pv = pv[nl:]
        if lead >= 2:
            head = head[:4] + [sm[0]] + head[4:8] + sm[1:] + head[8:]
            sm = []
        for k, m in enumerate(head): m.pref = "T" if k < 4 else "D"
        out += head
    if T == 1: cnt = [0] + [4] * (G - 1)
    elif len(pv) < 4 * G and not lead:
        r = len(pv) - 4; cnt = [min(4, len(pv))] + [r // (G - 1) + (1 if g < r % (G - 1) else 0) for g in range(G - 1)] if len(pv) >= 4 else [0] * G
    else:
        cnt = [len(pv) // G + (1 if g < len(pv) % G else 0) for g in range(G)]
    smpos = {}
    if sm:
        early = any(islast(T - 1, q) for q in act(T - 1)) and len(sm) > 1
        spots = [0 if early else 1, G // 2 + 1, G - 2]
        for m, g in zip(sm, spots): smpos.setdefault(min(g, G - 1), []).append(m)
    k = 0
    for g in range(G):
        blk, qs = chain(T, g)
        grp = [QKm[T, blk, qs, s] for s in range(4)] + pv[k:k + cnt[g]]
        k += cnt[g]
        L_ = len(grp)
        for j, m in enumerate(grp):
            m.pref = "T" if (L_ >= 8 and j % 2 == 0 and j < 8) or (L_ < 8 and j in {4: (0, 1, 2, 3), 5: (0, 1, 3, 4), 6: (0, 2, 3, 5), 7: (0, 2, 4, 6)}[L_]) else "D"
        out += grp
        for m in smpos.get(g, []):
            m.pref = "D"; out.append(m)
    firstm[T] = out[0]
    return out

items = []
curT = [-200]
ordn = {}
def add(ins, **kw):
    it = Item(ins, **kw); ordn[curT[0]] = ordn.get(curT[0], 0) + 1; it.T = (curT[0], ordn[curT[0]]); it.seq = len(items); items.append(it); return it

cvts = {}
def items_softmax(T):
    n = n_of(T)
    for g in range(2 * n):
        blk, qs = chain(T, g)
        last = QKm[T, blk, qs, 3]
        if g + 2 < 2 * n: nxt = QKm[(T,) + chain(T, g + 2) + (0,)]
        elif n_of(T + 1): nxt = QKm[(T + 1,) + chain(T + 1, g + 2 - 2 * n) + (0,)]
        else: nxt = None
        use = PVm[T, 0, qs]
        ng = QKm[(T,) + chain(T, g + 1) + (0,)] if g + 1 < 2 * n else firstm[T + 1]
        sms = [SMm[T, p] for p in pairs(T) if pair_lo(p) <= qs <= pair_lo(p) + 1]
        ex = []
        for r in range(4):
            v = f"v{S(g)+r}"
            ex.append(add(valu(f"v_exp_f32 {v}, {v}", [v], [v], "trans"), after=[(last, 8), (ng, 0)] + ([(ex[-1].ins, 0)] if ex else []),
                          dead=[nxt, use], tag="sm"))
        for h in range(2):
            d = f"v{P(T, qs) + 2*blk + h}"; a, b = f"v{S(g)+2*h}", f"v{S(g)+2*h+1}"
            aft = [(ex[2*h].ins, 1), (ex[2*h+1].ins, 1)]
            if qs in act(T - 2): aft.append((PVm[T - 2, 7, qs], 0))
            aft += [(SMm[T - 2, p], 0) for p in pairs(T - 2) if pair_lo(p) <= qs <= pair_lo(p) + 1]
            it = add(valu(f"v_cvt_pk_bf16_f32 {d}, {a}, {b}", [a, b], [d]), after=aft, dead=[nxt, use] + sms, tag="sm")
            pwriters.setdefault((T, P(T, qs)), []).append(it)
pwriters = {}

kreads = {}
def bar_pub(T):
    return BARm[T - 1] if T < 16 else BARm[(T // 2) * 2 - 1]
def items_kread(T):
    n = n_of(T)
    for blk in range(2):
        for s in range(4):
            d = R("a", Kf(blk, s), 4)
            ins = I(f"ds_read_b128 {d}, v{vKR} offset:{(T % 4) * 8192 + (4*blk+s) * 1024}", "dsr", rd=[f"v{vKR}"], wr=[d])
            aft = [(bar_pub(T), 0)]
            if T >= 1: aft.append((QKm[T - 1, blk, act(T - 1)[-1], s], 0))
            dl = [QKm[T, blk, act(T)[0], 0]]
            if blk == 1 and T % 2 == 1 and T != 15 and T in BARm: dl.append(BARm[T])
            kreads[T, blk, s] = add(ins, after=aft, dead=dl, tag="qk", prio=-12)
vreads = {}
vtog = {}
def vbar(T):
    if T == 0: return BARm["V0"]
    return BARm[T]
def items_vread(T):
    for b in range(8):
        f = 8 * T + b
        pT, pb = divmod(f - 4, 8)
        aft = []
        if f >= 4: aft.append((PVm[pT, pb, act(pT)[-1]], 0))
        va = cfg.vahead if n_of(T) > 2 else 3
        aT, ab = divmod(f - va - 1, 8)
        if f - va - 1 >= 0: aft.append((PVm[aT, ab, act(aT)[-1]], 0))
        if T < 16: aft.append((vbar(T), 0))
        c, dh = b & 3, b >> 2
        if T % 8 == 0 and T > 0 and dh == 0: aft.append((vtog[T, c].ins, 0))
        prev = None
        for blk in range(2):
            d = R("v", Vf(f) + 2 * blk, 2)
            ins = I(f"ds_read_b64_tr_b16 {d}, v{vVA+c} offset:{dh*32768 + (T % 8)*4096 + blk*2048}", "dsr",
                    rd=[f"v{vVA+c}"], wr=[d])
            vreads[T, b, blk] = add(ins, after=aft + ([(prev, 0)] if prev else []), dead=[PVm[T, b, act(T)[0]]], tag="v", prio=-12)
            prev = ins
def items_vtoggle(T):
    for c in range(4):
        v = f"v{vVA+c}"
        vtog[T, c] = add(valu(f"v_xor_b32 {v}, 0x10000, {v}", [v], [v]), after=[(vreads[T - 1, 4 + c, 1].ins, 0)],
                         dead=[PVm[T, c, act(T)[0]]], tag="v", prio=-24)

kwrites = {}
kloads = {}
def items_kwrite(T):
    m = T // 2
    if T < 16: opn, cls = BARm[max(T - 3, -1)], BARm[T - 1]
    else: opn, cls = BARm[2 * m - 3], BARm[2 * m - 1]
    ws = []
    def wr(src, r, nreg, **kw):
        x = R(src[0], src[1] + r, nreg)
        return add(I(f"ds_write_b{32*nreg} v{vKW}, {x} offset:{(T % 4)*8192 + (r//4)*1024 + (r % 4)*4}", "dsw", rd=[f"v{vKW}", x],
                     cost=4 if nreg == 1 else 12), tag="qk", **kw)
    nr = 2 if cfg.wr64 else 1
    if T < 16:
        st = vKt[T % 2]
        prev_w = kwrites.get(T - 2)
        done = []
        for r in range(8):
            a = f"a{ST(T, 0) + r}"; x = f"v{st + r}"; t = f"v{vKx[r % 2]}"
            do = (cfg.kdoff + (7 - r) * cfg.kstep) if T >= 2 else 2 + (7 - r)
            kw = dict(dead=[cls], tag="qk", doff=do + 2)
            aft = [(kloads[T][r // 4], 0)]
            if prev_w: aft.append((prev_w[r * len(prev_w) // 8].ins, 0))
            aft.append((mid_of(T - 2) if T >= 2 else QKm[0, 0, 1, 3], 0))
            i0 = add(valu(f"v_accvgpr_read_b32 {x}, {a}", [a], [x]), after=aft, prio=-5, **kw)
            i1 = add(valu(f"v_lshlrev_b32 {t}, 16, {x}", [x], [t]), after=[(i0.ins, 0)] + ([(chain_prev[r % 2], 0)] if chain_prev[r % 2] else []), prio=-4, **kw)
            i2 = add(valu(f"v_and_b32 {x}, s{sMASK}, {x}", [x, f"s{sMASK}"], [x]), after=[(i1.ins, 0)], prio=-3, **kw)
            i3 = add(valu(f"v_mul_f32 {t}, s{sC}, {t}", [t, f"s{sC}"], [t]), after=[(i1.ins, 0)], prio=-2, **kw)
            i4 = add(valu(f"v_mul_f32 {x}, s{sC}, {x}", [x, f"s{sC}"], [x]), after=[(i2.ins, 0)], prio=-1, **kw)
            i5 = add(valu(f"v_cvt_pk_bf16_f32 {x}, {t}, {x}", [t, x], [x]), after=[(i3.ins, 0), (i4.ins, 0)], prio=0, **kw)
            chain_prev[r % 2] = i5.ins; done.append(i5.ins)
            if r % nr == nr - 1:
                ws.append(wr(("v", st), r - nr + 1, nr, after=[(opn, 0)] + [(x_, 0) for x_ in done[-nr:]], dead=[cls], doff=max(do - 8, 1)))
        rb = []
        for e in range(2):
            d = R("a", ST(T, e), 4)
            ins = I(f"ds_read_b128 {d}, v{vKW} offset:{(T % 4)*8192 + e*1024}", "dsr", rd=[f"v{vKW}"], wr=[d])
            rb.append(add(ins, after=[(w_.ins, 0) for w_ in ws[e * len(ws) // 2:(e + 1) * len(ws) // 2]], dead=[BARm[T]], tag="qk", prio=0))
        readback[T] = rb
    else:
        nw_ = 8 // nr
        for k in range(nw_):
            ws.append(wr(("a", ST(T, 0)), k * nr, nr, after=[(opn, 0)] + ([(ws[-1].ins, 0)] if ws else ([(kwrites[T-1][-1].ins, 0)] if T % 2 else [])),
                         dead=[cls], pace=(opn, ((T % 2) * nw_ + k + 1) / (2.0 * nw_))))
    kwrites[T] = ws
chain_prev = [None, None]
readback = {}
def mid_of(T): return QKm[(T,) + chain(T, n_of(T)) + (0,)]
def bar_spot(T): return QKm[(T,) + chain(T, n_of(T) - 1) + (3,)]
def start_of(T): return QKm[(T,) + chain(T, 0) + (0,)]

def kload_ins(j):
    out = []
    for e in range(2):
        d = R("a", ST(j, e), 4)
        out.append(I(f"buffer_load_dwordx4 {d}, v{vQA}, s[{sK}:{sK+3}], s{sKo} offen offset:{off(1)*e}{cfg.kvflags}", "vld",
                     rd=[f"v{vQA}", f"s{sKo}", f"s[{sK}:{sK+3}]"], wr=[d]))
    return out
def vdma_ins(j):
    out = []
    for dh in range(2):
        m0 = (j >> 3) * 65536 + dh * (32768 - 128) + (j & 7) * 4096
        out.append((salu(f"s_add_u32 m0, s{sM0}, {m0}", [f"s{sM0}"], ["m0", "scc"]),
                    I(f"buffer_load_dwordx4 v{vVD}, s[{sV}:{sV+3}], s{sVo} offen offset:{128*dh}{cfg.kvflags} lds", "dma",
                      rd=[f"v{vVD}", f"s{sVo}", "m0", f"s[{sV}:{sV+3}]"])))
    return out
vdmas = {}
last_vm = [None]
def add_kload(j, after, dead):
    up = add(salu(f"s_add_u32 s{sKo}, s{sKo}, 8192", [f"s{sKo}"], [f"s{sKo}", "scc"]),
             after=after + ([(last_vm[0], 0)] if last_vm[0] else []), dead=dead, tag="ld", prio=-30)
    ins = kload_ins(j); kloads[j] = ins
    prev = up.ins
    for x in ins:
        add(x, after=[(prev, 0)], dead=dead, tag="ld", prio=-25); prev = x
    last_vm[0] = prev
def add_vdma(j, after, dead):
    prev = last_vm[0]
    if j > 0:
        prev = add(salu(f"s_add_u32 s{sVo}, s{sVo}, 8192", [f"s{sVo}"], [f"s{sVo}", "scc"]),
                   after=after + ([(prev, 0)] if prev else []), dead=dead, tag="ld", prio=-30).ins
    vdmas[j] = []
    for sm0, dm in vdma_ins(j):
        add(sm0, after=after + [(prev, 0)], dead=dead, tag="ld", prio=-28)
        add(dm, after=[(sm0, 1)], dead=dead, tag="ld", prio=-25); prev = dm
        vdmas[j].append(dm)
    last_vm[0] = prev
def items_loads(T):
    if T == 0:
        def spot(g): return QKm[(0,) + chain(0, g) + (0,)], QKm[(0,) + chain(0, g) + (1,)]
        a, d = spot(0)
        for x in qload_ins(4):
            add(x, after=[(a, 0)] + ([(last_vm[0], 0)] if last_vm[0] else []), dead=[d], tag="ld", prio=-50); last_vm[0] = x
        kj, vj, g = 2, 0, 1
        while kj < cfg.LK or vj < cfg.LV:
            a, d = spot(g); g += 1
            if cfg.v0first and vj < cfg.LV: add_vdma(vj, [(a, 0)], [d]); vj += 1
            if kj < cfg.LK: add_kload(kj, [(a, 0)], [d]); kj += 1
            if not cfg.v0first and vj < cfg.LV: add_vdma(vj, [(a, 0)], [d]); vj += 1
        a, d = spot(max(g, 5))
        if cfg.LK < 16: add_kload(cfg.LK, [(a, 0)], [d])
        a, d = spot(max(g + 1, 7))
        if cfg.LV < 16: add_vdma(cfg.LV, [(a, 0)], [d])
        return
    if T + cfg.LK < 16: add_kload(T + cfg.LK, [(start_of(T), 0)], [start_of(T + 1)])
    if T + cfg.LV < 16: add_vdma(T + cfg.LV, [(mid_of(T), 0)], [mid_of(T + 1)])

def qload_ins(qs, dst=None):
    out = []
    for s in range(4):
        d = R("a", Q(qs, s), 4) if dst is None else R(dst[s][0], dst[s][1], 4)
        out.append(I(f"buffer_load_dwordx4 {d}, v{vQA}, s[{sQ}:{sQ+3}], s{sQn+qs} offen offset:{off(s)}{cfg.qflags}", "vld",
                     rd=[f"v{vQA}", f"s{sQn+qs}", f"s[{sQ}:{sQ+3}]"], wr=[d]))
    return out
def items_qjit():
    prev = None
    for qs in range(4):
        for s_, ins in enumerate(qload_ins(qs)):
            T1 = nextstart(15, qs)
            dl = [QKm[T1, 0, qs, 0]] + ([firstm[16]] if T1 == 16 and cfg.jitfirst else [])
            it = add(ins, after=[(QKm[15, 1, qs, s_], 0)] + ([(prev, 0)] if prev else []), dead=dl, tag="qj", prio=-400)
            if T1 > 16: qjit_b.append(it)
            prev = ins
qjit_b = []
UNITS = [O(4, b) for b in range(8)] + [P(0, 4), P(1, 4), 236, 240, 244]
QBUF = {(qs, s_): ("v", UNITS[4 * qs + s_]) for qs in range(3) for s_ in range(4)}
QBUF.update({(3, s_): ("a", Q(4, s_)) for s_ in range(4)})
unit_free = {}
def items_qpf(base):
    prev = None
    for qs in range(4):
        T = base + 15 + phase(qs)
        lds_ = qload_ins(qs, [QBUF[qs, s_] for s_ in range(4)])
        for s_, ins in enumerate(lds_):
            k = 4 * qs + s_
            curT[0] = base + cfg.CUT
            add(ins, after=[(rowadv_done[base], 0)] + ([(prev, 0)] if prev else []),
                dead=[start_of(base + 14) if qs < 2 else firstm[base + 16]], tag="qp", prio=-200 + k)
            prev = ins
            kind, r0 = QBUF[qs, s_]
            curT[0] = T
            if (T, 1, qs, s_) not in QKm or (T + 1, 0, qs, s_) not in QKm: continue
            for r in range(4):
                d, a_ = f"a{Q(qs, s_) + r}", f"{kind}{r0 + r}"
                op = "v_accvgpr_write_b32" if kind == "v" else "v_accvgpr_mov_b32"
                c = add(valu(f"{op} {d}, {a_}", [a_], [d]), after=[(QKm[T, 1, qs, s_], 0)], dead=[QKm[T + 1, 0, qs, s_]], tag="qc", prio=-3)
                if kind == "v": unit_free.setdefault((base, r0), []).append((c.ins, 0))
rowadv_done = {}
def items_rowadv(T):
    for qs in range(4):
        a = add(salu(f"s_add_u32 s{sOr+qs}, s{sOr+qs}, {'s3' if cfg.extra else 65536}", [f"s{sOr+qs}"], [f"s{sOr+qs}", "scc"]), after=[(start_of(T), 0)], dead=[mid_of(T)], tag="adv", prio=0)
        b = add(salu(f"s_add_u32 s{sQn+qs}, s{sOr+qs}, {'s4' if cfg.extra else 65536}" + ("\n    s_mov_b32 s3, s4\n    s_cmp_le_u32 s%d, 5\n    s_cselect_b32 s4, 0x10000, 0" % sCNT if cfg.extra and qs == 3 else ""), [f"s{sOr+qs}"], [f"s{sQn+qs}", "scc"]),
                after=[(a.ins, 0)] + ([(rowadv_done[T - T % 16], 0)] if qs else []), dead=[mid_of(T)], tag="adv", prio=0)
        rowadv_done[T - T % 16] = b.ins

lprev = [None]
def items_epilogue(T, endins):
    slots = sorted(q for q in act(T) if islast(T, q))
    base = (T + 1) // 16 * 16 - 16
    ri = {}
    def over(b, qs):
        T1 = nextstart(T, qs)
        return PVm[T1, b, qs] if qs in act(T1) and qs != 4 else endins
    for qs in slots:
        p = pair_of(qs); h = 1 if qs == 4 else qs % 2
        la, lb = f"a{L(p) + 2*h}", f"a{L(p) + 2*h + 1}"
        x, y, r = f"v{vL0}", f"v{vL1}", f"v{vRI+qs}"
        kw = dict(dead=[over(0, qs), endins], tag="ep", prio=-400)
        pa = [(lprev[0], 0)] if lprev[0] else []
        i0 = add(valu(f"v_accvgpr_read_b32 {x}, {la}", [la], [x]), after=[(SMm[T, p], 12)] + pa, **kw)
        i1 = add(valu(f"v_accvgpr_read_b32 {y}, {lb}", [lb], [y]), after=[(SMm[T, p], 12)] + pa, **kw)
        i2 = add(valu(f"v_add_f32 {x}, {x}, {y}", [x, y], [x]), after=[(i0.ins, 0), (i1.ins, 0)], **kw)
        i3 = add(valu(f"v_rcp_f32 {r}, {x}", [x], [r], "trans"), after=[(i2.ins, 0)], **kw)
        i4 = add(valu(f"v_subrev_u32 {y}, s{sLO}, {x}", [x, f"s{sLO}"], [y]), after=[(i2.ins, 0)], **kw)
        i5 = add(valu(f"v_cmp_lt_u32 vcc, s{sRNG}, {y}", [y, f"s{sRNG}"], ["vcc"]), after=[(i4.ins, 0), (i3.ins, 0)], **kw)
        j0 = add(salu("s_cmp_lg_u64 vcc, 0", ["vcc"], ["scc"]), after=[(i5.ins, 2)], **kw)
        j0.ins.text += f"\n    s_cselect_b32 s{sT1}, s{sBIT}, 0\n    s_or_b32 s{sFAIL}, s{sFAIL}, s{sT1}\n    s_lshl_b32 s{sBIT}, s{sBIT}, 1"
        j0.ins.cost = 16
        lprev[0] = j0.ins; ri[qs] = i3.ins
        T1 = nextstart(T, qs)
        if qs in act(T1) and qs != 4:
            for reg in (la, lb):
                add(valu(f"v_accvgpr_write_b32 {reg}, 0", [], [reg]), after=[(i0.ins, 0), (i1.ins, 0)], dead=[SMm[T1, p], endins], tag="ep", prio=0)
    if T == 15:
        def pfree(t, q): return [(PVm[t, 7, q], 0)] + [(SMm[t, p], 0) for p in pairs(t) if pair_lo(p) <= q <= pair_lo(p) + 1]
        pool = [(u, []) for u in (236, 240, 244)] + [(P(14, q), pfree(14, q)) for q in ((4, 2, 3) if DL else (4,))]
        if DL: pool += [(P(15, q), pfree(15, q)) for q in (2, 3)]
    elif slots[0] == 0: pool = [(u, unit_free.get((base, u), [])) for u in (UNITS[:8] if DL else UNITS[-1:] + UNITS[:-1])]
    else: pool = [(u, unit_free.get((base, u), [])) for u in UNITS[12:] + UNITS[8:12] + UNITS[:8]]
    inplace = [q for q in slots if (q == 4 or (T == 15 and phase(q)))] if not endins.text.startswith("; end") else slots
    order = [(pb, qs) for pb in range(4) for qs in slots if qs not in inplace] + [(pb, qs) for pb in range(4) for qs in inplace]
    sts = []
    for k, (pb, qs) in enumerate(order):
        inp = qs in inplace
        w, wa = (O(qs, 2 * pb), []) if inp else pool.pop(0)
        cv = []
        for e in range(2):
            b = 2 * pb + e
            kw = dict(dead=[over(2 * pb if inp else b, qs), endins], tag="ep", prio=(-200 + 4 * k) if inp else 0)
            ms = []
            for r in range(4):
                v = f"v{O(qs, b) + r}"
                ms.append(add(valu(f"v_mul_f32 {v}, {v}, v{vRI+qs}", [v, f"v{vRI+qs}"], [v]), after=[(PVm[T, b, qs], 8), (ri[qs], 1)], **kw))
            for h in range(2):
                d = f"v{w + 2*e + h}"; a_, b_ = f"v{O(qs, b) + 2*h}", f"v{O(qs, b) + 2*h + 1}"
                aft = [(ms[2*h].ins, 0), (ms[2*h+1].ins, 0)] + wa + ([(cv[-1].ins, 0)] if (inp and cv) else [])
                cv.append(add(valu(f"v_cvt_pk_bf16_f32 {d}, {a_}, {b_}", [a_, b_], [d]), after=aft, **kw))
        kw = dict(dead=[over(2 * pb, qs) if inp else endins, endins], tag="ep", prio=-300 + 8 * k)
        sw = []
        for h in range(2):
            x, y = f"v{w + h}", f"v{w + 2 + h}"
            sw.append(add(valu(f"v_permlane16_swap_b32 {x}, {y}", [x, y], [x, y], "perm"), after=[(cv[h].ins, 2), (cv[2 + h].ins, 2)], **kw))
        st = I(f"buffer_store_dwordx4 {R('v', w, 4)}, v{vOA}, s[{sO}:{sO+3}], s{sOr+qs} offen offset:{64*pb}{cfg.oflags}", "vst",
               rd=[R("v", w, 4), f"v{vOA}", f"s{sOr+qs}", f"s[{sO}:{sO+3}]"])
        sts.append((add(st, after=[(sw[0].ins, 0), (sw[1].ins, 0)], **kw), w, inp, pb, qs))
        if not inp:
            pool.append((w, [(st, 2)])); unit_free[base, w] = [(st, 2)]
            for t in range(T + 1, T + 8):
                for it in pwriters.get((t, w), []): it.after.append((st, 2))

    if T == 15 and DL:
        rank = {P(14, 2): 0, P(14, 3): 1, P(15, 2): 4, P(15, 3): 5}
        def key(x):
            it, w, inp, pb, qs = x
            if not inp: return rank.get(w, 100)
            return 200 + pb if qs == 4 else (2 if pb == 0 else 4 + 2 * pb) + qs - 2
        seq = qjit_b + [x[0] for x in sorted(sts, key=key)]
        for k, it in enumerate(seq): it.dabs = (firstm[16], cfg.tq0 + cfg.tstep * k); it.prio = -1000 + k
    elif not endins.text.startswith("; end"):
        for k, x in enumerate(sts): x[0].dabs = (PVm[T, 1, act(T)[-1]], cfg.st0 + cfg.tstep * k)

class Sched:
    def __init__(self, stream):
        self.stream = stream
        self.pos = {id(x): k for k, x in enumerate(stream)}
        self.over = 0
        self.cyc = 0; self.ta = 0; self.log = []
    def run(self, bb, its, fixed_after, marks=None, endins=None):
        stream, pos = self.stream, self.pos
        idx = {id(m): j for j, m in enumerate(bb)}
        for mid, lst in fixed_after.items():
            if mid in idx:
                for f in lst: idx[id(f)] = idx[mid]
        for j, lst in (marks or {}).items():
            for f in lst: idx[id(f)] = j
        if endins is not None: idx[id(endins)] = len(bb)
        waiting, act, bydead = {}, [], {}
        byins = {id(it.ins): it for it in its if not it.placed}
        lbm = {}
        def lb(it):
            if id(it) not in lbm:
                v = 0
                for a, _ in it.after:
                    if id(a) in pos: continue
                    if id(a) in idx: v = max(v, idx[id(a)] + 1)
                    elif id(a) in byins: v = max(v, lb(byins[id(a)]))
                lbm[id(it)] = v
            return lbm[id(it)]
        sys.setrecursionlimit(100000)
        for it in its:
            if it.placed: continue
            d = min([idx[id(x)] for x in it.dead if x is not None and id(x) in idx] or [1 << 30])
            if it.dabs and id(it.dabs[0]) in idx: d = min(d, max(idx[id(it.dabs[0])] + it.dabs[1], lb(it) + 1))
            if it.doff: d = max(d - it.doff, min(d, lb(it) + 1))
            it.early = d + it.prio
            it.soft = d - (cfg.dsmargin if it.ins.kind in LGKM else -(1 << 20))
            if it.pace and id(it.pace[0]) in idx and d < (1 << 29):
                o_ = idx[id(it.pace[0])]
                it.soft = int(o_ + it.pace[1] * (d - cfg.dsmargin - o_)); it.early = it.soft + 4
            bydead.setdefault(d, []).append(it)
            w = {id(a) for a, _ in it.after if id(a) not in pos}
            nw[id(it)] = len(w)
            for a in w: waiting.setdefault(a, []).append(it)
            if not w: act.append(it)
        st = {"budget": 8, "first": True, "valu": False}
        def emit(x):
            pos[id(x)] = len(stream); stream.append(x)
            for it in waiting.pop(id(x), []):
                nw[id(it)] -= 1
                if nw[id(it)] == 0: act.append(it)
        def ready(it):
            n = len(stream)
            return all(n - pos[id(a)] - 1 >= dist for a, dist in it.after)
        def place(it):
            c = it.ins.cost; kd = it.ins.kind
            if kd == "salu" and st["first"]: c -= 4
            if kd in LGKM + VM and st["valu"]: c += 8
            if kd in VALU: st["valu"] = True
            act.remove(it); it.placed = True
            if kd in VM:
                now = self.cyc + 8 + (8 - st["budget"])
                self.ta = (max(self.ta, now) if now < self.ta + 1 and it.tag != "ld" else now) + (cfg.ta_fast if kd == "dma" else cfg.ta_slow)
            emit(it.ins); st["budget"] -= c; st["first"] = False
        def cands(pred):
            return sorted([it for it in act if pred(it) and ready(it)], key=lambda x: (x.early, x.seq))
        def force(limit):
            while True:
                due = [it for d in list(bydead) if d <= limit for it in bydead[d] if not it.placed]
                for d in [d for d in bydead if d <= limit]:
                    bydead[d] = [it for it in bydead[d] if not it.placed]
                    if not bydead[d]: del bydead[d]
                if not due: return
                stack = list(due); seen = set(); need = []
                while stack:
                    it = stack.pop()
                    if id(it) in seen: continue
                    seen.add(id(it)); need.append(it)
                    for a_, _ in it.after:
                        o = byins.get(id(a_))
                        if o is not None and not o.placed: stack.append(o)
                av = [it for it in need if nw[id(it)] == 0]
                if not av:
                    raise RuntimeError("deadlock: " + "; ".join(it.ins.text + " AFTER " + str([a for a, _ in it.after if id(a) not in pos]) for it in need[:6]))
                rs = [it for it in av if ready(it)]
                if not rs:
                    rs = cands(lambda x: x.ins.kind in VALU)[:1] or av
                rs.sort(key=lambda x: (0 if (x.ins.kind in LGKM + VM and not st["valu"]) else 1, x.early, x.seq))
                place(rs[0])
        force(0)
        for k, m in enumerate(bb):
            for f in (marks or {}).get(k, []): emit(f)
            emit(m)
            st.update(budget=8, first=True, valu=False)
            for f in fixed_after.get(id(m), []):
                emit(f); st["first"] = False
            c = cands(lambda x: x.ins.kind == "salu")
            if c and st["first"] and k + 1 < len(bb) and not getattr(cfg, "nosalu", False): place(c[0])
            vm = cands(lambda x: x.ins.kind in VM) if (self.ta <= self.cyc and m.pref != "T") else []
            urgent = cands(lambda x: x.soft <= (k - 2 if vm else k + 1))
            if urgent: place(min(urgent, key=lambda x: (x.soft, x.seq)))
            tr = cands(lambda x: x.ins.kind == "trans")
            if m.pref == "T" and tr and st["budget"] >= (4 if urgent else 8):
                place(tr[0])
            else:
                if not urgent and st["budget"] >= 4:
                    if not vm and self.ta <= self.cyc: vm = cands(lambda x: x.ins.kind in VM)
                    mem = vm or cands(lambda x: x.ins.kind in LGKM)
                    if mem: place(mem[0])
                while st["budget"] >= 4:
                    a = cands(lambda x: x.ins.kind in ("valu", "perm") or (x.ins.kind == "trans" and st["budget"] >= 8))
                    if not a: break
                    place(a[0])
            force(k + 1)
            if st["budget"] < 0: self.over -= st["budget"]
            self.cyc += max(16, 16 - st["budget"])
            self.log.append(self.cyc)
        if endins is not None: force(1 << 29)
nw = {}

sVC = 49
sTSB = 60
def stamp(k, cyc=False, mode=1):
    if cfg.stamps != mode: return []
    r = sTSB + 2 * k
    return [I(f"s_mem{'time' if cyc else 'realtime'} s[{r}:{r+1}]", "salu", wr=[f"s[{r}:{r+1}]"])]

def V(text, rd, wr, kind="valu"): return I(text, kind, rd=rd, wr=wr)
def prologue():
    o = []
    o.append(I("s_cmp_ge_u32 s2, 256\n    s_cbranch_scc1 L_end", "br"))
    o += stamp(0) + stamp(1, True)
    if cfg.spin: o.append(salu("s_memrealtime s[98:99]"))
    o.append(salu("s_load_dwordx8 s[52:59], s[0:1], 0"))
    l, t, u, g = "v1", "v2", "v3", "v4"
    o += [V(f"v_lshrrev_b32 {t}, 6, v0", ["v0"], [t]),
          V(f"v_and_b32 {l}, 63, v0", ["v0"], [l]),
          V(f"v_readfirstlane_b32 s{sW}, {t}", [t], [f"s{sW}"]),
          V(f"v_lshrrev_b32 {g}, 4, {l}", [l], [g]),
          V(f"v_and_b32 {t}, 15, {l}", [l], [t]),
          V(f"v_lshlrev_b32 {t}, 8, {t}", [t], [t]),
          V(f"v_mul_u32_u24 {u}, {GST}, {g}", [g], [u]),
          V(f"v_add_u32 v{vQA}, {t}, {u}", [t, u], [f"v{vQA}"]),
          V(f"v_and_b32 {u}, 1, {g}", [g], [u]),
          V(f"v_lshl_add_u32 {t}, {u}, 5, {t}", [u, t], [t]),
          V(f"v_lshrrev_b32 {u}, 1, {g}", [g], [u]),
          V(f"v_lshl_add_u32 v{vOA}, {u}, 4, {t}", [u, t], [f"v{vOA}"]),
          V(f"v_bfe_u32 {t}, {l}, 1, 2", [l], [t]),
          V(f"v_xor_b32 {t}, {t}, {g}", [t, g], [t]),
          V(f"v_lshlrev_b32 {t}, 5, {t}", [t], [t]),
          V(f"v_lshrrev_b32 {u}, 3, {l}", [l], [u]),
          V(f"v_lshl_add_u32 {t}, {u}, 8, {t}", [u, t], [t]),
          V(f"v_and_b32 {u}, 1, {l}", [l], [u]),
          V(f"v_lshl_add_u32 v{vVD}, {u}, 4, {t}", [u, t], [f"v{vVD}"]),
          ]
    o += [salu(f"s_mul_i32 s{sT0}, s2, {HEADQ}", [], [f"s{sT0}"]),
          salu(f"s_lshl_b32 s{sT1}, s2, 17", [], [f"s{sT1}"]),
          salu(f"s_lshl_b32 s{sM0}, s{sW}, 10", [f"s{sW}"], [f"s{sM0}"]),
          salu(f"s_lshl_b32 s{sVo}, s{sW}, 11", [f"s{sW}"], [f"s{sVo}"]),
          salu(f"s_lshr_b32 s{sKo}, s{sW}, 1", [f"s{sW}"], [f"s{sKo}"]),
          salu(f"s_lshl_b32 s{sKo}, s{sKo}, 12"),
          salu(f"s_and_b32 s{sT2}, s{sW}, 1"),
          salu(f"s_lshl_b32 s{sT2}, s{sT2}, 7"),
          salu(f"s_add_u32 s{sKo}, s{sKo}, s{sT2}"),
          salu(f"s_lshl_b32 s{sOr}, s{sW}, 14"),
          salu(f"s_add_u32 s{sOr+1}, s{sOr}, 4096"),
          salu(f"s_add_u32 s{sOr+2}, s{sOr}, 8192"),
          salu(f"s_add_u32 s{sOr+3}, s{sOr}, 12288"),
          salu(f"s_lshl_b32 s{sOr+4}, s{sW}, 12"),
          salu(f"s_add_u32 s{sOr+4}, s{sOr+4}, {1280*256}"),
          ]
    o += [salu(f"s_mov_b32 s{sQn+k}, s{sOr+k}") for k in range(5)]
    o.append(I("s_waitcnt lgkmcnt(0)", "wait"))
    for srd, p, so, size in ((sK, 54, sT1, HEADK), (sQ, 52, sT0, HEADQ), (sV, 56, sT1, HEADK), (sO, 58, sT0, HEADQ)):
        o += [salu(f"s_add_u32 s{srd}, s{p}, s{so}"), salu(f"s_addc_u32 s{srd+1}, s{p+1}, 0"),
              salu(f"s_mov_b32 s{srd+2}, {size}"), salu(f"s_mov_b32 s{srd+3}, 0x20000")]
    kloads[0] = kload_ins(0); kloads[1] = kload_ins(1)
    o += kloads[0] + qload_ins(0) + qload_ins(1)[:2]
    later = [qload_ins(1)[2:] + [salu(f"s_add_u32 s{sKo}, s{sKo}, 8192")] + kloads[1], qload_ins(2), qload_ins(3)]
    if cfg.codepf:
        o.append(I(f"s_getpc_b64 s[50:51]\n    s_and_b32 s50, s50, 0xffffff00\n    s_lshr_b32 s{sT2}, s2, 3\n    s_lshl_b32 s{sT2}, s{sT2}, 11", "salu"))
        o.append(V(f"v_lshl_add_u32 v5, {l}, 5, s{sT2}", [l], ["v5"]))
        x = I(f"global_load_dword v{vDUM}, v5, s[50:51]", "vld", rd=["v5"], wr=[f"v{vDUM}"]); x.nowait = True
        o.append(x)
    o += [salu(f"s_mov_b32 s{sC}, {CSCALE:#x}"), salu(f"s_mov_b32 s{sMASK}, 0xffff0000"),
          salu(f"s_mov_b32 s{sFAIL}, {0x1fffff if cfg.force_fallback else 0}"), salu(f"s_mov_b32 s{sBIT}, 1"), salu(f"s_mov_b32 s{sCNT}, {4 + cfg.extra}"), salu("s_mov_b32 s3, 0x10000"), salu("s_mov_b32 s4, 0"),
          salu(f"s_mov_b32 s{sLO}, 0x3f800000"), salu(f"s_mov_b32 s{sRNG}, 0x1e000000"),
          salu(f"s_lshl_b32 s{sVC}, s{sW}, 15"), salu(f"s_sub_u32 s{sVC}, s{sVC}, {RING}"),
          salu(f"s_lshl_b32 s{sT2}, s{sW}, 11")]
    o += [V(f"v_lshlrev_b32 {t}, 4, {l}", [l], [t]),
          V(f"v_add_u32 v{vKR}, {RING}, {t}", [t], [f"v{vKR}"]),
          V(f"v_add_u32 v{vKW}, s{sT2}, v{vKR}", [f"v{vKR}"], [f"v{vKW}"]),
          V(f"v_lshlrev_b32 v{vPF}, 7, {l}", [l], [f"v{vPF}"]),
          V(f"v_lshrrev_b32 {t}, 2, {l}", [l], [t]),
          V(f"v_lshlrev_b32 {t}, 7, {t}", [t], [t]),
          V(f"v_and_b32 {u}, 3, {l}", [l], [u]),
          V(f"v_lshl_add_u32 {t}, {u}, 3, {t}", [u, t], [t]),
          V(f"v_bfe_u32 {u}, {l}, 3, 2", [l], [u]),
          V(f"v_lshl_add_u32 v{vVA}, {u}, 5, {t}", [u, t], [f"v{vVA}"])]
    o += [V(f"v_xor_b32 v{vVA+c}, {32*c}, v{vVA}", [f"v{vVA}"], [f"v{vVA+c}"]) for c in range(1, 4)]
    o += [V(f"v_lshrrev_b32 {t}, 4, {l}", [l], [t]),
          V(f"v_xor_b32 {t}, {t}, {l}", [t, l], [t]),
          V(f"v_bfe_u32 {t}, {t}, 1, 1", [t], [t]),
          V(f"v_add_u32 {t}, -1, {t}", [t], [t]),
          V(f"v_and_b32 {t}, 0x3f803f80, {t}", [t], [t])]
    o += [V(f"v_accvgpr_write_b32 a{aSA+k}, {t}", [t], [f"a{aSA+k}"]) for k in range(4)]
    o += [V(f"v_and_b32 {u}, 1, {l}", [l], [u]),
          V(f"v_mul_u32_u24 {u}, 0xaaaa, {u}", [u], [u]),
          V(f"v_add_u32 v{vIDX}, 0x4444, {u}", [u], [f"v{vIDX}"])]
    o += [V(f"v_accvgpr_write_b32 a{aL+k}, 0", [], [f"a{aL+k}"]) for k in range(12)]
    o += later[0]
    for T in range(1):
        st = vKt[T]; ws = []
        for r in range(8):
            a = f"a{ST(T, 0) + r}"; x = f"v{st + r}"; tt = f"v{vKx[r % 2]}"
            o += [V(f"v_accvgpr_read_b32 {x}, {a}", [a], [x]),
                  V(f"v_lshlrev_b32 {tt}, 16, {x}", [x], [tt]),
                  V(f"v_and_b32 {x}, s{sMASK}, {x}", [x], [x]),
                  V(f"v_mul_f32 {tt}, s{sC}, {tt}", [tt], [tt]),
                  V(f"v_mul_f32 {x}, s{sC}, {x}", [x], [x]),
                  V(f"v_cvt_pk_bf16_f32 {x}, {tt}, {x}", [tt, x], [x])]
        for e in range(2):
            w = I(f"ds_write_b128 v{vKW}, {R('v', st + 4*e, 4)} offset:{T*8192 + e*1024}", "dsw", rd=[f"v{vKW}", R('v', st + 4*e, 4)])
            o.append(w); ws += [Item(w)] * 4
        rb = []
        for e in range(2):
            d = R("a", ST(T, e), 4)
            x = I(f"ds_read_b128 {d}, v{vKW} offset:{T*8192 + e*1024}", "dsr", rd=[f"v{vKW}"], wr=[d])
            o.append(x); rb.append(Item(x))
        kwrites[T] = ws; readback[T] = rb
    o += later[1]
    pro_tail.extend(later[2] + [salu(f"s_add_u32 s{sQn+k}, s{sOr+k}, 65536") for k in range(4)])
    return o
pro_tail = []

def finale():
    a = L(2)
    t = []
    t.append("    s_nop 7\n    s_nop 3")
    t += [f"    v_accvgpr_read_b32 v{k}, a{a+k}" for k in range(4)]
    t += [f"    v_and_b32 v{k}, 0x7fffffff, v{k}" for k in range(4)]
    t += ["    v_max_u32 v0, v0, v1", "    v_max3_u32 v0, v0, v2, v3",
          "    v_cmp_le_u32 vcc, 0x7f800000, v0",
          "    s_nop 1",
          "    s_cmp_lg_u64 vcc, 0",
          f"    s_cselect_b32 s{sT0}, 1, 0",
          f"    s_lshl_b32 s{sT1}, s{sW}, 2",
          f"    s_add_u32 s{sT1}, s{sT1}, {RING}",
          f"    v_mov_b32 v0, s{sT0}", f"    v_mov_b32 v1, s{sT1}", f"    v_mov_b32 v2, {RING}",
          "    ds_write_b32 v1, v0", "    s_waitcnt lgkmcnt(0)", "    s_barrier",
          "    ds_read_b128 v[4:7], v2", "    s_waitcnt lgkmcnt(0)",
          "    v_or3_b32 v4, v4, v5, v6", "    v_or_b32 v4, v4, v7", "    s_nop 0",
          f"    v_readfirstlane_b32 s{sT0}, v4", "    s_nop 1",
          f"    s_cmp_lg_u32 s{sT0}, 0",
          f"    s_cselect_b32 s{sFAIL}, 0x1fffff, s{sFAIL}"]
    if cfg.stamps == 1:
        t += ["    s_memrealtime s[%d:%d]" % (sTSB + 22, sTSB + 23), "    s_waitcnt vmcnt(0)",
              "    s_memrealtime s[%d:%d]" % (sTSB + 24, sTSB + 25), "    s_memtime s[%d:%d]" % (sTSB + 26, sTSB + 27)]
    if cfg.stamps:
        t += ["    s_load_dwordx2 s[4:5], s[0:1], 40", "    s_waitcnt lgkmcnt(0)",
              "    s_mov_b32 s6, 0x100000", "    s_mov_b32 s7, 0x20000",
              f"    s_lshl_b32 s{sT0}, s2, 2", f"    s_add_u32 s{sT0}, s{sT0}, s{sW}", f"    s_lshl_b32 s{sT0}, s{sT0}, 7",
              "    v_mov_b32 v1, 0"]
        for k in range(21):
            t += [f"    v_mov_b32 v0, s{sTSB + 2*k}", f"    buffer_store_dword v0, v1, s[4:7], s{sT0} offen offset:{4*k}"]
    if cfg.spin:
        t += ["L_spin:", "    s_memrealtime s[100:101]", "    s_waitcnt lgkmcnt(0)", "    s_sub_u32 s100, s100, s98", f"    s_cmp_lt_u32 s100, {cfg.spin * 100}", "    s_cbranch_scc1 L_spin"]
    if cfg.dbg >= 0:
        t += [f"    s_cmp_lg_u32 s2, {cfg.dbg}", "    s_cbranch_scc1 L_nodbg", f"    s_cmp_lg_u32 s{sW}, 0", "    s_cbranch_scc1 L_nodbg",
              "    s_load_dwordx2 s[4:5], s[0:1], 32", "    s_waitcnt lgkmcnt(0)", "    s_mov_b32 s6, 256", "    s_mov_b32 s7, 0x20000"]
        lst = [(2, 0), (3, 0), (4, 0), (5, 0), (9, 0), (8, 0), (7, 0), (6, 0), (11, 0), (12, 0), (10, 1), (13, 10)]
        for k, (a_, b_) in enumerate(lst):
            t += [f"    s_sub_u32 s{sT1}, s{sTSB + 2*a_}, s{sTSB + 2*b_}", f"    v_mov_b32 v0, s{sT1}", f"    buffer_store_dword v0, v1, s[4:7], 0 offen offset:{4*k}"]
        t += ["L_nodbg:"]
    t += [f"    s_cmp_eq_u32 s{sFAIL}, 0", "    s_cbranch_scc1 L_end"]
    sJ, sRow, sKb, sVt = sT0, sT1, sT2, sKo
    f = ["    ; ---- slow path: rows whose unshifted exponent sum left the safe range are redone with the true max",
         "    s_waitcnt vmcnt(0)"]
    f += [f"    v_and_b32 v{vVA+c}, 0xffff, v{vVA+c}" for c in range(4)]
    f += ["L_fb_next:",
          f"    s_ff1_i32_b32 s{sJ}, s{sFAIL}", f"    s_bitset0_b32 s{sFAIL}, s{sJ}",
          f"    s_cmp_gt_u32 s{sJ}, 4", f"    s_cselect_b32 s{sKb}, 1, 0", f"    s_sub_u32 s{sKb}, s{sJ}, s{sKb}",
          f"    s_lshr_b32 s{sRow}, s{sKb}, 2", f"    s_lshl_b32 s{sRow}, s{sRow}, 16",
          f"    s_and_b32 s{sKb}, s{sKb}, 3", f"    s_lshl_b32 s{sKb}, s{sKb}, 12", f"    s_add_u32 s{sRow}, s{sRow}, s{sKb}",
          f"    s_lshl_b32 s{sKb}, s{sW}, 14", f"    s_add_u32 s{sRow}, s{sRow}, s{sKb}",
          f"    s_cmp_eq_u32 s{sJ}, 4", f"    s_cselect_b32 s{sRow}, s{sOr+4}, s{sRow}"]
    f += [f"    buffer_load_dwordx4 v[{4*s}:{4*s+3}], v{vQA}, s[{sQ}:{sQ+3}], s{sRow} offen offset:{off(s)}" for s in range(4)]
    def qk(dst, extra):
        r = [f"    buffer_load_dwordx4 v[{20+4*s}:{23+4*s}], v{vQA}, s[{sK}:{sK+3}], s{sKb} offen offset:{off(s)}" for s in range(4)]
        r += ["    s_waitcnt vmcnt(0)"]
        r += [f"    v_mfma_f32_16x16x32_bf16 v[{dst}:{dst+3}], v[{20+4*s}:{23+4*s}], v[{4*s}:{4*s+3}], {'0' if s == 0 else f'v[{dst}:{dst+3}]'}" for s in range(4)]
        r += [f"    s_add_u32 s{sKb}, s{sKb}, 4096", "    s_nop 9"]
        return r
    f += ["    v_mov_b32 v16, 0xff800000", f"    s_mov_b32 s{sKb}, 0", "L_fb_max:"]
    f += qk(36, None)
    f += ["    v_max3_f32 v16, v16, v36, v37", "    v_max3_f32 v16, v16, v38, v39",
          f"    s_cmp_lt_u32 s{sKb}, {HEADK}", "    s_cbranch_scc1 L_fb_max"]
    def xlane(reg, tmp, op):
        return [f"    v_mov_b32 v{tmp}, v{reg}", "    s_nop 1", f"    v_permlane16_swap_b32 v{reg}, v{tmp}", "    s_nop 1", f"    {op} v{reg}, v{reg}, v{tmp}",
                f"    v_mov_b32 v{tmp}, v{reg}", "    s_nop 1", f"    v_permlane32_swap_b32 v{reg}, v{tmp}", "    s_nop 1", f"    {op} v{reg}, v{reg}, v{tmp}"]
    f += xlane(16, 17, "v_max_f32")
    f += [f"    v_mul_f32 v17, s{sC}, v16", "    v_mov_b32 v18, 0"]
    f += [f"    v_mov_b32 v{64+k}, 0" for k in range(32)]
    f += [f"    s_mov_b32 s{sKb}, 0", f"    s_mov_b32 s{sVt}, 0", "L_fb_pv:"]
    f += qk(36, None) + qk(40, None)
    f += [f"    v_fma_f32 v{36+k}, v{36+k}, s{sC}, -v17" for k in range(8)]
    f += [f"    v_exp_f32 v{36+k}, v{36+k}" for k in range(8)]
    f += ["    s_nop 0"] + [f"    v_add_f32 v18, v18, v{36+k}" for k in range(8)]
    f += [f"    v_cvt_pk_bf16_f32 v{44+k}, v{36+2*k}, v{37+2*k}" for k in range(4)]
    f += [f"    v_add_u32 v{52+c}, s{sVt}, v{vVA+c}" for c in range(4)]
    for b in range(8):
        f += [f"    ds_read_b64_tr_b16 v[{48+2*blk}:{49+2*blk}], v{52+(b&3)} offset:{(b>>2)*32768 + blk*2048}" for blk in range(2)]
        f += ["    s_waitcnt lgkmcnt(0)", f"    v_mfma_f32_16x16x32_bf16 v[{64+4*b}:{67+4*b}], v[48:51], v[44:47], v[{64+4*b}:{67+4*b}]"]
    f += [f"    s_add_u32 s{sVt}, s{sVt}, 4096", f"    s_cmp_eq_u32 s{sVt}, 32768", f"    s_cselect_b32 s{sVt}, 65536, s{sVt}",
          f"    s_cmp_lt_u32 s{sKb}, {HEADK}", "    s_cbranch_scc1 L_fb_pv"]
    f += xlane(18, 17, "v_add_f32")
    f += ["    v_rcp_f32 v18, v18", "    s_nop 7"]
    f += [f"    v_mul_f32 v{64+k}, v{64+k}, v18" for k in range(32)]
    f += [f"    v_cvt_pk_bf16_f32 v{96+k}, v{64+2*k}, v{65+2*k}" for k in range(16)]
    f += ["    s_nop 1"]
    for pb in range(4):
        f += [f"    v_permlane16_swap_b32 v{96+4*pb+h}, v{98+4*pb+h}" for h in range(2)]
    f += [f"    buffer_store_dwordx4 v[{96+4*pb}:{99+4*pb}], v{vOA}, s[{sO}:{sO+3}], s{sRow} offen offset:{64*pb}" for pb in range(4)]
    f += ["    s_waitcnt vmcnt(0)", f"    s_cmp_lg_u32 s{sFAIL}, 0", "    s_cbranch_scc1 L_fb_next"]
    return t + f

def simulate(linear, waits, nops, marks):
    t = 0; pipe = 0; q = []; lastdone = 0; out = []; t0 = 0; first = False; valu = False; cur = None; stall = 0; stl = []
    for ins in linear:
        if ins.kind == "label": continue
        w = waits.get(id(ins))
        if w:
            if w[1] is not None and len(q) > w[1]:
                need = q[len(q) - w[1] - 1]
                if need > t: stall += need - t; t = need
            t += 0 if first else 4; first = False
        t += 4 * nops.get(id(ins), 0)
        if id(ins) in marks:
            out.append(t - t0); stl.append(stall); t0 = t; stall = 0
        k = ins.kind
        if k in MAT:
            t = max(t, pipe); pipe = t + 16; t += 8; first = True; valu = False
        else:
            c = ins.cost
            if k in ("salu", "bar", "br", "wait") and first: c -= 4
            if k in LGKM + VM and valu: c += 8
            if k in LGKM:
                svc = 32 if k == "dsw" else (16 if "b128" in ins.text else 8)
                lastdone = max(lastdone + svc, t + cfg.ldslat); q.append(lastdone)
            if k in VALU: valu = True
            t += c; first = False
    out.append(t - t0); stl.append(stall)
    sys.stderr.write(f"sim cycles/period: {out[1:]}\nsim lgkm stalls : {stl[1:]}\n")

def gen_items(T):
    curT[0] = T
    items_softmax(T); items_kread(T)
    if T % 8 == 0 and T > 0: items_vtoggle(T)
    items_vread(T)
def bar_needs(T):
    pub = (T + 1,) if T < 15 else (T + 1, T + 2)
    nd = [x.ins for t in pub for x in kwrites[t]]
    if T in vdmas and T > 0: nd += vdmas[T]
    done = (T - 1, T) if T >= 13 else (T - 1,) if T >= 1 else ()
    nd += [kreads[t, blk, s_].ins for t in done for blk in range(2) for s_ in range(4)]
    nd += [x.ins for t in done if t in readback for x in readback[t]]
    BARm[T].needs = nd
def build():
    C = cfg.CUT; NT = 48 + C + 2
    for T in range(NT + 2): mk_step(T)
    BARm[-1] = I("s_barrier", "bar"); BARm["V0"] = I("s_barrier", "bar")
    for T in list(range(0, 15, 2)) + list(range(1, NT + 2, 2)): BARm[T] = I("s_barrier", "bar")
    pro = prologue()
    pro.append(BARm[-1]); pro += stamp(2) + pro_tail
    bb, start = [], {}
    for T in range(NT):
        start[T] = len(bb); bb += backbone_period(T)
    backbone_period(NT)
    fixed = {id(bar_spot(T)): [BARm[T]] for T in range(NT) if T in BARm}
    fixed[id(QKm[0, 1, 2, 3])] = [BARm["V0"]]
    labL = I("L_loop:", "label"); labL2 = I("; second instance", "label"); labL3 = I("; third instance", "label")
    def chk():
        pre = ""
        if cfg.stamps == 1:
            r = sTSB + 12
            pre = "".join(f"s_mov_b64 s[{r+2*k+2}:{r+2*k+3}], s[{r+2*k}:{r+2*k+1}]\n    " for k in (2, 1, 0)) + f"s_memrealtime s[{r}:{r+1}]\n    "
        return I(pre + f"s_sub_u32 s{sCNT}, s{sCNT}, 1\n    s_cmp_eq_u32 s{sCNT}, 0\n    s_cbranch_scc1 L_tail", "br")
    chk1, chk2 = chk(), chk()
    brL, brL2 = I("s_branch L_loop", "br"), I("s_branch L_loop", "br")
    marks = {start[16 + C]: stamp(5) + [labL], start[32]: [chk1], start[32 + C]: [brL, labL2], start[48]: [chk2], start[48 + C]: [brL2, labL3]}
    if cfg.stamps == 1:
        marks[start[1]] = stamp(3); marks[start[16]] = stamp(4) + stamp(10, True)
    if cfg.stamps == 2:
        for T in range(16 + C, 48 + C): marks.setdefault(start[T], []).append(stamp((T - C) % 16, True, 2)[0])
    if cfg.stamps == 3:
        for T in range(0, min(20, 16 + C - cfg.st3)): marks.setdefault(start[T + cfg.st3], []).insert(0, stamp(T, False, 3)[0])
        pro.insert(1, stamp(20, False, 3)[0])
    for T in range(16): items_loads(T)
    for T in range(NT):
        gen_items(T)
        if T % 16 == C and T > 16: items_rowadv(T)
    curT[0] = -50; items_qjit()
    for base in (16, 32): items_qpf(base)
    for T in range(1, NT + 2): curT[0] = T; items_kwrite(T)
    for T in range(NT):
        if any(islast(T, q) for q in act(T)):
            curT[0] = T + 1000
            items_epilogue(T, marks[start[(T + 1) // 16 * 16 + C]][0])
    BARm[-1].needs = [x.ins for x in kwrites[0]]
    BARm["V0"].needs = list(vdmas[0])
    for T in range(NT):
        if T in BARm: bar_needs(T)
    stream = list(pro)
    Sched(stream).run(bb, items, fixed, marks)
    p = {id(x): k for k, x in enumerate(stream)}
    ref = {(it.T[0] - 16, it.T[1]): p[id(it.ins)] < p[id(brL)] for it in items if it.placed and 32 + C - 2 <= it.T[0] < 48}
    cut = marks[start[16 + C]][0]
    for it in items:
        r = ref.get(it.T)
        if r is True: it.dead = list(it.dead) + [cut]
        elif r is False: it.after.append((labL, 0))
        it.placed = False
    stream = list(pro)
    sc = Sched(stream)
    sc.run(bb, items, fixed, marks)
    p = {id(x): k for k, x in enumerate(stream)}
    iL, iC1, iBr, iL2, iC2, iBr2 = (p[id(x)] for x in (labL, chk1, brL, labL2, chk2, brL2))
    segP = stream[:iL]; segL = stream[iL:iC1 + 1]; segB = stream[iC1 + 1:iBr + 1]
    one, two = stream[iL:iBr + 1], stream[iL2:iBr2 + 1]
    a = [x.text for x in one[1:]]; b = [x.text for x in two[1:]]
    if a != b:
        for k, (x, y) in enumerate(zip(a, b)):
            if x != y: sys.stderr.write(f"loop mismatch at {k}: {x} | {y}\n"); break
        raise SystemExit("loop instances differ")
    mp = {id(y): x for x, y in zip(one, two)}
    for x, y in zip(one, two): x.needs = x.needs + [mp.get(id(z), z) for z in y.needs]
    def keyed(its):
        cnt, out = {}, {}
        for it in its:
            k = (it.T[0], it.ins.text); cnt[k] = cnt.get(k, 0) + 1; out[k + (cnt[k],)] = it
        return out
    old = {k: it for k, it in keyed(items).items() if it.placed and p[id(it.ins)] <= iC2}
    TFIN[0] = 48; TE = 48 + DL
    for d in (QKm, PVm, SMm):
        for k in [k for k in d if k[0] >= 48 and (k[0] >= TE or (k[2] if d is not SMm else 2 * k[1]) not in (2, 3))]: del d[k]
    for T in range(TE - 1 if TE % 2 == 0 else TE, NT + 2): BARm.pop(T, None)
    for j in range(32):
        buf = Kf(0, 0) + 4 * (j % 8)
        VCm[j] = mfma(L(2), buf, buf, j == 0, dk="a")
    tbb = []
    for T in range(48, TE + 1): tbb += backbone_period(T)
    items.clear(); pwriters.clear(); lprev[0] = None
    for k in [k for k in unit_free if k[0] == 32]: del unit_free[k]
    for T in range(46, TE): gen_items(T)
    for T in range(48, TE): curT[0] = T; items_kwrite(T)
    endT = I("; end of tail", "label"); endA = I("; group A stored", "label")
    curT[0] = 5000
    if DL: items_epilogue(47, tbb[len(tbb) - 32 - 20])
    items_epilogue(TE - 1, endT)
    va = add(valu(f"v_add_u32 v{vVD}, s{sVC}, v{vKR}", [f"v{vKR}"], [f"v{vVD}"]), dead=[PVm[TE - 1, 2, act(TE - 1)[0]]], tag="vc")
    for j in range(32):
        d = R("a", Kf(0, 0) + 4 * (j % 8), 4)
        lastu = [(QKm[TE - 1, (j % 8) // 4, act(TE - 1)[-1], j % 4], 0)] if j < 8 else [(VCm[j - 8], 0)]
        add(I(f"ds_read_b128 {d}, v{vVD} offset:{j*1024}", "dsr", rd=[f"v{vVD}"], wr=[d]), after=[(va.ins, 0)] + lastu, dead=[VCm[j]], tag="vc", prio=-6)
    alias = {}
    for k, it in keyed(items).items():
        if k in old: alias[id(it.ins)] = old[k].ins; it.ins = old[k].ins; it.placed = True
    tfixed = {id(bar_spot(T)): [BARm[T]] for T in range(48, TE) if T in BARm}
    known = {id(x) for x in stream[:iC2 + 1]} | {id(x) for x in tbb} | {id(it.ins) for it in items} | {id(x) for l_ in tfixed.values() for x in l_}
    for it in items: it.after = [(alias.get(id(a_), a_), d_) for a_, d_ in it.after if id(alias.get(id(a_), a_)) in known]
    for T in range(48, TE):
        if T in BARm: bar_needs(T)
    tstream = stream[:iC2 + 1]
    labT = I("L_tail:", "label")
    tm = {0: [labT]}
    Sched(tstream).run(tbb, items, tfixed, tm, endins=endT)
    segT = tstream[iC2 + 1:]
    assert segT[0] is labT, segT[:3]
    assert all(it.placed for it in items)
    for x in segT: x.needs = [mp.get(id(z), z) for z in x.needs]
    linear = segP + segL + segB + segL + segB + segL + segT
    waits = insert_waits(linear)
    nops = fix_hazards(linear, waits)
    sys.stderr.write(f"instr: P {len(segP)} L {len(segL)} B {len(segB)} T {len(segT)}; waits {len(waits)}; nops {sum(nops.values())} at {len(nops)} sites\n")
    mk = {id(stream[p[id(bb[start[T]])]]): T for T in range(32 + C)}
    mk.update({id(firstm[T]): T for T in range(48, TE + 1)})
    simulate(segP + segL + segB + segL + segT, waits, nops, mk)
    body = render(segP, waits, nops) + render(segL, waits, nops) + render(segB, waits, nops) + render(segT, waits, nops)
    return body

HEADER = open("standalone__mha_softmax__near_ridge.s.ref").read().split("; Override launch")[0]
def main():
    body = build()
    out = HEADER + f"""; One workgroup (4 waves x 512 registers) per (batch, head).  V stays in LDS, K (pre-scaled by log2(e)/sqrt(D))
; stays in registers and is re-published through a small LDS ring; generated by my own scheduling script.
; @launch grid=(256,1,1) block=(256,1,1) lds=163840
.amdgcn_target "amdgcn-amd-amdhsa--gfx950"
.text
.globl {KNAME}
.p2align 8
.type {KNAME},@function
{KNAME}:
""" + "\n".join(body) + "\n" + "\n".join(finale()) + f"""
L_end:
    s_endpgm
.section .rodata,"a"
.p2align 6
.amdhsa_kernel {KNAME}
  .amdhsa_next_free_vgpr 512
  .amdhsa_next_free_sgpr 102
  .amdhsa_accum_offset 256
  .amdhsa_group_segment_fixed_size 0
  .amdhsa_kernarg_size 48
  .amdhsa_user_sgpr_count 2
  .amdhsa_user_sgpr_kernarg_segment_ptr 1
  .amdhsa_system_sgpr_workgroup_id_x 1
.end_amdhsa_kernel
"""
    open(sys.argv[1], "w").write(out)
main()
```

```python
import sys, struct, math
from core import *

class Cfg:
    dmap = "B"
    LK = 5
    LV = 3
    delta = 4
    noswap = True
    busy64 = True
    oflagsFA = "="
    oflagsFB = "="
    wr64 = False
    CUT = 10
    leadT = 11
    ta_slow = 250
    ta_fast = 90
    v0first = False
    dsmargin = 9
    st3 = 0
    jitfirst = True
    tq0 = 8
    tstep = 15
    st0 = 40
    kdoff = 14
    kstep = 8
    ldslat = 110
    qpf0 = 8
    lead = 0
    qflags = " nt"
    oflags = ""
    kvflags = " nt"
    pfflags = " nt"
    pf_period = 11
    stamps = 0
    spin = 0
    extra = 0
    dbg = -1
    force_fallback = False
    vahead = 2
    codepf = True
cfg = Cfg()
for a in sys.argv[2:]:
    k, v = a.split("=", 1)
    old = getattr(cfg, k)
    setattr(cfg, k, (v == "1") if isinstance(old, bool) else type(old)(v.replace("+", " ")))

KNAME = "standalone__mha_softmax__near_ridge_kernel"
SQ, SK, D = 1312, 512, 128
HEADQ = SQ * D * 2
HEADK = SK * D * 2
RING = 131072
CSCALE = struct.unpack("<I", struct.pack("<f", math.log2(math.e) / math.sqrt(D)))[0]

vO, vP, vS, vVf = 0, 160, 200, 208
vVA = 224
vHI, vLO = 226, 227
vKR, vKW, vQA, vOA, vPF, vIDX, vVD = 228, 229, 230, 231, 232, 233, 234
vT = 235
vKt = [236, 244]; vKx = [252, 253]
vW = [236, 240, 244]
vRI = 248
vL0, vL1, vDUM = 253, 254, 255
aQ, aST, aKf, aL, aSA = 0, 80, 208, 240, 252
def O(qs, b): return vO + 32 * qs + 4 * b
def P(T, qs): return vP + 20 * (T % 2) + 4 * qs
def S(c): return vS + 4 * (c % 2)
def Vf(f): return vVf + 4 * (f % 4)
def Q(qs, s): return aQ + 16 * qs + 4 * s
def Kf(blk, s): return aKf + 16 * blk + 4 * s
def ST(j, e): return aST + 8 * (j % 16) + 4 * e
def L(p): return aL + 4 * p
sQ, sK, sV, sO = 8, 12, 16, 20
sW = 24; sC = 25; sMASK = 26; sFAIL = 27; sBIT = 28; sCNT = 29
sOr = 30
sQn = 35
sKo, sVo, sM0 = 40, 41, 42
sT0, sT1, sT2 = 43, 44, 45
sLO, sRNG = 46, 47
sTS = 48
def off(s): return 64 * s if cfg.dmap == "A" else 128 * (s >> 1) + 16 * (s & 1)
GST = 16 if cfg.dmap == "A" else 32

DL = cfg.delta
TFIN = [1 << 30]
def act(T):
    if T < 0: return []
    if T < 16: return [0, 1, 2, 3, 4]
    if T >= TFIN[0] + DL: return []
    if T >= TFIN[0]: return [2, 3]
    if T < 16 + DL: return [0, 1]
    if DL and T >= 32 and (T % 16 == 0 or T % 16 == DL - 1): return [2, 3, 0, 1]
    return [0, 1, 2, 3]
def n_of(T): return len(act(T))
def phase(qs): return DL if qs in (2, 3) else 0
def isfirst(T, qs): return T == 0 or (T >= 16 and T % 16 == phase(qs))
def islast(T, qs): return T == 15 or (T > 16 + DL and (T + 1) % 16 == phase(qs))
def nextstart(T, qs):
    return 16 + phase(qs) if T == 15 else T + 1

def mfma(d, a, b, zero, dk="v", ak="a", bk="a"):
    D_, A_, B_ = R(dk, d, 4), R(ak, a, 4), R(bk, b, 4)
    return I(f"v_mfma_f32_16x16x32_bf16 {D_}, {A_}, {B_}, {'0' if zero else D_}", "mfma",
             rd=[A_, B_] + ([] if zero else [D_]), wr=[D_], acc=not zero)
def valu(text, rd, wr, kind="valu"): return I(text, kind, rd=rd, wr=wr)
def salu(text, rd=(), wr=()): return I(text, "salu", rd=rd, wr=wr)

class Item:
    __slots__ = ("ins", "after", "dead", "prio", "early", "tag", "placed", "T", "seq", "soft", "doff", "pace", "dabs")
    def __init__(self, ins, after=(), dead=None, early=None, tag="", prio=0, doff=0, pace=None):
        self.doff = doff; self.pace = pace; self.dabs = None
        self.ins = ins; self.after = list(after); self.dead = dead; self.early = early
        self.tag = tag; self.prio = prio; self.placed = False

QKm, PVm, SMm, BARm, VCm = {}, {}, {}, {}, {}
def chain(T, g):
    a = act(T)
    if T == 15: return (g % 2, a[g // 2])
    return (g // len(a), a[g % len(a)])
def mk_step(T):
    for g in range(2 * n_of(T)):
        blk, qs = chain(T, g)
        for s in range(4):
            QKm[T, blk, qs, s] = mfma(S(g), Kf(blk, s), Q(qs, s), s == 0)
    for b in range(8):
        for qs in act(T):
            PVm[T, b, qs] = mfma(O(qs, b), Vf(b), P(T, qs), isfirst(T, qs), ak="v", bk="v")
    for p in pairs(T):
        d, b = R("a", L(p), 4), R("v", P(T, pair_lo(p)), 8)
        SMm[T, p] = I(f"v_smfmac_f32_16x16x64_bf16 {d}, {R('a', aSA, 4)}, {b}, v{vIDX}", "smf",
                      rd=[d, b, R("a", aSA, 4), f"v{vIDX}"], wr=[d], acc=True)
def pair_of(qs): return 2 if qs == 4 else qs // 2
def pairs(T):
    out = []
    for qs in act(T):
        if pair_of(qs) not in out: out.append(pair_of(qs))
    return out
def pair_lo(p): return 3 if p == 2 else 2 * p
def pvlist(T): return [PVm[T, b, qs] for b in range(8) for qs in act(T)]
firstm = {}

def backbone_period(T):
    tail = n_of(T) == 0
    pv = pvlist(T - 2)[-4:] + (pvlist(T - 1) if tail else pvlist(T - 1)[:-4])
    sm = [SMm[T - 1, p] for p in pairs(T - 1)]
    out = []
    if tail:
        out += pv[:6] + sm + pv[6:] + [VCm[j] for j in range(32)]
        for k, m in enumerate(out): m.pref = "T" if (k < 4) else "D"
        firstm[T] = out[0]
        return out
    n = n_of(T); G = 2 * n
    lead = cfg.leadT if T == 16 else cfg.lead if (T > 16 and any(islast(T - 1, q) for q in act(T - 1))) else 0
    if lead:
        nl = 4 * lead
        head = pv[:nl]; pv = pv[nl:]
        if lead >= 2:
            head = head[:4] + [sm[0]] + head[4:8] + sm[1:] + head[8:]
            sm = []
        for k, m in enumerate(head): m.pref = "T" if k < 4 else "D"
        out += head
    if T == 1: cnt = [0] + [4] * (G - 1)
    elif len(pv) < 4 * G and not lead:
        r = len(pv) - 4; cnt = [min(4, len(pv))] + [r // (G - 1) + (1 if g < r % (G - 1) else 0) for g in range(G - 1)] if len(pv) >= 4 else [0] * G
    else:
        cnt = [len(pv) // G + (1 if g < len(pv) % G else 0) for g in range(G)]
    smpos = {}
    if sm:
        early = any(islast(T - 1, q) for q in act(T - 1)) and len(sm) > 1
        spots = [0 if early else 1, G // 2 + 1, G - 2]
        for m, g in zip(sm, spots): smpos.setdefault(min(g, G - 1), []).append(m)
    k = 0
    for g in range(G):
        blk, qs = chain(T, g)
        grp = [QKm[T, blk, qs, s] for s in range(4)] + pv[k:k + cnt[g]]
        k += cnt[g]
        L_ = len(grp)
        for j, m in enumerate(grp):
            m.pref = "T" if (L_ >= 8 and j % 2 == 0 and j < 8) or (L_ < 8 and j in {4: (0, 1, 2, 3), 5: (0, 1, 3, 4), 6: (0, 2, 3, 5), 7: (0, 2, 4, 6)}[L_]) else "D"
        out += grp
        for m in smpos.get(g, []):
            m.pref = "D"; out.append(m)
    firstm[T] = out[0]
    return out

items = []
curT = [-200]
ordn = {}
def add(ins, **kw):
    it = Item(ins, **kw); ordn[curT[0]] = ordn.get(curT[0], 0) + 1; it.T = (curT[0], ordn[curT[0]]); it.seq = len(items); items.append(it); return it

cvts = {}
def items_softmax(T):
    n = n_of(T)
    for g in range(2 * n):
        blk, qs = chain(T, g)
        last = QKm[T, blk, qs, 3]
        if g + 2 < 2 * n: nxt = QKm[(T,) + chain(T, g + 2) + (0,)]
        elif n_of(T + 1): nxt = QKm[(T + 1,) + chain(T + 1, g + 2 - 2 * n) + (0,)]
        else: nxt = None
        use = PVm[T, 0, qs]
        ng = QKm[(T,) + chain(T, g + 1) + (0,)] if g + 1 < 2 * n else firstm[T + 1]
        sms = [SMm[T, p] for p in pairs(T) if pair_lo(p) <= qs <= pair_lo(p) + 1]
        ex = []
        for r in range(4):
            v = f"v{S(g)+r}"
            ex.append(add(valu(f"v_exp_f32 {v}, {v}", [v], [v], "trans"), after=[(last, 8), (ng, 0)] + ([(ex[-1].ins, 0)] if ex else []),
                          dead=[nxt, use], tag="sm"))
        for h in range(2):
            d = f"v{P(T, qs) + 2*blk + h}"; a, b = f"v{S(g)+2*h}", f"v{S(g)+2*h+1}"
            aft = [(ex[2*h].ins, 1), (ex[2*h+1].ins, 1)]
            if qs in act(T - 2): aft.append((PVm[T - 2, 7, qs], 0))
            aft += [(SMm[T - 2, p], 0) for p in pairs(T - 2) if pair_lo(p) <= qs <= pair_lo(p) + 1]
            it = add(valu(f"v_cvt_pk_bf16_f32 {d}, {a}, {b}", [a, b], [d]), after=aft, dead=[nxt, use] + sms, tag="sm")
            pwriters.setdefault((T, P(T, qs)), []).append(it)
pwriters = {}

kreads = {}
def bar_pub(T):
    return BARm[T - 1] if T < 16 else BARm[(T // 2) * 2 - 1]
def items_kread(T):
    n = n_of(T)
    for blk in range(2):
        for s in range(4):
            d = R("a", Kf(blk, s), 4)
            ins = I(f"ds_read_b128 {d}, v{vKR} offset:{(T % 4) * 8192 + (4*blk+s) * 1024}", "dsr", rd=[f"v{vKR}"], wr=[d])
            aft = [(bar_pub(T), 0)]
            if T >= 1: aft.append((QKm[T - 1, blk, act(T - 1)[-1], s], 0))
            dl = [QKm[T, blk, act(T)[0], 0]]
            if blk == 1 and T % 2 == 1 and T != 15 and T in BARm: dl.append(BARm[T])
            kreads[T, blk, s] = add(ins, after=aft, dead=dl, tag="qk", prio=-12)
vreads = {}
vtog = {}
def vbar(T):
    if T == 0: return BARm["V0"]
    return BARm[T]
def vsel(b):
    return ((b >> 1) & 1, b >> 2, 8 * (b & 1)) if cfg.noswap else (b & 3, b >> 2, 0)
NVA = 2 if cfg.noswap else 4
def items_vread(T):
    for b in range(8):
        f = 8 * T + b
        pT, pb = divmod(f - 4, 8)
        aft = []
        if f >= 4: aft.append((PVm[pT, pb, act(pT)[-1]], 0))
        va = cfg.vahead if n_of(T) > 2 else 3
        aT, ab = divmod(f - va - 1, 8)
        if f - va - 1 >= 0: aft.append((PVm[aT, ab, act(aT)[-1]], 0))
        if T < 16: aft.append((vbar(T), 0))
        c, dh, e8 = vsel(b)
        if T % 8 == 0 and T > 0 and dh == 0: aft.append((vtog[T, c].ins, 0))
        prev = None
        for blk in range(2):
            d = R("v", Vf(f) + 2 * blk, 2)
            ins = I(f"ds_read_b64_tr_b16 {d}, v{vVA+c} offset:{dh*32768 + (T % 8)*4096 + blk*2048 + e8}", "dsr",
                    rd=[f"v{vVA+c}"], wr=[d])
            vreads[T, b, blk] = add(ins, after=aft + ([(prev, 0)] if prev else []), dead=[PVm[T, b, act(T)[0]]], tag="v", prio=-12)
            prev = ins
def items_vtoggle(T):
    for c in range(NVA):
        v = f"v{vVA+c}"
        use = [b for b in range(8) if vsel(b)[0] == c]
        vtog[T, c] = add(valu(f"v_xor_b32 {v}, 0x10000, {v}", [v], [v]), after=[(vreads[T - 1, b, 1].ins, 0) for b in use],
                         dead=[PVm[T, use[0], act(T)[0]]], tag="v", prio=-24, doff=cfg.dsmargin + 4)

kwrites = {}
kloads = {}
def busy(T):
    return T < 26 or T >= TFIN[0] or (T % 16) in (2, 3, 4, 5, 6, 7, 8, 9)
def items_kwrite(T):
    m = T // 2
    if T < 16: opn, cls = BARm[max(T - 3, -1)], BARm[T - 1]
    else: opn, cls = BARm[2 * m - 3], BARm[2 * m - 1]
    ws = []
    def wr(src, r, nreg, **kw):
        x = R(src[0], src[1] + r, nreg)
        return add(I(f"ds_write_b{32*nreg} v{vKW}, {x} offset:{(T % 4)*8192 + (r//4)*1024 + (r % 4)*4}", "dsw", rd=[f"v{vKW}", x],
                     cost=8 if nreg == 1 else 12), tag="qk", **kw)
    nr = 2 if (cfg.wr64 or (cfg.busy64 and busy(T))) else 1
    if T < 16:
        st = vKt[T % 2]
        prev_w = kwrites.get(T - 2)
        done = []
        for r in range(8):
            a = f"a{ST(T, 0) + r}"; x = f"v{st + r}"; t = f"v{vKx[r % 2]}"
            do = (cfg.kdoff + (7 - r) * cfg.kstep) if T >= 2 else 2 + (7 - r)
            kw = dict(dead=[cls], tag="qk", doff=do + 2)
            aft = [(kloads[T][r // 4], 0)]
            if prev_w: aft.append((prev_w[r * len(prev_w) // 8].ins, 0))
            aft.append((mid_of(T - 2) if T >= 2 else QKm[0, 0, 1, 3], 0))
            i0 = add(valu(f"v_accvgpr_read_b32 {x}, {a}", [a], [x]), after=aft, prio=-5, **kw)
            i1 = add(valu(f"v_lshlrev_b32 {t}, 16, {x}", [x], [t]), after=[(i0.ins, 0)] + ([(chain_prev[r % 2], 0)] if chain_prev[r % 2] else []), prio=-4, **kw)
            i2 = add(valu(f"v_and_b32 {x}, s{sMASK}, {x}", [x, f"s{sMASK}"], [x]), after=[(i1.ins, 0)], prio=-3, **kw)
            i3 = add(valu(f"v_mul_f32 {t}, s{sC}, {t}", [t, f"s{sC}"], [t]), after=[(i1.ins, 0)], prio=-2, **kw)
            i4 = add(valu(f"v_mul_f32 {x}, s{sC}, {x}", [x, f"s{sC}"], [x]), after=[(i2.ins, 0)], prio=-1, **kw)
            i5 = add(valu(f"v_cvt_pk_bf16_f32 {x}, {t}, {x}", [t, x], [x]), after=[(i3.ins, 0), (i4.ins, 0)], prio=0, **kw)
            chain_prev[r % 2] = i5.ins; done.append(i5.ins)
            if r % nr == nr - 1:
                ws.append(wr(("v", st), r - nr + 1, nr, after=[(opn, 0)] + [(x_, 0) for x_ in done[-nr:]], dead=[cls], doff=max(do - 8, 1)))
        rb = []
        for e in range(2):
            d = R("a", ST(T, e), 4)
            ins = I(f"ds_read_b128 {d}, v{vKW} offset:{(T % 4)*8192 + e*1024}", "dsr", rd=[f"v{vKW}"], wr=[d])
            rb.append(add(ins, after=[(w_.ins, 0) for w_ in ws[e * len(ws) // 2:(e + 1) * len(ws) // 2]], dead=[BARm[T]], tag="qk", prio=0))
        readback[T] = rb
    else:
        nw_ = 8 // nr
        for k in range(nw_):
            ws.append(wr(("a", ST(T, 0)), k * nr, nr, after=[(opn, 0)] + ([(ws[-1].ins, 0)] if ws else ([(kwrites[T-1][-1].ins, 0)] if T % 2 else [])),
                         dead=[cls], pace=(opn, ((T % 2) * nw_ + k + 1) / (2.0 * nw_))))
    kwrites[T] = ws
chain_prev = [None, None]
readback = {}
def mid_of(T): return QKm[(T,) + chain(T, n_of(T)) + (0,)]
def bar_spot(T): return QKm[(T,) + chain(T, n_of(T) - 1) + (3,)]
def start_of(T): return QKm[(T,) + chain(T, 0) + (0,)]

def kload_ins(j):
    out = []
    for e in range(2):
        d = R("a", ST(j, e), 4)
        out.append(I(f"buffer_load_dwordx4 {d}, v{vQA}, s[{sK}:{sK+3}], s{sKo} offen offset:{off(1)*e}{cfg.kvflags}", "vld",
                     rd=[f"v{vQA}", f"s{sKo}", f"s[{sK}:{sK+3}]"], wr=[d]))
    return out
def vdma_ins(j):
    out = []
    for dh in range(2):
        m0 = (j >> 3) * 65536 + dh * (32768 - 128) + (j & 7) * 4096
        out.append((salu(f"s_add_u32 m0, s{sM0}, {m0}", [f"s{sM0}"], ["m0", "scc"]),
                    I(f"buffer_load_dwordx4 v{vVD}, s[{sV}:{sV+3}], s{sVo} offen offset:{128*dh}{cfg.kvflags} lds", "dma",
                      rd=[f"v{vVD}", f"s{sVo}", "m0", f"s[{sV}:{sV+3}]"])))
    return out
vdmas = {}
last_vm = [None]
def add_kload(j, after, dead):
    up = add(salu(f"s_add_u32 s{sKo}, s{sKo}, 8192", [f"s{sKo}"], [f"s{sKo}", "scc"]),
             after=after + ([(last_vm[0], 0)] if last_vm[0] else []), dead=dead, tag="ld", prio=-30)
    ins = kload_ins(j); kloads[j] = ins
    prev = up.ins
    for x in ins:
        add(x, after=[(prev, 0)], dead=dead, tag="ld", prio=-25); prev = x
    last_vm[0] = prev
def add_vdma(j, after, dead):
    prev = last_vm[0]
    if j > 0:
        prev = add(salu(f"s_add_u32 s{sVo}, s{sVo}, 8192", [f"s{sVo}"], [f"s{sVo}", "scc"]),
                   after=after + ([(prev, 0)] if prev else []), dead=dead, tag="ld", prio=-30).ins
    vdmas[j] = []
    for sm0, dm in vdma_ins(j):
        add(sm0, after=after + [(prev, 0)], dead=dead, tag="ld", prio=-28)
        add(dm, after=[(sm0, 1)], dead=dead, tag="ld", prio=-25); prev = dm
        vdmas[j].append(dm)
    last_vm[0] = prev
def items_loads(T):
    if T == 0:
        def spot(g): return QKm[(0,) + chain(0, g) + (0,)], QKm[(0,) + chain(0, g) + (1,)]
        a, d = spot(0)
        for x in qload_ins(4):
            add(x, after=[(a, 0)] + ([(last_vm[0], 0)] if last_vm[0] else []), dead=[d], tag="ld", prio=-50); last_vm[0] = x
        kj, vj, g = 2, 0, 1
        while kj < cfg.LK or vj < cfg.LV:
            a, d = spot(g); g += 1
            if cfg.v0first and vj < cfg.LV: add_vdma(vj, [(a, 0)], [d]); vj += 1
            if kj < cfg.LK: add_kload(kj, [(a, 0)], [d]); kj += 1
            if not cfg.v0first and vj < cfg.LV: add_vdma(vj, [(a, 0)], [d]); vj += 1
        a, d = spot(max(g, 5))
        if cfg.LK < 16: add_kload(cfg.LK, [(a, 0)], [d])
        a, d = spot(max(g + 1, 7))
        if cfg.LV < 16: add_vdma(cfg.LV, [(a, 0)], [d])
        return
    if T + cfg.LK < 16: add_kload(T + cfg.LK, [(start_of(T), 0)], [start_of(T + 1)])
    if T + cfg.LV < 16: add_vdma(T + cfg.LV, [(mid_of(T), 0)], [mid_of(T + 1)])

def qload_ins(qs, dst=None):
    out = []
    for s in range(4):
        d = R("a", Q(qs, s), 4) if dst is None else R(dst[s][0], dst[s][1], 4)
        out.append(I(f"buffer_load_dwordx4 {d}, v{vQA}, s[{sQ}:{sQ+3}], s{sQn+qs} offen offset:{off(s)}{cfg.qflags}", "vld",
                     rd=[f"v{vQA}", f"s{sQn+qs}", f"s[{sQ}:{sQ+3}]"], wr=[d]))
    return out
def items_qjit():
    prev = None
    for qs in range(4):
        for s_, ins in enumerate(qload_ins(qs)):
            T1 = nextstart(15, qs)
            dl = [QKm[T1, 0, qs, 0]] + ([firstm[16]] if T1 == 16 and cfg.jitfirst else [])
            it = add(ins, after=[(QKm[15, 1, qs, s_], 0)] + ([(prev, 0)] if prev else []), dead=dl, tag="qj", prio=-400)
            if T1 > 16: qjit_b.append(it)
            prev = ins
qjit_b = []
UNITS = [O(4, b) for b in range(8)] + [P(0, 4), P(1, 4), 236, 240, 244]
QBUF = {(qs, s_): ("v", UNITS[4 * qs + s_]) for qs in range(3) for s_ in range(4)}
QBUF.update({(3, s_): ("a", Q(4, s_)) for s_ in range(4)})
unit_free = {}
def items_qpf(base):
    prev = None
    for qs in range(4):
        T = base + 15 + phase(qs)
        lds_ = qload_ins(qs, [QBUF[qs, s_] for s_ in range(4)])
        for s_, ins in enumerate(lds_):
            k = 4 * qs + s_
            curT[0] = base + cfg.CUT
            add(ins, after=[(rowadv_done[base], 0)] + ([(prev, 0)] if prev else []),
                dead=[start_of(base + 14) if qs < 2 else firstm[base + 16]], tag="qp", prio=-200 + k)
            prev = ins
            kind, r0 = QBUF[qs, s_]
            curT[0] = T
            if (T, 1, qs, s_) not in QKm or (T + 1, 0, qs, s_) not in QKm: continue
            for r in range(4):
                d, a_ = f"a{Q(qs, s_) + r}", f"{kind}{r0 + r}"
                op = "v_accvgpr_write_b32" if kind == "v" else "v_accvgpr_mov_b32"
                c = add(valu(f"{op} {d}, {a_}", [a_], [d]), after=[(QKm[T, 1, qs, s_], 0)], dead=[QKm[T + 1, 0, qs, s_]], tag="qc", prio=-3)
                if kind == "v": unit_free.setdefault((base, r0), []).append((c.ins, 0))
rowadv_done = {}
def items_rowadv(T):
    for qs in range(4):
        a = add(salu(f"s_add_u32 s{sOr+qs}, s{sOr+qs}, {'s3' if cfg.extra else 65536}", [f"s{sOr+qs}"], [f"s{sOr+qs}", "scc"]), after=[(start_of(T), 0)], dead=[mid_of(T)], tag="adv", prio=0)
        b = add(salu(f"s_add_u32 s{sQn+qs}, s{sOr+qs}, {'s4' if cfg.extra else 65536}" + ("\n    s_mov_b32 s3, s4\n    s_cmp_le_u32 s%d, 5\n    s_cselect_b32 s4, 0x10000, 0" % sCNT if cfg.extra and qs == 3 else ""), [f"s{sOr+qs}"], [f"s{sQn+qs}", "scc"]),
                after=[(a.ins, 0)] + ([(rowadv_done[T - T % 16], 0)] if qs else []), dead=[mid_of(T)], tag="adv", prio=0)
        rowadv_done[T - T % 16] = b.ins

lprev = []
def items_epilogue(T, endins):
    slots = sorted(q for q in act(T) if islast(T, q))
    base = (T + 1) // 16 * 16 - 16
    ri = {}
    def over(b, qs):
        T1 = nextstart(T, qs)
        return PVm[T1, b, qs] if qs in act(T1) and qs != 4 else endins
    xs = []
    for qs in slots:
        p = pair_of(qs); h = 1 if qs == 4 else qs % 2
        la, lb = f"a{L(p) + 2*h}", f"a{L(p) + 2*h + 1}"
        x, y, r = f"v{vL0 if qs % 2 == 0 else vPF}", f"v{vL1}", f"v{vRI+qs}"
        kw = dict(dead=[over(0, qs), endins], tag="ep", prio=-400)
        pa = [(z, 0) for z in lprev]
        i0 = add(valu(f"v_accvgpr_read_b32 {x}, {la}", [la], [x]), after=[(SMm[T, p], 12)] + pa, **kw)
        i1 = add(valu(f"v_accvgpr_read_b32 {y}, {lb}", [lb], [y]), after=[(SMm[T, p], 12)] + pa, **kw)
        i2 = add(valu(f"v_add_f32 {x}, {x}, {y}", [x, y], [x]), after=[(i0.ins, 0), (i1.ins, 0)], **kw)
        i3 = add(valu(f"v_rcp_f32 {r}, {x}", [x], [r], "trans"), after=[(i2.ins, 0)], **kw)
        ri[qs] = i3.ins; xs.append((x, i2.ins, i3.ins))
        lprev[:] = [i2.ins]
        if qs % 2 == 1 or qs == 4:
            src = ", ".join(z[0] for z in xs); nm = "3" if len(xs) == 2 else ""
            kw = dict(dead=[endins], tag="ep", prio=-300)
            c1 = add(valu(f"v_max{nm}_u32 v{vHI}, v{vHI}, {src}", [f"v{vHI}"] + [z[0] for z in xs], [f"v{vHI}"]), after=[(z[1], 0) for z in xs], **kw)
            c2 = add(valu(f"v_min{nm}_u32 v{vLO}, v{vLO}, {src}", [f"v{vLO}"] + [z[0] for z in xs], [f"v{vLO}"]), after=[(z[1], 0) for z in xs], **kw)
            lprev[:] = [c1.ins, c2.ins] + [z[2] for z in xs]; xs = []
        T1 = nextstart(T, qs)
        if qs in act(T1) and qs != 4:
            for reg in (la, lb):
                add(valu(f"v_accvgpr_write_b32 {reg}, 0", [], [reg]), after=[(i0.ins, 0), (i1.ins, 0)], dead=[SMm[T1, p], endins], tag="ep", prio=0)
    if T == 15:
        def pfree(t, q): return [(PVm[t, 7, q], 0)] + [(SMm[t, p], 0) for p in pairs(t) if pair_lo(p) <= q <= pair_lo(p) + 1]
        pool = [(u, []) for u in (236, 240, 244)] + [(P(14, q), pfree(14, q)) for q in ((4, 2, 3) if DL else (4,))]
        if DL: pool += [(P(15, q), pfree(15, q)) for q in (2, 3)]
    elif slots[0] == 0: pool = [(u, unit_free.get((base, u), [])) for u in (UNITS[:8] if DL else UNITS[-1:] + UNITS[:-1])]
    else: pool = [(u, unit_free.get((base, u), [])) for u in UNITS[12:] + UNITS[8:12] + UNITS[:8]]
    inplace = [q for q in slots if (q == 4 or (T == 15 and phase(q)))] if not endins.text.startswith("; end") else slots
    order = [(pb, qs) for pb in range(4) for qs in slots if qs not in inplace] + [(pb, qs) for pb in range(4) for qs in inplace]
    sts = []
    ofl = cfg.oflags
    if T >= TFIN[0] - 1:
        f_ = cfg.oflagsFA if slots[0] == 0 else cfg.oflagsFB
        if f_ != "=": ofl = f_
    for k, (pb, qs) in enumerate(order):
        inp = qs in inplace
        w, wa = (O(qs, 2 * pb), []) if inp else pool.pop(0)
        cv = []
        for e in range(2):
            b = 2 * pb + e
            kw = dict(dead=[over(2 * pb if inp else b, qs), endins], tag="ep", prio=(-200 + 4 * k) if inp else 0)
            ms = []
            for r in range(4):
                v = f"v{O(qs, b) + r}"
                ms.append(add(valu(f"v_mul_f32 {v}, {v}, v{vRI+qs}", [v, f"v{vRI+qs}"], [v]), after=[(PVm[T, b, qs], 8), (ri[qs], 1)], **kw))
            for h in range(2):
                d = f"v{w + 2*e + h}"; a_, b_ = f"v{O(qs, b) + 2*h}", f"v{O(qs, b) + 2*h + 1}"
                aft = [(ms[2*h].ins, 0), (ms[2*h+1].ins, 0)] + wa + ([(cv[-1].ins, 0)] if (inp and cv) else [])
                cv.append(add(valu(f"v_cvt_pk_bf16_f32 {d}, {a_}, {b_}", [a_, b_], [d]), after=aft, **kw))
        kw = dict(dead=[over(2 * pb, qs) if inp else endins, endins], tag="ep", prio=-300 + 8 * k)
        sw = []
        for h in range(0 if cfg.noswap else 2):
            x, y = f"v{w + h}", f"v{w + 2 + h}"
            sw.append(add(valu(f"v_permlane16_swap_b32 {x}, {y}", [x, y], [x, y], "perm"), after=[(cv[h].ins, 2), (cv[2 + h].ins, 2)], **kw))
        st = I(f"buffer_store_dwordx4 {R('v', w, 4)}, v{vOA}, s[{sO}:{sO+3}], s{sOr+qs} offen offset:{64*pb}{ofl}", "vst",
               rd=[R("v", w, 4), f"v{vOA}", f"s{sOr+qs}", f"s[{sO}:{sO+3}]"])
        sts.append((add(st, after=[(z.ins, 0) for z in (sw or cv)], **kw), w, inp, pb, qs))
        if not inp:
            pool.append((w, [(st, 2)])); unit_free[base, w] = [(st, 2)]
            for t in range(T + 1, T + 8):
                for it in pwriters.get((t, w), []): it.after.append((st, 2))

    if T == 15 and DL:
        rank = {P(14, 2): 0, P(14, 3): 1, P(15, 2): 4, P(15, 3): 5}
        def key(x):
            it, w, inp, pb, qs = x
            if not inp: return rank.get(w, 100)
            return 200 + pb if qs == 4 else (2 if pb == 0 else 4 + 2 * pb) + qs - 2
        seq = qjit_b + [x[0] for x in sorted(sts, key=key)]
        for k, it in enumerate(seq): it.dabs = (firstm[16], cfg.tq0 + cfg.tstep * k); it.prio = -1000 + k
    elif not endins.text.startswith("; end"):
        for k, x in enumerate(sts): x[0].dabs = (PVm[T, 1, act(T)[-1]], cfg.st0 + cfg.tstep * k)

class Sched:
    def __init__(self, stream):
        self.stream = stream
        self.pos = {id(x): k for k, x in enumerate(stream)}
        self.over = 0
        self.cyc = 0; self.ta = 0; self.log = []
    def run(self, bb, its, fixed_after, marks=None, endins=None):
        stream, pos = self.stream, self.pos
        idx = {id(m): j for j, m in enumerate(bb)}
        for mid, lst in fixed_after.items():
            if mid in idx:
                for f in lst: idx[id(f)] = idx[mid]
        for j, lst in (marks or {}).items():
            for f in lst: idx[id(f)] = j
        if endins is not None: idx[id(endins)] = len(bb)
        waiting, act, bydead = {}, [], {}
        byins = {id(it.ins): it for it in its if not it.placed}
        lbm = {}
        def lb(it):
            if id(it) not in lbm:
                v = 0
                for a, _ in it.after:
                    if id(a) in pos: continue
                    if id(a) in idx: v = max(v, idx[id(a)] + 1)
                    elif id(a) in byins: v = max(v, lb(byins[id(a)]))
                lbm[id(it)] = v
            return lbm[id(it)]
        sys.setrecursionlimit(100000)
        for it in its:
            if it.placed: continue
            d = min([idx[id(x)] for x in it.dead if x is not None and id(x) in idx] or [1 << 30])
            if it.dabs and id(it.dabs[0]) in idx: d = min(d, max(idx[id(it.dabs[0])] + it.dabs[1], lb(it) + 1))
            if it.doff: d = max(d - it.doff, min(d, lb(it) + 1))
            it.early = d + it.prio
            it.soft = d - (cfg.dsmargin if it.ins.kind in LGKM else -(1 << 20))
            if it.pace and id(it.pace[0]) in idx and d < (1 << 29):
                o_ = idx[id(it.pace[0])]
                it.soft = int(o_ + it.pace[1] * (d - cfg.dsmargin - o_)); it.early = it.soft + 4
            bydead.setdefault(d, []).append(it)
            w = {id(a) for a, _ in it.after if id(a) not in pos}
            nw[id(it)] = len(w)
            for a in w: waiting.setdefault(a, []).append(it)
            if not w: act.append(it)
        st = {"budget": 8, "first": True, "valu": False, "mem": False}
        def emit(x):
            pos[id(x)] = len(stream); stream.append(x)
            for it in waiting.pop(id(x), []):
                nw[id(it)] -= 1
                if nw[id(it)] == 0: act.append(it)
        def ready(it):
            n = len(stream)
            return all(n - pos[id(a)] - 1 >= dist for a, dist in it.after)
        def place(it):
            c = it.ins.cost; kd = it.ins.kind
            if kd == "salu" and st["first"]: c -= 4
            if kd in LGKM + VM and st["valu"]: c += 8
            elif kd in LGKM + VM and st["mem"]: c += 4
            if kd in LGKM + VM: st["mem"] = True
            if kd in VALU: st["valu"] = True
            act.remove(it); it.placed = True
            if kd in VM:
                now = self.cyc + 8 + (8 - st["budget"])
                self.ta = (max(self.ta, now) if now < self.ta + 1 and it.tag != "ld" else now) + (cfg.ta_fast if kd == "dma" else cfg.ta_slow)
            emit(it.ins); st["budget"] -= c; st["first"] = False
        def cands(pred):
            return sorted([it for it in act if pred(it) and ready(it)], key=lambda x: (x.early, x.seq))
        def force(limit):
            while True:
                due = [it for d in list(bydead) if d <= limit for it in bydead[d] if not it.placed]
                for d in [d for d in bydead if d <= limit]:
                    bydead[d] = [it for it in bydead[d] if not it.placed]
                    if not bydead[d]: del bydead[d]
                if not due: return
                stack = list(due); seen = set(); need = []
                while stack:
                    it = stack.pop()
                    if id(it) in seen: continue
                    seen.add(id(it)); need.append(it)
                    for a_, _ in it.after:
                        o = byins.get(id(a_))
                        if o is not None and not o.placed: stack.append(o)
                av = [it for it in need if nw[id(it)] == 0]
                if not av:
                    raise RuntimeError("deadlock: " + "; ".join(it.ins.text + " AFTER " + str([a for a, _ in it.after if id(a) not in pos]) for it in need[:6]))
                rs = [it for it in av if ready(it)]
                if not rs:
                    rs = cands(lambda x: x.ins.kind in VALU)[:1] or av
                rs.sort(key=lambda x: (0 if (x.ins.kind in LGKM + VM and not st["valu"]) else 1, x.early, x.seq))
                place(rs[0])
        force(0)
        for k, m in enumerate(bb):
            for f in (marks or {}).get(k, []): emit(f)
            emit(m)
            st.update(budget=8, first=True, valu=False, mem=False)
            for f in fixed_after.get(id(m), []):
                emit(f); st["first"] = False
            c = cands(lambda x: x.ins.kind == "salu")
            if c and st["first"] and k + 1 < len(bb) and not getattr(cfg, "nosalu", False): place(c[0])
            vm = cands(lambda x: x.ins.kind in VM) if (self.ta <= self.cyc and m.pref != "T") else []
            urgent = cands(lambda x: x.soft <= (k - 2 if vm else k + 1))
            if urgent: place(min(urgent, key=lambda x: (x.soft, x.seq)))
            tr = cands(lambda x: x.ins.kind == "trans")
            if m.pref == "T" and tr and st["budget"] >= (4 if urgent else 8):
                place(tr[0])
            else:
                if not urgent and st["budget"] >= 4:
                    if not vm and self.ta <= self.cyc: vm = cands(lambda x: x.ins.kind in VM)
                    mem = vm or cands(lambda x: x.ins.kind in LGKM)
                    if mem and not vm:
                        rd_ = [x for x in mem if x.ins.kind == "dsr"]; wr_ = [x for x in mem if x.ins.kind == "dsw"]
                        if cands(lambda x: x.ins.kind in ("valu", "perm")): mem = rd_
                        elif wr_ and not (rd_ and rd_[0].soft <= k + 3): mem = wr_
                    if mem: place(mem[0])
                while st["budget"] >= 4:
                    a = cands(lambda x: x.ins.kind in ("valu", "perm") or (x.ins.kind == "trans" and st["budget"] >= 8))
                    if not a: break
                    place(a[0])
            force(k + 1)
            if st["budget"] < 0: self.over -= st["budget"]
            self.cyc += max(16, 16 - st["budget"])
            self.log.append(self.cyc)
        if endins is not None: force(1 << 29)
nw = {}

sVC = 49
sTSB = 60
def stamp(k, cyc=False, mode=1):
    if cfg.stamps != mode: return []
    r = sTSB + 2 * k
    return [I(f"s_mem{'time' if cyc else 'realtime'} s[{r}:{r+1}]", "salu", wr=[f"s[{r}:{r+1}]"])]

def V(text, rd, wr, kind="valu"): return I(text, kind, rd=rd, wr=wr)
def prologue():
    o = []
    o.append(I("s_cmp_ge_u32 s2, 256\n    s_cbranch_scc1 L_end", "br"))
    o += stamp(0) + stamp(1, True)
    if cfg.spin: o.append(salu("s_memrealtime s[98:99]"))
    o.append(salu("s_load_dwordx8 s[52:59], s[0:1], 0"))
    l, t, u, g = "v1", "v2", "v3", "v4"
    o += [V(f"v_lshrrev_b32 {t}, 6, v0", ["v0"], [t]),
          V(f"v_and_b32 {l}, 63, v0", ["v0"], [l]),
          V(f"v_readfirstlane_b32 s{sW}, {t}", [t], [f"s{sW}"]),
          V(f"v_lshrrev_b32 {g}, 4, {l}", [l], [g]),
          V(f"v_and_b32 {t}, 15, {l}", [l], [t]),
          V(f"v_lshlrev_b32 {t}, 8, {t}", [t], [t]),
          V(f"v_mul_u32_u24 {u}, {GST}, {g}", [g], [u]),
          V(f"v_add_u32 v{vQA}, {t}, {u}", [t, u], [f"v{vQA}"]),
          ]
    if cfg.noswap:
        o += [V(f"v_lshl_add_u32 v{vOA}, {g}, 4, {t}", [g, t], [f"v{vOA}"]),
              V(f"v_and_b32 {u}, 1, {g}", [g], [u]),
              V(f"v_lshlrev_b32 {u}, 2, {u}", [u], [u]),
              V(f"v_xor_b32 {u}, {u}, {l}", [u, l], [u]),
              V(f"v_and_b32 {u}, 7, {u}", [u], [u]),
              V(f"v_lshrrev_b32 {t}, 3, {l}", [l], [t]),
              V(f"v_lshlrev_b32 {t}, 8, {t}", [t], [t]),
              V(f"v_lshl_add_u32 v{vVD}, {u}, 4, {t}", [u, t], [f"v{vVD}"])]
    else:
        o += [
          V(f"v_and_b32 {u}, 1, {g}", [g], [u]),
          V(f"v_lshl_add_u32 {t}, {u}, 5, {t}", [u, t], [t]),
          V(f"v_lshrrev_b32 {u}, 1, {g}", [g], [u]),
          V(f"v_lshl_add_u32 v{vOA}, {u}, 4, {t}", [u, t], [f"v{vOA}"]),
          V(f"v_bfe_u32 {t}, {l}, 1, 2", [l], [t]),
          V(f"v_xor_b32 {t}, {t}, {g}", [t, g], [t]),
          V(f"v_lshlrev_b32 {t}, 5, {t}", [t], [t]),
          V(f"v_lshrrev_b32 {u}, 3, {l}", [l], [u]),
          V(f"v_lshl_add_u32 {t}, {u}, 8, {t}", [u, t], [t]),
          V(f"v_and_b32 {u}, 1, {l}", [l], [u]),
          V(f"v_lshl_add_u32 v{vVD}, {u}, 4, {t}", [u, t], [f"v{vVD}"]),
          ]
    o += [salu(f"s_mul_i32 s{sT0}, s2, {HEADQ}", [], [f"s{sT0}"]),
          salu(f"s_lshl_b32 s{sT1}, s2, 17", [], [f"s{sT1}"]),
          salu(f"s_lshl_b32 s{sM0}, s{sW}, 10", [f"s{sW}"], [f"s{sM0}"]),
          salu(f"s_lshl_b32 s{sVo}, s{sW}, 11", [f"s{sW}"], [f"s{sVo}"]),
          salu(f"s_lshr_b32 s{sKo}, s{sW}, 1", [f"s{sW}"], [f"s{sKo}"]),
          salu(f"s_lshl_b32 s{sKo}, s{sKo}, 12"),
          salu(f"s_and_b32 s{sT2}, s{sW}, 1"),
          salu(f"s_lshl_b32 s{sT2}, s{sT2}, 7"),
          salu(f"s_add_u32 s{sKo}, s{sKo}, s{sT2}"),
          salu(f"s_lshl_b32 s{sOr}, s{sW}, 14"),
          salu(f"s_add_u32 s{sOr+1}, s{sOr}, 4096"),
          salu(f"s_add_u32 s{sOr+2}, s{sOr}, 8192"),
          salu(f"s_add_u32 s{sOr+3}, s{sOr}, 12288"),
          salu(f"s_lshl_b32 s{sOr+4}, s{sW}, 12"),
          salu(f"s_add_u32 s{sOr+4}, s{sOr+4}, {1280*256}"),
          ]
    o += [salu(f"s_mov_b32 s{sQn+k}, s{sOr+k}") for k in range(5)]
    o.append(I("s_waitcnt lgkmcnt(0)", "wait"))
    for srd, p, so, size in ((sK, 54, sT1, HEADK), (sQ, 52, sT0, HEADQ), (sV, 56, sT1, HEADK), (sO, 58, sT0, HEADQ)):
        o += [salu(f"s_add_u32 s{srd}, s{p}, s{so}"), salu(f"s_addc_u32 s{srd+1}, s{p+1}, 0"),
              salu(f"s_mov_b32 s{srd+2}, {size}"), salu(f"s_mov_b32 s{srd+3}, 0x20000")]
    kloads[0] = kload_ins(0); kloads[1] = kload_ins(1)
    o += kloads[0] + qload_ins(0) + qload_ins(1)[:2]
    later = [qload_ins(1)[2:] + [salu(f"s_add_u32 s{sKo}, s{sKo}, 8192")] + kloads[1], qload_ins(2), qload_ins(3)]
    if cfg.codepf:
        o.append(I(f"s_getpc_b64 s[50:51]\nL_pf:\n    s_lshr_b32 s{sT2}, s2, 3\n    s_lshl_b32 s{sT2}, s{sT2}, 11", "salu"))
        o.append(V(f"v_lshl_add_u32 v5, {l}, 5, s{sT2}", [l], ["v5"]))
        o.append(V("v_min_u32 v5, L_end - L_pf, v5", ["v5"], ["v5"]))
        x = I(f"global_load_dword v{vDUM}, v5, s[50:51]", "vld", rd=["v5"], wr=[f"v{vDUM}"]); x.nowait = True
        o.append(x)
    o += [salu(f"s_mov_b32 s{sC}, {CSCALE:#x}"), salu(f"s_mov_b32 s{sMASK}, 0xffff0000"),
          salu(f"s_mov_b32 s{sFAIL}, {0x1fffff if cfg.force_fallback else 0}"), salu(f"s_mov_b32 s{sCNT}, {4 + cfg.extra}"), salu("s_mov_b32 s3, 0x10000"), salu("s_mov_b32 s4, 0"),
          salu(f"s_lshl_b32 s{sVC}, s{sW}, 15"), salu(f"s_sub_u32 s{sVC}, s{sVC}, {RING}"),
          salu(f"s_lshl_b32 s{sT2}, s{sW}, 11")]
    o += [V(f"v_lshlrev_b32 {t}, 4, {l}", [l], [t]),
          V(f"v_add_u32 v{vKR}, {RING}, {t}", [t], [f"v{vKR}"]),
          V(f"v_add_u32 v{vKW}, s{sT2}, v{vKR}", [f"v{vKR}"], [f"v{vKW}"]),
          V(f"v_lshrrev_b32 {t}, 2, {l}", [l], [t]),
          V(f"v_lshlrev_b32 {t}, 7, {t}", [t], [t]),
          V(f"v_and_b32 {u}, 3, {l}", [l], [u])]
    assert cfg.noswap
    o += [V(f"v_lshl_add_u32 {t}, {u}, 4, {t}", [u, t], [t]),
          V(f"v_bfe_u32 {u}, {l}, 3, 1", [l], [u]),
          V(f"v_lshl_add_u32 v{vVA}, {u}, 6, {t}", [u, t], [f"v{vVA}"]),
          V(f"v_xor_b32 v{vVA+1}, 64, v{vVA}", [f"v{vVA}"], [f"v{vVA+1}"]),
          V(f"v_mov_b32 v{vHI}, 0", [], [f"v{vHI}"]), V(f"v_mov_b32 v{vLO}, -1", [], [f"v{vLO}"])]
    o += [V(f"v_lshrrev_b32 {t}, 4, {l}", [l], [t]),
          V(f"v_xor_b32 {t}, {t}, {l}", [t, l], [t]),
          V(f"v_bfe_u32 {t}, {t}, 1, 1", [t], [t]),
          V(f"v_add_u32 {t}, -1, {t}", [t], [t]),
          V(f"v_and_b32 {t}, 0x3f803f80, {t}", [t], [t])]
    o += [V(f"v_accvgpr_write_b32 a{aSA+k}, {t}", [t], [f"a{aSA+k}"]) for k in range(4)]
    o += [V(f"v_and_b32 {u}, 1, {l}", [l], [u]),
          V(f"v_mul_u32_u24 {u}, 0xaaaa, {u}", [u], [u]),
          V(f"v_add_u32 v{vIDX}, 0x4444, {u}", [u], [f"v{vIDX}"])]
    o += [V(f"v_accvgpr_write_b32 a{aL+k}, 0", [], [f"a{aL+k}"]) for k in range(12)]
    o += later[0]
    for T in range(1):
        st = vKt[T]; ws = []
        for r in range(8):
            a = f"a{ST(T, 0) + r}"; x = f"v{st + r}"; tt = f"v{vKx[r % 2]}"
            o += [V(f"v_accvgpr_read_b32 {x}, {a}", [a], [x]),
                  V(f"v_lshlrev_b32 {tt}, 16, {x}", [x], [tt]),
                  V(f"v_and_b32 {x}, s{sMASK}, {x}", [x], [x]),
                  V(f"v_mul_f32 {tt}, s{sC}, {tt}", [tt], [tt]),
                  V(f"v_mul_f32 {x}, s{sC}, {x}", [x], [x]),
                  V(f"v_cvt_pk_bf16_f32 {x}, {tt}, {x}", [tt, x], [x])]
        for e in range(2):
            w = I(f"ds_write_b128 v{vKW}, {R('v', st + 4*e, 4)} offset:{T*8192 + e*1024}", "dsw", rd=[f"v{vKW}", R('v', st + 4*e, 4)])
            o.append(w); ws += [Item(w)] * 4
        rb = []
        for e in range(2):
            d = R("a", ST(T, e), 4)
            x = I(f"ds_read_b128 {d}, v{vKW} offset:{T*8192 + e*1024}", "dsr", rd=[f"v{vKW}"], wr=[d])
            o.append(x); rb.append(Item(x))
        kwrites[T] = ws; readback[T] = rb
    o += later[1]
    pro_tail.extend(later[2] + [salu(f"s_add_u32 s{sQn+k}, s{sOr+k}, 65536") for k in range(4)])
    return o
pro_tail = []

def finale():
    a = L(2)
    t = []
    t.append("    s_nop 7\n    s_nop 3")
    t += [f"    v_accvgpr_read_b32 v{k}, a{a+k}" for k in range(4)]
    t += [f"    v_and_b32 v{k}, 0x7fffffff, v{k}" for k in range(4)]
    t += ["    v_max_u32 v0, v0, v1", "    v_max3_u32 v0, v0, v2, v3",
          "    v_cmp_le_u32 vcc, 0x5d800000, v0",
          "    s_nop 1",
          "    s_cmp_lg_u64 vcc, 0",
          f"    s_cselect_b32 s{sT0}, 1, 0",
          f"    v_cmp_lt_u32 vcc, 0x6f800000, v{vHI}",
          f"    v_cmp_gt_u32 s[50:51], 1.0, v{vLO}",
          "    s_nop 1",
          "    s_or_b64 vcc, vcc, s[50:51]",
          f"    s_cselect_b32 s{sFAIL}, 0x1fffff, s{sFAIL}",
          f"    s_lshl_b32 s{sT1}, s{sW}, 2",
          f"    s_add_u32 s{sT1}, s{sT1}, {RING}",
          f"    v_mov_b32 v0, s{sT0}", f"    v_mov_b32 v1, s{sT1}", f"    v_mov_b32 v2, {RING}",
          "    ds_write_b32 v1, v0", "    s_waitcnt lgkmcnt(0)", "    s_barrier",
          "    ds_read_b128 v[4:7], v2", "    s_waitcnt lgkmcnt(0)",
          "    v_or3_b32 v4, v4, v5, v6", "    v_or_b32 v4, v4, v7", "    s_nop 0",
          f"    v_readfirstlane_b32 s{sT0}, v4", "    s_nop 1",
          f"    s_cmp_lg_u32 s{sT0}, 0",
          f"    s_cselect_b32 s{sFAIL}, 0x1fffff, s{sFAIL}"]
    if cfg.stamps == 1:
        t += ["    s_memrealtime s[%d:%d]" % (sTSB + 22, sTSB + 23), "    s_waitcnt vmcnt(0)",
              "    s_memrealtime s[%d:%d]" % (sTSB + 24, sTSB + 25), "    s_memtime s[%d:%d]" % (sTSB + 26, sTSB + 27)]
    if cfg.stamps:
        t += ["    s_load_dwordx2 s[4:5], s[0:1], 40", "    s_waitcnt lgkmcnt(0)",
              "    s_mov_b32 s6, 0x100000", "    s_mov_b32 s7, 0x20000",
              f"    s_lshl_b32 s{sT0}, s2, 2", f"    s_add_u32 s{sT0}, s{sT0}, s{sW}", f"    s_lshl_b32 s{sT0}, s{sT0}, 7",
              "    v_mov_b32 v1, 0"]
        for k in range(21):
            t += [f"    v_mov_b32 v0, s{sTSB + 2*k}", f"    buffer_store_dword v0, v1, s[4:7], s{sT0} offen offset:{4*k}"]
    if cfg.spin:
        t += ["L_spin:", "    s_memrealtime s[100:101]", "    s_waitcnt lgkmcnt(0)", "    s_sub_u32 s100, s100, s98", f"    s_cmp_lt_u32 s100, {cfg.spin * 100}", "    s_cbranch_scc1 L_spin"]
    if cfg.dbg >= 0:
        t += [f"    s_cmp_lg_u32 s2, {cfg.dbg}", "    s_cbranch_scc1 L_nodbg", f"    s_cmp_lg_u32 s{sW}, 0", "    s_cbranch_scc1 L_nodbg",
              "    s_load_dwordx2 s[4:5], s[0:1], 32", "    s_waitcnt lgkmcnt(0)", "    s_mov_b32 s6, 256", "    s_mov_b32 s7, 0x20000"]
        lst = [(2, 0), (3, 0), (4, 0), (5, 0), (9, 0), (8, 0), (7, 0), (6, 0), (11, 0), (12, 0), (10, 1), (13, 10)]
        for k, (a_, b_) in enumerate(lst):
            t += [f"    s_sub_u32 s{sT1}, s{sTSB + 2*a_}, s{sTSB + 2*b_}", f"    v_mov_b32 v0, s{sT1}", f"    buffer_store_dword v0, v1, s[4:7], 0 offen offset:{4*k}"]
        t += ["L_nodbg:"]
    t += [f"    s_cmp_eq_u32 s{sFAIL}, 0", "    s_cbranch_scc1 L_end"]
    sJ, sRow, sKb, sVt = sT0, sT1, sT2, sKo
    f = ["    ; ---- slow path: rows whose unshifted exponent sum left the safe range are redone with the true max",
         "    s_waitcnt vmcnt(0)"]
    f += [f"    v_and_b32 v{vVA+c}, 0xffff, v{vVA+c}" for c in range(NVA)]
    f += ["L_fb_next:",
          f"    s_ff1_i32_b32 s{sJ}, s{sFAIL}", f"    s_bitset0_b32 s{sFAIL}, s{sJ}",
          f"    s_cmp_gt_u32 s{sJ}, 4", f"    s_cselect_b32 s{sKb}, 1, 0", f"    s_sub_u32 s{sKb}, s{sJ}, s{sKb}",
          f"    s_lshr_b32 s{sRow}, s{sKb}, 2", f"    s_lshl_b32 s{sRow}, s{sRow}, 16",
          f"    s_and_b32 s{sKb}, s{sKb}, 3", f"    s_lshl_b32 s{sKb}, s{sKb}, 12", f"    s_add_u32 s{sRow}, s{sRow}, s{sKb}",
          f"    s_lshl_b32 s{sKb}, s{sW}, 14", f"    s_add_u32 s{sRow}, s{sRow}, s{sKb}",
          f"    s_cmp_eq_u32 s{sJ}, 4", f"    s_cselect_b32 s{sRow}, s{sOr+4}, s{sRow}"]
    f += [f"    buffer_load_dwordx4 v[{4*s}:{4*s+3}], v{vQA}, s[{sQ}:{sQ+3}], s{sRow} offen offset:{off(s)}" for s in range(4)]
    def qk(dst, extra):
        r = [f"    buffer_load_dwordx4 v[{20+4*s}:{23+4*s}], v{vQA}, s[{sK}:{sK+3}], s{sKb} offen offset:{off(s)}" for s in range(4)]
        r += ["    s_waitcnt vmcnt(0)"]
        r += [f"    v_mfma_f32_16x16x32_bf16 v[{dst}:{dst+3}], v[{20+4*s}:{23+4*s}], v[{4*s}:{4*s+3}], {'0' if s == 0 else f'v[{dst}:{dst+3}]'}" for s in range(4)]
        r += [f"    s_add_u32 s{sKb}, s{sKb}, 4096", "    s_nop 9"]
        return r
    f += ["    v_mov_b32 v16, 0xff800000", f"    s_mov_b32 s{sKb}, 0", "L_fb_max:"]
    f += qk(36, None)
    f += ["    v_max3_f32 v16, v16, v36, v37", "    v_max3_f32 v16, v16, v38, v39",
          f"    s_cmp_lt_u32 s{sKb}, {HEADK}", "    s_cbranch_scc1 L_fb_max"]
    def xlane(reg, tmp, op):
        return [f"    v_mov_b32 v{tmp}, v{reg}", "    s_nop 1", f"    v_permlane16_swap_b32 v{reg}, v{tmp}", "    s_nop 1", f"    {op} v{reg}, v{reg}, v{tmp}",
                f"    v_mov_b32 v{tmp}, v{reg}", "    s_nop 1", f"    v_permlane32_swap_b32 v{reg}, v{tmp}", "    s_nop 1", f"    {op} v{reg}, v{reg}, v{tmp}"]
    f += xlane(16, 17, "v_max_f32")
    f += [f"    v_mul_f32 v17, s{sC}, v16", "    v_mov_b32 v18, 0"]
    f += [f"    v_mov_b32 v{64+k}, 0" for k in range(32)]
    f += [f"    s_mov_b32 s{sKb}, 0", f"    s_mov_b32 s{sVt}, 0", "L_fb_pv:"]
    f += qk(36, None) + qk(40, None)
    f += [f"    v_fma_f32 v{36+k}, v{36+k}, s{sC}, -v17" for k in range(8)]
    f += [f"    v_exp_f32 v{36+k}, v{36+k}" for k in range(8)]
    f += ["    s_nop 0"] + [f"    v_add_f32 v18, v18, v{36+k}" for k in range(8)]
    f += [f"    v_cvt_pk_bf16_f32 v{44+k}, v{36+2*k}, v{37+2*k}" for k in range(4)]
    f += [f"    v_add_u32 v{52+c}, s{sVt}, v{vVA+c}" for c in range(NVA)]
    for b in range(8):
        f += [f"    ds_read_b64_tr_b16 v[{48+2*blk}:{49+2*blk}], v{52+vsel(b)[0]} offset:{(b>>2)*32768 + blk*2048 + vsel(b)[2]}" for blk in range(2)]
        f += ["    s_waitcnt lgkmcnt(0)", f"    v_mfma_f32_16x16x32_bf16 v[{64+4*b}:{67+4*b}], v[48:51], v[44:47], v[{64+4*b}:{67+4*b}]"]
    f += [f"    s_add_u32 s{sVt}, s{sVt}, 4096", f"    s_cmp_eq_u32 s{sVt}, 32768", f"    s_cselect_b32 s{sVt}, 65536, s{sVt}",
          f"    s_cmp_lt_u32 s{sKb}, {HEADK}", "    s_cbranch_scc1 L_fb_pv"]
    f += xlane(18, 17, "v_add_f32")
    f += ["    v_rcp_f32 v18, v18", "    s_nop 7"]
    f += [f"    v_mul_f32 v{64+k}, v{64+k}, v18" for k in range(32)]
    f += [f"    v_cvt_pk_bf16_f32 v{96+k}, v{64+2*k}, v{65+2*k}" for k in range(16)]
    f += ["    s_nop 1"]
    for pb in range(0 if cfg.noswap else 4):
        f += [f"    v_permlane16_swap_b32 v{96+4*pb+h}, v{98+4*pb+h}" for h in range(2)]
    f += [f"    buffer_store_dwordx4 v[{96+4*pb}:{99+4*pb}], v{vOA}, s[{sO}:{sO+3}], s{sRow} offen offset:{64*pb}" for pb in range(4)]
    f += ["    s_waitcnt vmcnt(0)", f"    s_cmp_lg_u32 s{sFAIL}, 0", "    s_cbranch_scc1 L_fb_next"]
    return t + f

def simulate(linear, waits, nops, marks):
    t = 0; pipe = 0; q = []; lastdone = 0; out = []; t0 = 0; first = False; valu = False; mem = False; cur = None; stall = 0; stl = []
    for ins in linear:
        if ins.kind == "label": continue
        w = waits.get(id(ins))
        if w:
            if w[1] is not None and len(q) > w[1]:
                need = q[len(q) - w[1] - 1]
                if need > t: stall += need - t; t = need
            t += 0 if first else 4; first = False
        t += 4 * nops.get(id(ins), 0)
        if id(ins) in marks:
            out.append(t - t0); stl.append(stall); t0 = t; stall = 0
        k = ins.kind
        if k in MAT:
            t = max(t, pipe); pipe = t + 16; t += 8; first = True; valu = False; mem = False
        else:
            c = ins.cost
            if k in ("salu", "bar", "br", "wait") and first: c -= 4
            if k in LGKM + VM and valu: c += 8
            elif k in LGKM + VM and mem: c += 4
            if k in LGKM + VM: mem = True
            if k in LGKM:
                svc = 32 if k == "dsw" else (16 if ("b128" in ins.text or cfg.noswap) else 8)
                lastdone = max(lastdone + svc, t + cfg.ldslat); q.append(lastdone)
            if k in VALU: valu = True
            t += c; first = False
    out.append(t - t0); stl.append(stall)
    sys.stderr.write(f"sim cycles/period: {out[1:]}\nsim lgkm stalls : {stl[1:]}\n")

def gen_items(T):
    curT[0] = T
    items_softmax(T); items_kread(T)
    if T % 8 == 0 and T > 0: items_vtoggle(T)
    items_vread(T)
def bar_needs(T):
    pub = (T + 1,) if T < 15 else (T + 1, T + 2)
    nd = [x.ins for t in pub for x in kwrites[t]]
    if T in vdmas and T > 0: nd += vdmas[T]
    done = (T - 1, T) if T >= 13 else (T - 1,) if T >= 1 else ()
    nd += [kreads[t, blk, s_].ins for t in done for blk in range(2) for s_ in range(4)]
    nd += [x.ins for t in done if t in readback for x in readback[t]]
    BARm[T].needs = nd
def build():
    C = cfg.CUT; NT = 48 + C + 2
    for T in range(NT + 2): mk_step(T)
    BARm[-1] = I("s_barrier", "bar"); BARm["V0"] = I("s_barrier", "bar")
    for T in list(range(0, 15, 2)) + list(range(1, NT + 2, 2)): BARm[T] = I("s_barrier", "bar")
    pro = prologue()
    pro.append(BARm[-1]); pro += stamp(2) + pro_tail
    bb, start = [], {}
    for T in range(NT):
        start[T] = len(bb); bb += backbone_period(T)
    backbone_period(NT)
    fixed = {id(bar_spot(T)): [BARm[T]] for T in range(NT) if T in BARm}
    fixed[id(QKm[0, 1, 2, 3])] = [BARm["V0"]]
    labL = I("L_loop:", "label"); labL2 = I("; second instance", "label"); labL3 = I("; third instance", "label")
    def chk():
        pre = ""
        if cfg.stamps == 1:
            r = sTSB + 12
            pre = "".join(f"s_mov_b64 s[{r+2*k+2}:{r+2*k+3}], s[{r+2*k}:{r+2*k+1}]\n    " for k in (2, 1, 0)) + f"s_memrealtime s[{r}:{r+1}]\n    "
        return I(pre + f"s_sub_u32 s{sCNT}, s{sCNT}, 1\n    s_cmp_eq_u32 s{sCNT}, 0\n    s_cbranch_scc1 L_tail", "br")
    chk1, chk2 = chk(), chk()
    brL, brL2 = I("s_branch L_loop", "br"), I("s_branch L_loop", "br")
    marks = {start[16 + C]: stamp(5) + [labL], start[32]: [chk1], start[32 + C]: [brL, labL2], start[48]: [chk2], start[48 + C]: [brL2, labL3]}
    if cfg.stamps == 1:
        marks[start[1]] = stamp(3); marks[start[16]] = stamp(4) + stamp(10, True)
    if cfg.stamps == 2:
        for T in range(16 + C, 48 + C): marks.setdefault(start[T], []).append(stamp((T - C) % 16, True, 2)[0])
    if cfg.stamps == 3:
        for T in range(0, min(20, 16 + C - cfg.st3)): marks.setdefault(start[T + cfg.st3], []).insert(0, stamp(T, False, 3)[0])
        pro.insert(1, stamp(20, False, 3)[0])
    for T in range(16): items_loads(T)
    for T in range(NT):
        gen_items(T)
        if T % 16 == C and T > 16: items_rowadv(T)
    curT[0] = -50; items_qjit()
    for base in (16, 32): items_qpf(base)
    for T in range(1, NT + 2): curT[0] = T; items_kwrite(T)
    for T in range(NT):
        if any(islast(T, q) for q in act(T)):
            curT[0] = T + 1000
            items_epilogue(T, marks[start[(T + 1) // 16 * 16 + C]][0])
    BARm[-1].needs = [x.ins for x in kwrites[0]]
    BARm["V0"].needs = list(vdmas[0])
    for T in range(NT):
        if T in BARm: bar_needs(T)
    stream = list(pro)
    Sched(stream).run(bb, items, fixed, marks)
    p = {id(x): k for k, x in enumerate(stream)}
    ref = {(it.T[0] - 16, it.T[1]): p[id(it.ins)] < p[id(brL)] for it in items if it.placed and 32 + C - 2 <= it.T[0] < 48}
    cut = marks[start[16 + C]][0]
    for it in items:
        r = ref.get(it.T)
        if r is True: it.dead = list(it.dead) + [cut]
        elif r is False: it.after.append((labL, 0))
        it.placed = False
    stream = list(pro)
    sc = Sched(stream)
    sc.run(bb, items, fixed, marks)
    p = {id(x): k for k, x in enumerate(stream)}
    iL, iC1, iBr, iL2, iC2, iBr2 = (p[id(x)] for x in (labL, chk1, brL, labL2, chk2, brL2))
    segP = stream[:iL]; segL = stream[iL:iC1 + 1]; segB = stream[iC1 + 1:iBr + 1]
    one, two = stream[iL:iBr + 1], stream[iL2:iBr2 + 1]
    a = [x.text for x in one[1:]]; b = [x.text for x in two[1:]]
    if a != b:
        for k, (x, y) in enumerate(zip(a, b)):
            if x != y: sys.stderr.write(f"loop mismatch at {k}: {x} | {y}\n"); break
        raise SystemExit("loop instances differ")
    mp = {id(y): x for x, y in zip(one, two)}
    for x, y in zip(one, two): x.needs = x.needs + [mp.get(id(z), z) for z in y.needs]
    def keyed(its):
        cnt, out = {}, {}
        for it in its:
            k = (it.T[0], it.ins.text); cnt[k] = cnt.get(k, 0) + 1; out[k + (cnt[k],)] = it
        return out
    old = {k: it for k, it in keyed(items).items() if it.placed and p[id(it.ins)] <= iC2}
    TFIN[0] = 48; TE = 48 + DL
    for d in (QKm, PVm, SMm):
        for k in [k for k in d if k[0] >= 48 and (k[0] >= TE or (k[2] if d is not SMm else 2 * k[1]) not in (2, 3))]: del d[k]
    for T in range(TE - 1 if TE % 2 == 0 else TE, NT + 2): BARm.pop(T, None)
    for j in range(32):
        buf = Kf(0, 0) + 4 * (j % 8)
        VCm[j] = mfma(L(2), buf, buf, j == 0, dk="a")
    tbb = []
    for T in range(48, TE + 1): tbb += backbone_period(T)
    items.clear(); pwriters.clear(); lprev.clear()
    for k in [k for k in unit_free if k[0] == 32]: del unit_free[k]
    for T in range(46, TE): gen_items(T)
    for T in range(48, TE): curT[0] = T; items_kwrite(T)
    endT = I("; end of tail", "label"); endA = I("; group A stored", "label")
    curT[0] = 5000
    if DL: items_epilogue(47, tbb[len(tbb) - 32 - 20])
    items_epilogue(TE - 1, endT)
    va = add(valu(f"v_add_u32 v{vVD}, s{sVC}, v{vKR}", [f"v{vKR}"], [f"v{vVD}"]), dead=[PVm[TE - 1, 2, act(TE - 1)[0]]], tag="vc")
    for j in range(32):
        d = R("a", Kf(0, 0) + 4 * (j % 8), 4)
        lastu = [(QKm[TE - 1, (j % 8) // 4, act(TE - 1)[-1], j % 4], 0)] if j < 8 else [(VCm[j - 8], 0)]
        add(I(f"ds_read_b128 {d}, v{vVD} offset:{j*1024}", "dsr", rd=[f"v{vVD}"], wr=[d]), after=[(va.ins, 0)] + lastu, dead=[VCm[j]], tag="vc", prio=-6)
    alias = {}
    for k, it in keyed(items).items():
        if k in old: alias[id(it.ins)] = old[k].ins; it.ins = old[k].ins; it.placed = True
    tfixed = {id(bar_spot(T)): [BARm[T]] for T in range(48, TE) if T in BARm}
    known = {id(x) for x in stream[:iC2 + 1]} | {id(x) for x in tbb} | {id(it.ins) for it in items} | {id(x) for l_ in tfixed.values() for x in l_}
    for it in items: it.after = [(alias.get(id(a_), a_), d_) for a_, d_ in it.after if id(alias.get(id(a_), a_)) in known]
    for T in range(48, TE):
        if T in BARm: bar_needs(T)
    tstream = stream[:iC2 + 1]
    labT = I("L_tail:", "label")
    tm = {0: [labT]}
    Sched(tstream).run(tbb, items, tfixed, tm, endins=endT)
    segT = tstream[iC2 + 1:]
    assert segT[0] is labT, segT[:3]
    assert all(it.placed for it in items)
    for x in segT: x.needs = [mp.get(id(z), z) for z in x.needs]
    linear = segP + segL + segB + segL + segB + segL + segT
    waits = insert_waits(linear)
    nops = fix_hazards(linear, waits)
    sys.stderr.write(f"instr: P {len(segP)} L {len(segL)} B {len(segB)} T {len(segT)}; waits {len(waits)}; nops {sum(nops.values())} at {len(nops)} sites\n")
    mk = {id(stream[p[id(bb[start[T]])]]): T for T in range(32 + C)}
    mk.update({id(firstm[T]): T for T in range(48, TE + 1)})
    simulate(segP + segL + segB + segL + segT, waits, nops, mk)
    body = render(segP, waits, nops) + render(segL, waits, nops) + render(segB, waits, nops) + render(segT, waits, nops)
    return body

HEADER = open("standalone__mha_softmax__near_ridge.s.ref").read().split("; Override launch")[0]
def main():
    body = build()
    out = HEADER + f"""; One workgroup (4 waves x 512 registers) per (batch, head).  V stays in LDS, K (pre-scaled by log2(e)/sqrt(D))
; stays in registers and is re-published through a small LDS ring; generated by my own scheduling script.
; @launch grid=(256,1,1) block=(256,1,1) lds=163840
.amdgcn_target "amdgcn-amd-amdhsa--gfx950"
.text
.globl {KNAME}
.p2align 8
.type {KNAME},@function
{KNAME}:
""" + "\n".join(body) + "\n" + "\n".join(finale()) + f"""
L_end:
    s_endpgm
.section .rodata,"a"
.p2align 6
.amdhsa_kernel {KNAME}
  .amdhsa_next_free_vgpr 512
  .amdhsa_next_free_sgpr 102
  .amdhsa_accum_offset 256
  .amdhsa_group_segment_fixed_size 0
  .amdhsa_kernarg_size 48
  .amdhsa_user_sgpr_count 2
  .amdhsa_user_sgpr_kernarg_segment_ptr 1
  .amdhsa_system_sgpr_workgroup_id_x 1
.end_amdhsa_kernel
"""
    open(sys.argv[1], "w").write(out)
main()
```

```python
import sys, struct, math
from core import *

class Cfg:
    dmap = "B"
    LK = 5
    LV = 3
    delta = 3
    noswap = True
    busy64 = True
    oflagsFA = "="
    oflagsFB = "="
    wr64 = False
    CUT = 10
    leadT = 11
    ta_slow = 250
    ta_fast = 90
    v0first = False
    dsmargin = 7
    st3 = 0
    jitfirst = True
    tq0 = 2
    tstep = 16
    st0 = 80
    tqstep = 10
    stE = 70
    repf = False
    early0 = True
    e0g = 3
    pf1 = 8
    pf2 = 23
    pf3 = 9
    wbl2 = 0
    wbmask = 0x3e3
    pairst = False
    grow = 0
    stF0 = 20
    stFstep = 12
    jitstep = 2
    qstage = True
    sm0 = True
    tl0 = 6
    tlstep = 5
    wrn = 2
    kdoff = 14
    kstep = 8
    ldslat = 110
    qpf0 = 8
    lead = 0
    qflags = " nt"
    oflags = ""
    kvflags = " nt"
    pfflags = " nt"
    pf_period = 11
    stamps = 0
    spin = 0
    extra = 0
    dbg = -1
    force_fallback = False
    vahead = 2
    codepf = True
cfg = Cfg()
for a in sys.argv[2:]:
    k, v = a.split("=", 1)
    old = getattr(cfg, k)
    setattr(cfg, k, (v == "1") if isinstance(old, bool) else type(old)(v.replace("+", " ")))

KNAME = "standalone__mha_softmax__near_ridge_kernel"
SQ, SK, D = 1312, 512, 128
HEADQ = SQ * D * 2
HEADK = SK * D * 2
RING = 131072
CSCALE = struct.unpack("<I", struct.pack("<f", math.log2(math.e) / math.sqrt(D)))[0]

vO, vP, vS, vVf = 0, 160, 200, 208
vVA = 224
vHI, vLO = 226, 227
vKR, vKW, vQA, vOA, vPF, vIDX, vVD = 228, 229, 230, 231, 232, 233, 234
vT = 235
vKt = [236, 244]; vKx = [252, 253]
vW = [236, 240, 244]
vRI = 248
vL0, vL1, vDUM = 253, 254, 255
aQ, aST, aKf, aL, aSA = 0, 80, 208, 240, 252
def O(qs, b): return vO + 32 * qs + 4 * b
def P(T, qs): return vP + 20 * (T % 2) + 4 * qs
def S(c): return vS + 4 * (c % 2)
def Vf(f): return vVf + 4 * (f % 4)
def Q(qs, s): return aQ + 16 * qs + 4 * s
def Kf(blk, s): return aKf + 16 * blk + 4 * s
def ST(j, e): return aST + 8 * (j % 16) + 4 * e
def L(p): return aL + 4 * p
sQ, sK, sV, sO = 8, 12, 16, 20
sW = 24; sC = 25; sMASK = 26; sFAIL = 27; sBIT = 28; sCNT = 29
sOr = 30
sQn = 35
sKo, sVo, sM0 = 40, 41, 42
sT0, sT1, sT2 = 43, 44, 45
sLO, sRNG = 46, 47
sTS = 48
def off(s): return 64 * s if cfg.dmap == "A" else 128 * (s >> 1) + 16 * (s & 1)
GST = 16 if cfg.dmap == "A" else 32

DL = cfg.delta
TFIN = [1 << 30]
def act(T):
    if T < 0: return []
    if T < 16: return [0, 1, 2, 3, 4]
    if T >= TFIN[0] + DL: return []
    if T >= TFIN[0]: return [2, 3]
    if T < 16 + DL: return [0, 1]
    if DL and T >= 32 and (T % 16 == 0 or T % 16 == DL - 1): return [2, 3, 0, 1]
    return [0, 1, 2, 3]
def n_of(T): return len(act(T))
def phase(qs): return DL if qs in (2, 3) else 0
def isfirst(T, qs): return T == 0 or (T >= 16 and T % 16 == phase(qs))
def islast(T, qs): return T == 15 or (T > 16 + DL and (T + 1) % 16 == phase(qs))
def nextstart(T, qs):
    return 16 + phase(qs) if T == 15 else T + 1

def mfma(d, a, b, zero, dk="v", ak="a", bk="a"):
    D_, A_, B_ = R(dk, d, 4), R(ak, a, 4), R(bk, b, 4)
    return I(f"v_mfma_f32_16x16x32_bf16 {D_}, {A_}, {B_}, {'0' if zero else D_}", "mfma",
             rd=[A_, B_] + ([] if zero else [D_]), wr=[D_], acc=not zero)
def valu(text, rd, wr, kind="valu"): return I(text, kind, rd=rd, wr=wr)
def salu(text, rd=(), wr=()): return I(text, "salu", rd=rd, wr=wr)

class Item:
    __slots__ = ("ins", "after", "dead", "prio", "early", "tag", "placed", "T", "seq", "soft", "doff", "pace", "dabs", "nb")
    def __init__(self, ins, after=(), dead=None, early=None, tag="", prio=0, doff=0, pace=None):
        self.doff = doff; self.pace = pace; self.dabs = None; self.nb = None
        self.ins = ins; self.after = list(after); self.dead = dead; self.early = early
        self.tag = tag; self.prio = prio; self.placed = False

QKm, PVm, SMm, BARm, VCm = {}, {}, {}, {}, {}
def chain(T, g):
    a = act(T)
    if T == 15: return (g % 2, a[g // 2])
    if T == 0 and cfg.sm0: return [(0, 0), (1, 0), (0, 1), (1, 1), (0, 2), (1, 2), (0, 3), (0, 4), (1, 3), (1, 4)][g]
    return (g // len(a), a[g % len(a)])
def mk_step(T):
    for g in range(2 * n_of(T)):
        blk, qs = chain(T, g)
        for s in range(4):
            QKm[T, blk, qs, s] = mfma(S(g), Kf(blk, s), Q(qs, s), s == 0)
    for b in range(8):
        for qs in act(T):
            PVm[T, b, qs] = mfma(O(qs, b), Vf(b), P(T, qs), isfirst(T, qs), ak="v", bk="v")
    for p in pairs(T):
        d, b = R("a", L(p), 4), R("v", P(T, pair_lo(p)), 8)
        SMm[T, p] = I(f"v_smfmac_f32_16x16x64_bf16 {d}, {R('a', aSA, 4)}, {b}, v{vIDX}", "smf",
                      rd=[d, b, R("a", aSA, 4), f"v{vIDX}"], wr=[d], acc=True)
def pair_of(qs): return 2 if qs == 4 else qs // 2
def pairs(T):
    out = []
    for qs in act(T):
        if pair_of(qs) not in out: out.append(pair_of(qs))
    return out
def pair_lo(p): return 3 if p == 2 else 2 * p
def pvlist(T): return [PVm[T, b, qs] for b in range(8) for qs in act(T)]
firstm = {}

def backbone_period(T):
    tail = n_of(T) == 0
    pv = pvlist(T - 2)[-4:] + (pvlist(T - 1) if tail else pvlist(T - 1)[:-4])
    sm = [SMm[T - 1, p] for p in pairs(T - 1)]
    out = []
    if tail:
        out += pv[:6] + sm + pv[6:] + [VCm[j] for j in range(32)]
        for k, m in enumerate(out): m.pref = "T" if (k < 4) else "D"
        firstm[T] = out[0]
        return out
    n = n_of(T); G = 2 * n
    lead = cfg.leadT if T == 16 else cfg.lead if (T > 16 and any(islast(T - 1, q) for q in act(T - 1))) else 0
    if lead:
        nl = 4 * lead
        head = pv[:nl]; pv = pv[nl:]
        if lead >= 2:
            head = head[:4] + [sm[0]] + head[4:8] + sm[1:] + head[8:]
            sm = []
        for k, m in enumerate(head): m.pref = "T" if k < 4 else "D"
        out += head
    if T == 1: cnt = [0] + [4] * (G - 1)
    elif len(pv) < 4 * G and not lead:
        r = len(pv) - 4; cnt = [min(4, len(pv))] + [r // (G - 1) + (1 if g < r % (G - 1) else 0) for g in range(G - 1)] if len(pv) >= 4 else [0] * G
    else:
        cnt = [len(pv) // G + (1 if g < len(pv) % G else 0) for g in range(G)]
    smpos = {}
    if sm:
        early = any(islast(T - 1, q) for q in act(T - 1)) and len(sm) > 1
        spots = [0 if early else 1, G // 2 + 1, G - 2]
        for m, g in zip(sm, spots): smpos.setdefault(min(g, G - 1), []).append(m)
    k = 0
    for g in range(G):
        blk, qs = chain(T, g)
        grp = [QKm[T, blk, qs, s] for s in range(4)] + pv[k:k + cnt[g]]
        k += cnt[g]
        L_ = len(grp)
        for j, m in enumerate(grp):
            m.pref = "T" if (L_ >= 8 and j % 2 == 0 and j < 8) or (L_ < 8 and j in {4: (0, 1, 2, 3), 5: (0, 1, 3, 4), 6: (0, 2, 3, 5), 7: (0, 2, 4, 6)}[L_]) else "D"
        out += grp
        for m in smpos.get(g, []):
            m.pref = "D"; out.append(m)
    firstm[T] = out[0]
    return out

items = []
curT = [-200]
ordn = {}
def add(ins, **kw):
    it = Item(ins, **kw); ordn[curT[0]] = ordn.get(curT[0], 0) + 1; it.T = (curT[0], ordn[curT[0]]); it.seq = len(items); items.append(it); return it

cvts = {}
def items_softmax(T):
    n = n_of(T)
    for g in range(2 * n):
        blk, qs = chain(T, g)
        last = QKm[T, blk, qs, 3]
        if g + 2 < 2 * n: nxt = QKm[(T,) + chain(T, g + 2) + (0,)]
        elif n_of(T + 1): nxt = QKm[(T + 1,) + chain(T + 1, g + 2 - 2 * n) + (0,)]
        else: nxt = None
        use = PVm[T, 0, qs]
        ng = QKm[(T,) + chain(T, g + 1) + (0,)] if g + 1 < 2 * n else firstm[T + 1]
        sms = [SMm[T, p] for p in pairs(T) if pair_lo(p) <= qs <= pair_lo(p) + 1]
        ex = []
        for r in range(4):
            v = f"v{S(g)+r}"
            ex.append(add(valu(f"v_exp_f32 {v}, {v}", [v], [v], "trans"), after=[(last, 8), (ng, 0)] + ([(ex[-1].ins, 0)] if ex else []),
                          dead=[nxt, use], tag="sm"))
        for h in range(2):
            d = f"v{P(T, qs) + 2*blk + h}"; a, b = f"v{S(g)+2*h}", f"v{S(g)+2*h+1}"
            aft = [(ex[2*h].ins, 1), (ex[2*h+1].ins, 1)]
            if qs in act(T - 2): aft.append((PVm[T - 2, 7, qs], 0))
            aft += [(SMm[T - 2, p], 0) for p in pairs(T - 2) if pair_lo(p) <= qs <= pair_lo(p) + 1]
            it = add(valu(f"v_cvt_pk_bf16_f32 {d}, {a}, {b}", [a, b], [d]), after=aft, dead=[nxt, use] + sms, tag="sm")
            pwriters.setdefault((T, P(T, qs)), []).append(it)
pwriters = {}

kreads = {}
def bar_pub(T):
    return BARm[T - 1] if T < 16 else BARm[(T // 2) * 2 - 1]
def items_kread(T):
    n = n_of(T)
    for blk in range(2):
        for s in range(4):
            d = R("a", Kf(blk, s), 4)
            ins = I(f"ds_read_b128 {d}, v{vKR} offset:{(T % 4) * 8192 + (4*blk+s) * 1024}", "dsr", rd=[f"v{vKR}"], wr=[d])
            aft = [(bar_pub(T), 0)]
            if T >= 1: aft.append((QKm[T - 1, blk, act(T - 1)[-1], s], 0))
            dl = [QKm[T, blk, act(T)[0], 0]]
            if blk == 1 and T % 2 == 1 and T != 15 and T in BARm: dl.append(BARm[T])
            kreads[T, blk, s] = add(ins, after=aft, dead=dl, tag="qk", prio=-12)
vreads = {}
vtog = {}
def vbar(T):
    if T == 0: return BARm["V0"]
    return BARm[T]
def vsel(b):
    return ((b >> 1) & 1, b >> 2, 8 * (b & 1)) if cfg.noswap else (b & 3, b >> 2, 0)
NVA = 2 if cfg.noswap else 4
def items_vread(T):
    for b in range(8):
        f = 8 * T + b
        pT, pb = divmod(f - 4, 8)
        aft = []
        if f >= 4: aft.append((PVm[pT, pb, act(pT)[-1]], 0))
        va = cfg.vahead if n_of(T) > 2 else 3
        aT, ab = divmod(f - va - 1, 8)
        if f - va - 1 >= 0: aft.append((PVm[aT, ab, act(aT)[-1]], 0))
        if T < 16: aft.append((vbar(T), 0))
        c, dh, e8 = vsel(b)
        if T % 8 == 0 and T > 0 and dh == 0: aft.append((vtog[T, c].ins, 0))
        prev = None
        for blk in range(2):
            d = R("v", Vf(f) + 2 * blk, 2)
            ins = I(f"ds_read_b64_tr_b16 {d}, v{vVA+c} offset:{dh*32768 + (T % 8)*4096 + blk*2048 + e8}", "dsr",
                    rd=[f"v{vVA+c}"], wr=[d])
            vreads[T, b, blk] = add(ins, after=aft + ([(prev, 0)] if prev else []), dead=[PVm[T, b, act(T)[0]]], tag="v", prio=-12)
            prev = ins
def items_vtoggle(T):
    for c in range(NVA):
        v = f"v{vVA+c}"
        use = [b for b in range(8) if vsel(b)[0] == c]
        vtog[T, c] = add(valu(f"v_xor_b32 {v}, 0x10000, {v}", [v], [v]), after=[(vreads[T - 1, b, 1].ins, 0) for b in use],
                         dead=[PVm[T, use[0], act(T)[0]]], tag="v", prio=-24, doff=cfg.dsmargin + 4)

kwrites = {}
kloads = {}
def busy(T):
    return T < 26 or T >= TFIN[0] or (T % 16) in (2, 3, 4, 5, 6, 7, 8, 9)
def items_kwrite(T):
    m = T // 2
    if T < 16: opn, cls = BARm[max(T - 3, -1)], BARm[T - 1]
    else: opn, cls = BARm[2 * m - 3], BARm[2 * m - 1]
    ws = []
    def wr(src, r, nreg, **kw):
        x = R(src[0], src[1] + r, nreg)
        return add(I(f"ds_write_b{32*nreg} v{vKW}, {x} offset:{(T % 4)*8192 + (r//4)*1024 + (r % 4)*4}", "dsw", rd=[f"v{vKW}", x],
                     cost={1: 8, 2: 12, 4: 26}[nreg]), tag="qk", **kw)
    nr = cfg.wrn
    if T < 16:
        st = vKt[T % 2]
        prev_w = kwrites.get(T - 2)
        done = []
        for r in range(8):
            a = f"a{ST(T, 0) + r}"; x = f"v{st + r}"; t = f"v{vKx[r % 2]}"
            do = (cfg.kdoff + (7 - r) * cfg.kstep) if T >= 2 else 2 + (7 - r)
            kw = dict(dead=[cls], tag="qk", doff=do + 2)
            aft = [(kloads[T][r // 4], 0)]
            if prev_w: aft.append((prev_w[r * len(prev_w) // 8].ins, 0))
            aft.append((mid_of(T - 2) if T >= 3 else QKm[0, 0, 4, 3] if T == 2 else QKm[0, 0, 1, 3], 0))
            i0 = add(valu(f"v_accvgpr_read_b32 {x}, {a}", [a], [x]), after=aft, prio=-5, **kw)
            i1 = add(valu(f"v_lshlrev_b32 {t}, 16, {x}", [x], [t]), after=[(i0.ins, 0)] + ([(chain_prev[r % 2], 0)] if chain_prev[r % 2] else []), prio=-4, **kw)
            i2 = add(valu(f"v_and_b32 {x}, s{sMASK}, {x}", [x, f"s{sMASK}"], [x]), after=[(i1.ins, 0)], prio=-3, **kw)
            i3 = add(valu(f"v_mul_f32 {t}, s{sC}, {t}", [t, f"s{sC}"], [t]), after=[(i1.ins, 0)], prio=-2, **kw)
            i4 = add(valu(f"v_mul_f32 {x}, s{sC}, {x}", [x, f"s{sC}"], [x]), after=[(i2.ins, 0)], prio=-1, **kw)
            i5 = add(valu(f"v_cvt_pk_bf16_f32 {x}, {t}, {x}", [t, x], [x]), after=[(i3.ins, 0), (i4.ins, 0)], prio=0, **kw)
            chain_prev[r % 2] = i5.ins; done.append(i5.ins)
            if r % nr == nr - 1:
                ws.append(wr(("v", st), r - nr + 1, nr, after=[(opn, 0)] + [(x_, 0) for x_ in done[-nr:]], dead=[cls], doff=max(do - 8, 1)))
        rb = []
        for e in range(2):
            d = R("a", ST(T, e), 4)
            ins = I(f"ds_read_b128 {d}, v{vKW} offset:{(T % 4)*8192 + e*1024}", "dsr", rd=[f"v{vKW}"], wr=[d])
            rb.append(add(ins, after=[(w_.ins, 0) for w_ in ws[e * len(ws) // 2:(e + 1) * len(ws) // 2]], dead=[BARm[T]], tag="qk", prio=0))
        readback[T] = rb
    else:
        nw_ = 8 // nr
        for k in range(nw_):
            ws.append(wr(("a", ST(T, 0)), k * nr, nr, after=[(opn, 0)] + ([(ws[-1].ins, 0)] if ws else ([(kwrites[T-1][-1].ins, 0)] if T % 2 else [])),
                         dead=[cls], pace=(opn, ((T % 2) * nw_ + k + 1) / (2.0 * nw_))))
    kwrites[T] = ws
chain_prev = [None, None]
readback = {}
def mid_of(T): return QKm[(T,) + chain(T, n_of(T)) + (0,)]
def bar_spot(T): return QKm[0, 0, 4, 3] if T == 0 else QKm[(T,) + chain(T, n_of(T) - 1) + (3,)]
def start_of(T): return QKm[(T,) + chain(T, 0) + (0,)]

def kload_ins(j):
    out = []
    for e in range(2):
        d = R("a", ST(j, e), 4)
        out.append(I(f"buffer_load_dwordx4 {d}, v{vQA}, s[{sK}:{sK+3}], s{sKo} offen offset:{off(1)*e}{cfg.kvflags}", "vld",
                     rd=[f"v{vQA}", f"s{sKo}", f"s[{sK}:{sK+3}]"], wr=[d]))
    return out
def vdma_ins(j):
    out = []
    for dh in range(2):
        m0 = (j >> 3) * 65536 + dh * (32768 - 128) + (j & 7) * 4096
        out.append((salu(f"s_add_u32 m0, s{sM0}, {m0}", [f"s{sM0}"], ["m0", "scc"]),
                    I(f"buffer_load_dwordx4 v{vVD}, s[{sV}:{sV+3}], s{sVo} offen offset:{128*dh}{cfg.kvflags} lds", "dma",
                      rd=[f"v{vVD}", f"s{sVo}", "m0", f"s[{sV}:{sV+3}]"])))
    return out
vdmas = {}
last_vm = [None]
def add_kload(j, after, dead):
    up = add(salu(f"s_add_u32 s{sKo}, s{sKo}, 8192", [f"s{sKo}"], [f"s{sKo}", "scc"]),
             after=after + ([(last_vm[0], 0)] if last_vm[0] else []), dead=dead, tag="ld", prio=-30)
    ins = kload_ins(j); kloads[j] = ins
    prev = up.ins
    for x in ins:
        add(x, after=[(prev, 0)], dead=dead, tag="ld", prio=-25); prev = x
    last_vm[0] = prev
def add_vdma(j, after, dead):
    prev = last_vm[0]
    if j > 0:
        prev = add(salu(f"s_add_u32 s{sVo}, s{sVo}, 8192", [f"s{sVo}"], [f"s{sVo}", "scc"]),
                   after=after + ([(prev, 0)] if prev else []), dead=dead, tag="ld", prio=-30).ins
    vdmas[j] = []
    for sm0, dm in vdma_ins(j):
        add(sm0, after=after + [(prev, 0)], dead=dead, tag="ld", prio=-28)
        add(dm, after=[(sm0, 1)], dead=dead, tag="ld", prio=-25); prev = dm
        vdmas[j].append(dm)
    last_vm[0] = prev
def items_loads(T):
    if T == 0:
        def spot(g): return QKm[(0,) + chain(0, g) + (0,)], QKm[(0,) + chain(0, g) + (1,)]
        a, d = spot(0)
        prev = last_vm[0]
        for x in q0load(4):
            add(x, after=[(a, 0)] + ([(prev, 1 if x.kind == "dma" else 0)] if prev else []), dead=[d], tag="ld", prio=-50); prev = x
        last_vm[0] = prev
        gs = [2, 4, 6, 7, 8, 9] if cfg.sm0 else [1, 2, 3, 4, 5, 7]
        kj, vj = 2, 0
        while kj <= cfg.LK or vj <= cfg.LV:
            a, d = spot(gs.pop(0) if len(gs) > 1 else gs[0])
            if cfg.v0first and vj <= cfg.LV: add_vdma(vj, [(a, 0)], [d]); vj += 1
            if kj <= cfg.LK: add_kload(kj, [(a, 0)], [d]); kj += 1
            if not cfg.v0first and vj <= cfg.LV: add_vdma(vj, [(a, 0)], [d]); vj += 1
        if cfg.qstage:
            for qs in range(5):
                g0 = [chain(0, g) for g in range(10)].index((0, qs))
                aft = [(QKm[(0,) + chain(0, g0 - 1) + (3,)], 0)] if g0 else []
                for s_ in range(4):
                    d_ = R("a", Q(qs, s_), 4)
                    x = I(f"ds_read_b128 {d_}, v{vQR+s_} offset:{qs*4096}", "dsr", rd=[f"v{vQR+s_}"], wr=[d_], needs=qdmas[qs])
                    x.block = True
                    add(x, after=aft + [(z, 0) for z in qdmas[qs]], dead=[QKm[0, 0, qs, 0]], tag="ld", prio=-100)
        return
    assert cfg.LV <= 3 or not cfg.qstage
    x0, x1 = min(T - 1, cfg.grow), min(T, cfg.grow)
    if x1 > x0 and T + cfg.LV + x0 < 16: add_vdma(T + cfg.LV + x0, [(start_of(T), 0)], [mid_of(T)])
    for j in range(T + cfg.LK + x0, T + cfg.LK + x1 + 1):
        if j < 16: add_kload(j, [(start_of(T), 0)], [start_of(T + 1)])
    if T + cfg.LV + x1 < 16: add_vdma(T + cfg.LV + x1, [(mid_of(T), 0)], [mid_of(T + 1)])

QSTG = 49152
vQD, vQR = 8, 12
sQS = 5
qdmas = {}
def q0load(qs):
    if not cfg.qstage: return qload_ins(qs)
    out = [salu(f"s_add_u32 m0, s{sQS}, {qs*4096}", [f"s{sQS}"], ["m0", "scc"])]
    qdmas[qs] = [I(f"buffer_load_dwordx4 v{vQD+j}, s[{sQ}:{sQ+3}], s{sQn+qs} offen offset:{1024*j}{cfg.qflags} lds", "dma",
                   rd=[f"v{vQD+j}", f"s{sQn+qs}", "m0", f"s[{sQ}:{sQ+3}]"]) for j in range(4)]
    return out + qdmas[qs]
def qload_ins(qs, dst=None):
    out = []
    for s in range(4):
        d = R("a", Q(qs, s), 4) if dst is None else R(dst[s][0], dst[s][1], 4)
        out.append(I(f"buffer_load_dwordx4 {d}, v{vQA}, s[{sQ}:{sQ+3}], s{sQn+qs} offen offset:{off(s)}{cfg.qflags}", "vld",
                     rd=[f"v{vQA}", f"s{sQn+qs}", f"s[{sQ}:{sQ+3}]"], wr=[d]))
    return out
def items_qjit():
    prev = None
    if cfg.early0:
        buf = [("v", 236 + 4 * k) for k in range(4)]
        for s_, ins in enumerate(qload_ins(0, buf)):
            it = add(ins, after=[(x.ins, 0) for t in (14, 15) for x in kwrites[t]] + ([(prev, 0)] if prev else []), dead=[start_of(15)], tag="qj", prio=-400)
            prev = ins
            for r in range(4):
                d, a_ = f"a{Q(0, s_) + r}", f"v{236 + 4 * s_ + r}"
                c = add(valu(f"v_accvgpr_write_b32 {d}, {a_}", [a_], [d]), after=[(QKm[15, 1, 0, s_], 0), (QKm[15, 0, cfg.e0g, 0], 0)], dead=[firstm[16]], tag="qc", prio=-3)
                early_done.append((c.ins, 0))
    for qs in range(1 if cfg.early0 else 0, 4):
        for s_, ins in enumerate(qload_ins(qs)):
            T1 = nextstart(15, qs)
            dl = [QKm[T1, 0, qs, 0]] + ([firstm[16]] if T1 == 16 and cfg.jitfirst else [])
            it = add(ins, after=[(QKm[15, 1, qs, s_], 0)] + ([(prev, 0)] if prev else []), dead=dl, tag="qj", prio=-400)
            if T1 > 16: qjit_b.append(it)
            elif cfg.jitstep: it.dabs = (QKm[15, 1, qs, 3], 1 + cfg.jitstep * s_)
            prev = ins
qjit_b = []
early_done = []
UNITS = [O(4, b) for b in range(8)] + [P(0, 4), P(1, 4), 236, 240, 244]
QBUF = {(qs, s_): ("v", UNITS[4 * qs + s_]) for qs in range(3) for s_ in range(4)}
QBUF.update({(3, s_): ("a", Q(4, s_)) for s_ in range(4)})
unit_free = {}
def items_qpf(base):
    prev = None
    for qs in range(4):
        T = base + 15 + phase(qs)
        lds_ = qload_ins(qs, [QBUF[qs, s_] for s_ in range(4)])
        for s_, ins in enumerate(lds_):
            k = 4 * qs + s_
            curT[0] = base + cfg.CUT
            add(ins, after=[(rowadv_done[base], 0)] + ([(prev, 0)] if prev else []),
                dead=[start_of(base + 14) if qs < 2 else firstm[base + 16]], tag="qp", prio=-200 + k)
            prev = ins
            kind, r0 = QBUF[qs, s_]
            curT[0] = T
            if (T, 1, qs, s_) not in QKm or (T + 1, 0, qs, s_) not in QKm: continue
            for r in range(4):
                d, a_ = f"a{Q(qs, s_) + r}", f"{kind}{r0 + r}"
                op = "v_accvgpr_write_b32" if kind == "v" else "v_accvgpr_mov_b32"
                c = add(valu(f"{op} {d}, {a_}", [a_], [d]), after=[(QKm[T, 1, qs, s_], 0)], dead=[QKm[T + 1, 0, qs, s_]], tag="qc", prio=-3)
                if kind == "v": unit_free.setdefault((base, r0), []).append((c.ins, 0))
rowadv_done = {}
def items_codepf(T, label):
    t = f"v{vDUM}"
    a = add(salu(f"s_lshl_b32 s{sT2}, s{sW}, 13\n    s_add_u32 s{sT2}, s{sT2}, {label} - L_pf - {RING * 8}", [], [f"s{sT2}", "scc"]), after=[(start_of(T), 0)], dead=[mid_of(T)], tag="pf")
    a.ins.cost = 8
    b = add(valu(f"v_lshl_add_u32 {t}, v{vKR}, 3, s{sT2}", [f"v{vKR}", f"s{sT2}"], [t]), after=[(a.ins, 0)], dead=[mid_of(T)], tag="pf")
    c = add(valu(f"v_min_u32 {t}, L_end - L_pf, {t}", [t], [t]), after=[(b.ins, 0)], dead=[mid_of(T)], tag="pf")
    x = I(f"global_load_dword v{vDUM}, {t}, s[50:51]", "vld", rd=[t], wr=[f"v{vDUM}"]); x.nowait = True
    add(x, after=[(c.ins, 0)], dead=[start_of(T + 1)], tag="pf")
def items_rowadv(T):
    for qs in range(4):
        a = add(salu(f"s_add_u32 s{sOr+qs}, s{sOr+qs}, {'s3' if cfg.extra else 65536}", [f"s{sOr+qs}"], [f"s{sOr+qs}", "scc"]), after=[(start_of(T), 0)], dead=[mid_of(T)], tag="adv", prio=0)
        b = add(salu(f"s_add_u32 s{sQn+qs}, s{sOr+qs}, {'s4' if cfg.extra else 65536}" + ("\n    s_mov_b32 s3, s4\n    s_cmp_le_u32 s%d, 5\n    s_cselect_b32 s4, 0x10000, 0" % sCNT if cfg.extra and qs == 3 else ""), [f"s{sOr+qs}"], [f"s{sQn+qs}", "scc"]),
                after=[(a.ins, 0)] + ([(rowadv_done[T - T % 16], 0)] if qs else []), dead=[mid_of(T)], tag="adv", prio=0)
        rowadv_done[T - T % 16] = b.ins

lprev = []
def items_epilogue(T, endins):
    slots = sorted(q for q in act(T) if islast(T, q))
    base = (T + 1) // 16 * 16 - 16
    ri = {}
    def over(b, qs):
        T1 = nextstart(T, qs)
        return PVm[T1, b, qs] if qs in act(T1) and qs != 4 else endins
    xs = []
    for qs in slots:
        p = pair_of(qs); h = 1 if qs == 4 else qs % 2
        la, lb = f"a{L(p) + 2*h}", f"a{L(p) + 2*h + 1}"
        x, y, r = f"v{vL0 if qs % 2 == 0 else vPF}", f"v{vL1}", f"v{vRI+qs}"
        kw = dict(dead=[over(0, qs), endins], tag="ep", prio=-400)
        pa = [(z, 0) for z in lprev]
        i0 = add(valu(f"v_accvgpr_read_b32 {x}, {la}", [la], [x]), after=[(SMm[T, p], 12)] + pa, **kw)
        i1 = add(valu(f"v_accvgpr_read_b32 {y}, {lb}", [lb], [y]), after=[(SMm[T, p], 12)] + pa, **kw)
        i2 = add(valu(f"v_add_f32 {x}, {x}, {y}", [x, y], [x]), after=[(i0.ins, 0), (i1.ins, 0)], **kw)
        i3 = add(valu(f"v_rcp_f32 {r}, {x}", [x], [r], "trans"), after=[(i2.ins, 0)], **kw)
        ri[qs] = i3.ins; xs.append((x, i2.ins, i3.ins))
        lprev[:] = [i2.ins]
        if qs % 2 == 1 or qs == 4:
            src = ", ".join(z[0] for z in xs); nm = "3" if len(xs) == 2 else ""
            kw = dict(dead=[endins], tag="ep", prio=-300)
            c1 = add(valu(f"v_max{nm}_u32 v{vHI}, v{vHI}, {src}", [f"v{vHI}"] + [z[0] for z in xs], [f"v{vHI}"]), after=[(z[1], 0) for z in xs], **kw)
            c2 = add(valu(f"v_min{nm}_u32 v{vLO}, v{vLO}, {src}", [f"v{vLO}"] + [z[0] for z in xs], [f"v{vLO}"]), after=[(z[1], 0) for z in xs], **kw)
            lprev[:] = [c1.ins, c2.ins] + [z[2] for z in xs]; xs = []
        T1 = nextstart(T, qs)
        if qs in act(T1) and qs != 4:
            for reg in (la, lb):
                add(valu(f"v_accvgpr_write_b32 {reg}, 0", [], [reg]), after=[(i0.ins, 0), (i1.ins, 0)], dead=[SMm[T1, p], endins], tag="ep", prio=0)
    if T == 15:
        def pfree(t, q): return [(PVm[t, 7, q], 0)] + [(SMm[t, p], 0) for p in pairs(t) if pair_lo(p) <= q <= pair_lo(p) + 1]
        pool = [(u, []) for u in (236, 240, 244)] + [(P(14, q), pfree(14, q)) for q in ((4, 2, 3) if DL else (4,))]
        if DL: pool += [(P(15, q), pfree(15, q)) for q in (2, 3)]
    elif slots[0] == 0: pool = [(u, unit_free.get((base, u), [])) for u in (UNITS[:8] if DL else UNITS[-1:] + UNITS[:-1])]
    else: pool = [(u, unit_free.get((base, u), [])) for u in UNITS[12:] + UNITS[8:12] + UNITS[:8]]
    inplace = [q for q in slots if (q == 4 or (T == 15 and phase(q)))] if not endins.text.startswith("; end") else slots
    def seq(sl):
        if cfg.pairst: return [(2 * pp + e, qs) for pp in range(2) for qs in sl for e in range(2)]
        return [(pb, qs) for pb in range(4) for qs in sl]
    order = seq([q for q in slots if q not in inplace]) + seq(inplace)
    sts = []
    ofl = cfg.oflags
    if T >= TFIN[0] - 1:
        f_ = cfg.oflagsFA if slots[0] == 0 else cfg.oflagsFB
        if f_ != "=": ofl = f_
    for k, (pb, qs) in enumerate(order):
        inp = qs in inplace
        w, wa = (O(qs, 2 * pb), []) if inp else pool.pop(0)
        cv = []
        for e in range(2):
            b = 2 * pb + e
            kw = dict(dead=[over(2 * pb if inp else b, qs), endins], tag="ep", prio=(-200 + 4 * k) if inp else 0)
            ms = []
            for r in range(4):
                v = f"v{O(qs, b) + r}"
                ms.append(add(valu(f"v_mul_f32 {v}, {v}, v{vRI+qs}", [v, f"v{vRI+qs}"], [v]), after=[(PVm[T, b, qs], 8), (ri[qs], 1)], **kw))
            for h in range(2):
                d = f"v{w + 2*e + h}"; a_, b_ = f"v{O(qs, b) + 2*h}", f"v{O(qs, b) + 2*h + 1}"
                aft = [(ms[2*h].ins, 0), (ms[2*h+1].ins, 0)] + wa + ([(cv[-1].ins, 0)] if (inp and cv) else [])
                cv.append(add(valu(f"v_cvt_pk_bf16_f32 {d}, {a_}, {b_}", [a_, b_], [d]), after=aft, **kw))
        kw = dict(dead=[over(2 * pb, qs) if inp else endins, endins], tag="ep", prio=-300 + 8 * k)
        sw = []
        for h in range(0 if cfg.noswap else 2):
            x, y = f"v{w + h}", f"v{w + 2 + h}"
            sw.append(add(valu(f"v_permlane16_swap_b32 {x}, {y}", [x, y], [x, y], "perm"), after=[(cv[h].ins, 2), (cv[2 + h].ins, 2)], **kw))
        st = I(f"buffer_store_dwordx4 {R('v', w, 4)}, v{vOA}, s[{sO}:{sO+3}], s{sOr+qs} offen offset:{64*pb}{ofl}", "vst",
               rd=[R("v", w, 4), f"v{vOA}", f"s{sOr+qs}", f"s[{sO}:{sO+3}]"])
        sts.append((add(st, after=[(z.ins, 0) for z in (sw or cv)], **kw), w, inp, pb, qs))
        if not inp:
            pool.append((w, [(st, 2)])); unit_free[base, w] = [(st, 2)]
            for t in range(T + 1, T + 8):
                for it in pwriters.get((t, w), []): it.after.append((st, 2))

    if T == 15 and DL:
        rank = {P(14, 2): 0, P(14, 3): 1, P(15, 2): 4, P(15, 3): 5}
        def key(x):
            it, w, inp, pb, qs = x
            if not inp: return rank.get(w, 100)
            return 200 + pb if qs == 4 else (2 if pb == 0 else 4 + 2 * pb) + qs - 2
        srt = sorted(sts, key=key)
        if cfg.pairst:
            out_ = []
            for x in srt:
                if x not in out_: out_ += sorted([y for y in sts if y[4] == x[4] and y[3] // 2 == x[3] // 2], key=lambda y: y[3])
            srt = out_
        sq = qjit_b + [x[0] for x in srt]
        for k, it in enumerate(sq):
            it.dabs = (firstm[16], cfg.tq0 + cfg.tqstep * min(k, 8) + cfg.tstep * max(k - 8, 0)); it.prio = -1000 + k
    elif not endins.text.startswith("; end"):
        f_ = T >= TFIN[0] - 1
        if cfg.stE and not f_:
            for k, x in enumerate(sts): x[0].nb = (PVm[T, 1, act(T)[-1]], cfg.stE + cfg.tstep * k)
        for k, x in enumerate(sts): x[0].dabs = (PVm[T, 1, act(T)[-1]], (cfg.stF0 if f_ else cfg.st0) + (cfg.stFstep if f_ else cfg.tstep) * (k | 1 if cfg.pairst else k))
    else:
        for k, x in enumerate(sts): x[0].dabs = (PVm[T, 1, act(T)[-1]], cfg.tl0 + cfg.tlstep * (k | 1 if cfg.pairst else k))

    if cfg.pairst:
        for x in sts:
            if x[3] % 2 == 0:
                y = [z for z in sts if z[4] == x[4] and z[3] == x[3] + 1][0]
                x[0].after += list(y[0].after); y[0].after.append((x[0].ins, 0)); glue[id(x[0].ins)] = y[0]
glue = {}

class Sched:
    def __init__(self, stream):
        self.stream = stream
        self.pos = {id(x): k for k, x in enumerate(stream)}
        self.over = 0
        self.cyc = 0; self.ta = 0; self.log = []
    def run(self, bb, its, fixed_after, marks=None, endins=None):
        stream, pos = self.stream, self.pos
        idx = {id(m): j for j, m in enumerate(bb)}
        for mid, lst in fixed_after.items():
            if mid in idx:
                for f in lst: idx[id(f)] = idx[mid]
        for j, lst in (marks or {}).items():
            for f in lst: idx[id(f)] = j
        if endins is not None: idx[id(endins)] = len(bb)
        waiting, act, bydead = {}, [], {}
        byins = {id(it.ins): it for it in its if not it.placed}
        lbm = {}
        def lb(it):
            if id(it) not in lbm:
                v = 0
                for a, _ in it.after:
                    if id(a) in pos: continue
                    if id(a) in idx: v = max(v, idx[id(a)] + 1)
                    elif id(a) in byins: v = max(v, lb(byins[id(a)]))
                lbm[id(it)] = v
            return lbm[id(it)]
        sys.setrecursionlimit(100000)
        for it in its:
            if it.placed: continue
            d = min([idx[id(x)] for x in it.dead if x is not None and id(x) in idx] or [1 << 30])
            if it.dabs and id(it.dabs[0]) in idx: d = min(d, max(idx[id(it.dabs[0])] + it.dabs[1], lb(it) + 1))
            if it.doff: d = max(d - it.doff, min(d, lb(it) + 1))
            it.early = d + it.prio
            it.soft = d - (cfg.dsmargin if it.ins.kind in LGKM else -(1 << 20))
            if it.pace and id(it.pace[0]) in idx and d < (1 << 29):
                o_ = idx[id(it.pace[0])]
                it.soft = int(o_ + it.pace[1] * (d - cfg.dsmargin - o_)); it.early = it.soft + 4
            bydead.setdefault(d, []).append(it)
            w = {id(a) for a, _ in it.after if id(a) not in pos}
            nw[id(it)] = len(w)
            for a in w: waiting.setdefault(a, []).append(it)
            if not w: act.append(it)
        st = {"budget": 8, "first": True, "valu": False, "mem": False}
        def emit(x):
            pos[id(x)] = len(stream); stream.append(x)
            for it in waiting.pop(id(x), []):
                nw[id(it)] -= 1
                if nw[id(it)] == 0: act.append(it)
        def ready(it):
            n = len(stream)
            return all(n - pos[id(a)] - 1 >= dist for a, dist in it.after)
        def place(it):
            if it.ins.block:
                while True:
                    a = cands(lambda x: not x.ins.block and x.ins.kind in VALU + LGKM)
                    if not a: break
                    place(a[0])
            c = it.ins.cost; kd = it.ins.kind
            if kd == "salu" and st["first"]: c -= 4
            if kd in LGKM + VM and st["valu"]: c += 8
            elif kd in LGKM + VM and st["mem"]: c += 4
            if kd in LGKM + VM: st["mem"] = True
            if kd in VALU: st["valu"] = True
            act.remove(it); it.placed = True
            if kd in VM:
                now = self.cyc + 8 + (8 - st["budget"])
                self.ta = (max(self.ta, now) if now < self.ta + 1 and it.tag != "ld" else now) + (cfg.ta_fast if kd == "dma" else cfg.ta_slow)
            emit(it.ins); st["budget"] -= c; st["first"] = False
            g_ = glue.get(id(it.ins))
            if g_ is not None and not g_.placed: place(g_)
        def cands(pred):
            return sorted([it for it in act if pred(it) and ready(it)], key=lambda x: (x.early, x.seq))
        def force(limit):
            while True:
                due = [it for d in list(bydead) if d <= limit for it in bydead[d] if not it.placed]
                for d in [d for d in bydead if d <= limit]:
                    bydead[d] = [it for it in bydead[d] if not it.placed]
                    if not bydead[d]: del bydead[d]
                if not due: return
                stack = list(due); seen = set(); need = []
                while stack:
                    it = stack.pop()
                    if id(it) in seen: continue
                    seen.add(id(it)); need.append(it)
                    for a_, _ in it.after:
                        o = byins.get(id(a_))
                        if o is not None and not o.placed: stack.append(o)
                av = [it for it in need if nw[id(it)] == 0]
                if not av:
                    raise RuntimeError("deadlock: " + "; ".join(it.ins.text + " AFTER " + str([a for a, _ in it.after if id(a) not in pos]) for it in need[:6]))
                rs = [it for it in av if ready(it)]
                if not rs:
                    rs = cands(lambda x: x.ins.kind in VALU)[:1] or av
                rs.sort(key=lambda x: (0 if (x.ins.kind in LGKM + VM and not st["valu"]) else 1, x.early, x.seq))
                place(rs[0])
        force(0)
        for k, m in enumerate(bb):
            for f in (marks or {}).get(k, []): emit(f)
            emit(m)
            st.update(budget=8, first=True, valu=False, mem=False)
            for f in fixed_after.get(id(m), []):
                emit(f); st["first"] = False
            c = cands(lambda x: x.ins.kind == "salu")
            if c and st["first"] and k + 1 < len(bb) and not getattr(cfg, "nosalu", False): place(c[0])
            vmok = lambda x: x.ins.kind in VM and (x.nb is None or idx.get(id(x.nb[0]), -1000) + x.nb[1] <= k)
            vm = cands(vmok) if (self.ta <= self.cyc and m.pref != "T") else []
            urgent = cands(lambda x: x.soft <= (k - 2 if vm else k + 1))
            if urgent: place(min(urgent, key=lambda x: (x.soft, x.seq)))
            tr = cands(lambda x: x.ins.kind == "trans")
            if m.pref == "T" and tr and st["budget"] >= (4 if urgent else 8):
                place(tr[0])
            else:
                if not urgent and st["budget"] >= 4:
                    if not vm and self.ta <= self.cyc: vm = cands(vmok)
                    mem = vm or cands(lambda x: x.ins.kind in LGKM)
                    if mem and not vm:
                        rd_ = [x for x in mem if x.ins.kind == "dsr"]; wr_ = [x for x in mem if x.ins.kind == "dsw"]
                        if cands(lambda x: x.ins.kind in ("valu", "perm")): mem = rd_
                        elif wr_ and not (rd_ and rd_[0].soft <= k + 3): mem = wr_
                    if mem: place(mem[0])
                while st["budget"] >= 4:
                    a = cands(lambda x: x.ins.kind in ("valu", "perm") or (x.ins.kind == "trans" and st["budget"] >= 8))
                    if not a: break
                    place(a[0])
            force(k + 1)
            if st["budget"] < 0: self.over -= st["budget"]
            self.cyc += max(16, 16 - st["budget"])
            self.log.append(self.cyc)
        if endins is not None: force(1 << 29)
nw = {}

sVC = 49
sTSB = 60
def stamp(k, cyc=False, mode=1):
    if cfg.stamps != mode: return []
    r = sTSB + 2 * k
    return [I(f"s_mem{'time' if cyc else 'realtime'} s[{r}:{r+1}]", "salu", wr=[f"s[{r}:{r+1}]"])]

def V(text, rd, wr, kind="valu"): return I(text, kind, rd=rd, wr=wr)
def prologue():
    o = []
    o.append(I("s_cmp_ge_u32 s2, 256\n    s_cbranch_scc1 L_end", "br"))
    o += stamp(0) + stamp(1, True) + stamp(0, False, 4) + stamp(1, True, 4)
    if cfg.spin: o.append(salu("s_memrealtime s[98:99]"))
    o.append(salu("s_load_dwordx8 s[52:59], s[0:1], 0"))
    l, t, u, g = "v1", "v2", "v3", "v4"
    o += [V(f"v_lshrrev_b32 {t}, 6, v0", ["v0"], [t]),
          V(f"v_and_b32 {l}, 63, v0", ["v0"], [l]),
          V(f"v_readfirstlane_b32 s{sW}, {t}", [t], [f"s{sW}"]),
          V(f"v_lshrrev_b32 {g}, 4, {l}", [l], [g]),
          V(f"v_and_b32 {t}, 15, {l}", [l], [t]),
          V(f"v_lshlrev_b32 {t}, 8, {t}", [t], [t]),
          V(f"v_mul_u32_u24 {u}, {GST}, {g}", [g], [u]),
          V(f"v_add_u32 v{vQA}, {t}, {u}", [t, u], [f"v{vQA}"]),
          ]
    if cfg.noswap:
        o += [V(f"v_lshl_add_u32 v{vOA}, {g}, 4, {t}", [g, t], [f"v{vOA}"]),
              V(f"v_and_b32 {u}, 1, {g}", [g], [u]),
              V(f"v_lshlrev_b32 {u}, 2, {u}", [u], [u]),
              V(f"v_xor_b32 {u}, {u}, {l}", [u, l], [u]),
              V(f"v_and_b32 {u}, 7, {u}", [u], [u]),
              V(f"v_lshrrev_b32 {t}, 3, {l}", [l], [t]),
              V(f"v_lshlrev_b32 {t}, 8, {t}", [t], [t]),
              V(f"v_lshl_add_u32 v{vVD}, {u}, 4, {t}", [u, t], [f"v{vVD}"])]
    else:
        o += [
          V(f"v_and_b32 {u}, 1, {g}", [g], [u]),
          V(f"v_lshl_add_u32 {t}, {u}, 5, {t}", [u, t], [t]),
          V(f"v_lshrrev_b32 {u}, 1, {g}", [g], [u]),
          V(f"v_lshl_add_u32 v{vOA}, {u}, 4, {t}", [u, t], [f"v{vOA}"]),
          V(f"v_bfe_u32 {t}, {l}, 1, 2", [l], [t]),
          V(f"v_xor_b32 {t}, {t}, {g}", [t, g], [t]),
          V(f"v_lshlrev_b32 {t}, 5, {t}", [t], [t]),
          V(f"v_lshrrev_b32 {u}, 3, {l}", [l], [u]),
          V(f"v_lshl_add_u32 {t}, {u}, 8, {t}", [u, t], [t]),
          V(f"v_and_b32 {u}, 1, {l}", [l], [u]),
          V(f"v_lshl_add_u32 v{vVD}, {u}, 4, {t}", [u, t], [f"v{vVD}"]),
          ]
    if cfg.qstage:
        o += [V(f"v_and_b32 {t}, 15, {l}", [l], [t]),
              V(f"v_xor_b32 {u}, {t}, {g}", [t, g], [u]),
              V(f"v_lshlrev_b32 {u}, 4, {u}", [u], [u]),
              V(f"v_lshl_add_u32 v{vQD}, {g}, 8, {u}", [g, u], [f"v{vQD}"])]
        o += [V(f"v_xor_b32 v{vQD+j}, {64*j}, v{vQD}", [f"v{vQD}"], [f"v{vQD+j}"]) for j in range(1, 4)]
        o += [salu(f"s_mul_i32 s{sQS}, s{sW}, 20480", [f"s{sW}"], [f"s{sQS}"]), salu(f"s_add_u32 s{sQS}, s{sQS}, {QSTG}")]
        stage2 = [V(f"v_and_b32 {t}, 15, {l}", [l], [t]),
              V(f"v_mul_u32_u24 {u}, {GST // 16}, {g}", [g], [u]),
              V(f"v_xor_b32 {u}, {u}, {t}", [u, t], [u]),
              V(f"v_lshlrev_b32 {u}, 4, {u}", [u], [u]),
              V(f"v_lshl_add_u32 {u}, {t}, 8, {u}", [t, u], [u])]
        stage2 += [V(f"v_xor_b32 v{vQR+k}, {off(k)}, {u}", [u], [f"v{vQR+k}"]) for k in range(4)]
        stage2 += [V(f"v_add_u32 v{vQR+k}, s{sQS}, v{vQR+k}", [f"v{vQR+k}"], [f"v{vQR+k}"]) for k in range(4)]
    o += [salu(f"s_mul_i32 s{sT0}, s2, {HEADQ}", [], [f"s{sT0}"]),
          salu(f"s_lshl_b32 s{sT1}, s2, 17", [], [f"s{sT1}"]),
          salu(f"s_lshl_b32 s{sM0}, s{sW}, 10", [f"s{sW}"], [f"s{sM0}"]),
          salu(f"s_lshl_b32 s{sVo}, s{sW}, 11", [f"s{sW}"], [f"s{sVo}"]),
          salu(f"s_lshr_b32 s{sKo}, s{sW}, 1", [f"s{sW}"], [f"s{sKo}"]),
          salu(f"s_lshl_b32 s{sKo}, s{sKo}, 12"),
          salu(f"s_and_b32 s{sT2}, s{sW}, 1"),
          salu(f"s_lshl_b32 s{sT2}, s{sT2}, 7"),
          salu(f"s_add_u32 s{sKo}, s{sKo}, s{sT2}"),
          salu(f"s_lshl_b32 s{sOr}, s{sW}, 14"),
          salu(f"s_add_u32 s{sOr+1}, s{sOr}, 4096"),
          salu(f"s_add_u32 s{sOr+2}, s{sOr}, 8192"),
          salu(f"s_add_u32 s{sOr+3}, s{sOr}, 12288"),
          salu(f"s_lshl_b32 s{sOr+4}, s{sW}, 12"),
          salu(f"s_add_u32 s{sOr+4}, s{sOr+4}, {1280*256}"),
          ]
    o += [salu(f"s_mov_b32 s{sQn+k}, s{sOr+k}") for k in range(5)]
    o.append(I("s_waitcnt lgkmcnt(0)", "wait"))
    for srd, p, so, size in ((sK, 54, sT1, HEADK), (sQ, 52, sT0, HEADQ), (sV, 56, sT1, HEADK), (sO, 58, sT0, HEADQ)):
        o += [salu(f"s_add_u32 s{srd}, s{p}, s{so}"), salu(f"s_addc_u32 s{srd+1}, s{p+1}, 0"),
              salu(f"s_mov_b32 s{srd+2}, {size}"), salu(f"s_mov_b32 s{srd+3}, 0x20000")]
    kloads[0] = kload_ins(0); kloads[1] = kload_ins(1)
    k1 = [salu(f"s_add_u32 s{sKo}, s{sKo}, 8192")] + kloads[1]
    if cfg.qstage:
        o += kloads[0] + q0load(0) + q0load(1) + k1
        later = [[], q0load(2), q0load(3)]
    else:
        o += kloads[0] + qload_ins(0) + qload_ins(1)[:2]
        later = [qload_ins(1)[2:] + k1, qload_ins(2), qload_ins(3)]
    if cfg.codepf:
        o.append(I(f"s_getpc_b64 s[50:51]\nL_pf:\n    s_lshr_b32 s{sT2}, s2, 3\n    s_lshl_b32 s{sT2}, s{sT2}, 11", "salu"))
        o.append(V(f"v_lshl_add_u32 v5, {l}, 5, s{sT2}", [l], ["v5"]))
        o.append(V("v_min_u32 v5, L_end - L_pf, v5", ["v5"], ["v5"]))
        x = I(f"global_load_dword v{vDUM}, v5, s[50:51]", "vld", rd=["v5"], wr=[f"v{vDUM}"]); x.nowait = True
        o.append(x)
    o += [salu(f"s_mov_b32 s{sC}, {CSCALE:#x}"), salu(f"s_mov_b32 s{sMASK}, 0xffff0000"),
          salu(f"s_mov_b32 s{sFAIL}, {0x1fffff if cfg.force_fallback else 0}"), salu(f"s_mov_b32 s{sCNT}, {4 + cfg.extra}"), salu("s_mov_b32 s3, 0x10000"), salu("s_mov_b32 s4, 0"),
          salu(f"s_lshl_b32 s{sVC}, s{sW}, 15"), salu(f"s_sub_u32 s{sVC}, s{sVC}, {RING}"),
          salu(f"s_lshl_b32 s{sT2}, s{sW}, 11")]
    o += [V(f"v_lshlrev_b32 {t}, 4, {l}", [l], [t]),
          V(f"v_add_u32 v{vKR}, {RING}, {t}", [t], [f"v{vKR}"]),
          V(f"v_add_u32 v{vKW}, s{sT2}, v{vKR}", [f"v{vKR}"], [f"v{vKW}"]),
          V(f"v_lshrrev_b32 {t}, 2, {l}", [l], [t]),
          V(f"v_lshlrev_b32 {t}, 7, {t}", [t], [t]),
          V(f"v_and_b32 {u}, 3, {l}", [l], [u])]
    assert cfg.noswap
    o += [V(f"v_lshl_add_u32 {t}, {u}, 4, {t}", [u, t], [t]),
          V(f"v_bfe_u32 {u}, {l}, 3, 1", [l], [u]),
          V(f"v_lshl_add_u32 v{vVA}, {u}, 6, {t}", [u, t], [f"v{vVA}"]),
          V(f"v_xor_b32 v{vVA+1}, 64, v{vVA}", [f"v{vVA}"], [f"v{vVA+1}"]),
          V(f"v_mov_b32 v{vHI}, 0", [], [f"v{vHI}"]), V(f"v_mov_b32 v{vLO}, -1", [], [f"v{vLO}"])]
    o += [V(f"v_lshrrev_b32 {t}, 4, {l}", [l], [t]),
          V(f"v_xor_b32 {t}, {t}, {l}", [t, l], [t]),
          V(f"v_bfe_u32 {t}, {t}, 1, 1", [t], [t]),
          V(f"v_add_u32 {t}, -1, {t}", [t], [t]),
          V(f"v_and_b32 {t}, 0x3f803f80, {t}", [t], [t])]
    o += [V(f"v_accvgpr_write_b32 a{aSA+k}, {t}", [t], [f"a{aSA+k}"]) for k in range(4)]
    o += [V(f"v_and_b32 {u}, 1, {l}", [l], [u]),
          V(f"v_mul_u32_u24 {u}, 0xaaaa, {u}", [u], [u]),
          V(f"v_add_u32 v{vIDX}, 0x4444, {u}", [u], [f"v{vIDX}"])]
    o += [V(f"v_accvgpr_write_b32 a{aL+k}, 0", [], [f"a{aL+k}"]) for k in range(12)]
    if cfg.qstage: o += stage2
    o += later[0]
    for T in range(1):
        st = vKt[T]; ws = []
        for r in range(8):
            a = f"a{ST(T, 0) + r}"; x = f"v{st + r}"; tt = f"v{vKx[r % 2]}"
            o += [V(f"v_accvgpr_read_b32 {x}, {a}", [a], [x]),
                  V(f"v_lshlrev_b32 {tt}, 16, {x}", [x], [tt]),
                  V(f"v_and_b32 {x}, s{sMASK}, {x}", [x], [x]),
                  V(f"v_mul_f32 {tt}, s{sC}, {tt}", [tt], [tt]),
                  V(f"v_mul_f32 {x}, s{sC}, {x}", [x], [x]),
                  V(f"v_cvt_pk_bf16_f32 {x}, {tt}, {x}", [tt, x], [x])]
        for e in range(2):
            w = I(f"ds_write_b128 v{vKW}, {R('v', st + 4*e, 4)} offset:{T*8192 + e*1024}", "dsw", rd=[f"v{vKW}", R('v', st + 4*e, 4)])
            o.append(w); ws += [Item(w)] * 4
        rb = []
        for e in range(2):
            d = R("a", ST(T, e), 4)
            x = I(f"ds_read_b128 {d}, v{vKW} offset:{T*8192 + e*1024}", "dsr", rd=[f"v{vKW}"], wr=[d])
            o.append(x); rb.append(Item(x))
        kwrites[T] = ws; readback[T] = rb
    o += later[1]
    pro_tail.extend(later[2] + [salu(f"s_add_u32 s{sQn+k}, s{sOr+k}, 65536") for k in range(4)])
    return o
pro_tail = []

def finale():
    a = L(2)
    t = []
    t.append("    s_nop 7\n    s_nop 3")
    t += [f"    v_accvgpr_read_b32 v{k}, a{a+k}" for k in range(4)]
    t += [f"    v_and_b32 v{k}, 0x7fffffff, v{k}" for k in range(4)]
    t += ["    v_max_u32 v0, v0, v1", "    v_max3_u32 v0, v0, v2, v3",
          "    v_cmp_le_u32 vcc, 0x5d800000, v0",
          "    s_nop 1",
          "    s_cmp_lg_u64 vcc, 0",
          f"    s_cselect_b32 s{sT0}, 1, 0",
          f"    v_cmp_lt_u32 vcc, 0x6f800000, v{vHI}",
          f"    v_cmp_gt_u32 s[6:7], 1.0, v{vLO}",
          "    s_nop 1",
          "    s_or_b64 vcc, vcc, s[6:7]",
          f"    s_cselect_b32 s{sFAIL}, 0x1fffff, s{sFAIL}",
          f"    s_lshl_b32 s{sT1}, s{sW}, 2",
          f"    s_add_u32 s{sT1}, s{sT1}, {RING}",
          f"    v_mov_b32 v0, s{sT0}", f"    v_mov_b32 v1, s{sT1}", f"    v_mov_b32 v2, {RING}",
          "    ds_write_b32 v1, v0", "    s_waitcnt lgkmcnt(0)", "    s_barrier",
          "    ds_read_b128 v[4:7], v2", "    s_waitcnt lgkmcnt(0)",
          "    v_or3_b32 v4, v4, v5, v6", "    v_or_b32 v4, v4, v7", "    s_nop 0",
          f"    v_readfirstlane_b32 s{sT0}, v4", "    s_nop 1",
          f"    s_cmp_lg_u32 s{sT0}, 0",
          f"    s_cselect_b32 s{sFAIL}, 0x1fffff, s{sFAIL}"]
    if cfg.stamps in (1, 4):
        t += ["    s_memrealtime s[%d:%d]" % (sTSB + 22, sTSB + 23), "    s_waitcnt vmcnt(0)",
              "    s_memrealtime s[%d:%d]" % (sTSB + 24, sTSB + 25), "    s_memtime s[%d:%d]" % (sTSB + 26, sTSB + 27)]
    if cfg.stamps:
        t += ["    s_load_dwordx2 s[4:5], s[0:1], 40", "    s_waitcnt lgkmcnt(0)",
              "    s_mov_b32 s6, 0x100000", "    s_mov_b32 s7, 0x20000",
              f"    s_lshl_b32 s{sT0}, s2, 2", f"    s_add_u32 s{sT0}, s{sT0}, s{sW}", f"    s_lshl_b32 s{sT0}, s{sT0}, 7",
              "    v_mov_b32 v1, 0"]
        for k in range(21):
            t += [f"    v_mov_b32 v0, s{sTSB + 2*k}", f"    buffer_store_dword v0, v1, s[4:7], s{sT0} offen offset:{4*k}"]
    if cfg.spin:
        t += ["L_spin:", "    s_memrealtime s[100:101]", "    s_waitcnt lgkmcnt(0)", "    s_sub_u32 s100, s100, s98", f"    s_cmp_lt_u32 s100, {cfg.spin * 100}", "    s_cbranch_scc1 L_spin"]
    if cfg.dbg >= 0:
        t += [f"    s_cmp_lg_u32 s2, {cfg.dbg}", "    s_cbranch_scc1 L_nodbg", f"    s_cmp_lg_u32 s{sW}, 0", "    s_cbranch_scc1 L_nodbg",
              "    s_load_dwordx2 s[4:5], s[0:1], 32", "    s_waitcnt lgkmcnt(0)", "    s_mov_b32 s6, 256", "    s_mov_b32 s7, 0x20000"]
        lst = [(2, 0), (3, 0), (4, 0), (5, 0), (9, 0), (8, 0), (7, 0), (6, 0), (11, 0), (12, 0), (10, 1), (13, 10)]
        for k, (a_, b_) in enumerate(lst):
            t += [f"    s_sub_u32 s{sT1}, s{sTSB + 2*a_}, s{sTSB + 2*b_}", f"    v_mov_b32 v0, s{sT1}", f"    buffer_store_dword v0, v1, s[4:7], 0 offen offset:{4*k}"]
        t += ["L_nodbg:"]
    t += [f"    s_cmp_eq_u32 s{sFAIL}, 0", "    s_cbranch_scc1 L_end"]
    sJ, sRow, sKb, sVt = sT0, sT1, sT2, sKo
    f = ["    ; ---- slow path: rows whose unshifted exponent sum left the safe range are redone with the true max",
         "    s_waitcnt vmcnt(0)"]
    f += [f"    v_and_b32 v{vVA+c}, 0xffff, v{vVA+c}" for c in range(NVA)]
    f += ["L_fb_next:",
          f"    s_ff1_i32_b32 s{sJ}, s{sFAIL}", f"    s_bitset0_b32 s{sFAIL}, s{sJ}",
          f"    s_cmp_gt_u32 s{sJ}, 4", f"    s_cselect_b32 s{sKb}, 1, 0", f"    s_sub_u32 s{sKb}, s{sJ}, s{sKb}",
          f"    s_lshr_b32 s{sRow}, s{sKb}, 2", f"    s_lshl_b32 s{sRow}, s{sRow}, 16",
          f"    s_and_b32 s{sKb}, s{sKb}, 3", f"    s_lshl_b32 s{sKb}, s{sKb}, 12", f"    s_add_u32 s{sRow}, s{sRow}, s{sKb}",
          f"    s_lshl_b32 s{sKb}, s{sW}, 14", f"    s_add_u32 s{sRow}, s{sRow}, s{sKb}",
          f"    s_cmp_eq_u32 s{sJ}, 4", f"    s_cselect_b32 s{sRow}, s{sOr+4}, s{sRow}"]
    f += [f"    buffer_load_dwordx4 v[{4*s}:{4*s+3}], v{vQA}, s[{sQ}:{sQ+3}], s{sRow} offen offset:{off(s)}" for s in range(4)]
    def qk(dst, extra):
        r = [f"    buffer_load_dwordx4 v[{20+4*s}:{23+4*s}], v{vQA}, s[{sK}:{sK+3}], s{sKb} offen offset:{off(s)}" for s in range(4)]
        r += ["    s_waitcnt vmcnt(0)"]
        r += [f"    v_mfma_f32_16x16x32_bf16 v[{dst}:{dst+3}], v[{20+4*s}:{23+4*s}], v[{4*s}:{4*s+3}], {'0' if s == 0 else f'v[{dst}:{dst+3}]'}" for s in range(4)]
        r += [f"    s_add_u32 s{sKb}, s{sKb}, 4096", "    s_nop 9"]
        return r
    f += ["    v_mov_b32 v16, 0xff800000", f"    s_mov_b32 s{sKb}, 0", "L_fb_max:"]
    f += qk(36, None)
    f += ["    v_max3_f32 v16, v16, v36, v37", "    v_max3_f32 v16, v16, v38, v39",
          f"    s_cmp_lt_u32 s{sKb}, {HEADK}", "    s_cbranch_scc1 L_fb_max"]
    def xlane(reg, tmp, op):
        return [f"    v_mov_b32 v{tmp}, v{reg}", "    s_nop 1", f"    v_permlane16_swap_b32 v{reg}, v{tmp}", "    s_nop 1", f"    {op} v{reg}, v{reg}, v{tmp}",
                f"    v_mov_b32 v{tmp}, v{reg}", "    s_nop 1", f"    v_permlane32_swap_b32 v{reg}, v{tmp}", "    s_nop 1", f"    {op} v{reg}, v{reg}, v{tmp}"]
    f += xlane(16, 17, "v_max_f32")
    f += [f"    v_mul_f32 v17, s{sC}, v16", "    v_mov_b32 v18, 0"]
    f += [f"    v_mov_b32 v{64+k}, 0" for k in range(32)]
    f += [f"    s_mov_b32 s{sKb}, 0", f"    s_mov_b32 s{sVt}, 0", "L_fb_pv:"]
    f += qk(36, None) + qk(40, None)
    f += [f"    v_fma_f32 v{36+k}, v{36+k}, s{sC}, -v17" for k in range(8)]
    f += [f"    v_exp_f32 v{36+k}, v{36+k}" for k in range(8)]
    f += ["    s_nop 0"] + [f"    v_add_f32 v18, v18, v{36+k}" for k in range(8)]
    f += [f"    v_cvt_pk_bf16_f32 v{44+k}, v{36+2*k}, v{37+2*k}" for k in range(4)]
    f += [f"    v_add_u32 v{52+c}, s{sVt}, v{vVA+c}" for c in range(NVA)]
    for b in range(8):
        f += [f"    ds_read_b64_tr_b16 v[{48+2*blk}:{49+2*blk}], v{52+vsel(b)[0]} offset:{(b>>2)*32768 + blk*2048 + vsel(b)[2]}" for blk in range(2)]
        f += ["    s_waitcnt lgkmcnt(0)", f"    v_mfma_f32_16x16x32_bf16 v[{64+4*b}:{67+4*b}], v[48:51], v[44:47], v[{64+4*b}:{67+4*b}]"]
    f += [f"    s_add_u32 s{sVt}, s{sVt}, 4096", f"    s_cmp_eq_u32 s{sVt}, 32768", f"    s_cselect_b32 s{sVt}, 65536, s{sVt}",
          f"    s_cmp_lt_u32 s{sKb}, {HEADK}", "    s_cbranch_scc1 L_fb_pv"]
    f += xlane(18, 17, "v_add_f32")
    f += ["    v_rcp_f32 v18, v18", "    s_nop 7"]
    f += [f"    v_mul_f32 v{64+k}, v{64+k}, v18" for k in range(32)]
    f += [f"    v_cvt_pk_bf16_f32 v{96+k}, v{64+2*k}, v{65+2*k}" for k in range(16)]
    f += ["    s_nop 1"]
    for pb in range(0 if cfg.noswap else 4):
        f += [f"    v_permlane16_swap_b32 v{96+4*pb+h}, v{98+4*pb+h}" for h in range(2)]
    f += [f"    buffer_store_dwordx4 v[{96+4*pb}:{99+4*pb}], v{vOA}, s[{sO}:{sO+3}], s{sRow} offen offset:{64*pb}" for pb in range(4)]
    f += ["    s_waitcnt vmcnt(0)", f"    s_cmp_lg_u32 s{sFAIL}, 0", "    s_cbranch_scc1 L_fb_next"]
    return t + f

def simulate(linear, waits, nops, marks):
    t = 0; pipe = 0; q = []; lastdone = 0; out = []; t0 = 0; first = False; valu = False; mem = False; cur = None; stall = 0; stl = []; idle = [0]
    for ins in linear:
        if ins.kind == "label": continue
        w = waits.get(id(ins))
        if w:
            if w[1] is not None and len(q) > w[1]:
                need = q[len(q) - w[1] - 1]
                if need > t: stall += need - t; t = need
            t += 0 if first else 4; first = False
        t += 4 * nops.get(id(ins), 0)
        if id(ins) in marks:
            out.append(t - t0); stl.append(stall); t0 = t; stall = 0; idle.append(0)
        k = ins.kind
        if k in MAT:
            idle[-1] += max(0, pipe - t)
            t = max(t, pipe); pipe = t + 16; t += 8; first = True; valu = False; mem = False
        else:
            c = ins.cost
            if k in ("salu", "bar", "br", "wait") and first: c -= 4
            if k in LGKM + VM and valu: c += 8
            elif k in LGKM + VM and mem: c += 4
            if k in LGKM + VM: mem = True
            if k in LGKM:
                svc = 32 if k == "dsw" else (16 if ("b128" in ins.text or cfg.noswap) else 8)
                lastdone = max(lastdone + svc, t + cfg.ldslat); q.append(lastdone)
            if k in VALU: valu = True
            t += c; first = False
    out.append(t - t0); stl.append(stall)
    sys.stderr.write(f"sim cycles/period: {out[1:]}\nsim lgkm stalls : {stl[1:]}\nunused issue cyc: {idle[1:]}\n")

def gen_items(T):
    curT[0] = T
    items_softmax(T); items_kread(T)
    if T % 8 == 0 and T > 0: items_vtoggle(T)
    items_vread(T)
def bar_needs(T):
    pub = (T + 1,) if T < 15 else (T + 1, T + 2)
    nd = [x.ins for t in pub for x in kwrites[t]]
    if T in vdmas and T > 0: nd += vdmas[T]
    done = (T - 1, T) if T >= 13 else (T - 1,) if T >= 1 else ()
    nd += [kreads[t, blk, s_].ins for t in done for blk in range(2) for s_ in range(4)]
    nd += [x.ins for t in done if t in readback for x in readback[t]]
    BARm[T].needs = nd
def build():
    C = cfg.CUT; NT = 48 + C + 2
    for T in range(NT + 2): mk_step(T)
    BARm[-1] = I("s_barrier", "bar"); BARm["V0"] = I("s_barrier", "bar")
    for T in list(range(0, 15, 2)) + list(range(1, NT + 2, 2)): BARm[T] = I("s_barrier", "bar")
    pro = prologue()
    pro.append(BARm[-1]); pro += stamp(2) + pro_tail
    bb, start = [], {}
    for T in range(NT):
        start[T] = len(bb); bb += backbone_period(T)
    backbone_period(NT)
    fixed = {id(bar_spot(T)): [BARm[T]] for T in range(NT) if T in BARm}
    fixed[id(QKm[1, 0, 0, 0] if cfg.sm0 else QKm[0, 1, 2, 3])] = [BARm["V0"]]
    labL = I("L_loop:", "label"); labL2 = I("; second instance", "label"); labL3 = I("; third instance", "label")
    def chk():
        pre = ""
        if cfg.stamps == 1:
            r = sTSB + 12
            pre = "".join(f"s_mov_b64 s[{r+2*k+2}:{r+2*k+3}], s[{r+2*k}:{r+2*k+1}]\n    " for k in (2, 1, 0)) + f"s_memrealtime s[{r}:{r+1}]\n    "
        return I(pre + f"s_sub_u32 s{sCNT}, s{sCNT}, 1\n    s_cmp_eq_u32 s{sCNT}, 0\n    s_cbranch_scc1 L_tail", "br")
    chk1, chk2 = chk(), chk()
    brL, brL2 = I("s_branch L_loop", "br"), I("s_branch L_loop", "br")
    marks = {start[16 + C]: stamp(5) + [labL], start[32]: [chk1], start[32 + C]: [brL, labL2], start[48]: [chk2], start[48 + C]: [brL2, labL3]}
    marks[start[12]] = [I("L_p12:", "label")]
    if cfg.stamps == 1:
        marks[start[1]] = stamp(3); marks[start[16]] = stamp(4) + stamp(10, True)
    if cfg.stamps == 2:
        for T in range(16 + C, 48 + C): marks.setdefault(start[T], []).append(stamp((T - C) % 16, True, 2)[0])
    if cfg.stamps == 3:
        for T in range(0, min(20, 16 + C - cfg.st3)): marks.setdefault(start[T + cfg.st3], []).insert(0, stamp(T, False, 3)[0])
        pro.insert(1, stamp(20, False, 3)[0])
    for T in range(16): items_loads(T)
    for T in range(NT):
        gen_items(T)
        if T % 16 == C and T > 16: items_rowadv(T)
        if cfg.repf:
            if T == cfg.pf1: items_codepf(T, "L_p12")
            if T == cfg.pf2: items_codepf(T, "L_loop")
            if T > 32 and T % 16 == cfg.pf3: items_codepf(T, "L_tail")
    for base in (16, 32): items_qpf(base)
    for T in range(1, NT + 2): curT[0] = T; items_kwrite(T)
    curT[0] = -50; items_qjit()
    for T in range(NT):
        if any(islast(T, q) for q in act(T)):
            curT[0] = T + 1000
            items_epilogue(T, marks[start[(T + 1) // 16 * 16 + C]][0])
    BARm[-1].needs = [x.ins for x in kwrites[0]]
    BARm["V0"].needs = list(vdmas[0])
    for T in range(NT):
        if T in BARm: bar_needs(T)
    stream = list(pro)
    Sched(stream).run(bb, items, fixed, marks)
    p = {id(x): k for k, x in enumerate(stream)}
    ref = {(it.T[0] - 16, it.T[1]): p[id(it.ins)] < p[id(brL)] for it in items if it.placed and 32 + C - 2 <= it.T[0] < 48}
    cut = marks[start[16 + C]][0]
    for it in items:
        r = ref.get(it.T)
        if r is True: it.dead = list(it.dead) + [cut]
        elif r is False: it.after.append((labL, 0))
        it.placed = False
    stream = list(pro)
    sc = Sched(stream)
    sc.run(bb, items, fixed, marks)
    p = {id(x): k for k, x in enumerate(stream)}
    iL, iC1, iBr, iL2, iC2, iBr2 = (p[id(x)] for x in (labL, chk1, brL, labL2, chk2, brL2))
    segP = stream[:iL]; segL = stream[iL:iC1 + 1]; segB = stream[iC1 + 1:iBr + 1]
    one, two = stream[iL:iBr + 1], stream[iL2:iBr2 + 1]
    a = [x.text for x in one[1:]]; b = [x.text for x in two[1:]]
    if a != b:
        for k, (x, y) in enumerate(zip(a, b)):
            if x != y: sys.stderr.write(f"loop mismatch at {k}: {x} | {y}\n"); break
        raise SystemExit("loop instances differ")
    mp = {id(y): x for x, y in zip(one, two)}
    for x, y in zip(one, two): x.needs = x.needs + [mp.get(id(z), z) for z in y.needs]
    def keyed(its):
        cnt, out = {}, {}
        for it in its:
            k = (it.T[0], it.ins.text); cnt[k] = cnt.get(k, 0) + 1; out[k + (cnt[k],)] = it
        return out
    old = {k: it for k, it in keyed(items).items() if it.placed and p[id(it.ins)] <= iC2}
    TFIN[0] = 48; TE = 48 + DL
    for d in (QKm, PVm, SMm):
        for k in [k for k in d if k[0] >= 48 and (k[0] >= TE or (k[2] if d is not SMm else 2 * k[1]) not in (2, 3))]: del d[k]
    for T in range(TE - 1 if TE % 2 == 0 else TE, NT + 2): BARm.pop(T, None)
    for j in range(32):
        buf = Kf(0, 0) + 4 * (j % 8)
        VCm[j] = mfma(L(2), buf, buf, j == 0, dk="a")
    tbb = []
    for T in range(48, TE + 1): tbb += backbone_period(T)
    items.clear(); pwriters.clear(); lprev.clear()
    for k in [k for k in unit_free if k[0] == 32]: del unit_free[k]
    for T in range(46, TE): gen_items(T)
    for T in range(48, TE): curT[0] = T; items_kwrite(T)
    endT = I("; end of tail", "label"); endA = I("; group A stored", "label")
    curT[0] = 5000
    if DL: items_epilogue(47, tbb[len(tbb) - 32 - 20])
    items_epilogue(TE - 1, endT)
    va = add(valu(f"v_add_u32 v{vVD}, s{sVC}, v{vKR}", [f"v{vKR}"], [f"v{vVD}"]), dead=[PVm[TE - 1, 2, act(TE - 1)[0]]], tag="vc")
    for j in range(32):
        d = R("a", Kf(0, 0) + 4 * (j % 8), 4)
        lastu = [(QKm[TE - 1, (j % 8) // 4, act(TE - 1)[-1], j % 4], 0)] if j < 8 else [(VCm[j - 8], 0)]
        add(I(f"ds_read_b128 {d}, v{vVD} offset:{j*1024}", "dsr", rd=[f"v{vVD}"], wr=[d]), after=[(va.ins, 0)] + lastu, dead=[VCm[j]], tag="vc", prio=-6)
    alias = {}
    for k, it in keyed(items).items():
        if k in old: alias[id(it.ins)] = old[k].ins; it.ins = old[k].ins; it.placed = True
    tfixed = {id(bar_spot(T)): [BARm[T]] for T in range(48, TE) if T in BARm}
    known = {id(x) for x in stream[:iC2 + 1]} | {id(x) for x in tbb} | {id(it.ins) for it in items} | {id(x) for l_ in tfixed.values() for x in l_}
    for it in items: it.after = [(alias.get(id(a_), a_), d_) for a_, d_ in it.after if id(alias.get(id(a_), a_)) in known]
    for T in range(48, TE):
        if T in BARm: bar_needs(T)
    tstream = stream[:iC2 + 1]
    labT = I("L_tail:", "label")
    tm = {0: [labT]}
    if cfg.wbl2:
        pos_ = {1: tbb.index(firstm[TE]), 2: 1, 3: tbb.index(firstm[TE - 1])}[cfg.wbl2]
        tm.setdefault(pos_, []).append(I(f"s_lshl_b32 s{sT1}, s2, 2\n    s_add_u32 s{sT1}, s{sT1}, s{sW}\n    s_and_b32 s{sT1}, s{sT1}, {cfg.wbmask}\n    s_cbranch_scc1 L_nowb\n    buffer_wbl2 sc1\nL_nowb:", "br"))
    Sched(tstream).run(tbb, items, tfixed, tm, endins=endT)
    segT = tstream[iC2 + 1:]
    assert segT[0] is labT, segT[:3]
    assert all(it.placed for it in items)
    for x in segT: x.needs = [mp.get(id(z), z) for z in x.needs]
    linear = segP + segL + segB + segL + segB + segL + segT
    waits = insert_waits(linear)
    nops = fix_hazards(linear, waits)
    sys.stderr.write(f"instr: P {len(segP)} L {len(segL)} B {len(segB)} T {len(segT)}; waits {len(waits)}; nops {sum(nops.values())} at {len(nops)} sites\n")
    mk = {id(stream[p[id(bb[start[T]])]]): T for T in range(32 + C)}
    mk.update({id(firstm[T]): T for T in range(48, TE + 1)})
    simulate(segP + segL + segB + segL + segT, waits, nops, mk)
    body = render(segP, waits, nops) + render(segL, waits, nops) + render(segB, waits, nops) + render(segT, waits, nops)
    return body

HEADER = open("standalone__mha_softmax__near_ridge.s.ref").read().split("; Override launch")[0]
def main():
    body = build()
    out = HEADER + f"""; One workgroup (4 waves x 512 registers) per (batch, head).  V stays in LDS, K (pre-scaled by log2(e)/sqrt(D))
; stays in registers and is re-published through a small LDS ring; generated by my own scheduling script.
; @launch grid=(256,1,1) block=(256,1,1) lds=163840
.amdgcn_target "amdgcn-amd-amdhsa--gfx950"
.text
.globl {KNAME}
.p2align 8
.type {KNAME},@function
{KNAME}:
""" + "\n".join(body) + "\n" + "\n".join(finale()) + f"""
L_end:
    s_endpgm
.section .rodata,"a"
.p2align 6
.amdhsa_kernel {KNAME}
  .amdhsa_next_free_vgpr 512
  .amdhsa_next_free_sgpr 102
  .amdhsa_accum_offset 256
  .amdhsa_group_segment_fixed_size 0
  .amdhsa_kernarg_size 48
  .amdhsa_user_sgpr_count 2
  .amdhsa_user_sgpr_kernarg_segment_ptr 1
  .amdhsa_system_sgpr_workgroup_id_x 1
.end_amdhsa_kernel
"""
    open(sys.argv[1], "w").write(out)
main()
```

```python
import sys, struct, math, re
from core import *

class Cfg:
    dmap = "A"
    LK = 3
    LV = 2
    delta = 3
    noswap = True
    busy64 = True
    oflagsFA = "="
    oflagsFB = "="
    wr64 = False
    CUT = 10
    leadT = 11
    ta_slow = 250
    ta_fast = 90
    v0first = False
    dsmargin = 7
    st3 = 0
    jitfirst = True
    tq0 = 2
    tstep = 16
    st0 = 80
    tqstep = 10
    ownk = True
    kvg = True
    ksd = 0
    gs = "246789"
    klin = True
    stE = 70
    drop = ""
    skew = 0
    repf = False
    early0 = True
    e0g = 3
    pf1 = 8
    pf2 = 23
    pf3 = 9
    wbl2 = 0
    wbmask = 0x3e3
    pairst = False
    grow = 0
    stF0 = 20
    stFstep = 12
    jitstep = 2
    qstage = True
    sm0 = True
    tl0 = 6
    tlstep = 5
    wrn = 2
    kdoff = 14
    kstep = 8
    ldslat = 110
    qpf0 = 8
    lead = 0
    qflags = " nt"
    oflags = ""
    kvflags = " nt"
    pfflags = " nt"
    pf_period = 11
    stamps = 0
    spin = 0
    extra = 0
    dbg = -1
    force_fallback = False
    vahead = 2
    codepf = True
cfg = Cfg()
for a in sys.argv[2:]:
    k, v = a.split("=", 1)
    old = getattr(cfg, k)
    setattr(cfg, k, (v == "1") if isinstance(old, bool) else type(old)(v.replace("+", " ")))

KNAME = "standalone__mha_softmax__near_ridge_kernel"
SQ, SK, D = 1312, 512, 128
HEADQ = SQ * D * 2
HEADK = SK * D * 2
RING = 131072
CSCALE = struct.unpack("<I", struct.pack("<f", math.log2(math.e) / math.sqrt(D)))[0]

vO, vP, vS, vVf = 0, 160, 200, 208
vVA = 224
vHI, vLO = 226, 227
vKR, vKW, vQA, vOA, vPF, vIDX, vVD = 228, 229, 230, 231, 232, 233, 234
if cfg.ownk:
    assert cfg.dmap == "A" and cfg.noswap and not cfg.repf
    vOA = vQA; vKC = [228, 229, 235, 231]; vKW = 254
sX = [28, 46, 47, 48]
vT = 235
vKt = [236, 244]; vKx = [252, 253]
vW = [236, 240, 244]
vRI = 248
vL0, vL1, vDUM = 253, 254, 255
aQ, aST, aKf, aL, aSA = 0, 80, 208, 240, 252
def O(qs, b): return vO + 32 * qs + 4 * b
def P(T, qs): return vP + 20 * (T % 2) + 4 * qs
def S(c): return vS + 4 * (c % 2)
def Vf(f): return vVf + 4 * (f % 4)
def Q(qs, s): return aQ + 16 * qs + 4 * s
def Kf(blk, s): return aKf + 16 * blk + 4 * s
def ST(j, e): return aST + 8 * (j % 16) + 4 * e
def KA(T, blk, s): return ST(T, blk) if (cfg.ownk and s == 0) else Kf(blk, s)
def L(p): return aL + 4 * p
sQ, sK, sV, sO = 8, 12, 16, 20
sW = 24; sC = 25; sMASK = 26; sFAIL = 27; sBIT = 28; sCNT = 29
sOr = 30
sQn = 35
sKo, sVo, sM0 = 40, 41, 42
sT0, sT1, sT2 = 43, 44, 45
sLO, sRNG = 46, 47
sTS = 48
def off(s): return 64 * s if cfg.dmap == "A" else 128 * (s >> 1) + 16 * (s & 1)
GST = 16 if cfg.dmap == "A" else 32

DL = cfg.delta
TFIN = [1 << 30]
def act(T):
    if T < 0: return []
    if T < 16: return [0, 1, 2, 3, 4]
    if T >= TFIN[0] + DL: return []
    if T >= TFIN[0]: return [2, 3]
    if T < 16 + DL: return [0, 1]
    if DL and T >= 32 and (T % 16 == 0 or T % 16 == DL - 1): return [2, 3, 0, 1]
    return [0, 1, 2, 3]
def n_of(T): return len(act(T))
def phase(qs): return DL if qs in (2, 3) else 0
def isfirst(T, qs): return T == 0 or (T >= 16 and T % 16 == phase(qs))
def islast(T, qs): return T == 15 or (T > 16 + DL and (T + 1) % 16 == phase(qs))
def nextstart(T, qs):
    return 16 + phase(qs) if T == 15 else T + 1

def mfma(d, a, b, zero, dk="v", ak="a", bk="a"):
    D_, A_, B_ = R(dk, d, 4), R(ak, a, 4), R(bk, b, 4)
    return I(f"v_mfma_f32_16x16x32_bf16 {D_}, {A_}, {B_}, {'0' if zero else D_}", "mfma",
             rd=[A_, B_] + ([] if zero else [D_]), wr=[D_], acc=not zero)
def valu(text, rd, wr, kind="valu"): return I(text, kind, rd=rd, wr=wr)
def salu(text, rd=(), wr=()): return I(text, "salu", rd=rd, wr=wr)

class Item:
    __slots__ = ("ins", "after", "dead", "prio", "early", "tag", "placed", "T", "seq", "soft", "doff", "pace", "dabs", "nb")
    def __init__(self, ins, after=(), dead=None, early=None, tag="", prio=0, doff=0, pace=None):
        self.doff = doff; self.pace = pace; self.dabs = None; self.nb = None
        self.ins = ins; self.after = list(after); self.dead = dead; self.early = early
        self.tag = tag; self.prio = prio; self.placed = False

QKm, PVm, SMm, BARm, VCm = {}, {}, {}, {}, {}
def chain(T, g):
    a = act(T)
    if T == 15: return (g % 2, a[g // 2])
    if T == 0 and cfg.sm0: return [(0, 0), (1, 0), (0, 1), (1, 1), (0, 2), (1, 2), (0, 3), (0, 4), (1, 3), (1, 4)][g]
    return (g // len(a), a[g % len(a)])
def mk_step(T):
    for g in range(2 * n_of(T)):
        blk, qs = chain(T, g)
        for s in range(4):
            QKm[T, blk, qs, s] = mfma(S(g), KA(T, blk, s), Q(qs, s), s == 0)
    for b in range(8):
        for qs in act(T):
            PVm[T, b, qs] = mfma(O(qs, b), Vf(b), P(T, qs), isfirst(T, qs), ak="v", bk="v")
    for p in pairs(T):
        d, b = R("a", L(p), 4), R("v", P(T, pair_lo(p)), 8)
        SMm[T, p] = I(f"v_smfmac_f32_16x16x64_bf16 {d}, {R('a', aSA, 4)}, {b}, v{vIDX}", "smf",
                      rd=[d, b, R("a", aSA, 4), f"v{vIDX}"], wr=[d], acc=True)
def pair_of(qs): return 2 if qs == 4 else qs // 2
def pairs(T):
    out = []
    for qs in act(T):
        if pair_of(qs) not in out: out.append(pair_of(qs))
    return out
def pair_lo(p): return 3 if p == 2 else 2 * p
def pvlist(T): return [PVm[T, b, qs] for b in range(8) for qs in act(T)]
firstm = {}

def backbone_period(T):
    tail = n_of(T) == 0
    pv = pvlist(T - 2)[-4:] + (pvlist(T - 1) if tail else pvlist(T - 1)[:-4])
    sm = [SMm[T - 1, p] for p in pairs(T - 1)]
    out = []
    if tail:
        out += pv[:6] + sm + pv[6:] + [VCm[j] for j in range(32)]
        for k, m in enumerate(out): m.pref = "T" if (k < 4) else "D"
        firstm[T] = out[0]
        return out
    n = n_of(T); G = 2 * n
    lead = cfg.leadT if T == 16 else cfg.lead if (T > 16 and any(islast(T - 1, q) for q in act(T - 1))) else 0
    if lead:
        nl = 4 * lead
        head = pv[:nl]; pv = pv[nl:]
        if lead >= 2:
            head = head[:4] + [sm[0]] + head[4:8] + sm[1:] + head[8:]
            sm = []
        for k, m in enumerate(head): m.pref = "T" if k < 4 else "D"
        out += head
    if T == 1: cnt = [0] + [4] * (G - 1)
    elif len(pv) < 4 * G and not lead:
        r = len(pv) - 4; cnt = [min(4, len(pv))] + [r // (G - 1) + (1 if g < r % (G - 1) else 0) for g in range(G - 1)] if len(pv) >= 4 else [0] * G
    else:
        cnt = [len(pv) // G + (1 if g < len(pv) % G else 0) for g in range(G)]
    smpos = {}
    if sm:
        early = any(islast(T - 1, q) for q in act(T - 1)) and len(sm) > 1
        spots = [0 if early else 1, G // 2 + 1, G - 2]
        for m, g in zip(sm, spots): smpos.setdefault(min(g, G - 1), []).append(m)
    k = 0
    for g in range(G):
        blk, qs = chain(T, g)
        grp = [QKm[T, blk, qs, s] for s in range(4)] + pv[k:k + cnt[g]]
        k += cnt[g]
        L_ = len(grp)
        for j, m in enumerate(grp):
            m.pref = "T" if (L_ >= 8 and j % 2 == 0 and j < 8) or (L_ < 8 and j in {4: (0, 1, 2, 3), 5: (0, 1, 3, 4), 6: (0, 2, 3, 5), 7: (0, 2, 4, 6)}[L_]) else "D"
        out += grp
        for m in smpos.get(g, []):
            m.pref = "D"; out.append(m)
    firstm[T] = out[0]
    return out

items = []
curT = [-200]
ordn = {}
def add(ins, **kw):
    it = Item(ins, **kw); ordn[curT[0]] = ordn.get(curT[0], 0) + 1; it.T = (curT[0], ordn[curT[0]]); it.seq = len(items); items.append(it); return it

cvts = {}
def items_softmax(T):
    n = n_of(T)
    for g in range(2 * n):
        blk, qs = chain(T, g)
        last = QKm[T, blk, qs, 3]
        if g + 2 < 2 * n: nxt = QKm[(T,) + chain(T, g + 2) + (0,)]
        elif n_of(T + 1): nxt = QKm[(T + 1,) + chain(T + 1, g + 2 - 2 * n) + (0,)]
        else: nxt = None
        use = PVm[T, 0, qs]
        ng = QKm[(T,) + chain(T, g + 1) + (0,)] if g + 1 < 2 * n else firstm[T + 1]
        sms = [SMm[T, p] for p in pairs(T) if pair_lo(p) <= qs <= pair_lo(p) + 1]
        ex = []
        for r in range(4):
            v = f"v{S(g)+r}"
            ex.append(add(valu(f"v_exp_f32 {v}, {v}", [v], [v], "trans"), after=[(last, 8), (ng, 0)] + ([(ex[-1].ins, 0)] if ex else []),
                          dead=[nxt, use], tag="sm"))
        for h in range(2):
            d = f"v{P(T, qs) + 2*blk + h}"; a, b = f"v{S(g)+2*h}", f"v{S(g)+2*h+1}"
            aft = [(ex[2*h].ins, 1), (ex[2*h+1].ins, 1)]
            if qs in act(T - 2): aft.append((PVm[T - 2, 7, qs], 0))
            aft += [(SMm[T - 2, p], 0) for p in pairs(T - 2) if pair_lo(p) <= qs <= pair_lo(p) + 1]
            it = add(valu(f"v_cvt_pk_bf16_f32 {d}, {a}, {b}", [a, b], [d]), after=aft, dead=[nxt, use] + sms, tag="sm")
            pwriters.setdefault((T, P(T, qs)), []).append(it)
pwriters = {}

kreads = {}
def bar_pub(T):
    return BARm[T - 1] if T < 16 else BARm[(T // 2) * 2 - 1]
def items_kread(T):
    n = n_of(T)
    for blk in range(2):
        for s in range(4):
            if cfg.ownk and s == 0 and T >= 16: continue
            d = R("a", KA(T, blk, s), 4)
            if cfg.ownk: ins = I(f"ds_read_b128 {d}, v{vKC[s]} offset:{(T % 4) * 8192 + blk * 4096}", "dsr", rd=[f"v{vKC[s]}"], wr=[d])
            else: ins = I(f"ds_read_b128 {d}, v{vKR} offset:{(T % 4) * 8192 + (4*blk+s) * 1024}", "dsr", rd=[f"v{vKR}"], wr=[d])
            aft = [(bar_pub(T), 0)]
            if T >= 1 and not (cfg.ownk and s == 0): aft.append((QKm[T - 1, blk, act(T - 1)[-1], s], 0))
            dl = [QKm[T, blk, act(T)[0], 0]]
            if blk == 1 and T % 2 == 1 and T != 15 and T in BARm: dl.append(BARm[T])
            kreads[T, blk, s] = add(ins, after=aft, dead=dl, tag="qk", prio=-12)
vreads = {}
vtog = {}
def vbar(T):
    if T == 0: return BARm["V0"]
    return BARm[T]
def vsel(b):
    return ((b >> 1) & 1, b >> 2, 8 * (b & 1)) if cfg.noswap else (b & 3, b >> 2, 0)
NVA = 2 if cfg.noswap else 4
def items_vread(T):
    for b in range(8):
        f = 8 * T + b
        pT, pb = divmod(f - 4, 8)
        aft = []
        if f >= 4: aft.append((PVm[pT, pb, act(pT)[-1]], 0))
        va = cfg.vahead if n_of(T) > 2 else 3
        aT, ab = divmod(f - va - 1, 8)
        if f - va - 1 >= 0: aft.append((PVm[aT, ab, act(aT)[-1]], 0))
        if T < 16: aft.append((vbar(T), 0))
        c, dh, e8 = vsel(b)
        if T % 8 == 0 and T > 0 and dh == 0: aft.append((vtog[T, c].ins, 0))
        prev = None
        for blk in range(2):
            d = R("v", Vf(f) + 2 * blk, 2)
            ins = I(f"ds_read_b64_tr_b16 {d}, v{vVA+c} offset:{dh*32768 + (T % 8)*4096 + blk*2048 + e8}", "dsr",
                    rd=[f"v{vVA+c}"], wr=[d])
            vreads[T, b, blk] = add(ins, after=aft + ([(prev, 0)] if prev else []), dead=[PVm[T, b, act(T)[0]]], tag="v", prio=-12)
            prev = ins
def items_vtoggle(T):
    for c in range(NVA):
        v = f"v{vVA+c}"
        use = [b for b in range(8) if vsel(b)[0] == c]
        vtog[T, c] = add(valu(f"v_xor_b32 {v}, 0x10000, {v}", [v], [v]), after=[(vreads[T - 1, b, 1].ins, 0) for b in use],
                         dead=[PVm[T, use[0], act(T)[0]]], tag="v", prio=-24, doff=cfg.dsmargin + 4)

kwrites = {}
kloads = {}
def busy(T):
    return T < 26 or T >= TFIN[0] or (T % 16) in (2, 3, 4, 5, 6, 7, 8, 9)
KWE = 128 if cfg.klin else 1024
def items_kwrite(T):
    m = T // 2
    if T < 16: opn, cls = BARm[max(T - 3, -1)], BARm[T - 1]
    else: opn, cls = BARm[2 * m - 3], BARm[2 * m - 1]
    ws = []
    def wr(src, r, nreg, **kw):
        x = R(src[0], src[1] + r, nreg)
        ad, st_ = (vKC[0], 4096) if (cfg.ownk and T >= 16) else (vKW, KWE)
        return add(I(f"ds_write_b{32*nreg} v{ad}, {x} offset:{(T % 4)*8192 + (r//4)*st_ + (r % 4)*4}", "dsw", rd=[f"v{ad}", x],
                     cost={1: 8, 2: 12, 4: 26}[nreg]), tag="qk", **kw)
    nr = cfg.wrn
    if T < 16:
        st = vKt[T % 2]
        prev_w = kwrites.get(T - 2)
        done = []
        for r in range(8):
            a = f"a{ST(T, 0) + r}"; x = f"v{st + r}"; t = f"v{vKx[r % 2]}"
            do = (cfg.kdoff + (7 - r) * cfg.kstep) if T >= 2 else 2 + (7 - r)
            kw = dict(dead=[cls], tag="qk", doff=do + 2)
            aft = [(kloads[T][r // 4], 0)]
            if prev_w: aft.append((prev_w[r * len(prev_w) // 8].ins, 0))
            aft.append((mid_of(T - 2) if T >= 3 else QKm[0, 0, 4, 3] if T == 2 else QKm[0, 0, 1, 3], 0))
            if not cfg.kvg: aft = [(add(valu(f"v_accvgpr_read_b32 {x}, {a}", [a], [x]), after=aft, prio=-5, **kw).ins, 0)]
            i1 = add(valu(f"v_lshlrev_b32 {t}, 16, {x}", [x], [t]), after=aft + ([(chain_prev[r % 2], 0)] if chain_prev[r % 2] else []), prio=-4, **kw)
            i2 = add(valu(f"v_and_b32 {x}, s{sMASK}, {x}", [x, f"s{sMASK}"], [x]), after=[(i1.ins, 0)], prio=-3, **kw)
            i3 = add(valu(f"v_mul_f32 {t}, s{sC}, {t}", [t, f"s{sC}"], [t]), after=[(i1.ins, 0)], prio=-2, **kw)
            i4 = add(valu(f"v_mul_f32 {x}, s{sC}, {x}", [x, f"s{sC}"], [x]), after=[(i2.ins, 0)], prio=-1, **kw)
            i5 = add(valu(f"v_cvt_pk_bf16_f32 {x}, {t}, {x}", [t, x], [x]), after=[(i3.ins, 0), (i4.ins, 0)], prio=0, **kw)
            chain_prev[r % 2] = i5.ins; done.append(i5.ins)
            if r % nr == nr - 1:
                ws.append(wr(("v", st), r - nr + 1, nr, after=[(opn, 0)] + [(x_, 0) for x_ in done[-nr:]], dead=[cls], doff=max(do - 8, 1)))
        rb = []
        for e in range(0 if cfg.ownk else 2):
            d = R("a", ST(T, e), 4)
            ins = I(f"ds_read_b128 {d}, v{vKW} offset:{(T % 4)*8192 + e*1024}", "dsr", rd=[f"v{vKW}"], wr=[d])
            rb.append(add(ins, after=[(w_.ins, 0) for w_ in ws[e * len(ws) // 2:(e + 1) * len(ws) // 2]], dead=[BARm[T]], tag="qk", prio=0))
        readback[T] = rb
        if cfg.kvg:
            assert cfg.ownk and cfg.LK == 3
            for e, it in enumerate(kload_items.get(T + 2, [])): it.after += [(w_.ins, 0) for w_ in ws[e * len(ws) // 2:(e + 1) * len(ws) // 2]]
    else:
        nw_ = 8 // nr
        for k in range(nw_):
            ws.append(wr(("a", ST(T, 0)), k * nr, nr, after=[(opn, 0)] + ([(ws[-1].ins, 0)] if ws else ([(kwrites[T-1][-1].ins, 0)] if T % 2 else [])),
                         dead=[cls], pace=(opn, ((T % 2) * nw_ + k + 1) / (2.0 * nw_))))
    kwrites[T] = ws
chain_prev = [None, None]
readback = {}
def mid_of(T): return QKm[(T,) + chain(T, n_of(T)) + (0,)]
def bar_spot(T): return QKm[0, 0, 4, 3] if T == 0 else QKm[(T,) + chain(T, n_of(T) - 1) + (3,)]
def start_of(T): return QKm[(T,) + chain(T, 0) + (0,)]

def kload_ins(j):
    out = []
    for e in range(2):
        d = R("v", vKt[j % 2] + 4 * e, 4) if cfg.kvg else R("a", ST(j, e), 4)
        va, o_ = (vVD, 2048 * e) if cfg.klin else (vQA, off(1) * e)
        out.append(I(f"buffer_load_dwordx4 {d}, v{va}, s[{sK}:{sK+3}], s{sKo} offen offset:{o_}{cfg.kvflags}", "vld",
                     rd=[f"v{va}", f"s{sKo}", f"s[{sK}:{sK+3}]"], wr=[d]))
        out[-1].fast = cfg.klin
    return out
def vdma_ins(j):
    out = []
    for dh in range(2):
        m0 = (j >> 3) * 65536 + dh * (32768 - 128) + (j & 7) * 4096
        out.append((salu(f"s_add_u32 m0, s{sM0}, {m0}", [f"s{sM0}"], ["m0", "scc"]),
                    I(f"buffer_load_dwordx4 v{vVD}, s[{sV}:{sV+3}], s{sVo} offen offset:{128*dh}{cfg.kvflags} lds", "dma",
                      rd=[f"v{vVD}", f"s{sVo}", "m0", f"s[{sV}:{sV+3}]"])))
    return out
vdmas = {}
last_vm = [None]
def add_kload(j, after, dead):
    up = add(salu(f"s_add_u32 s{sKo}, s{sKo}, 8192", [f"s{sKo}"], [f"s{sKo}", "scc"]),
             after=after + ([(last_vm[0], 0)] if last_vm[0] else []), dead=dead, tag="ld", prio=-30)
    ins = kload_ins(j); kloads[j] = ins
    prev = up.ins
    for x in ins:
        kload_items.setdefault(j, []).append(add(x, after=[(prev, 0)], dead=dead, tag="ld", prio=-25)); prev = x
    last_vm[0] = prev
kload_items = {}
def add_vdma(j, after, dead):
    prev = last_vm[0]
    if j > 0:
        prev = add(salu(f"s_add_u32 s{sVo}, s{sVo}, 8192", [f"s{sVo}"], [f"s{sVo}", "scc"]),
                   after=after + ([(prev, 0)] if prev else []), dead=dead, tag="ld", prio=-30).ins
    vdmas[j] = []
    for sm0, dm in vdma_ins(j):
        add(sm0, after=after + [(prev, 0)], dead=dead, tag="ld", prio=-28)
        add(dm, after=[(sm0, 1)], dead=dead, tag="ld", prio=-25); prev = dm
        vdmas[j].append(dm)
    last_vm[0] = prev
def items_loads(T):
    if T == 0:
        def spot(g): return QKm[(0,) + chain(0, g) + (0,)], QKm[(0,) + chain(0, g) + (1,)]
        a, d = spot(0)
        prev = last_vm[0]
        for x in q0load(4):
            add(x, after=[(a, 0)] + ([(prev, 1 if x.kind == "dma" else 0)] if prev else []), dead=[d], tag="ld", prio=-50); prev = x
        last_vm[0] = prev
        gs = [int(c) for c in cfg.gs] if cfg.sm0 else [1, 2, 3, 4, 5, 7]
        kj, vj = 2, 0
        while kj <= cfg.LK or vj <= cfg.LV:
            a, d = spot(gs.pop(0) if len(gs) > 1 else gs[0])
            if cfg.v0first and vj <= cfg.LV: add_vdma(vj, [(a, 0)], [d]); vj += 1
            if kj <= cfg.LK and not (cfg.kvg and kj == 3): add_kload(kj, [(a, 0)], [d]); kj += 1
            if not cfg.v0first and vj <= cfg.LV: add_vdma(vj, [(a, 0)], [d]); vj += 1
            if cfg.kvg and kj == 3 and vj > cfg.LV: add_kload(3, [], [spot(9)[0]]); kj += 1
        if cfg.qstage:
            for qs in range(5):
                g0 = [chain(0, g) for g in range(10)].index((0, qs))
                aft = [(QKm[(0,) + chain(0, g0 - 1) + (3,)], 0)] if g0 else []
                for s_ in range(4):
                    d_ = R("a", Q(qs, s_), 4)
                    x = I(f"ds_read_b128 {d_}, v{vQR+s_} offset:{qs*4096}", "dsr", rd=[f"v{vQR+s_}"], wr=[d_], needs=qdmas[qs])
                    x.block = True
                    add(x, after=aft + [(z, 0) for z in qdmas[qs]], dead=[QKm[0, 0, qs, 0]], tag="ld", prio=-100)
        return
    assert cfg.LV <= 3 or not cfg.qstage
    x0, x1 = min(T - 1, cfg.grow), min(T, cfg.grow)
    if x1 > x0 and T + cfg.LV + x0 < 16: add_vdma(T + cfg.LV + x0, [(start_of(T), 0)], [mid_of(T)])
    for j in range(T + cfg.LK + x0, T + cfg.LK + x1 + 1):
        if j < 16: add_kload(j, [(start_of(T), 0)], [start_of(T + 1)])
    if T + cfg.LV + x1 < 16: add_vdma(T + cfg.LV + x1, [(mid_of(T), 0)], [mid_of(T + 1)])

QSTG = 49152
vQD, vQR = 8, 12
sQS = 5
qdmas = {}
def q0load(qs):
    if not cfg.qstage: return qload_ins(qs)
    out = [salu(f"s_add_u32 m0, s{sQS}, {qs*4096}", [f"s{sQS}"], ["m0", "scc"])]
    qdmas[qs] = [I(f"buffer_load_dwordx4 v{vQD+j}, s[{sQ}:{sQ+3}], s{sQn+qs} offen offset:{1024*j}{cfg.qflags} lds", "dma",
                   rd=[f"v{vQD+j}", f"s{sQn+qs}", "m0", f"s[{sQ}:{sQ+3}]"]) for j in range(4)]
    return out + qdmas[qs]
def qload_ins(qs, dst=None):
    out = []
    for s in range(4):
        d = R("a", Q(qs, s), 4) if dst is None else R(dst[s][0], dst[s][1], 4)
        if cfg.ownk:
            out.append(I(f"s_add_u32 s{sT0}, s{sQn+qs}, s{sX[s]}\n    buffer_load_dwordx4 {d}, v{vQA}, s[{sQ}:{sQ+3}], s{sT0} offen{cfg.qflags}", "vld",
                         rd=[f"v{vQA}", f"s{sQn+qs}", f"s[{sQ}:{sQ+3}]"], wr=[d]))
            continue
        out.append(I(f"buffer_load_dwordx4 {d}, v{vQA}, s[{sQ}:{sQ+3}], s{sQn+qs} offen offset:{off(s)}{cfg.qflags}", "vld",
                     rd=[f"v{vQA}", f"s{sQn+qs}", f"s[{sQ}:{sQ+3}]"], wr=[d]))
    return out
def items_qjit():
    prev = None
    if cfg.early0:
        buf = [("v", 236 + 4 * k) for k in range(4)]
        for s_, ins in enumerate(qload_ins(0, buf)):
            it = add(ins, after=[(x.ins, 0) for t in (14, 15) for x in kwrites[t]] + ([(prev, 0)] if prev else []), dead=[start_of(15)], tag="qj", prio=-400)
            prev = ins
            for r in range(4):
                d, a_ = f"a{Q(0, s_) + r}", f"v{236 + 4 * s_ + r}"
                c = add(valu(f"v_accvgpr_write_b32 {d}, {a_}", [a_], [d]), after=[(QKm[15, 1, 0, s_], 0), (QKm[15, 0, cfg.e0g, 0], 0)], dead=[firstm[16]], tag="qc", prio=-3)
                early_done.append((c.ins, 0))
    for qs in range(1 if cfg.early0 else 0, 4):
        for s_, ins in enumerate(qload_ins(qs)):
            T1 = nextstart(15, qs)
            dl = [QKm[T1, 0, qs, 0]] + ([firstm[16]] if T1 == 16 and cfg.jitfirst else [])
            it = add(ins, after=[(QKm[15, 1, qs, s_], 0)] + ([(prev, 0)] if prev else []), dead=dl, tag="qj", prio=-400)
            if T1 > 16: qjit_b.append(it)
            elif cfg.jitstep: it.dabs = (QKm[15, 1, qs, 3], 1 + cfg.jitstep * s_)
            prev = ins
qjit_b = []
early_done = []
UNITS = [O(4, b) for b in range(8)] + [P(0, 4), P(1, 4), 236, 240, 244]
QBUF = {(qs, s_): ("v", UNITS[4 * qs + s_]) for qs in range(3) for s_ in range(4)}
QBUF.update({(3, s_): ("a", Q(4, s_)) for s_ in range(4)})
unit_free = {}
def items_qpf(base):
    prev = None
    for qs in range(4):
        T = base + 15 + phase(qs)
        lds_ = qload_ins(qs, [QBUF[qs, s_] for s_ in range(4)])
        for s_, ins in enumerate(lds_):
            k = 4 * qs + s_
            curT[0] = base + cfg.CUT
            add(ins, after=[(rowadv_done[base], 0)] + ([(prev, 0)] if prev else []),
                dead=[start_of(base + 14) if qs < 2 else firstm[base + 16]], tag="qp", prio=-200 + k)
            prev = ins
            kind, r0 = QBUF[qs, s_]
            curT[0] = T
            if (T, 1, qs, s_) not in QKm or (T + 1, 0, qs, s_) not in QKm: continue
            for r in range(4):
                d, a_ = f"a{Q(qs, s_) + r}", f"{kind}{r0 + r}"
                op = "v_accvgpr_write_b32" if kind == "v" else "v_accvgpr_mov_b32"
                c = add(valu(f"{op} {d}, {a_}", [a_], [d]), after=[(QKm[T, 1, qs, s_], 0)], dead=[QKm[T + 1, 0, qs, s_]], tag="qc", prio=-3)
                if kind == "v": unit_free.setdefault((base, r0), []).append((c.ins, 0))
rowadv_done = {}
def items_codepf(T, label):
    t = f"v{vDUM}"
    a = add(salu(f"s_lshl_b32 s{sT2}, s{sW}, 13\n    s_add_u32 s{sT2}, s{sT2}, {label} - L_pf - {RING * 8}", [], [f"s{sT2}", "scc"]), after=[(start_of(T), 0)], dead=[mid_of(T)], tag="pf")
    a.ins.cost = 8
    b = add(valu(f"v_lshl_add_u32 {t}, v{vKR}, 3, s{sT2}", [f"v{vKR}", f"s{sT2}"], [t]), after=[(a.ins, 0)], dead=[mid_of(T)], tag="pf")
    c = add(valu(f"v_min_u32 {t}, L_end - L_pf, {t}", [t], [t]), after=[(b.ins, 0)], dead=[mid_of(T)], tag="pf")
    x = I(f"global_load_dword v{vDUM}, {t}, s[50:51]", "vld", rd=[t], wr=[f"v{vDUM}"]); x.nowait = True
    add(x, after=[(c.ins, 0)], dead=[start_of(T + 1)], tag="pf")
def items_rowadv(T):
    for qs in range(4):
        a = add(salu(f"s_add_u32 s{sOr+qs}, s{sOr+qs}, {'s3' if cfg.extra else 65536}", [f"s{sOr+qs}"], [f"s{sOr+qs}", "scc"]), after=[(start_of(T), 0)], dead=[mid_of(T)], tag="adv", prio=0)
        b = add(salu(f"s_add_u32 s{sQn+qs}, s{sOr+qs}, {'s4' if cfg.extra else 65536}" + ("\n    s_mov_b32 s3, s4\n    s_cmp_le_u32 s%d, 5\n    s_cselect_b32 s4, 0x10000, 0" % sCNT if cfg.extra and qs == 3 else ""), [f"s{sOr+qs}"], [f"s{sQn+qs}", "scc"]),
                after=[(a.ins, 0)] + ([(rowadv_done[T - T % 16], 0)] if qs else []), dead=[mid_of(T)], tag="adv", prio=0)
        rowadv_done[T - T % 16] = b.ins

lprev = []
def items_epilogue(T, endins):
    slots = sorted(q for q in act(T) if islast(T, q))
    base = (T + 1) // 16 * 16 - 16
    ri = {}
    def over(b, qs):
        T1 = nextstart(T, qs)
        return PVm[T1, b, qs] if qs in act(T1) and qs != 4 else endins
    xs = []
    for qs in slots:
        p = pair_of(qs); h = 1 if qs == 4 else qs % 2
        la, lb = f"a{L(p) + 2*h}", f"a{L(p) + 2*h + 1}"
        x, y, r = f"v{vL0 if qs % 2 == 0 else vPF}", f"v{vL1}", f"v{vRI+qs}"
        kw = dict(dead=[over(0, qs), endins], tag="ep", prio=-400)
        pa = [(z, 0) for z in lprev]
        i0 = add(valu(f"v_accvgpr_read_b32 {x}, {la}", [la], [x]), after=[(SMm[T, p], 12)] + pa, **kw)
        i1 = add(valu(f"v_accvgpr_read_b32 {y}, {lb}", [lb], [y]), after=[(SMm[T, p], 12)] + pa, **kw)
        i2 = add(valu(f"v_add_f32 {x}, {x}, {y}", [x, y], [x]), after=[(i0.ins, 0), (i1.ins, 0)], **kw)
        i3 = add(valu(f"v_rcp_f32 {r}, {x}", [x], [r], "trans"), after=[(i2.ins, 0)], **kw)
        ri[qs] = i3.ins; xs.append((x, i2.ins, i3.ins))
        lprev[:] = [i2.ins]
        if qs % 2 == 1 or qs == 4:
            src = ", ".join(z[0] for z in xs); nm = "3" if len(xs) == 2 else ""
            kw = dict(dead=[endins], tag="ep", prio=-300)
            c1 = add(valu(f"v_max{nm}_u32 v{vHI}, v{vHI}, {src}", [f"v{vHI}"] + [z[0] for z in xs], [f"v{vHI}"]), after=[(z[1], 0) for z in xs], **kw)
            c2 = add(valu(f"v_min{nm}_u32 v{vLO}, v{vLO}, {src}", [f"v{vLO}"] + [z[0] for z in xs], [f"v{vLO}"]), after=[(z[1], 0) for z in xs], **kw)
            lprev[:] = [c1.ins, c2.ins] + [z[2] for z in xs]; xs = []
        T1 = nextstart(T, qs)
        if qs in act(T1) and qs != 4:
            for reg in (la, lb):
                add(valu(f"v_accvgpr_write_b32 {reg}, 0", [], [reg]), after=[(i0.ins, 0), (i1.ins, 0)], dead=[SMm[T1, p], endins], tag="ep", prio=0)
    if T == 15:
        def pfree(t, q): return [(PVm[t, 7, q], 0)] + [(SMm[t, p], 0) for p in pairs(t) if pair_lo(p) <= q <= pair_lo(p) + 1]
        pool = [(u, []) for u in (236, 240, 244)] + [(P(14, q), pfree(14, q)) for q in ((4, 2, 3) if DL else (4,))]
        if DL: pool += [(P(15, q), pfree(15, q)) for q in (2, 3)]
    elif slots[0] == 0: pool = [(u, unit_free.get((base, u), [])) for u in (UNITS[:8] if DL else UNITS[-1:] + UNITS[:-1])]
    else: pool = [(u, unit_free.get((base, u), [])) for u in UNITS[12:] + UNITS[8:12] + UNITS[:8]]
    inplace = [q for q in slots if (q == 4 or (T == 15 and phase(q)))] if not endins.text.startswith("; end") else slots
    def seq(sl):
        if cfg.pairst: return [(2 * pp + e, qs) for pp in range(2) for qs in sl for e in range(2)]
        return [(pb, qs) for pb in range(4) for qs in sl]
    order = seq([q for q in slots if q not in inplace]) + seq(inplace)
    sts = []
    ofl = cfg.oflags
    if T >= TFIN[0] - 1:
        f_ = cfg.oflagsFA if slots[0] == 0 else cfg.oflagsFB
        if f_ != "=": ofl = f_
    for k, (pb, qs) in enumerate(order):
        inp = qs in inplace
        w, wa = (O(qs, 2 * pb), []) if inp else pool.pop(0)
        cv = []
        for e in range(2):
            b = 2 * pb + e
            kw = dict(dead=[over(2 * pb if inp else b, qs), endins], tag="ep", prio=(-200 + 4 * k) if inp else 0)
            ms = []
            for r in range(4):
                v = f"v{O(qs, b) + r}"
                ms.append(add(valu(f"v_mul_f32 {v}, {v}, v{vRI+qs}", [v, f"v{vRI+qs}"], [v]), after=[(PVm[T, b, qs], 8), (ri[qs], 1)], **kw))
            for h in range(2):
                d = f"v{w + 2*e + h}"; a_, b_ = f"v{O(qs, b) + 2*h}", f"v{O(qs, b) + 2*h + 1}"
                aft = [(ms[2*h].ins, 0), (ms[2*h+1].ins, 0)] + wa + ([(cv[-1].ins, 0)] if (inp and cv) else [])
                cv.append(add(valu(f"v_cvt_pk_bf16_f32 {d}, {a_}, {b_}", [a_, b_], [d]), after=aft, **kw))
        kw = dict(dead=[over(2 * pb, qs) if inp else endins, endins], tag="ep", prio=-300 + 8 * k)
        sw = []
        for h in range(0 if cfg.noswap else 2):
            x, y = f"v{w + h}", f"v{w + 2 + h}"
            sw.append(add(valu(f"v_permlane16_swap_b32 {x}, {y}", [x, y], [x, y], "perm"), after=[(cv[h].ins, 2), (cv[2 + h].ins, 2)], **kw))
        st = I(f"buffer_store_dwordx4 {R('v', w, 4)}, v{vOA}, s[{sO}:{sO+3}], s{sOr+qs} offen offset:{64*pb}{ofl}", "vst",
               rd=[R("v", w, 4), f"v{vOA}", f"s{sOr+qs}", f"s[{sO}:{sO+3}]"])
        sts.append((add(st, after=[(z.ins, 0) for z in (sw or cv)], **kw), w, inp, pb, qs))
        if not inp:
            pool.append((w, [(st, 2)])); unit_free[base, w] = [(st, 2)]
            for t in range(T + 1, T + 8):
                for it in pwriters.get((t, w), []): it.after.append((st, 2))

    if T == 15 and DL:
        rank = {P(14, 2): 0, P(14, 3): 1, P(15, 2): 4, P(15, 3): 5}
        def key(x):
            it, w, inp, pb, qs = x
            if not inp: return rank.get(w, 100)
            return 200 + pb if qs == 4 else (2 if pb == 0 else 4 + 2 * pb) + qs - 2
        srt = sorted(sts, key=key)
        if cfg.pairst:
            out_ = []
            for x in srt:
                if x not in out_: out_ += sorted([y for y in sts if y[4] == x[4] and y[3] // 2 == x[3] // 2], key=lambda y: y[3])
            srt = out_
        sq = qjit_b + [x[0] for x in srt]
        for k, it in enumerate(sq):
            it.dabs = (firstm[16], cfg.tq0 + cfg.tqstep * min(k, 8) + cfg.tstep * max(k - 8, 0)); it.prio = -1000 + k
    elif not endins.text.startswith("; end"):
        f_ = T >= TFIN[0] - 1
        if cfg.stE and not f_:
            for k, x in enumerate(sts): x[0].nb = (PVm[T, 1, act(T)[-1]], cfg.stE + cfg.tstep * k)
        for k, x in enumerate(sts): x[0].dabs = (PVm[T, 1, act(T)[-1]], (cfg.stF0 if f_ else cfg.st0) + (cfg.stFstep if f_ else cfg.tstep) * (k | 1 if cfg.pairst else k))
    else:
        for k, x in enumerate(sts): x[0].dabs = (PVm[T, 1, act(T)[-1]], cfg.tl0 + cfg.tlstep * (k | 1 if cfg.pairst else k))

    if cfg.pairst:
        for x in sts:
            if x[3] % 2 == 0:
                y = [z for z in sts if z[4] == x[4] and z[3] == x[3] + 1][0]
                x[0].after += list(y[0].after); y[0].after.append((x[0].ins, 0)); glue[id(x[0].ins)] = y[0]
glue = {}

class Sched:
    def __init__(self, stream):
        self.stream = stream
        self.pos = {id(x): k for k, x in enumerate(stream)}
        self.over = 0
        self.cyc = 0; self.ta = 0; self.log = []
    def run(self, bb, its, fixed_after, marks=None, endins=None):
        stream, pos = self.stream, self.pos
        idx = {id(m): j for j, m in enumerate(bb)}
        for mid, lst in fixed_after.items():
            if mid in idx:
                for f in lst: idx[id(f)] = idx[mid]
        for j, lst in (marks or {}).items():
            for f in lst: idx[id(f)] = j
        if endins is not None: idx[id(endins)] = len(bb)
        waiting, act, bydead = {}, [], {}
        byins = {id(it.ins): it for it in its if not it.placed}
        lbm = {}
        def lb(it):
            if id(it) not in lbm:
                v = 0
                for a, _ in it.after:
                    if id(a) in pos: continue
                    if id(a) in idx: v = max(v, idx[id(a)] + 1)
                    elif id(a) in byins: v = max(v, lb(byins[id(a)]))
                lbm[id(it)] = v
            return lbm[id(it)]
        sys.setrecursionlimit(100000)
        for it in its:
            if it.placed: continue
            d = min([idx[id(x)] for x in it.dead if x is not None and id(x) in idx] or [1 << 30])
            if it.dabs and id(it.dabs[0]) in idx: d = min(d, max(idx[id(it.dabs[0])] + it.dabs[1], lb(it) + 1))
            if it.doff: d = max(d - it.doff, min(d, lb(it) + 1))
            it.early = d + it.prio
            it.soft = d - (cfg.dsmargin if it.ins.kind in LGKM else -(1 << 20))
            if it.pace and id(it.pace[0]) in idx and d < (1 << 29):
                o_ = idx[id(it.pace[0])]
                it.soft = int(o_ + it.pace[1] * (d - cfg.dsmargin - o_)); it.early = it.soft + 4
            bydead.setdefault(d, []).append(it)
            w = {id(a) for a, _ in it.after if id(a) not in pos}
            nw[id(it)] = len(w)
            for a in w: waiting.setdefault(a, []).append(it)
            if not w: act.append(it)
        st = {"budget": 8, "first": True, "valu": False, "mem": False}
        def emit(x):
            pos[id(x)] = len(stream); stream.append(x)
            for it in waiting.pop(id(x), []):
                nw[id(it)] -= 1
                if nw[id(it)] == 0: act.append(it)
        def ready(it):
            n = len(stream)
            return all(n - pos[id(a)] - 1 >= dist for a, dist in it.after)
        def place(it):
            if it.ins.block:
                while True:
                    a = cands(lambda x: not x.ins.block and x.ins.kind in VALU + LGKM)
                    if not a: break
                    place(a[0])
            c = it.ins.cost; kd = it.ins.kind
            if kd == "salu" and st["first"]: c -= 4
            if kd in LGKM + VM and st["valu"]: c += 8
            elif kd in LGKM + VM and st["mem"]: c += 4
            if kd in LGKM + VM: st["mem"] = True
            if kd in VALU: st["valu"] = True
            act.remove(it); it.placed = True
            if kd in VM:
                now = self.cyc + 8 + (8 - st["budget"])
                self.ta = (max(self.ta, now) if now < self.ta + 1 and it.tag != "ld" else now) + (cfg.ta_fast if (kd == "dma" or it.ins.fast) else cfg.ta_slow)
            emit(it.ins); st["budget"] -= c; st["first"] = False
            g_ = glue.get(id(it.ins))
            if g_ is not None and not g_.placed: place(g_)
        def cands(pred):
            return sorted([it for it in act if pred(it) and ready(it)], key=lambda x: (x.early, x.seq))
        def force(limit):
            while True:
                due = [it for d in list(bydead) if d <= limit for it in bydead[d] if not it.placed]
                for d in [d for d in bydead if d <= limit]:
                    bydead[d] = [it for it in bydead[d] if not it.placed]
                    if not bydead[d]: del bydead[d]
                if not due: return
                stack = list(due); seen = set(); need = []
                while stack:
                    it = stack.pop()
                    if id(it) in seen: continue
                    seen.add(id(it)); need.append(it)
                    for a_, _ in it.after:
                        o = byins.get(id(a_))
                        if o is not None and not o.placed: stack.append(o)
                av = [it for it in need if nw[id(it)] == 0]
                if not av:
                    raise RuntimeError("deadlock: " + "; ".join(it.ins.text + " AFTER " + str([a for a, _ in it.after if id(a) not in pos]) for it in need[:6]))
                rs = [it for it in av if ready(it)]
                if not rs:
                    rs = cands(lambda x: x.ins.kind in VALU)[:1] or av
                rs.sort(key=lambda x: (0 if (x.ins.kind in LGKM + VM and not st["valu"]) else 1, x.early, x.seq))
                place(rs[0])
        force(0)
        for k, m in enumerate(bb):
            for f in (marks or {}).get(k, []): emit(f)
            emit(m)
            st.update(budget=8, first=True, valu=False, mem=False)
            for f in fixed_after.get(id(m), []):
                emit(f); st["first"] = False
            c = cands(lambda x: x.ins.kind == "salu")
            if c and st["first"] and k + 1 < len(bb) and not getattr(cfg, "nosalu", False): place(c[0])
            vmok = lambda x: x.ins.kind in VM and (x.nb is None or idx.get(id(x.nb[0]), -1000) + x.nb[1] <= k)
            vm = cands(vmok) if (self.ta <= self.cyc and m.pref != "T") else []
            urgent = cands(lambda x: x.soft <= (k - 2 if vm else k + 1))
            if urgent: place(min(urgent, key=lambda x: (x.soft, x.seq)))
            tr = cands(lambda x: x.ins.kind == "trans")
            if m.pref == "T" and tr and st["budget"] >= (4 if urgent else 8):
                place(tr[0])
            else:
                if not urgent and st["budget"] >= 4:
                    if not vm and self.ta <= self.cyc: vm = cands(vmok)
                    mem = vm or cands(lambda x: x.ins.kind in LGKM)
                    if mem and not vm:
                        rd_ = [x for x in mem if x.ins.kind == "dsr"]; wr_ = [x for x in mem if x.ins.kind == "dsw"]
                        if cands(lambda x: x.ins.kind in ("valu", "perm")): mem = rd_
                        elif wr_ and not (rd_ and rd_[0].soft <= k + 3): mem = wr_
                    if mem: place(mem[0])
                while st["budget"] >= 4:
                    a = cands(lambda x: x.ins.kind in ("valu", "perm") or (x.ins.kind == "trans" and st["budget"] >= 8))
                    if not a: break
                    place(a[0])
            force(k + 1)
            if st["budget"] < 0: self.over -= st["budget"]
            self.cyc += max(16, 16 - st["budget"])
            self.log.append(self.cyc)
        if endins is not None: force(1 << 29)
nw = {}

sVC = 49
sTSB = 60
def stamp(k, cyc=False, mode=1):
    if cfg.stamps != mode: return []
    r = sTSB + 2 * k
    return [I(f"s_mem{'time' if cyc else 'realtime'} s[{r}:{r+1}]", "salu", wr=[f"s[{r}:{r+1}]"])]

def V(text, rd, wr, kind="valu"): return I(text, kind, rd=rd, wr=wr)
def prologue():
    o = []
    o.append(I("s_cmp_ge_u32 s2, 256\n    s_cbranch_scc1 L_end", "br"))
    o += stamp(0) + stamp(1, True) + stamp(0, False, 4) + stamp(1, True, 4)
    if cfg.spin: o.append(salu("s_memrealtime s[98:99]"))
    o.append(salu("s_load_dwordx8 s[52:59], s[0:1], 0"))
    l, t, u, g = "v1", "v2", "v3", "v4"
    o += [V(f"v_lshrrev_b32 {t}, 6, v0", ["v0"], [t]),
          V(f"v_and_b32 {l}, 63, v0", ["v0"], [l]),
          V(f"v_readfirstlane_b32 s{sW}, {t}", [t], [f"s{sW}"]),
          V(f"v_lshrrev_b32 {g}, 4, {l}", [l], [g]),
          V(f"v_and_b32 {t}, 15, {l}", [l], [t]),
          V(f"v_lshlrev_b32 {t}, 8, {t}", [t], [t]),
          V(f"v_mul_u32_u24 {u}, {GST}, {g}", [g], [u]),
          V(f"v_add_u32 v{vQA}, {t}, {u}", [t, u], [f"v{vQA}"]),
          ]
    if cfg.noswap:
        if vOA != vQA: o += [V(f"v_lshl_add_u32 v{vOA}, {g}, 4, {t}", [g, t], [f"v{vOA}"])]
        o += [
              V(f"v_and_b32 {u}, 1, {g}", [g], [u]),
              V(f"v_lshlrev_b32 {u}, 2, {u}", [u], [u]),
              V(f"v_xor_b32 {u}, {u}, {l}", [u, l], [u]),
              V(f"v_and_b32 {u}, 7, {u}", [u], [u]),
              V(f"v_lshrrev_b32 {t}, 3, {l}", [l], [t]),
              V(f"v_lshlrev_b32 {t}, 8, {t}", [t], [t]),
              V(f"v_lshl_add_u32 v{vVD}, {u}, 4, {t}", [u, t], [f"v{vVD}"])]
    else:
        o += [
          V(f"v_and_b32 {u}, 1, {g}", [g], [u]),
          V(f"v_lshl_add_u32 {t}, {u}, 5, {t}", [u, t], [t]),
          V(f"v_lshrrev_b32 {u}, 1, {g}", [g], [u]),
          V(f"v_lshl_add_u32 v{vOA}, {u}, 4, {t}", [u, t], [f"v{vOA}"]),
          V(f"v_bfe_u32 {t}, {l}, 1, 2", [l], [t]),
          V(f"v_xor_b32 {t}, {t}, {g}", [t, g], [t]),
          V(f"v_lshlrev_b32 {t}, 5, {t}", [t], [t]),
          V(f"v_lshrrev_b32 {u}, 3, {l}", [l], [u]),
          V(f"v_lshl_add_u32 {t}, {u}, 8, {t}", [u, t], [t]),
          V(f"v_and_b32 {u}, 1, {l}", [l], [u]),
          V(f"v_lshl_add_u32 v{vVD}, {u}, 4, {t}", [u, t], [f"v{vVD}"]),
          ]
    if cfg.qstage:
        o += [V(f"v_and_b32 {t}, 15, {l}", [l], [t]),
              V(f"v_xor_b32 {u}, {t}, {g}", [t, g], [u]),
              V(f"v_lshlrev_b32 {u}, 4, {u}", [u], [u]),
              V(f"v_lshl_add_u32 v{vQD}, {g}, 8, {u}", [g, u], [f"v{vQD}"])]
        o += [V(f"v_xor_b32 v{vQD+j}, {64*j}, v{vQD}", [f"v{vQD}"], [f"v{vQD+j}"]) for j in range(1, 4)]
        o += [salu(f"s_mul_i32 s{sQS}, s{sW}, 20480", [f"s{sW}"], [f"s{sQS}"]), salu(f"s_add_u32 s{sQS}, s{sQS}, {QSTG}")]
        stage2 = [V(f"v_and_b32 {t}, 15, {l}", [l], [t]),
              V(f"v_mul_u32_u24 {u}, {GST // 16}, {g}", [g], [u]),
              V(f"v_xor_b32 {u}, {u}, {t}", [u, t], [u]),
              V(f"v_lshlrev_b32 {u}, 4, {u}", [u], [u]),
              V(f"v_lshl_add_u32 {u}, {t}, 8, {u}", [t, u], [u])]
        stage2 += [V(f"v_xor_b32 v{vQR+k}, {f's{sX[k]}' if cfg.ownk else off(k)}, {u}", [u], [f"v{vQR+k}"]) for k in range(4)]
        stage2 += [V(f"v_add_u32 v{vQR+k}, s{sQS}, v{vQR+k}", [f"v{vQR+k}"], [f"v{vQR+k}"]) for k in range(4)]
    o += [salu(f"s_mul_i32 s{sT0}, s2, {HEADQ}", [], [f"s{sT0}"]),
          salu(f"s_lshl_b32 s{sT1}, s2, 17", [], [f"s{sT1}"]),
          salu(f"s_lshl_b32 s{sM0}, s{sW}, 10", [f"s{sW}"], [f"s{sM0}"]),
          salu(f"s_lshl_b32 s{sVo}, s{sW}, 11", [f"s{sW}"], [f"s{sVo}"]),
          salu(f"s_lshr_b32 s{sKo}, s{sW}, 1", [f"s{sW}"], [f"s{sKo}"]),
          salu(f"s_lshl_b32 s{sKo}, s{sKo}, 12"),
          salu(f"s_and_b32 s{sT2}, s{sW}, 1"),
          salu(f"s_lshl_b32 s{sT2}, s{sT2}, 7"),
          salu(f"s_add_u32 s{sKo}, s{sKo}, s{sT2}"),
          salu(f"s_lshl_b32 s{sOr}, s{sW}, 14"),
          salu(f"s_add_u32 s{sOr+1}, s{sOr}, 4096"),
          salu(f"s_add_u32 s{sOr+2}, s{sOr}, 8192"),
          salu(f"s_add_u32 s{sOr+3}, s{sOr}, 12288"),
          salu(f"s_lshl_b32 s{sOr+4}, s{sW}, 12"),
          salu(f"s_add_u32 s{sOr+4}, s{sOr+4}, {1280*256}"),
          ]
    o += [salu(f"s_mov_b32 s{sQn+k}, s{sOr+k}") for k in range(5)]
    if cfg.ownk:
        o += [salu(f"s_lshl_b32 s{sX[0]}, s{sW}, 6")] + [salu(f"s_xor_b32 s{sX[c]}, s{sX[0]}, {64*c}") for c in range(1, 4)]
    o.append(I("s_waitcnt lgkmcnt(0)", "wait"))
    for srd, p, so, size in ((sK, 54, sT1, HEADK), (sQ, 52, sT0, HEADQ), (sV, 56, sT1, HEADK), (sO, 58, sT0, HEADQ)):
        o += [salu(f"s_add_u32 s{srd}, s{p}, s{so}"), salu(f"s_addc_u32 s{srd+1}, s{p+1}, 0"),
              salu(f"s_mov_b32 s{srd+2}, {size}"), salu(f"s_mov_b32 s{srd+3}, 0x20000")]
    kloads[0] = kload_ins(0); kloads[1] = kload_ins(1)
    k1 = [salu(f"s_add_u32 s{sKo}, s{sKo}, 8192")] + kloads[1]
    if cfg.qstage:
        o += kloads[0] + q0load(0) + q0load(1) + k1
        later = [[], q0load(2), q0load(3)]
    else:
        o += kloads[0] + qload_ins(0) + qload_ins(1)[:2]
        later = [qload_ins(1)[2:] + k1, qload_ins(2), qload_ins(3)]
    if cfg.codepf:
        o.append(I(f"s_getpc_b64 s[50:51]\nL_pf:\n    s_lshr_b32 s{sT2}, s2, 3\n    s_lshl_b32 s{sT2}, s{sT2}, 11", "salu"))
        o.append(V(f"v_lshl_add_u32 v5, {l}, 5, s{sT2}", [l], ["v5"]))
        o.append(V("v_min_u32 v5, L_end - L_pf, v5", ["v5"], ["v5"]))
        x = I(f"global_load_dword v{vDUM}, v5, s[50:51]", "vld", rd=["v5"], wr=[f"v{vDUM}"]); x.nowait = True
        o.append(x)
    o += [salu(f"s_mov_b32 s{sC}, {CSCALE:#x}"), salu(f"s_mov_b32 s{sMASK}, 0xffff0000"),
          salu(f"s_mov_b32 s{sFAIL}, {0x1fffff if cfg.force_fallback else 0}"), salu(f"s_mov_b32 s{sCNT}, {4 + cfg.extra}"), salu("s_mov_b32 s3, 0x10000"), salu("s_mov_b32 s4, 0"),
          salu(f"s_lshl_b32 s{sVC}, s{sW}, 15"), salu(f"s_sub_u32 s{sVC}, s{sVC}, {RING}"),
          salu(f"s_lshl_b32 s{sT2}, s{sW}, 11")]
    if cfg.klin:
        assert cfg.ownk
        o += [V(f"v_lshlrev_b32 {u}, 1, {g}", [g], [u]),
              V(f"v_xor_b32 {t}, {u}, {l}", [u, l], [t]),
              V(f"v_lshlrev_b32 {t}, 4, {t}", [t], [t]),
              V(f"v_add_u32 v{vKR}, {RING}, {t}", [t], [f"v{vKR}"]),
              V(f"v_bfe_u32 {t}, v{vVD}, 4, 2", [f"v{vVD}"], [t]),
              V(f"v_lshlrev_b32 {u}, 1, {t}", [t], [u]),
              V(f"v_lshrrev_b32 v5, 3, {l}", [l], ["v5"]),
              V(f"v_xor_b32 {u}, {u}, v5", [u, "v5"], [u]),
              V(f"v_lshl_add_u32 {u}, {t}, 4, {u}", [t, u], [u]),
              V(f"v_bfe_u32 {t}, v{vVD}, 6, 1", [f"v{vVD}"], [t]),
              V(f"v_lshl_add_u32 {u}, {t}, 6, {u}", [t, u], [u]),
              V(f"v_lshlrev_b32 {u}, 4, {u}", [u], [u]),
              V(f"v_add_u32 {u}, {RING}, {u}", [u], [u]),
              V(f"v_add_u32 v{vKW}, s{sT2}, {u}", [u], [f"v{vKW}"])]
    else:
      o += [V(f"v_lshlrev_b32 {t}, 4, {l}", [l], [t]),
          V(f"v_add_u32 v{vKR}, {RING}, {t}", [t], [f"v{vKR}"]),
          V(f"v_add_u32 v{vKW}, s{sT2}, v{vKR}", [f"v{vKR}"], [f"v{vKW}"])]
    if cfg.ownk:
        o += [V(f"v_add_u32 v{vKC[0]}, s{sM0}, v{vKR}", [f"v{vKR}"], [f"v{vKC[0]}"])]
        o += [V(f"v_xor_b32 v{vKC[c]}, {1024*c}, v{vKC[0]}", [f"v{vKC[0]}"], [f"v{vKC[c]}"]) for c in range(1, 4)]
        o += [salu(f"s_sub_u32 s{sVC}, s{sVC}, s{sM0}")]
    o += [
          V(f"v_lshrrev_b32 {t}, 2, {l}", [l], [t]),
          V(f"v_lshlrev_b32 {t}, 7, {t}", [t], [t]),
          V(f"v_and_b32 {u}, 3, {l}", [l], [u])]
    assert cfg.noswap
    o += [V(f"v_lshl_add_u32 {t}, {u}, 4, {t}", [u, t], [t]),
          V(f"v_bfe_u32 {u}, {l}, 3, 1", [l], [u]),
          V(f"v_lshl_add_u32 v{vVA}, {u}, 6, {t}", [u, t], [f"v{vVA}"]),
          V(f"v_xor_b32 v{vVA+1}, 64, v{vVA}", [f"v{vVA}"], [f"v{vVA+1}"]),
          V(f"v_mov_b32 v{vHI}, 0", [], [f"v{vHI}"]), V(f"v_mov_b32 v{vLO}, -1", [], [f"v{vLO}"])]
    o += [V(f"v_lshrrev_b32 {t}, 4, {l}", [l], [t]),
          V(f"v_xor_b32 {t}, {t}, {l}", [t, l], [t]),
          V(f"v_bfe_u32 {t}, {t}, 1, 1", [t], [t]),
          V(f"v_add_u32 {t}, -1, {t}", [t], [t]),
          V(f"v_and_b32 {t}, 0x3f803f80, {t}", [t], [t])]
    o += [V(f"v_accvgpr_write_b32 a{aSA+k}, {t}", [t], [f"a{aSA+k}"]) for k in range(4)]
    o += [V(f"v_and_b32 {u}, 1, {l}", [l], [u]),
          V(f"v_mul_u32_u24 {u}, 0xaaaa, {u}", [u], [u]),
          V(f"v_add_u32 v{vIDX}, 0x4444, {u}", [u], [f"v{vIDX}"])]
    o += [V(f"v_accvgpr_write_b32 a{aL+k}, 0", [], [f"a{aL+k}"]) for k in range(12)]
    if cfg.qstage: o += stage2
    o += later[0]
    for T in range(1):
        st = vKt[T]; ws = []
        for r in range(8):
            a = f"a{ST(T, 0) + r}"; x = f"v{st + r}"; tt = f"v{vKx[r % 2]}"
            if not cfg.kvg: o += [V(f"v_accvgpr_read_b32 {x}, {a}", [a], [x])]
            o += [V(f"v_lshlrev_b32 {tt}, 16, {x}", [x], [tt]),
                  V(f"v_and_b32 {x}, s{sMASK}, {x}", [x], [x]),
                  V(f"v_mul_f32 {tt}, s{sC}, {tt}", [tt], [tt]),
                  V(f"v_mul_f32 {x}, s{sC}, {x}", [x], [x]),
                  V(f"v_cvt_pk_bf16_f32 {x}, {tt}, {x}", [tt, x], [x])]
        for e in range(2):
            w = I(f"ds_write_b128 v{vKW}, {R('v', st + 4*e, 4)} offset:{T*8192 + e*KWE}", "dsw", rd=[f"v{vKW}", R('v', st + 4*e, 4)])
            o.append(w); ws += [Item(w)] * 4
        rb = []
        for e in range(0 if cfg.ownk else 2):
            d = R("a", ST(T, e), 4)
            x = I(f"ds_read_b128 {d}, v{vKW} offset:{T*8192 + e*1024}", "dsr", rd=[f"v{vKW}"], wr=[d])
            o.append(x); rb.append(Item(x))
        kwrites[T] = ws; readback[T] = rb
    o += later[1]
    pro_tail.extend(later[2] + [salu(f"s_add_u32 s{sQn+k}, s{sOr+k}, 65536") for k in range(4)])
    return o
pro_tail = []

def finale():
    a = L(2)
    t = []
    t.append("    s_nop 7\n    s_nop 3")
    t += [f"    v_accvgpr_read_b32 v{k}, a{a+k}" for k in range(4)]
    t += [f"    v_and_b32 v{k}, 0x7fffffff, v{k}" for k in range(4)]
    t += ["    v_max_u32 v0, v0, v1", "    v_max3_u32 v0, v0, v2, v3",
          "    v_cmp_le_u32 vcc, 0x5d800000, v0",
          "    s_nop 1",
          "    s_cmp_lg_u64 vcc, 0",
          f"    s_cselect_b32 s{sT0}, 1, 0",
          f"    v_cmp_lt_u32 vcc, 0x6f800000, v{vHI}",
          f"    v_cmp_gt_u32 s[6:7], 1.0, v{vLO}",
          "    s_nop 1",
          "    s_or_b64 vcc, vcc, s[6:7]",
          f"    s_cselect_b32 s{sFAIL}, 0x1fffff, s{sFAIL}",
          f"    s_lshl_b32 s{sT1}, s{sW}, 2",
          f"    s_add_u32 s{sT1}, s{sT1}, {RING}",
          f"    v_mov_b32 v0, s{sT0}", f"    v_mov_b32 v1, s{sT1}", f"    v_mov_b32 v2, {RING}",
          "    ds_write_b32 v1, v0", "    s_waitcnt lgkmcnt(0)", "    s_barrier",
          "    ds_read_b128 v[4:7], v2", "    s_waitcnt lgkmcnt(0)",
          "    v_or3_b32 v4, v4, v5, v6", "    v_or_b32 v4, v4, v7", "    s_nop 0",
          f"    v_readfirstlane_b32 s{sT0}, v4", "    s_nop 1",
          f"    s_cmp_lg_u32 s{sT0}, 0",
          f"    s_cselect_b32 s{sFAIL}, 0x1fffff, s{sFAIL}"]
    if cfg.stamps in (1, 4):
        t += ["    s_memrealtime s[%d:%d]" % (sTSB + 22, sTSB + 23), "    s_waitcnt vmcnt(0)",
              "    s_memrealtime s[%d:%d]" % (sTSB + 24, sTSB + 25), "    s_memtime s[%d:%d]" % (sTSB + 26, sTSB + 27)]
    if cfg.stamps:
        t += ["    s_load_dwordx2 s[4:5], s[0:1], 40", "    s_waitcnt lgkmcnt(0)",
              "    s_mov_b32 s6, 0x100000", "    s_mov_b32 s7, 0x20000",
              f"    s_lshl_b32 s{sT0}, s2, 2", f"    s_add_u32 s{sT0}, s{sT0}, s{sW}", f"    s_lshl_b32 s{sT0}, s{sT0}, 7",
              "    v_mov_b32 v1, 0"]
        for k in range(21):
            t += [f"    v_mov_b32 v0, s{sTSB + 2*k}", f"    buffer_store_dword v0, v1, s[4:7], s{sT0} offen offset:{4*k}"]
    if cfg.spin:
        t += ["L_spin:", "    s_memrealtime s[100:101]", "    s_waitcnt lgkmcnt(0)", "    s_sub_u32 s100, s100, s98", f"    s_cmp_lt_u32 s100, {cfg.spin * 100}", "    s_cbranch_scc1 L_spin"]
    if cfg.dbg >= 0:
        t += [f"    s_cmp_lg_u32 s2, {cfg.dbg}", "    s_cbranch_scc1 L_nodbg", f"    s_cmp_lg_u32 s{sW}, 0", "    s_cbranch_scc1 L_nodbg",
              "    s_load_dwordx2 s[4:5], s[0:1], 32", "    s_waitcnt lgkmcnt(0)", "    s_mov_b32 s6, 256", "    s_mov_b32 s7, 0x20000"]
        lst = [(2, 0), (3, 0), (4, 0), (5, 0), (9, 0), (8, 0), (7, 0), (6, 0), (11, 0), (12, 0), (10, 1), (13, 10)]
        for k, (a_, b_) in enumerate(lst):
            t += [f"    s_sub_u32 s{sT1}, s{sTSB + 2*a_}, s{sTSB + 2*b_}", f"    v_mov_b32 v0, s{sT1}", f"    buffer_store_dword v0, v1, s[4:7], 0 offen offset:{4*k}"]
        t += ["L_nodbg:"]
    t += [f"    s_cmp_eq_u32 s{sFAIL}, 0", "    s_cbranch_scc1 L_end"]
    sJ, sRow, sKb, sVt = sT0, sT1, sT2, sKo
    f = ["    ; ---- slow path: rows whose unshifted exponent sum left the safe range are redone with the true max",
         "    s_waitcnt vmcnt(0)"]
    f += [f"    v_and_b32 v{vVA+c}, 0xffff, v{vVA+c}" for c in range(NVA)]
    f += ["L_fb_next:",
          f"    s_ff1_i32_b32 s{sJ}, s{sFAIL}", f"    s_bitset0_b32 s{sFAIL}, s{sJ}",
          f"    s_cmp_gt_u32 s{sJ}, 4", f"    s_cselect_b32 s{sKb}, 1, 0", f"    s_sub_u32 s{sKb}, s{sJ}, s{sKb}",
          f"    s_lshr_b32 s{sRow}, s{sKb}, 2", f"    s_lshl_b32 s{sRow}, s{sRow}, 16",
          f"    s_and_b32 s{sKb}, s{sKb}, 3", f"    s_lshl_b32 s{sKb}, s{sKb}, 12", f"    s_add_u32 s{sRow}, s{sRow}, s{sKb}",
          f"    s_lshl_b32 s{sKb}, s{sW}, 14", f"    s_add_u32 s{sRow}, s{sRow}, s{sKb}",
          f"    s_cmp_eq_u32 s{sJ}, 4", f"    s_cselect_b32 s{sRow}, s{sOr+4}, s{sRow}"]
    f += [f"    buffer_load_dwordx4 v[{4*s}:{4*s+3}], v{vQA}, s[{sQ}:{sQ+3}], s{sRow} offen offset:{off(s)}" for s in range(4)]
    def qk(dst, extra):
        r = [f"    buffer_load_dwordx4 v[{20+4*s}:{23+4*s}], v{vQA}, s[{sK}:{sK+3}], s{sKb} offen offset:{off(s)}" for s in range(4)]
        r += ["    s_waitcnt vmcnt(0)"]
        r += [f"    v_mfma_f32_16x16x32_bf16 v[{dst}:{dst+3}], v[{20+4*s}:{23+4*s}], v[{4*s}:{4*s+3}], {'0' if s == 0 else f'v[{dst}:{dst+3}]'}" for s in range(4)]
        r += [f"    s_add_u32 s{sKb}, s{sKb}, 4096", "    s_nop 9"]
        return r
    f += ["    v_mov_b32 v16, 0xff800000", f"    s_mov_b32 s{sKb}, 0", "L_fb_max:"]
    f += qk(36, None)
    f += ["    v_max3_f32 v16, v16, v36, v37", "    v_max3_f32 v16, v16, v38, v39",
          f"    s_cmp_lt_u32 s{sKb}, {HEADK}", "    s_cbranch_scc1 L_fb_max"]
    def xlane(reg, tmp, op):
        return [f"    v_mov_b32 v{tmp}, v{reg}", "    s_nop 1", f"    v_permlane16_swap_b32 v{reg}, v{tmp}", "    s_nop 1", f"    {op} v{reg}, v{reg}, v{tmp}",
                f"    v_mov_b32 v{tmp}, v{reg}", "    s_nop 1", f"    v_permlane32_swap_b32 v{reg}, v{tmp}", "    s_nop 1", f"    {op} v{reg}, v{reg}, v{tmp}"]
    f += xlane(16, 17, "v_max_f32")
    f += [f"    v_mul_f32 v17, s{sC}, v16", "    v_mov_b32 v18, 0"]
    f += [f"    v_mov_b32 v{64+k}, 0" for k in range(32)]
    f += [f"    s_mov_b32 s{sKb}, 0", f"    s_mov_b32 s{sVt}, 0", "L_fb_pv:"]
    f += qk(36, None) + qk(40, None)
    f += [f"    v_fma_f32 v{36+k}, v{36+k}, s{sC}, -v17" for k in range(8)]
    f += [f"    v_exp_f32 v{36+k}, v{36+k}" for k in range(8)]
    f += ["    s_nop 0"] + [f"    v_add_f32 v18, v18, v{36+k}" for k in range(8)]
    f += [f"    v_cvt_pk_bf16_f32 v{44+k}, v{36+2*k}, v{37+2*k}" for k in range(4)]
    f += [f"    v_add_u32 v{52+c}, s{sVt}, v{vVA+c}" for c in range(NVA)]
    for b in range(8):
        f += [f"    ds_read_b64_tr_b16 v[{48+2*blk}:{49+2*blk}], v{52+vsel(b)[0]} offset:{(b>>2)*32768 + blk*2048 + vsel(b)[2]}" for blk in range(2)]
        f += ["    s_waitcnt lgkmcnt(0)", f"    v_mfma_f32_16x16x32_bf16 v[{64+4*b}:{67+4*b}], v[48:51], v[44:47], v[{64+4*b}:{67+4*b}]"]
    f += [f"    s_add_u32 s{sVt}, s{sVt}, 4096", f"    s_cmp_eq_u32 s{sVt}, 32768", f"    s_cselect_b32 s{sVt}, 65536, s{sVt}",
          f"    s_cmp_lt_u32 s{sKb}, {HEADK}", "    s_cbranch_scc1 L_fb_pv"]
    f += xlane(18, 17, "v_add_f32")
    f += ["    v_rcp_f32 v18, v18", "    s_nop 7"]
    f += [f"    v_mul_f32 v{64+k}, v{64+k}, v18" for k in range(32)]
    f += [f"    v_cvt_pk_bf16_f32 v{96+k}, v{64+2*k}, v{65+2*k}" for k in range(16)]
    f += ["    s_nop 1"]
    for pb in range(0 if cfg.noswap else 4):
        f += [f"    v_permlane16_swap_b32 v{96+4*pb+h}, v{98+4*pb+h}" for h in range(2)]
    f += [f"    buffer_store_dwordx4 v[{96+4*pb}:{99+4*pb}], v{vOA}, s[{sO}:{sO+3}], s{sRow} offen offset:{64*pb}" for pb in range(4)]
    f += ["    s_waitcnt vmcnt(0)", f"    s_cmp_lg_u32 s{sFAIL}, 0", "    s_cbranch_scc1 L_fb_next"]
    return t + f

def simulate(linear, waits, nops, marks):
    t = 0; pipe = 0; q = []; lastdone = 0; out = []; t0 = 0; first = False; valu = False; mem = False; cur = None; stall = 0; stl = []; idle = [0]
    for ins in linear:
        if ins.kind == "label": continue
        w = waits.get(id(ins))
        if w:
            if w[1] is not None and len(q) > w[1]:
                need = q[len(q) - w[1] - 1]
                if need > t: stall += need - t; t = need
            t += 0 if first else 4; first = False
        t += 4 * nops.get(id(ins), 0)
        if id(ins) in marks:
            out.append(t - t0); stl.append(stall); t0 = t; stall = 0; idle.append(0)
        k = ins.kind
        if k in MAT:
            idle[-1] += max(0, pipe - t)
            t = max(t, pipe); pipe = t + 16; t += 8; first = True; valu = False; mem = False
        else:
            c = ins.cost
            if k in ("salu", "bar", "br", "wait") and first: c -= 4
            if k in LGKM + VM and valu: c += 8
            elif k in LGKM + VM and mem: c += 4
            if k in LGKM + VM: mem = True
            if k in LGKM:
                svc = 32 if k == "dsw" else (16 if ("b128" in ins.text or cfg.noswap) else 8)
                lastdone = max(lastdone + svc, t + cfg.ldslat); q.append(lastdone)
            if k in VALU: valu = True
            t += c; first = False
    out.append(t - t0); stl.append(stall)
    sys.stderr.write(f"sim cycles/period: {out[1:]}\nsim lgkm stalls : {stl[1:]}\nunused issue cyc: {idle[1:]}\n")

def gen_items(T):
    curT[0] = T
    items_softmax(T); items_kread(T)
    if T % 8 == 0 and T > 0: items_vtoggle(T)
    items_vread(T)
def bar_needs(T):
    pub = (T + 1,) if T < 15 else (T + 1, T + 2)
    nd = [x.ins for t in pub for x in kwrites[t]]
    if T in vdmas and T > 0: nd += vdmas[T]
    done = (T - 1, T) if T >= 13 else (T - 1,) if T >= 1 else ()
    nd += [kreads[t, blk, s_].ins for t in done for blk in range(2) for s_ in range(4) if (t, blk, s_) in kreads]
    nd += [x.ins for t in done if t in readback for x in readback[t]]
    BARm[T].needs = nd
def build():
    C = cfg.CUT; NT = 48 + C + 2
    for T in range(NT + 2): mk_step(T)
    BARm[-1] = I("s_barrier", "bar"); BARm["V0"] = I("s_barrier", "bar")
    for T in list(range(0, 15, 2)) + list(range(1, NT + 2, 2)): BARm[T] = I("s_barrier", "bar")
    pro = prologue()
    pro.append(BARm[-1]); pro += stamp(2) + pro_tail
    bb, start = [], {}
    for T in range(NT):
        start[T] = len(bb); bb += backbone_period(T)
    backbone_period(NT)
    fixed = {id(bar_spot(T)): [BARm[T]] for T in range(NT) if T in BARm}
    fixed[id(QKm[1, 0, 0, 0] if cfg.sm0 else QKm[0, 1, 2, 3])] = [BARm["V0"]]
    labL = I("L_loop:", "label"); labL2 = I("; second instance", "label"); labL3 = I("; third instance", "label")
    def chk():
        pre = ""
        if cfg.stamps == 1:
            r = sTSB + 12
            pre = "".join(f"s_mov_b64 s[{r+2*k+2}:{r+2*k+3}], s[{r+2*k}:{r+2*k+1}]\n    " for k in (2, 1, 0)) + f"s_memrealtime s[{r}:{r+1}]\n    "
        return I(pre + f"s_sub_u32 s{sCNT}, s{sCNT}, 1\n    s_cmp_eq_u32 s{sCNT}, 0\n    s_cbranch_scc1 L_tail", "br")
    chk1, chk2 = chk(), chk()
    brL, brL2 = I("s_branch L_loop", "br"), I("s_branch L_loop", "br")
    marks = {start[16 + C]: stamp(5) + [labL], start[32]: [chk1], start[32 + C]: [brL, labL2], start[48]: [chk2], start[48 + C]: [brL2, labL3]}
    marks[start[12]] = [I("L_p12:", "label")]
    if cfg.stamps == 1:
        marks[start[1]] = stamp(3); marks[start[16]] = stamp(4) + stamp(10, True)
    if cfg.stamps == 2:
        for T in range(16 + C, 48 + C): marks.setdefault(start[T], []).append(stamp((T - C) % 16, True, 2)[0])
    if cfg.stamps == 3:
        for T in range(0, min(20, 16 + C - cfg.st3)): marks.setdefault(start[T + cfg.st3], []).insert(0, stamp(T, False, 3)[0])
        pro.insert(1, stamp(20, False, 3)[0])
    for T in range(16): items_loads(T)
    for T in range(NT):
        gen_items(T)
        if T % 16 == C and T > 16: items_rowadv(T)
        if cfg.repf:
            if T == cfg.pf1: items_codepf(T, "L_p12")
            if T == cfg.pf2: items_codepf(T, "L_loop")
            if T > 32 and T % 16 == cfg.pf3: items_codepf(T, "L_tail")
    for base in (16, 32): items_qpf(base)
    for T in range(1, NT + 2): curT[0] = T; items_kwrite(T)
    curT[0] = -50; items_qjit()
    for T in range(NT):
        if any(islast(T, q) for q in act(T)):
            curT[0] = T + 1000
            items_epilogue(T, marks[start[(T + 1) // 16 * 16 + C]][0])
    BARm[-1].needs = [x.ins for x in kwrites[0]]
    BARm["V0"].needs = list(vdmas[0])
    for T in range(NT):
        if T in BARm: bar_needs(T)
    stream = list(pro)
    Sched(stream).run(bb, items, fixed, marks)
    p = {id(x): k for k, x in enumerate(stream)}
    ref = {(it.T[0] - 16, it.T[1]): p[id(it.ins)] < p[id(brL)] for it in items if it.placed and 32 + C - 2 <= it.T[0] < 48}
    cut = marks[start[16 + C]][0]
    for it in items:
        r = ref.get(it.T)
        if r is True: it.dead = list(it.dead) + [cut]
        elif r is False: it.after.append((labL, 0))
        it.placed = False
    stream = list(pro)
    sc = Sched(stream)
    sc.run(bb, items, fixed, marks)
    p = {id(x): k for k, x in enumerate(stream)}
    iL, iC1, iBr, iL2, iC2, iBr2 = (p[id(x)] for x in (labL, chk1, brL, labL2, chk2, brL2))
    segP = stream[:iL]; segL = stream[iL:iC1 + 1]; segB = stream[iC1 + 1:iBr + 1]
    one, two = stream[iL:iBr + 1], stream[iL2:iBr2 + 1]
    a = [x.text for x in one[1:]]; b = [x.text for x in two[1:]]
    if a != b:
        for k, (x, y) in enumerate(zip(a, b)):
            if x != y: sys.stderr.write(f"loop mismatch at {k}: {x} | {y}\n"); break
        raise SystemExit("loop instances differ")
    mp = {id(y): x for x, y in zip(one, two)}
    for x, y in zip(one, two): x.needs = x.needs + [mp.get(id(z), z) for z in y.needs]
    def keyed(its):
        cnt, out = {}, {}
        for it in its:
            k = (it.T[0], it.ins.text); cnt[k] = cnt.get(k, 0) + 1; out[k + (cnt[k],)] = it
        return out
    old = {k: it for k, it in keyed(items).items() if it.placed and p[id(it.ins)] <= iC2}
    TFIN[0] = 48; TE = 48 + DL
    for d in (QKm, PVm, SMm):
        for k in [k for k in d if k[0] >= 48 and (k[0] >= TE or (k[2] if d is not SMm else 2 * k[1]) not in (2, 3))]: del d[k]
    for T in range(TE - 1 if TE % 2 == 0 else TE, NT + 2): BARm.pop(T, None)
    for j in range(32):
        buf = Kf(0, 0) + 4 * (j % 8)
        VCm[j] = mfma(L(2), buf, buf, j == 0, dk="a")
    tbb = []
    for T in range(48, TE + 1): tbb += backbone_period(T)
    items.clear(); pwriters.clear(); lprev.clear()
    for k in [k for k in unit_free if k[0] == 32]: del unit_free[k]
    for T in range(46, TE): gen_items(T)
    for T in range(48, TE): curT[0] = T; items_kwrite(T)
    endT = I("; end of tail", "label"); endA = I("; group A stored", "label")
    curT[0] = 5000
    if DL: items_epilogue(47, tbb[len(tbb) - 32 - 20])
    items_epilogue(TE - 1, endT)
    va = add(valu(f"v_add_u32 v{vVD}, s{sVC}, v{vKR}", [f"v{vKR}"], [f"v{vVD}"]), dead=[PVm[TE - 1, 2, act(TE - 1)[0]]], tag="vc")
    for j in range(32):
        d = R("a", Kf(0, 0) + 4 * (j % 8), 4)
        lastu = [(QKm[TE - 1, (j % 8) // 4, act(TE - 1)[-1], j % 4], 0)] if j < 8 else [(VCm[j - 8], 0)]
        add(I(f"ds_read_b128 {d}, v{vVD} offset:{j*1024}", "dsr", rd=[f"v{vVD}"], wr=[d]), after=[(va.ins, 0)] + lastu, dead=[VCm[j]], tag="vc", prio=-6)
    alias = {}
    for k, it in keyed(items).items():
        if k in old: alias[id(it.ins)] = old[k].ins; it.ins = old[k].ins; it.placed = True
    tfixed = {id(bar_spot(T)): [BARm[T]] for T in range(48, TE) if T in BARm}
    known = {id(x) for x in stream[:iC2 + 1]} | {id(x) for x in tbb} | {id(it.ins) for it in items} | {id(x) for l_ in tfixed.values() for x in l_}
    for it in items: it.after = [(alias.get(id(a_), a_), d_) for a_, d_ in it.after if id(alias.get(id(a_), a_)) in known]
    for T in range(48, TE):
        if T in BARm: bar_needs(T)
    tstream = stream[:iC2 + 1]
    labT = I("L_tail:", "label")
    tm = {0: [labT]}
    if cfg.wbl2:
        pos_ = {1: tbb.index(firstm[TE]), 2: 1, 3: tbb.index(firstm[TE - 1])}[cfg.wbl2]
        tm.setdefault(pos_, []).append(I(f"s_lshl_b32 s{sT1}, s2, 2\n    s_add_u32 s{sT1}, s{sT1}, s{sW}\n    s_and_b32 s{sT1}, s{sT1}, {cfg.wbmask}\n    s_cbranch_scc1 L_nowb\n    buffer_wbl2 sc1\nL_nowb:", "br"))
    Sched(tstream).run(tbb, items, tfixed, tm, endins=endT)
    segT = tstream[iC2 + 1:]
    assert segT[0] is labT, segT[:3]
    assert all(it.placed for it in items)
    for x in segT: x.needs = [mp.get(id(z), z) for z in x.needs]
    linear = segP + segL + segB + segL + segB + segL + segT
    waits = insert_waits(linear)
    nops = fix_hazards(linear, waits)
    sys.stderr.write(f"instr: P {len(segP)} L {len(segL)} B {len(segB)} T {len(segT)}; waits {len(waits)}; nops {sum(nops.values())} at {len(nops)} sites\n")
    mk = {id(stream[p[id(bb[start[T]])]]): T for T in range(32 + C)}
    mk.update({id(firstm[T]): T for T in range(48, TE + 1)})
    simulate(segP + segL + segB + segL + segT, waits, nops, mk)
    loop = render(segL, waits, nops) + render(segB, waits, nops)
    if cfg.drop:
        pat = {"v": "ds_read_b64_tr", "k": "ds_read_b128", "w": "ds_write", "s": "v_smfmac", "e": "v_exp", "c": r"v_cvt_pk_bf16_f32 v1[6-9]\d, v20", "q": "v_accvgpr_(write_b32 a\d+, v|mov)",
               "m": "v_mul_f32", "t": "buffer_store", "l": "buffer_load", "b": "s_barrier"}
        for ch in cfg.drop: loop = [x for x in loop if not re.search(pat[ch], x)]
    sk = []
    if cfg.skew:
        sk = [f"    s_mov_b32 s{sT1}, s{sW}" if cfg.skew > 0 else f"    s_lshr_b32 s{sT1}, s{sW}, 1", "L_sk:", f"    s_cmp_eq_u32 s{sT1}, 0", "    s_cbranch_scc1 L_sk2", f"    s_sub_u32 s{sT1}, s{sT1}, 1", f"    s_nop {abs(cfg.skew)}", "    s_branch L_sk", "L_sk2:"]
    body = render(segP, waits, nops) + sk + loop + render(segT, waits, nops)
    return body

HEADER = open("standalone__mha_softmax__near_ridge.s.ref").read().split("; Override launch")[0]
def main():
    body = build()
    out = HEADER + f"""; One workgroup (4 waves x 512 registers) per (batch, head).  V stays in LDS, K (pre-scaled by log2(e)/sqrt(D))
; stays in registers and is re-published through a small LDS ring; generated by my own scheduling script.
; @launch grid=(256,1,1) block=(256,1,1) lds=163840
.amdgcn_target "amdgcn-amd-amdhsa--gfx950"
.text
.globl {KNAME}
.p2align 8
.type {KNAME},@function
{KNAME}:
""" + "\n".join(body) + "\n" + "\n".join(finale()) + f"""
L_end:
    s_endpgm
.section .rodata,"a"
.p2align 6
.amdhsa_kernel {KNAME}
  .amdhsa_next_free_vgpr 512
  .amdhsa_next_free_sgpr 102
  .amdhsa_accum_offset 256
  .amdhsa_group_segment_fixed_size 0
  .amdhsa_kernarg_size 48
  .amdhsa_user_sgpr_count 2
  .amdhsa_user_sgpr_kernarg_segment_ptr 1
  .amdhsa_system_sgpr_workgroup_id_x 1
.end_amdhsa_kernel
"""
    open(sys.argv[1], "w").write(out)
main()
```

```python
import sys, struct, math, re
from core import *

class Cfg:
    dmap = "A"
    LK = 3
    LV = 2
    delta = 3
    noswap = True
    busy64 = True
    oflagsFA = "="
    oflagsFB = "="
    wr64 = False
    CUT = 10
    leadT = 11
    ta_slow = 250
    ta_fast = 90
    v0first = False
    dsmargin = 7
    st3 = 0
    jitfirst = True
    tq0 = 2
    tstep = 16
    st0 = 60
    tqstep = 10
    ownk = True
    vc1 = True
    tlds = True
    tpk = False
    tx0 = 8
    txstep = 6
    exk = 5
    nvc = 32
    kvg = True
    ksd = 0
    gs = "246789"
    klin = True
    stE = 50
    drop = ""
    skew = 0
    repf = False
    early0 = True
    e0g = 3
    pf1 = 8
    pf2 = 23
    pf3 = 9
    wbl2 = 0
    wbmask = 0x3e3
    pairst = False
    grow = 0
    stF0 = 20
    stFstep = 12
    jitstep = 2
    qstage = True
    sm0 = True
    tl0 = 6
    tlstep = 5
    wrn = 2
    kdoff = 14
    kstep = 8
    ldslat = 110
    qpf0 = 8
    lead = 0
    qflags = " nt"
    oflags = ""
    kvflags = " nt"
    pfflags = " nt"
    pf_period = 11
    stamps = 0
    spin = 0
    extra = 0
    dbg = -1
    force_fallback = False
    vahead = 2
    codepf = True
cfg = Cfg()
for a in sys.argv[2:]:
    k, v = a.split("=", 1)
    old = getattr(cfg, k)
    setattr(cfg, k, (v == "1") if isinstance(old, bool) else type(old)(v.replace("+", " ")))

if cfg.vc1: cfg.nvc = 0
KNAME = "standalone__mha_softmax__near_ridge_kernel"
SQ, SK, D = 1312, 512, 128
HEADQ = SQ * D * 2
HEADK = SK * D * 2
RING = 131072
CSCALE = struct.unpack("<I", struct.pack("<f", math.log2(math.e) / math.sqrt(D)))[0]

vO, vP, vS, vVf = 0, 160, 200, 208
vVA = 224
vHI, vLO = 226, 227
vKR, vKW, vQA, vOA, vPF, vIDX, vVD = 228, 229, 230, 231, 232, 233, 234
if cfg.ownk:
    assert cfg.dmap == "A" and cfg.noswap and not cfg.repf
    vOA = vQA; vKC = [228, 229, 235, 231]; vKW = 254
sX = [28, 46, 47, 48]
vT = 235
vKt = [236, 244]; vKx = [252, 253]
vW = [236, 240, 244]
vRI = 248
vL0, vL1, vDUM = 253, 254, 255
aQ, aST, aKf, aL, aSA = 0, 80, 208, 240, 252
def O(qs, b): return vO + 32 * qs + 4 * b
def P(T, qs): return vP + 20 * (T % 2) + 4 * qs
def S(c): return vS + 4 * (c % 2)
def Vf(f): return vVf + 4 * (f % 4)
def Q(qs, s): return aQ + 16 * qs + 4 * s
def Kf(blk, s): return aKf + 16 * blk + 4 * s
def ST(j, e): return aST + 8 * (j % 16) + 4 * e
def KA(T, blk, s): return ST(T, blk) if (cfg.ownk and s == 0) else Kf(blk, s)
def L(p): return aL + 4 * p
sQ, sK, sV, sO = 8, 12, 16, 20
sW = 24; sC = 25; sMASK = 26; sFAIL = 27; sBIT = 28; sCNT = 29
sOr = 30
sQn = 35
sKo, sVo, sM0 = 40, 41, 42
sT0, sT1, sT2 = 43, 44, 45
sLO, sRNG = 46, 47
sTS = 48
def off(s): return 64 * s if cfg.dmap == "A" else 128 * (s >> 1) + 16 * (s & 1)
GST = 16 if cfg.dmap == "A" else 32

DL = cfg.delta
TFIN = [1 << 30]
def act(T):
    if T < 0: return []
    if T < 16: return [0, 1, 2, 3, 4]
    if T >= TFIN[0] + DL: return []
    if T >= TFIN[0]: return [2, 3]
    if T < 16 + DL: return [0, 1]
    if DL and T >= 32 and (T % 16 == 0 or T % 16 == DL - 1): return [2, 3, 0, 1]
    return [0, 1, 2, 3]
def n_of(T): return len(act(T))
def phase(qs): return DL if qs in (2, 3) else 0
def isfirst(T, qs): return T == 0 or (T >= 16 and T % 16 == phase(qs))
def islast(T, qs): return T == 15 or (T > 16 + DL and (T + 1) % 16 == phase(qs))
def nextstart(T, qs):
    return 16 + phase(qs) if T == 15 else T + 1

def mfma(d, a, b, zero, dk="v", ak="a", bk="a"):
    D_, A_, B_ = R(dk, d, 4), R(ak, a, 4), R(bk, b, 4)
    return I(f"v_mfma_f32_16x16x32_bf16 {D_}, {A_}, {B_}, {'0' if zero else D_}", "mfma",
             rd=[A_, B_] + ([] if zero else [D_]), wr=[D_], acc=not zero)
def valu(text, rd, wr, kind="valu"): return I(text, kind, rd=rd, wr=wr)
def salu(text, rd=(), wr=()): return I(text, "salu", rd=rd, wr=wr)

class Item:
    __slots__ = ("ins", "after", "dead", "prio", "early", "tag", "placed", "T", "seq", "soft", "doff", "pace", "dabs", "nb")
    def __init__(self, ins, after=(), dead=None, early=None, tag="", prio=0, doff=0, pace=None):
        self.doff = doff; self.pace = pace; self.dabs = None; self.nb = None
        self.ins = ins; self.after = list(after); self.dead = dead; self.early = early
        self.tag = tag; self.prio = prio; self.placed = False

QKm, PVm, SMm, BARm, VCm = {}, {}, {}, {}, {}
def chain(T, g):
    a = act(T)
    if T == 15: return (g % 2, a[g // 2])
    if T == 0 and cfg.sm0: return [(0, 0), (1, 0), (0, 1), (1, 1), (0, 2), (1, 2), (0, 3), (0, 4), (1, 3), (1, 4)][g]
    return (g // len(a), a[g % len(a)])
def mk_step(T):
    for g in range(2 * n_of(T)):
        blk, qs = chain(T, g)
        for s in range(4):
            QKm[T, blk, qs, s] = mfma(S(g), KA(T, blk, s), Q(qs, s), s == 0)
    for b in range(8):
        for qs in act(T):
            PVm[T, b, qs] = mfma(O(qs, b), Vf(b), P(T, qs), isfirst(T, qs), ak="v", bk="v")
    for p in pairs(T):
        d, b = R("a", L(p), 4), R("v", P(T, pair_lo(p)), 8)
        SMm[T, p] = I(f"v_smfmac_f32_16x16x64_bf16 {d}, {R('a', aSA, 4)}, {b}, v{vIDX}", "smf",
                      rd=[d, b, R("a", aSA, 4), f"v{vIDX}"], wr=[d], acc=True)
def pair_of(qs): return 2 if qs == 4 else qs // 2
def pairs(T):
    out = []
    for qs in act(T):
        if pair_of(qs) not in out: out.append(pair_of(qs))
    return out
def pair_lo(p): return 3 if p == 2 else 2 * p
def pvlist(T): return [PVm[T, b, qs] for b in range(8) for qs in act(T)]
firstm = {}
VC1 = {(T, dh): mfma(Kf(1, 0), Kf(0, 0), Kf(0, 0), T == 0 and dh == 0, dk="a") for T in range(16) for dh in range(2)}

def backbone_period(T):
    tail = n_of(T) == 0
    pv = pvlist(T - 2)[-4:] + (pvlist(T - 1) if tail else pvlist(T - 1)[:-4])
    sm = [SMm[T - 1, p] for p in pairs(T - 1)]
    out = []
    if tail:
        out += pv[:6] + sm + pv[6:] + [VCm[j] for j in range(cfg.nvc)]
        for k, m in enumerate(out): m.pref = "T" if (k < 4) else "D"
        firstm[T] = out[0]
        return out
    n = n_of(T); G = 2 * n
    lead = cfg.leadT if T == 16 else cfg.lead if (T > 16 and any(islast(T - 1, q) for q in act(T - 1))) else 0
    if lead:
        nl = 4 * lead
        head = pv[:nl]; pv = pv[nl:]
        if lead >= 2:
            head = head[:4] + [sm[0]] + head[4:8] + sm[1:] + head[8:]
            sm = []
        for k, m in enumerate(head): m.pref = "T" if k < 4 else "D"
        out += head
    if T == 1: cnt = [0] + [4] * (G - 1)
    elif len(pv) < 4 * G and not lead:
        r = len(pv) - 4; cnt = [min(4, len(pv))] + [r // (G - 1) + (1 if g < r % (G - 1) else 0) for g in range(G - 1)] if len(pv) >= 4 else [0] * G
    else:
        cnt = [len(pv) // G + (1 if g < len(pv) % G else 0) for g in range(G)]
    smpos = {}
    if sm:
        early = any(islast(T - 1, q) for q in act(T - 1)) and len(sm) > 1
        spots = [0 if early else 1, G // 2 + 1, G - 2]
        for m, g in zip(sm, spots): smpos.setdefault(min(g, G - 1), []).append(m)
    if cfg.vc1 and 1 <= T < 16:
        for dh in range(2):
            smpos.setdefault(6 + 2 * dh, []).append(VC1[T, dh])
            if T == 1: smpos.setdefault(2 + 2 * dh, []).append(VC1[0, dh])
    k = 0
    for g in range(G):
        blk, qs = chain(T, g)
        grp = [QKm[T, blk, qs, s] for s in range(4)] + pv[k:k + cnt[g]]
        k += cnt[g]
        L_ = len(grp)
        for j, m in enumerate(grp):
            m.pref = "T" if (L_ >= 8 and j % 2 == 0 and j < 8) or (L_ < 8 and j in {4: (0, 1, 2, 3), 5: (0, 1, 3, 4), 6: (0, 2, 3, 5), 7: (0, 2, 4, 6)}[L_]) else "D"
        out += grp
        for m in smpos.get(g, []):
            m.pref = "D"; out.append(m)
    firstm[T] = out[0]
    return out

items = []
curT = [-200]
ordn = {}
def add(ins, **kw):
    it = Item(ins, **kw); ordn[curT[0]] = ordn.get(curT[0], 0) + 1; it.T = (curT[0], ordn[curT[0]]); it.seq = len(items); items.append(it); return it

cvts = {}
def items_softmax(T):
    n = n_of(T)
    for g in range(2 * n):
        blk, qs = chain(T, g)
        last = QKm[T, blk, qs, 3]
        if g + 2 < 2 * n: nxt = QKm[(T,) + chain(T, g + 2) + (0,)]
        elif n_of(T + 1): nxt = QKm[(T + 1,) + chain(T + 1, g + 2 - 2 * n) + (0,)]
        else: nxt = None
        use = PVm[T, 0, qs]
        ng = QKm[(T,) + chain(T, g + 1) + (0,)] if g + 1 < 2 * n else firstm[T + 1]
        sms = [SMm[T, p] for p in pairs(T) if pair_lo(p) <= qs <= pair_lo(p) + 1]
        ex = []
        for r in range(4):
            v = f"v{S(g)+r}"
            ex.append(add(valu(f"v_exp_f32 {v}, {v}", [v], [v], "trans"), after=[(last, 8), (ng, 0)] + ([(ex[-1].ins, 0)] if ex else []),
                          dead=[nxt, use], tag="sm"))
        for h in range(2):
            d = f"v{P(T, qs) + 2*blk + h}"; a, b = f"v{S(g)+2*h}", f"v{S(g)+2*h+1}"
            aft = [(ex[2*h].ins, 1), (ex[2*h+1].ins, 1)]
            if qs in act(T - 2): aft.append((PVm[T - 2, 7, qs], 0))
            aft += [(SMm[T - 2, p], 0) for p in pairs(T - 2) if pair_lo(p) <= qs <= pair_lo(p) + 1]
            it = add(valu(f"v_cvt_pk_bf16_f32 {d}, {a}, {b}", [a, b], [d]), after=aft, dead=[nxt, use] + sms, tag="sm")
            pwriters.setdefault((T, P(T, qs)), []).append(it)
pwriters = {}

kreads = {}
def bar_pub(T):
    return BARm[T - 1] if T < 16 else BARm[(T // 2) * 2 - 1]
def items_kread(T):
    n = n_of(T)
    for blk in range(2):
        for s in range(4):
            if cfg.ownk and s == 0 and T >= 16: continue
            d = R("a", KA(T, blk, s), 4)
            if cfg.ownk: ins = I(f"ds_read_b128 {d}, v{vKC[s]} offset:{(T % 4) * 8192 + blk * 4096}", "dsr", rd=[f"v{vKC[s]}"], wr=[d])
            else: ins = I(f"ds_read_b128 {d}, v{vKR} offset:{(T % 4) * 8192 + (4*blk+s) * 1024}", "dsr", rd=[f"v{vKR}"], wr=[d])
            aft = [(bar_pub(T), 0)]
            if T >= 1 and not (cfg.ownk and s == 0): aft.append((QKm[T - 1, blk, act(T - 1)[-1], s], 0))
            dl = [QKm[T, blk, act(T)[0], 0]]
            if blk == 1 and T % 2 == 1 and T != 15 and T in BARm: dl.append(BARm[T])
            kreads[T, blk, s] = add(ins, after=aft, dead=dl, tag="qk", prio=-12)
vreads = {}
vtog = {}
def vbar(T):
    if T == 0: return BARm["V0"]
    return BARm[T]
def vsel(b):
    return ((b >> 1) & 1, b >> 2, 8 * (b & 1)) if cfg.noswap else (b & 3, b >> 2, 0)
NVA = 2 if cfg.noswap else 4
def items_vread(T):
    for b in range(8):
        f = 8 * T + b
        pT, pb = divmod(f - 4, 8)
        aft = []
        if f >= 4: aft.append((PVm[pT, pb, act(pT)[-1]], 0))
        va = cfg.vahead if n_of(T) > 2 else 3
        aT, ab = divmod(f - va - 1, 8)
        if f - va - 1 >= 0: aft.append((PVm[aT, ab, act(aT)[-1]], 0))
        if T < 16: aft.append((vbar(T), 0))
        c, dh, e8 = vsel(b)
        if T % 8 == 0 and T > 0 and dh == 0: aft.append((vtog[T, c].ins, 0))
        prev = None
        for blk in range(2):
            d = R("v", Vf(f) + 2 * blk, 2)
            ins = I(f"ds_read_b64_tr_b16 {d}, v{vVA+c} offset:{dh*32768 + (T % 8)*4096 + blk*2048 + e8}", "dsr",
                    rd=[f"v{vVA+c}"], wr=[d])
            vreads[T, b, blk] = add(ins, after=aft + ([(prev, 0)] if prev else []), dead=[PVm[T, b, act(T)[0]]], tag="v", prio=-12)
            prev = ins
def items_vtoggle(T):
    for c in range(NVA):
        v = f"v{vVA+c}"
        use = [b for b in range(8) if vsel(b)[0] == c]
        vtog[T, c] = add(valu(f"v_xor_b32 {v}, 0x10000, {v}", [v], [v]), after=[(vreads[T - 1, b, 1].ins, 0) for b in use],
                         dead=[PVm[T, use[0], act(T)[0]]], tag="v", prio=-24, doff=cfg.dsmargin + 4)

kwrites = {}
kloads = {}
def busy(T):
    return T < 26 or T >= TFIN[0] or (T % 16) in (2, 3, 4, 5, 6, 7, 8, 9)
KWE = 128 if cfg.klin else 1024
def items_kwrite(T):
    m = T // 2
    if T < 16: opn, cls = BARm[max(T - 3, -1)], BARm[T - 1]
    else: opn, cls = BARm[2 * m - 3], BARm[2 * m - 1]
    ws = []
    def wr(src, r, nreg, **kw):
        x = R(src[0], src[1] + r, nreg)
        ad, st_ = (vKC[0], 4096) if (cfg.ownk and T >= 16) else (vKW, KWE)
        return add(I(f"ds_write_b{32*nreg} v{ad}, {x} offset:{(T % 4)*8192 + (r//4)*st_ + (r % 4)*4}", "dsw", rd=[f"v{ad}", x],
                     cost={1: 8, 2: 12, 4: 26}[nreg]), tag="qk", **kw)
    nr = cfg.wrn
    if T < 16:
        st = vKt[T % 2]
        prev_w = kwrites.get(T - 2)
        done = []
        for r in range(8):
            a = f"a{ST(T, 0) + r}"; x = f"v{st + r}"; t = f"v{vKx[r % 2]}"
            do = (cfg.kdoff + (7 - r) * cfg.kstep) if T >= 2 else 2 + (7 - r)
            kw = dict(dead=[cls], tag="qk", doff=do + 2)
            aft = [(kloads[T][r // 4], 0)]
            if prev_w: aft.append((prev_w[r * len(prev_w) // 8].ins, 0))
            aft.append((mid_of(T - 2) if T >= 3 else QKm[0, 0, 4, 3] if T == 2 else QKm[0, 0, 1, 3], 0))
            if not cfg.kvg: aft = [(add(valu(f"v_accvgpr_read_b32 {x}, {a}", [a], [x]), after=aft, prio=-5, **kw).ins, 0)]
            i1 = add(valu(f"v_lshlrev_b32 {t}, 16, {x}", [x], [t]), after=aft + ([(chain_prev[r % 2], 0)] if chain_prev[r % 2] else []), prio=-4, **kw)
            i2 = add(valu(f"v_and_b32 {x}, s{sMASK}, {x}", [x, f"s{sMASK}"], [x]), after=[(i1.ins, 0)], prio=-3, **kw)
            i3 = add(valu(f"v_mul_f32 {t}, s{sC}, {t}", [t, f"s{sC}"], [t]), after=[(i1.ins, 0)], prio=-2, **kw)
            i4 = add(valu(f"v_mul_f32 {x}, s{sC}, {x}", [x, f"s{sC}"], [x]), after=[(i2.ins, 0)], prio=-1, **kw)
            i5 = add(valu(f"v_cvt_pk_bf16_f32 {x}, {t}, {x}", [t, x], [x]), after=[(i3.ins, 0), (i4.ins, 0)], prio=0, **kw)
            chain_prev[r % 2] = i5.ins; done.append(i5.ins)
            if r % nr == nr - 1:
                ws.append(wr(("v", st), r - nr + 1, nr, after=[(opn, 0)] + [(x_, 0) for x_ in done[-nr:]], dead=[cls], doff=max(do - 8, 1)))
        rb = []
        for e in range(0 if cfg.ownk else 2):
            d = R("a", ST(T, e), 4)
            ins = I(f"ds_read_b128 {d}, v{vKW} offset:{(T % 4)*8192 + e*1024}", "dsr", rd=[f"v{vKW}"], wr=[d])
            rb.append(add(ins, after=[(w_.ins, 0) for w_ in ws[e * len(ws) // 2:(e + 1) * len(ws) // 2]], dead=[BARm[T]], tag="qk", prio=0))
        readback[T] = rb
        if cfg.kvg:
            assert cfg.ownk and cfg.LK == 3
            for e, it in enumerate(kload_items.get(T + 2, [])): it.after += [(w_.ins, 0) for w_ in ws[e * len(ws) // 2:(e + 1) * len(ws) // 2]]
    else:
        nw_ = 8 // nr
        for k in range(nw_):
            ws.append(wr(("a", ST(T, 0)), k * nr, nr, after=[(opn, 0)] + ([(ws[-1].ins, 0)] if ws else ([(kwrites[T-1][-1].ins, 0)] if T % 2 else [])),
                         dead=[cls], pace=(opn, ((T % 2) * nw_ + k + 1) / (2.0 * nw_))))
    kwrites[T] = ws
chain_prev = [None, None]
readback = {}
def mid_of(T): return QKm[(T,) + chain(T, n_of(T)) + (0,)]
def bar_spot(T): return QKm[0, 0, 4, 3] if T == 0 else QKm[(T,) + chain(T, n_of(T) - 1) + (3,)]
def start_of(T): return QKm[(T,) + chain(T, 0) + (0,)]

def kload_ins(j):
    out = []
    for e in range(2):
        d = R("v", vKt[j % 2] + 4 * e, 4) if cfg.kvg else R("a", ST(j, e), 4)
        va, o_ = (vVD, 2048 * e) if cfg.klin else (vQA, off(1) * e)
        out.append(I(f"buffer_load_dwordx4 {d}, v{va}, s[{sK}:{sK+3}], s{sKo} offen offset:{o_}{cfg.kvflags}", "vld",
                     rd=[f"v{va}", f"s{sKo}", f"s[{sK}:{sK+3}]"], wr=[d]))
        out[-1].fast = cfg.klin
    return out
def vdma_ins(j):
    out = []
    for dh in range(2):
        m0 = (j >> 3) * 65536 + dh * (32768 - 128) + (j & 7) * 4096
        out.append((salu(f"s_add_u32 m0, s{sM0}, {m0}", [f"s{sM0}"], ["m0", "scc"]),
                    I(f"buffer_load_dwordx4 v{vVD}, s[{sV}:{sV+3}], s{sVo} offen offset:{128*dh}{cfg.kvflags} lds", "dma",
                      rd=[f"v{vVD}", f"s{sVo}", "m0", f"s[{sV}:{sV+3}]"])))
    return out
vdmas = {}
last_vm = [None]
def add_kload(j, after, dead):
    up = add(salu(f"s_add_u32 s{sKo}, s{sKo}, 8192", [f"s{sKo}"], [f"s{sKo}", "scc"]),
             after=after + ([(last_vm[0], 0)] if last_vm[0] else []), dead=dead, tag="ld", prio=-30)
    ins = kload_ins(j); kloads[j] = ins
    prev = up.ins
    for x in ins:
        kload_items.setdefault(j, []).append(add(x, after=[(prev, 0)], dead=dead, tag="ld", prio=-25)); prev = x
    last_vm[0] = prev
kload_items = {}
def add_vdma(j, after, dead):
    prev = last_vm[0]
    if j > 0:
        prev = add(salu(f"s_add_u32 s{sVo}, s{sVo}, 8192", [f"s{sVo}"], [f"s{sVo}", "scc"]),
                   after=after + ([(prev, 0)] if prev else []), dead=dead, tag="ld", prio=-30).ins
    vdmas[j] = []
    for sm0, dm in vdma_ins(j):
        add(sm0, after=after + [(prev, 0)], dead=dead, tag="ld", prio=-28)
        add(dm, after=[(sm0, 1)], dead=dead, tag="ld", prio=-25); prev = dm
        vdmas[j].append(dm)
    last_vm[0] = prev
def items_loads(T):
    if T == 0:
        def spot(g): return QKm[(0,) + chain(0, g) + (0,)], QKm[(0,) + chain(0, g) + (1,)]
        a, d = spot(0)
        prev = last_vm[0]
        for x in q0load(4):
            add(x, after=[(a, 0)] + ([(prev, 1 if x.kind == "dma" else 0)] if prev else []), dead=[d], tag="ld", prio=-50); prev = x
        last_vm[0] = prev
        gs = [int(c) for c in cfg.gs] if cfg.sm0 else [1, 2, 3, 4, 5, 7]
        kj, vj = 2, 0
        while kj <= cfg.LK or vj <= cfg.LV:
            a, d = spot(gs.pop(0) if len(gs) > 1 else gs[0])
            if cfg.v0first and vj <= cfg.LV: add_vdma(vj, [(a, 0)], [d]); vj += 1
            if kj <= cfg.LK and not (cfg.kvg and kj == 3): add_kload(kj, [(a, 0)], [d]); kj += 1
            if not cfg.v0first and vj <= cfg.LV: add_vdma(vj, [(a, 0)], [d]); vj += 1
            if cfg.kvg and kj == 3 and vj > cfg.LV: add_kload(3, [], [spot(9)[0]]); kj += 1
        if cfg.qstage:
            for qs in range(5):
                g0 = [chain(0, g) for g in range(10)].index((0, qs))
                aft = [(QKm[(0,) + chain(0, g0 - 1) + (3,)], 0)] if g0 else []
                for s_ in range(4):
                    d_ = R("a", Q(qs, s_), 4)
                    x = I(f"ds_read_b128 {d_}, v{vQR+s_} offset:{qs*4096}", "dsr", rd=[f"v{vQR+s_}"], wr=[d_], needs=qdmas[qs])
                    x.block = True
                    add(x, after=aft + [(z, 0) for z in qdmas[qs]], dead=[QKm[0, 0, qs, 0]], tag="ld", prio=-100)
        return
    assert cfg.LV <= 3 or not cfg.qstage
    x0, x1 = min(T - 1, cfg.grow), min(T, cfg.grow)
    if x1 > x0 and T + cfg.LV + x0 < 16: add_vdma(T + cfg.LV + x0, [(start_of(T), 0)], [mid_of(T)])
    for j in range(T + cfg.LK + x0, T + cfg.LK + x1 + 1):
        if j < 16: add_kload(j, [(start_of(T), 0)], [start_of(T + 1)])
    if T + cfg.LV + x1 < 16: add_vdma(T + cfg.LV + x1, [(mid_of(T), 0)], [mid_of(T + 1)])

QSTG = 49152
vQD, vQR = 8, 12
sQS = 5
qdmas = {}
def q0load(qs):
    if not cfg.qstage: return qload_ins(qs)
    out = [salu(f"s_add_u32 m0, s{sQS}, {qs*4096}", [f"s{sQS}"], ["m0", "scc"])]
    qdmas[qs] = [I(f"buffer_load_dwordx4 v{vQD+j}, s[{sQ}:{sQ+3}], s{sQn+qs} offen offset:{1024*j}{cfg.qflags} lds", "dma",
                   rd=[f"v{vQD+j}", f"s{sQn+qs}", "m0", f"s[{sQ}:{sQ+3}]"]) for j in range(4)]
    return out + qdmas[qs]
def qload_ins(qs, dst=None):
    out = []
    for s in range(4):
        d = R("a", Q(qs, s), 4) if dst is None else R(dst[s][0], dst[s][1], 4)
        if cfg.ownk:
            out.append(I(f"s_add_u32 s{sT0}, s{sQn+qs}, s{sX[s]}\n    buffer_load_dwordx4 {d}, v{vQA}, s[{sQ}:{sQ+3}], s{sT0} offen{cfg.qflags}", "vld",
                         rd=[f"v{vQA}", f"s{sQn+qs}", f"s[{sQ}:{sQ+3}]"], wr=[d]))
            continue
        out.append(I(f"buffer_load_dwordx4 {d}, v{vQA}, s[{sQ}:{sQ+3}], s{sQn+qs} offen offset:{off(s)}{cfg.qflags}", "vld",
                     rd=[f"v{vQA}", f"s{sQn+qs}", f"s[{sQ}:{sQ+3}]"], wr=[d]))
    return out
def items_qjit():
    prev = None
    if cfg.early0:
        buf = [("v", 236 + 4 * k) for k in range(4)]
        for s_, ins in enumerate(qload_ins(0, buf)):
            it = add(ins, after=[(x.ins, 0) for t in (14, 15) for x in kwrites[t]] + ([(prev, 0)] if prev else []), dead=[start_of(15)], tag="qj", prio=-400)
            prev = ins
            for r in range(4):
                d, a_ = f"a{Q(0, s_) + r}", f"v{236 + 4 * s_ + r}"
                c = add(valu(f"v_accvgpr_write_b32 {d}, {a_}", [a_], [d]), after=[(QKm[15, 1, 0, s_], 0), (QKm[15, 0, cfg.e0g, 0], 0)], dead=[firstm[16]], tag="qc", prio=-3)
                early_done.append((c.ins, 0))
    for qs in range(1 if cfg.early0 else 0, 4):
        for s_, ins in enumerate(qload_ins(qs)):
            T1 = nextstart(15, qs)
            dl = [QKm[T1, 0, qs, 0]] + ([firstm[16]] if T1 == 16 and cfg.jitfirst else [])
            it = add(ins, after=[(QKm[15, 1, qs, s_], 0)] + ([(prev, 0)] if prev else []), dead=dl, tag="qj", prio=-400)
            if T1 > 16: qjit_b.append(it)
            elif cfg.jitstep: it.dabs = (QKm[15, 1, qs, 3], 1 + cfg.jitstep * s_)
            prev = ins
qjit_b = []
early_done = []
UNITS = [O(4, b) for b in range(8)] + [P(0, 4), P(1, 4), 236, 240, 244]
QBUF = {(qs, s_): ("v", UNITS[4 * qs + s_]) for qs in range(3) for s_ in range(4)}
QBUF.update({(3, s_): ("a", Q(4, s_)) for s_ in range(4)})
unit_free = {}
def items_qpf(base):
    prev = None
    for qs in range(4):
        T = base + 15 + phase(qs)
        lds_ = qload_ins(qs, [QBUF[qs, s_] for s_ in range(4)])
        for s_, ins in enumerate(lds_):
            k = 4 * qs + s_
            curT[0] = base + cfg.CUT
            add(ins, after=[(rowadv_done[base], 0)] + ([(prev, 0)] if prev else []),
                dead=[start_of(base + 14) if qs < 2 else firstm[base + 16]], tag="qp", prio=-200 + k)
            prev = ins
            kind, r0 = QBUF[qs, s_]
            curT[0] = T
            if (T, 1, qs, s_) not in QKm or (T + 1, 0, qs, s_) not in QKm: continue
            for r in range(4):
                d, a_ = f"a{Q(qs, s_) + r}", f"{kind}{r0 + r}"
                op = "v_accvgpr_write_b32" if kind == "v" else "v_accvgpr_mov_b32"
                c = add(valu(f"{op} {d}, {a_}", [a_], [d]), after=[(QKm[T, 1, qs, s_], 0)], dead=[QKm[T + 1, 0, qs, s_]], tag="qc", prio=-3)
                if kind == "v": unit_free.setdefault((base, r0), []).append((c.ins, 0))
rowadv_done = {}
sWS = 52
vc_store = []
def items_vcheck():
    assert cfg.ownk
    va = f"v{vPF}"; d = R("a", Kf(0, 0), 4); prev = None; tg = None
    for T in range(16):
        if T == 8: tg = add(valu(f"v_xor_b32 {va}, 0x10000, {va}", [va], [va]), after=[(rd_, 0)], dead=[VC1[8, 0]], tag="vc", doff=14).ins
        for dh in range(2):
            rd_ = I(f"ds_read_b128 {d}, {va} offset:{dh*32768 + (T % 8)*4096}", "dsr", rd=[va], wr=[d], needs=vdmas[T])
            add(rd_, after=[(vbar(T), 0)] + ([(prev, 0)] if prev else []) + ([(tg, 0)] if T == 8 else []), dead=[VC1[T, dh]], tag="vc", prio=-12)
            prev = VC1[T, dh]
    x, y = f"v{vDUM}", f"v{vVD}"; p_ = (prev, 12)
    a = Kf(1, 0)
    sq = [(f"v_accvgpr_read_b32 {x}, a{a}", [f"a{a}"], [x]), (f"v_and_b32 {x}, 0x7fffffff, {x}", [x], [x])]
    for k in range(1, 4):
        sq += [(f"v_accvgpr_read_b32 {y}, a{a+k}", [f"a{a+k}"], [y]), (f"v_and_b32 {y}, 0x7fffffff, {y}", [y], [y]), (f"v_max_u32 {x}, {x}, {y}", [x, y], [x])]
    for tx, r_, w_ in sq: p_ = (add(valu(tx, r_, w_), after=[p_], dead=[start_of(23)], tag="vc").ins, 0)
    st = I(f"buffer_store_dword {x}, v{vKC[0]}, s[{sWS}:{sWS+3}], 0 offen", "vst", rd=[x, f"v{vKC[0]}"], cost=16)
    add(st, after=[p_], dead=[start_of(24)], tag="vc"); vc_store.append(st)
def items_codepf(T, label):
    t = f"v{vDUM}"
    a = add(salu(f"s_lshl_b32 s{sT2}, s{sW}, 13\n    s_add_u32 s{sT2}, s{sT2}, {label} - L_pf - {RING * 8}", [], [f"s{sT2}", "scc"]), after=[(start_of(T), 0)], dead=[mid_of(T)], tag="pf")
    a.ins.cost = 8
    b = add(valu(f"v_lshl_add_u32 {t}, v{vKR}, 3, s{sT2}", [f"v{vKR}", f"s{sT2}"], [t]), after=[(a.ins, 0)], dead=[mid_of(T)], tag="pf")
    c = add(valu(f"v_min_u32 {t}, L_end - L_pf, {t}", [t], [t]), after=[(b.ins, 0)], dead=[mid_of(T)], tag="pf")
    x = I(f"global_load_dword v{vDUM}, {t}, s[50:51]", "vld", rd=[t], wr=[f"v{vDUM}"]); x.nowait = True
    add(x, after=[(c.ins, 0)], dead=[start_of(T + 1)], tag="pf")
def items_rowadv(T):
    for qs in range(4):
        a = add(salu(f"s_add_u32 s{sOr+qs}, s{sOr+qs}, {'s3' if cfg.extra else 65536}", [f"s{sOr+qs}"], [f"s{sOr+qs}", "scc"]), after=[(start_of(T), 0)], dead=[mid_of(T)], tag="adv", prio=0)
        b = add(salu(f"s_add_u32 s{sQn+qs}, s{sOr+qs}, {'s4' if cfg.extra else 65536}" + ("\n    s_mov_b32 s3, s4\n    s_cmp_le_u32 s%d, 5\n    s_cselect_b32 s4, 0x10000, 0" % sCNT if cfg.extra and qs == 3 else ""), [f"s{sOr+qs}"], [f"s{sQn+qs}", "scc"]),
                after=[(a.ins, 0)] + ([(rowadv_done[T - T % 16], 0)] if qs else []), dead=[mid_of(T)], tag="adv", prio=0)
        rowadv_done[T - T % 16] = b.ins

lprev = []
def items_epilogue(T, endins):
    slots = sorted(q for q in act(T) if islast(T, q))
    base = (T + 1) // 16 * 16 - 16
    ri = {}
    def over(b, qs):
        T1 = nextstart(T, qs)
        return PVm[T1, b, qs] if qs in act(T1) and qs != 4 else endins
    xs = []
    for qs in slots:
        p = pair_of(qs); h = 1 if qs == 4 else qs % 2
        la, lb = f"a{L(p) + 2*h}", f"a{L(p) + 2*h + 1}"
        x, y, r = f"v{vL0 if qs % 2 == 0 else vPF}", f"v{vL1}", f"v{vRI+qs}"
        kw = dict(dead=[over(0, qs), endins], tag="ep", prio=-400)
        pa = [(z, 0) for z in lprev]
        i0 = add(valu(f"v_accvgpr_read_b32 {x}, {la}", [la], [x]), after=[(SMm[T, p], 12)] + pa, **kw)
        i1 = add(valu(f"v_accvgpr_read_b32 {y}, {lb}", [lb], [y]), after=[(SMm[T, p], 12)] + pa, **kw)
        i2 = add(valu(f"v_add_f32 {x}, {x}, {y}", [x, y], [x]), after=[(i0.ins, 0), (i1.ins, 0)], **kw)
        i3 = add(valu(f"v_rcp_f32 {r}, {x}", [x], [r], "trans"), after=[(i2.ins, 0)], **kw)
        ri[qs] = i3.ins; xs.append((x, i2.ins, i3.ins))
        lprev[:] = [i2.ins]
        if qs % 2 == 1 or qs == 4:
            src = ", ".join(z[0] for z in xs); nm = "3" if len(xs) == 2 else ""
            kw = dict(dead=[endins], tag="ep", prio=-300)
            c1 = add(valu(f"v_max{nm}_u32 v{vHI}, v{vHI}, {src}", [f"v{vHI}"] + [z[0] for z in xs], [f"v{vHI}"]), after=[(z[1], 0) for z in xs], **kw)
            c2 = add(valu(f"v_min{nm}_u32 v{vLO}, v{vLO}, {src}", [f"v{vLO}"] + [z[0] for z in xs], [f"v{vLO}"]), after=[(z[1], 0) for z in xs], **kw)
            lprev[:] = [c1.ins, c2.ins] + [z[2] for z in xs]; xs = []
        T1 = nextstart(T, qs)
        if qs in act(T1) and qs != 4:
            for reg in (la, lb):
                add(valu(f"v_accvgpr_write_b32 {reg}, 0", [], [reg]), after=[(i0.ins, 0), (i1.ins, 0)], dead=[SMm[T1, p], endins], tag="ep", prio=0)
    if T == 15:
        def pfree(t, q): return [(PVm[t, 7, q], 0)] + [(SMm[t, p], 0) for p in pairs(t) if pair_lo(p) <= q <= pair_lo(p) + 1]
        pool = [(u, []) for u in (236, 240, 244)] + [(P(14, q), pfree(14, q)) for q in ((4, 2, 3) if DL else (4,))]
        if DL: pool += [(P(15, q), pfree(15, q)) for q in (2, 3)]
    elif slots[0] == 0: pool = [(u, unit_free.get((base, u), [])) for u in (UNITS[:8] if DL else UNITS[-1:] + UNITS[:-1])]
    else: pool = [(u, unit_free.get((base, u), [])) for u in UNITS[12:] + UNITS[8:12] + UNITS[:8]]
    inplace = [q for q in slots if (q == 4 or (T == 15 and phase(q)))] if not endins.text.startswith("; end") else slots
    def seq(sl):
        if cfg.pairst: return [(2 * pp + e, qs) for pp in range(2) for qs in sl for e in range(2)]
        return [(pb, qs) for pb in range(4) for qs in sl]
    order = seq([q for q in slots if q not in inplace]) + seq(inplace)
    tl = cfg.tlds and endins.text.startswith("; end")
    if tl:
        order = [(2 * hf + e, qs) for hf in range(2) for qs in slots for e in range(2)]
        tW, tR, tO = [176, 177], 178, 179
        RB = [[P(0, 0), P(0, 1)], [P(1, 0), P(1, 1)]]
        m_, x_, y_ = "v178", "v176", "v177"
        seqs = [(f"v_mbcnt_lo_u32_b32 {m_}, -1, 0", [], [m_]), (f"v_mbcnt_hi_u32_b32 {m_}, -1, {m_}", [m_], [m_]),
                (f"v_lshrrev_b32 {x_}, 3, {m_}", [m_], [x_]), (f"v_xor_b32 {y_}, {x_}, {m_}", [x_, m_], [y_]), (f"v_and_b32 {y_}, 7, {y_}", [y_], [y_]),
                (f"v_lshlrev_b32 {y_}, 4, {y_}", [y_], [y_]), (f"v_lshl_add_u32 v{tO}, {x_}, 8, {y_}", [x_, y_], [f"v{tO}"]),
                (f"v_lshrrev_b32 {x_}, 4, {m_}", [m_], [x_]), (f"v_xor_b32 {x_}, {x_}, {m_}", [x_, m_], [x_]), (f"v_and_b32 {x_}, 7, {x_}", [x_], [x_]),
                (f"v_and_b32 {y_}, 15, {m_}", [m_], [y_]), (f"v_lshlrev_b32 {y_}, 3, {y_}", [y_], [y_]), (f"v_add_lshl_u32 {x_}, {x_}, {y_}, 4", [x_, y_], [x_]),
                (f"v_add_u32 {x_}, s{sT2}, {x_}", [x_], [x_]), (f"v_xor_b32 {y_}, 64, {x_}", [x_], [y_]),
                (f"v_lshl_add_u32 {m_}, {m_}, 4, s{sT2}", [m_], [m_])]
        pv_ = add(salu(f"s_lshl_b32 s{sT2}, s{sW}, 12\n    s_add_u32 s{sT2}, s{sT2}, {RING}", [], [f"s{sT2}", "scc"]), dead=[firstm[T + 1]], tag="ep").ins
        for tx, rd_, wr_ in seqs: pv_ = add(valu(tx, rd_, wr_), after=[(pv_, 0)], dead=[firstm[T + 1]], tag="ep").ins
        tready = pv_; tws = []; trd = {}; tst = {}
    sts = []
    ofl = cfg.oflags
    if T >= TFIN[0] - 1:
        f_ = cfg.oflagsFA if slots[0] == 0 else cfg.oflagsFB
        if f_ != "=": ofl = f_
    for k, (pb, qs) in enumerate(order):
        inp = qs in inplace
        w, wa = (O(qs, 2 * pb), []) if inp else pool.pop(0)
        cv = []
        for e in range(2):
            b = 2 * pb + e
            kw = dict(dead=[over(2 * pb if inp else b, qs), endins], tag="ep", prio=(-200 + 4 * k) if inp else 0)
            ms = []
            for r in range(4):
                v = f"v{O(qs, b) + r}"
                if tl and cfg.tpk:
                    if r % 2: ms.append(ms[-1]); continue
                    v2 = R("v", O(qs, b) + r, 2); rp = (vRI + qs) & ~1; hi = (vRI + qs) & 1
                    ms.append(add(valu(f"v_pk_mul_f32 {v2}, {v2}, v[{rp}:{rp+1}] op_sel:[0,{hi}] op_sel_hi:[1,{hi}]", [v2, f"v{vRI+qs}"], [v2]),
                                  after=[(PVm[T, b, qs], 8), (PVm[T, 7, act(T)[-1]], 0), (ri[qs], 1)], **kw))
                    continue
                ms.append(add(valu(f"v_mul_f32 {v}, {v}, v{vRI+qs}", [v, f"v{vRI+qs}"], [v]), after=[(PVm[T, b, qs], 8), (ri[qs], 1)], **kw))
            for h in range(2):
                d = f"v{w + 2*e + h}"; a_, b_ = f"v{O(qs, b) + 2*h}", f"v{O(qs, b) + 2*h + 1}"
                aft = [(ms[2*h].ins, 0), (ms[2*h+1].ins, 0)] + wa + ([(cv[-1].ins, 0)] if (inp and cv) else [])
                cv.append(add(valu(f"v_cvt_pk_bf16_f32 {d}, {a_}, {b_}", [a_, b_], [d]), after=aft, **kw))
        kw = dict(dead=[over(2 * pb, qs) if inp else endins, endins], tag="ep", prio=-300 + 8 * k)
        sw = []
        for h in range(0 if cfg.noswap else 2):
            x, y = f"v{w + h}", f"v{w + 2 + h}"
            sw.append(add(valu(f"v_permlane16_swap_b32 {x}, {y}", [x, y], [x, y], "perm"), after=[(cv[h].ins, 2), (cv[2 + h].ins, 2)], **kw))
        if tl:
            u_ = k // 2; bf_ = u_ % 2
            wi = I(f"ds_write_b128 v{tW[pb % 2]}, {R('v', w, 4)} offset:{bf_ * 2048}", "dsw", rd=[f"v{tW[pb % 2]}", R("v", w, 4)], cost=26)
            tws.append(add(wi, after=[(z.ins, 0) for z in cv] + [(tready, 0), (BARm[max(t for t in BARm if isinstance(t, int))], 0)] + [(z, 0) for z in trd.get(u_ - 2, [])], **kw).ins)
            if k % 2 == 0: continue
            for x_ in tail_stores[-2:]: x_.after += [(z, 0) for z in tws[-2:]]; x_.prio = -400 + u_
            for j in range(2):
                d = R("v", RB[bf_][j], 4)
                ri_ = I(f"ds_read_b128 {d}, v{tR} offset:{bf_ * 2048 + j * 1024}", "dsr", rd=[f"v{tR}"], wr=[d])
                aft = [(z, 0) for z in tws[-2:]] + ([(tst[u_ - 2, j], 2)] if u_ >= 2 else [(PVm[47, 7, j], 0), (SMm[47, 0], 0)])
                rit = add(ri_, after=aft, **kw); trd.setdefault(u_, []).append(ri_)
                st = I(f"buffer_store_dwordx4 {d}, v{tO}, s[{sO}:{sO+3}], s{sOr+qs} offen offset:{j * 2048 + (pb // 2) * 128}{ofl}", "vst",
                       rd=[d, f"v{tO}", f"s{sOr+qs}", f"s[{sO}:{sO+3}]"])
                st.fast = True; st.block = True; tst[u_, j] = st
                sit = add(st, after=[(ri_, 0)], **kw)
                rit.prio = -500 + u_
                if cfg.nvc:
                    rit.dabs = (PVm[T, 3, act(T)[-1]], cfg.tx0 + cfg.txstep * u_ * 2)
                    sit.dabs = (PVm[T, 3, act(T)[-1]], cfg.tx0 + cfg.txstep * (u_ * 2 + j + 1))
                tail_stores.append(sit)
            continue
        st = I(f"buffer_store_dwordx4 {R('v', w, 4)}, v{vOA}, s[{sO}:{sO+3}], s{sOr+qs} offen offset:{64*pb}{ofl}", "vst",
               rd=[R("v", w, 4), f"v{vOA}", f"s{sOr+qs}", f"s[{sO}:{sO+3}]"])
        sts.append((add(st, after=[(z.ins, 0) for z in (sw or cv)], **kw), w, inp, pb, qs))
        if not inp:
            pool.append((w, [(st, 2)])); unit_free[base, w] = [(st, 2)]
            for t in range(T + 1, T + 8):
                for it in pwriters.get((t, w), []): it.after.append((st, 2))

    if T == 15 and DL:
        rank = {P(14, 2): 0, P(14, 3): 1, P(15, 2): 4, P(15, 3): 5}
        def key(x):
            it, w, inp, pb, qs = x
            if not inp: return rank.get(w, 100)
            return 200 + pb if qs == 4 else (2 if pb == 0 else 4 + 2 * pb) + qs - 2
        srt = sorted(sts, key=key)
        if cfg.pairst:
            out_ = []
            for x in srt:
                if x not in out_: out_ += sorted([y for y in sts if y[4] == x[4] and y[3] // 2 == x[3] // 2], key=lambda y: y[3])
            srt = out_
        sq = qjit_b + [x[0] for x in srt]
        for k, it in enumerate(sq):
            it.dabs = (firstm[16], cfg.tq0 + cfg.tqstep * min(k, 8) + cfg.tstep * max(k - 8, 0)); it.prio = -1000 + k
    elif not endins.text.startswith("; end"):
        f_ = T >= TFIN[0] - 1
        if cfg.stE and not f_:
            for k, x in enumerate(sts): x[0].nb = (PVm[T, 1, act(T)[-1]], cfg.stE + cfg.tstep * k)
        for k, x in enumerate(sts): x[0].dabs = (PVm[T, 1, act(T)[-1]], (cfg.stF0 if f_ else cfg.st0) + (cfg.stFstep if f_ else cfg.tstep) * (k | 1 if cfg.pairst else k))
    else:
        for k, x in enumerate(sts): x[0].dabs = (PVm[T, 1, act(T)[-1]], cfg.tl0 + cfg.tlstep * (k | 1 if cfg.pairst else k))

    if cfg.pairst:
        for x in sts:
            if x[3] % 2 == 0:
                y = [z for z in sts if z[4] == x[4] and z[3] == x[3] + 1][0]
                x[0].after += list(y[0].after); y[0].after.append((x[0].ins, 0)); glue[id(x[0].ins)] = y[0]
glue = {}
tail_stores = []

class Sched:
    def __init__(self, stream):
        self.stream = stream
        self.pos = {id(x): k for k, x in enumerate(stream)}
        self.over = 0
        self.cyc = 0; self.ta = 0; self.log = []
    def run(self, bb, its, fixed_after, marks=None, endins=None):
        stream, pos = self.stream, self.pos
        idx = {id(m): j for j, m in enumerate(bb)}
        for mid, lst in fixed_after.items():
            if mid in idx:
                for f in lst: idx[id(f)] = idx[mid]
        for j, lst in (marks or {}).items():
            for f in lst: idx[id(f)] = j
        if endins is not None: idx[id(endins)] = len(bb)
        waiting, act, bydead = {}, [], {}
        byins = {id(it.ins): it for it in its if not it.placed}
        lbm = {}
        def lb(it):
            if id(it) not in lbm:
                v = 0
                for a, _ in it.after:
                    if id(a) in pos: continue
                    if id(a) in idx: v = max(v, idx[id(a)] + 1)
                    elif id(a) in byins: v = max(v, lb(byins[id(a)]))
                lbm[id(it)] = v
            return lbm[id(it)]
        sys.setrecursionlimit(100000)
        for it in its:
            if it.placed: continue
            d = min([idx[id(x)] for x in it.dead if x is not None and id(x) in idx] or [1 << 30])
            if it.dabs and id(it.dabs[0]) in idx: d = min(d, max(idx[id(it.dabs[0])] + it.dabs[1], lb(it) + 1))
            if it.doff: d = max(d - it.doff, min(d, lb(it) + 1))
            it.early = d + it.prio
            it.soft = d - (cfg.dsmargin if it.ins.kind in LGKM else -(1 << 20))
            if it.pace and id(it.pace[0]) in idx and d < (1 << 29):
                o_ = idx[id(it.pace[0])]
                it.soft = int(o_ + it.pace[1] * (d - cfg.dsmargin - o_)); it.early = it.soft + 4
            bydead.setdefault(d, []).append(it)
            w = {id(a) for a, _ in it.after if id(a) not in pos}
            nw[id(it)] = len(w)
            for a in w: waiting.setdefault(a, []).append(it)
            if not w: act.append(it)
        st = {"budget": 8, "first": True, "valu": False, "mem": False}
        def emit(x):
            pos[id(x)] = len(stream); stream.append(x)
            for it in waiting.pop(id(x), []):
                nw[id(it)] -= 1
                if nw[id(it)] == 0: act.append(it)
        def ready(it):
            n = len(stream)
            return all(n - pos[id(a)] - 1 >= dist for a, dist in it.after)
        def place(it):
            if it.ins.block and it.ins.kind == "dsr":
                while True:
                    a = cands(lambda x: not x.ins.block and x.ins.kind in VALU + LGKM)
                    if not a: break
                    place(a[0])
            c = it.ins.cost; kd = it.ins.kind
            if kd == "salu" and st["first"]: c -= 4
            if kd in LGKM + VM and st["valu"]: c += 8
            elif kd in LGKM + VM and st["mem"]: c += 4
            if kd in LGKM + VM: st["mem"] = True
            if kd in VALU: st["valu"] = True
            act.remove(it); it.placed = True
            if kd in VM:
                now = self.cyc + 8 + (8 - st["budget"])
                self.ta = (max(self.ta, now) if now < self.ta + 1 and it.tag != "ld" else now) + (cfg.ta_fast if (kd == "dma" or it.ins.fast) else cfg.ta_slow)
            emit(it.ins); st["budget"] -= c; st["first"] = False
            g_ = glue.get(id(it.ins))
            if g_ is not None and not g_.placed: place(g_)
        def cands(pred):
            return sorted([it for it in act if pred(it) and ready(it)], key=lambda x: (x.early, x.seq))
        def force(limit):
            while True:
                due = [it for d in list(bydead) if d <= limit for it in bydead[d] if not it.placed]
                for d in [d for d in bydead if d <= limit]:
                    bydead[d] = [it for it in bydead[d] if not it.placed]
                    if not bydead[d]: del bydead[d]
                if not due: return
                stack = list(due); seen = set(); need = []
                while stack:
                    it = stack.pop()
                    if id(it) in seen: continue
                    seen.add(id(it)); need.append(it)
                    for a_, _ in it.after:
                        o = byins.get(id(a_))
                        if o is not None and not o.placed: stack.append(o)
                av = [it for it in need if nw[id(it)] == 0]
                if not av:
                    raise RuntimeError("deadlock: " + "; ".join(it.ins.text + " AFTER " + str([a for a, _ in it.after if id(a) not in pos]) for it in need[:6]))
                rs = [it for it in av if ready(it)]
                if not rs:
                    rs = cands(lambda x: x.ins.kind in VALU)[:1] or av
                rs.sort(key=lambda x: (0 if (x.ins.kind in LGKM + VM and not st["valu"]) else 1, x.early, x.seq))
                place(rs[0])
        force(0)
        for k, m in enumerate(bb):
            for f in (marks or {}).get(k, []): emit(f)
            emit(m)
            st.update(budget=8, first=True, valu=False, mem=False)
            for f in fixed_after.get(id(m), []):
                emit(f); st["first"] = False
            c = cands(lambda x: x.ins.kind == "salu")
            if c and st["first"] and k + 1 < len(bb) and not getattr(cfg, "nosalu", False): place(c[0])
            vmok = lambda x: x.ins.kind in VM and (x.nb is None or idx.get(id(x.nb[0]), -1000) + x.nb[1] <= k)
            vm = cands(vmok) if (self.ta <= self.cyc and m.pref != "T") else []
            urgent = cands(lambda x: x.soft <= (k - 2 if vm else k + 1))
            if urgent: place(min(urgent, key=lambda x: (x.soft, x.seq)))
            tr = cands(lambda x: x.ins.kind == "trans")
            if m.pref == "T" and tr and st["budget"] >= (4 if urgent else 8):
                place(tr[0])
            else:
                if not urgent and st["budget"] >= 4:
                    if not vm and self.ta <= self.cyc: vm = cands(vmok)
                    mem = vm or cands(lambda x: x.ins.kind in LGKM)
                    if mem and not vm:
                        rd_ = [x for x in mem if x.ins.kind == "dsr"]; wr_ = [x for x in mem if x.ins.kind == "dsw"]
                        if cands(lambda x: x.ins.kind in ("valu", "perm")): mem = rd_
                        elif wr_ and not (rd_ and rd_[0].soft <= k + 3): mem = wr_
                    if mem: place(mem[0])
                while st["budget"] >= 4:
                    a = cands(lambda x: x.ins.kind in ("valu", "perm") or (x.ins.kind == "trans" and st["budget"] >= 8))
                    if not a: break
                    place(a[0])
            force(k + 1)
            if st["budget"] < 0: self.over -= st["budget"]
            self.cyc += max(16, 16 - st["budget"])
            self.log.append(self.cyc)
        if endins is not None: force(1 << 29)
nw = {}

sVC = 49
sTSB = 60
def stamp(k, cyc=False, mode=1):
    if cfg.stamps != mode: return []
    r = sTSB + 2 * k
    return [I(f"s_mem{'time' if cyc else 'realtime'} s[{r}:{r+1}]", "salu", wr=[f"s[{r}:{r+1}]"])]

def V(text, rd, wr, kind="valu"): return I(text, kind, rd=rd, wr=wr)
def prologue():
    o = []
    o.append(I("s_cmp_ge_u32 s2, 256\n    s_cbranch_scc1 L_end", "br"))
    o += stamp(0) + stamp(1, True) + stamp(0, False, 4) + stamp(1, True, 4) + stamp(0, False, 5)
    if cfg.spin: o.append(salu("s_memrealtime s[98:99]"))
    o.append(salu("s_load_dwordx8 s[52:59], s[0:1], 0"))
    if cfg.vc1: o.append(salu("s_load_dwordx2 s[6:7], s[0:1], 40"))
    l, t, u, g = "v1", "v2", "v3", "v4"
    o += [V(f"v_lshrrev_b32 {t}, 6, v0", ["v0"], [t]),
          V(f"v_and_b32 {l}, 63, v0", ["v0"], [l]),
          V(f"v_readfirstlane_b32 s{sW}, {t}", [t], [f"s{sW}"]),
          V(f"v_lshrrev_b32 {g}, 4, {l}", [l], [g]),
          V(f"v_and_b32 {t}, 15, {l}", [l], [t]),
          V(f"v_lshlrev_b32 {t}, 8, {t}", [t], [t]),
          V(f"v_mul_u32_u24 {u}, {GST}, {g}", [g], [u]),
          V(f"v_add_u32 v{vQA}, {t}, {u}", [t, u], [f"v{vQA}"]),
          ]
    if cfg.noswap:
        if vOA != vQA: o += [V(f"v_lshl_add_u32 v{vOA}, {g}, 4, {t}", [g, t], [f"v{vOA}"])]
        o += [
              V(f"v_and_b32 {u}, 1, {g}", [g], [u]),
              V(f"v_lshlrev_b32 {u}, 2, {u}", [u], [u]),
              V(f"v_xor_b32 {u}, {u}, {l}", [u, l], [u]),
              V(f"v_and_b32 {u}, 7, {u}", [u], [u]),
              V(f"v_lshrrev_b32 {t}, 3, {l}", [l], [t]),
              V(f"v_lshlrev_b32 {t}, 8, {t}", [t], [t]),
              V(f"v_lshl_add_u32 v{vVD}, {u}, 4, {t}", [u, t], [f"v{vVD}"])]
    else:
        o += [
          V(f"v_and_b32 {u}, 1, {g}", [g], [u]),
          V(f"v_lshl_add_u32 {t}, {u}, 5, {t}", [u, t], [t]),
          V(f"v_lshrrev_b32 {u}, 1, {g}", [g], [u]),
          V(f"v_lshl_add_u32 v{vOA}, {u}, 4, {t}", [u, t], [f"v{vOA}"]),
          V(f"v_bfe_u32 {t}, {l}, 1, 2", [l], [t]),
          V(f"v_xor_b32 {t}, {t}, {g}", [t, g], [t]),
          V(f"v_lshlrev_b32 {t}, 5, {t}", [t], [t]),
          V(f"v_lshrrev_b32 {u}, 3, {l}", [l], [u]),
          V(f"v_lshl_add_u32 {t}, {u}, 8, {t}", [u, t], [t]),
          V(f"v_and_b32 {u}, 1, {l}", [l], [u]),
          V(f"v_lshl_add_u32 v{vVD}, {u}, 4, {t}", [u, t], [f"v{vVD}"]),
          ]
    if cfg.qstage:
        o += [V(f"v_and_b32 {t}, 15, {l}", [l], [t]),
              V(f"v_xor_b32 {u}, {t}, {g}", [t, g], [u]),
              V(f"v_lshlrev_b32 {u}, 4, {u}", [u], [u]),
              V(f"v_lshl_add_u32 v{vQD}, {g}, 8, {u}", [g, u], [f"v{vQD}"])]
        o += [V(f"v_xor_b32 v{vQD+j}, {64*j}, v{vQD}", [f"v{vQD}"], [f"v{vQD+j}"]) for j in range(1, 4)]
        o += [salu(f"s_mul_i32 s{sQS}, s{sW}, 20480", [f"s{sW}"], [f"s{sQS}"]), salu(f"s_add_u32 s{sQS}, s{sQS}, {QSTG}")]
        stage2 = [V(f"v_and_b32 {t}, 15, {l}", [l], [t]),
              V(f"v_mul_u32_u24 {u}, {GST // 16}, {g}", [g], [u]),
              V(f"v_xor_b32 {u}, {u}, {t}", [u, t], [u]),
              V(f"v_lshlrev_b32 {u}, 4, {u}", [u], [u]),
              V(f"v_lshl_add_u32 {u}, {t}, 8, {u}", [t, u], [u])]
        stage2 += [V(f"v_xor_b32 v{vQR+k}, {f's{sX[k]}' if cfg.ownk else off(k)}, {u}", [u], [f"v{vQR+k}"]) for k in range(4)]
        stage2 += [V(f"v_add_u32 v{vQR+k}, s{sQS}, v{vQR+k}", [f"v{vQR+k}"], [f"v{vQR+k}"]) for k in range(4)]
    o += [salu(f"s_mul_i32 s{sT0}, s2, {HEADQ}", [], [f"s{sT0}"]),
          salu(f"s_lshl_b32 s{sT1}, s2, 17", [], [f"s{sT1}"]),
          salu(f"s_lshl_b32 s{sM0}, s{sW}, 10", [f"s{sW}"], [f"s{sM0}"]),
          salu(f"s_lshl_b32 s{sVo}, s{sW}, 11", [f"s{sW}"], [f"s{sVo}"]),
          salu(f"s_lshr_b32 s{sKo}, s{sW}, 1", [f"s{sW}"], [f"s{sKo}"]),
          salu(f"s_lshl_b32 s{sKo}, s{sKo}, 12"),
          salu(f"s_and_b32 s{sT2}, s{sW}, 1"),
          salu(f"s_lshl_b32 s{sT2}, s{sT2}, 7"),
          salu(f"s_add_u32 s{sKo}, s{sKo}, s{sT2}"),
          salu(f"s_lshl_b32 s{sOr}, s{sW}, 14"),
          salu(f"s_add_u32 s{sOr+1}, s{sOr}, 4096"),
          salu(f"s_add_u32 s{sOr+2}, s{sOr}, 8192"),
          salu(f"s_add_u32 s{sOr+3}, s{sOr}, 12288"),
          salu(f"s_lshl_b32 s{sOr+4}, s{sW}, 12"),
          salu(f"s_add_u32 s{sOr+4}, s{sOr+4}, {1280*256}"),
          ]
    o += [salu(f"s_mov_b32 s{sQn+k}, s{sOr+k}") for k in range(5)]
    if cfg.ownk:
        o += [salu(f"s_lshl_b32 s{sX[0]}, s{sW}, 6")] + [salu(f"s_xor_b32 s{sX[c]}, s{sX[0]}, {64*c}") for c in range(1, 4)]
    o.append(I("s_waitcnt lgkmcnt(0)", "wait"))
    for srd, p, so, size in ((sK, 54, sT1, HEADK), (sQ, 52, sT0, HEADQ), (sV, 56, sT1, HEADK), (sO, 58, sT0, HEADQ)):
        o += [salu(f"s_add_u32 s{srd}, s{p}, s{so}"), salu(f"s_addc_u32 s{srd+1}, s{p+1}, 0"),
              salu(f"s_mov_b32 s{srd+2}, {size}"), salu(f"s_mov_b32 s{srd+3}, 0x20000")]
    kloads[0] = kload_ins(0); kloads[1] = kload_ins(1)
    k1 = [salu(f"s_add_u32 s{sKo}, s{sKo}, 8192")] + kloads[1]
    if cfg.qstage:
        o += kloads[0] + q0load(0) + q0load(1) + k1
        later = [[], q0load(2), q0load(3)]
    else:
        o += kloads[0] + qload_ins(0) + qload_ins(1)[:2]
        later = [qload_ins(1)[2:] + k1, qload_ins(2), qload_ins(3)]
    if cfg.codepf:
        o.append(I(f"s_getpc_b64 s[50:51]\nL_pf:\n    s_lshr_b32 s{sT2}, s2, 3\n    s_lshl_b32 s{sT2}, s{sT2}, 11", "salu"))
        o.append(V(f"v_lshl_add_u32 v5, {l}, 5, s{sT2}", [l], ["v5"]))
        o.append(V("v_min_u32 v5, L_end - L_pf, v5", ["v5"], ["v5"]))
        x = I(f"global_load_dword v{vDUM}, v5, s[50:51]", "vld", rd=["v5"], wr=[f"v{vDUM}"]); x.nowait = True
        o.append(x)
    if cfg.vc1:
        o += [salu(f"s_lshl_b32 s{sT2}, s2, 12"), salu(f"s_add_u32 s{sWS}, s6, s{sT2}"), salu(f"s_addc_u32 s{sWS+1}, s7, 0"),
              salu(f"s_mov_b32 s{sWS+2}, {RING + 4096}"), salu(f"s_mov_b32 s{sWS+3}, 0x20000")]
    o += [salu(f"s_mov_b32 s{sC}, {CSCALE:#x}"), salu(f"s_mov_b32 s{sMASK}, 0xffff0000"),
          salu(f"s_mov_b32 s{sFAIL}, {0x1fffff if cfg.force_fallback else 0}"), salu(f"s_mov_b32 s{sCNT}, {4 + cfg.extra}"), salu("s_mov_b32 s3, 0x10000"), salu("s_mov_b32 s4, 0"),
          salu(f"s_lshl_b32 s{sVC}, s{sW}, 15"), salu(f"s_sub_u32 s{sVC}, s{sVC}, {RING}"),
          salu(f"s_lshl_b32 s{sT2}, s{sW}, 11")]
    if cfg.klin:
        assert cfg.ownk
        o += [V(f"v_lshlrev_b32 {u}, 1, {g}", [g], [u]),
              V(f"v_xor_b32 {t}, {u}, {l}", [u, l], [t]),
              V(f"v_lshlrev_b32 {t}, 4, {t}", [t], [t]),
              V(f"v_add_u32 v{vKR}, {RING}, {t}", [t], [f"v{vKR}"]),
              V(f"v_bfe_u32 {t}, v{vVD}, 4, 2", [f"v{vVD}"], [t]),
              V(f"v_lshlrev_b32 {u}, 1, {t}", [t], [u]),
              V(f"v_lshrrev_b32 v5, 3, {l}", [l], ["v5"]),
              V(f"v_xor_b32 {u}, {u}, v5", [u, "v5"], [u]),
              V(f"v_lshl_add_u32 {u}, {t}, 4, {u}", [t, u], [u]),
              V(f"v_bfe_u32 {t}, v{vVD}, 6, 1", [f"v{vVD}"], [t]),
              V(f"v_lshl_add_u32 {u}, {t}, 6, {u}", [t, u], [u]),
              V(f"v_lshlrev_b32 {u}, 4, {u}", [u], [u]),
              V(f"v_add_u32 {u}, {RING}, {u}", [u], [u]),
              V(f"v_add_u32 v{vKW}, s{sT2}, {u}", [u], [f"v{vKW}"])]
    else:
      o += [V(f"v_lshlrev_b32 {t}, 4, {l}", [l], [t]),
          V(f"v_add_u32 v{vKR}, {RING}, {t}", [t], [f"v{vKR}"]),
          V(f"v_add_u32 v{vKW}, s{sT2}, v{vKR}", [f"v{vKR}"], [f"v{vKW}"])]
    if cfg.ownk:
        o += [V(f"v_add_u32 v{vKC[0]}, s{sM0}, v{vKR}", [f"v{vKR}"], [f"v{vKC[0]}"])]
        o += [V(f"v_xor_b32 v{vKC[c]}, {1024*c}, v{vKC[0]}", [f"v{vKC[0]}"], [f"v{vKC[c]}"]) for c in range(1, 4)]
        o += [salu(f"s_sub_u32 s{sVC}, s{sVC}, s{sM0}")]
        if cfg.vc1: o += [V(f"v_and_b32 v{vPF}, 0xffff, v{vKC[0]}", [f"v{vKC[0]}"], [f"v{vPF}"])]
    o += [
          V(f"v_lshrrev_b32 {t}, 2, {l}", [l], [t]),
          V(f"v_lshlrev_b32 {t}, 7, {t}", [t], [t]),
          V(f"v_and_b32 {u}, 3, {l}", [l], [u])]
    assert cfg.noswap
    o += [V(f"v_lshl_add_u32 {t}, {u}, 4, {t}", [u, t], [t]),
          V(f"v_bfe_u32 {u}, {l}, 3, 1", [l], [u]),
          V(f"v_lshl_add_u32 v{vVA}, {u}, 6, {t}", [u, t], [f"v{vVA}"]),
          V(f"v_xor_b32 v{vVA+1}, 64, v{vVA}", [f"v{vVA}"], [f"v{vVA+1}"]),
          V(f"v_mov_b32 v{vHI}, 0", [], [f"v{vHI}"]), V(f"v_mov_b32 v{vLO}, -1", [], [f"v{vLO}"])]
    o += [V(f"v_lshrrev_b32 {t}, 4, {l}", [l], [t]),
          V(f"v_xor_b32 {t}, {t}, {l}", [t, l], [t]),
          V(f"v_bfe_u32 {t}, {t}, 1, 1", [t], [t]),
          V(f"v_add_u32 {t}, -1, {t}", [t], [t]),
          V(f"v_and_b32 {t}, 0x3f803f80, {t}", [t], [t])]
    o += [V(f"v_accvgpr_write_b32 a{aSA+k}, {t}", [t], [f"a{aSA+k}"]) for k in range(4)]
    o += [V(f"v_and_b32 {u}, 1, {l}", [l], [u]),
          V(f"v_mul_u32_u24 {u}, 0xaaaa, {u}", [u], [u]),
          V(f"v_add_u32 v{vIDX}, 0x4444, {u}", [u], [f"v{vIDX}"])]
    o += [V(f"v_accvgpr_write_b32 a{aL+k}, 0", [], [f"a{aL+k}"]) for k in range(12)]
    if cfg.qstage: o += stage2
    o += later[0]
    for T in range(1):
        st = vKt[T]; ws = []
        for r in range(8):
            a = f"a{ST(T, 0) + r}"; x = f"v{st + r}"; tt = f"v{vKx[r % 2]}"
            if not cfg.kvg: o += [V(f"v_accvgpr_read_b32 {x}, {a}", [a], [x])]
            o += [V(f"v_lshlrev_b32 {tt}, 16, {x}", [x], [tt]),
                  V(f"v_and_b32 {x}, s{sMASK}, {x}", [x], [x]),
                  V(f"v_mul_f32 {tt}, s{sC}, {tt}", [tt], [tt]),
                  V(f"v_mul_f32 {x}, s{sC}, {x}", [x], [x]),
                  V(f"v_cvt_pk_bf16_f32 {x}, {tt}, {x}", [tt, x], [x])]
        for e in range(2):
            w = I(f"ds_write_b128 v{vKW}, {R('v', st + 4*e, 4)} offset:{T*8192 + e*KWE}", "dsw", rd=[f"v{vKW}", R('v', st + 4*e, 4)])
            o.append(w); ws += [Item(w)] * 4
        rb = []
        for e in range(0 if cfg.ownk else 2):
            d = R("a", ST(T, e), 4)
            x = I(f"ds_read_b128 {d}, v{vKW} offset:{T*8192 + e*1024}", "dsr", rd=[f"v{vKW}"], wr=[d])
            o.append(x); rb.append(Item(x))
        kwrites[T] = ws; readback[T] = rb
    o += later[1]
    pro_tail.extend(later[2] + [salu(f"s_add_u32 s{sQn+k}, s{sOr+k}, 65536") for k in range(4)])
    return o
pro_tail = []

def guard_text():
    a = L(2)
    t = []
    if cfg.stamps == 5: t.append("    s_memrealtime s[%d:%d]" % (sTSB + 18, sTSB + 19))
    t.append("    s_nop 7\n    s_nop 3")
    t += [f"    v_accvgpr_read_b32 v{k}, a{a+k}" for k in range(4)]
    t += [f"    v_and_b32 v{k}, 0x7fffffff, v{k}" for k in range(4)]
    t += ["    v_max_u32 v0, v0, v1", "    v_max3_u32 v0, v0, v2, v3",
          "    v_cmp_le_u32 vcc, 0x5d800000, v0",
          "    s_nop 1",
          "    s_cmp_lg_u64 vcc, 0",
          f"    s_cselect_b32 s{sT0}, 1, 0",
          f"    v_cmp_lt_u32 vcc, 0x6f800000, v{vHI}",
          f"    v_cmp_gt_u32 s[6:7], 1.0, v{vLO}",
          "    s_nop 1",
          "    s_or_b64 vcc, vcc, s[6:7]",
          f"    s_cselect_b32 s{sFAIL}, 0x1fffff, s{sFAIL}",
          f"    s_lshl_b32 s{sT1}, s{sW}, 2",
          f"    s_add_u32 s{sT1}, s{sT1}, {FLAGS}",
          f"    v_mov_b32 v0, s{sT0}", f"    v_mov_b32 v1, s{sT1}", f"    v_mov_b32 v2, {FLAGS}",
          "    ds_write_b32 v1, v0", "    s_waitcnt lgkmcnt(0)", "    s_barrier",
          "    ds_read_b128 v[4:7], v2", "    s_waitcnt lgkmcnt(0)",
          "    v_or3_b32 v4, v4, v5, v6", "    v_or_b32 v4, v4, v7", "    s_nop 0",
          f"    v_readfirstlane_b32 s{sT0}, v4", "    s_nop 1",
          f"    s_cmp_lg_u32 s{sT0}, 0",
          f"    s_cselect_b32 s{sFAIL}, 0x1fffff, s{sFAIL}"]
    return t
FLAGS = RING + 3 * 8192 if cfg.tlds else RING
def finale():
    if cfg.stamps == 5 and cfg.vc1: pre_ = ["    s_memrealtime s[%d:%d]" % (sTSB + 18, sTSB + 19)]
    else: pre_ = []
    t = pre_ if (cfg.tlds or cfg.vc1) else guard_text()
    if cfg.stamps in (1, 4, 5):
        t += ["    s_memrealtime s[%d:%d]" % (sTSB + 22, sTSB + 23), "    s_waitcnt vmcnt(0)",
              "    s_memrealtime s[%d:%d]" % (sTSB + 24, sTSB + 25), "    s_memtime s[%d:%d]" % (sTSB + 26, sTSB + 27)]
    if cfg.stamps:
        t += ["    s_load_dwordx2 s[4:5], s[0:1], 40", "    s_waitcnt lgkmcnt(0)",
              "    s_mov_b32 s6, 0x100000", "    s_mov_b32 s7, 0x20000",
              f"    s_lshl_b32 s{sT0}, s2, 2", f"    s_add_u32 s{sT0}, s{sT0}, s{sW}", f"    s_lshl_b32 s{sT0}, s{sT0}, 7",
              "    v_mov_b32 v1, 0"]
        for k in range(21):
            t += [f"    v_mov_b32 v0, s{sTSB + 2*k}", f"    buffer_store_dword v0, v1, s[4:7], s{sT0} offen offset:{4*k}"]
    if cfg.spin:
        t += ["L_spin:", "    s_memrealtime s[100:101]", "    s_waitcnt lgkmcnt(0)", "    s_sub_u32 s100, s100, s98", f"    s_cmp_lt_u32 s100, {cfg.spin * 100}", "    s_cbranch_scc1 L_spin"]
    if cfg.dbg >= 0:
        t += [f"    s_cmp_lg_u32 s2, {cfg.dbg}", "    s_cbranch_scc1 L_nodbg", f"    s_cmp_lg_u32 s{sW}, 0", "    s_cbranch_scc1 L_nodbg",
              "    s_load_dwordx2 s[4:5], s[0:1], 32", "    s_waitcnt lgkmcnt(0)", "    s_mov_b32 s6, 256", "    s_mov_b32 s7, 0x20000"]
        lst = [(2, 0), (3, 0), (4, 0), (5, 0), (9, 0), (8, 0), (7, 0), (6, 0), (11, 0), (12, 0), (10, 1), (13, 10)]
        for k, (a_, b_) in enumerate(lst):
            t += [f"    s_sub_u32 s{sT1}, s{sTSB + 2*a_}, s{sTSB + 2*b_}", f"    v_mov_b32 v0, s{sT1}", f"    buffer_store_dword v0, v1, s[4:7], 0 offen offset:{4*k}"]
        t += ["L_nodbg:"]
    t += [f"    s_cmp_eq_u32 s{sFAIL}, 0", "    s_cbranch_scc1 L_end"]
    sJ, sRow, sKb, sVt = sT0, sT1, sT2, sKo
    f = ["    ; ---- slow path: rows whose unshifted exponent sum left the safe range are redone with the true max",
         "    s_waitcnt vmcnt(0)"]
    f += [f"    v_and_b32 v{vVA+c}, 0xffff, v{vVA+c}" for c in range(NVA)]
    f += ["L_fb_next:",
          f"    s_ff1_i32_b32 s{sJ}, s{sFAIL}", f"    s_bitset0_b32 s{sFAIL}, s{sJ}",
          f"    s_cmp_gt_u32 s{sJ}, 4", f"    s_cselect_b32 s{sKb}, 1, 0", f"    s_sub_u32 s{sKb}, s{sJ}, s{sKb}",
          f"    s_lshr_b32 s{sRow}, s{sKb}, 2", f"    s_lshl_b32 s{sRow}, s{sRow}, 16",
          f"    s_and_b32 s{sKb}, s{sKb}, 3", f"    s_lshl_b32 s{sKb}, s{sKb}, 12", f"    s_add_u32 s{sRow}, s{sRow}, s{sKb}",
          f"    s_lshl_b32 s{sKb}, s{sW}, 14", f"    s_add_u32 s{sRow}, s{sRow}, s{sKb}",
          f"    s_cmp_eq_u32 s{sJ}, 4", f"    s_cselect_b32 s{sRow}, s{sOr+4}, s{sRow}"]
    f += [f"    buffer_load_dwordx4 v[{4*s}:{4*s+3}], v{vQA}, s[{sQ}:{sQ+3}], s{sRow} offen offset:{off(s)}" for s in range(4)]
    def qk(dst, extra):
        r = [f"    buffer_load_dwordx4 v[{20+4*s}:{23+4*s}], v{vQA}, s[{sK}:{sK+3}], s{sKb} offen offset:{off(s)}" for s in range(4)]
        r += ["    s_waitcnt vmcnt(0)"]
        r += [f"    v_mfma_f32_16x16x32_bf16 v[{dst}:{dst+3}], v[{20+4*s}:{23+4*s}], v[{4*s}:{4*s+3}], {'0' if s == 0 else f'v[{dst}:{dst+3}]'}" for s in range(4)]
        r += [f"    s_add_u32 s{sKb}, s{sKb}, 4096", "    s_nop 9"]
        return r
    f += ["    v_mov_b32 v16, 0xff800000", f"    s_mov_b32 s{sKb}, 0", "L_fb_max:"]
    f += qk(36, None)
    f += ["    v_max3_f32 v16, v16, v36, v37", "    v_max3_f32 v16, v16, v38, v39",
          f"    s_cmp_lt_u32 s{sKb}, {HEADK}", "    s_cbranch_scc1 L_fb_max"]
    def xlane(reg, tmp, op):
        return [f"    v_mov_b32 v{tmp}, v{reg}", "    s_nop 1", f"    v_permlane16_swap_b32 v{reg}, v{tmp}", "    s_nop 1", f"    {op} v{reg}, v{reg}, v{tmp}",
                f"    v_mov_b32 v{tmp}, v{reg}", "    s_nop 1", f"    v_permlane32_swap_b32 v{reg}, v{tmp}", "    s_nop 1", f"    {op} v{reg}, v{reg}, v{tmp}"]
    f += xlane(16, 17, "v_max_f32")
    f += [f"    v_mul_f32 v17, s{sC}, v16", "    v_mov_b32 v18, 0"]
    f += [f"    v_mov_b32 v{64+k}, 0" for k in range(32)]
    f += [f"    s_mov_b32 s{sKb}, 0", f"    s_mov_b32 s{sVt}, 0", "L_fb_pv:"]
    f += qk(36, None) + qk(40, None)
    f += [f"    v_fma_f32 v{36+k}, v{36+k}, s{sC}, -v17" for k in range(8)]
    f += [f"    v_exp_f32 v{36+k}, v{36+k}" for k in range(8)]
    f += ["    s_nop 0"] + [f"    v_add_f32 v18, v18, v{36+k}" for k in range(8)]
    f += [f"    v_cvt_pk_bf16_f32 v{44+k}, v{36+2*k}, v{37+2*k}" for k in range(4)]
    f += [f"    v_add_u32 v{52+c}, s{sVt}, v{vVA+c}" for c in range(NVA)]
    for b in range(8):
        f += [f"    ds_read_b64_tr_b16 v[{48+2*blk}:{49+2*blk}], v{52+vsel(b)[0]} offset:{(b>>2)*32768 + blk*2048 + vsel(b)[2]}" for blk in range(2)]
        f += ["    s_waitcnt lgkmcnt(0)", f"    v_mfma_f32_16x16x32_bf16 v[{64+4*b}:{67+4*b}], v[48:51], v[44:47], v[{64+4*b}:{67+4*b}]"]
    f += [f"    s_add_u32 s{sVt}, s{sVt}, 4096", f"    s_cmp_eq_u32 s{sVt}, 32768", f"    s_cselect_b32 s{sVt}, 65536, s{sVt}",
          f"    s_cmp_lt_u32 s{sKb}, {HEADK}", "    s_cbranch_scc1 L_fb_pv"]
    f += xlane(18, 17, "v_add_f32")
    f += ["    v_rcp_f32 v18, v18", "    s_nop 7"]
    f += [f"    v_mul_f32 v{64+k}, v{64+k}, v18" for k in range(32)]
    f += [f"    v_cvt_pk_bf16_f32 v{96+k}, v{64+2*k}, v{65+2*k}" for k in range(16)]
    f += ["    s_nop 1"]
    for pb in range(0 if cfg.noswap else 4):
        f += [f"    v_permlane16_swap_b32 v{96+4*pb+h}, v{98+4*pb+h}" for h in range(2)]
    f += [f"    buffer_store_dwordx4 v[{96+4*pb}:{99+4*pb}], v{vOA}, s[{sO}:{sO+3}], s{sRow} offen offset:{64*pb}" for pb in range(4)]
    f += ["    s_waitcnt vmcnt(0)", f"    s_cmp_lg_u32 s{sFAIL}, 0", "    s_cbranch_scc1 L_fb_next"]
    return t + f

def simulate(linear, waits, nops, marks):
    t = 0; pipe = 0; q = []; lastdone = 0; out = []; t0 = 0; first = False; valu = False; mem = False; cur = None; stall = 0; stl = []; idle = [0]
    for ins in linear:
        if ins.kind == "label": continue
        w = waits.get(id(ins))
        if w:
            if w[1] is not None and len(q) > w[1]:
                need = q[len(q) - w[1] - 1]
                if need > t: stall += need - t; t = need
            t += 0 if first else 4; first = False
        t += 4 * nops.get(id(ins), 0)
        if id(ins) in marks:
            out.append(t - t0); stl.append(stall); t0 = t; stall = 0; idle.append(0)
        k = ins.kind
        if k in MAT:
            idle[-1] += max(0, pipe - t)
            t = max(t, pipe); pipe = t + 16; t += 8; first = True; valu = False; mem = False
        else:
            c = ins.cost
            if k in ("salu", "bar", "br", "wait") and first: c -= 4
            if k in LGKM + VM and valu: c += 8
            elif k in LGKM + VM and mem: c += 4
            if k in LGKM + VM: mem = True
            if k in LGKM:
                svc = 32 if k == "dsw" else (16 if ("b128" in ins.text or cfg.noswap) else 8)
                lastdone = max(lastdone + svc, t + cfg.ldslat); q.append(lastdone)
            if k in VALU: valu = True
            t += c; first = False
    out.append(t - t0); stl.append(stall)
    sys.stderr.write(f"sim cycles/period: {out[1:]}\nsim lgkm stalls : {stl[1:]}\nunused issue cyc: {idle[1:]}\n")

def gen_items(T):
    curT[0] = T
    items_softmax(T); items_kread(T)
    if T % 8 == 0 and T > 0: items_vtoggle(T)
    items_vread(T)
def bar_needs(T):
    pub = (T + 1,) if T < 15 else (T + 1, T + 2)
    nd = [x.ins for t in pub for x in kwrites[t]]
    if T in vdmas and T > 0: nd += vdmas[T]
    done = (T - 1, T) if T >= 13 else (T - 1,) if T >= 1 else ()
    nd += [kreads[t, blk, s_].ins for t in done for blk in range(2) for s_ in range(4) if (t, blk, s_) in kreads]
    nd += [x.ins for t in done if t in readback for x in readback[t]]
    BARm[T].needs = nd
def build():
    C = cfg.CUT; NT = 48 + C + 2
    for T in range(NT + 2): mk_step(T)
    BARm[-1] = I("s_barrier", "bar"); BARm["V0"] = I("s_barrier", "bar")
    for T in list(range(0, 15, 2)) + list(range(1, NT + 2, 2)): BARm[T] = I("s_barrier", "bar")
    pro = prologue()
    pro.append(BARm[-1]); pro += stamp(2) + pro_tail
    bb, start = [], {}
    for T in range(NT):
        start[T] = len(bb); bb += backbone_period(T)
    backbone_period(NT)
    fixed = {id(bar_spot(T)): [BARm[T]] for T in range(NT) if T in BARm}
    fixed[id(QKm[1, 0, 0, 0] if cfg.sm0 else QKm[0, 1, 2, 3])] = [BARm["V0"]]
    labL = I("L_loop:", "label"); labL2 = I("; second instance", "label"); labL3 = I("; third instance", "label")
    def chk():
        pre = ""
        if cfg.stamps == 1:
            r = sTSB + 12
            pre = "".join(f"s_mov_b64 s[{r+2*k+2}:{r+2*k+3}], s[{r+2*k}:{r+2*k+1}]\n    " for k in (2, 1, 0)) + f"s_memrealtime s[{r}:{r+1}]\n    "
        return I(pre + f"s_sub_u32 s{sCNT}, s{sCNT}, 1\n    s_cmp_eq_u32 s{sCNT}, 0\n    s_cbranch_scc1 L_tail", "br")
    chk1, chk2 = chk(), chk()
    brL, brL2 = I("s_branch L_loop", "br"), I("s_branch L_loop", "br")
    marks = {start[16 + C]: stamp(5) + [labL], start[32]: [chk1], start[32 + C]: [brL, labL2], start[48]: [chk2], start[48 + C]: [brL2, labL3]}
    marks[start[12]] = [I("L_p12:", "label")]
    if cfg.stamps == 1:
        marks[start[1]] = stamp(3); marks[start[16]] = stamp(4) + stamp(10, True)
    if cfg.stamps == 2:
        for T in range(16 + C, 48 + C): marks.setdefault(start[T], []).append(stamp((T - C) % 16, True, 2)[0])
    if cfg.stamps == 3:
        for T in range(0, min(20, 16 + C - cfg.st3)): marks.setdefault(start[T + cfg.st3], []).insert(0, stamp(T, False, 3)[0])
        pro.insert(1, stamp(20, False, 3)[0])
    for T in range(16): items_loads(T)
    for T in range(NT):
        gen_items(T)
        if T % 16 == C and T > 16: items_rowadv(T)
        if cfg.repf:
            if T == cfg.pf1: items_codepf(T, "L_p12")
            if T == cfg.pf2: items_codepf(T, "L_loop")
            if T > 32 and T % 16 == cfg.pf3: items_codepf(T, "L_tail")
    for base in (16, 32): items_qpf(base)
    for T in range(1, NT + 2): curT[0] = T; items_kwrite(T)
    curT[0] = -50; items_qjit()
    if cfg.vc1: items_vcheck()
    for T in range(NT):
        if any(islast(T, q) for q in act(T)):
            curT[0] = T + 1000
            items_epilogue(T, marks[start[(T + 1) // 16 * 16 + C]][0])
    BARm[-1].needs = [x.ins for x in kwrites[0]]
    BARm["V0"].needs = list(vdmas[0])
    for T in range(NT):
        if T in BARm: bar_needs(T)
    if cfg.vc1: BARm[25].needs += vc_store
    stream = list(pro)
    Sched(stream).run(bb, items, fixed, marks)
    p = {id(x): k for k, x in enumerate(stream)}
    ref = {(it.T[0] - 16, it.T[1]): p[id(it.ins)] < p[id(brL)] for it in items if it.placed and 32 + C - 2 <= it.T[0] < 48}
    cut = marks[start[16 + C]][0]
    for it in items:
        r = ref.get(it.T)
        if r is True: it.dead = list(it.dead) + [cut]
        elif r is False: it.after.append((labL, 0))
        it.placed = False
    stream = list(pro)
    sc = Sched(stream)
    sc.run(bb, items, fixed, marks)
    p = {id(x): k for k, x in enumerate(stream)}
    iL, iC1, iBr, iL2, iC2, iBr2 = (p[id(x)] for x in (labL, chk1, brL, labL2, chk2, brL2))
    segP = stream[:iL]; segL = stream[iL:iC1 + 1]; segB = stream[iC1 + 1:iBr + 1]
    one, two = stream[iL:iBr + 1], stream[iL2:iBr2 + 1]
    a = [x.text for x in one[1:]]; b = [x.text for x in two[1:]]
    if a != b:
        for k, (x, y) in enumerate(zip(a, b)):
            if x != y: sys.stderr.write(f"loop mismatch at {k}: {x} | {y}\n"); break
        raise SystemExit("loop instances differ")
    mp = {id(y): x for x, y in zip(one, two)}
    for x, y in zip(one, two): x.needs = x.needs + [mp.get(id(z), z) for z in y.needs]
    def keyed(its):
        cnt, out = {}, {}
        for it in its:
            k = (it.T[0], it.ins.text); cnt[k] = cnt.get(k, 0) + 1; out[k + (cnt[k],)] = it
        return out
    old = {k: it for k, it in keyed(items).items() if it.placed and p[id(it.ins)] <= iC2}
    TFIN[0] = 48; TE = 48 + DL
    for d in (QKm, PVm, SMm):
        for k in [k for k in d if k[0] >= 48 and (k[0] >= TE or (k[2] if d is not SMm else 2 * k[1]) not in (2, 3))]: del d[k]
    for T in range(TE - 1 if TE % 2 == 0 else TE, NT + 2): BARm.pop(T, None)
    for j in range(32):
        buf = Kf(0, 0) + 4 * (j % 8)
        VCm[j] = mfma(L(2), buf, buf, j == 0, dk="a")
    tbb = []
    for T in range(48, TE + 1): tbb += backbone_period(T)
    items.clear(); pwriters.clear(); lprev.clear()
    for k in [k for k in unit_free if k[0] == 32]: del unit_free[k]
    for T in range(46, TE): gen_items(T)
    for T in range(48, TE): curT[0] = T; items_kwrite(T)
    endT = I("; end of tail", "label"); endA = I("; group A stored", "label")
    curT[0] = 5000
    if DL: items_epilogue(47, tbb[len(tbb) - cfg.nvc - 20])
    items_epilogue(TE - 1, endT)
    if not cfg.vc1: va = add(valu(f"v_add_u32 v{vVD}, s{sVC}, v{vKR}", [f"v{vKR}"], [f"v{vVD}"]), dead=[PVm[TE - 1, 2, act(TE - 1)[0]]], tag="vc")
    for j in range(cfg.nvc):
        d = R("a", Kf(0, 0) + 4 * (j % 8), 4)
        lastu = [(QKm[TE - 1, (j % 8) // 4, act(TE - 1)[-1], j % 4], 0)] if j < 8 else [(VCm[j - 8], 0)]
        add(I(f"ds_read_b128 {d}, v{vVD} offset:{j*1024}", "dsr", rd=[f"v{vVD}"], wr=[d]), after=[(va.ins, 0)] + lastu, dead=[VCm[j]], tag="vc", prio=-6)
    if cfg.vc1:
        fl = P(1, 4); prev = None
        for c in range(4):
            x = I(f"buffer_load_dword v{fl+c}, v{vKC[c]}, s[{sWS}:{sWS+3}], 0 offen sc1", "vld", rd=[f"v{vKC[c]}"], wr=[f"v{fl+c}"], cost=8); x.fast = True
            add(x, after=[(prev, 0)] if prev else [], dead=[firstm[49]], tag="vc"); prev = x
        g1 = add(valu(f"v_max3_u32 v{fl}, v{fl}, v{fl+1}, v{fl+2}", [R("v", fl, 3)], [f"v{fl}"]), after=[(prev, 0), (firstm[TE - 1], 0)], dead=[firstm[TE]], tag="vc").ins
        g2 = add(valu(f"v_max_u32 v{fl}, v{fl}, v{fl+3}", [f"v{fl}", f"v{fl+3}"], [f"v{fl}"]), after=[(g1, 0)], dead=[firstm[TE]], tag="vc").ins
        gx = I("\n    ".join([f"v_cmp_le_u32 s[6:7], s{sT1}, v{fl}",
                               f"v_cmp_lt_u32 vcc, 0x6f800000, v{vHI}",
                               f"v_cmp_gt_u32 s[50:51], 1.0, v{vLO}    ; some l < 1", "s_nop 1",
                               "s_or_b64 vcc, vcc, s[6:7]", "s_or_b64 vcc, vcc, s[50:51]", f"s_cselect_b32 s{sFAIL}, 0x1fffff, s{sFAIL}"]),
               "br", rd=[f"v{vHI}", f"v{vLO}", f"v{fl}"], wr=["vcc"], cost=32)
        g0 = add(salu(f"s_mov_b32 s{sT1}, 0x5d800000", [], [f"s{sT1}"]), dead=[firstm[TE]], tag="vc").ins
        add(gx, after=[(g2, 0), (g0, 0)] + [(z, 0) for z in lprev] + [x.after[0] for x in tail_stores[-2:]], dead=[endT], tag="ep", prio=5000)
        for x in tail_stores[-2:]: x.after.append((gx, 0))
    elif cfg.tlds:
        assert TE % 4 == 3
        gx = I("\n".join(guard_text()).strip(), "br", rd=[f"v{vHI}", f"v{vLO}", R("a", L(2), 4)], wr=["v[0:7]", "vcc"], cost=200)
        git = add(gx, after=[(VCm[cfg.nvc - 1], 0)] + [(z, 0) for z in lprev], dead=[endT], tag="ep", prio=-5000)
        for x in tail_stores[cfg.exk:]:
            x.after.append((gx, 0)); x.dabs = None
    alias = {}
    for k, it in keyed(items).items():
        if k in old: alias[id(it.ins)] = old[k].ins; it.ins = old[k].ins; it.placed = True
    tfixed = {id(bar_spot(T)): [BARm[T]] for T in range(48, TE) if T in BARm}
    known = {id(x) for x in stream[:iC2 + 1]} | {id(x) for x in tbb} | {id(it.ins) for it in items} | {id(x) for l_ in tfixed.values() for x in l_}
    for it in items: it.after = [(alias.get(id(a_), a_), d_) for a_, d_ in it.after if id(alias.get(id(a_), a_)) in known]
    for T in range(48, TE):
        if T in BARm: bar_needs(T)
    tstream = stream[:iC2 + 1]
    labT = I("L_tail:", "label")
    tm = {0: [labT] + stamp(2, False, 5)}
    if cfg.stamps == 5:
        for T in range(49, TE + 1): tm[tbb.index(firstm[T])] = stamp(T - 46, False, 5)
        if cfg.nvc: tm[tbb.index(VCm[0])] = stamp(8, False, 5)
    if cfg.wbl2:
        pos_ = {1: tbb.index(firstm[TE]), 2: 1, 3: tbb.index(firstm[TE - 1])}[cfg.wbl2]
        tm.setdefault(pos_, []).append(I(f"s_lshl_b32 s{sT1}, s2, 2\n    s_add_u32 s{sT1}, s{sT1}, s{sW}\n    s_and_b32 s{sT1}, s{sT1}, {cfg.wbmask}\n    s_cbranch_scc1 L_nowb\n    buffer_wbl2 sc1\nL_nowb:", "br"))
    Sched(tstream).run(tbb, items, tfixed, tm, endins=endT)
    segT = tstream[iC2 + 1:]
    assert segT[0] is labT, segT[:3]
    assert all(it.placed for it in items)
    for x in segT: x.needs = [mp.get(id(z), z) for z in x.needs]
    linear = segP + segL + segB + segL + segB + segL + segT
    waits = insert_waits(linear)
    nops = fix_hazards(linear, waits)
    sys.stderr.write(f"instr: P {len(segP)} L {len(segL)} B {len(segB)} T {len(segT)}; waits {len(waits)}; nops {sum(nops.values())} at {len(nops)} sites\n")
    mk = {id(stream[p[id(bb[start[T]])]]): T for T in range(32 + C)}
    mk.update({id(firstm[T]): T for T in range(48, TE + 1)})
    simulate(segP + segL + segB + segL + segT, waits, nops, mk)
    loop = render(segL, waits, nops) + render(segB, waits, nops)
    if cfg.drop:
        pat = {"v": "ds_read_b64_tr", "k": "ds_read_b128", "w": "ds_write", "s": "v_smfmac", "e": "v_exp", "c": r"v_cvt_pk_bf16_f32 v1[6-9]\d, v20", "q": "v_accvgpr_(write_b32 a\d+, v|mov)",
               "m": "v_mul_f32", "t": "buffer_store", "l": "buffer_load", "b": "s_barrier"}
        for ch in cfg.drop: loop = [x for x in loop if not re.search(pat[ch], x)]
    sk = []
    if cfg.skew:
        sk = [f"    s_mov_b32 s{sT1}, s{sW}" if cfg.skew > 0 else f"    s_lshr_b32 s{sT1}, s{sW}, 1", "L_sk:", f"    s_cmp_eq_u32 s{sT1}, 0", "    s_cbranch_scc1 L_sk2", f"    s_sub_u32 s{sT1}, s{sT1}, 1", f"    s_nop {abs(cfg.skew)}", "    s_branch L_sk", "L_sk2:"]
    body = render(segP, waits, nops) + sk + loop + render(segT, waits, nops)
    return body

HEADER = open("standalone__mha_softmax__near_ridge.s.ref").read().split("; Override launch")[0]
def main():
    body = build()
    out = HEADER + f"""; One workgroup (4 waves x 512 registers) per (batch, head).  V stays in LDS, K (pre-scaled by log2(e)/sqrt(D))
; stays in registers and is re-published through a small LDS ring; generated by my own scheduling script.
; @launch grid=(256,1,1) block=(256,1,1) lds=163840
.amdgcn_target "amdgcn-amd-amdhsa--gfx950"
.text
.globl {KNAME}
.p2align 8
.type {KNAME},@function
{KNAME}:
""" + "\n".join(body) + "\n" + "\n".join(finale()) + f"""
L_end:
    s_endpgm
.section .rodata,"a"
.p2align 6
.amdhsa_kernel {KNAME}
  .amdhsa_next_free_vgpr 512
  .amdhsa_next_free_sgpr 102
  .amdhsa_accum_offset 256
  .amdhsa_group_segment_fixed_size 0
  .amdhsa_kernarg_size 48
  .amdhsa_user_sgpr_count 2
  .amdhsa_user_sgpr_kernarg_segment_ptr 1
  .amdhsa_system_sgpr_workgroup_id_x 1
.end_amdhsa_kernel
"""
    open(sys.argv[1], "w").write(out)
main()
```

```python
import sys, struct, math, re
from core import *

class Cfg:
    dmap = "A"
    LK = 3
    LV = 2
    delta = 3
    noswap = True
    busy64 = True
    oflagsFA = "="
    oflagsFB = "="
    wr64 = False
    CUT = 10
    leadT = 11
    ta_slow = 250
    ta_fast = 90
    v0first = False
    dsmargin = 7
    st3 = 0
    jitfirst = True
    tq0 = 2
    tstep = 16
    st0 = 60
    tqstep = 10
    ownk = True
    vc1 = True
    tlds = True
    tpk = False
    tx0 = 8
    txstep = 6
    exk = 5
    nvc = 32
    kvg = True
    ksd = 0
    gs = "246789"
    klin = True
    stE = 50
    drop = ""
    skew = 0
    repf = False
    early0 = True
    e0g = 3
    pf1 = 8
    pf2 = 23
    pf3 = 9
    wbl2 = 0
    wbmask = 0x3e3
    pairst = False
    grow = 0
    stF0 = 20
    stFstep = 12
    jitstep = 2
    qstage = True
    sm0 = True
    tl0 = 6
    tlstep = 5
    wrn = 2
    kdoff = 14
    kstep = 8
    ldslat = 110
    qpf0 = 8
    lead = 0
    qflags = " nt"
    oflags = ""
    kvflags = " nt"
    pfflags = " nt"
    pf_period = 11
    stamps = 0
    spin = 0
    extra = 0
    dbg = -1
    force_fallback = False
    vahead = 2
    codepf = True
cfg = Cfg()
for a in sys.argv[2:]:
    k, v = a.split("=", 1)
    old = getattr(cfg, k)
    setattr(cfg, k, (v == "1") if isinstance(old, bool) else type(old)(v.replace("+", " ")))

if cfg.vc1: cfg.nvc = 0
KNAME = "standalone__mha_softmax__near_ridge_kernel"
SQ, SK, D = 1312, 512, 128
HEADQ = SQ * D * 2
HEADK = SK * D * 2
RING = 131072
CSCALE = struct.unpack("<I", struct.pack("<f", math.log2(math.e) / math.sqrt(D)))[0]

vO, vP, vS, vVf = 0, 160, 200, 208
vVA = 224
vHI, vLO = 226, 227
vKR, vKW, vQA, vOA, vPF, vIDX, vVD = 228, 229, 230, 231, 232, 233, 234
if cfg.ownk:
    assert cfg.dmap == "A" and cfg.noswap and not cfg.repf
    vOA = vQA; vKC = [228, 229, 235, 231]; vKW = 254
sX = [28, 46, 47, 48]
vT = 235
vKt = [236, 244]; vKx = [252, 253]
vW = [236, 240, 244]
vRI = 248
vL0, vL1, vDUM = 253, 254, 255
aQ, aST, aKf, aL, aSA = 0, 80, 208, 240, 252
def O(qs, b): return vO + 32 * qs + 4 * b
def P(T, qs): return vP + 20 * (T % 2) + 4 * qs
def S(c): return vS + 4 * (c % 2)
def Vf(f): return vVf + 4 * (f % 4)
def Q(qs, s): return aQ + 16 * qs + 4 * s
def Kf(blk, s): return aKf + 16 * blk + 4 * s
def ST(j, e): return aST + 8 * (j % 16) + 4 * e
def KA(T, blk, s): return ST(T, blk) if (cfg.ownk and s == 0) else Kf(blk, s)
def L(p): return aL + 4 * p
sQ, sK, sV, sO = 8, 12, 16, 20
sW = 24; sC = 25; sMASK = 26; sFAIL = 27; sBIT = 28; sCNT = 29
sOr = 30
sQn = 35
sKo, sVo, sM0 = 40, 41, 42
sT0, sT1, sT2 = 43, 44, 45
sLO, sRNG = 46, 47
sTS = 48
def off(s): return 64 * s if cfg.dmap == "A" else 128 * (s >> 1) + 16 * (s & 1)
GST = 16 if cfg.dmap == "A" else 32

DL = cfg.delta
TFIN = [1 << 30]
def act(T):
    if T < 0: return []
    if T < 16: return [0, 1, 2, 3, 4]
    if T >= TFIN[0] + DL: return []
    if T >= TFIN[0]: return [2, 3]
    if T < 16 + DL: return [0, 1]
    if DL and T >= 32 and (T % 16 == 0 or T % 16 == DL - 1): return [2, 3, 0, 1]
    return [0, 1, 2, 3]
def n_of(T): return len(act(T))
def phase(qs): return DL if qs in (2, 3) else 0
def isfirst(T, qs): return T == 0 or (T >= 16 and T % 16 == phase(qs))
def islast(T, qs): return T == 15 or (T > 16 + DL and (T + 1) % 16 == phase(qs))
def nextstart(T, qs):
    return 16 + phase(qs) if T == 15 else T + 1

def mfma(d, a, b, zero, dk="v", ak="a", bk="a"):
    D_, A_, B_ = R(dk, d, 4), R(ak, a, 4), R(bk, b, 4)
    return I(f"v_mfma_f32_16x16x32_bf16 {D_}, {A_}, {B_}, {'0' if zero else D_}", "mfma",
             rd=[A_, B_] + ([] if zero else [D_]), wr=[D_], acc=not zero)
def valu(text, rd, wr, kind="valu"): return I(text, kind, rd=rd, wr=wr)
def salu(text, rd=(), wr=()): return I(text, "salu", rd=rd, wr=wr)

class Item:
    __slots__ = ("ins", "after", "dead", "prio", "early", "tag", "placed", "T", "seq", "soft", "doff", "pace", "dabs", "nb")
    def __init__(self, ins, after=(), dead=None, early=None, tag="", prio=0, doff=0, pace=None):
        self.doff = doff; self.pace = pace; self.dabs = None; self.nb = None
        self.ins = ins; self.after = list(after); self.dead = dead; self.early = early
        self.tag = tag; self.prio = prio; self.placed = False

QKm, PVm, SMm, BARm, VCm = {}, {}, {}, {}, {}
def chain(T, g):
    a = act(T)
    if T == 15: return (g % 2, a[g // 2])
    if T == 0 and cfg.sm0: return [(0, 0), (1, 0), (0, 1), (1, 1), (0, 2), (1, 2), (0, 3), (0, 4), (1, 3), (1, 4)][g]
    return (g // len(a), a[g % len(a)])
def mk_step(T):
    for g in range(2 * n_of(T)):
        blk, qs = chain(T, g)
        for s in range(4):
            QKm[T, blk, qs, s] = mfma(S(g), KA(T, blk, s), Q(qs, s), s == 0)
    for b in range(8):
        for qs in act(T):
            PVm[T, b, qs] = mfma(O(qs, b), Vf(b), P(T, qs), isfirst(T, qs), ak="v", bk="v")
    for p in pairs(T):
        d, b = R("a", L(p), 4), R("v", P(T, pair_lo(p)), 8)
        SMm[T, p] = I(f"v_smfmac_f32_16x16x64_bf16 {d}, {R('a', aSA, 4)}, {b}, v{vIDX}", "smf",
                      rd=[d, b, R("a", aSA, 4), f"v{vIDX}"], wr=[d], acc=True)
def pair_of(qs): return 2 if qs == 4 else qs // 2
def pairs(T):
    out = []
    for qs in act(T):
        if pair_of(qs) not in out: out.append(pair_of(qs))
    return out
def pair_lo(p): return 3 if p == 2 else 2 * p
def pvlist(T): return [PVm[T, b, qs] for b in range(8) for qs in act(T)]
firstm = {}
VC1 = {(T, dh): mfma(Kf(1, 0), Kf(0, 0), Kf(0, 0), T == 0 and dh == 0, dk="a") for T in range(16) for dh in range(2)}

def backbone_period(T):
    tail = n_of(T) == 0
    pv = pvlist(T - 2)[-4:] + (pvlist(T - 1) if tail else pvlist(T - 1)[:-4])
    sm = [SMm[T - 1, p] for p in pairs(T - 1)]
    out = []
    if tail:
        out += pv[:6] + sm + pv[6:] + [VCm[j] for j in range(cfg.nvc)]
        for k, m in enumerate(out): m.pref = "T" if (k < 4) else "D"
        firstm[T] = out[0]
        return out
    n = n_of(T); G = 2 * n
    lead = cfg.leadT if T == 16 else cfg.lead if (T > 16 and any(islast(T - 1, q) for q in act(T - 1))) else 0
    if lead:
        nl = 4 * lead
        head = pv[:nl]; pv = pv[nl:]
        if lead >= 2:
            head = head[:4] + [sm[0]] + head[4:8] + sm[1:] + head[8:]
            sm = []
        for k, m in enumerate(head): m.pref = "T" if k < 4 else "D"
        out += head
    if T == 1: cnt = [0] + [4] * (G - 1)
    elif len(pv) < 4 * G and not lead:
        r = len(pv) - 4; cnt = [min(4, len(pv))] + [r // (G - 1) + (1 if g < r % (G - 1) else 0) for g in range(G - 1)] if len(pv) >= 4 else [0] * G
    else:
        cnt = [len(pv) // G + (1 if g < len(pv) % G else 0) for g in range(G)]
    smpos = {}
    if sm:
        early = any(islast(T - 1, q) for q in act(T - 1)) and len(sm) > 1
        spots = [0 if early else 1, G // 2 + 1, G - 2]
        for m, g in zip(sm, spots): smpos.setdefault(min(g, G - 1), []).append(m)
    if cfg.vc1 and 1 <= T < 16:
        for dh in range(2):
            smpos.setdefault(6 + 2 * dh, []).append(VC1[T, dh])
            if T == 1: smpos.setdefault(2 + 2 * dh, []).append(VC1[0, dh])
    k = 0
    for g in range(G):
        blk, qs = chain(T, g)
        grp = [QKm[T, blk, qs, s] for s in range(4)] + pv[k:k + cnt[g]]
        k += cnt[g]
        L_ = len(grp)
        for j, m in enumerate(grp):
            m.pref = "T" if (L_ >= 8 and j % 2 == 0 and j < 8) or (L_ < 8 and j in {4: (0, 1, 2, 3), 5: (0, 1, 3, 4), 6: (0, 2, 3, 5), 7: (0, 2, 4, 6)}[L_]) else "D"
        out += grp
        for m in smpos.get(g, []):
            m.pref = "D"; out.append(m)
    firstm[T] = out[0]
    return out

items = []
curT = [-200]
ordn = {}
def add(ins, **kw):
    it = Item(ins, **kw); ordn[curT[0]] = ordn.get(curT[0], 0) + 1; it.T = (curT[0], ordn[curT[0]]); it.seq = len(items); items.append(it); return it

cvts = {}
def items_softmax(T):
    n = n_of(T)
    for g in range(2 * n):
        blk, qs = chain(T, g)
        last = QKm[T, blk, qs, 3]
        if g + 2 < 2 * n: nxt = QKm[(T,) + chain(T, g + 2) + (0,)]
        elif n_of(T + 1): nxt = QKm[(T + 1,) + chain(T + 1, g + 2 - 2 * n) + (0,)]
        else: nxt = None
        use = PVm[T, 0, qs]
        ng = QKm[(T,) + chain(T, g + 1) + (0,)] if g + 1 < 2 * n else firstm[T + 1]
        sms = [SMm[T, p] for p in pairs(T) if pair_lo(p) <= qs <= pair_lo(p) + 1]
        ex = []
        for r in range(4):
            v = f"v{S(g)+r}"
            ex.append(add(valu(f"v_exp_f32 {v}, {v}", [v], [v], "trans"), after=[(last, 8), (ng, 0)] + ([(ex[-1].ins, 0)] if ex else []),
                          dead=[nxt, use], tag="sm"))
        for h in range(2):
            d = f"v{P(T, qs) + 2*blk + h}"; a, b = f"v{S(g)+2*h}", f"v{S(g)+2*h+1}"
            aft = [(ex[2*h].ins, 1), (ex[2*h+1].ins, 1)]
            if qs in act(T - 2): aft.append((PVm[T - 2, 7, qs], 0))
            aft += [(SMm[T - 2, p], 0) for p in pairs(T - 2) if pair_lo(p) <= qs <= pair_lo(p) + 1]
            it = add(valu(f"v_cvt_pk_bf16_f32 {d}, {a}, {b}", [a, b], [d]), after=aft, dead=[nxt, use] + sms, tag="sm")
            pwriters.setdefault((T, P(T, qs)), []).append(it)
pwriters = {}

kreads = {}
def bar_pub(T):
    return BARm[T - 1] if T < 16 else BARm[(T // 2) * 2 - 1]
def items_kread(T):
    n = n_of(T)
    for blk in range(2):
        for s in range(4):
            if cfg.ownk and s == 0 and T >= 16: continue
            d = R("a", KA(T, blk, s), 4)
            if cfg.ownk: ins = I(f"ds_read_b128 {d}, v{vKC[s]} offset:{(T % 4) * 8192 + blk * 4096}", "dsr", rd=[f"v{vKC[s]}"], wr=[d])
            else: ins = I(f"ds_read_b128 {d}, v{vKR} offset:{(T % 4) * 8192 + (4*blk+s) * 1024}", "dsr", rd=[f"v{vKR}"], wr=[d])
            aft = [(bar_pub(T), 0)]
            if T >= 1 and not (cfg.ownk and s == 0): aft.append((QKm[T - 1, blk, act(T - 1)[-1], s], 0))
            dl = [QKm[T, blk, act(T)[0], 0]]
            if blk == 1 and T % 2 == 1 and T != 15 and T in BARm: dl.append(BARm[T])
            kreads[T, blk, s] = add(ins, after=aft, dead=dl, tag="qk", prio=-12)
vreads = {}
vtog = {}
def vbar(T):
    if T == 0: return BARm["V0"]
    return BARm[T]
def vsel(b):
    return ((b >> 1) & 1, b >> 2, 8 * (b & 1)) if cfg.noswap else (b & 3, b >> 2, 0)
NVA = 2 if cfg.noswap else 4
def items_vread(T):
    for b in range(8):
        f = 8 * T + b
        pT, pb = divmod(f - 4, 8)
        aft = []
        if f >= 4: aft.append((PVm[pT, pb, act(pT)[-1]], 0))
        va = cfg.vahead if n_of(T) > 2 else 3
        aT, ab = divmod(f - va - 1, 8)
        if f - va - 1 >= 0: aft.append((PVm[aT, ab, act(aT)[-1]], 0))
        if T < 16: aft.append((vbar(T), 0))
        c, dh, e8 = vsel(b)
        if T % 8 == 0 and T > 0 and dh == 0: aft.append((vtog[T, c].ins, 0))
        prev = None
        for blk in range(2):
            d = R("v", Vf(f) + 2 * blk, 2)
            ins = I(f"ds_read_b64_tr_b16 {d}, v{vVA+c} offset:{dh*32768 + (T % 8)*4096 + blk*2048 + e8}", "dsr",
                    rd=[f"v{vVA+c}"], wr=[d])
            vreads[T, b, blk] = add(ins, after=aft + ([(prev, 0)] if prev else []), dead=[PVm[T, b, act(T)[0]]], tag="v", prio=-12)
            prev = ins
def items_vtoggle(T):
    for c in range(NVA):
        v = f"v{vVA+c}"
        use = [b for b in range(8) if vsel(b)[0] == c]
        vtog[T, c] = add(valu(f"v_xor_b32 {v}, 0x10000, {v}", [v], [v]), after=[(vreads[T - 1, b, 1].ins, 0) for b in use],
                         dead=[PVm[T, use[0], act(T)[0]]], tag="v", prio=-24, doff=cfg.dsmargin + 4)

kwrites = {}
kloads = {}
def busy(T):
    return T < 26 or T >= TFIN[0] or (T % 16) in (2, 3, 4, 5, 6, 7, 8, 9)
KWE = 128 if cfg.klin else 1024
def items_kwrite(T):
    m = T // 2
    if T < 16: opn, cls = BARm[max(T - 3, -1)], BARm[T - 1]
    else: opn, cls = BARm[2 * m - 3], BARm[2 * m - 1]
    ws = []
    def wr(src, r, nreg, **kw):
        x = R(src[0], src[1] + r, nreg)
        ad, st_ = (vKC[0], 4096) if (cfg.ownk and T >= 16) else (vKW, KWE)
        return add(I(f"ds_write_b{32*nreg} v{ad}, {x} offset:{(T % 4)*8192 + (r//4)*st_ + (r % 4)*4}", "dsw", rd=[f"v{ad}", x],
                     cost={1: 8, 2: 12, 4: 26}[nreg]), tag="qk", **kw)
    nr = cfg.wrn
    if T < 16:
        st = vKt[T % 2]
        prev_w = kwrites.get(T - 2)
        done = []
        for r in range(8):
            a = f"a{ST(T, 0) + r}"; x = f"v{st + r}"; t = f"v{vKx[r % 2]}"
            do = (cfg.kdoff + (7 - r) * cfg.kstep) if T >= 2 else 2 + (7 - r)
            kw = dict(dead=[cls], tag="qk", doff=do + 2)
            aft = [(kloads[T][r // 4], 0)]
            if prev_w: aft.append((prev_w[r * len(prev_w) // 8].ins, 0))
            aft.append((mid_of(T - 2) if T >= 3 else QKm[0, 0, 4, 3] if T == 2 else QKm[0, 0, 1, 3], 0))
            if not cfg.kvg: aft = [(add(valu(f"v_accvgpr_read_b32 {x}, {a}", [a], [x]), after=aft, prio=-5, **kw).ins, 0)]
            i1 = add(valu(f"v_lshlrev_b32 {t}, 16, {x}", [x], [t]), after=aft + ([(chain_prev[r % 2], 0)] if chain_prev[r % 2] else []), prio=-4, **kw)
            i2 = add(valu(f"v_and_b32 {x}, s{sMASK}, {x}", [x, f"s{sMASK}"], [x]), after=[(i1.ins, 0)], prio=-3, **kw)
            i3 = add(valu(f"v_mul_f32 {t}, s{sC}, {t}", [t, f"s{sC}"], [t]), after=[(i1.ins, 0)], prio=-2, **kw)
            i4 = add(valu(f"v_mul_f32 {x}, s{sC}, {x}", [x, f"s{sC}"], [x]), after=[(i2.ins, 0)], prio=-1, **kw)
            i5 = add(valu(f"v_cvt_pk_bf16_f32 {x}, {t}, {x}", [t, x], [x]), after=[(i3.ins, 0), (i4.ins, 0)], prio=0, **kw)
            chain_prev[r % 2] = i5.ins; done.append(i5.ins)
            if r % nr == nr - 1:
                ws.append(wr(("v", st), r - nr + 1, nr, after=[(opn, 0)] + [(x_, 0) for x_ in done[-nr:]], dead=[cls], doff=max(do - 8, 1)))
        rb = []
        for e in range(0 if cfg.ownk else 2):
            d = R("a", ST(T, e), 4)
            ins = I(f"ds_read_b128 {d}, v{vKW} offset:{(T % 4)*8192 + e*1024}", "dsr", rd=[f"v{vKW}"], wr=[d])
            rb.append(add(ins, after=[(w_.ins, 0) for w_ in ws[e * len(ws) // 2:(e + 1) * len(ws) // 2]], dead=[BARm[T]], tag="qk", prio=0))
        readback[T] = rb
        if cfg.kvg:
            assert cfg.ownk and cfg.LK == 3
            for e, it in enumerate(kload_items.get(T + 2, [])): it.after += [(w_.ins, 0) for w_ in ws[e * len(ws) // 2:(e + 1) * len(ws) // 2]]
    else:
        nw_ = 8 // nr
        for k in range(nw_):
            ws.append(wr(("a", ST(T, 0)), k * nr, nr, after=[(opn, 0)] + ([(ws[-1].ins, 0)] if ws else ([(kwrites[T-1][-1].ins, 0)] if T % 2 else [])),
                         dead=[cls], pace=(opn, ((T % 2) * nw_ + k + 1) / (2.0 * nw_))))
    kwrites[T] = ws
chain_prev = [None, None]
readback = {}
def mid_of(T): return QKm[(T,) + chain(T, n_of(T)) + (0,)]
def bar_spot(T): return QKm[0, 0, 4, 3] if T == 0 else QKm[(T,) + chain(T, n_of(T) - 1) + (3,)]
def start_of(T): return QKm[(T,) + chain(T, 0) + (0,)]

def kload_ins(j):
    out = []
    for e in range(2):
        d = R("v", vKt[j % 2] + 4 * e, 4) if cfg.kvg else R("a", ST(j, e), 4)
        va, o_ = (vVD, 2048 * e) if cfg.klin else (vQA, off(1) * e)
        out.append(I(f"buffer_load_dwordx4 {d}, v{va}, s[{sK}:{sK+3}], s{sKo} offen offset:{o_}{cfg.kvflags}", "vld",
                     rd=[f"v{va}", f"s{sKo}", f"s[{sK}:{sK+3}]"], wr=[d]))
        out[-1].fast = cfg.klin
    return out
def vdma_ins(j):
    out = []
    for dh in range(2):
        m0 = (j >> 3) * 65536 + dh * (32768 - 128) + (j & 7) * 4096
        out.append((salu(f"s_add_u32 m0, s{sM0}, {m0}", [f"s{sM0}"], ["m0", "scc"]),
                    I(f"buffer_load_dwordx4 v{vVD}, s[{sV}:{sV+3}], s{sVo} offen offset:{128*dh}{cfg.kvflags} lds", "dma",
                      rd=[f"v{vVD}", f"s{sVo}", "m0", f"s[{sV}:{sV+3}]"])))
    return out
vdmas = {}
last_vm = [None]
def add_kload(j, after, dead):
    up = add(salu(f"s_add_u32 s{sKo}, s{sKo}, 8192", [f"s{sKo}"], [f"s{sKo}", "scc"]),
             after=after + ([(last_vm[0], 0)] if last_vm[0] else []), dead=dead, tag="ld", prio=-30)
    ins = kload_ins(j); kloads[j] = ins
    prev = up.ins
    for x in ins:
        kload_items.setdefault(j, []).append(add(x, after=[(prev, 0)], dead=dead, tag="ld", prio=-25)); prev = x
    last_vm[0] = prev
kload_items = {}
def add_vdma(j, after, dead):
    prev = last_vm[0]
    if j > 0:
        prev = add(salu(f"s_add_u32 s{sVo}, s{sVo}, 8192", [f"s{sVo}"], [f"s{sVo}", "scc"]),
                   after=after + ([(prev, 0)] if prev else []), dead=dead, tag="ld", prio=-30).ins
    vdmas[j] = []
    for sm0, dm in vdma_ins(j):
        add(sm0, after=after + [(prev, 0)], dead=dead, tag="ld", prio=-28)
        add(dm, after=[(sm0, 1)], dead=dead, tag="ld", prio=-25); prev = dm
        vdmas[j].append(dm)
    last_vm[0] = prev
def items_loads(T):
    if T == 0:
        def spot(g): return QKm[(0,) + chain(0, g) + (0,)], QKm[(0,) + chain(0, g) + (1,)]
        a, d = spot(0)
        prev = last_vm[0]
        for x in q0load(4):
            add(x, after=[(a, 0)] + ([(prev, 1 if x.kind == "dma" else 0)] if prev else []), dead=[d], tag="ld", prio=-50); prev = x
        last_vm[0] = prev
        gs = [int(c) for c in cfg.gs] if cfg.sm0 else [1, 2, 3, 4, 5, 7]
        kj, vj = 2, 0
        while kj <= cfg.LK or vj <= cfg.LV:
            a, d = spot(gs.pop(0) if len(gs) > 1 else gs[0])
            if cfg.v0first and vj <= cfg.LV: add_vdma(vj, [(a, 0)], [d]); vj += 1
            if kj <= cfg.LK and not (cfg.kvg and kj == 3): add_kload(kj, [(a, 0)], [d]); kj += 1
            if not cfg.v0first and vj <= cfg.LV: add_vdma(vj, [(a, 0)], [d]); vj += 1
            if cfg.kvg and kj == 3 and vj > cfg.LV: add_kload(3, [], [spot(9)[0]]); kj += 1
        if cfg.qstage:
            for qs in range(5):
                g0 = [chain(0, g) for g in range(10)].index((0, qs))
                aft = [(QKm[(0,) + chain(0, g0 - 1) + (3,)], 0)] if g0 else []
                for s_ in range(4):
                    d_ = R("a", Q(qs, s_), 4)
                    x = I(f"ds_read_b128 {d_}, v{vQR+s_} offset:{qs*4096}", "dsr", rd=[f"v{vQR+s_}"], wr=[d_], needs=qdmas[qs])
                    x.block = True
                    add(x, after=aft + [(z, 0) for z in qdmas[qs]], dead=[QKm[0, 0, qs, 0]], tag="ld", prio=-100)
        return
    assert cfg.LV <= 3 or not cfg.qstage
    x0, x1 = min(T - 1, cfg.grow), min(T, cfg.grow)
    if x1 > x0 and T + cfg.LV + x0 < 16: add_vdma(T + cfg.LV + x0, [(start_of(T), 0)], [mid_of(T)])
    for j in range(T + cfg.LK + x0, T + cfg.LK + x1 + 1):
        if j < 16: add_kload(j, [(start_of(T), 0)], [start_of(T + 1)])
    if T + cfg.LV + x1 < 16: add_vdma(T + cfg.LV + x1, [(mid_of(T), 0)], [mid_of(T + 1)])

QSTG = 49152
vQD, vQR = 8, 12
sQS = 5
qdmas = {}
def q0load(qs):
    if not cfg.qstage: return qload_ins(qs)
    out = [salu(f"s_add_u32 m0, s{sQS}, {qs*4096}", [f"s{sQS}"], ["m0", "scc"])]
    qdmas[qs] = [I(f"buffer_load_dwordx4 v{vQD+j}, s[{sQ}:{sQ+3}], s{sQn+qs} offen offset:{1024*j}{cfg.qflags} lds", "dma",
                   rd=[f"v{vQD+j}", f"s{sQn+qs}", "m0", f"s[{sQ}:{sQ+3}]"]) for j in range(4)]
    return out + qdmas[qs]
def qload_ins(qs, dst=None):
    out = []
    for s in range(4):
        d = R("a", Q(qs, s), 4) if dst is None else R(dst[s][0], dst[s][1], 4)
        if cfg.ownk:
            out.append(I(f"s_add_u32 s{sT0}, s{sQn+qs}, s{sX[s]}\n    buffer_load_dwordx4 {d}, v{vQA}, s[{sQ}:{sQ+3}], s{sT0} offen{cfg.qflags}", "vld",
                         rd=[f"v{vQA}", f"s{sQn+qs}", f"s[{sQ}:{sQ+3}]"], wr=[d]))
            continue
        out.append(I(f"buffer_load_dwordx4 {d}, v{vQA}, s[{sQ}:{sQ+3}], s{sQn+qs} offen offset:{off(s)}{cfg.qflags}", "vld",
                     rd=[f"v{vQA}", f"s{sQn+qs}", f"s[{sQ}:{sQ+3}]"], wr=[d]))
    return out
def items_qjit():
    prev = None
    if cfg.early0:
        buf = [("v", 236 + 4 * k) for k in range(4)]
        for s_, ins in enumerate(qload_ins(0, buf)):
            it = add(ins, after=[(x.ins, 0) for t in (14, 15) for x in kwrites[t]] + ([(prev, 0)] if prev else []), dead=[start_of(15)], tag="qj", prio=-400)
            prev = ins
            for r in range(4):
                d, a_ = f"a{Q(0, s_) + r}", f"v{236 + 4 * s_ + r}"
                c = add(valu(f"v_accvgpr_write_b32 {d}, {a_}", [a_], [d]), after=[(QKm[15, 1, 0, s_], 0), (QKm[15, 0, cfg.e0g, 0], 0)], dead=[firstm[16]], tag="qc", prio=-3)
                early_done.append((c.ins, 0))
    for qs in range(1 if cfg.early0 else 0, 4):
        for s_, ins in enumerate(qload_ins(qs)):
            T1 = nextstart(15, qs)
            dl = [QKm[T1, 0, qs, 0]] + ([firstm[16]] if T1 == 16 and cfg.jitfirst else [])
            it = add(ins, after=[(QKm[15, 1, qs, s_], 0)] + ([(prev, 0)] if prev else []), dead=dl, tag="qj", prio=-400)
            if T1 > 16: qjit_b.append(it)
            elif cfg.jitstep: it.dabs = (QKm[15, 1, qs, 3], 1 + cfg.jitstep * s_)
            prev = ins
qjit_b = []
early_done = []
UNITS = [O(4, b) for b in range(8)] + [P(0, 4), P(1, 4), 236, 240, 244]
QBUF = {(qs, s_): ("v", UNITS[4 * qs + s_]) for qs in range(3) for s_ in range(4)}
QBUF.update({(3, s_): ("a", Q(4, s_)) for s_ in range(4)})
unit_free = {}
def items_qpf(base):
    prev = None
    for qs in range(4):
        T = base + 15 + phase(qs)
        lds_ = qload_ins(qs, [QBUF[qs, s_] for s_ in range(4)])
        for s_, ins in enumerate(lds_):
            k = 4 * qs + s_
            curT[0] = base + cfg.CUT
            add(ins, after=[(rowadv_done[base], 0)] + ([(prev, 0)] if prev else []),
                dead=[start_of(base + 14) if qs < 2 else firstm[base + 16]], tag="qp", prio=-200 + k)
            prev = ins
            kind, r0 = QBUF[qs, s_]
            curT[0] = T
            if (T, 1, qs, s_) not in QKm or (T + 1, 0, qs, s_) not in QKm: continue
            for r in range(4):
                d, a_ = f"a{Q(qs, s_) + r}", f"{kind}{r0 + r}"
                op = "v_accvgpr_write_b32" if kind == "v" else "v_accvgpr_mov_b32"
                c = add(valu(f"{op} {d}, {a_}", [a_], [d]), after=[(QKm[T, 1, qs, s_], 0)], dead=[QKm[T + 1, 0, qs, s_]], tag="qc", prio=-3)
                if kind == "v": unit_free.setdefault((base, r0), []).append((c.ins, 0))
rowadv_done = {}
sWS = 52
vc_store = []
def items_vcheck():
    assert cfg.ownk
    va = f"v{vPF}"; d = R("a", Kf(0, 0), 4); prev = None; tg = None
    for T in range(16):
        if T == 8: tg = add(valu(f"v_xor_b32 {va}, 0x10000, {va}", [va], [va]), after=[(rd_, 0)], dead=[VC1[8, 0]], tag="vc", doff=14).ins
        for dh in range(2):
            rd_ = I(f"ds_read_b128 {d}, {va} offset:{dh*32768 + (T % 8)*4096}", "dsr", rd=[va], wr=[d], needs=vdmas[T])
            add(rd_, after=[(vbar(T), 0)] + ([(prev, 0)] if prev else []) + ([(tg, 0)] if T == 8 else []), dead=[VC1[T, dh]], tag="vc", prio=-12)
            prev = VC1[T, dh]
    x, y = f"v{vDUM}", f"v{vVD}"; p_ = (prev, 12)
    a = Kf(1, 0)
    sq = [(f"v_accvgpr_read_b32 {x}, a{a}", [f"a{a}"], [x]), (f"v_and_b32 {x}, 0x7fffffff, {x}", [x], [x])]
    for k in range(1, 4):
        sq += [(f"v_accvgpr_read_b32 {y}, a{a+k}", [f"a{a+k}"], [y]), (f"v_and_b32 {y}, 0x7fffffff, {y}", [y], [y]), (f"v_max_u32 {x}, {x}, {y}", [x, y], [x])]
    for tx, r_, w_ in sq: p_ = (add(valu(tx, r_, w_), after=[p_], dead=[start_of(23)], tag="vc").ins, 0)
    blk = I("\n    ".join([f"v_cmp_le_u32 vcc, 0x5d800000, {x}    ; sum of squares >= 2^60 (or NaN)", "s_nop 4", "s_cbranch_vccz L_vok",
                           f"v_mov_b32 {x}, 1", f"buffer_store_byte {x}, off, s[{sWS}:{sWS+3}], s2", "s_waitcnt vmcnt(0)"]) + "\nL_vok:",
            "br", rd=[x], wr=[x, "vcc"], cost=32)
    add(blk, after=[p_], dead=[start_of(24)], tag="vc", doff=1)
def items_codepf(T, label):
    t = f"v{vDUM}"
    a = add(salu(f"s_lshl_b32 s{sT2}, s{sW}, 13\n    s_add_u32 s{sT2}, s{sT2}, {label} - L_pf - {RING * 8}", [], [f"s{sT2}", "scc"]), after=[(start_of(T), 0)], dead=[mid_of(T)], tag="pf")
    a.ins.cost = 8
    b = add(valu(f"v_lshl_add_u32 {t}, v{vKR}, 3, s{sT2}", [f"v{vKR}", f"s{sT2}"], [t]), after=[(a.ins, 0)], dead=[mid_of(T)], tag="pf")
    c = add(valu(f"v_min_u32 {t}, L_end - L_pf, {t}", [t], [t]), after=[(b.ins, 0)], dead=[mid_of(T)], tag="pf")
    x = I(f"global_load_dword v{vDUM}, {t}, s[50:51]", "vld", rd=[t], wr=[f"v{vDUM}"]); x.nowait = True
    add(x, after=[(c.ins, 0)], dead=[start_of(T + 1)], tag="pf")
def items_rowadv(T):
    for qs in range(4):
        a = add(salu(f"s_add_u32 s{sOr+qs}, s{sOr+qs}, {'s3' if cfg.extra else 65536}", [f"s{sOr+qs}"], [f"s{sOr+qs}", "scc"]), after=[(start_of(T), 0)], dead=[mid_of(T)], tag="adv", prio=0)
        b = add(salu(f"s_add_u32 s{sQn+qs}, s{sOr+qs}, {'s4' if cfg.extra else 65536}" + ("\n    s_mov_b32 s3, s4\n    s_cmp_le_u32 s%d, 5\n    s_cselect_b32 s4, 0x10000, 0" % sCNT if cfg.extra and qs == 3 else ""), [f"s{sOr+qs}"], [f"s{sQn+qs}", "scc"]),
                after=[(a.ins, 0)] + ([(rowadv_done[T - T % 16], 0)] if qs else []), dead=[mid_of(T)], tag="adv", prio=0)
        rowadv_done[T - T % 16] = b.ins

lprev = []
def items_epilogue(T, endins):
    slots = sorted(q for q in act(T) if islast(T, q))
    base = (T + 1) // 16 * 16 - 16
    ri = {}
    def over(b, qs):
        T1 = nextstart(T, qs)
        return PVm[T1, b, qs] if qs in act(T1) and qs != 4 else endins
    xs = []
    for qs in slots:
        p = pair_of(qs); h = 1 if qs == 4 else qs % 2
        la, lb = f"a{L(p) + 2*h}", f"a{L(p) + 2*h + 1}"
        x, y, r = f"v{vL0 if qs % 2 == 0 else vPF}", f"v{vL1}", f"v{vRI+qs}"
        kw = dict(dead=[over(0, qs), endins], tag="ep", prio=-400)
        pa = [(z, 0) for z in lprev]
        i0 = add(valu(f"v_accvgpr_read_b32 {x}, {la}", [la], [x]), after=[(SMm[T, p], 12)] + pa, **kw)
        i1 = add(valu(f"v_accvgpr_read_b32 {y}, {lb}", [lb], [y]), after=[(SMm[T, p], 12)] + pa, **kw)
        i2 = add(valu(f"v_add_f32 {x}, {x}, {y}", [x, y], [x]), after=[(i0.ins, 0), (i1.ins, 0)], **kw)
        i3 = add(valu(f"v_rcp_f32 {r}, {x}", [x], [r], "trans"), after=[(i2.ins, 0)], **kw)
        ri[qs] = i3.ins; xs.append((x, i2.ins, i3.ins))
        lprev[:] = [i2.ins]
        if qs % 2 == 1 or qs == 4:
            src = ", ".join(z[0] for z in xs); nm = "3" if len(xs) == 2 else ""
            kw = dict(dead=[endins], tag="ep", prio=-300)
            c1 = add(valu(f"v_max{nm}_u32 v{vHI}, v{vHI}, {src}", [f"v{vHI}"] + [z[0] for z in xs], [f"v{vHI}"]), after=[(z[1], 0) for z in xs], **kw)
            c2 = add(valu(f"v_min{nm}_u32 v{vLO}, v{vLO}, {src}", [f"v{vLO}"] + [z[0] for z in xs], [f"v{vLO}"]), after=[(z[1], 0) for z in xs], **kw)
            lprev[:] = [c1.ins, c2.ins] + [z[2] for z in xs]; xs = []
        T1 = nextstart(T, qs)
        if qs in act(T1) and qs != 4:
            for reg in (la, lb):
                add(valu(f"v_accvgpr_write_b32 {reg}, 0", [], [reg]), after=[(i0.ins, 0), (i1.ins, 0)], dead=[SMm[T1, p], endins], tag="ep", prio=0)
    if T == 15:
        def pfree(t, q): return [(PVm[t, 7, q], 0)] + [(SMm[t, p], 0) for p in pairs(t) if pair_lo(p) <= q <= pair_lo(p) + 1]
        pool = [(u, []) for u in (236, 240, 244)] + [(P(14, q), pfree(14, q)) for q in ((4, 2, 3) if DL else (4,))]
        if DL: pool += [(P(15, q), pfree(15, q)) for q in (2, 3)]
    elif slots[0] == 0: pool = [(u, unit_free.get((base, u), [])) for u in (UNITS[:8] if DL else UNITS[-1:] + UNITS[:-1])]
    else: pool = [(u, unit_free.get((base, u), [])) for u in UNITS[12:] + UNITS[8:12] + UNITS[:8]]
    inplace = [q for q in slots if (q == 4 or (T == 15 and phase(q)))] if not endins.text.startswith("; end") else slots
    def seq(sl):
        if cfg.pairst: return [(2 * pp + e, qs) for pp in range(2) for qs in sl for e in range(2)]
        return [(pb, qs) for pb in range(4) for qs in sl]
    order = seq([q for q in slots if q not in inplace]) + seq(inplace)
    tl = cfg.tlds and endins.text.startswith("; end")
    if tl:
        order = [(2 * hf + e, qs) for hf in range(2) for qs in slots for e in range(2)]
        tW, tR, tO = [176, 177], 178, 179
        RB = [[P(0, 0), P(0, 1)], [P(1, 0), P(1, 1)]]
        m_, x_, y_ = "v178", "v176", "v177"
        seqs = [(f"v_mbcnt_lo_u32_b32 {m_}, -1, 0", [], [m_]), (f"v_mbcnt_hi_u32_b32 {m_}, -1, {m_}", [m_], [m_]),
                (f"v_lshrrev_b32 {x_}, 3, {m_}", [m_], [x_]), (f"v_xor_b32 {y_}, {x_}, {m_}", [x_, m_], [y_]), (f"v_and_b32 {y_}, 7, {y_}", [y_], [y_]),
                (f"v_lshlrev_b32 {y_}, 4, {y_}", [y_], [y_]), (f"v_lshl_add_u32 v{tO}, {x_}, 8, {y_}", [x_, y_], [f"v{tO}"]),
                (f"v_lshrrev_b32 {x_}, 4, {m_}", [m_], [x_]), (f"v_xor_b32 {x_}, {x_}, {m_}", [x_, m_], [x_]), (f"v_and_b32 {x_}, 7, {x_}", [x_], [x_]),
                (f"v_and_b32 {y_}, 15, {m_}", [m_], [y_]), (f"v_lshlrev_b32 {y_}, 3, {y_}", [y_], [y_]), (f"v_add_lshl_u32 {x_}, {x_}, {y_}, 4", [x_, y_], [x_]),
                (f"v_add_u32 {x_}, s{sT2}, {x_}", [x_], [x_]), (f"v_xor_b32 {y_}, 64, {x_}", [x_], [y_]),
                (f"v_lshl_add_u32 {m_}, {m_}, 4, s{sT2}", [m_], [m_])]
        pv_ = add(salu(f"s_lshl_b32 s{sT2}, s{sW}, 12\n    s_add_u32 s{sT2}, s{sT2}, {RING}", [], [f"s{sT2}", "scc"]), dead=[firstm[T + 1]], tag="ep").ins
        for tx, rd_, wr_ in seqs: pv_ = add(valu(tx, rd_, wr_), after=[(pv_, 0)], dead=[firstm[T + 1]], tag="ep").ins
        tready = pv_; tws = []; trd = {}; tst = {}
    sts = []
    ofl = cfg.oflags
    if T >= TFIN[0] - 1:
        f_ = cfg.oflagsFA if slots[0] == 0 else cfg.oflagsFB
        if f_ != "=": ofl = f_
    for k, (pb, qs) in enumerate(order):
        inp = qs in inplace
        w, wa = (O(qs, 2 * pb), []) if inp else pool.pop(0)
        cv = []
        for e in range(2):
            b = 2 * pb + e
            kw = dict(dead=[over(2 * pb if inp else b, qs), endins], tag="ep", prio=(-200 + 4 * k) if inp else 0)
            ms = []
            for r in range(4):
                v = f"v{O(qs, b) + r}"
                if tl and cfg.tpk:
                    if r % 2: ms.append(ms[-1]); continue
                    v2 = R("v", O(qs, b) + r, 2); rp = (vRI + qs) & ~1; hi = (vRI + qs) & 1
                    ms.append(add(valu(f"v_pk_mul_f32 {v2}, {v2}, v[{rp}:{rp+1}] op_sel:[0,{hi}] op_sel_hi:[1,{hi}]", [v2, f"v{vRI+qs}"], [v2]),
                                  after=[(PVm[T, b, qs], 8), (PVm[T, 7, act(T)[-1]], 0), (ri[qs], 1)], **kw))
                    continue
                ms.append(add(valu(f"v_mul_f32 {v}, {v}, v{vRI+qs}", [v, f"v{vRI+qs}"], [v]), after=[(PVm[T, b, qs], 8), (ri[qs], 1)], **kw))
            for h in range(2):
                d = f"v{w + 2*e + h}"; a_, b_ = f"v{O(qs, b) + 2*h}", f"v{O(qs, b) + 2*h + 1}"
                aft = [(ms[2*h].ins, 0), (ms[2*h+1].ins, 0)] + wa + ([(cv[-1].ins, 0)] if (inp and cv) else [])
                cv.append(add(valu(f"v_cvt_pk_bf16_f32 {d}, {a_}, {b_}", [a_, b_], [d]), after=aft, **kw))
        kw = dict(dead=[over(2 * pb, qs) if inp else endins, endins], tag="ep", prio=-300 + 8 * k)
        sw = []
        for h in range(0 if cfg.noswap else 2):
            x, y = f"v{w + h}", f"v{w + 2 + h}"
            sw.append(add(valu(f"v_permlane16_swap_b32 {x}, {y}", [x, y], [x, y], "perm"), after=[(cv[h].ins, 2), (cv[2 + h].ins, 2)], **kw))
        if tl:
            u_ = k // 2; bf_ = u_ % 2
            wi = I(f"ds_write_b128 v{tW[pb % 2]}, {R('v', w, 4)} offset:{bf_ * 2048}", "dsw", rd=[f"v{tW[pb % 2]}", R("v", w, 4)], cost=26)
            tws.append(add(wi, after=[(z.ins, 0) for z in cv] + [(tready, 0), (BARm[max(t for t in BARm if isinstance(t, int))], 0)] + [(z, 0) for z in trd.get(u_ - 2, [])], **kw).ins)
            if k % 2 == 0: continue
            for x_ in tail_stores[-2:]: x_.after += [(z, 0) for z in tws[-2:]]; x_.prio = -400 + u_
            for j in range(2):
                d = R("v", RB[bf_][j], 4)
                ri_ = I(f"ds_read_b128 {d}, v{tR} offset:{bf_ * 2048 + j * 1024}", "dsr", rd=[f"v{tR}"], wr=[d])
                aft = [(z, 0) for z in tws[-2:]] + ([(tst[u_ - 2, j], 2)] if u_ >= 2 else [(PVm[47, 7, j], 0), (SMm[47, 0], 0)])
                rit = add(ri_, after=aft, **kw); trd.setdefault(u_, []).append(ri_)
                st = I(f"buffer_store_dwordx4 {d}, v{tO}, s[{sO}:{sO+3}], s{sOr+qs} offen offset:{j * 2048 + (pb // 2) * 128}{ofl}", "vst",
                       rd=[d, f"v{tO}", f"s{sOr+qs}", f"s[{sO}:{sO+3}]"])
                st.fast = True; st.block = True; tst[u_, j] = st
                sit = add(st, after=[(ri_, 0)], **kw)
                rit.prio = -500 + u_
                if cfg.nvc:
                    rit.dabs = (PVm[T, 3, act(T)[-1]], cfg.tx0 + cfg.txstep * u_ * 2)
                    sit.dabs = (PVm[T, 3, act(T)[-1]], cfg.tx0 + cfg.txstep * (u_ * 2 + j + 1))
                tail_stores.append(sit)
            continue
        st = I(f"buffer_store_dwordx4 {R('v', w, 4)}, v{vOA}, s[{sO}:{sO+3}], s{sOr+qs} offen offset:{64*pb}{ofl}", "vst",
               rd=[R("v", w, 4), f"v{vOA}", f"s{sOr+qs}", f"s[{sO}:{sO+3}]"])
        sts.append((add(st, after=[(z.ins, 0) for z in (sw or cv)], **kw), w, inp, pb, qs))
        if not inp:
            pool.append((w, [(st, 2)])); unit_free[base, w] = [(st, 2)]
            for t in range(T + 1, T + 8):
                for it in pwriters.get((t, w), []): it.after.append((st, 2))

    if T == 15 and DL:
        rank = {P(14, 2): 0, P(14, 3): 1, P(15, 2): 4, P(15, 3): 5}
        def key(x):
            it, w, inp, pb, qs = x
            if not inp: return rank.get(w, 100)
            return 200 + pb if qs == 4 else (2 if pb == 0 else 4 + 2 * pb) + qs - 2
        srt = sorted(sts, key=key)
        if cfg.pairst:
            out_ = []
            for x in srt:
                if x not in out_: out_ += sorted([y for y in sts if y[4] == x[4] and y[3] // 2 == x[3] // 2], key=lambda y: y[3])
            srt = out_
        sq = qjit_b + [x[0] for x in srt]
        for k, it in enumerate(sq):
            it.dabs = (firstm[16], cfg.tq0 + cfg.tqstep * min(k, 8) + cfg.tstep * max(k - 8, 0)); it.prio = -1000 + k
    elif not endins.text.startswith("; end"):
        f_ = T >= TFIN[0] - 1
        if cfg.stE and not f_:
            for k, x in enumerate(sts): x[0].nb = (PVm[T, 1, act(T)[-1]], cfg.stE + cfg.tstep * k)
        for k, x in enumerate(sts): x[0].dabs = (PVm[T, 1, act(T)[-1]], (cfg.stF0 if f_ else cfg.st0) + (cfg.stFstep if f_ else cfg.tstep) * (k | 1 if cfg.pairst else k))
    else:
        for k, x in enumerate(sts): x[0].dabs = (PVm[T, 1, act(T)[-1]], cfg.tl0 + cfg.tlstep * (k | 1 if cfg.pairst else k))

    if cfg.pairst:
        for x in sts:
            if x[3] % 2 == 0:
                y = [z for z in sts if z[4] == x[4] and z[3] == x[3] + 1][0]
                x[0].after += list(y[0].after); y[0].after.append((x[0].ins, 0)); glue[id(x[0].ins)] = y[0]
glue = {}
tail_stores = []

class Sched:
    def __init__(self, stream):
        self.stream = stream
        self.pos = {id(x): k for k, x in enumerate(stream)}
        self.over = 0
        self.cyc = 0; self.ta = 0; self.log = []
    def run(self, bb, its, fixed_after, marks=None, endins=None):
        stream, pos = self.stream, self.pos
        idx = {id(m): j for j, m in enumerate(bb)}
        for mid, lst in fixed_after.items():
            if mid in idx:
                for f in lst: idx[id(f)] = idx[mid]
        for j, lst in (marks or {}).items():
            for f in lst: idx[id(f)] = j
        if endins is not None: idx[id(endins)] = len(bb)
        waiting, act, bydead = {}, [], {}
        byins = {id(it.ins): it for it in its if not it.placed}
        lbm = {}
        def lb(it):
            if id(it) not in lbm:
                v = 0
                for a, _ in it.after:
                    if id(a) in pos: continue
                    if id(a) in idx: v = max(v, idx[id(a)] + 1)
                    elif id(a) in byins: v = max(v, lb(byins[id(a)]))
                lbm[id(it)] = v
            return lbm[id(it)]
        sys.setrecursionlimit(100000)
        for it in its:
            if it.placed: continue
            d = min([idx[id(x)] for x in it.dead if x is not None and id(x) in idx] or [1 << 30])
            if it.dabs and id(it.dabs[0]) in idx: d = min(d, max(idx[id(it.dabs[0])] + it.dabs[1], lb(it) + 1))
            if it.doff: d = max(d - it.doff, min(d, lb(it) + 1))
            it.early = d + it.prio
            it.soft = d - (cfg.dsmargin if it.ins.kind in LGKM else -(1 << 20))
            if it.pace and id(it.pace[0]) in idx and d < (1 << 29):
                o_ = idx[id(it.pace[0])]
                it.soft = int(o_ + it.pace[1] * (d - cfg.dsmargin - o_)); it.early = it.soft + 4
            bydead.setdefault(d, []).append(it)
            w = {id(a) for a, _ in it.after if id(a) not in pos}
            nw[id(it)] = len(w)
            for a in w: waiting.setdefault(a, []).append(it)
            if not w: act.append(it)
        st = {"budget": 8, "first": True, "valu": False, "mem": False}
        def emit(x):
            pos[id(x)] = len(stream); stream.append(x)
            for it in waiting.pop(id(x), []):
                nw[id(it)] -= 1
                if nw[id(it)] == 0: act.append(it)
        def ready(it):
            n = len(stream)
            return all(n - pos[id(a)] - 1 >= dist for a, dist in it.after)
        def place(it):
            if it.ins.block and it.ins.kind == "dsr":
                while True:
                    a = cands(lambda x: not x.ins.block and x.ins.kind in VALU + LGKM)
                    if not a: break
                    place(a[0])
            c = it.ins.cost; kd = it.ins.kind
            if kd == "salu" and st["first"]: c -= 4
            if kd in LGKM + VM and st["valu"]: c += 8
            elif kd in LGKM + VM and st["mem"]: c += 4
            if kd in LGKM + VM: st["mem"] = True
            if kd in VALU: st["valu"] = True
            act.remove(it); it.placed = True
            if kd in VM:
                now = self.cyc + 8 + (8 - st["budget"])
                self.ta = (max(self.ta, now) if now < self.ta + 1 and it.tag != "ld" else now) + (cfg.ta_fast if (kd == "dma" or it.ins.fast) else cfg.ta_slow)
            emit(it.ins); st["budget"] -= c; st["first"] = False
            g_ = glue.get(id(it.ins))
            if g_ is not None and not g_.placed: place(g_)
        def cands(pred):
            return sorted([it for it in act if pred(it) and ready(it)], key=lambda x: (x.early, x.seq))
        def force(limit):
            while True:
                due = [it for d in list(bydead) if d <= limit for it in bydead[d] if not it.placed]
                for d in [d for d in bydead if d <= limit]:
                    bydead[d] = [it for it in bydead[d] if not it.placed]
                    if not bydead[d]: del bydead[d]
                if not due: return
                stack = list(due); seen = set(); need = []
                while stack:
                    it = stack.pop()
                    if id(it) in seen: continue
                    seen.add(id(it)); need.append(it)
                    for a_, _ in it.after:
                        o = byins.get(id(a_))
                        if o is not None and not o.placed: stack.append(o)
                av = [it for it in need if nw[id(it)] == 0]
                if not av:
                    raise RuntimeError("deadlock: " + "; ".join(it.ins.text + " AFTER " + str([a for a, _ in it.after if id(a) not in pos]) for it in need[:6]))
                rs = [it for it in av if ready(it)]
                if not rs:
                    rs = cands(lambda x: x.ins.kind in VALU)[:1] or av
                rs.sort(key=lambda x: (0 if (x.ins.kind in LGKM + VM and not st["valu"]) else 1, x.early, x.seq))
                place(rs[0])
        force(0)
        for k, m in enumerate(bb):
            for f in (marks or {}).get(k, []): emit(f)
            emit(m)
            st.update(budget=8, first=True, valu=False, mem=False)
            for f in fixed_after.get(id(m), []):
                emit(f); st["first"] = False
            c = cands(lambda x: x.ins.kind == "salu")
            if c and st["first"] and k + 1 < len(bb) and not getattr(cfg, "nosalu", False): place(c[0])
            vmok = lambda x: x.ins.kind in VM and (x.nb is None or idx.get(id(x.nb[0]), -1000) + x.nb[1] <= k)
            vm = cands(vmok) if (self.ta <= self.cyc and m.pref != "T") else []
            urgent = cands(lambda x: x.soft <= (k - 2 if vm else k + 1))
            if urgent: place(min(urgent, key=lambda x: (x.soft, x.seq)))
            tr = cands(lambda x: x.ins.kind == "trans")
            if m.pref == "T" and tr and st["budget"] >= (4 if urgent else 8):
                place(tr[0])
            else:
                if not urgent and st["budget"] >= 4:
                    if not vm and self.ta <= self.cyc: vm = cands(vmok)
                    mem = vm or cands(lambda x: x.ins.kind in LGKM)
                    if mem and not vm:
                        rd_ = [x for x in mem if x.ins.kind == "dsr"]; wr_ = [x for x in mem if x.ins.kind == "dsw"]
                        if cands(lambda x: x.ins.kind in ("valu", "perm")): mem = rd_
                        elif wr_ and not (rd_ and rd_[0].soft <= k + 3): mem = wr_
                    if mem: place(mem[0])
                while st["budget"] >= 4:
                    a = cands(lambda x: x.ins.kind in ("valu", "perm") or (x.ins.kind == "trans" and st["budget"] >= 8))
                    if not a: break
                    place(a[0])
            force(k + 1)
            if st["budget"] < 0: self.over -= st["budget"]
            self.cyc += max(16, 16 - st["budget"])
            self.log.append(self.cyc)
        if endins is not None: force(1 << 29)
nw = {}

sVC = 49
sTSB = 60
def stamp(k, cyc=False, mode=1):
    if cfg.stamps != mode: return []
    r = sTSB + 2 * k
    return [I(f"s_mem{'time' if cyc else 'realtime'} s[{r}:{r+1}]", "salu", wr=[f"s[{r}:{r+1}]"])]

def V(text, rd, wr, kind="valu"): return I(text, kind, rd=rd, wr=wr)
def prologue():
    o = []
    o.append(I("s_cmp_ge_u32 s2, 256\n    s_cbranch_scc1 L_end", "br"))
    o += stamp(0) + stamp(1, True) + stamp(0, False, 4) + stamp(1, True, 4) + stamp(0, False, 5)
    if cfg.spin: o.append(salu("s_memrealtime s[98:99]"))
    o.append(salu("s_load_dwordx8 s[52:59], s[0:1], 0"))
    if cfg.vc1: o.append(salu("s_load_dwordx2 s[6:7], s[0:1], 32"))
    l, t, u, g = "v1", "v2", "v3", "v4"
    o += [V(f"v_lshrrev_b32 {t}, 6, v0", ["v0"], [t]),
          V(f"v_and_b32 {l}, 63, v0", ["v0"], [l]),
          V(f"v_readfirstlane_b32 s{sW}, {t}", [t], [f"s{sW}"]),
          V(f"v_lshrrev_b32 {g}, 4, {l}", [l], [g]),
          V(f"v_and_b32 {t}, 15, {l}", [l], [t]),
          V(f"v_lshlrev_b32 {t}, 8, {t}", [t], [t]),
          V(f"v_mul_u32_u24 {u}, {GST}, {g}", [g], [u]),
          V(f"v_add_u32 v{vQA}, {t}, {u}", [t, u], [f"v{vQA}"]),
          ]
    if cfg.noswap:
        if vOA != vQA: o += [V(f"v_lshl_add_u32 v{vOA}, {g}, 4, {t}", [g, t], [f"v{vOA}"])]
        o += [
              V(f"v_and_b32 {u}, 1, {g}", [g], [u]),
              V(f"v_lshlrev_b32 {u}, 2, {u}", [u], [u]),
              V(f"v_xor_b32 {u}, {u}, {l}", [u, l], [u]),
              V(f"v_and_b32 {u}, 7, {u}", [u], [u]),
              V(f"v_lshrrev_b32 {t}, 3, {l}", [l], [t]),
              V(f"v_lshlrev_b32 {t}, 8, {t}", [t], [t]),
              V(f"v_lshl_add_u32 v{vVD}, {u}, 4, {t}", [u, t], [f"v{vVD}"])]
    else:
        o += [
          V(f"v_and_b32 {u}, 1, {g}", [g], [u]),
          V(f"v_lshl_add_u32 {t}, {u}, 5, {t}", [u, t], [t]),
          V(f"v_lshrrev_b32 {u}, 1, {g}", [g], [u]),
          V(f"v_lshl_add_u32 v{vOA}, {u}, 4, {t}", [u, t], [f"v{vOA}"]),
          V(f"v_bfe_u32 {t}, {l}, 1, 2", [l], [t]),
          V(f"v_xor_b32 {t}, {t}, {g}", [t, g], [t]),
          V(f"v_lshlrev_b32 {t}, 5, {t}", [t], [t]),
          V(f"v_lshrrev_b32 {u}, 3, {l}", [l], [u]),
          V(f"v_lshl_add_u32 {t}, {u}, 8, {t}", [u, t], [t]),
          V(f"v_and_b32 {u}, 1, {l}", [l], [u]),
          V(f"v_lshl_add_u32 v{vVD}, {u}, 4, {t}", [u, t], [f"v{vVD}"]),
          ]
    if cfg.qstage:
        o += [V(f"v_and_b32 {t}, 15, {l}", [l], [t]),
              V(f"v_xor_b32 {u}, {t}, {g}", [t, g], [u]),
              V(f"v_lshlrev_b32 {u}, 4, {u}", [u], [u]),
              V(f"v_lshl_add_u32 v{vQD}, {g}, 8, {u}", [g, u], [f"v{vQD}"])]
        o += [V(f"v_xor_b32 v{vQD+j}, {64*j}, v{vQD}", [f"v{vQD}"], [f"v{vQD+j}"]) for j in range(1, 4)]
        o += [salu(f"s_mul_i32 s{sQS}, s{sW}, 20480", [f"s{sW}"], [f"s{sQS}"]), salu(f"s_add_u32 s{sQS}, s{sQS}, {QSTG}")]
        stage2 = [V(f"v_and_b32 {t}, 15, {l}", [l], [t]),
              V(f"v_mul_u32_u24 {u}, {GST // 16}, {g}", [g], [u]),
              V(f"v_xor_b32 {u}, {u}, {t}", [u, t], [u]),
              V(f"v_lshlrev_b32 {u}, 4, {u}", [u], [u]),
              V(f"v_lshl_add_u32 {u}, {t}, 8, {u}", [t, u], [u])]
        stage2 += [V(f"v_xor_b32 v{vQR+k}, {f's{sX[k]}' if cfg.ownk else off(k)}, {u}", [u], [f"v{vQR+k}"]) for k in range(4)]
        stage2 += [V(f"v_add_u32 v{vQR+k}, s{sQS}, v{vQR+k}", [f"v{vQR+k}"], [f"v{vQR+k}"]) for k in range(4)]
    o += [salu(f"s_mul_i32 s{sT0}, s2, {HEADQ}", [], [f"s{sT0}"]),
          salu(f"s_lshl_b32 s{sT1}, s2, 17", [], [f"s{sT1}"]),
          salu(f"s_lshl_b32 s{sM0}, s{sW}, 10", [f"s{sW}"], [f"s{sM0}"]),
          salu(f"s_lshl_b32 s{sVo}, s{sW}, 11", [f"s{sW}"], [f"s{sVo}"]),
          salu(f"s_lshr_b32 s{sKo}, s{sW}, 1", [f"s{sW}"], [f"s{sKo}"]),
          salu(f"s_lshl_b32 s{sKo}, s{sKo}, 12"),
          salu(f"s_and_b32 s{sT2}, s{sW}, 1"),
          salu(f"s_lshl_b32 s{sT2}, s{sT2}, 7"),
          salu(f"s_add_u32 s{sKo}, s{sKo}, s{sT2}"),
          salu(f"s_lshl_b32 s{sOr}, s{sW}, 14"),
          salu(f"s_add_u32 s{sOr+1}, s{sOr}, 4096"),
          salu(f"s_add_u32 s{sOr+2}, s{sOr}, 8192"),
          salu(f"s_add_u32 s{sOr+3}, s{sOr}, 12288"),
          salu(f"s_lshl_b32 s{sOr+4}, s{sW}, 12"),
          salu(f"s_add_u32 s{sOr+4}, s{sOr+4}, {1280*256}"),
          ]
    o += [salu(f"s_mov_b32 s{sQn+k}, s{sOr+k}") for k in range(5)]
    if cfg.ownk:
        o += [salu(f"s_lshl_b32 s{sX[0]}, s{sW}, 6")] + [salu(f"s_xor_b32 s{sX[c]}, s{sX[0]}, {64*c}") for c in range(1, 4)]
    o.append(I("s_waitcnt lgkmcnt(0)", "wait"))
    for srd, p, so, size in ((sK, 54, sT1, HEADK), (sQ, 52, sT0, HEADQ), (sV, 56, sT1, HEADK), (sO, 58, sT0, HEADQ)):
        o += [salu(f"s_add_u32 s{srd}, s{p}, s{so}"), salu(f"s_addc_u32 s{srd+1}, s{p+1}, 0"),
              salu(f"s_mov_b32 s{srd+2}, {size}"), salu(f"s_mov_b32 s{srd+3}, 0x20000")]
    kloads[0] = kload_ins(0); kloads[1] = kload_ins(1)
    k1 = [salu(f"s_add_u32 s{sKo}, s{sKo}, 8192")] + kloads[1]
    if cfg.qstage:
        o += kloads[0] + q0load(0) + q0load(1) + k1
        later = [[], q0load(2), q0load(3)]
    else:
        o += kloads[0] + qload_ins(0) + qload_ins(1)[:2]
        later = [qload_ins(1)[2:] + k1, qload_ins(2), qload_ins(3)]
    if cfg.codepf:
        o.append(I(f"s_getpc_b64 s[50:51]\nL_pf:\n    s_lshr_b32 s{sT2}, s2, 3\n    s_lshl_b32 s{sT2}, s{sT2}, 11", "salu"))
        o.append(V(f"v_lshl_add_u32 v5, {l}, 5, s{sT2}", [l], ["v5"]))
        o.append(V("v_min_u32 v5, L_end - L_pf, v5", ["v5"], ["v5"]))
        x = I(f"global_load_dword v{vDUM}, v5, s[50:51]", "vld", rd=["v5"], wr=[f"v{vDUM}"]); x.nowait = True
        o.append(x)
    if cfg.vc1:
        assert not cfg.extra and cfg.dbg < 0
        o += [salu(f"s_mov_b32 s{sWS}, s6"), salu(f"s_mov_b32 s{sWS+1}, s7"), salu(f"s_mov_b32 s{sWS+2}, 256"), salu(f"s_mov_b32 s{sWS+3}, 0x20000")]
    o += [salu(f"s_mov_b32 s{sC}, {CSCALE:#x}"), salu(f"s_mov_b32 s{sMASK}, 0xffff0000"),
          salu(f"s_mov_b32 s{sFAIL}, {0x1fffff if cfg.force_fallback else 0}"), salu(f"s_mov_b32 s{sCNT}, {4 + cfg.extra}"), *([salu("s_mov_b32 s3, 0x10000"), salu("s_mov_b32 s4, 0")] if cfg.extra else []),
          salu(f"s_lshl_b32 s{sVC}, s{sW}, 15"), salu(f"s_sub_u32 s{sVC}, s{sVC}, {RING}"),
          salu(f"s_lshl_b32 s{sT2}, s{sW}, 11")]
    if cfg.klin:
        assert cfg.ownk
        o += [V(f"v_lshlrev_b32 {u}, 1, {g}", [g], [u]),
              V(f"v_xor_b32 {t}, {u}, {l}", [u, l], [t]),
              V(f"v_lshlrev_b32 {t}, 4, {t}", [t], [t]),
              V(f"v_add_u32 v{vKR}, {RING}, {t}", [t], [f"v{vKR}"]),
              V(f"v_bfe_u32 {t}, v{vVD}, 4, 2", [f"v{vVD}"], [t]),
              V(f"v_lshlrev_b32 {u}, 1, {t}", [t], [u]),
              V(f"v_lshrrev_b32 v5, 3, {l}", [l], ["v5"]),
              V(f"v_xor_b32 {u}, {u}, v5", [u, "v5"], [u]),
              V(f"v_lshl_add_u32 {u}, {t}, 4, {u}", [t, u], [u]),
              V(f"v_bfe_u32 {t}, v{vVD}, 6, 1", [f"v{vVD}"], [t]),
              V(f"v_lshl_add_u32 {u}, {t}, 6, {u}", [t, u], [u]),
              V(f"v_lshlrev_b32 {u}, 4, {u}", [u], [u]),
              V(f"v_add_u32 {u}, {RING}, {u}", [u], [u]),
              V(f"v_add_u32 v{vKW}, s{sT2}, {u}", [u], [f"v{vKW}"])]
    else:
      o += [V(f"v_lshlrev_b32 {t}, 4, {l}", [l], [t]),
          V(f"v_add_u32 v{vKR}, {RING}, {t}", [t], [f"v{vKR}"]),
          V(f"v_add_u32 v{vKW}, s{sT2}, v{vKR}", [f"v{vKR}"], [f"v{vKW}"])]
    if cfg.ownk:
        o += [V(f"v_add_u32 v{vKC[0]}, s{sM0}, v{vKR}", [f"v{vKR}"], [f"v{vKC[0]}"])]
        o += [V(f"v_xor_b32 v{vKC[c]}, {1024*c}, v{vKC[0]}", [f"v{vKC[0]}"], [f"v{vKC[c]}"]) for c in range(1, 4)]
        o += [salu(f"s_sub_u32 s{sVC}, s{sVC}, s{sM0}")]
        if cfg.vc1: o += [V(f"v_and_b32 v{vPF}, 0xffff, v{vKC[0]}", [f"v{vKC[0]}"], [f"v{vPF}"])]
    o += [
          V(f"v_lshrrev_b32 {t}, 2, {l}", [l], [t]),
          V(f"v_lshlrev_b32 {t}, 7, {t}", [t], [t]),
          V(f"v_and_b32 {u}, 3, {l}", [l], [u])]
    assert cfg.noswap
    o += [V(f"v_lshl_add_u32 {t}, {u}, 4, {t}", [u, t], [t]),
          V(f"v_bfe_u32 {u}, {l}, 3, 1", [l], [u]),
          V(f"v_lshl_add_u32 v{vVA}, {u}, 6, {t}", [u, t], [f"v{vVA}"]),
          V(f"v_xor_b32 v{vVA+1}, 64, v{vVA}", [f"v{vVA}"], [f"v{vVA+1}"]),
          V(f"v_mov_b32 v{vHI}, 0", [], [f"v{vHI}"]), V(f"v_mov_b32 v{vLO}, -1", [], [f"v{vLO}"])]
    o += [V(f"v_lshrrev_b32 {t}, 4, {l}", [l], [t]),
          V(f"v_xor_b32 {t}, {t}, {l}", [t, l], [t]),
          V(f"v_bfe_u32 {t}, {t}, 1, 1", [t], [t]),
          V(f"v_add_u32 {t}, -1, {t}", [t], [t]),
          V(f"v_and_b32 {t}, 0x3f803f80, {t}", [t], [t])]
    o += [V(f"v_accvgpr_write_b32 a{aSA+k}, {t}", [t], [f"a{aSA+k}"]) for k in range(4)]
    o += [V(f"v_and_b32 {u}, 1, {l}", [l], [u]),
          V(f"v_mul_u32_u24 {u}, 0xaaaa, {u}", [u], [u]),
          V(f"v_add_u32 v{vIDX}, 0x4444, {u}", [u], [f"v{vIDX}"])]
    o += [V(f"v_accvgpr_write_b32 a{aL+k}, 0", [], [f"a{aL+k}"]) for k in range(12)]
    if cfg.qstage: o += stage2
    o += later[0]
    for T in range(1):
        st = vKt[T]; ws = []
        for r in range(8):
            a = f"a{ST(T, 0) + r}"; x = f"v{st + r}"; tt = f"v{vKx[r % 2]}"
            if not cfg.kvg: o += [V(f"v_accvgpr_read_b32 {x}, {a}", [a], [x])]
            o += [V(f"v_lshlrev_b32 {tt}, 16, {x}", [x], [tt]),
                  V(f"v_and_b32 {x}, s{sMASK}, {x}", [x], [x]),
                  V(f"v_mul_f32 {tt}, s{sC}, {tt}", [tt], [tt]),
                  V(f"v_mul_f32 {x}, s{sC}, {x}", [x], [x]),
                  V(f"v_cvt_pk_bf16_f32 {x}, {tt}, {x}", [tt, x], [x])]
        for e in range(2):
            w = I(f"ds_write_b128 v{vKW}, {R('v', st + 4*e, 4)} offset:{T*8192 + e*KWE}", "dsw", rd=[f"v{vKW}", R('v', st + 4*e, 4)])
            o.append(w); ws += [Item(w)] * 4
        rb = []
        for e in range(0 if cfg.ownk else 2):
            d = R("a", ST(T, e), 4)
            x = I(f"ds_read_b128 {d}, v{vKW} offset:{T*8192 + e*1024}", "dsr", rd=[f"v{vKW}"], wr=[d])
            o.append(x); rb.append(Item(x))
        kwrites[T] = ws; readback[T] = rb
    o += later[1]
    pro_tail.extend(later[2] + [salu(f"s_add_u32 s{sQn+k}, s{sOr+k}, 65536") for k in range(4)])
    return o
pro_tail = []

def guard_text():
    a = L(2)
    t = []
    if cfg.stamps == 5: t.append("    s_memrealtime s[%d:%d]" % (sTSB + 18, sTSB + 19))
    t.append("    s_nop 7\n    s_nop 3")
    t += [f"    v_accvgpr_read_b32 v{k}, a{a+k}" for k in range(4)]
    t += [f"    v_and_b32 v{k}, 0x7fffffff, v{k}" for k in range(4)]
    t += ["    v_max_u32 v0, v0, v1", "    v_max3_u32 v0, v0, v2, v3",
          "    v_cmp_le_u32 vcc, 0x5d800000, v0",
          "    s_nop 1",
          "    s_cmp_lg_u64 vcc, 0",
          f"    s_cselect_b32 s{sT0}, 1, 0",
          f"    v_cmp_lt_u32 vcc, 0x6f800000, v{vHI}",
          f"    v_cmp_gt_u32 s[6:7], 1.0, v{vLO}",
          "    s_nop 1",
          "    s_or_b64 vcc, vcc, s[6:7]",
          f"    s_cselect_b32 s{sFAIL}, 0x1fffff, s{sFAIL}",
          f"    s_lshl_b32 s{sT1}, s{sW}, 2",
          f"    s_add_u32 s{sT1}, s{sT1}, {FLAGS}",
          f"    v_mov_b32 v0, s{sT0}", f"    v_mov_b32 v1, s{sT1}", f"    v_mov_b32 v2, {FLAGS}",
          "    ds_write_b32 v1, v0", "    s_waitcnt lgkmcnt(0)", "    s_barrier",
          "    ds_read_b128 v[4:7], v2", "    s_waitcnt lgkmcnt(0)",
          "    v_or3_b32 v4, v4, v5, v6", "    v_or_b32 v4, v4, v7", "    s_nop 0",
          f"    v_readfirstlane_b32 s{sT0}, v4", "    s_nop 1",
          f"    s_cmp_lg_u32 s{sT0}, 0",
          f"    s_cselect_b32 s{sFAIL}, 0x1fffff, s{sFAIL}"]
    return t
FLAGS = RING + 3 * 8192 if cfg.tlds else RING
def finale():
    if cfg.stamps == 5 and cfg.vc1: pre_ = ["    s_memrealtime s[%d:%d]" % (sTSB + 18, sTSB + 19)]
    else: pre_ = []
    t = pre_ if (cfg.tlds or cfg.vc1) else guard_text()
    if cfg.stamps in (1, 4, 5):
        t += ["    s_memrealtime s[%d:%d]" % (sTSB + 22, sTSB + 23), "    s_waitcnt vmcnt(0)",
              "    s_memrealtime s[%d:%d]" % (sTSB + 24, sTSB + 25), "    s_memtime s[%d:%d]" % (sTSB + 26, sTSB + 27)]
    if cfg.stamps:
        t += ["    s_load_dwordx2 s[4:5], s[0:1], 40", "    s_waitcnt lgkmcnt(0)",
              "    s_mov_b32 s6, 0x100000", "    s_mov_b32 s7, 0x20000",
              f"    s_lshl_b32 s{sT0}, s2, 2", f"    s_add_u32 s{sT0}, s{sT0}, s{sW}", f"    s_lshl_b32 s{sT0}, s{sT0}, 7",
              "    v_mov_b32 v1, 0"]
        for k in range(21):
            t += [f"    v_mov_b32 v0, s{sTSB + 2*k}", f"    buffer_store_dword v0, v1, s[4:7], s{sT0} offen offset:{4*k}"]
    if cfg.spin:
        t += ["L_spin:", "    s_memrealtime s[100:101]", "    s_waitcnt lgkmcnt(0)", "    s_sub_u32 s100, s100, s98", f"    s_cmp_lt_u32 s100, {cfg.spin * 100}", "    s_cbranch_scc1 L_spin"]
    if cfg.dbg >= 0:
        t += [f"    s_cmp_lg_u32 s2, {cfg.dbg}", "    s_cbranch_scc1 L_nodbg", f"    s_cmp_lg_u32 s{sW}, 0", "    s_cbranch_scc1 L_nodbg",
              "    s_load_dwordx2 s[4:5], s[0:1], 32", "    s_waitcnt lgkmcnt(0)", "    s_mov_b32 s6, 256", "    s_mov_b32 s7, 0x20000"]
        lst = [(2, 0), (3, 0), (4, 0), (5, 0), (9, 0), (8, 0), (7, 0), (6, 0), (11, 0), (12, 0), (10, 1), (13, 10)]
        for k, (a_, b_) in enumerate(lst):
            t += [f"    s_sub_u32 s{sT1}, s{sTSB + 2*a_}, s{sTSB + 2*b_}", f"    v_mov_b32 v0, s{sT1}", f"    buffer_store_dword v0, v1, s[4:7], 0 offen offset:{4*k}"]
        t += ["L_nodbg:"]
    t += [f"    s_cmp_eq_u32 s{sFAIL}, 0", "    s_cbranch_scc1 L_end"]
    sJ, sRow, sKb, sVt = sT0, sT1, sT2, sKo
    f = ["    ; ---- slow path: rows whose unshifted exponent sum left the safe range are redone with the true max",
         "    s_waitcnt vmcnt(0)"]
    f += [f"    v_and_b32 v{vVA+c}, 0xffff, v{vVA+c}" for c in range(NVA)]
    f += ["L_fb_next:",
          f"    s_ff1_i32_b32 s{sJ}, s{sFAIL}", f"    s_bitset0_b32 s{sFAIL}, s{sJ}",
          f"    s_cmp_gt_u32 s{sJ}, 4", f"    s_cselect_b32 s{sKb}, 1, 0", f"    s_sub_u32 s{sKb}, s{sJ}, s{sKb}",
          f"    s_lshr_b32 s{sRow}, s{sKb}, 2", f"    s_lshl_b32 s{sRow}, s{sRow}, 16",
          f"    s_and_b32 s{sKb}, s{sKb}, 3", f"    s_lshl_b32 s{sKb}, s{sKb}, 12", f"    s_add_u32 s{sRow}, s{sRow}, s{sKb}",
          f"    s_lshl_b32 s{sKb}, s{sW}, 14", f"    s_add_u32 s{sRow}, s{sRow}, s{sKb}",
          f"    s_cmp_eq_u32 s{sJ}, 4", f"    s_cselect_b32 s{sRow}, s{sOr+4}, s{sRow}"]
    f += [f"    buffer_load_dwordx4 v[{4*s}:{4*s+3}], v{vQA}, s[{sQ}:{sQ+3}], s{sRow} offen offset:{off(s)}" for s in range(4)]
    def qk(dst, extra):
        r = [f"    buffer_load_dwordx4 v[{20+4*s}:{23+4*s}], v{vQA}, s[{sK}:{sK+3}], s{sKb} offen offset:{off(s)}" for s in range(4)]
        r += ["    s_waitcnt vmcnt(0)"]
        r += [f"    v_mfma_f32_16x16x32_bf16 v[{dst}:{dst+3}], v[{20+4*s}:{23+4*s}], v[{4*s}:{4*s+3}], {'0' if s == 0 else f'v[{dst}:{dst+3}]'}" for s in range(4)]
        r += [f"    s_add_u32 s{sKb}, s{sKb}, 4096", "    s_nop 9"]
        return r
    f += ["    v_mov_b32 v16, 0xff800000", f"    s_mov_b32 s{sKb}, 0", "L_fb_max:"]
    f += qk(36, None)
    f += ["    v_max3_f32 v16, v16, v36, v37", "    v_max3_f32 v16, v16, v38, v39",
          f"    s_cmp_lt_u32 s{sKb}, {HEADK}", "    s_cbranch_scc1 L_fb_max"]
    def xlane(reg, tmp, op):
        return [f"    v_mov_b32 v{tmp}, v{reg}", "    s_nop 1", f"    v_permlane16_swap_b32 v{reg}, v{tmp}", "    s_nop 1", f"    {op} v{reg}, v{reg}, v{tmp}",
                f"    v_mov_b32 v{tmp}, v{reg}", "    s_nop 1", f"    v_permlane32_swap_b32 v{reg}, v{tmp}", "    s_nop 1", f"    {op} v{reg}, v{reg}, v{tmp}"]
    f += xlane(16, 17, "v_max_f32")
    f += [f"    v_mul_f32 v17, s{sC}, v16", "    v_mov_b32 v18, 0"]
    f += [f"    v_mov_b32 v{64+k}, 0" for k in range(32)]
    f += [f"    s_mov_b32 s{sKb}, 0", f"    s_mov_b32 s{sVt}, 0", "L_fb_pv:"]
    f += qk(36, None) + qk(40, None)
    f += [f"    v_fma_f32 v{36+k}, v{36+k}, s{sC}, -v17" for k in range(8)]
    f += [f"    v_exp_f32 v{36+k}, v{36+k}" for k in range(8)]
    f += ["    s_nop 0"] + [f"    v_add_f32 v18, v18, v{36+k}" for k in range(8)]
    f += [f"    v_cvt_pk_bf16_f32 v{44+k}, v{36+2*k}, v{37+2*k}" for k in range(4)]
    f += [f"    v_add_u32 v{52+c}, s{sVt}, v{vVA+c}" for c in range(NVA)]
    for b in range(8):
        f += [f"    ds_read_b64_tr_b16 v[{48+2*blk}:{49+2*blk}], v{52+vsel(b)[0]} offset:{(b>>2)*32768 + blk*2048 + vsel(b)[2]}" for blk in range(2)]
        f += ["    s_waitcnt lgkmcnt(0)", f"    v_mfma_f32_16x16x32_bf16 v[{64+4*b}:{67+4*b}], v[48:51], v[44:47], v[{64+4*b}:{67+4*b}]"]
    f += [f"    s_add_u32 s{sVt}, s{sVt}, 4096", f"    s_cmp_eq_u32 s{sVt}, 32768", f"    s_cselect_b32 s{sVt}, 65536, s{sVt}",
          f"    s_cmp_lt_u32 s{sKb}, {HEADK}", "    s_cbranch_scc1 L_fb_pv"]
    f += xlane(18, 17, "v_add_f32")
    f += ["    v_rcp_f32 v18, v18", "    s_nop 7"]
    f += [f"    v_mul_f32 v{64+k}, v{64+k}, v18" for k in range(32)]
    f += [f"    v_cvt_pk_bf16_f32 v{96+k}, v{64+2*k}, v{65+2*k}" for k in range(16)]
    f += ["    s_nop 1"]
    for pb in range(0 if cfg.noswap else 4):
        f += [f"    v_permlane16_swap_b32 v{96+4*pb+h}, v{98+4*pb+h}" for h in range(2)]
    f += [f"    buffer_store_dwordx4 v[{96+4*pb}:{99+4*pb}], v{vOA}, s[{sO}:{sO+3}], s{sRow} offen offset:{64*pb}" for pb in range(4)]
    f += ["    s_waitcnt vmcnt(0)", f"    s_cmp_lg_u32 s{sFAIL}, 0", "    s_cbranch_scc1 L_fb_next"]
    return t + f

def simulate(linear, waits, nops, marks):
    t = 0; pipe = 0; q = []; lastdone = 0; out = []; t0 = 0; first = False; valu = False; mem = False; cur = None; stall = 0; stl = []; idle = [0]
    for ins in linear:
        if ins.kind == "label": continue
        w = waits.get(id(ins))
        if w:
            if w[1] is not None and len(q) > w[1]:
                need = q[len(q) - w[1] - 1]
                if need > t: stall += need - t; t = need
            t += 0 if first else 4; first = False
        t += 4 * nops.get(id(ins), 0)
        if id(ins) in marks:
            out.append(t - t0); stl.append(stall); t0 = t; stall = 0; idle.append(0)
        k = ins.kind
        if k in MAT:
            idle[-1] += max(0, pipe - t)
            t = max(t, pipe); pipe = t + 16; t += 8; first = True; valu = False; mem = False
        else:
            c = ins.cost
            if k in ("salu", "bar", "br", "wait") and first: c -= 4
            if k in LGKM + VM and valu: c += 8
            elif k in LGKM + VM and mem: c += 4
            if k in LGKM + VM: mem = True
            if k in LGKM:
                svc = 32 if k == "dsw" else (16 if ("b128" in ins.text or cfg.noswap) else 8)
                lastdone = max(lastdone + svc, t + cfg.ldslat); q.append(lastdone)
            if k in VALU: valu = True
            t += c; first = False
    out.append(t - t0); stl.append(stall)
    sys.stderr.write(f"sim cycles/period: {out[1:]}\nsim lgkm stalls : {stl[1:]}\nunused issue cyc: {idle[1:]}\n")

def gen_items(T):
    curT[0] = T
    items_softmax(T); items_kread(T)
    if T % 8 == 0 and T > 0: items_vtoggle(T)
    items_vread(T)
def bar_needs(T):
    pub = (T + 1,) if T < 15 else (T + 1, T + 2)
    nd = [x.ins for t in pub for x in kwrites[t]]
    if T in vdmas and T > 0: nd += vdmas[T]
    done = (T - 1, T) if T >= 13 else (T - 1,) if T >= 1 else ()
    nd += [kreads[t, blk, s_].ins for t in done for blk in range(2) for s_ in range(4) if (t, blk, s_) in kreads]
    nd += [x.ins for t in done if t in readback for x in readback[t]]
    BARm[T].needs = nd
def build():
    C = cfg.CUT; NT = 48 + C + 2
    for T in range(NT + 2): mk_step(T)
    BARm[-1] = I("s_barrier", "bar"); BARm["V0"] = I("s_barrier", "bar")
    for T in list(range(0, 15, 2)) + list(range(1, NT + 2, 2)): BARm[T] = I("s_barrier", "bar")
    pro = prologue()
    pro.append(BARm[-1]); pro += stamp(2) + pro_tail
    bb, start = [], {}
    for T in range(NT):
        start[T] = len(bb); bb += backbone_period(T)
    backbone_period(NT)
    fixed = {id(bar_spot(T)): [BARm[T]] for T in range(NT) if T in BARm}
    fixed[id(QKm[1, 0, 0, 0] if cfg.sm0 else QKm[0, 1, 2, 3])] = [BARm["V0"]]
    labL = I("L_loop:", "label"); labL2 = I("; second instance", "label"); labL3 = I("; third instance", "label")
    def chk():
        pre = ""
        if cfg.stamps == 1:
            r = sTSB + 12
            pre = "".join(f"s_mov_b64 s[{r+2*k+2}:{r+2*k+3}], s[{r+2*k}:{r+2*k+1}]\n    " for k in (2, 1, 0)) + f"s_memrealtime s[{r}:{r+1}]\n    "
        return I(pre + f"s_sub_u32 s{sCNT}, s{sCNT}, 1\n    s_cmp_eq_u32 s{sCNT}, 0\n    s_cbranch_scc1 L_tail", "br")
    chk1, chk2 = chk(), chk()
    brL, brL2 = I("s_branch L_loop", "br"), I("s_branch L_loop", "br")
    marks = {start[16 + C]: stamp(5) + [labL], start[32]: [chk1], start[32 + C]: [brL, labL2], start[48]: [chk2], start[48 + C]: [brL2, labL3]}
    marks[start[12]] = [I("L_p12:", "label")]
    if cfg.stamps == 1:
        marks[start[1]] = stamp(3); marks[start[16]] = stamp(4) + stamp(10, True)
    if cfg.stamps == 2:
        for T in range(16 + C, 48 + C): marks.setdefault(start[T], []).append(stamp((T - C) % 16, True, 2)[0])
    if cfg.stamps == 3:
        for T in range(0, min(20, 16 + C - cfg.st3)): marks.setdefault(start[T + cfg.st3], []).insert(0, stamp(T, False, 3)[0])
        pro.insert(1, stamp(20, False, 3)[0])
    for T in range(16): items_loads(T)
    for T in range(NT):
        gen_items(T)
        if T % 16 == C and T > 16: items_rowadv(T)
        if cfg.repf:
            if T == cfg.pf1: items_codepf(T, "L_p12")
            if T == cfg.pf2: items_codepf(T, "L_loop")
            if T > 32 and T % 16 == cfg.pf3: items_codepf(T, "L_tail")
    for base in (16, 32): items_qpf(base)
    for T in range(1, NT + 2): curT[0] = T; items_kwrite(T)
    curT[0] = -50; items_qjit()
    if cfg.vc1: items_vcheck()
    for T in range(NT):
        if any(islast(T, q) for q in act(T)):
            curT[0] = T + 1000
            items_epilogue(T, marks[start[(T + 1) // 16 * 16 + C]][0])
    BARm[-1].needs = [x.ins for x in kwrites[0]]
    BARm["V0"].needs = list(vdmas[0])
    for T in range(NT):
        if T in BARm: bar_needs(T)
    stream = list(pro)
    Sched(stream).run(bb, items, fixed, marks)
    p = {id(x): k for k, x in enumerate(stream)}
    ref = {(it.T[0] - 16, it.T[1]): p[id(it.ins)] < p[id(brL)] for it in items if it.placed and 32 + C - 2 <= it.T[0] < 48}
    cut = marks[start[16 + C]][0]
    for it in items:
        r = ref.get(it.T)
        if r is True: it.dead = list(it.dead) + [cut]
        elif r is False: it.after.append((labL, 0))
        it.placed = False
    stream = list(pro)
    sc = Sched(stream)
    sc.run(bb, items, fixed, marks)
    p = {id(x): k for k, x in enumerate(stream)}
    iL, iC1, iBr, iL2, iC2, iBr2 = (p[id(x)] for x in (labL, chk1, brL, labL2, chk2, brL2))
    segP = stream[:iL]; segL = stream[iL:iC1 + 1]; segB = stream[iC1 + 1:iBr + 1]
    one, two = stream[iL:iBr + 1], stream[iL2:iBr2 + 1]
    a = [x.text for x in one[1:]]; b = [x.text for x in two[1:]]
    if a != b:
        for k, (x, y) in enumerate(zip(a, b)):
            if x != y: sys.stderr.write(f"loop mismatch at {k}: {x} | {y}\n"); break
        raise SystemExit("loop instances differ")
    mp = {id(y): x for x, y in zip(one, two)}
    for x, y in zip(one, two): x.needs = x.needs + [mp.get(id(z), z) for z in y.needs]
    def keyed(its):
        cnt, out = {}, {}
        for it in its:
            k = (it.T[0], it.ins.text); cnt[k] = cnt.get(k, 0) + 1; out[k + (cnt[k],)] = it
        return out
    old = {k: it for k, it in keyed(items).items() if it.placed and p[id(it.ins)] <= iC2}
    TFIN[0] = 48; TE = 48 + DL
    for d in (QKm, PVm, SMm):
        for k in [k for k in d if k[0] >= 48 and (k[0] >= TE or (k[2] if d is not SMm else 2 * k[1]) not in (2, 3))]: del d[k]
    for T in range(TE - 1 if TE % 2 == 0 else TE, NT + 2): BARm.pop(T, None)
    for j in range(32):
        buf = Kf(0, 0) + 4 * (j % 8)
        VCm[j] = mfma(L(2), buf, buf, j == 0, dk="a")
    tbb = []
    for T in range(48, TE + 1): tbb += backbone_period(T)
    items.clear(); pwriters.clear(); lprev.clear()
    for k in [k for k in unit_free if k[0] == 32]: del unit_free[k]
    for T in range(46, TE): gen_items(T)
    for T in range(48, TE): curT[0] = T; items_kwrite(T)
    endT = I("; end of tail", "label"); endA = I("; group A stored", "label")
    curT[0] = 5000
    if DL: items_epilogue(47, tbb[len(tbb) - cfg.nvc - 20])
    items_epilogue(TE - 1, endT)
    if not cfg.vc1: va = add(valu(f"v_add_u32 v{vVD}, s{sVC}, v{vKR}", [f"v{vKR}"], [f"v{vVD}"]), dead=[PVm[TE - 1, 2, act(TE - 1)[0]]], tag="vc")
    for j in range(cfg.nvc):
        d = R("a", Kf(0, 0) + 4 * (j % 8), 4)
        lastu = [(QKm[TE - 1, (j % 8) // 4, act(TE - 1)[-1], j % 4], 0)] if j < 8 else [(VCm[j - 8], 0)]
        add(I(f"ds_read_b128 {d}, v{vVD} offset:{j*1024}", "dsr", rd=[f"v{vVD}"], wr=[d]), after=[(va.ins, 0)] + lastu, dead=[VCm[j]], tag="vc", prio=-6)
    if cfg.vc1:
        fl = P(1, 4)
        x = I(f"buffer_load_ubyte v{fl}, off, s[{sWS}:{sWS+3}], s2 sc1", "vld", wr=[f"v{fl}"], cost=8); x.fast = True
        add(x, dead=[firstm[49]], tag="vc")
        gx = I("\n    ".join([f"v_cmp_ne_u32 s[6:7], 0, v{fl}",
                               f"v_cmp_lt_u32 vcc, 0x6f800000, v{vHI}",
                               f"v_cmp_gt_u32 s[50:51], 1.0, v{vLO}    ; some l < 1", "s_nop 1",
                               "s_or_b64 vcc, vcc, s[6:7]", "s_or_b64 vcc, vcc, s[50:51]", f"s_cselect_b32 s{sFAIL}, 0x1fffff, s{sFAIL}"]),
               "br", rd=[f"v{vHI}", f"v{vLO}", f"v{fl}"], wr=["vcc", f"v{fl}"], cost=40)
        gx.block = True
        add(gx, after=[(x, 0)] + [(z, 0) for z in lprev] + [x_.after[0] for x_ in tail_stores[-2:]], dead=[endT], tag="ep", prio=5000)
        for x in tail_stores[-2:]: x.after.append((gx, 0))
    elif cfg.tlds:
        assert TE % 4 == 3
        gx = I("\n".join(guard_text()).strip(), "br", rd=[f"v{vHI}", f"v{vLO}", R("a", L(2), 4)], wr=["v[0:7]", "vcc"], cost=200)
        git = add(gx, after=[(VCm[cfg.nvc - 1], 0)] + [(z, 0) for z in lprev], dead=[endT], tag="ep", prio=-5000)
        for x in tail_stores[cfg.exk:]:
            x.after.append((gx, 0)); x.dabs = None
    alias = {}
    for k, it in keyed(items).items():
        if k in old: alias[id(it.ins)] = old[k].ins; it.ins = old[k].ins; it.placed = True
    tfixed = {id(bar_spot(T)): [BARm[T]] for T in range(48, TE) if T in BARm}
    known = {id(x) for x in stream[:iC2 + 1]} | {id(x) for x in tbb} | {id(it.ins) for it in items} | {id(x) for l_ in tfixed.values() for x in l_}
    for it in items: it.after = [(alias.get(id(a_), a_), d_) for a_, d_ in it.after if id(alias.get(id(a_), a_)) in known]
    for T in range(48, TE):
        if T in BARm: bar_needs(T)
    tstream = stream[:iC2 + 1]
    labT = I("L_tail:", "label")
    tm = {0: [labT] + stamp(2, False, 5)}
    if cfg.stamps == 5:
        for T in range(49, TE + 1): tm[tbb.index(firstm[T])] = stamp(T - 46, False, 5)
        if cfg.nvc: tm[tbb.index(VCm[0])] = stamp(8, False, 5)
    if cfg.wbl2:
        pos_ = {1: tbb.index(firstm[TE]), 2: 1, 3: tbb.index(firstm[TE - 1])}[cfg.wbl2]
        tm.setdefault(pos_, []).append(I(f"s_lshl_b32 s{sT1}, s2, 2\n    s_add_u32 s{sT1}, s{sT1}, s{sW}\n    s_and_b32 s{sT1}, s{sT1}, {cfg.wbmask}\n    s_cbranch_scc1 L_nowb\n    buffer_wbl2 sc1\nL_nowb:", "br"))
    Sched(tstream).run(tbb, items, tfixed, tm, endins=endT)
    segT = tstream[iC2 + 1:]
    assert segT[0] is labT, segT[:3]
    assert all(it.placed for it in items)
    for x in segT: x.needs = [mp.get(id(z), z) for z in x.needs]
    linear = segP + segL + segB + segL + segB + segL + segT
    waits = insert_waits(linear)
    nops = fix_hazards(linear, waits)
    sys.stderr.write(f"instr: P {len(segP)} L {len(segL)} B {len(segB)} T {len(segT)}; waits {len(waits)}; nops {sum(nops.values())} at {len(nops)} sites\n")
    mk = {id(stream[p[id(bb[start[T]])]]): T for T in range(32 + C)}
    mk.update({id(firstm[T]): T for T in range(48, TE + 1)})
    simulate(segP + segL + segB + segL + segT, waits, nops, mk)
    loop = render(segL, waits, nops) + render(segB, waits, nops)
    if cfg.drop:
        pat = {"v": "ds_read_b64_tr", "k": "ds_read_b128", "w": "ds_write", "s": "v_smfmac", "e": "v_exp", "c": r"v_cvt_pk_bf16_f32 v1[6-9]\d, v20", "q": "v_accvgpr_(write_b32 a\d+, v|mov)",
               "m": "v_mul_f32", "t": "buffer_store", "l": "buffer_load", "b": "s_barrier"}
        for ch in cfg.drop: loop = [x for x in loop if not re.search(pat[ch], x)]
    sk = []
    if cfg.skew:
        sk = [f"    s_mov_b32 s{sT1}, s{sW}" if cfg.skew > 0 else f"    s_lshr_b32 s{sT1}, s{sW}, 1", "L_sk:", f"    s_cmp_eq_u32 s{sT1}, 0", "    s_cbranch_scc1 L_sk2", f"    s_sub_u32 s{sT1}, s{sT1}, 1", f"    s_nop {abs(cfg.skew)}", "    s_branch L_sk", "L_sk2:"]
    body = render(segP, waits, nops) + sk + loop + render(segT, waits, nops)
    return body

HEADER = open("standalone__mha_softmax__near_ridge.s.ref").read().split("; Override launch")[0]
def main():
    body = build()
    out = HEADER + f"""; One workgroup (4 waves x 512 registers) per (batch, head).  V stays in LDS, K (pre-scaled by log2(e)/sqrt(D))
; stays in registers and is re-published through a small LDS ring; generated by my own scheduling script.
; @launch grid=(256,1,1) block=(256,1,1) lds=163840
.amdgcn_target "amdgcn-amd-amdhsa--gfx950"
.text
.globl {KNAME}
.p2align 8
.type {KNAME},@function
{KNAME}:
""" + "\n".join(body) + "\n" + "\n".join(finale()) + f"""
L_end:
    s_endpgm
.section .rodata,"a"
.p2align 6
.amdhsa_kernel {KNAME}
  .amdhsa_next_free_vgpr 512
  .amdhsa_next_free_sgpr 102
  .amdhsa_accum_offset 256
  .amdhsa_group_segment_fixed_size 0
  .amdhsa_kernarg_size 48
  .amdhsa_user_sgpr_count 2
  .amdhsa_user_sgpr_kernarg_segment_ptr 1
  .amdhsa_system_sgpr_workgroup_id_x 1
.end_amdhsa_kernel
"""
    open(sys.argv[1], "w").write(out)
main()
```

```python
import sys, struct, math, re
from core import *

class Cfg:
    dmap = "A"
    LK = 3
    LV = 2
    delta = 3
    noswap = True
    busy64 = True
    oflagsFA = "="
    oflagsFB = "="
    wr64 = False
    CUT = 10
    leadT = 11
    ta_slow = 250
    ta_fast = 90
    v0first = True
    dsmargin = 7
    st3 = 0
    jitfirst = True
    tq0 = 2
    tstep = 16
    st0 = 60
    tqstep = 10
    ownk = True
    order = ""
    nvbar = 1
    pads = 1
    padoff = 128
    k2g = 1
    ksT = 0
    pairld = False
    vc1 = False
    tlds = False
    tpk = False
    tx0 = 8
    txstep = 6
    exk = 5
    nvc = 32
    kvg = True
    ksd = 0
    gs = "246789"
    klin = True
    stE = 50
    drop = ""
    skew = 0
    repf = False
    early0 = True
    e0g = 3
    pf1 = 8
    pf2 = 23
    pf3 = 9
    wbl2 = 0
    wbmask = 0x3e3
    pairst = False
    grow = 0
    stF0 = 20
    stFstep = 12
    jitstep = 2
    qstage = True
    sm0 = True
    tl0 = 6
    tlstep = 5
    wrn = 2
    kdoff = 14
    kstep = 8
    ldslat = 110
    qpf0 = 8
    lead = 0
    qflags = " nt"
    oflags = ""
    kvflags = " nt"
    pfflags = " nt"
    pf_period = 11
    stamps = 0
    spin = 0
    extra = 0
    dbg = -1
    force_fallback = False
    vahead = 2
    codepf = True
cfg = Cfg()
for a in sys.argv[2:]:
    k, v = a.split("=", 1)
    old = getattr(cfg, k)
    setattr(cfg, k, (v == "1") if isinstance(old, bool) else type(old)(v.replace("+", " ")))

if cfg.vc1: cfg.nvc = 0
KNAME = "standalone__mha_softmax__near_ridge_kernel"
SQ, SK, D = 1312, 512, 128
HEADQ = SQ * D * 2
HEADK = SK * D * 2
RING = 131072
CSCALE = struct.unpack("<I", struct.pack("<f", math.log2(math.e) / math.sqrt(D)))[0]

vO, vP, vS, vVf = 0, 160, 200, 208
vVA = 224
vHI, vLO = 226, 227
vKR, vKW, vQA, vOA, vPF, vIDX, vVD = 228, 229, 230, 231, 232, 233, 234
if cfg.ownk:
    assert cfg.noswap and not cfg.repf
    vOA = vQA if cfg.dmap == "A" else 255
    vKC = [228, 229, 235, 231]; vKW = 254
sX = [28, 46, 47, 48]
vT = 235
vKt = [236, 244]; vKx = [252, 253]
vW = [236, 240, 244]
vRI = 248
vL0, vL1, vDUM = 253, 254, 255
if vOA == 255:
    assert not cfg.vc1
    vDUM = 6
aQ, aST, aKf, aL, aSA = 0, 80, 208, 240, 252
def O(qs, b): return vO + 32 * qs + 4 * b
def P(T, qs): return vP + 20 * (T % 2) + 4 * qs
def S(c): return vS + 4 * (c % 2)
def Vf(f): return vVf + 4 * (f % 4)
def Q(qs, s): return aQ + 16 * qs + 4 * s
def Kf(blk, s): return aKf + 16 * blk + 4 * s
def ST(j, e): return aST + 8 * (j % 16) + 4 * e
def KA(T, blk, s): return ST(T, blk) if (cfg.ownk and s == 0) else Kf(blk, s)
def L(p): return aL + 4 * p
sQ, sK, sV, sO = 8, 12, 16, 20
sW = 24; sC = 25; sMASK = 26; sFAIL = 27; sBIT = 28; sCNT = 29
sOr = 30
sQn = 35
sKo, sVo, sM0 = 40, 41, 42
sT0, sT1, sT2 = 43, 44, 45
sLO, sRNG = 46, 47
sTS = 48
def off(s): return 64 * s if cfg.dmap == "A" else 128 * (s >> 1) + 16 * (s & 1)
GST = 16 if cfg.dmap == "A" else 32

DL = cfg.delta
TFIN = [1 << 30]
def act(T):
    if T < 0: return []
    if T < 16: return [0, 1, 2, 3, 4]
    if T >= TFIN[0] + DL: return []
    if T >= TFIN[0]: return [2, 3]
    if T < 16 + DL: return [0, 1]
    if DL and T >= 32 and (T % 16 == 0 or T % 16 == DL - 1): return [2, 3, 0, 1]
    return [0, 1, 2, 3]
def n_of(T): return len(act(T))
def phase(qs): return DL if qs in (2, 3) else 0
def isfirst(T, qs): return T == 0 or (T >= 16 and T % 16 == phase(qs))
def islast(T, qs): return T == 15 or (T > 16 + DL and (T + 1) % 16 == phase(qs))
def nextstart(T, qs):
    return 16 + phase(qs) if T == 15 else T + 1

def mfma(d, a, b, zero, dk="v", ak="a", bk="a"):
    D_, A_, B_ = R(dk, d, 4), R(ak, a, 4), R(bk, b, 4)
    return I(f"v_mfma_f32_16x16x32_bf16 {D_}, {A_}, {B_}, {'0' if zero else D_}", "mfma",
             rd=[A_, B_] + ([] if zero else [D_]), wr=[D_], acc=not zero)
def valu(text, rd, wr, kind="valu"): return I(text, kind, rd=rd, wr=wr)
def salu(text, rd=(), wr=()): return I(text, "salu", rd=rd, wr=wr)

class Item:
    __slots__ = ("ins", "after", "dead", "prio", "early", "tag", "placed", "T", "seq", "soft", "doff", "pace", "dabs", "nb")
    def __init__(self, ins, after=(), dead=None, early=None, tag="", prio=0, doff=0, pace=None):
        self.doff = doff; self.pace = pace; self.dabs = None; self.nb = None
        self.ins = ins; self.after = list(after); self.dead = dead; self.early = early
        self.tag = tag; self.prio = prio; self.placed = False

QKm, PVm, SMm, BARm, VCm = {}, {}, {}, {}, {}
def chain(T, g):
    a = act(T)
    if T == 15: return (g % 2, a[g // 2])
    if T == 0 and cfg.sm0: return [(0, 0), (1, 0), (0, 1), (1, 1), (0, 2), (1, 2), (0, 3), (0, 4), (1, 3), (1, 4)][g]
    return (g // len(a), a[g % len(a)])
def mk_step(T):
    for g in range(2 * n_of(T)):
        blk, qs = chain(T, g)
        for s in range(4):
            QKm[T, blk, qs, s] = mfma(S(g), KA(T, blk, s), Q(qs, s), s == 0)
    for b in range(8):
        for qs in act(T):
            PVm[T, b, qs] = mfma(O(qs, b), Vf(b), P(T, qs), isfirst(T, qs), ak="v", bk="v")
    for p in pairs(T):
        d, b = R("a", L(p), 4), R("v", P(T, pair_lo(p)), 8)
        SMm[T, p] = I(f"v_smfmac_f32_16x16x64_bf16 {d}, {R('a', aSA, 4)}, {b}, v{vIDX}", "smf",
                      rd=[d, b, R("a", aSA, 4), f"v{vIDX}"], wr=[d], acc=True)
def pair_of(qs): return 2 if qs == 4 else qs // 2
def pairs(T):
    out = []
    for qs in act(T):
        if pair_of(qs) not in out: out.append(pair_of(qs))
    return out
def pair_lo(p): return 3 if p == 2 else 2 * p
def pvlist(T): return [PVm[T, b, qs] for b in range(8) for qs in act(T)]
firstm = {}
VC1 = {(T, dh): mfma(Kf(1, 0), Kf(0, 0), Kf(0, 0), T == 0 and dh == 0, dk="a") for T in range(16) for dh in range(2)}

def backbone_period(T):
    tail = n_of(T) == 0
    pv = pvlist(T - 2)[-4:] + (pvlist(T - 1) if tail else pvlist(T - 1)[:-4])
    sm = [SMm[T - 1, p] for p in pairs(T - 1)]
    out = []
    if tail:
        out += pv[:6] + sm + pv[6:] + [VCm[j] for j in range(cfg.nvc)]
        for k, m in enumerate(out): m.pref = "T" if (k < 4) else "D"
        firstm[T] = out[0]
        return out
    n = n_of(T); G = 2 * n
    lead = cfg.leadT if T == 16 else cfg.lead if (T > 16 and any(islast(T - 1, q) for q in act(T - 1))) else 0
    if lead:
        nl = 4 * lead
        head = pv[:nl]; pv = pv[nl:]
        if lead >= 2:
            head = head[:4] + [sm[0]] + head[4:8] + sm[1:] + head[8:]
            sm = []
        for k, m in enumerate(head): m.pref = "T" if k < 4 else "D"
        out += head
    if T == 1: cnt = [0] + [4] * (G - 1)
    elif len(pv) < 4 * G and not lead:
        r = len(pv) - 4; cnt = [min(4, len(pv))] + [r // (G - 1) + (1 if g < r % (G - 1) else 0) for g in range(G - 1)] if len(pv) >= 4 else [0] * G
    else:
        cnt = [len(pv) // G + (1 if g < len(pv) % G else 0) for g in range(G)]
    smpos = {}
    if sm:
        early = any(islast(T - 1, q) for q in act(T - 1)) and len(sm) > 1
        spots = [0 if early else 1, G // 2 + 1, G - 2]
        for m, g in zip(sm, spots): smpos.setdefault(min(g, G - 1), []).append(m)
    if cfg.vc1 and 1 <= T < 16:
        for dh in range(2):
            smpos.setdefault(6 + 2 * dh, []).append(VC1[T, dh])
            if T == 1: smpos.setdefault(2 + 2 * dh, []).append(VC1[0, dh])
    k = 0
    for g in range(G):
        blk, qs = chain(T, g)
        grp = [QKm[T, blk, qs, s] for s in range(4)] + pv[k:k + cnt[g]]
        k += cnt[g]
        L_ = len(grp)
        for j, m in enumerate(grp):
            m.pref = "T" if (L_ >= 8 and j % 2 == 0 and j < 8) or (L_ < 8 and j in {4: (0, 1, 2, 3), 5: (0, 1, 3, 4), 6: (0, 2, 3, 5), 7: (0, 2, 4, 6)}[L_]) else "D"
        out += grp
        for m in smpos.get(g, []):
            m.pref = "D"; out.append(m)
    firstm[T] = out[0]
    return out

items = []
glue = {}
curT = [-200]
ordn = {}
def add(ins, **kw):
    it = Item(ins, **kw); ordn[curT[0]] = ordn.get(curT[0], 0) + 1; it.T = (curT[0], ordn[curT[0]]); it.seq = len(items); items.append(it); return it

cvts = {}
def items_softmax(T):
    n = n_of(T)
    for g in range(2 * n):
        blk, qs = chain(T, g)
        last = QKm[T, blk, qs, 3]
        if g + 2 < 2 * n: nxt = QKm[(T,) + chain(T, g + 2) + (0,)]
        elif n_of(T + 1): nxt = QKm[(T + 1,) + chain(T + 1, g + 2 - 2 * n) + (0,)]
        else: nxt = None
        use = PVm[T, 0, qs]
        ng = QKm[(T,) + chain(T, g + 1) + (0,)] if g + 1 < 2 * n else firstm[T + 1]
        sms = [SMm[T, p] for p in pairs(T) if pair_lo(p) <= qs <= pair_lo(p) + 1]
        ex = []
        for r in range(4):
            v = f"v{S(g)+r}"
            ex.append(add(valu(f"v_exp_f32 {v}, {v}", [v], [v], "trans"), after=[(last, 8), (ng, 0)] + ([(ex[-1].ins, 0)] if ex else []),
                          dead=[nxt, use], tag="sm"))
        for h in range(2):
            d = f"v{P(T, qs) + 2*blk + h}"; a, b = f"v{S(g)+2*h}", f"v{S(g)+2*h+1}"
            aft = [(ex[2*h].ins, 1), (ex[2*h+1].ins, 1)]
            if qs in act(T - 2): aft.append((PVm[T - 2, 7, qs], 0))
            aft += [(SMm[T - 2, p], 0) for p in pairs(T - 2) if pair_lo(p) <= qs <= pair_lo(p) + 1]
            it = add(valu(f"v_cvt_pk_bf16_f32 {d}, {a}, {b}", [a, b], [d]), after=aft, dead=[nxt, use] + sms, tag="sm")
            pwriters.setdefault((T, P(T, qs)), []).append(it)
pwriters = {}

kreads = {}
def bar_pub(T):
    return BARm[T - 1] if T < 16 else BARm[(T // 2) * 2 - 1]
def items_kread(T):
    n = n_of(T)
    for blk in range(2):
        for s in range(4):
            if cfg.ownk and s == 0 and T >= 16: continue
            d = R("a", KA(T, blk, s), 4)
            if cfg.ownk: ins = I(f"ds_read_b128 {d}, v{vKC[s]} offset:{(T % 4) * 8192 + blk * 4096}", "dsr", rd=[f"v{vKC[s]}"], wr=[d])
            else: ins = I(f"ds_read_b128 {d}, v{vKR} offset:{(T % 4) * 8192 + (4*blk+s) * 1024}", "dsr", rd=[f"v{vKR}"], wr=[d])
            aft = [(bar_pub(T), 0)]
            if T >= 1 and not (cfg.ownk and s == 0): aft.append((QKm[T - 1, blk, act(T - 1)[-1], s], 0))
            dl = [QKm[T, blk, act(T)[0], 0]]
            if blk == 1 and T % 2 == 1 and T != 15 and T in BARm: dl.append(BARm[T])
            kreads[T, blk, s] = add(ins, after=aft, dead=dl, tag="qk", prio=-12)
vreads = {}
vtog = {}
def vbar(T):
    if T == 0: return BARm["V0"]
    return BARm.get(f"V{T}", BARm[T])
def vsel(b):
    return ((b >> 1) & 1, b >> 2, 8 * (b & 1)) if cfg.noswap else (b & 3, b >> 2, 0)
NVA = 2 if cfg.noswap else 4
def items_vread(T):
    for b in range(8):
        f = 8 * T + b
        pT, pb = divmod(f - 4, 8)
        aft = []
        if f >= 4: aft.append((PVm[pT, pb, act(pT)[-1]], 0))
        va = cfg.vahead if n_of(T) > 2 else 3
        aT, ab = divmod(f - va - 1, 8)
        if f - va - 1 >= 0: aft.append((PVm[aT, ab, act(aT)[-1]], 0))
        if T < 16: aft.append((vbar(T), 0))
        c, dh, e8 = vsel(b)
        if T % 8 == 0 and T > 0 and dh == 0: aft.append((vtog[T, c].ins, 0))
        prev = None
        for blk in range(2):
            d = R("v", Vf(f) + 2 * blk, 2)
            ins = I(f"ds_read_b64_tr_b16 {d}, v{vVA+c} offset:{dh*32768 + (T % 8)*4096 + blk*2048 + e8}", "dsr",
                    rd=[f"v{vVA+c}"], wr=[d])
            vreads[T, b, blk] = add(ins, after=aft + ([(prev, 0)] if prev else []), dead=[PVm[T, b, act(T)[0]]], tag="v", prio=-12)
            prev = ins
def items_vtoggle(T):
    for c in range(NVA):
        v = f"v{vVA+c}"
        use = [b for b in range(8) if vsel(b)[0] == c]
        vtog[T, c] = add(valu(f"v_xor_b32 {v}, 0x10000, {v}", [v], [v]), after=[(vreads[T - 1, b, 1].ins, 0) for b in use],
                         dead=[PVm[T, use[0], act(T)[0]]], tag="v", prio=-24, doff=cfg.dsmargin + 4)

kwrites = {}
kloads = {}
def busy(T):
    return T < 26 or T >= TFIN[0] or (T % 16) in (2, 3, 4, 5, 6, 7, 8, 9)
KWE = 128 if cfg.klin else 1024
def items_kwrite(T):
    m = T // 2
    if T < 16: opn, cls = BARm[max(T - 3, -1)], BARm[T - 1]
    else: opn, cls = BARm[2 * m - 3], BARm[2 * m - 1]
    ws = []
    def wr(src, r, nreg, **kw):
        x = R(src[0], src[1] + r, nreg)
        ad, st_ = (vKC[0], 4096) if (cfg.ownk and T >= 16) else (vKW, KWE)
        return add(I(f"ds_write_b{32*nreg} v{ad}, {x} offset:{(T % 4)*8192 + (r//4)*st_ + (r % 4)*4}", "dsw", rd=[f"v{ad}", x],
                     cost={1: 8, 2: 12, 4: 26}[nreg]), tag="qk", **kw)
    nr = cfg.wrn
    if T < 16:
        st = vKt[T % 2]
        prev_w = kwrites.get(T - 2)
        done = []
        for r in range(8):
            a = f"a{ST(T, 0) + r}"; x = f"v{st + r}"; t = f"v{vKx[r % 2]}"
            do = (cfg.kdoff + (7 - r) * cfg.kstep) if T >= 2 else 2 + (7 - r)
            kw = dict(dead=[cls], tag="qk", doff=do + 2)
            aft = [(kloads[T][r // 4], 0)]
            if prev_w: aft.append((prev_w[r * len(prev_w) // 8].ins, 0))
            aft.append(((start_of(T - 1) if T <= cfg.ksT else mid_of(T - 2)) if T >= 3 else (QKm[0, 0, 4, 3] if cfg.k2g < 0 else QKm[1, 0, cfg.k2g, 0]) if T == 2 else QKm[0, 0, 1, 3], 0))
            if not cfg.kvg: aft = [(add(valu(f"v_accvgpr_read_b32 {x}, {a}", [a], [x]), after=aft, prio=-5, **kw).ins, 0)]
            i1 = add(valu(f"v_lshlrev_b32 {t}, 16, {x}", [x], [t]), after=aft + ([(chain_prev[r % 2], 0)] if chain_prev[r % 2] else []), prio=-4, **kw)
            i2 = add(valu(f"v_and_b32 {x}, s{sMASK}, {x}", [x, f"s{sMASK}"], [x]), after=[(i1.ins, 0)], prio=-3, **kw)
            i3 = add(valu(f"v_mul_f32 {t}, s{sC}, {t}", [t, f"s{sC}"], [t]), after=[(i1.ins, 0)], prio=-2, **kw)
            i4 = add(valu(f"v_mul_f32 {x}, s{sC}, {x}", [x, f"s{sC}"], [x]), after=[(i2.ins, 0)], prio=-1, **kw)
            i5 = add(valu(f"v_cvt_pk_bf16_f32 {x}, {t}, {x}", [t, x], [x]), after=[(i3.ins, 0), (i4.ins, 0)], prio=0, **kw)
            chain_prev[r % 2] = i5.ins; done.append(i5.ins)
            if r % nr == nr - 1:
                ws.append(wr(("v", st), r - nr + 1, nr, after=[(opn, 0)] + [(x_, 0) for x_ in done[-nr:]], dead=[cls], doff=max(do - 8, 1)))
        rb = []
        for e in range(0 if cfg.ownk else 2):
            d = R("a", ST(T, e), 4)
            ins = I(f"ds_read_b128 {d}, v{vKW} offset:{(T % 4)*8192 + e*1024}", "dsr", rd=[f"v{vKW}"], wr=[d])
            rb.append(add(ins, after=[(w_.ins, 0) for w_ in ws[e * len(ws) // 2:(e + 1) * len(ws) // 2]], dead=[BARm[T]], tag="qk", prio=0))
        readback[T] = rb
        if cfg.kvg:
            assert cfg.ownk and cfg.LK == 3
            for e, it in enumerate(kload_items.get(T + 2, [])): it.after += [(w_.ins, 0) for w_ in ws[e * len(ws) // 2:(e + 1) * len(ws) // 2]]
    else:
        nw_ = 8 // nr
        for k in range(nw_):
            ws.append(wr(("a", ST(T, 0)), k * nr, nr, after=[(opn, 0)] + ([(ws[-1].ins, 0)] if ws else ([(kwrites[T-1][-1].ins, 0)] if T % 2 else [])),
                         dead=[cls], pace=(opn, ((T % 2) * nw_ + k + 1) / (2.0 * nw_))))
    kwrites[T] = ws
chain_prev = [None, None]
readback = {}
def mid_of(T): return QKm[(T,) + chain(T, n_of(T)) + (0,)]
def bar_spot(T): return QKm[0, 0, 4, 3] if T == 0 else QKm[(T,) + chain(T, n_of(T) - 1) + (3,)]
def start_of(T): return QKm[(T,) + chain(T, 0) + (0,)]

def kload_ins(j):
    out = []
    for e in range(2):
        d = R("v", vKt[j % 2] + 4 * e, 4) if cfg.kvg else R("a", ST(j, e), 4)
        va, o_ = (vVD, 2048 * e) if cfg.klin else (vQA, off(1) * e)
        out.append(I(f"buffer_load_dwordx4 {d}, v{va}, s[{sK}:{sK+3}], s{sKo} offen offset:{o_}{cfg.kvflags}", "vld",
                     rd=[f"v{va}", f"s{sKo}", f"s[{sK}:{sK+3}]"], wr=[d]))
        out[-1].fast = cfg.klin
    return out
def vdma_ins(j):
    out = []
    for dh in range(2):
        m0 = (j >> 3) * 65536 + dh * (32768 - 128) + (j & 7) * 4096
        out.append((salu(f"s_add_u32 m0, s{sM0}, {m0}", [f"s{sM0}"], ["m0", "scc"]),
                    I(f"buffer_load_dwordx4 v{vVD}, s[{sV}:{sV+3}], s{sVo} offen offset:{128*dh}{cfg.kvflags} lds", "dma",
                      rd=[f"v{vVD}", f"s{sVo}", "m0", f"s[{sV}:{sV+3}]"])))
    return out
vdmas = {}
last_vm = [None]
def add_kload(j, after, dead):
    up = add(salu(f"s_add_u32 s{sKo}, s{sKo}, 8192", [f"s{sKo}"], [f"s{sKo}", "scc"]),
             after=after + ([(last_vm[0], 0)] if last_vm[0] else []), dead=dead, tag="ld", prio=-30)
    ins = kload_ins(j); kloads[j] = ins
    prev = up.ins
    for x in ins:
        kload_items.setdefault(j, []).append(add(x, after=[(prev, 0)], dead=dead, tag="ld", prio=-25)); prev = x
    last_vm[0] = prev
kload_items = {}
def add_vdma(j, after, dead):
    prev = last_vm[0]
    if j > 0:
        prev = add(salu(f"s_add_u32 s{sVo}, s{sVo}, 8192", [f"s{sVo}"], [f"s{sVo}", "scc"]),
                   after=after + ([(prev, 0)] if prev else []), dead=dead, tag="ld", prio=-30).ins
    vdmas[j] = []
    for sm0, dm in vdma_ins(j):
        add(sm0, after=after + [(prev, 0)], dead=dead, tag="ld", prio=-28)
        add(dm, after=[(sm0, 1)], dead=dead, tag="ld", prio=-25); prev = dm
        vdmas[j].append(dm)
    last_vm[0] = prev
def items_loads(T):
    if T == 0:
        def spot(g): return QKm[(0,) + chain(0, g) + (0,)], QKm[(0,) + chain(0, g) + (1,)]
        a, d = spot(0)
        prev = last_vm[0]
        for x in q0load(4):
            add(x, after=[(a, 0)] + ([(prev, 1 if x.kind == "dma" else 0)] if prev else []), dead=[d], tag="ld", prio=-50); prev = x
        last_vm[0] = prev
        gs = [int(c) for c in cfg.gs] if cfg.sm0 else [1, 2, 3, 4, 5, 7]
        kj, vj = 2, 0
        if cfg.order:
            for tok in cfg.order.split(","):
                a, d = spot(int(tok[2]))
                if tok[0] == "V": add_vdma(int(tok[1]), [(a, 0)], [d])
                elif tok[1] == "3": add_kload(3, [], [spot(9)[0]])
                else: add_kload(int(tok[1]), [(a, 0)], [d])
            kj, vj = 99, 99
        while kj <= cfg.LK or vj <= cfg.LV:
            a, d = spot(gs.pop(0) if len(gs) > 1 else gs[0])
            if cfg.v0first and vj <= cfg.LV: add_vdma(vj, [(a, 0)], [d]); vj += 1
            if kj <= cfg.LK and not (cfg.kvg and kj == 3): add_kload(kj, [(a, 0)], [d]); kj += 1
            if not cfg.v0first and vj <= cfg.LV: add_vdma(vj, [(a, 0)], [d]); vj += 1
            if cfg.kvg and kj == 3 and vj > cfg.LV: add_kload(3, [], [spot(9)[0]]); kj += 1
        if cfg.qstage:
            for qs in range(5):
                g0 = [chain(0, g) for g in range(10)].index((0, qs))
                aft = [(QKm[(0,) + chain(0, g0 - 1) + (3,)], 0)] if g0 else []
                for s_ in range(4):
                    d_ = R("a", Q(qs, s_), 4)
                    x = I(f"ds_read_b128 {d_}, v{vQR+s_} offset:{qs*4096}", "dsr", rd=[f"v{vQR+s_}"], wr=[d_], needs=qdmas[qs])
                    x.block = True
                    if cfg.pads and qs == 1 and s_ == 0:
                        wu = I("; WARM_UP", "br", cost=4)
                        add(wu, after=aft, dead=[QKm[0, 0, qs, 0]], tag="ld", prio=-200)
                        aft = aft + [(wu, 0)]
                    add(x, after=aft + [(z, 0) for z in qdmas[qs]], dead=[QKm[0, 0, qs, 0]], tag="ld", prio=-100)
        return
    assert cfg.LV <= 3 or not cfg.qstage
    x0, x1 = min(T - 1, cfg.grow), min(T, cfg.grow)
    if x1 > x0 and T + cfg.LV + x0 < 16: add_vdma(T + cfg.LV + x0, [(start_of(T), 0)], [mid_of(T)])
    for j in range(T + cfg.LK + x0, T + cfg.LK + x1 + 1):
        if j < 16: add_kload(j, [(start_of(T), 0)], [start_of(T + 1)])
    if T + cfg.LV + x1 < 16: add_vdma(T + cfg.LV + x1, [(mid_of(T), 0)], [mid_of(T + 1)])

QSTG = 49152
vQD, vQR = 8, 12
sQS = 5
qdmas = {}
def q0load(qs):
    if not cfg.qstage: return qload_ins(qs)
    out = [salu(f"s_add_u32 m0, s{sQS}, {qs*4096}", [f"s{sQS}"], ["m0", "scc"])]
    qdmas[qs] = [I(f"buffer_load_dwordx4 v{vQD+j}, s[{sQ}:{sQ+3}], s{sQn+qs} offen offset:{1024*j}{cfg.qflags} lds", "dma",
                   rd=[f"v{vQD+j}", f"s{sQn+qs}", "m0", f"s[{sQ}:{sQ+3}]"]) for j in range(4)]
    return out + qdmas[qs]
def qload_ins(qs, dst=None):
    out = []
    for s in range(4):
        d = R("a", Q(qs, s), 4) if dst is None else R(dst[s][0], dst[s][1], 4)
        if cfg.ownk:
            out.append(I(f"s_add_u32 s{sT0}, s{sQn+qs}, s{sX[s]}\n    buffer_load_dwordx4 {d}, v{vQA}, s[{sQ}:{sQ+3}], s{sT0} offen{cfg.qflags}", "vld",
                         rd=[f"v{vQA}", f"s{sQn+qs}", f"s[{sQ}:{sQ+3}]"], wr=[d]))
            continue
        out.append(I(f"buffer_load_dwordx4 {d}, v{vQA}, s[{sQ}:{sQ+3}], s{sQn+qs} offen offset:{off(s)}{cfg.qflags}", "vld",
                     rd=[f"v{vQA}", f"s{sQn+qs}", f"s[{sQ}:{sQ+3}]"], wr=[d]))
    return out
def items_qjit():
    prev = None
    if cfg.early0:
        buf = [("v", 236 + 4 * k) for k in range(4)]
        for s_, ins in enumerate(qload_ins(0, buf)):
            it = add(ins, after=[(x.ins, 0) for t in (14, 15) for x in kwrites[t]] + ([(prev, 0)] if prev else []), dead=[start_of(15)], tag="qj", prio=-400)
            prev = ins
            for r in range(4):
                d, a_ = f"a{Q(0, s_) + r}", f"v{236 + 4 * s_ + r}"
                c = add(valu(f"v_accvgpr_write_b32 {d}, {a_}", [a_], [d]), after=[(QKm[15, 1, 0, s_], 0), (QKm[15, 0, cfg.e0g, 0], 0)], dead=[firstm[16]], tag="qc", prio=-3)
                early_done.append((c.ins, 0))
    for qs in range(1 if cfg.early0 else 0, 4):
        for s_, ins in enumerate(qload_ins(qs)):
            T1 = nextstart(15, qs)
            dl = [QKm[T1, 0, qs, 0]] + ([firstm[16]] if T1 == 16 and cfg.jitfirst else [])
            it = add(ins, after=[(QKm[15, 1, qs, s_], 0)] + ([(prev, 0)] if prev else []), dead=dl, tag="qj", prio=-400)
            if T1 > 16 and cfg.pairld and s_ % 2: qjit_b[-1].after.append(it.after[0]); glue[id(prev)] = it
            if T1 > 16: qjit_b.append(it)
            elif cfg.jitstep: it.dabs = (QKm[15, 1, qs, 3], 1 + cfg.jitstep * s_)
            prev = ins
qjit_b = []
early_done = []
UNITS = [O(4, b) for b in range(8)] + [P(0, 4), P(1, 4), 236, 240, 244]
QBUF = {(qs, s_): ("v", UNITS[4 * qs + s_]) for qs in range(3) for s_ in range(4)}
QBUF.update({(3, s_): ("a", Q(4, s_)) for s_ in range(4)})
unit_free = {}
def items_qpf(base):
    prev = None
    for qs in range(4):
        T = base + 15 + phase(qs)
        lds_ = qload_ins(qs, [QBUF[qs, s_] for s_ in range(4)])
        for s_, ins in enumerate(lds_):
            k = 4 * qs + s_
            curT[0] = base + cfg.CUT
            it_ = add(ins, after=[(rowadv_done[base], 0)] + ([(prev, 0)] if prev else []),
                dead=[start_of(base + 14) if qs < 2 else firstm[base + 16]], tag="qp", prio=-200 + k)
            if cfg.pairld and s_ % 2: glue[id(prev)] = it_
            prev = ins
            kind, r0 = QBUF[qs, s_]
            curT[0] = T
            if (T, 1, qs, s_) not in QKm or (T + 1, 0, qs, s_) not in QKm: continue
            for r in range(4):
                d, a_ = f"a{Q(qs, s_) + r}", f"{kind}{r0 + r}"
                op = "v_accvgpr_write_b32" if kind == "v" else "v_accvgpr_mov_b32"
                c = add(valu(f"{op} {d}, {a_}", [a_], [d]), after=[(QKm[T, 1, qs, s_], 0)], dead=[QKm[T + 1, 0, qs, s_]], tag="qc", prio=-3)
                if kind == "v": unit_free.setdefault((base, r0), []).append((c.ins, 0))
rowadv_done = {}
sWS = 52
vc_store = []
def items_vcheck():
    assert cfg.ownk
    va = f"v{vPF}"; d = R("a", Kf(0, 0), 4); prev = None; tg = None
    for T in range(16):
        if T == 8: tg = add(valu(f"v_xor_b32 {va}, 0x10000, {va}", [va], [va]), after=[(rd_, 0)], dead=[VC1[8, 0]], tag="vc", doff=14).ins
        for dh in range(2):
            rd_ = I(f"ds_read_b128 {d}, {va} offset:{dh*32768 + (T % 8)*4096}", "dsr", rd=[va], wr=[d], needs=vdmas[T])
            add(rd_, after=[(vbar(T), 0)] + ([(prev, 0)] if prev else []) + ([(tg, 0)] if T == 8 else []), dead=[VC1[T, dh]], tag="vc", prio=-12)
            prev = VC1[T, dh]
    x, y = f"v{vDUM}", f"v{vVD}"; p_ = (prev, 12)
    a = Kf(1, 0)
    sq = [(f"v_accvgpr_read_b32 {x}, a{a}", [f"a{a}"], [x]), (f"v_and_b32 {x}, 0x7fffffff, {x}", [x], [x])]
    for k in range(1, 4):
        sq += [(f"v_accvgpr_read_b32 {y}, a{a+k}", [f"a{a+k}"], [y]), (f"v_and_b32 {y}, 0x7fffffff, {y}", [y], [y]), (f"v_max_u32 {x}, {x}, {y}", [x, y], [x])]
    for tx, r_, w_ in sq: p_ = (add(valu(tx, r_, w_), after=[p_], dead=[start_of(23)], tag="vc").ins, 0)
    blk = I("\n    ".join([f"v_cmp_le_u32 vcc, 0x5d800000, {x}    ; sum of squares >= 2^60 (or NaN)", "s_nop 4", "s_cbranch_vccz L_vok",
                           f"v_mov_b32 {x}, 1", f"buffer_store_byte {x}, off, s[{sWS}:{sWS+3}], s2", "s_waitcnt vmcnt(0)"]) + "\nL_vok:",
            "br", rd=[x], wr=[x, "vcc"], cost=32)
    add(blk, after=[p_], dead=[start_of(24)], tag="vc", doff=1)
def items_codepf(T, label):
    t = f"v{vDUM}"
    a = add(salu(f"s_lshl_b32 s{sT2}, s{sW}, 13\n    s_add_u32 s{sT2}, s{sT2}, {label} - L_pf - {RING * 8}", [], [f"s{sT2}", "scc"]), after=[(start_of(T), 0)], dead=[mid_of(T)], tag="pf")
    a.ins.cost = 8
    b = add(valu(f"v_lshl_add_u32 {t}, v{vKR}, 3, s{sT2}", [f"v{vKR}", f"s{sT2}"], [t]), after=[(a.ins, 0)], dead=[mid_of(T)], tag="pf")
    c = add(valu(f"v_min_u32 {t}, L_end - L_pf, {t}", [t], [t]), after=[(b.ins, 0)], dead=[mid_of(T)], tag="pf")
    x = I(f"global_load_dword v{vDUM}, {t}, s[50:51]", "vld", rd=[t], wr=[f"v{vDUM}"]); x.nowait = True
    add(x, after=[(c.ins, 0)], dead=[start_of(T + 1)], tag="pf")
def items_rowadv(T):
    for qs in range(4):
        a = add(salu(f"s_add_u32 s{sOr+qs}, s{sOr+qs}, {'s3' if cfg.extra else 65536}", [f"s{sOr+qs}"], [f"s{sOr+qs}", "scc"]), after=[(start_of(T), 0)], dead=[mid_of(T)], tag="adv", prio=0)
        b = add(salu(f"s_add_u32 s{sQn+qs}, s{sOr+qs}, {'s4' if cfg.extra else 65536}" + ("\n    s_mov_b32 s3, s4\n    s_cmp_le_u32 s%d, 5\n    s_cselect_b32 s4, 0x10000, 0" % sCNT if cfg.extra and qs == 3 else ""), [f"s{sOr+qs}"], [f"s{sQn+qs}", "scc"]),
                after=[(a.ins, 0)] + ([(rowadv_done[T - T % 16], 0)] if qs else []), dead=[mid_of(T)], tag="adv", prio=0)
        rowadv_done[T - T % 16] = b.ins

lprev = []
def items_epilogue(T, endins):
    slots = sorted(q for q in act(T) if islast(T, q))
    base = (T + 1) // 16 * 16 - 16
    ri = {}
    def over(b, qs):
        T1 = nextstart(T, qs)
        return PVm[T1, b, qs] if qs in act(T1) and qs != 4 else endins
    xs = []
    for qs in slots:
        p = pair_of(qs); h = 1 if qs == 4 else qs % 2
        la, lb = f"a{L(p) + 2*h}", f"a{L(p) + 2*h + 1}"
        x, y, r = f"v{vL0 if qs % 2 == 0 else vPF}", f"v{vL1}", f"v{vRI+qs}"
        kw = dict(dead=[over(0, qs), endins], tag="ep", prio=-400)
        pa = [(z, 0) for z in lprev]
        i0 = add(valu(f"v_accvgpr_read_b32 {x}, {la}", [la], [x]), after=[(SMm[T, p], 12)] + pa, **kw)
        i1 = add(valu(f"v_accvgpr_read_b32 {y}, {lb}", [lb], [y]), after=[(SMm[T, p], 12)] + pa, **kw)
        i2 = add(valu(f"v_add_f32 {x}, {x}, {y}", [x, y], [x]), after=[(i0.ins, 0), (i1.ins, 0)], **kw)
        i3 = add(valu(f"v_rcp_f32 {r}, {x}", [x], [r], "trans"), after=[(i2.ins, 0)], **kw)
        ri[qs] = i3.ins; xs.append((x, i2.ins, i3.ins))
        lprev[:] = [i2.ins]
        if qs % 2 == 1 or qs == 4:
            src = ", ".join(z[0] for z in xs); nm = "3" if len(xs) == 2 else ""
            kw = dict(dead=[endins], tag="ep", prio=-300)
            c1 = add(valu(f"v_max{nm}_u32 v{vHI}, v{vHI}, {src}", [f"v{vHI}"] + [z[0] for z in xs], [f"v{vHI}"]), after=[(z[1], 0) for z in xs], **kw)
            c2 = add(valu(f"v_min{nm}_u32 v{vLO}, v{vLO}, {src}", [f"v{vLO}"] + [z[0] for z in xs], [f"v{vLO}"]), after=[(z[1], 0) for z in xs], **kw)
            lprev[:] = [c1.ins, c2.ins] + [z[2] for z in xs]; xs = []
        T1 = nextstart(T, qs)
        if qs in act(T1) and qs != 4:
            for reg in (la, lb):
                add(valu(f"v_accvgpr_write_b32 {reg}, 0", [], [reg]), after=[(i0.ins, 0), (i1.ins, 0)], dead=[SMm[T1, p], endins], tag="ep", prio=0)
    if T == 15:
        def pfree(t, q): return [(PVm[t, 7, q], 0)] + [(SMm[t, p], 0) for p in pairs(t) if pair_lo(p) <= q <= pair_lo(p) + 1]
        pool = [(u, []) for u in (236, 240, 244)] + [(P(14, q), pfree(14, q)) for q in ((4, 2, 3) if DL else (4,))]
        if DL: pool += [(P(15, q), pfree(15, q)) for q in (2, 3)]
    elif slots[0] == 0: pool = [(u, unit_free.get((base, u), [])) for u in (UNITS[:8] if DL else UNITS[-1:] + UNITS[:-1])]
    else: pool = [(u, unit_free.get((base, u), [])) for u in UNITS[12:] + UNITS[8:12] + UNITS[:8]]
    inplace = [q for q in slots if (q == 4 or (T == 15 and phase(q)))] if not endins.text.startswith("; end") else slots
    def seq(sl):
        if cfg.pairst: return [(2 * pp + e, qs) for pp in range(2) for qs in sl for e in range(2)]
        return [(pb, qs) for pb in range(4) for qs in sl]
    order = seq([q for q in slots if q not in inplace]) + seq(inplace)
    tl = cfg.tlds and endins.text.startswith("; end")
    if tl:
        order = [(2 * hf + e, qs) for hf in range(2) for qs in slots for e in range(2)]
        tW, tR, tO = [176, 177], 178, 179
        RB = [[P(0, 0), P(0, 1)], [P(1, 0), P(1, 1)]]
        m_, x_, y_ = "v178", "v176", "v177"
        seqs = [(f"v_mbcnt_lo_u32_b32 {m_}, -1, 0", [], [m_]), (f"v_mbcnt_hi_u32_b32 {m_}, -1, {m_}", [m_], [m_]),
                (f"v_lshrrev_b32 {x_}, 3, {m_}", [m_], [x_]), (f"v_xor_b32 {y_}, {x_}, {m_}", [x_, m_], [y_]), (f"v_and_b32 {y_}, 7, {y_}", [y_], [y_]),
                (f"v_lshlrev_b32 {y_}, 4, {y_}", [y_], [y_]), (f"v_lshl_add_u32 v{tO}, {x_}, 8, {y_}", [x_, y_], [f"v{tO}"]),
                (f"v_lshrrev_b32 {x_}, 4, {m_}", [m_], [x_]), (f"v_xor_b32 {x_}, {x_}, {m_}", [x_, m_], [x_]), (f"v_and_b32 {x_}, 7, {x_}", [x_], [x_]),
                (f"v_and_b32 {y_}, 15, {m_}", [m_], [y_]), (f"v_lshlrev_b32 {y_}, 3, {y_}", [y_], [y_]), (f"v_add_lshl_u32 {x_}, {x_}, {y_}, 4", [x_, y_], [x_]),
                (f"v_add_u32 {x_}, s{sT2}, {x_}", [x_], [x_]), (f"v_xor_b32 {y_}, 64, {x_}", [x_], [y_]),
                (f"v_lshl_add_u32 {m_}, {m_}, 4, s{sT2}", [m_], [m_])]
        pv_ = add(salu(f"s_lshl_b32 s{sT2}, s{sW}, 12\n    s_add_u32 s{sT2}, s{sT2}, {RING}", [], [f"s{sT2}", "scc"]), dead=[firstm[T + 1]], tag="ep").ins
        for tx, rd_, wr_ in seqs: pv_ = add(valu(tx, rd_, wr_), after=[(pv_, 0)], dead=[firstm[T + 1]], tag="ep").ins
        tready = pv_; tws = []; trd = {}; tst = {}
    sts = []
    ofl = cfg.oflags
    if T >= TFIN[0] - 1:
        f_ = cfg.oflagsFA if slots[0] == 0 else cfg.oflagsFB
        if f_ != "=": ofl = f_
    for k, (pb, qs) in enumerate(order):
        inp = qs in inplace
        w, wa = (O(qs, 2 * pb), []) if inp else pool.pop(0)
        cv = []
        for e in range(2):
            b = 2 * pb + e
            kw = dict(dead=[over(2 * pb if inp else b, qs), endins], tag="ep", prio=(-200 + 4 * k) if inp else 0)
            ms = []
            for r in range(4):
                v = f"v{O(qs, b) + r}"
                if tl and cfg.tpk:
                    if r % 2: ms.append(ms[-1]); continue
                    v2 = R("v", O(qs, b) + r, 2); rp = (vRI + qs) & ~1; hi = (vRI + qs) & 1
                    ms.append(add(valu(f"v_pk_mul_f32 {v2}, {v2}, v[{rp}:{rp+1}] op_sel:[0,{hi}] op_sel_hi:[1,{hi}]", [v2, f"v{vRI+qs}"], [v2]),
                                  after=[(PVm[T, b, qs], 8), (PVm[T, 7, act(T)[-1]], 0), (ri[qs], 1)], **kw))
                    continue
                ms.append(add(valu(f"v_mul_f32 {v}, {v}, v{vRI+qs}", [v, f"v{vRI+qs}"], [v]), after=[(PVm[T, b, qs], 8), (ri[qs], 1)], **kw))
            for h in range(2):
                d = f"v{w + 2*e + h}"; a_, b_ = f"v{O(qs, b) + 2*h}", f"v{O(qs, b) + 2*h + 1}"
                aft = [(ms[2*h].ins, 0), (ms[2*h+1].ins, 0)] + wa + ([(cv[-1].ins, 0)] if (inp and cv) else [])
                cv.append(add(valu(f"v_cvt_pk_bf16_f32 {d}, {a_}, {b_}", [a_, b_], [d]), after=aft, **kw))
        kw = dict(dead=[over(2 * pb, qs) if inp else endins, endins], tag="ep", prio=-300 + 8 * k)
        sw = []
        for h in range(0 if cfg.noswap else 2):
            x, y = f"v{w + h}", f"v{w + 2 + h}"
            sw.append(add(valu(f"v_permlane16_swap_b32 {x}, {y}", [x, y], [x, y], "perm"), after=[(cv[h].ins, 2), (cv[2 + h].ins, 2)], **kw))
        if tl:
            u_ = k // 2; bf_ = u_ % 2
            wi = I(f"ds_write_b128 v{tW[pb % 2]}, {R('v', w, 4)} offset:{bf_ * 2048}", "dsw", rd=[f"v{tW[pb % 2]}", R("v", w, 4)], cost=26)
            tws.append(add(wi, after=[(z.ins, 0) for z in cv] + [(tready, 0), (BARm[max(t for t in BARm if isinstance(t, int))], 0)] + [(z, 0) for z in trd.get(u_ - 2, [])], **kw).ins)
            if k % 2 == 0: continue
            for x_ in tail_stores[-2:]: x_.after += [(z, 0) for z in tws[-2:]]; x_.prio = -400 + u_
            for j in range(2):
                d = R("v", RB[bf_][j], 4)
                ri_ = I(f"ds_read_b128 {d}, v{tR} offset:{bf_ * 2048 + j * 1024}", "dsr", rd=[f"v{tR}"], wr=[d])
                aft = [(z, 0) for z in tws[-2:]] + ([(tst[u_ - 2, j], 2)] if u_ >= 2 else [(PVm[47, 7, j], 0), (SMm[47, 0], 0)])
                rit = add(ri_, after=aft, **kw); trd.setdefault(u_, []).append(ri_)
                st = I(f"buffer_store_dwordx4 {d}, v{tO}, s[{sO}:{sO+3}], s{sOr+qs} offen offset:{j * 2048 + (pb // 2) * 128}{ofl}", "vst",
                       rd=[d, f"v{tO}", f"s{sOr+qs}", f"s[{sO}:{sO+3}]"])
                st.fast = True; st.block = True; tst[u_, j] = st
                sit = add(st, after=[(ri_, 0)], **kw)
                rit.prio = -500 + u_
                if cfg.nvc:
                    rit.dabs = (PVm[T, 3, act(T)[-1]], cfg.tx0 + cfg.txstep * u_ * 2)
                    sit.dabs = (PVm[T, 3, act(T)[-1]], cfg.tx0 + cfg.txstep * (u_ * 2 + j + 1))
                tail_stores.append(sit)
            continue
        st = I(f"buffer_store_dwordx4 {R('v', w, 4)}, v{vOA}, s[{sO}:{sO+3}], s{sOr+qs} offen offset:{64*pb}{ofl}", "vst",
               rd=[R("v", w, 4), f"v{vOA}", f"s{sOr+qs}", f"s[{sO}:{sO+3}]"])
        sts.append((add(st, after=[(z.ins, 0) for z in (sw or cv)], **kw), w, inp, pb, qs))
        if not inp:
            pool.append((w, [(st, 2)])); unit_free[base, w] = [(st, 2)]
            for t in range(T + 1, T + 8):
                for it in pwriters.get((t, w), []): it.after.append((st, 2))

    if T == 15 and DL:
        rank = {P(14, 2): 0, P(14, 3): 1, P(15, 2): 4, P(15, 3): 5}
        def key(x):
            it, w, inp, pb, qs = x
            if not inp: return rank.get(w, 100)
            return 200 + pb if qs == 4 else (2 if pb == 0 else 4 + 2 * pb) + qs - 2
        srt = sorted(sts, key=key)
        if cfg.pairst:
            out_ = []
            for x in srt:
                if x not in out_: out_ += sorted([y for y in sts if y[4] == x[4] and y[3] // 2 == x[3] // 2], key=lambda y: y[3])
            srt = out_
        sq = qjit_b + [x[0] for x in srt]
        for k, it in enumerate(sq):
            it.dabs = (firstm[16], cfg.tq0 + cfg.tqstep * min(k, 8) + cfg.tstep * max(k - 8, 0)); it.prio = -1000 + k
    elif not endins.text.startswith("; end"):
        f_ = T >= TFIN[0] - 1
        if cfg.stE and not f_:
            for k, x in enumerate(sts): x[0].nb = (PVm[T, 1, act(T)[-1]], cfg.stE + cfg.tstep * k)
        for k, x in enumerate(sts): x[0].dabs = (PVm[T, 1, act(T)[-1]], (cfg.stF0 if f_ else cfg.st0) + (cfg.stFstep if f_ else cfg.tstep) * (k | 1 if cfg.pairst else k))
    else:
        for k, x in enumerate(sts): x[0].dabs = (PVm[T, 1, act(T)[-1]], cfg.tl0 + cfg.tlstep * (k | 1 if cfg.pairst else k))

    if cfg.pairst:
        for x in sts:
            if x[3] % 2 == 0:
                y = [z for z in sts if z[4] == x[4] and z[3] == x[3] + 1][0]
                x[0].after += list(y[0].after); y[0].after.append((x[0].ins, 0)); glue[id(x[0].ins)] = y[0]
tail_stores = []

class Sched:
    def __init__(self, stream):
        self.stream = stream
        self.pos = {id(x): k for k, x in enumerate(stream)}
        self.over = 0
        self.cyc = 0; self.ta = 0; self.log = []
    def run(self, bb, its, fixed_after, marks=None, endins=None):
        stream, pos = self.stream, self.pos
        idx = {id(m): j for j, m in enumerate(bb)}
        for mid, lst in fixed_after.items():
            if mid in idx:
                for f in lst: idx[id(f)] = idx[mid]
        for j, lst in (marks or {}).items():
            for f in lst: idx[id(f)] = j
        if endins is not None: idx[id(endins)] = len(bb)
        waiting, act, bydead = {}, [], {}
        byins = {id(it.ins): it for it in its if not it.placed}
        lbm = {}
        def lb(it):
            if id(it) not in lbm:
                v = 0
                for a, _ in it.after:
                    if id(a) in pos: continue
                    if id(a) in idx: v = max(v, idx[id(a)] + 1)
                    elif id(a) in byins: v = max(v, lb(byins[id(a)]))
                lbm[id(it)] = v
            return lbm[id(it)]
        sys.setrecursionlimit(100000)
        for it in its:
            if it.placed: continue
            d = min([idx[id(x)] for x in it.dead if x is not None and id(x) in idx] or [1 << 30])
            if it.dabs and id(it.dabs[0]) in idx: d = min(d, max(idx[id(it.dabs[0])] + it.dabs[1], lb(it) + 1))
            if it.doff: d = max(d - it.doff, min(d, lb(it) + 1))
            it.early = d + it.prio
            it.soft = d - (cfg.dsmargin if it.ins.kind in LGKM else -(1 << 20))
            if it.pace and id(it.pace[0]) in idx and d < (1 << 29):
                o_ = idx[id(it.pace[0])]
                it.soft = int(o_ + it.pace[1] * (d - cfg.dsmargin - o_)); it.early = it.soft + 4
            bydead.setdefault(d, []).append(it)
            w = {id(a) for a, _ in it.after if id(a) not in pos}
            nw[id(it)] = len(w)
            for a in w: waiting.setdefault(a, []).append(it)
            if not w: act.append(it)
        st = {"budget": 8, "first": True, "valu": False, "mem": False}
        def emit(x):
            pos[id(x)] = len(stream); stream.append(x)
            for it in waiting.pop(id(x), []):
                nw[id(it)] -= 1
                if nw[id(it)] == 0: act.append(it)
        def ready(it):
            n = len(stream)
            return all(n - pos[id(a)] - 1 >= dist for a, dist in it.after)
        def place(it):
            if it.ins.block and it.ins.kind == "dsr":
                while True:
                    a = cands(lambda x: not x.ins.block and x.ins.kind in VALU + LGKM)
                    if not a: break
                    place(a[0])
            c = it.ins.cost; kd = it.ins.kind
            if kd == "salu" and st["first"]: c -= 4
            if kd in LGKM + VM and st["valu"]: c += 8
            elif kd in LGKM + VM and st["mem"]: c += 4
            if kd in LGKM + VM: st["mem"] = True
            if kd in VALU: st["valu"] = True
            act.remove(it); it.placed = True
            if kd in VM:
                now = self.cyc + 8 + (8 - st["budget"])
                self.ta = (max(self.ta, now) if now < self.ta + 1 and it.tag != "ld" else now) + (cfg.ta_fast if (kd == "dma" or it.ins.fast) else cfg.ta_slow)
            emit(it.ins); st["budget"] -= c; st["first"] = False
            g_ = glue.get(id(it.ins))
            if g_ is not None and not g_.placed: place(g_)
        def cands(pred):
            return sorted([it for it in act if pred(it) and ready(it)], key=lambda x: (x.early, x.seq))
        def force(limit):
            while True:
                due = [it for d in list(bydead) if d <= limit for it in bydead[d] if not it.placed]
                for d in [d for d in bydead if d <= limit]:
                    bydead[d] = [it for it in bydead[d] if not it.placed]
                    if not bydead[d]: del bydead[d]
                if not due: return
                stack = list(due); seen = set(); need = []
                while stack:
                    it = stack.pop()
                    if id(it) in seen: continue
                    seen.add(id(it)); need.append(it)
                    for a_, _ in it.after:
                        o = byins.get(id(a_))
                        if o is not None and not o.placed: stack.append(o)
                av = [it for it in need if nw[id(it)] == 0]
                if not av:
                    raise RuntimeError("deadlock: " + "; ".join(it.ins.text + " AFTER " + str([a for a, _ in it.after if id(a) not in pos]) for it in need[:6]))
                rs = [it for it in av if ready(it)]
                if not rs:
                    rs = cands(lambda x: x.ins.kind in VALU)[:1] or av
                rs.sort(key=lambda x: (0 if (x.ins.kind in LGKM + VM and not st["valu"]) else 1, x.early, x.seq))
                place(rs[0])
        force(0)
        for k, m in enumerate(bb):
            for f in (marks or {}).get(k, []): emit(f)
            emit(m)
            st.update(budget=8, first=True, valu=False, mem=False)
            for f in fixed_after.get(id(m), []):
                emit(f); st["first"] = False
            c = cands(lambda x: x.ins.kind == "salu")
            if c and st["first"] and k + 1 < len(bb) and not getattr(cfg, "nosalu", False): place(c[0])
            vmok = lambda x: x.ins.kind in VM and (x.nb is None or idx.get(id(x.nb[0]), -1000) + x.nb[1] <= k)
            vm = cands(vmok) if (self.ta <= self.cyc and m.pref != "T") else []
            urgent = cands(lambda x: x.soft <= (k - 2 if vm else k + 1))
            if urgent: place(min(urgent, key=lambda x: (x.soft, x.seq)))
            tr = cands(lambda x: x.ins.kind == "trans")
            if m.pref == "T" and tr and st["budget"] >= (4 if urgent else 8):
                place(tr[0])
            else:
                if not urgent and st["budget"] >= 4:
                    if not vm and self.ta <= self.cyc: vm = cands(vmok)
                    mem = vm or cands(lambda x: x.ins.kind in LGKM)
                    if mem and not vm:
                        rd_ = [x for x in mem if x.ins.kind == "dsr"]; wr_ = [x for x in mem if x.ins.kind == "dsw"]
                        if cands(lambda x: x.ins.kind in ("valu", "perm")): mem = rd_
                        elif wr_ and not (rd_ and rd_[0].soft <= k + 3): mem = wr_
                    if mem: place(mem[0])
                while st["budget"] >= 4:
                    a = cands(lambda x: x.ins.kind in ("valu", "perm") or (x.ins.kind == "trans" and st["budget"] >= 8))
                    if not a: break
                    place(a[0])
            force(k + 1)
            if st["budget"] < 0: self.over -= st["budget"]
            self.cyc += max(16, 16 - st["budget"])
            self.log.append(self.cyc)
        if endins is not None: force(1 << 29)
nw = {}

sVC = 49
sTSB = 60
def stamp(k, cyc=False, mode=1):
    if cfg.stamps != mode: return []
    r = sTSB + 2 * k
    return [I(f"s_mem{'time' if cyc else 'realtime'} s[{r}:{r+1}]", "salu", wr=[f"s[{r}:{r+1}]"])]

def V(text, rd, wr, kind="valu"): return I(text, kind, rd=rd, wr=wr)
def prologue():
    o = []
    o.append(I("s_cmp_ge_u32 s2, 256\n    s_cbranch_scc1 L_end", "br"))
    o += stamp(0) + stamp(1, True) + stamp(0, False, 4) + stamp(1, True, 4) + stamp(0, False, 5)
    if cfg.spin: o.append(salu("s_memrealtime s[98:99]"))
    o.append(salu("s_load_dwordx8 s[52:59], s[0:1], 0"))
    if cfg.vc1: o.append(salu("s_load_dwordx2 s[6:7], s[0:1], 32"))
    l, t, u, g = "v1", "v2", "v3", "v4"
    o += [V(f"v_lshrrev_b32 {t}, 6, v0", ["v0"], [t]),
          V(f"v_and_b32 {l}, 63, v0", ["v0"], [l]),
          V(f"v_readfirstlane_b32 s{sW}, {t}", [t], [f"s{sW}"]),
          V(f"v_lshrrev_b32 {g}, 4, {l}", [l], [g]),
          V(f"v_and_b32 {t}, 15, {l}", [l], [t]),
          V(f"v_lshlrev_b32 {t}, 8, {t}", [t], [t]),
          V(f"v_mul_u32_u24 {u}, {GST}, {g}", [g], [u]),
          V(f"v_add_u32 v{vQA}, {t}, {u}", [t, u], [f"v{vQA}"]),
          ]
    if cfg.noswap:
        if vOA != vQA: o += [V(f"v_lshl_add_u32 v{vOA}, {g}, 4, {t}", [g, t], [f"v{vOA}"])]
        o += [
              V(f"v_and_b32 {u}, 1, {g}", [g], [u]),
              V(f"v_lshlrev_b32 {u}, 2, {u}", [u], [u]),
              V(f"v_xor_b32 {u}, {u}, {l}", [u, l], [u]),
              V(f"v_and_b32 {u}, 7, {u}", [u], [u]),
              V(f"v_lshrrev_b32 {t}, 3, {l}", [l], [t]),
              V(f"v_lshlrev_b32 {t}, 8, {t}", [t], [t]),
              V(f"v_lshl_add_u32 v{vVD}, {u}, 4, {t}", [u, t], [f"v{vVD}"])]
    else:
        o += [
          V(f"v_and_b32 {u}, 1, {g}", [g], [u]),
          V(f"v_lshl_add_u32 {t}, {u}, 5, {t}", [u, t], [t]),
          V(f"v_lshrrev_b32 {u}, 1, {g}", [g], [u]),
          V(f"v_lshl_add_u32 v{vOA}, {u}, 4, {t}", [u, t], [f"v{vOA}"]),
          V(f"v_bfe_u32 {t}, {l}, 1, 2", [l], [t]),
          V(f"v_xor_b32 {t}, {t}, {g}", [t, g], [t]),
          V(f"v_lshlrev_b32 {t}, 5, {t}", [t], [t]),
          V(f"v_lshrrev_b32 {u}, 3, {l}", [l], [u]),
          V(f"v_lshl_add_u32 {t}, {u}, 8, {t}", [u, t], [t]),
          V(f"v_and_b32 {u}, 1, {l}", [l], [u]),
          V(f"v_lshl_add_u32 v{vVD}, {u}, 4, {t}", [u, t], [f"v{vVD}"]),
          ]
    if cfg.qstage:
        o += [V(f"v_and_b32 {t}, 15, {l}", [l], [t]),
              V(f"v_xor_b32 {u}, {t}, {g}", [t, g], [u]),
              V(f"v_lshlrev_b32 {u}, 4, {u}", [u], [u]),
              V(f"v_lshl_add_u32 v{vQD}, {g}, 8, {u}", [g, u], [f"v{vQD}"])]
        o += [V(f"v_xor_b32 v{vQD+j}, {64*j}, v{vQD}", [f"v{vQD}"], [f"v{vQD+j}"]) for j in range(1, 4)]
        o += [salu(f"s_mul_i32 s{sQS}, s{sW}, 20480", [f"s{sW}"], [f"s{sQS}"]), salu(f"s_add_u32 s{sQS}, s{sQS}, {QSTG}")]
        stage2 = [V(f"v_and_b32 {t}, 15, {l}", [l], [t]),
              V(f"v_mul_u32_u24 {u}, {GST // 16}, {g}", [g], [u]),
              V(f"v_xor_b32 {u}, {u}, {t}", [u, t], [u]),
              V(f"v_lshlrev_b32 {u}, 4, {u}", [u], [u]),
              V(f"v_lshl_add_u32 {u}, {t}, 8, {u}", [t, u], [u])]
        stage2 += [V(f"v_xor_b32 v{vQR+k}, {f's{sX[k]}' if cfg.ownk else off(k)}, {u}", [u], [f"v{vQR+k}"]) for k in range(4)]
        stage2 += [V(f"v_add_u32 v{vQR+k}, s{sQS}, v{vQR+k}", [f"v{vQR+k}"], [f"v{vQR+k}"]) for k in range(4)]
    o += [salu(f"s_mul_i32 s{sT0}, s2, {HEADQ}", [], [f"s{sT0}"]),
          salu(f"s_lshl_b32 s{sT1}, s2, 17", [], [f"s{sT1}"]),
          salu(f"s_lshl_b32 s{sM0}, s{sW}, 10", [f"s{sW}"], [f"s{sM0}"]),
          salu(f"s_lshl_b32 s{sVo}, s{sW}, 11", [f"s{sW}"], [f"s{sVo}"]),
          salu(f"s_lshr_b32 s{sKo}, s{sW}, 1", [f"s{sW}"], [f"s{sKo}"]),
          salu(f"s_lshl_b32 s{sKo}, s{sKo}, 12"),
          salu(f"s_and_b32 s{sT2}, s{sW}, 1"),
          salu(f"s_lshl_b32 s{sT2}, s{sT2}, 7"),
          salu(f"s_add_u32 s{sKo}, s{sKo}, s{sT2}"),
          salu(f"s_lshl_b32 s{sOr}, s{sW}, 14"),
          salu(f"s_add_u32 s{sOr+1}, s{sOr}, 4096"),
          salu(f"s_add_u32 s{sOr+2}, s{sOr}, 8192"),
          salu(f"s_add_u32 s{sOr+3}, s{sOr}, 12288"),
          salu(f"s_lshl_b32 s{sOr+4}, s{sW}, 12"),
          salu(f"s_add_u32 s{sOr+4}, s{sOr+4}, {1280*256}"),
          ]
    o += [salu(f"s_mov_b32 s{sQn+k}, s{sOr+k}") for k in range(5)]
    if cfg.ownk:
        if cfg.dmap == "A": o += [salu(f"s_lshl_b32 s{sX[0]}, s{sW}, 6")]
        else: o += [salu(f"s_mul_i32 s{sX[0]}, s{sW}, 0x50"), salu(f"s_and_b32 s{sX[0]}, s{sX[0]}, 0x90")]
        o += [salu(f"s_xor_b32 s{sX[c]}, s{sX[0]}, {off(c)}") for c in range(1, 4)]
    o.append(I("s_waitcnt lgkmcnt(0)", "wait"))
    for srd, p, so, size in ((sK, 54, sT1, HEADK), (sQ, 52, sT0, HEADQ), (sV, 56, sT1, HEADK), (sO, 58, sT0, HEADQ)):
        o += [salu(f"s_add_u32 s{srd}, s{p}, s{so}"), salu(f"s_addc_u32 s{srd+1}, s{p+1}, 0"),
              salu(f"s_mov_b32 s{srd+2}, {size}"), salu(f"s_mov_b32 s{srd+3}, 0x20000")]
    kloads[0] = kload_ins(0); kloads[1] = kload_ins(1)
    k1 = [salu(f"s_add_u32 s{sKo}, s{sKo}, 8192")] + kloads[1]
    if cfg.qstage:
        o += kloads[0] + q0load(0) + q0load(1) + k1
        later = [[], q0load(2), q0load(3)]
    else:
        o += kloads[0] + qload_ins(0) + qload_ins(1)[:2]
        later = [qload_ins(1)[2:] + k1, qload_ins(2), qload_ins(3)]
    if cfg.codepf:
        o.append(I(f"s_getpc_b64 s[50:51]\nL_pf:\n    s_lshr_b32 s{sT2}, s2, 3\n    s_lshl_b32 s{sT2}, s{sT2}, 11", "salu"))
        o.append(V(f"v_lshl_add_u32 v5, {l}, 5, s{sT2}", [l], ["v5"]))
        o.append(V("v_min_u32 v5, L_end - L_pf, v5", ["v5"], ["v5"]))
        x = I(f"global_load_dword v{vDUM}, v5, s[50:51]", "vld", rd=["v5"], wr=[f"v{vDUM}"]); x.nowait = True
        o.append(x)
    if cfg.vc1:
        assert not cfg.extra and cfg.dbg < 0
        o += [salu(f"s_mov_b32 s{sWS}, s6"), salu(f"s_mov_b32 s{sWS+1}, s7"), salu(f"s_mov_b32 s{sWS+2}, 256"), salu(f"s_mov_b32 s{sWS+3}, 0x20000")]
    o += [salu(f"s_mov_b32 s{sC}, {CSCALE:#x}"), salu(f"s_mov_b32 s{sMASK}, 0xffff0000"),
          salu(f"s_mov_b32 s{sFAIL}, {0x1fffff if cfg.force_fallback else 0}"), salu(f"s_mov_b32 s{sCNT}, {4 + cfg.extra}"), *([salu("s_mov_b32 s3, 0x10000"), salu("s_mov_b32 s4, 0")] if cfg.extra else []),
          salu(f"s_lshl_b32 s{sVC}, s{sW}, 15"), salu(f"s_sub_u32 s{sVC}, s{sVC}, {RING}"),
          salu(f"s_lshl_b32 s{sT2}, s{sW}, 11")]
    if cfg.klin:
        assert cfg.ownk
        o += [V(f"v_lshlrev_b32 {u}, 1, {g}", [g], [u]),
              V(f"v_xor_b32 {t}, {u}, {l}", [u, l], [t]),
              V(f"v_lshlrev_b32 {t}, 4, {t}", [t], [t]),
              V(f"v_add_u32 v{vKR}, {RING}, {t}", [t], [f"v{vKR}"]),
              V(f"v_bfe_u32 {t}, v{vVD}, {4 if cfg.dmap == 'A' else 5}, 2", [f"v{vVD}"], [t]),
              V(f"v_lshlrev_b32 {u}, 1, {t}", [t], [u]),
              V(f"v_lshrrev_b32 v5, 3, {l}", [l], ["v5"]),
              V(f"v_xor_b32 {u}, {u}, v5", [u, "v5"], [u]),
              V(f"v_lshl_add_u32 {u}, {t}, 4, {u}", [t, u], [u]),
              V(f"v_bfe_u32 {t}, v{vVD}, {6 if cfg.dmap == 'A' else 4}, 1", [f"v{vVD}"], [t]),
              V(f"v_lshl_add_u32 {u}, {t}, 6, {u}", [t, u], [u]),
              V(f"v_lshlrev_b32 {u}, 4, {u}", [u], [u]),
              V(f"v_add_u32 {u}, {RING}, {u}", [u], [u]),
              V(f"v_add_u32 v{vKW}, s{sT2}, {u}", [u], [f"v{vKW}"])]
    else:
      o += [V(f"v_lshlrev_b32 {t}, 4, {l}", [l], [t]),
          V(f"v_add_u32 v{vKR}, {RING}, {t}", [t], [f"v{vKR}"]),
          V(f"v_add_u32 v{vKW}, s{sT2}, v{vKR}", [f"v{vKR}"], [f"v{vKW}"])]
    if cfg.ownk:
        o += [V(f"v_add_u32 v{vKC[0]}, s{sM0}, v{vKR}", [f"v{vKR}"], [f"v{vKC[0]}"])]
        o += [V(f"v_xor_b32 v{vKC[c]}, {1024*c}, v{vKC[0]}", [f"v{vKC[0]}"], [f"v{vKC[c]}"]) for c in range(1, 4)]
        o += [salu(f"s_sub_u32 s{sVC}, s{sVC}, s{sM0}")]
        if cfg.vc1: o += [V(f"v_and_b32 v{vPF}, 0xffff, v{vKC[0]}", [f"v{vKC[0]}"], [f"v{vPF}"])]
    o += [
          V(f"v_lshrrev_b32 {t}, 2, {l}", [l], [t]),
          V(f"v_lshlrev_b32 {t}, 7, {t}", [t], [t]),
          V(f"v_and_b32 {u}, 3, {l}", [l], [u])]
    assert cfg.noswap
    o += [V(f"v_lshl_add_u32 {t}, {u}, 4, {t}", [u, t], [t]),
          V(f"v_bfe_u32 {u}, {l}, 3, 1", [l], [u]),
          V(f"v_lshl_add_u32 v{vVA}, {u}, 6, {t}", [u, t], [f"v{vVA}"]),
          V(f"v_xor_b32 v{vVA+1}, 64, v{vVA}", [f"v{vVA}"], [f"v{vVA+1}"]),
          V(f"v_mov_b32 v{vHI}, 0", [], [f"v{vHI}"]), V(f"v_mov_b32 v{vLO}, -1", [], [f"v{vLO}"])]
    o += [V(f"v_lshrrev_b32 {t}, 4, {l}", [l], [t]),
          V(f"v_xor_b32 {t}, {t}, {l}", [t, l], [t]),
          V(f"v_bfe_u32 {t}, {t}, 1, 1", [t], [t]),
          V(f"v_add_u32 {t}, -1, {t}", [t], [t]),
          V(f"v_and_b32 {t}, 0x3f803f80, {t}", [t], [t])]
    o += [V(f"v_accvgpr_write_b32 a{aSA+k}, {t}", [t], [f"a{aSA+k}"]) for k in range(4)]
    o += [V(f"v_and_b32 {u}, 1, {l}", [l], [u]),
          V(f"v_mul_u32_u24 {u}, 0xaaaa, {u}", [u], [u]),
          V(f"v_add_u32 v{vIDX}, 0x4444, {u}", [u], [f"v{vIDX}"])]
    o += [V(f"v_accvgpr_write_b32 a{aL+k}, 0", [], [f"a{aL+k}"]) for k in range(12)]
    if cfg.qstage: o += stage2
    o += later[0]
    if cfg.pads: o.append(I("; BODY_ALIGN", "label"))
    for T in range(1):
        st = vKt[T]; ws = []
        for r in range(8):
            a = f"a{ST(T, 0) + r}"; x = f"v{st + r}"; tt = f"v{vKx[r % 2]}"
            if not cfg.kvg: o += [V(f"v_accvgpr_read_b32 {x}, {a}", [a], [x])]
            o += [V(f"v_lshlrev_b32 {tt}, 16, {x}", [x], [tt]),
                  V(f"v_and_b32 {x}, s{sMASK}, {x}", [x], [x]),
                  V(f"v_mul_f32 {tt}, s{sC}, {tt}", [tt], [tt]),
                  V(f"v_mul_f32 {x}, s{sC}, {x}", [x], [x]),
                  V(f"v_cvt_pk_bf16_f32 {x}, {tt}, {x}", [tt, x], [x])]
        for e in range(2):
            w = I(f"ds_write_b128 v{vKW}, {R('v', st + 4*e, 4)} offset:{T*8192 + e*KWE}", "dsw", rd=[f"v{vKW}", R('v', st + 4*e, 4)])
            o.append(w); ws += [Item(w)] * 4
        rb = []
        for e in range(0 if cfg.ownk else 2):
            d = R("a", ST(T, e), 4)
            x = I(f"ds_read_b128 {d}, v{vKW} offset:{T*8192 + e*1024}", "dsr", rd=[f"v{vKW}"], wr=[d])
            o.append(x); rb.append(Item(x))
        kwrites[T] = ws; readback[T] = rb
    o += later[1]
    pro_tail.extend(later[2] + [salu(f"s_add_u32 s{sQn+k}, s{sOr+k}, 65536") for k in range(4)])
    return o
pro_tail = []

def guard_text():
    a = L(2)
    t = []
    t.append("    ; ---- V magnitude guard: sums of squares must stay below 2^60; shared across the 4 waves")
    if cfg.stamps == 5: t.append("    s_memrealtime s[%d:%d]" % (sTSB + 18, sTSB + 19))
    t.append("    s_nop 7\n    s_nop 3")
    t += [f"    v_accvgpr_read_b32 v{k}, a{a+k}" for k in range(4)]
    t += [f"    v_and_b32 v{k}, 0x7fffffff, v{k}" for k in range(4)]
    t += ["    v_max_u32 v0, v0, v1", "    v_max3_u32 v0, v0, v2, v3",
          "    v_cmp_le_u32 vcc, 0x5d800000, v0",
          "    s_nop 1",
          "    s_cmp_lg_u64 vcc, 0",
          f"    s_cselect_b32 s{sT0}, 1, 0",
          f"    v_cmp_lt_u32 vcc, 0x6f800000, v{vHI}",
          f"    v_cmp_gt_u32 s[6:7], 1.0, v{vLO}",
          "    s_nop 1",
          "    s_or_b64 vcc, vcc, s[6:7]",
          f"    s_cselect_b32 s{sFAIL}, 0x1fffff, s{sFAIL}",
          f"    s_lshl_b32 s{sT1}, s{sW}, 2",
          f"    s_add_u32 s{sT1}, s{sT1}, {FLAGS}",
          f"    v_mov_b32 v0, s{sT0}", f"    v_mov_b32 v1, s{sT1}", f"    v_mov_b32 v2, {FLAGS}",
          "    ds_write_b32 v1, v0", "    s_waitcnt lgkmcnt(0)", "    s_barrier",
          "    ds_read_b128 v[4:7], v2", "    s_waitcnt lgkmcnt(0)",
          "    v_or3_b32 v4, v4, v5, v6", "    v_or_b32 v4, v4, v7", "    s_nop 0",
          f"    v_readfirstlane_b32 s{sT0}, v4", "    s_nop 1",
          f"    s_cmp_lg_u32 s{sT0}, 0",
          f"    s_cselect_b32 s{sFAIL}, 0x1fffff, s{sFAIL}"]
    return t
FLAGS = RING + 3 * 8192 if cfg.tlds else RING
def finale():
    if cfg.stamps == 5 and cfg.vc1: pre_ = ["    s_memrealtime s[%d:%d]" % (sTSB + 18, sTSB + 19)]
    else: pre_ = []
    t = pre_ if (cfg.tlds or cfg.vc1) else guard_text()
    if cfg.stamps in (1, 4, 5):
        t += ["    s_memrealtime s[%d:%d]" % (sTSB + 22, sTSB + 23), "    s_waitcnt vmcnt(0)",
              "    s_memrealtime s[%d:%d]" % (sTSB + 24, sTSB + 25), "    s_memtime s[%d:%d]" % (sTSB + 26, sTSB + 27)]
    if cfg.stamps:
        t += ["    s_load_dwordx2 s[4:5], s[0:1], 40", "    s_waitcnt lgkmcnt(0)",
              "    s_mov_b32 s6, 0x100000", "    s_mov_b32 s7, 0x20000",
              f"    s_lshl_b32 s{sT0}, s2, 2", f"    s_add_u32 s{sT0}, s{sT0}, s{sW}", f"    s_lshl_b32 s{sT0}, s{sT0}, 7",
              "    v_mov_b32 v1, 0"]
        for k in range(21):
            t += [f"    v_mov_b32 v0, s{sTSB + 2*k}", f"    buffer_store_dword v0, v1, s[4:7], s{sT0} offen offset:{4*k}"]
    if cfg.spin:
        t += ["L_spin:", "    s_memrealtime s[100:101]", "    s_waitcnt lgkmcnt(0)", "    s_sub_u32 s100, s100, s98", f"    s_cmp_lt_u32 s100, {cfg.spin * 100}", "    s_cbranch_scc1 L_spin"]
    if cfg.dbg >= 0:
        t += [f"    s_cmp_lg_u32 s2, {cfg.dbg}", "    s_cbranch_scc1 L_nodbg", f"    s_cmp_lg_u32 s{sW}, 0", "    s_cbranch_scc1 L_nodbg",
              "    s_load_dwordx2 s[4:5], s[0:1], 32", "    s_waitcnt lgkmcnt(0)", "    s_mov_b32 s6, 256", "    s_mov_b32 s7, 0x20000"]
        lst = [(2, 0), (3, 0), (4, 0), (5, 0), (9, 0), (8, 0), (7, 0), (6, 0), (11, 0), (12, 0), (10, 1), (13, 10)]
        for k, (a_, b_) in enumerate(lst):
            t += [f"    s_sub_u32 s{sT1}, s{sTSB + 2*a_}, s{sTSB + 2*b_}", f"    v_mov_b32 v0, s{sT1}", f"    buffer_store_dword v0, v1, s[4:7], 0 offen offset:{4*k}"]
        t += ["L_nodbg:"]
    t += [f"    s_cmp_eq_u32 s{sFAIL}, 0", "    s_cbranch_scc1 L_end"]
    sJ, sRow, sKb, sVt = sT0, sT1, sT2, sKo
    f = ["    ; ---- slow path: rows whose unshifted exponent sum left the safe range are redone with the true max",
         "    s_waitcnt vmcnt(0)"]
    f += [f"    v_and_b32 v{vVA+c}, 0xffff, v{vVA+c}" for c in range(NVA)]
    f += ["L_fb_next:",
          f"    s_ff1_i32_b32 s{sJ}, s{sFAIL}", f"    s_bitset0_b32 s{sFAIL}, s{sJ}",
          f"    s_cmp_gt_u32 s{sJ}, 4", f"    s_cselect_b32 s{sKb}, 1, 0", f"    s_sub_u32 s{sKb}, s{sJ}, s{sKb}",
          f"    s_lshr_b32 s{sRow}, s{sKb}, 2", f"    s_lshl_b32 s{sRow}, s{sRow}, 16",
          f"    s_and_b32 s{sKb}, s{sKb}, 3", f"    s_lshl_b32 s{sKb}, s{sKb}, 12", f"    s_add_u32 s{sRow}, s{sRow}, s{sKb}",
          f"    s_lshl_b32 s{sKb}, s{sW}, 14", f"    s_add_u32 s{sRow}, s{sRow}, s{sKb}",
          f"    s_cmp_eq_u32 s{sJ}, 4", f"    s_cselect_b32 s{sRow}, s{sOr+4}, s{sRow}"]
    f += [f"    buffer_load_dwordx4 v[{4*s}:{4*s+3}], v{vQA}, s[{sQ}:{sQ+3}], s{sRow} offen offset:{off(s)}" for s in range(4)]
    def qk(dst, extra):
        r = [f"    buffer_load_dwordx4 v[{20+4*s}:{23+4*s}], v{vQA}, s[{sK}:{sK+3}], s{sKb} offen offset:{off(s)}" for s in range(4)]
        r += ["    s_waitcnt vmcnt(0)"]
        r += [f"    v_mfma_f32_16x16x32_bf16 v[{dst}:{dst+3}], v[{20+4*s}:{23+4*s}], v[{4*s}:{4*s+3}], {'0' if s == 0 else f'v[{dst}:{dst+3}]'}" for s in range(4)]
        r += [f"    s_add_u32 s{sKb}, s{sKb}, 4096", "    s_nop 9"]
        return r
    f += ["    v_mov_b32 v16, 0xff800000", f"    s_mov_b32 s{sKb}, 0", "L_fb_max:"]
    f += qk(36, None)
    f += ["    v_max3_f32 v16, v16, v36, v37", "    v_max3_f32 v16, v16, v38, v39",
          f"    s_cmp_lt_u32 s{sKb}, {HEADK}", "    s_cbranch_scc1 L_fb_max"]
    def xlane(reg, tmp, op):
        return [f"    v_mov_b32 v{tmp}, v{reg}", "    s_nop 1", f"    v_permlane16_swap_b32 v{reg}, v{tmp}", "    s_nop 1", f"    {op} v{reg}, v{reg}, v{tmp}",
                f"    v_mov_b32 v{tmp}, v{reg}", "    s_nop 1", f"    v_permlane32_swap_b32 v{reg}, v{tmp}", "    s_nop 1", f"    {op} v{reg}, v{reg}, v{tmp}"]
    f += xlane(16, 17, "v_max_f32")
    f += [f"    v_mul_f32 v17, s{sC}, v16", "    v_mov_b32 v18, 0"]
    f += [f"    v_mov_b32 v{64+k}, 0" for k in range(32)]
    f += [f"    s_mov_b32 s{sKb}, 0", f"    s_mov_b32 s{sVt}, 0", "L_fb_pv:"]
    f += qk(36, None) + qk(40, None)
    f += [f"    v_fma_f32 v{36+k}, v{36+k}, s{sC}, -v17" for k in range(8)]
    f += [f"    v_exp_f32 v{36+k}, v{36+k}" for k in range(8)]
    f += ["    s_nop 0"] + [f"    v_add_f32 v18, v18, v{36+k}" for k in range(8)]
    f += [f"    v_cvt_pk_bf16_f32 v{44+k}, v{36+2*k}, v{37+2*k}" for k in range(4)]
    f += [f"    v_add_u32 v{52+c}, s{sVt}, v{vVA+c}" for c in range(NVA)]
    for b in range(8):
        f += [f"    ds_read_b64_tr_b16 v[{48+2*blk}:{49+2*blk}], v{52+vsel(b)[0]} offset:{(b>>2)*32768 + blk*2048 + vsel(b)[2]}" for blk in range(2)]
        f += ["    s_waitcnt lgkmcnt(0)", f"    v_mfma_f32_16x16x32_bf16 v[{64+4*b}:{67+4*b}], v[48:51], v[44:47], v[{64+4*b}:{67+4*b}]"]
    f += [f"    s_add_u32 s{sVt}, s{sVt}, 4096", f"    s_cmp_eq_u32 s{sVt}, 32768", f"    s_cselect_b32 s{sVt}, 65536, s{sVt}",
          f"    s_cmp_lt_u32 s{sKb}, {HEADK}", "    s_cbranch_scc1 L_fb_pv"]
    f += xlane(18, 17, "v_add_f32")
    f += ["    v_rcp_f32 v18, v18", "    s_nop 7"]
    f += [f"    v_mul_f32 v{64+k}, v{64+k}, v18" for k in range(32)]
    f += [f"    v_cvt_pk_bf16_f32 v{96+k}, v{64+2*k}, v{65+2*k}" for k in range(16)]
    f += ["    s_nop 1"]
    for pb in range(0 if cfg.noswap else 4):
        f += [f"    v_permlane16_swap_b32 v{96+4*pb+h}, v{98+4*pb+h}" for h in range(2)]
    f += [f"    buffer_store_dwordx4 v[{96+4*pb}:{99+4*pb}], v{vOA}, s[{sO}:{sO+3}], s{sRow} offen offset:{64*pb}" for pb in range(4)]
    f += ["    s_waitcnt vmcnt(0)", f"    s_cmp_lg_u32 s{sFAIL}, 0", "    s_cbranch_scc1 L_fb_next"]
    return t + f

def simulate(linear, waits, nops, marks):
    t = 0; pipe = 0; q = []; lastdone = 0; out = []; t0 = 0; first = False; valu = False; mem = False; cur = None; stall = 0; stl = []; idle = [0]
    for ins in linear:
        if ins.kind == "label": continue
        w = waits.get(id(ins))
        if w:
            if w[1] is not None and len(q) > w[1]:
                need = q[len(q) - w[1] - 1]
                if need > t: stall += need - t; t = need
            t += 0 if first else 4; first = False
        t += 4 * nops.get(id(ins), 0)
        if id(ins) in marks:
            out.append(t - t0); stl.append(stall); t0 = t; stall = 0; idle.append(0)
        k = ins.kind
        if k in MAT:
            idle[-1] += max(0, pipe - t)
            t = max(t, pipe); pipe = t + 16; t += 8; first = True; valu = False; mem = False
        else:
            c = ins.cost
            if k in ("salu", "bar", "br", "wait") and first: c -= 4
            if k in LGKM + VM and valu: c += 8
            elif k in LGKM + VM and mem: c += 4
            if k in LGKM + VM: mem = True
            if k in LGKM:
                svc = 32 if k == "dsw" else (16 if ("b128" in ins.text or cfg.noswap) else 8)
                lastdone = max(lastdone + svc, t + cfg.ldslat); q.append(lastdone)
            if k in VALU: valu = True
            t += c; first = False
    out.append(t - t0); stl.append(stall)
    sys.stderr.write(f"sim cycles/period: {out[1:]}\nsim lgkm stalls : {stl[1:]}\nunused issue cyc: {idle[1:]}\n")

def gen_items(T):
    curT[0] = T
    items_softmax(T); items_kread(T)
    if T % 8 == 0 and T > 0: items_vtoggle(T)
    items_vread(T)
def bar_needs(T):
    pub = (T + 1,) if T < 15 else (T + 1, T + 2)
    nd = [x.ins for t in pub for x in kwrites[t]]
    if T in vdmas and T > 0 and f"V{T}" not in BARm: nd += vdmas[T]
    done = (T - 1, T) if T >= 13 else (T - 1,) if T >= 1 else ()
    nd += [kreads[t, blk, s_].ins for t in done for blk in range(2) for s_ in range(4) if (t, blk, s_) in kreads]
    nd += [x.ins for t in done if t in readback for x in readback[t]]
    BARm[T].needs = nd
def build():
    C = cfg.CUT; NT = 48 + C + 2
    for T in range(NT + 2): mk_step(T)
    BARm[-1] = I("s_barrier", "bar"); BARm["V0"] = I("s_barrier", "bar")
    for T in range(1, cfg.nvbar): BARm[f"V{T}"] = I("s_barrier", "bar")
    for T in list(range(0, 15, 2)) + list(range(1, NT + 2, 2)): BARm[T] = I("s_barrier", "bar")
    pro = prologue()
    pro.append(BARm[-1]); pro += stamp(2) + pro_tail
    bb, start = [], {}
    for T in range(NT):
        start[T] = len(bb); bb += backbone_period(T)
    backbone_period(NT)
    fixed = {id(bar_spot(T)): [BARm[T]] for T in range(NT) if T in BARm}
    fixed[id(QKm[1, 0, 0, 0] if cfg.sm0 else QKm[0, 1, 2, 3])] = [BARm["V0"]]
    for T in range(1, cfg.nvbar): fixed[id(start_of(T + 1))] = [BARm[f"V{T}"]]
    labL = I("L_loop:", "label"); labL2 = I("; second instance", "label"); labL3 = I("; third instance", "label")
    def chk():
        pre = ""
        if cfg.stamps == 1:
            r = sTSB + 12
            pre = "".join(f"s_mov_b64 s[{r+2*k+2}:{r+2*k+3}], s[{r+2*k}:{r+2*k+1}]\n    " for k in (2, 1, 0)) + f"s_memrealtime s[{r}:{r+1}]\n    "
        return I(pre + f"s_sub_u32 s{sCNT}, s{sCNT}, 1\n    s_cmp_eq_u32 s{sCNT}, 0\n    s_cbranch_scc1 L_tail", "br")
    chk1, chk2 = chk(), chk()
    brL, brL2 = I("s_branch L_loop", "br"), I("s_branch L_loop", "br")
    marks = {start[16 + C]: stamp(5) + [labL], start[32]: [chk1], start[32 + C]: [brL, labL2], start[48]: [chk2], start[48 + C]: [brL2, labL3]}
    marks[start[12]] = [I("L_p12:", "label")]
    if cfg.stamps == 1:
        marks[start[1]] = stamp(3); marks[start[16]] = stamp(4) + stamp(10, True)
    if cfg.stamps == 2:
        for T in range(16 + C, 48 + C): marks.setdefault(start[T], []).append(stamp((T - C) % 16, True, 2)[0])
    if cfg.stamps == 3:
        for T in range(0, min(20, 16 + C - cfg.st3)): marks.setdefault(start[T + cfg.st3], []).insert(0, stamp(T, False, 3)[0])
        pro.insert(1, stamp(20, False, 3)[0])
    for T in range(16): items_loads(T)
    for T in range(NT):
        gen_items(T)
        if T % 16 == C and T > 16: items_rowadv(T)
        if cfg.repf:
            if T == cfg.pf1: items_codepf(T, "L_p12")
            if T == cfg.pf2: items_codepf(T, "L_loop")
            if T > 32 and T % 16 == cfg.pf3: items_codepf(T, "L_tail")
    for base in (16, 32): items_qpf(base)
    for T in range(1, NT + 2): curT[0] = T; items_kwrite(T)
    curT[0] = -50; items_qjit()
    if cfg.vc1: items_vcheck()
    for T in range(NT):
        if any(islast(T, q) for q in act(T)):
            curT[0] = T + 1000
            items_epilogue(T, marks[start[(T + 1) // 16 * 16 + C]][0])
    BARm[-1].needs = [x.ins for x in kwrites[0]]
    BARm["V0"].needs = list(vdmas[0])
    for T in range(1, cfg.nvbar): BARm[f"V{T}"].needs = list(vdmas[T])
    for T in range(NT):
        if T in BARm: bar_needs(T)
    stream = list(pro)
    Sched(stream).run(bb, items, fixed, marks)
    p = {id(x): k for k, x in enumerate(stream)}
    ref = {(it.T[0] - 16, it.T[1]): p[id(it.ins)] < p[id(brL)] for it in items if it.placed and 32 + C - 2 <= it.T[0] < 48}
    cut = marks[start[16 + C]][0]
    for it in items:
        r = ref.get(it.T)
        if r is True: it.dead = list(it.dead) + [cut]
        elif r is False: it.after.append((labL, 0))
        it.placed = False
    stream = list(pro)
    sc = Sched(stream)
    sc.run(bb, items, fixed, marks)
    p = {id(x): k for k, x in enumerate(stream)}
    iL, iC1, iBr, iL2, iC2, iBr2 = (p[id(x)] for x in (labL, chk1, brL, labL2, chk2, brL2))
    segP = stream[:iL]; segL = stream[iL:iC1 + 1]; segB = stream[iC1 + 1:iBr + 1]
    one, two = stream[iL:iBr + 1], stream[iL2:iBr2 + 1]
    a = [x.text for x in one[1:]]; b = [x.text for x in two[1:]]
    if a != b:
        for k, (x, y) in enumerate(zip(a, b)):
            if x != y: sys.stderr.write(f"loop mismatch at {k}: {x} | {y}\n"); break
        raise SystemExit("loop instances differ")
    mp = {id(y): x for x, y in zip(one, two)}
    for x, y in zip(one, two): x.needs = x.needs + [mp.get(id(z), z) for z in y.needs]
    def keyed(its):
        cnt, out = {}, {}
        for it in its:
            k = (it.T[0], it.ins.text); cnt[k] = cnt.get(k, 0) + 1; out[k + (cnt[k],)] = it
        return out
    old = {k: it for k, it in keyed(items).items() if it.placed and p[id(it.ins)] <= iC2}
    TFIN[0] = 48; TE = 48 + DL
    for d in (QKm, PVm, SMm):
        for k in [k for k in d if k[0] >= 48 and (k[0] >= TE or (k[2] if d is not SMm else 2 * k[1]) not in (2, 3))]: del d[k]
    for T in range(TE - 1 if TE % 2 == 0 else TE, NT + 2): BARm.pop(T, None)
    for j in range(32):
        buf = Kf(0, 0) + 4 * (j % 8)
        VCm[j] = mfma(L(2), buf, buf, j == 0, dk="a")
    tbb = []
    for T in range(48, TE + 1): tbb += backbone_period(T)
    items.clear(); pwriters.clear(); lprev.clear()
    for k in [k for k in unit_free if k[0] == 32]: del unit_free[k]
    for T in range(46, TE): gen_items(T)
    for T in range(48, TE): curT[0] = T; items_kwrite(T)
    endT = I("; end of tail", "label"); endA = I("; group A stored", "label")
    curT[0] = 5000
    if DL: items_epilogue(47, tbb[len(tbb) - cfg.nvc - 20])
    items_epilogue(TE - 1, endT)
    if not cfg.vc1: va = add(valu(f"v_add_u32 v{vVD}, s{sVC}, v{vKR}", [f"v{vKR}"], [f"v{vVD}"]), dead=[PVm[TE - 1, 2, act(TE - 1)[0]]], tag="vc")
    for j in range(cfg.nvc):
        d = R("a", Kf(0, 0) + 4 * (j % 8), 4)
        lastu = [(QKm[TE - 1, (j % 8) // 4, act(TE - 1)[-1], j % 4], 0)] if j < 8 else [(VCm[j - 8], 0)]
        add(I(f"ds_read_b128 {d}, v{vVD} offset:{j*1024}", "dsr", rd=[f"v{vVD}"], wr=[d]), after=[(va.ins, 0)] + lastu, dead=[VCm[j]], tag="vc", prio=-6)
    if cfg.vc1:
        fl = P(1, 4)
        x = I(f"buffer_load_ubyte v{fl}, off, s[{sWS}:{sWS+3}], s2 sc1", "vld", wr=[f"v{fl}"], cost=8); x.fast = True
        add(x, dead=[firstm[49]], tag="vc")
        gx = I("\n    ".join([f"v_cmp_ne_u32 s[6:7], 0, v{fl}",
                               f"v_cmp_lt_u32 vcc, 0x6f800000, v{vHI}",
                               f"v_cmp_gt_u32 s[50:51], 1.0, v{vLO}    ; some l < 1", "s_nop 1",
                               "s_or_b64 vcc, vcc, s[6:7]", "s_or_b64 vcc, vcc, s[50:51]", f"s_cselect_b32 s{sFAIL}, 0x1fffff, s{sFAIL}"]),
               "br", rd=[f"v{vHI}", f"v{vLO}", f"v{fl}"], wr=["vcc", f"v{fl}"], cost=40)
        gx.block = True
        add(gx, after=[(x, 0)] + [(z, 0) for z in lprev] + [x_.after[0] for x_ in tail_stores[-2:]], dead=[endT], tag="ep", prio=5000)
        for x in tail_stores[-2:]: x.after.append((gx, 0))
    elif cfg.tlds:
        assert TE % 4 == 3
        gx = I("\n".join(guard_text()).strip(), "br", rd=[f"v{vHI}", f"v{vLO}", R("a", L(2), 4)], wr=["v[0:7]", "vcc"], cost=200)
        git = add(gx, after=[(VCm[cfg.nvc - 1], 0)] + [(z, 0) for z in lprev], dead=[endT], tag="ep", prio=-5000)
        for x in tail_stores[cfg.exk:]:
            x.after.append((gx, 0)); x.dabs = None
    alias = {}
    for k, it in keyed(items).items():
        if k in old: alias[id(it.ins)] = old[k].ins; it.ins = old[k].ins; it.placed = True
    tfixed = {id(bar_spot(T)): [BARm[T]] for T in range(48, TE) if T in BARm}
    known = {id(x) for x in stream[:iC2 + 1]} | {id(x) for x in tbb} | {id(it.ins) for it in items} | {id(x) for l_ in tfixed.values() for x in l_}
    for it in items: it.after = [(alias.get(id(a_), a_), d_) for a_, d_ in it.after if id(alias.get(id(a_), a_)) in known]
    for T in range(48, TE):
        if T in BARm: bar_needs(T)
    tstream = stream[:iC2 + 1]
    labT = I("L_tail:", "label")
    tm = {0: [labT] + stamp(2, False, 5)}
    if cfg.stamps == 5:
        for T in range(49, TE + 1): tm[tbb.index(firstm[T])] = stamp(T - 46, False, 5)
        if cfg.nvc: tm[tbb.index(VCm[0])] = stamp(8, False, 5)
    if cfg.wbl2:
        pos_ = {1: tbb.index(firstm[TE]), 2: 1, 3: tbb.index(firstm[TE - 1])}[cfg.wbl2]
        tm.setdefault(pos_, []).append(I(f"s_lshl_b32 s{sT1}, s2, 2\n    s_add_u32 s{sT1}, s{sT1}, s{sW}\n    s_and_b32 s{sT1}, s{sT1}, {cfg.wbmask}\n    s_cbranch_scc1 L_nowb\n    buffer_wbl2 sc1\nL_nowb:", "br"))
    Sched(tstream).run(tbb, items, tfixed, tm, endins=endT)
    segT = tstream[iC2 + 1:]
    assert segT[0] is labT, segT[:3]
    assert all(it.placed for it in items)
    for x in segT: x.needs = [mp.get(id(z), z) for z in x.needs]
    linear = segP + segL + segB + segL + segB + segL + segT
    waits = insert_waits(linear)
    nops = fix_hazards(linear, waits)
    sys.stderr.write(f"instr: P {len(segP)} L {len(segL)} B {len(segB)} T {len(segT)}; waits {len(waits)}; nops {sum(nops.values())} at {len(nops)} sites\n")
    mk = {id(stream[p[id(bb[start[T]])]]): T for T in range(32 + C)}
    mk.update({id(firstm[T]): T for T in range(48, TE + 1)})
    simulate(segP + segL + segB + segL + segT, waits, nops, mk)
    loop = render(segL, waits, nops) + render(segB, waits, nops)
    if cfg.drop:
        pat = {"v": "ds_read_b64_tr", "k": "ds_read_b128", "w": "ds_write", "s": "v_smfmac", "e": "v_exp", "c": r"v_cvt_pk_bf16_f32 v1[6-9]\d, v20", "q": "v_accvgpr_(write_b32 a\d+, v|mov)",
               "m": "v_mul_f32", "t": "buffer_store", "l": "buffer_load", "b": "s_barrier"}
        for ch in cfg.drop: loop = [x for x in loop if not re.search(pat[ch], x)]
    sk = []
    if cfg.skew:
        sk = [f"    s_mov_b32 s{sT1}, s{sW}" if cfg.skew > 0 else f"    s_lshr_b32 s{sT1}, s{sW}, 1", "L_sk:", f"    s_cmp_eq_u32 s{sT1}, 0", "    s_cbranch_scc1 L_sk2", f"    s_sub_u32 s{sT1}, s{sT1}, 1", f"    s_nop {abs(cfg.skew)}", "    s_branch L_sk", "L_sk2:"]
    body = render(segP, waits, nops) + sk + loop + render(segT, waits, nops)
    return body

HEADER = open("standalone__mha_softmax__near_ridge.s.ref").read().split("; Override launch")[0]
def add_pads(lines):
    import subprocess
    lines = [x for l in lines for x in l.split("\n")]
    src = '.amdgcn_target "amdgcn-amd-amdhsa--gfx950"\n.text\n' + "\n".join(lines) + "\nL_end:\n s_endpgm\n"
    open("_pads.s", "w").write(src)
    subprocess.run(["clang", "-x", "assembler", "-target", "amdgcn-amd-amdhsa", "-mcpu=gfx950", "-c", "_pads.s", "-o", "_pads.o"], check=True)
    d = subprocess.run(["llvm-objdump", "-d", "--mcpu=gfx950", "_pads.o"], capture_output=True, text=True).stdout
    sizes = [4 * len(m.group(1).split()) for m in re.finditer(r"// [0-9A-F]+: ((?:[0-9A-F]{8} ?)+)", d)]
    isins = lambda x: x.startswith("    ") and not x.strip().startswith(";")
    assert len(sizes) == sum(map(isins, lines)) + 1
    warm = ["    s_mov_b64 vcc, -1"] + [y for w in range(3) for y in (f"    s_cmp_eq_u32 s{sW}, {w}", f"    s_cbranch_scc1 L_pad{w}")] + ["    s_branch L_pad3", "L_back:", "    s_mov_b64 vcc, 0"]
    out, k, addr, want, npad, prev_m, stop = [], 0, None, [], 0, False, False
    for x in lines:
        if x.strip() == "; BODY_ALIGN":
            out += ["    s_mov_b64 vcc, 0", "    s_branch L_body", ".p2align 12", "L_body:"]; addr = 0
            want = [p * 4096 + j * cfg.padoff for p in range(1, 32) for j in range(cfg.pads)]
            continue
        if x.strip() == "; WARM_UP":
            out += warm; addr += 4 * (len(warm) - 1); k += 0; continue
        if "V magnitude guard" in x or "slow path" in x: stop = True
        if isins(x):
            if addr is not None and not stop and addr >= want[0] and (prev_m or addr >= want[0] + 40):
                out += [f"L_pad{npad}:", f"    s_cbranch_vccnz PADNEXT{npad}"]; npad += 1; addr += 4; want.pop(0)
            if addr is not None: addr += sizes[k]
            k += 1
            prev_m = x.strip().startswith(("v_mfma", "v_smfmac"))
        out.append(x)
    assert npad >= 4
    return [re.sub(r"PADNEXT(\d+)", lambda m: f"L_pad{int(m.group(1)) + 4}" if int(m.group(1)) + 4 < npad else "L_back", x) for x in out]

def main():
    body = build()
    if cfg.pads:
        fin = finale()
        body = add_pads(body + fin)
        globals()["finale"] = lambda: []
    out = HEADER + f"""; One workgroup (4 waves x 512 registers) per (batch, head).  V stays in LDS, K (pre-scaled by log2(e)/sqrt(D))
; stays in registers and is re-published through a small LDS ring; generated by my own scheduling script.
; @launch grid=(256,1,1) block=(256,1,1) lds=163840
.amdgcn_target "amdgcn-amd-amdhsa--gfx950"
.text
.globl {KNAME}
.p2align 8
.type {KNAME},@function
{KNAME}:
""" + "\n".join(body) + "\n" + "\n".join(finale()) + f"""
L_end:
    s_endpgm
.section .rodata,"a"
.p2align 6
.amdhsa_kernel {KNAME}
  .amdhsa_next_free_vgpr 512
  .amdhsa_next_free_sgpr 102
  .amdhsa_accum_offset 256
  .amdhsa_group_segment_fixed_size 0
  .amdhsa_kernarg_size 48
  .amdhsa_user_sgpr_count 2
  .amdhsa_user_sgpr_kernarg_segment_ptr 1
  .amdhsa_system_sgpr_workgroup_id_x 1
.end_amdhsa_kernel
"""
    open(sys.argv[1], "w").write(out)
main()
```

```python
import sys, struct, math, re
from core import *

class Cfg:
    dmap = "A"
    LK = 3
    LV = 2
    delta = 3
    noswap = True
    busy64 = True
    oflagsFA = "="
    oflagsFB = "="
    wr64 = False
    CUT = 10
    leadT = 11
    ta_slow = 250
    ta_fast = 90
    v0first = True
    dsmargin = 7
    st3 = 0
    jitfirst = True
    tq0 = 2
    tstep = 16
    st0 = 60
    tqstep = 10
    ownk = True
    emptybar = False
    shadowbr = True
    splitq = True
    lateA = 0
    lateB = 0
    wmargin = 7
    ymargin = 0
    touch = 0
    toucho = False
    touchkv = False
    order = ""
    nvbar = 1
    pads = 1
    padoff = 128
    k2g = 1
    ksT = 0
    pairld = False
    vc1 = False
    tlds = False
    tpk = False
    tx0 = 8
    txstep = 6
    exk = 5
    nvc = 32
    kvg = True
    ksd = 0
    gs = "246789"
    klin = True
    stE = 50
    drop = ""
    skew = 0
    repf = False
    early0 = 2
    e2T = 11
    e0g = 3
    pf1 = 8
    pf2 = 23
    pf3 = 9
    wbl2 = 0
    wbmask = 0x3e3
    pairst = False
    grow = 0
    stF0 = 20
    stFstep = 12
    jitstep = 2
    qstage = True
    sm0 = True
    tl0 = 6
    tlstep = 5
    wrn = 2
    kdoff = 14
    kstep = 8
    ldslat = 110
    qpf0 = 8
    lead = 0
    qflags = " nt"
    oflags = ""
    kvflags = " nt"
    pfflags = " nt"
    pf_period = 11
    stamps = 0
    spin = 0
    extra = 0
    dbg = -1
    force_fallback = False
    vahead = 2
    codepf = True
cfg = Cfg()
for a in sys.argv[2:]:
    k, v = a.split("=", 1)
    old = getattr(cfg, k)
    setattr(cfg, k, (v == "1") if isinstance(old, bool) else type(old)(v.replace("+", " ")))

if cfg.vc1: cfg.nvc = 0
KNAME = "standalone__mha_softmax__near_ridge_kernel"
SQ, SK, D = 1312, 512, 128
HEADQ = SQ * D * 2
HEADK = SK * D * 2
RING = 131072
CSCALE = struct.unpack("<I", struct.pack("<f", math.log2(math.e) / math.sqrt(D)))[0]

vO, vP, vS, vVf = 0, 160, 200, 208
vVA = 224
vHI, vLO = 226, 227
vKR, vKW, vQA, vOA, vPF, vIDX, vVD = 228, 229, 230, 231, 232, 233, 234
if cfg.ownk:
    assert cfg.noswap and not cfg.repf
    vOA = vQA if cfg.dmap == "A" else 255
    vKC = [228, 229, 235, 231]; vKW = 254
sX = [28, 46, 47, 48]
vT = 235
vKt = [236, 244]; vKx = [252, 253]
vW = [236, 240, 244]
vRI = 248
vL0, vL1, vDUM = 253, 254, 255
if vOA == 255:
    assert not cfg.vc1
    vDUM = 6
aQ, aST, aKf, aL, aSA = 0, 80, 208, 240, 252
def O(qs, b): return vO + 32 * qs + 4 * b
def P(T, qs): return vP + 20 * (T % 2) + 4 * qs
def S(c): return vS + 4 * (c % 2)
def Vf(f): return vVf + 4 * (f % 4)
def Q(qs, s): return aQ + 16 * qs + 4 * s
def Kf(blk, s): return aKf + 16 * blk + 4 * s
def ST(j, e): return aST + 8 * (j % 16) + 4 * e
def KA(T, blk, s): return ST(T, blk) if (cfg.ownk and s == 0) else Kf(blk, s)
def L(p): return aL + 4 * p
sQ, sK, sV, sO = 8, 12, 16, 20
sW = 24; sC = 25; sMASK = 26; sFAIL = 27; sBIT = 28; sCNT = 29
sOr = 30
sQn = 35
sKo, sVo, sM0 = 40, 41, 42
sT0, sT1, sT2 = 43, 44, 45
sLO, sRNG = 46, 47
sTS = 48
def off(s): return 64 * s if cfg.dmap == "A" else 128 * (s >> 1) + 16 * (s & 1)
GST = 16 if cfg.dmap == "A" else 32

DL = cfg.delta
TFIN = [1 << 30]
def act(T):
    if T < 0: return []
    if T < 16: return [0, 1, 2, 3, 4]
    if T >= TFIN[0] + DL: return []
    if T >= TFIN[0]: return [2, 3]
    if T < 16 + DL: return [0, 1]
    if DL and T >= 32 and (T % 16 == 0 or T % 16 == DL - 1): return [2, 3, 0, 1]
    return [0, 1, 2, 3]
def n_of(T): return len(act(T))
def phase(qs): return DL if qs in (2, 3) else 0
def isfirst(T, qs): return T == 0 or (T >= 16 and T % 16 == phase(qs))
def islast(T, qs): return T == 15 or (T > 16 + DL and (T + 1) % 16 == phase(qs))
def nextstart(T, qs):
    return 16 + phase(qs) if T == 15 else T + 1

def mfma(d, a, b, zero, dk="v", ak="a", bk="a"):
    D_, A_, B_ = R(dk, d, 4), R(ak, a, 4), R(bk, b, 4)
    return I(f"v_mfma_f32_16x16x32_bf16 {D_}, {A_}, {B_}, {'0' if zero else D_}", "mfma",
             rd=[A_, B_] + ([] if zero else [D_]), wr=[D_], acc=not zero)
def valu(text, rd, wr, kind="valu"): return I(text, kind, rd=rd, wr=wr)
def salu(text, rd=(), wr=()): return I(text, "salu", rd=rd, wr=wr)

class Item:
    __slots__ = ("ins", "after", "dead", "prio", "early", "tag", "placed", "T", "seq", "soft", "doff", "pace", "dabs", "nb")
    def __init__(self, ins, after=(), dead=None, early=None, tag="", prio=0, doff=0, pace=None):
        self.doff = doff; self.pace = pace; self.dabs = None; self.nb = None
        self.ins = ins; self.after = list(after); self.dead = dead; self.early = early
        self.tag = tag; self.prio = prio; self.placed = False

QKm, PVm, SMm, BARm, VCm = {}, {}, {}, {}, {}
def chain(T, g):
    a = act(T)
    if T == 15: return (g % 2, a[g // 2])
    if T == 0 and cfg.sm0: return [(0, 0), (1, 0), (0, 1), (1, 1), (0, 2), (1, 2), (0, 3), (0, 4), (1, 3), (1, 4)][g]
    return (g // len(a), a[g % len(a)])
def mk_step(T):
    for g in range(2 * n_of(T)):
        blk, qs = chain(T, g)
        for s in range(4):
            QKm[T, blk, qs, s] = mfma(S(g), KA(T, blk, s), Q(qs, s), s == 0)
    for b in range(8):
        for qs in act(T):
            PVm[T, b, qs] = mfma(O(qs, b), Vf(b), P(T, qs), isfirst(T, qs), ak="v", bk="v")
    for p in pairs(T):
        d, b = R("a", L(p), 4), R("v", P(T, pair_lo(p)), 8)
        SMm[T, p] = I(f"v_smfmac_f32_16x16x64_bf16 {d}, {R('a', aSA, 4)}, {b}, v{vIDX}", "smf",
                      rd=[d, b, R("a", aSA, 4), f"v{vIDX}"], wr=[d], acc=True)
def pair_of(qs): return 2 if qs == 4 else qs // 2
def pairs(T):
    out = []
    for qs in act(T):
        if pair_of(qs) not in out: out.append(pair_of(qs))
    return out
def pair_lo(p): return 3 if p == 2 else 2 * p
def pvlist(T): return [PVm[T, b, qs] for b in range(8) for qs in act(T)]
firstm = {}
VC1 = {(T, dh): mfma(Kf(1, 0), Kf(0, 0), Kf(0, 0), T == 0 and dh == 0, dk="a") for T in range(16) for dh in range(2)}

def backbone_period(T):
    tail = n_of(T) == 0
    pv = pvlist(T - 2)[-4:] + (pvlist(T - 1) if tail else pvlist(T - 1)[:-4])
    sm = [SMm[T - 1, p] for p in pairs(T - 1)]
    out = []
    if tail:
        out += pv[:6] + sm + pv[6:] + [VCm[j] for j in range(cfg.nvc)]
        for k, m in enumerate(out): m.pref = "T" if (k < 4) else "D"
        firstm[T] = out[0]
        return out
    n = n_of(T); G = 2 * n
    lead = cfg.leadT if T == 16 else cfg.lead if (T > 16 and any(islast(T - 1, q) for q in act(T - 1))) else 0
    if lead:
        nl = 4 * lead
        head = pv[:nl]; pv = pv[nl:]
        if lead >= 2:
            head = head[:4] + [sm[0]] + head[4:8] + sm[1:] + head[8:]
            sm = []
        for k, m in enumerate(head): m.pref = "T" if k < 4 else "D"
        out += head
    if T == 1: cnt = [0] + [4] * (G - 1)
    elif len(pv) < 4 * G and not lead:
        r = len(pv) - 4; cnt = [min(4, len(pv))] + [r // (G - 1) + (1 if g < r % (G - 1) else 0) for g in range(G - 1)] if len(pv) >= 4 else [0] * G
    else:
        cnt = [len(pv) // G + (1 if g < len(pv) % G else 0) for g in range(G)]
    smpos = {}
    if sm:
        early = any(islast(T - 1, q) for q in act(T - 1)) and len(sm) > 1
        spots = [0 if early else 1, G // 2 + 1, G - 2]
        for m, g in zip(sm, spots): smpos.setdefault(min(g, G - 1), []).append(m)
    if cfg.vc1 and 1 <= T < 16:
        for dh in range(2):
            smpos.setdefault(6 + 2 * dh, []).append(VC1[T, dh])
            if T == 1: smpos.setdefault(2 + 2 * dh, []).append(VC1[0, dh])
    k = 0
    for g in range(G):
        blk, qs = chain(T, g)
        grp = [QKm[T, blk, qs, s] for s in range(4)] + pv[k:k + cnt[g]]
        k += cnt[g]
        L_ = len(grp)
        for j, m in enumerate(grp):
            m.pref = "T" if (L_ >= 8 and j % 2 == 0 and j < 8) or (L_ < 8 and j in {4: (0, 1, 2, 3), 5: (0, 1, 3, 4), 6: (0, 2, 3, 5), 7: (0, 2, 4, 6)}[L_]) else "D"
        out += grp
        for m in smpos.get(g, []):
            m.pref = "D"; out.append(m)
    firstm[T] = out[0]
    return out

items = []
glue = {}
curT = [-200]
ordn = {}
def add(ins, **kw):
    it = Item(ins, **kw); ordn[curT[0]] = ordn.get(curT[0], 0) + 1; it.T = (curT[0], ordn[curT[0]]); it.seq = len(items); items.append(it); return it

cvts = {}
def items_softmax(T):
    n = n_of(T)
    for g in range(2 * n):
        blk, qs = chain(T, g)
        last = QKm[T, blk, qs, 3]
        if g + 2 < 2 * n: nxt = QKm[(T,) + chain(T, g + 2) + (0,)]
        elif n_of(T + 1): nxt = QKm[(T + 1,) + chain(T + 1, g + 2 - 2 * n) + (0,)]
        else: nxt = None
        use = PVm[T, 0, qs]
        ng = QKm[(T,) + chain(T, g + 1) + (0,)] if g + 1 < 2 * n else firstm[T + 1]
        sms = [SMm[T, p] for p in pairs(T) if pair_lo(p) <= qs <= pair_lo(p) + 1]
        ex = []
        for r in range(4):
            v = f"v{S(g)+r}"
            ex.append(add(valu(f"v_exp_f32 {v}, {v}", [v], [v], "trans"), after=[(last, 8), (ng, 0)] + ([(ex[-1].ins, 0)] if ex else []),
                          dead=[nxt, use], tag="sm"))
        for h in range(2):
            d = f"v{P(T, qs) + 2*blk + h}"; a, b = f"v{S(g)+2*h}", f"v{S(g)+2*h+1}"
            aft = [(ex[2*h].ins, 1), (ex[2*h+1].ins, 1)]
            if qs in act(T - 2): aft.append((PVm[T - 2, 7, qs], 0))
            aft += [(SMm[T - 2, p], 0) for p in pairs(T - 2) if pair_lo(p) <= qs <= pair_lo(p) + 1]
            it = add(valu(f"v_cvt_pk_bf16_f32 {d}, {a}, {b}", [a, b], [d]), after=aft, dead=[nxt, use] + sms, tag="sm")
            pwriters.setdefault((T, P(T, qs)), []).append(it)
pwriters = {}

kreads = {}
def bar_pub(T):
    return BARm[T - 1] if T < 16 else BARm[(T // 2) * 2 - 1]
def items_kread(T):
    n = n_of(T)
    for blk in range(2):
        for s in range(4):
            if cfg.ownk and s == 0 and T >= 16: continue
            d = R("a", KA(T, blk, s), 4)
            if cfg.ownk: ins = I(f"ds_read_b128 {d}, v{vKC[s]} offset:{(T % 4) * 8192 + blk * 4096}", "dsr", rd=[f"v{vKC[s]}"], wr=[d])
            else: ins = I(f"ds_read_b128 {d}, v{vKR} offset:{(T % 4) * 8192 + (4*blk+s) * 1024}", "dsr", rd=[f"v{vKR}"], wr=[d])
            aft = [(bar_pub(T), 0)]
            if T >= 1 and not (cfg.ownk and s == 0): aft.append((QKm[T - 1, blk, act(T - 1)[-1], s], 0))
            dl = [QKm[T, blk, act(T)[0], 0]]
            if blk == 1 and T % 2 == 1 and T != 15 and T in BARm: dl.append(BARm[T])
            kreads[T, blk, s] = add(ins, after=aft, dead=dl, tag="qk", prio=-12, doff=cfg.ymargin if len(dl) > 1 else 0)
vreads = {}
vtog = {}
def vbar(T):
    if T == 0: return BARm["V0"]
    return BARm.get(f"V{T}", BARm[T])
def vsel(b):
    return ((b >> 1) & 1, b >> 2, 8 * (b & 1)) if cfg.noswap else (b & 3, b >> 2, 0)
NVA = 2 if cfg.noswap else 4
def items_vread(T):
    for b in range(8):
        f = 8 * T + b
        pT, pb = divmod(f - 4, 8)
        aft = []
        if f >= 4: aft.append((PVm[pT, pb, act(pT)[-1]], 0))
        va = cfg.vahead if n_of(T) > 2 else 3
        aT, ab = divmod(f - va - 1, 8)
        if f - va - 1 >= 0: aft.append((PVm[aT, ab, act(aT)[-1]], 0))
        if T < 16: aft.append((vbar(T), 0))
        c, dh, e8 = vsel(b)
        if T % 8 == 0 and T > 0 and dh == 0: aft.append((vtog[T, c].ins, 0))
        prev = None
        for blk in range(2):
            d = R("v", Vf(f) + 2 * blk, 2)
            ins = I(f"ds_read_b64_tr_b16 {d}, v{vVA+c} offset:{dh*32768 + (T % 8)*4096 + blk*2048 + e8}", "dsr",
                    rd=[f"v{vVA+c}"], wr=[d])
            vreads[T, b, blk] = add(ins, after=aft + ([(prev, 0)] if prev else []), dead=[PVm[T, b, act(T)[0]]], tag="v", prio=-12)
            prev = ins
def items_vtoggle(T):
    for c in range(NVA):
        v = f"v{vVA+c}"
        use = [b for b in range(8) if vsel(b)[0] == c]
        vtog[T, c] = add(valu(f"v_xor_b32 {v}, 0x10000, {v}", [v], [v]), after=[(vreads[T - 1, b, 1].ins, 0) for b in use],
                         dead=[PVm[T, use[0], act(T)[0]]], tag="v", prio=-24, doff=cfg.dsmargin + 4)

kwrites = {}
kloads = {}
def busy(T):
    return T < 26 or T >= TFIN[0] or (T % 16) in (2, 3, 4, 5, 6, 7, 8, 9)
KWE = 128 if cfg.klin else 1024
def items_kwrite(T):
    m = T // 2
    if T < 16: opn, cls = BARm[max(T - 3, -1)], BARm[T - 1]
    else: opn, cls = BARm[2 * m - 3], BARm[2 * m - 1]
    ws = []
    def wr(src, r, nreg, **kw):
        x = R(src[0], src[1] + r, nreg)
        ad, st_ = (vKC[0], 4096) if (cfg.ownk and T >= 16) else (vKW, KWE)
        return add(I(f"ds_write_b{32*nreg} v{ad}, {x} offset:{(T % 4)*8192 + (r//4)*st_ + (r % 4)*4}", "dsw", rd=[f"v{ad}", x],
                     cost={1: 8, 2: 12, 4: 26}[nreg]), tag="qk", **kw)
    nr = cfg.wrn
    if T < 16:
        st = vKt[T % 2]
        prev_w = kwrites.get(T - 2)
        done = []
        for r in range(8):
            a = f"a{ST(T, 0) + r}"; x = f"v{st + r}"; t = f"v{vKx[r % 2]}"
            do = (cfg.kdoff + (7 - r) * cfg.kstep) if T >= 2 else 2 + (7 - r)
            kw = dict(dead=[cls], tag="qk", doff=do + 2)
            aft = [(kloads[T][r // 4], 0)]
            if prev_w: aft.append((prev_w[r * len(prev_w) // 8].ins, 0))
            aft.append(((start_of(T - 1) if T <= cfg.ksT else mid_of(T - 2)) if T >= 3 else (QKm[0, 0, 4, 3] if cfg.k2g < 0 else QKm[1, 0, cfg.k2g, 0]) if T == 2 else QKm[0, 0, 1, 3], 0))
            if not cfg.kvg: aft = [(add(valu(f"v_accvgpr_read_b32 {x}, {a}", [a], [x]), after=aft, prio=-5, **kw).ins, 0)]
            i1 = add(valu(f"v_lshlrev_b32 {t}, 16, {x}", [x], [t]), after=aft + ([(chain_prev[r % 2], 0)] if chain_prev[r % 2] else []), prio=-4, **kw)
            i2 = add(valu(f"v_and_b32 {x}, s{sMASK}, {x}", [x, f"s{sMASK}"], [x]), after=[(i1.ins, 0)], prio=-3, **kw)
            i3 = add(valu(f"v_mul_f32 {t}, s{sC}, {t}", [t, f"s{sC}"], [t]), after=[(i1.ins, 0)], prio=-2, **kw)
            i4 = add(valu(f"v_mul_f32 {x}, s{sC}, {x}", [x, f"s{sC}"], [x]), after=[(i2.ins, 0)], prio=-1, **kw)
            i5 = add(valu(f"v_cvt_pk_bf16_f32 {x}, {t}, {x}", [t, x], [x]), after=[(i3.ins, 0), (i4.ins, 0)], prio=0, **kw)
            chain_prev[r % 2] = i5.ins; done.append(i5.ins)
            if r % nr == nr - 1:
                ws.append(wr(("v", st), r - nr + 1, nr, after=[(opn, 0)] + [(x_, 0) for x_ in done[-nr:]], dead=[cls], doff=max(do - 8, 1)))
        rb = []
        for e in range(0 if cfg.ownk else 2):
            d = R("a", ST(T, e), 4)
            ins = I(f"ds_read_b128 {d}, v{vKW} offset:{(T % 4)*8192 + e*1024}", "dsr", rd=[f"v{vKW}"], wr=[d])
            rb.append(add(ins, after=[(w_.ins, 0) for w_ in ws[e * len(ws) // 2:(e + 1) * len(ws) // 2]], dead=[BARm[T]], tag="qk", prio=0))
        readback[T] = rb
        if cfg.kvg:
            assert cfg.ownk and cfg.LK == 3
            for e, it in enumerate(kload_items.get(T + 2, [])): it.after += [(w_.ins, 0) for w_ in ws[e * len(ws) // 2:(e + 1) * len(ws) // 2]]
    else:
        nw_ = 8 // nr
        for k in range(nw_):
            ws.append(wr(("a", ST(T, 0)), k * nr, nr, after=[(opn, 0)] + ([(ws[-1].ins, 0)] if ws else ([(kwrites[T-1][-1].ins, 0)] if T % 2 else [])),
                         dead=[cls], pace=(opn, ((T % 2) * nw_ + k + 1) / (2.0 * nw_))))
    kwrites[T] = ws
chain_prev = [None, None]
readback = {}
def mid_of(T): return QKm[(T,) + chain(T, n_of(T)) + (0,)]
def bar_spot(T): return QKm[0, 0, 4, 3] if T == 0 else QKm[(T,) + chain(T, n_of(T) - 1) + (3,)]
def start_of(T): return QKm[(T,) + chain(T, 0) + (0,)]

def kload_ins(j):
    out = []
    for e in range(2):
        d = R("v", vKt[j % 2] + 4 * e, 4) if cfg.kvg else R("a", ST(j, e), 4)
        va, o_ = (vVD, 2048 * e) if cfg.klin else (vQA, off(1) * e)
        out.append(I(f"buffer_load_dwordx4 {d}, v{va}, s[{sK}:{sK+3}], s{sKo} offen offset:{o_}{cfg.kvflags}", "vld",
                     rd=[f"v{va}", f"s{sKo}", f"s[{sK}:{sK+3}]"], wr=[d]))
        out[-1].fast = cfg.klin
    return out
def vdma_ins(j):
    out = []
    for dh in range(2):
        m0 = (j >> 3) * 65536 + dh * (32768 - 128) + (j & 7) * 4096
        out.append((salu(f"s_add_u32 m0, s{sM0}, {m0}", [f"s{sM0}"], ["m0", "scc"]),
                    I(f"buffer_load_dwordx4 v{vVD}, s[{sV}:{sV+3}], s{sVo} offen offset:{128*dh}{cfg.kvflags} lds", "dma",
                      rd=[f"v{vVD}", f"s{sVo}", "m0", f"s[{sV}:{sV+3}]"])))
    return out
vdmas = {}
last_vm = [None]
def add_kload(j, after, dead):
    up = add(salu(f"s_add_u32 s{sKo}, s{sKo}, 8192", [f"s{sKo}"], [f"s{sKo}", "scc"]),
             after=after + ([(last_vm[0], 0)] if last_vm[0] else []), dead=dead, tag="ld", prio=-30)
    ins = kload_ins(j); kloads[j] = ins
    prev = up.ins
    for x in ins:
        kload_items.setdefault(j, []).append(add(x, after=[(prev, 0)], dead=dead, tag="ld", prio=-25)); prev = x
    last_vm[0] = prev
kload_items = {}
def add_vdma(j, after, dead):
    prev = last_vm[0]
    if j > 0:
        prev = add(salu(f"s_add_u32 s{sVo}, s{sVo}, 8192", [f"s{sVo}"], [f"s{sVo}", "scc"]),
                   after=after + ([(prev, 0)] if prev else []), dead=dead, tag="ld", prio=-30).ins
    vdmas[j] = []
    for sm0, dm in vdma_ins(j):
        add(sm0, after=after + [(prev, 0)], dead=dead, tag="ld", prio=-28)
        add(dm, after=[(sm0, 1)], dead=dead, tag="ld", prio=-25); prev = dm
        vdmas[j].append(dm)
    last_vm[0] = prev
def items_loads(T):
    if T == 0:
        def spot(g): return QKm[(0,) + chain(0, g) + (0,)], QKm[(0,) + chain(0, g) + (1,)]
        a, d = spot(0)
        prev = last_vm[0]
        for x in q0load(4):
            add(x, after=[(a, 0)] + ([(prev, 1 if x.kind == "dma" else 0)] if prev else []), dead=[d], tag="ld", prio=-50); prev = x
        last_vm[0] = prev
        gs = [int(c) for c in cfg.gs] if cfg.sm0 else [1, 2, 3, 4, 5, 7]
        kj, vj = 2, 0
        if cfg.order:
            for tok in cfg.order.split(","):
                a, d = spot(int(tok[2]))
                if tok[0] == "V": add_vdma(int(tok[1]), [(a, 0)], [d])
                elif tok[1] == "3": add_kload(3, [], [spot(9)[0]])
                else: add_kload(int(tok[1]), [(a, 0)], [d])
            kj, vj = 99, 99
        while kj <= cfg.LK or vj <= cfg.LV:
            a, d = spot(gs.pop(0) if len(gs) > 1 else gs[0])
            if cfg.v0first and vj <= cfg.LV: add_vdma(vj, [(a, 0)], [d]); vj += 1
            if kj <= cfg.LK and not (cfg.kvg and kj == 3): add_kload(kj, [(a, 0)], [d]); kj += 1
            if not cfg.v0first and vj <= cfg.LV: add_vdma(vj, [(a, 0)], [d]); vj += 1
            if cfg.kvg and kj == 3 and vj > cfg.LV: add_kload(3, [], [spot(9)[0]]); kj += 1
        if cfg.qstage:
            for qs in range(5):
                g0 = [chain(0, g) for g in range(10)].index((0, qs))
                aft = [(QKm[(0,) + chain(0, g0 - 1) + (3,)], 0)] if g0 else []
                for s_ in range(4):
                    d_ = R("a", Q(qs, s_), 4)
                    x = I(f"ds_read_b128 {d_}, v{vQR+s_} offset:{qs*4096}", "dsr", rd=[f"v{vQR+s_}"], wr=[d_], needs=qdmas[qs])
                    x.block = True
                    if cfg.pads and qs == 1 and s_ == 0:
                        wu = I("; WARM_UP", "br", cost=4)
                        add(wu, after=aft, dead=[QKm[0, 0, qs, 0]], tag="ld", prio=-200)
                        aft = aft + [(wu, 0)]
                    add(x, after=aft + [(z, 0) for z in qdmas[qs]], dead=[QKm[0, 0, qs, 0]], tag="ld", prio=-100)
        return
    assert cfg.LV <= 3 or not cfg.qstage
    x0, x1 = min(T - 1, cfg.grow), min(T, cfg.grow)
    if x1 > x0 and T + cfg.LV + x0 < 16: add_vdma(T + cfg.LV + x0, [(start_of(T), 0)], [mid_of(T)])
    for j in range(T + cfg.LK + x0, T + cfg.LK + x1 + 1):
        if j < 16: add_kload(j, [(start_of(T), 0)], [start_of(T + 1)])
    if T + cfg.LV + x1 < 16: add_vdma(T + cfg.LV + x1, [(mid_of(T), 0)], [mid_of(T + 1)])

QSTG = 49152
vQD, vQR = 8, 12
sQS = 5
qdmas = {}
def q0load(qs):
    if not cfg.qstage: return qload_ins(qs)
    out = [salu(f"s_add_u32 m0, s{sQS}, {qs*4096}", [f"s{sQS}"], ["m0", "scc"])]
    qdmas[qs] = [I(f"buffer_load_dwordx4 v{vQD+j}, s[{sQ}:{sQ+3}], s{sQn+qs} offen offset:{1024*j}{cfg.qflags} lds", "dma",
                   rd=[f"v{vQD+j}", f"s{sQn+qs}", "m0", f"s[{sQ}:{sQ+3}]"]) for j in range(4)]
    return out + qdmas[qs]
def qload_ins(qs, dst=None):
    out = []
    for s in range(4):
        d = R("a", Q(qs, s), 4) if dst is None else R(dst[s][0], dst[s][1], 4)
        if cfg.ownk:
            out.append(I(f"s_add_u32 s{sT0}, s{sQn+qs}, s{sX[s]}\n    buffer_load_dwordx4 {d}, v{vQA}, s[{sQ}:{sQ+3}], s{sT0} offen{cfg.qflags}", "vld",
                         rd=[f"v{vQA}", f"s{sQn+qs}", f"s[{sQ}:{sQ+3}]"], wr=[d]))
            continue
        out.append(I(f"buffer_load_dwordx4 {d}, v{vQA}, s[{sQ}:{sQ+3}], s{sQn+qs} offen offset:{off(s)}{cfg.qflags}", "vld",
                     rd=[f"v{vQA}", f"s{sQn+qs}", f"s[{sQ}:{sQ+3}]"], wr=[d]))
    return out
def items_qjit():
    prev = None
    early = {}
    if cfg.early0:
        kw_ = lambda t: [(x.ins, 0) for x in kwrites[t]]
        bufs = [(("v", 236 + 4 * k), kw_(14) + (kw_(15) if (k >= 2 or cfg.early0 == 1) else [])) for k in range(4)]
        if cfg.early0 == 2:
            assert cfg.ownk and not cfg.vc1
            bufs = [(("a", Kf(k, 0)), [(vdmas[cfg.e2T + cfg.LV][-1], 0)]) for k in range(2)] + bufs
        for k, (bf_, aft) in enumerate(bufs):
            qs, s_ = divmod(k, 4); early[qs, s_] = bf_
            ins = qload_ins(qs, [bf_] * 4)[s_]
            add(ins, after=aft + ([(prev, 0)] if prev else []), dead=[start_of(15)], tag="qj", prio=-400)
            prev = ins
            for r in range(4):
                d, a_ = f"a{Q(qs, s_) + r}", f"{bf_[0]}{bf_[1] + r}"
                op = "v_accvgpr_write_b32" if bf_[0] == "v" else "v_accvgpr_mov_b32"
                add(valu(f"{op} {d}, {a_}", [a_], [d]), after=[(QKm[15, 1, qs, s_], 0), (QKm[15, 0, cfg.e0g, 0], 0)], dead=[firstm[16]], tag="qc", prio=-3)
    for qs in range(4):
        for s_, ins in enumerate(qload_ins(qs)):
            if (qs, s_) in early: continue
            T1 = nextstart(15, qs)
            dl = [QKm[T1, 0, qs, 0]] + ([firstm[16]] if T1 == 16 and cfg.jitfirst else [])
            it = add(ins, after=[(QKm[15, 1, qs, s_], 0)] + ([(prev, 0)] if prev else []), dead=dl, tag="qj", prio=-400)
            if T1 > 16 and cfg.pairld and s_ % 2: qjit_b[-1].after.append(it.after[0]); glue[id(prev)] = it
            if T1 > 16: qjit_b.append(it)
            elif cfg.jitstep: it.dabs = (QKm[15, 1, qs, 3], 1 + cfg.jitstep * (s_ - len([1 for e in early if e[0] == qs])))
            prev = ins
qjit_b = []
early_done = []
UNITS = [O(4, b) for b in range(8)] + [P(0, 4), P(1, 4), 236, 240, 244]
QBUF = {(qs, s_): ("v", UNITS[4 * qs + s_]) for qs in range(3) for s_ in range(4)}
QBUF.update({(3, s_): ("a", Q(4, s_)) for s_ in range(4)})
unit_free = {}
def items_qpf(base):
    prev = None; hist_ = []
    for qs in range(4):
        T = base + 15 + phase(qs)
        lds_ = qload_ins(qs, [QBUF[qs, s_] for s_ in range(4)])
        for s_, ins in enumerate(lds_):
            k = 4 * qs + s_
            curT[0] = base + cfg.CUT
            pre_ = []
            if cfg.ownk and cfg.splitq:
                a_t, l_t = ins.text.split("\n    ")
                sr = f"s{sT0 if k % 2 == 0 else sT1}"
                ins.text = l_t.replace(f"s{sT0} offen", f"{sr} offen")
                sa = add(salu(a_t.replace(f"s{sT0},", f"{sr},", 1), [], [sr, "scc"]), after=[(rowadv_done[base], 0)] + ([(hist_[-2], 0)] if k >= 2 else []),
                         dead=[start_of(base + 14) if qs < 2 else firstm[base + 16]], tag="qp", prio=-300 + k)
                pre_ = [(sa.ins, 0)]
            hist_.append(ins)
            it_ = add(ins, after=pre_ + [(rowadv_done[base], 0)] + ([(prev, 0)] if prev else []),
                dead=[start_of(base + 14) if qs < 2 else firstm[base + 16]], tag="qp", prio=-200 + k)
            if cfg.pairld and s_ % 2: glue[id(prev)] = it_
            prev = ins
            kind, r0 = QBUF[qs, s_]
            curT[0] = T
            if (T, 1, qs, s_) not in QKm or (T + 1, 0, qs, s_) not in QKm: continue
            for r in range(4):
                d, a_ = f"a{Q(qs, s_) + r}", f"{kind}{r0 + r}"
                op = "v_accvgpr_write_b32" if kind == "v" else "v_accvgpr_mov_b32"
                c = add(valu(f"{op} {d}, {a_}", [a_], [d]), after=[(QKm[T, 1, qs, s_], 0)], dead=[QKm[T + 1, 0, qs, s_]], tag="qc", prio=-3, doff=1)
                if kind == "v": unit_free.setdefault((base, r0), []).append((c.ins, 0))
rowadv_done = {}
sWS = 52
vc_store = []
def items_vcheck():
    assert cfg.ownk
    va = f"v{vPF}"; d = R("a", Kf(0, 0), 4); prev = None; tg = None
    for T in range(16):
        if T == 8: tg = add(valu(f"v_xor_b32 {va}, 0x10000, {va}", [va], [va]), after=[(rd_, 0)], dead=[VC1[8, 0]], tag="vc", doff=14).ins
        for dh in range(2):
            rd_ = I(f"ds_read_b128 {d}, {va} offset:{dh*32768 + (T % 8)*4096}", "dsr", rd=[va], wr=[d], needs=vdmas[T])
            add(rd_, after=[(vbar(T), 0)] + ([(prev, 0)] if prev else []) + ([(tg, 0)] if T == 8 else []), dead=[VC1[T, dh]], tag="vc", prio=-12)
            prev = VC1[T, dh]
    x, y = f"v{vDUM}", f"v{vVD}"; p_ = (prev, 12)
    a = Kf(1, 0)
    sq = [(f"v_accvgpr_read_b32 {x}, a{a}", [f"a{a}"], [x]), (f"v_and_b32 {x}, 0x7fffffff, {x}", [x], [x])]
    for k in range(1, 4):
        sq += [(f"v_accvgpr_read_b32 {y}, a{a+k}", [f"a{a+k}"], [y]), (f"v_and_b32 {y}, 0x7fffffff, {y}", [y], [y]), (f"v_max_u32 {x}, {x}, {y}", [x, y], [x])]
    for tx, r_, w_ in sq: p_ = (add(valu(tx, r_, w_), after=[p_], dead=[start_of(23)], tag="vc").ins, 0)
    blk = I("\n    ".join([f"v_cmp_le_u32 vcc, 0x5d800000, {x}    ; sum of squares >= 2^60 (or NaN)", "s_nop 4", "s_cbranch_vccz L_vok",
                           f"v_mov_b32 {x}, 1", f"buffer_store_byte {x}, off, s[{sWS}:{sWS+3}], s2", "s_waitcnt vmcnt(0)"]) + "\nL_vok:",
            "br", rd=[x], wr=[x, "vcc"], cost=32)
    add(blk, after=[p_], dead=[start_of(24)], tag="vc", doff=1)
def items_codepf(T, label):
    t = f"v{vDUM}"
    a = add(salu(f"s_lshl_b32 s{sT2}, s{sW}, 13\n    s_add_u32 s{sT2}, s{sT2}, {label} - L_pf - {RING * 8}", [], [f"s{sT2}", "scc"]), after=[(start_of(T), 0)], dead=[mid_of(T)], tag="pf")
    a.ins.cost = 8
    b = add(valu(f"v_lshl_add_u32 {t}, v{vKR}, 3, s{sT2}", [f"v{vKR}", f"s{sT2}"], [t]), after=[(a.ins, 0)], dead=[mid_of(T)], tag="pf")
    c = add(valu(f"v_min_u32 {t}, L_end - L_pf, {t}", [t], [t]), after=[(b.ins, 0)], dead=[mid_of(T)], tag="pf")
    x = I(f"global_load_dword v{vDUM}, {t}, s[50:51]", "vld", rd=[t], wr=[f"v{vDUM}"]); x.nowait = True
    add(x, after=[(c.ins, 0)], dead=[start_of(T + 1)], tag="pf")
def items_rowadv(T):
    for qs in range(4):
        a = add(salu(f"s_add_u32 s{sOr+qs}, s{sOr+qs}, {'s3' if cfg.extra else 65536}", [f"s{sOr+qs}"], [f"s{sOr+qs}", "scc"]), after=[(start_of(T), 0)], dead=[mid_of(T)], tag="adv", prio=0)
        b = add(salu(f"s_add_u32 s{sQn+qs}, s{sOr+qs}, {'s4' if cfg.extra else 65536}" + ("\n    s_mov_b32 s3, s4\n    s_cmp_le_u32 s%d, 5\n    s_cselect_b32 s4, 0x10000, 0" % sCNT if cfg.extra and qs == 3 else ""), [f"s{sOr+qs}"], [f"s{sQn+qs}", "scc"]),
                after=[(a.ins, 0)] + ([(rowadv_done[T - T % 16], 0)] if qs else []), dead=[mid_of(T)], tag="adv", prio=0)
        rowadv_done[T - T % 16] = b.ins

lprev = []
def items_epilogue(T, endins):
    slots = sorted(q for q in act(T) if islast(T, q))
    base = (T + 1) // 16 * 16 - 16
    ri = {}
    def over(b, qs):
        T1 = nextstart(T, qs)
        return PVm[T1, b, qs] if qs in act(T1) and qs != 4 else endins
    xs = []
    for qs in slots:
        p = pair_of(qs); h = 1 if qs == 4 else qs % 2
        la, lb = f"a{L(p) + 2*h}", f"a{L(p) + 2*h + 1}"
        x, y, r = f"v{vL0 if qs % 2 == 0 else vPF}", f"v{vL1}", f"v{vRI+qs}"
        kw = dict(dead=[over(0, qs), endins], tag="ep", prio=-400)
        pa = [(z, 0) for z in lprev]
        i0 = add(valu(f"v_accvgpr_read_b32 {x}, {la}", [la], [x]), after=[(SMm[T, p], 12)] + pa, **kw)
        i1 = add(valu(f"v_accvgpr_read_b32 {y}, {lb}", [lb], [y]), after=[(SMm[T, p], 12)] + pa, **kw)
        i2 = add(valu(f"v_add_f32 {x}, {x}, {y}", [x, y], [x]), after=[(i0.ins, 0), (i1.ins, 0)], **kw)
        i3 = add(valu(f"v_rcp_f32 {r}, {x}", [x], [r], "trans"), after=[(i2.ins, 0)], **kw)
        ri[qs] = i3.ins; xs.append((x, i2.ins, i3.ins))
        lprev[:] = [i2.ins]
        if qs % 2 == 1 or qs == 4:
            src = ", ".join(z[0] for z in xs); nm = "3" if len(xs) == 2 else ""
            kw = dict(dead=[endins], tag="ep", prio=-300)
            c1 = add(valu(f"v_max{nm}_u32 v{vHI}, v{vHI}, {src}", [f"v{vHI}"] + [z[0] for z in xs], [f"v{vHI}"]), after=[(z[1], 0) for z in xs], **kw)
            c2 = add(valu(f"v_min{nm}_u32 v{vLO}, v{vLO}, {src}", [f"v{vLO}"] + [z[0] for z in xs], [f"v{vLO}"]), after=[(z[1], 0) for z in xs], **kw)
            lprev[:] = [c1.ins, c2.ins] + [z[2] for z in xs]; xs = []
        T1 = nextstart(T, qs)
        if qs in act(T1) and qs != 4:
            for reg in (la, lb):
                add(valu(f"v_accvgpr_write_b32 {reg}, 0", [], [reg]), after=[(i0.ins, 0), (i1.ins, 0)], dead=[SMm[T1, p], endins], tag="ep", prio=0, doff=1)
    if T == 15:
        def pfree(t, q): return [(PVm[t, 7, q], 0)] + [(SMm[t, p], 0) for p in pairs(t) if pair_lo(p) <= q <= pair_lo(p) + 1]
        pool = [(u, []) for u in (236, 240, 244)] + [(P(14, q), pfree(14, q)) for q in ((4, 2, 3) if DL else (4,))]
        if DL: pool += [(P(15, q), pfree(15, q)) for q in (2, 3)]
    elif slots[0] == 0: pool = [(u, unit_free.get((base, u), [])) for u in (UNITS[:8] if DL else UNITS[-1:] + UNITS[:-1])]
    else: pool = [(u, unit_free.get((base, u), [])) for u in UNITS[12:] + UNITS[8:12] + UNITS[:8]]
    inplace = [q for q in slots if (q == 4 or (T == 15 and phase(q)))] if not endins.text.startswith("; end") else slots
    def seq(sl):
        if cfg.pairst: return [(2 * pp + e, qs) for pp in range(2) for qs in sl for e in range(2)]
        return [(pb, qs) for pb in range(4) for qs in sl]
    order = seq([q for q in slots if q not in inplace]) + seq(inplace)
    tl = cfg.tlds and endins.text.startswith("; end")
    if tl:
        order = [(2 * hf + e, qs) for hf in range(2) for qs in slots for e in range(2)]
        tW, tR, tO = [176, 177], 178, 179
        RB = [[P(0, 0), P(0, 1)], [P(1, 0), P(1, 1)]]
        m_, x_, y_ = "v178", "v176", "v177"
        seqs = [(f"v_mbcnt_lo_u32_b32 {m_}, -1, 0", [], [m_]), (f"v_mbcnt_hi_u32_b32 {m_}, -1, {m_}", [m_], [m_]),
                (f"v_lshrrev_b32 {x_}, 3, {m_}", [m_], [x_]), (f"v_xor_b32 {y_}, {x_}, {m_}", [x_, m_], [y_]), (f"v_and_b32 {y_}, 7, {y_}", [y_], [y_]),
                (f"v_lshlrev_b32 {y_}, 4, {y_}", [y_], [y_]), (f"v_lshl_add_u32 v{tO}, {x_}, 8, {y_}", [x_, y_], [f"v{tO}"]),
                (f"v_lshrrev_b32 {x_}, 4, {m_}", [m_], [x_]), (f"v_xor_b32 {x_}, {x_}, {m_}", [x_, m_], [x_]), (f"v_and_b32 {x_}, 7, {x_}", [x_], [x_]),
                (f"v_and_b32 {y_}, 15, {m_}", [m_], [y_]), (f"v_lshlrev_b32 {y_}, 3, {y_}", [y_], [y_]), (f"v_add_lshl_u32 {x_}, {x_}, {y_}, 4", [x_, y_], [x_]),
                (f"v_add_u32 {x_}, s{sT2}, {x_}", [x_], [x_]), (f"v_xor_b32 {y_}, 64, {x_}", [x_], [y_]),
                (f"v_lshl_add_u32 {m_}, {m_}, 4, s{sT2}", [m_], [m_])]
        pv_ = add(salu(f"s_lshl_b32 s{sT2}, s{sW}, 12\n    s_add_u32 s{sT2}, s{sT2}, {RING}", [], [f"s{sT2}", "scc"]), dead=[firstm[T + 1]], tag="ep").ins
        for tx, rd_, wr_ in seqs: pv_ = add(valu(tx, rd_, wr_), after=[(pv_, 0)], dead=[firstm[T + 1]], tag="ep").ins
        tready = pv_; tws = []; trd = {}; tst = {}
    sts = []
    ofl = cfg.oflags
    if T >= TFIN[0] - 1:
        f_ = cfg.oflagsFA if slots[0] == 0 else cfg.oflagsFB
        if f_ != "=": ofl = f_
    for k, (pb, qs) in enumerate(order):
        inp = qs in inplace
        w, wa = (O(qs, 2 * pb), []) if inp else pool.pop(0)
        cv = []
        for e in range(2):
            b = 2 * pb + e
            kw = dict(dead=[over(2 * pb if inp else b, qs), endins], tag="ep", prio=(-200 + 4 * k) if inp else 0)
            ms = []
            for r in range(4):
                v = f"v{O(qs, b) + r}"
                if tl and cfg.tpk:
                    if r % 2: ms.append(ms[-1]); continue
                    v2 = R("v", O(qs, b) + r, 2); rp = (vRI + qs) & ~1; hi = (vRI + qs) & 1
                    ms.append(add(valu(f"v_pk_mul_f32 {v2}, {v2}, v[{rp}:{rp+1}] op_sel:[0,{hi}] op_sel_hi:[1,{hi}]", [v2, f"v{vRI+qs}"], [v2]),
                                  after=[(PVm[T, b, qs], 8), (PVm[T, 7, act(T)[-1]], 0), (ri[qs], 1)], **kw))
                    continue
                ms.append(add(valu(f"v_mul_f32 {v}, {v}, v{vRI+qs}", [v, f"v{vRI+qs}"], [v]), after=[(PVm[T, b, qs], 8), (ri[qs], 1)], **kw))
            for h in range(2):
                d = f"v{w + 2*e + h}"; a_, b_ = f"v{O(qs, b) + 2*h}", f"v{O(qs, b) + 2*h + 1}"
                aft = [(ms[2*h].ins, 0), (ms[2*h+1].ins, 0)] + wa + ([(cv[-1].ins, 0)] if (inp and cv) else [])
                cv.append(add(valu(f"v_cvt_pk_bf16_f32 {d}, {a_}, {b_}", [a_, b_], [d]), after=aft, **kw))
        kw = dict(dead=[over(2 * pb, qs) if inp else endins, endins], tag="ep", prio=-300 + 8 * k)
        sw = []
        for h in range(0 if cfg.noswap else 2):
            x, y = f"v{w + h}", f"v{w + 2 + h}"
            sw.append(add(valu(f"v_permlane16_swap_b32 {x}, {y}", [x, y], [x, y], "perm"), after=[(cv[h].ins, 2), (cv[2 + h].ins, 2)], **kw))
        if tl:
            u_ = k // 2; bf_ = u_ % 2
            wi = I(f"ds_write_b128 v{tW[pb % 2]}, {R('v', w, 4)} offset:{bf_ * 2048}", "dsw", rd=[f"v{tW[pb % 2]}", R("v", w, 4)], cost=26)
            tws.append(add(wi, after=[(z.ins, 0) for z in cv] + [(tready, 0), (BARm[max(t for t in BARm if isinstance(t, int))], 0)] + [(z, 0) for z in trd.get(u_ - 2, [])], **kw).ins)
            if k % 2 == 0: continue
            for x_ in tail_stores[-2:]: x_.after += [(z, 0) for z in tws[-2:]]; x_.prio = -400 + u_
            for j in range(2):
                d = R("v", RB[bf_][j], 4)
                ri_ = I(f"ds_read_b128 {d}, v{tR} offset:{bf_ * 2048 + j * 1024}", "dsr", rd=[f"v{tR}"], wr=[d])
                aft = [(z, 0) for z in tws[-2:]] + ([(tst[u_ - 2, j], 2)] if u_ >= 2 else [(PVm[47, 7, j], 0), (SMm[47, 0], 0)])
                rit = add(ri_, after=aft, **kw); trd.setdefault(u_, []).append(ri_)
                st = I(f"buffer_store_dwordx4 {d}, v{tO}, s[{sO}:{sO+3}], s{sOr+qs} offen offset:{j * 2048 + (pb // 2) * 128}{ofl}", "vst",
                       rd=[d, f"v{tO}", f"s{sOr+qs}", f"s[{sO}:{sO+3}]"])
                st.fast = True; st.block = True; tst[u_, j] = st
                sit = add(st, after=[(ri_, 0)], **kw)
                rit.prio = -500 + u_
                if cfg.nvc:
                    rit.dabs = (PVm[T, 3, act(T)[-1]], cfg.tx0 + cfg.txstep * u_ * 2)
                    sit.dabs = (PVm[T, 3, act(T)[-1]], cfg.tx0 + cfg.txstep * (u_ * 2 + j + 1))
                tail_stores.append(sit)
            continue
        st = I(f"buffer_store_dwordx4 {R('v', w, 4)}, v{vOA}, s[{sO}:{sO+3}], s{sOr+qs} offen offset:{64*pb}{ofl}", "vst",
               rd=[R("v", w, 4), f"v{vOA}", f"s{sOr+qs}", f"s[{sO}:{sO+3}]"])
        sts.append((add(st, after=[(z.ins, 0) for z in (sw or cv)], **kw), w, inp, pb, qs))
        if not inp:
            pool.append((w, [(st, 2)])); unit_free[base, w] = [(st, 2)]
            for t in range(T + 1, T + 8):
                for it in pwriters.get((t, w), []): it.after.append((st, 2))

    if T == 15 and DL:
        rank = {P(14, 2): 0, P(14, 3): 1, P(15, 2): 4, P(15, 3): 5}
        def key(x):
            it, w, inp, pb, qs = x
            if not inp: return rank.get(w, 100)
            return 200 + pb if qs == 4 else (2 if pb == 0 else 4 + 2 * pb) + qs - 2
        srt = sorted(sts, key=key)
        if cfg.pairst:
            out_ = []
            for x in srt:
                if x not in out_: out_ += sorted([y for y in sts if y[4] == x[4] and y[3] // 2 == x[3] // 2], key=lambda y: y[3])
            srt = out_
        sq = qjit_b + [x[0] for x in srt]
        for k, it in enumerate(sq):
            it.dabs = (firstm[16], cfg.tq0 + cfg.tqstep * min(k, 8) + cfg.tstep * max(k - 8, 0)); it.prio = -1000 + k
    elif not endins.text.startswith("; end"):
        f_ = T >= TFIN[0] - 1
        if cfg.stE and not f_:
            for k, x in enumerate(sts): x[0].nb = (PVm[T, 1, act(T)[-1]], cfg.stE + cfg.tstep * k)
        for k, x in enumerate(sts): x[0].dabs = (PVm[T, 1, act(T)[-1]], (cfg.stF0 if f_ else cfg.st0) + (cfg.stFstep if f_ else cfg.tstep) * (k | 1 if cfg.pairst else k))
        if cfg.lateA and not f_:
            for k, x in enumerate(sts):
                if slots[0] == 0 and k < 3: continue
                o_ = (cfg.lateA + cfg.tstep * (k - 3)) if slots[0] == 0 else (cfg.lateB + cfg.tstep * k)
                x[0].nb = (PVm[T, 1, act(T)[-1]], o_); x[0].dabs = (PVm[T, 1, act(T)[-1]], o_ + 10)
    else:
        for k, x in enumerate(sts): x[0].dabs = (PVm[T, 1, act(T)[-1]], cfg.tl0 + cfg.tlstep * (k | 1 if cfg.pairst else k))

    if cfg.pairst:
        for x in sts:
            if x[3] % 2 == 0:
                y = [z for z in sts if z[4] == x[4] and z[3] == x[3] + 1][0]
                x[0].after += list(y[0].after); y[0].after.append((x[0].ins, 0)); glue[id(x[0].ins)] = y[0]
tail_stores = []

class Sched:
    def __init__(self, stream):
        self.stream = stream
        self.pos = {id(x): k for k, x in enumerate(stream)}
        self.over = 0
        self.cyc = 0; self.ta = 0; self.log = []
    def run(self, bb, its, fixed_after, marks=None, endins=None, post=None):
        stream, pos = self.stream, self.pos
        idx = {id(m): j for j, m in enumerate(bb)}
        for mid, lst in fixed_after.items():
            if mid in idx:
                for f in lst: idx[id(f)] = idx[mid]
        for j, lst in (marks or {}).items():
            for f in lst: idx[id(f)] = j
        for j, lst in (post or {}).items():
            for f in lst: idx[id(f)] = j
        if endins is not None: idx[id(endins)] = len(bb)
        waiting, act, bydead = {}, [], {}
        byins = {id(it.ins): it for it in its if not it.placed}
        lbm = {}
        def lb(it):
            if id(it) not in lbm:
                v = 0
                for a, _ in it.after:
                    if id(a) in pos: continue
                    if id(a) in idx: v = max(v, idx[id(a)] + 1)
                    elif id(a) in byins: v = max(v, lb(byins[id(a)]))
                lbm[id(it)] = v
            return lbm[id(it)]
        sys.setrecursionlimit(100000)
        for it in its:
            if it.placed: continue
            d = min([idx[id(x)] for x in it.dead if x is not None and id(x) in idx] or [1 << 30])
            if it.dabs and id(it.dabs[0]) in idx: d = min(d, max(idx[id(it.dabs[0])] + it.dabs[1], lb(it) + 1))
            if it.doff: d = max(d - it.doff, min(d, lb(it) + 1))
            it.early = d + it.prio
            it.soft = d - (cfg.dsmargin if it.ins.kind in LGKM else -(1 << 20))
            if it.pace and id(it.pace[0]) in idx and d < (1 << 29):
                o_ = idx[id(it.pace[0])]
                it.soft = int(o_ + it.pace[1] * (d - cfg.wmargin - o_)); it.early = it.soft + 4
            bydead.setdefault(d, []).append(it)
            w = {id(a) for a, _ in it.after if id(a) not in pos}
            nw[id(it)] = len(w)
            for a in w: waiting.setdefault(a, []).append(it)
            if not w: act.append(it)
        st = {"budget": 8, "first": True, "valu": False, "mem": False}
        def emit(x):
            pos[id(x)] = len(stream); stream.append(x)
            for it in waiting.pop(id(x), []):
                nw[id(it)] -= 1
                if nw[id(it)] == 0: act.append(it)
        def ready(it):
            n = len(stream)
            return all(n - pos[id(a)] - 1 >= dist for a, dist in it.after)
        def place(it):
            if it.ins.block and it.ins.kind == "dsr":
                while True:
                    a = cands(lambda x: not x.ins.block and x.ins.kind in VALU + LGKM)
                    if not a: break
                    place(a[0])
            c = it.ins.cost; kd = it.ins.kind
            if kd == "salu" and st["first"]: c -= 4
            if kd in LGKM + VM and st["valu"]: c += 8
            elif kd in LGKM + VM and st["mem"]: c += 4
            if kd in LGKM + VM: st["mem"] = True
            if kd in VALU: st["valu"] = True
            act.remove(it); it.placed = True
            if kd in VM:
                now = self.cyc + 8 + (8 - st["budget"])
                self.ta = (max(self.ta, now) if now < self.ta + 1 and it.tag != "ld" else now) + (cfg.ta_fast if (kd == "dma" or it.ins.fast) else cfg.ta_slow)
            emit(it.ins); st["budget"] -= c; st["first"] = False
            g_ = glue.get(id(it.ins))
            if g_ is not None and not g_.placed: place(g_)
        def cands(pred):
            return sorted([it for it in act if pred(it) and ready(it)], key=lambda x: (x.early, x.seq))
        def force(limit):
            while True:
                due = [it for d in list(bydead) if d <= limit for it in bydead[d] if not it.placed]
                for d in [d for d in bydead if d <= limit]:
                    bydead[d] = [it for it in bydead[d] if not it.placed]
                    if not bydead[d]: del bydead[d]
                if not due: return
                stack = list(due); seen = set(); need = []
                while stack:
                    it = stack.pop()
                    if id(it) in seen: continue
                    seen.add(id(it)); need.append(it)
                    for a_, _ in it.after:
                        o = byins.get(id(a_))
                        if o is not None and not o.placed: stack.append(o)
                av = [it for it in need if nw[id(it)] == 0]
                if not av:
                    raise RuntimeError("deadlock: " + "; ".join(it.ins.text + " AFTER " + str([a for a, _ in it.after if id(a) not in pos]) for it in need[:6]))
                rs = [it for it in av if ready(it)]
                if not rs:
                    rs = cands(lambda x: x.ins.kind in VALU)[:1] or av
                rs.sort(key=lambda x: (0 if (x.ins.kind in LGKM + VM and not st["valu"]) else 1, x.early, x.seq))
                place(rs[0])
        if id(bb[0]) not in pos: force(0)
        for k, m in enumerate(bb):
            for f in (marks or {}).get(k, []): emit(f)
            if id(m) not in pos: emit(m)
            st.update(budget=8, first=True, valu=False, mem=False)
            for f in (post or {}).get(k, []):
                emit(f); st["first"] = False
            for f in fixed_after.get(id(m), []):
                emit(f); st["first"] = False
                if cfg.emptybar: st["budget"] = 0
            c = cands(lambda x: x.ins.kind == "salu")
            if c and st["first"] and k + 1 < len(bb) and not getattr(cfg, "nosalu", False): place(c[0])
            vmok = lambda x: x.ins.kind in VM and (x.nb is None or idx.get(id(x.nb[0]), -1000) + x.nb[1] <= k)
            vm = cands(vmok) if (self.ta <= self.cyc and m.pref != "T") else []
            urgent = cands(lambda x: x.soft <= (k - 2 if vm else k + 1))
            if st["budget"] <= 0: urgent = []
            if urgent: place(min(urgent, key=lambda x: (x.soft, x.seq)))
            tr = cands(lambda x: x.ins.kind == "trans")
            if m.pref == "T" and tr and st["budget"] >= (4 if urgent else 8):
                place(tr[0])
            else:
                if not urgent and st["budget"] >= 4:
                    if not vm and self.ta <= self.cyc: vm = cands(vmok)
                    mem = vm or cands(lambda x: x.ins.kind in LGKM)
                    if mem and not vm:
                        rd_ = [x for x in mem if x.ins.kind == "dsr"]; wr_ = [x for x in mem if x.ins.kind == "dsw"]
                        if cands(lambda x: x.ins.kind in ("valu", "perm")): mem = rd_
                        elif wr_ and not (rd_ and rd_[0].soft <= k + 3): mem = wr_
                    if mem: place(mem[0])
                while st["budget"] >= 4:
                    a = cands(lambda x: x.ins.kind in ("valu", "perm") or (x.ins.kind == "trans" and st["budget"] >= 8))
                    if not a: break
                    place(a[0])
            force(k + 1)
            if st["budget"] < 0: self.over -= st["budget"]
            self.cyc += max(16, 16 - st["budget"])
            self.log.append(self.cyc)
        if endins is not None: force(1 << 29)
nw = {}

sVC = 49
sTSB = 60
def stamp(k, cyc=False, mode=1):
    if cfg.stamps != mode: return []
    r = sTSB + 2 * k
    return [I(f"s_mem{'time' if cyc else 'realtime'} s[{r}:{r+1}]", "salu", wr=[f"s[{r}:{r+1}]"])]

def V(text, rd, wr, kind="valu"): return I(text, kind, rd=rd, wr=wr)
def prologue():
    o = []
    o.append(I("s_cmp_ge_u32 s2, 256\n    s_cbranch_scc1 L_end", "br"))
    o += stamp(0) + stamp(1, True) + stamp(0, False, 4) + stamp(1, True, 4) + stamp(0, False, 5)
    if cfg.spin: o.append(salu("s_memrealtime s[98:99]"))
    o.append(salu("s_load_dwordx8 s[52:59], s[0:1], 0"))
    if cfg.vc1: o.append(salu("s_load_dwordx2 s[6:7], s[0:1], 32"))
    l, t, u, g = "v1", "v2", "v3", "v4"
    o += [V(f"v_lshrrev_b32 {t}, 6, v0", ["v0"], [t]),
          V(f"v_and_b32 {l}, 63, v0", ["v0"], [l]),
          V(f"v_readfirstlane_b32 s{sW}, {t}", [t], [f"s{sW}"]),
          V(f"v_lshrrev_b32 {g}, 4, {l}", [l], [g]),
          V(f"v_and_b32 {t}, 15, {l}", [l], [t]),
          V(f"v_lshlrev_b32 {t}, 8, {t}", [t], [t]),
          V(f"v_mul_u32_u24 {u}, {GST}, {g}", [g], [u]),
          V(f"v_add_u32 v{vQA}, {t}, {u}", [t, u], [f"v{vQA}"]),
          ]
    if cfg.noswap:
        if vOA != vQA: o += [V(f"v_lshl_add_u32 v{vOA}, {g}, 4, {t}", [g, t], [f"v{vOA}"])]
        o += [
              V(f"v_and_b32 {u}, 1, {g}", [g], [u]),
              V(f"v_lshlrev_b32 {u}, 2, {u}", [u], [u]),
              V(f"v_xor_b32 {u}, {u}, {l}", [u, l], [u]),
              V(f"v_and_b32 {u}, 7, {u}", [u], [u]),
              V(f"v_lshrrev_b32 {t}, 3, {l}", [l], [t]),
              V(f"v_lshlrev_b32 {t}, 8, {t}", [t], [t]),
              V(f"v_lshl_add_u32 v{vVD}, {u}, 4, {t}", [u, t], [f"v{vVD}"])]
    else:
        o += [
          V(f"v_and_b32 {u}, 1, {g}", [g], [u]),
          V(f"v_lshl_add_u32 {t}, {u}, 5, {t}", [u, t], [t]),
          V(f"v_lshrrev_b32 {u}, 1, {g}", [g], [u]),
          V(f"v_lshl_add_u32 v{vOA}, {u}, 4, {t}", [u, t], [f"v{vOA}"]),
          V(f"v_bfe_u32 {t}, {l}, 1, 2", [l], [t]),
          V(f"v_xor_b32 {t}, {t}, {g}", [t, g], [t]),
          V(f"v_lshlrev_b32 {t}, 5, {t}", [t], [t]),
          V(f"v_lshrrev_b32 {u}, 3, {l}", [l], [u]),
          V(f"v_lshl_add_u32 {t}, {u}, 8, {t}", [u, t], [t]),
          V(f"v_and_b32 {u}, 1, {l}", [l], [u]),
          V(f"v_lshl_add_u32 v{vVD}, {u}, 4, {t}", [u, t], [f"v{vVD}"]),
          ]
    if cfg.qstage:
        o += [V(f"v_and_b32 {t}, 15, {l}", [l], [t]),
              V(f"v_xor_b32 {u}, {t}, {g}", [t, g], [u]),
              V(f"v_lshlrev_b32 {u}, 4, {u}", [u], [u]),
              V(f"v_lshl_add_u32 v{vQD}, {g}, 8, {u}", [g, u], [f"v{vQD}"])]
        o += [V(f"v_xor_b32 v{vQD+j}, {64*j}, v{vQD}", [f"v{vQD}"], [f"v{vQD+j}"]) for j in range(1, 4)]
        o += [salu(f"s_mul_i32 s{sQS}, s{sW}, 20480", [f"s{sW}"], [f"s{sQS}"]), salu(f"s_add_u32 s{sQS}, s{sQS}, {QSTG}")]
        stage2 = [V(f"v_and_b32 {t}, 15, {l}", [l], [t]),
              V(f"v_mul_u32_u24 {u}, {GST // 16}, {g}", [g], [u]),
              V(f"v_xor_b32 {u}, {u}, {t}", [u, t], [u]),
              V(f"v_lshlrev_b32 {u}, 4, {u}", [u], [u]),
              V(f"v_lshl_add_u32 {u}, {t}, 8, {u}", [t, u], [u])]
        stage2 += [V(f"v_xor_b32 v{vQR+k}, {f's{sX[k]}' if cfg.ownk else off(k)}, {u}", [u], [f"v{vQR+k}"]) for k in range(4)]
        stage2 += [V(f"v_add_u32 v{vQR+k}, s{sQS}, v{vQR+k}", [f"v{vQR+k}"], [f"v{vQR+k}"]) for k in range(4)]
    o += [salu(f"s_mul_i32 s{sT0}, s2, {HEADQ}", [], [f"s{sT0}"]),
          salu(f"s_lshl_b32 s{sT1}, s2, 17", [], [f"s{sT1}"]),
          salu(f"s_lshl_b32 s{sM0}, s{sW}, 10", [f"s{sW}"], [f"s{sM0}"]),
          salu(f"s_lshl_b32 s{sVo}, s{sW}, 11", [f"s{sW}"], [f"s{sVo}"]),
          salu(f"s_lshr_b32 s{sKo}, s{sW}, 1", [f"s{sW}"], [f"s{sKo}"]),
          salu(f"s_lshl_b32 s{sKo}, s{sKo}, 12"),
          salu(f"s_and_b32 s{sT2}, s{sW}, 1"),
          salu(f"s_lshl_b32 s{sT2}, s{sT2}, 7"),
          salu(f"s_add_u32 s{sKo}, s{sKo}, s{sT2}"),
          salu(f"s_lshl_b32 s{sOr}, s{sW}, 14"),
          salu(f"s_add_u32 s{sOr+1}, s{sOr}, 4096"),
          salu(f"s_add_u32 s{sOr+2}, s{sOr}, 8192"),
          salu(f"s_add_u32 s{sOr+3}, s{sOr}, 12288"),
          salu(f"s_lshl_b32 s{sOr+4}, s{sW}, 12"),
          salu(f"s_add_u32 s{sOr+4}, s{sOr+4}, {1280*256}"),
          ]
    o += [salu(f"s_mov_b32 s{sQn+k}, s{sOr+k}") for k in range(5)]
    if cfg.ownk:
        if cfg.dmap == "A": o += [salu(f"s_lshl_b32 s{sX[0]}, s{sW}, 6")]
        else: o += [salu(f"s_mul_i32 s{sX[0]}, s{sW}, 0x50"), salu(f"s_and_b32 s{sX[0]}, s{sX[0]}, 0x90")]
        o += [salu(f"s_xor_b32 s{sX[c]}, s{sX[0]}, {off(c)}") for c in range(1, 4)]
    o.append(I("s_waitcnt lgkmcnt(0)", "wait"))
    for srd, p, so, size in ((sK, 54, sT1, HEADK), (sQ, 52, sT0, HEADQ), (sV, 56, sT1, HEADK), (sO, 58, sT0, HEADQ)):
        o += [salu(f"s_add_u32 s{srd}, s{p}, s{so}"), salu(f"s_addc_u32 s{srd+1}, s{p+1}, 0"),
              salu(f"s_mov_b32 s{srd+2}, {size}"), salu(f"s_mov_b32 s{srd+3}, 0x20000")]
    kloads[0] = kload_ins(0); kloads[1] = kload_ins(1)
    k1 = [salu(f"s_add_u32 s{sKo}, s{sKo}, 8192")] + kloads[1]
    if cfg.qstage:
        o += kloads[0] + q0load(0) + q0load(1) + k1
        later = [[], q0load(2), q0load(3)]
    else:
        o += kloads[0] + qload_ins(0) + qload_ins(1)[:2]
        later = [qload_ins(1)[2:] + k1, qload_ins(2), qload_ins(3)]
    if cfg.codepf:
        o.append(I(f"s_getpc_b64 s[50:51]\nL_pf:\n    s_lshr_b32 s{sT2}, s2, 3\n    s_lshl_b32 s{sT2}, s{sT2}, 11", "salu"))
        o.append(V(f"v_lshl_add_u32 v5, {l}, 5, s{sT2}", [l], ["v5"]))
        o.append(V("v_min_u32 v5, L_end - L_pf, v5", ["v5"], ["v5"]))
        x = I(f"global_load_dword v{vDUM}, v5, s[50:51]", "vld", rd=["v5"], wr=[f"v{vDUM}"]); x.nowait = True
        o.append(x)
    if cfg.touch:
        o.append(V(f"v_lshlrev_b32 v7, {cfg.touch}, {l}", [l], ["v7"]))
        for srd in [sQ] + ([sO] if cfg.toucho else []) + ([sK, sV] if cfg.touchkv else []):
            x = I(f"buffer_load_dword v{vDUM}, v7, s[{srd}:{srd+3}], 0 offen nt", "vld", rd=["v7"], wr=[f"v{vDUM}"]); x.nowait = True
            o.append(x)
    if cfg.vc1:
        assert not cfg.extra and cfg.dbg < 0
        o += [salu(f"s_mov_b32 s{sWS}, s6"), salu(f"s_mov_b32 s{sWS+1}, s7"), salu(f"s_mov_b32 s{sWS+2}, 256"), salu(f"s_mov_b32 s{sWS+3}, 0x20000")]
    o += [salu(f"s_mov_b32 s{sC}, {CSCALE:#x}"), salu(f"s_mov_b32 s{sMASK}, 0xffff0000"),
          salu(f"s_mov_b32 s{sFAIL}, {0x1fffff if cfg.force_fallback else 0}"), salu(f"s_mov_b32 s{sCNT}, {4 + cfg.extra if cfg.extra else 3}"), *([salu("s_mov_b32 s3, 0x10000"), salu("s_mov_b32 s4, 0")] if cfg.extra else []),
          salu(f"s_lshl_b32 s{sVC}, s{sW}, 15"), salu(f"s_sub_u32 s{sVC}, s{sVC}, {RING}"),
          salu(f"s_lshl_b32 s{sT2}, s{sW}, 11")]
    if cfg.klin:
        assert cfg.ownk
        o += [V(f"v_lshlrev_b32 {u}, 1, {g}", [g], [u]),
              V(f"v_xor_b32 {t}, {u}, {l}", [u, l], [t]),
              V(f"v_lshlrev_b32 {t}, 4, {t}", [t], [t]),
              V(f"v_add_u32 v{vKR}, {RING}, {t}", [t], [f"v{vKR}"]),
              V(f"v_bfe_u32 {t}, v{vVD}, {4 if cfg.dmap == 'A' else 5}, 2", [f"v{vVD}"], [t]),
              V(f"v_lshlrev_b32 {u}, 1, {t}", [t], [u]),
              V(f"v_lshrrev_b32 v5, 3, {l}", [l], ["v5"]),
              V(f"v_xor_b32 {u}, {u}, v5", [u, "v5"], [u]),
              V(f"v_lshl_add_u32 {u}, {t}, 4, {u}", [t, u], [u]),
              V(f"v_bfe_u32 {t}, v{vVD}, {6 if cfg.dmap == 'A' else 4}, 1", [f"v{vVD}"], [t]),
              V(f"v_lshl_add_u32 {u}, {t}, 6, {u}", [t, u], [u]),
              V(f"v_lshlrev_b32 {u}, 4, {u}", [u], [u]),
              V(f"v_add_u32 {u}, {RING}, {u}", [u], [u]),
              V(f"v_add_u32 v{vKW}, s{sT2}, {u}", [u], [f"v{vKW}"])]
    else:
      o += [V(f"v_lshlrev_b32 {t}, 4, {l}", [l], [t]),
          V(f"v_add_u32 v{vKR}, {RING}, {t}", [t], [f"v{vKR}"]),
          V(f"v_add_u32 v{vKW}, s{sT2}, v{vKR}", [f"v{vKR}"], [f"v{vKW}"])]
    if cfg.ownk:
        o += [V(f"v_add_u32 v{vKC[0]}, s{sM0}, v{vKR}", [f"v{vKR}"], [f"v{vKC[0]}"])]
        o += [V(f"v_xor_b32 v{vKC[c]}, {1024*c}, v{vKC[0]}", [f"v{vKC[0]}"], [f"v{vKC[c]}"]) for c in range(1, 4)]
        o += [salu(f"s_sub_u32 s{sVC}, s{sVC}, s{sM0}")]
        if cfg.vc1: o += [V(f"v_and_b32 v{vPF}, 0xffff, v{vKC[0]}", [f"v{vKC[0]}"], [f"v{vPF}"])]
    o += [
          V(f"v_lshrrev_b32 {t}, 2, {l}", [l], [t]),
          V(f"v_lshlrev_b32 {t}, 7, {t}", [t], [t]),
          V(f"v_and_b32 {u}, 3, {l}", [l], [u])]
    assert cfg.noswap
    o += [V(f"v_lshl_add_u32 {t}, {u}, 4, {t}", [u, t], [t]),
          V(f"v_bfe_u32 {u}, {l}, 3, 1", [l], [u]),
          V(f"v_lshl_add_u32 v{vVA}, {u}, 6, {t}", [u, t], [f"v{vVA}"]),
          V(f"v_xor_b32 v{vVA+1}, 64, v{vVA}", [f"v{vVA}"], [f"v{vVA+1}"]),
          V(f"v_mov_b32 v{vHI}, 0", [], [f"v{vHI}"]), V(f"v_mov_b32 v{vLO}, -1", [], [f"v{vLO}"])]
    o += [V(f"v_lshrrev_b32 {t}, 4, {l}", [l], [t]),
          V(f"v_xor_b32 {t}, {t}, {l}", [t, l], [t]),
          V(f"v_bfe_u32 {t}, {t}, 1, 1", [t], [t]),
          V(f"v_add_u32 {t}, -1, {t}", [t], [t]),
          V(f"v_and_b32 {t}, 0x3f803f80, {t}", [t], [t])]
    o += [V(f"v_accvgpr_write_b32 a{aSA+k}, {t}", [t], [f"a{aSA+k}"]) for k in range(4)]
    o += [V(f"v_and_b32 {u}, 1, {l}", [l], [u]),
          V(f"v_mul_u32_u24 {u}, 0xaaaa, {u}", [u], [u]),
          V(f"v_add_u32 v{vIDX}, 0x4444, {u}", [u], [f"v{vIDX}"])]
    o += [V(f"v_accvgpr_write_b32 a{aL+k}, 0", [], [f"a{aL+k}"]) for k in range(12)]
    if cfg.qstage: o += stage2
    o += later[0]
    if cfg.pads: o.append(I("; BODY_ALIGN", "label"))
    for T in range(1):
        st = vKt[T]; ws = []
        for r in range(8):
            a = f"a{ST(T, 0) + r}"; x = f"v{st + r}"; tt = f"v{vKx[r % 2]}"
            if not cfg.kvg: o += [V(f"v_accvgpr_read_b32 {x}, {a}", [a], [x])]
            o += [V(f"v_lshlrev_b32 {tt}, 16, {x}", [x], [tt]),
                  V(f"v_and_b32 {x}, s{sMASK}, {x}", [x], [x]),
                  V(f"v_mul_f32 {tt}, s{sC}, {tt}", [tt], [tt]),
                  V(f"v_mul_f32 {x}, s{sC}, {x}", [x], [x]),
                  V(f"v_cvt_pk_bf16_f32 {x}, {tt}, {x}", [tt, x], [x])]
        for e in range(2):
            w = I(f"ds_write_b128 v{vKW}, {R('v', st + 4*e, 4)} offset:{T*8192 + e*KWE}", "dsw", rd=[f"v{vKW}", R('v', st + 4*e, 4)])
            o.append(w); ws += [Item(w)] * 4
        rb = []
        for e in range(0 if cfg.ownk else 2):
            d = R("a", ST(T, e), 4)
            x = I(f"ds_read_b128 {d}, v{vKW} offset:{T*8192 + e*1024}", "dsr", rd=[f"v{vKW}"], wr=[d])
            o.append(x); rb.append(Item(x))
        kwrites[T] = ws; readback[T] = rb
    o += later[1]
    pro_tail.extend(later[2] + [salu(f"s_add_u32 s{sQn+k}, s{sOr+k}, 65536") for k in range(4)])
    return o
pro_tail = []

def guard_text():
    a = L(2)
    t = []
    t.append("    ; ---- V magnitude guard: sums of squares must stay below 2^60; shared across the 4 waves")
    if cfg.stamps == 5: t.append("    s_memrealtime s[%d:%d]" % (sTSB + 18, sTSB + 19))
    t.append("    s_nop 7\n    s_nop 3")
    t += [f"    v_accvgpr_read_b32 v{k}, a{a+k}" for k in range(4)]
    t += [f"    v_and_b32 v{k}, 0x7fffffff, v{k}" for k in range(4)]
    t += ["    v_max_u32 v0, v0, v1", "    v_max3_u32 v0, v0, v2, v3",
          "    v_cmp_le_u32 vcc, 0x5d800000, v0",
          "    s_nop 1",
          "    s_cmp_lg_u64 vcc, 0",
          f"    s_cselect_b32 s{sT0}, 1, 0",
          f"    v_cmp_lt_u32 vcc, 0x6f800000, v{vHI}",
          f"    v_cmp_gt_u32 s[6:7], 1.0, v{vLO}",
          "    s_nop 1",
          "    s_or_b64 vcc, vcc, s[6:7]",
          f"    s_cselect_b32 s{sFAIL}, 0x1fffff, s{sFAIL}",
          f"    s_lshl_b32 s{sT1}, s{sW}, 2",
          f"    s_add_u32 s{sT1}, s{sT1}, {FLAGS}",
          f"    v_mov_b32 v0, s{sT0}", f"    v_mov_b32 v1, s{sT1}", f"    v_mov_b32 v2, {FLAGS}",
          "    ds_write_b32 v1, v0", "    s_waitcnt lgkmcnt(0)", "    s_barrier",
          "    ds_read_b128 v[4:7], v2", "    s_waitcnt lgkmcnt(0)",
          "    v_or3_b32 v4, v4, v5, v6", "    v_or_b32 v4, v4, v7", "    s_nop 0",
          f"    v_readfirstlane_b32 s{sT0}, v4", "    s_nop 1",
          f"    s_cmp_lg_u32 s{sT0}, 0",
          f"    s_cselect_b32 s{sFAIL}, 0x1fffff, s{sFAIL}"]
    return t
FLAGS = RING + 3 * 8192 if cfg.tlds else RING
def finale():
    if cfg.stamps == 5 and cfg.vc1: pre_ = ["    s_memrealtime s[%d:%d]" % (sTSB + 18, sTSB + 19)]
    else: pre_ = []
    t = pre_ if (cfg.tlds or cfg.vc1) else guard_text()
    if cfg.stamps in (1, 4, 5):
        t += ["    s_memrealtime s[%d:%d]" % (sTSB + 22, sTSB + 23), "    s_waitcnt vmcnt(0)",
              "    s_memrealtime s[%d:%d]" % (sTSB + 24, sTSB + 25), "    s_memtime s[%d:%d]" % (sTSB + 26, sTSB + 27)]
    if cfg.stamps:
        t += ["    s_load_dwordx2 s[4:5], s[0:1], 40", "    s_waitcnt lgkmcnt(0)",
              "    s_mov_b32 s6, 0x100000", "    s_mov_b32 s7, 0x20000",
              f"    s_lshl_b32 s{sT0}, s2, 2", f"    s_add_u32 s{sT0}, s{sT0}, s{sW}", f"    s_lshl_b32 s{sT0}, s{sT0}, 7",
              "    v_mov_b32 v1, 0"]
        for k in range(21):
            t += [f"    v_mov_b32 v0, s{sTSB + 2*k}", f"    buffer_store_dword v0, v1, s[4:7], s{sT0} offen offset:{4*k}"]
    if cfg.spin:
        t += ["L_spin:", "    s_memrealtime s[100:101]", "    s_waitcnt lgkmcnt(0)", "    s_sub_u32 s100, s100, s98", f"    s_cmp_lt_u32 s100, {cfg.spin * 100}", "    s_cbranch_scc1 L_spin"]
    if cfg.dbg >= 0:
        t += [f"    s_cmp_lg_u32 s2, {cfg.dbg}", "    s_cbranch_scc1 L_nodbg", f"    s_cmp_lg_u32 s{sW}, 0", "    s_cbranch_scc1 L_nodbg",
              "    s_load_dwordx2 s[4:5], s[0:1], 32", "    s_waitcnt lgkmcnt(0)", "    s_mov_b32 s6, 256", "    s_mov_b32 s7, 0x20000"]
        lst = [(2, 0), (3, 0), (4, 0), (5, 0), (9, 0), (8, 0), (7, 0), (6, 0), (11, 0), (12, 0), (10, 1), (13, 10)]
        for k, (a_, b_) in enumerate(lst):
            t += [f"    s_sub_u32 s{sT1}, s{sTSB + 2*a_}, s{sTSB + 2*b_}", f"    v_mov_b32 v0, s{sT1}", f"    buffer_store_dword v0, v1, s[4:7], 0 offen offset:{4*k}"]
        t += ["L_nodbg:"]
    t += [f"    s_cmp_eq_u32 s{sFAIL}, 0", "    s_cbranch_scc1 L_end"]
    sJ, sRow, sKb, sVt = sT0, sT1, sT2, sKo
    f = ["    ; ---- slow path: rows whose unshifted exponent sum left the safe range are redone with the true max",
         "    s_waitcnt vmcnt(0)"]
    f += [f"    v_and_b32 v{vVA+c}, 0xffff, v{vVA+c}" for c in range(NVA)]
    f += ["L_fb_next:",
          f"    s_ff1_i32_b32 s{sJ}, s{sFAIL}", f"    s_bitset0_b32 s{sFAIL}, s{sJ}",
          f"    s_cmp_gt_u32 s{sJ}, 4", f"    s_cselect_b32 s{sKb}, 1, 0", f"    s_sub_u32 s{sKb}, s{sJ}, s{sKb}",
          f"    s_lshr_b32 s{sRow}, s{sKb}, 2", f"    s_lshl_b32 s{sRow}, s{sRow}, 16",
          f"    s_and_b32 s{sKb}, s{sKb}, 3", f"    s_lshl_b32 s{sKb}, s{sKb}, 12", f"    s_add_u32 s{sRow}, s{sRow}, s{sKb}",
          f"    s_lshl_b32 s{sKb}, s{sW}, 14", f"    s_add_u32 s{sRow}, s{sRow}, s{sKb}",
          f"    s_cmp_eq_u32 s{sJ}, 4", f"    s_cselect_b32 s{sRow}, s{sOr+4}, s{sRow}"]
    f += [f"    buffer_load_dwordx4 v[{4*s}:{4*s+3}], v{vQA}, s[{sQ}:{sQ+3}], s{sRow} offen offset:{off(s)}" for s in range(4)]
    def qk(dst, extra):
        r = [f"    buffer_load_dwordx4 v[{20+4*s}:{23+4*s}], v{vQA}, s[{sK}:{sK+3}], s{sKb} offen offset:{off(s)}" for s in range(4)]
        r += ["    s_waitcnt vmcnt(0)"]
        r += [f"    v_mfma_f32_16x16x32_bf16 v[{dst}:{dst+3}], v[{20+4*s}:{23+4*s}], v[{4*s}:{4*s+3}], {'0' if s == 0 else f'v[{dst}:{dst+3}]'}" for s in range(4)]
        r += [f"    s_add_u32 s{sKb}, s{sKb}, 4096", "    s_nop 9"]
        return r
    f += ["    v_mov_b32 v16, 0xff800000", f"    s_mov_b32 s{sKb}, 0", "L_fb_max:"]
    f += qk(36, None)
    f += ["    v_max3_f32 v16, v16, v36, v37", "    v_max3_f32 v16, v16, v38, v39",
          f"    s_cmp_lt_u32 s{sKb}, {HEADK}", "    s_cbranch_scc1 L_fb_max"]
    def xlane(reg, tmp, op):
        return [f"    v_mov_b32 v{tmp}, v{reg}", "    s_nop 1", f"    v_permlane16_swap_b32 v{reg}, v{tmp}", "    s_nop 1", f"    {op} v{reg}, v{reg}, v{tmp}",
                f"    v_mov_b32 v{tmp}, v{reg}", "    s_nop 1", f"    v_permlane32_swap_b32 v{reg}, v{tmp}", "    s_nop 1", f"    {op} v{reg}, v{reg}, v{tmp}"]
    f += xlane(16, 17, "v_max_f32")
    f += [f"    v_mul_f32 v17, s{sC}, v16", "    v_mov_b32 v18, 0"]
    f += [f"    v_mov_b32 v{64+k}, 0" for k in range(32)]
    f += [f"    s_mov_b32 s{sKb}, 0", f"    s_mov_b32 s{sVt}, 0", "L_fb_pv:"]
    f += qk(36, None) + qk(40, None)
    f += [f"    v_fma_f32 v{36+k}, v{36+k}, s{sC}, -v17" for k in range(8)]
    f += [f"    v_exp_f32 v{36+k}, v{36+k}" for k in range(8)]
    f += ["    s_nop 0"] + [f"    v_add_f32 v18, v18, v{36+k}" for k in range(8)]
    f += [f"    v_cvt_pk_bf16_f32 v{44+k}, v{36+2*k}, v{37+2*k}" for k in range(4)]
    f += [f"    v_add_u32 v{52+c}, s{sVt}, v{vVA+c}" for c in range(NVA)]
    for b in range(8):
        f += [f"    ds_read_b64_tr_b16 v[{48+2*blk}:{49+2*blk}], v{52+vsel(b)[0]} offset:{(b>>2)*32768 + blk*2048 + vsel(b)[2]}" for blk in range(2)]
        f += ["    s_waitcnt lgkmcnt(0)", f"    v_mfma_f32_16x16x32_bf16 v[{64+4*b}:{67+4*b}], v[48:51], v[44:47], v[{64+4*b}:{67+4*b}]"]
    f += [f"    s_add_u32 s{sVt}, s{sVt}, 4096", f"    s_cmp_eq_u32 s{sVt}, 32768", f"    s_cselect_b32 s{sVt}, 65536, s{sVt}",
          f"    s_cmp_lt_u32 s{sKb}, {HEADK}", "    s_cbranch_scc1 L_fb_pv"]
    f += xlane(18, 17, "v_add_f32")
    f += ["    v_rcp_f32 v18, v18", "    s_nop 7"]
    f += [f"    v_mul_f32 v{64+k}, v{64+k}, v18" for k in range(32)]
    f += [f"    v_cvt_pk_bf16_f32 v{96+k}, v{64+2*k}, v{65+2*k}" for k in range(16)]
    f += ["    s_nop 1"]
    for pb in range(0 if cfg.noswap else 4):
        f += [f"    v_permlane16_swap_b32 v{96+4*pb+h}, v{98+4*pb+h}" for h in range(2)]
    f += [f"    buffer_store_dwordx4 v[{96+4*pb}:{99+4*pb}], v{vOA}, s[{sO}:{sO+3}], s{sRow} offen offset:{64*pb}" for pb in range(4)]
    f += ["    s_waitcnt vmcnt(0)", f"    s_cmp_lg_u32 s{sFAIL}, 0", "    s_cbranch_scc1 L_fb_next"]
    return t + f

def simulate(linear, waits, nops, marks):
    t = 0; pipe = 0; q = []; lastdone = 0; out = []; t0 = 0; first = False; valu = False; mem = False; cur = None; stall = 0; stl = []; idle = [0]
    for ins in linear:
        if ins.kind == "label": continue
        w = waits.get(id(ins))
        if w:
            if w[1] is not None and len(q) > w[1]:
                need = q[len(q) - w[1] - 1]
                if need > t: stall += need - t; t = need
            t += 0 if first else 4; first = False
        t += 4 * nops.get(id(ins), 0)
        if id(ins) in marks:
            out.append(t - t0); stl.append(stall); t0 = t; stall = 0; idle.append(0)
        k = ins.kind
        if k in MAT:
            idle[-1] += max(0, pipe - t)
            t = max(t, pipe); pipe = t + 16; t += 8; first = True; valu = False; mem = False
        else:
            c = ins.cost
            if k in ("salu", "bar", "br", "wait") and first: c -= 4
            if k in LGKM + VM and valu: c += 8
            elif k in LGKM + VM and mem: c += 4
            if k in LGKM + VM: mem = True
            if k in LGKM:
                svc = 32 if k == "dsw" else (16 if ("b128" in ins.text or cfg.noswap) else 8)
                lastdone = max(lastdone + svc, t + cfg.ldslat); q.append(lastdone)
            if k in VALU: valu = True
            t += c; first = False
    out.append(t - t0); stl.append(stall)
    sys.stderr.write(f"sim cycles/period: {out[1:]}\nsim lgkm stalls : {stl[1:]}\nunused issue cyc: {idle[1:]}\n")

def gen_items(T):
    curT[0] = T
    items_softmax(T); items_kread(T)
    if T % 8 == 0 and T > 0: items_vtoggle(T)
    items_vread(T)
def bar_needs(T):
    pub = (T + 1,) if T < 15 else (T + 1, T + 2)
    nd = [x.ins for t in pub for x in kwrites[t]]
    if T in vdmas and T > 0 and f"V{T}" not in BARm: nd += vdmas[T]
    done = (T - 1, T) if T >= 13 else (T - 1,) if T >= 1 else ()
    nd += [kreads[t, blk, s_].ins for t in done for blk in range(2) for s_ in range(4) if (t, blk, s_) in kreads]
    nd += [x.ins for t in done if t in readback for x in readback[t]]
    BARm[T].needs = nd
def build():
    C = cfg.CUT; NT = 48 + C + 2
    for T in range(NT + 2): mk_step(T)
    BARm[-1] = I("s_barrier", "bar"); BARm["V0"] = I("s_barrier", "bar")
    for T in range(1, cfg.nvbar): BARm[f"V{T}"] = I("s_barrier", "bar")
    for T in list(range(0, 15, 2)) + list(range(1, NT + 2, 2)): BARm[T] = I("s_barrier", "bar")
    pro = prologue()
    pro.append(BARm[-1]); pro += stamp(2) + pro_tail
    bb, start = [], {}
    for T in range(NT):
        start[T] = len(bb); bb += backbone_period(T)
    backbone_period(NT)
    fixed = {id(bar_spot(T)): [BARm[T]] for T in range(NT) if T in BARm}
    fixed[id(QKm[1, 0, 0, 0] if cfg.sm0 else QKm[0, 1, 2, 3])] = [BARm["V0"]]
    for T in range(1, cfg.nvbar): fixed[id(start_of(T + 1))] = [BARm[f"V{T}"]]
    labL = I("L_loop:", "label"); labL2 = I("; second instance", "label"); labL3 = I("; third instance", "label")
    def chk():
        pre = ""
        if cfg.stamps == 1:
            r = sTSB + 12
            pre = "".join(f"s_mov_b64 s[{r+2*k+2}:{r+2*k+3}], s[{r+2*k}:{r+2*k+1}]\n    " for k in (2, 1, 0)) + f"s_memrealtime s[{r}:{r+1}]\n    "
        if not cfg.extra: return I(pre + f"s_sub_u32 s{sCNT}, s{sCNT}, 1\n    s_cbranch_scc1 L_tail", "br", cost=8)
        return I(pre + f"s_sub_u32 s{sCNT}, s{sCNT}, 1\n    s_cmp_eq_u32 s{sCNT}, 0\n    s_cbranch_scc1 L_tail", "br")
    chk1, chk2 = chk(), chk()
    brL, brL2 = I("s_branch L_loop", "br"), I("s_branch L_loop", "br")
    ctl = {start[16 + C]: stamp(5) + [labL], start[32]: [chk1], start[32 + C]: [brL, labL2], start[48]: [chk2], start[48 + C]: [brL2, labL3]}
    marks, post = ({}, ctl) if cfg.shadowbr else (ctl, {})
    marks[start[12]] = [I("L_p12:", "label")]
    if cfg.stamps == 1:
        marks[start[1]] = stamp(3); marks[start[16]] = stamp(4) + stamp(10, True)
    if cfg.stamps == 2:
        for T in range(16 + C, 48 + C): marks.setdefault(start[T], []).append(stamp((T - C) % 16, True, 2)[0])
    if cfg.stamps == 3:
        for T in range(0, min(20, 16 + C - cfg.st3)): marks.setdefault(start[T + cfg.st3], []).insert(0, stamp(T, False, 3)[0])
        pro.insert(1, stamp(20, False, 3)[0])
    for T in range(16): items_loads(T)
    for T in range(NT):
        gen_items(T)
        if T % 16 == C and T > 16: items_rowadv(T)
        if cfg.repf:
            if T == cfg.pf1: items_codepf(T, "L_p12")
            if T == cfg.pf2: items_codepf(T, "L_loop")
            if T > 32 and T % 16 == cfg.pf3: items_codepf(T, "L_tail")
    for base in (16, 32): items_qpf(base)
    for T in range(1, NT + 2): curT[0] = T; items_kwrite(T)
    curT[0] = -50; items_qjit()
    if cfg.vc1: items_vcheck()
    for T in range(NT):
        if any(islast(T, q) for q in act(T)):
            curT[0] = T + 1000
            items_epilogue(T, ctl[start[(T + 1) // 16 * 16 + C]][0])
    BARm[-1].needs = [x.ins for x in kwrites[0]]
    BARm["V0"].needs = list(vdmas[0])
    for T in range(1, cfg.nvbar): BARm[f"V{T}"].needs = list(vdmas[T])
    for T in range(NT):
        if T in BARm: bar_needs(T)
    stream = list(pro)
    Sched(stream).run(bb, items, fixed, marks, post=post)
    p = {id(x): k for k, x in enumerate(stream)}
    ref = {(it.T[0] - 16, it.T[1]): p[id(it.ins)] < p[id(brL)] for it in items if it.placed and 32 + C - 2 <= it.T[0] < 48}
    cut = ctl[start[16 + C]][0]
    for it in items:
        r = ref.get(it.T)
        if r is True: it.dead = list(it.dead) + [cut]
        elif r is False: it.after.append((labL, 0))
        it.placed = False
    stream = list(pro)
    sc = Sched(stream)
    sc.run(bb, items, fixed, marks, post=post)
    p = {id(x): k for k, x in enumerate(stream)}
    iL, iC1, iBr, iL2, iC2, iBr2 = (p[id(x)] for x in (labL, chk1, brL, labL2, chk2, brL2))
    segP = stream[:iL]; segL = stream[iL:iC1 + 1]; segB = stream[iC1 + 1:iBr + 1]
    one, two = stream[iL:iBr + 1], stream[iL2:iBr2 + 1]
    a = [x.text for x in one[1:]]; b = [x.text for x in two[1:]]
    if a != b:
        for k, (x, y) in enumerate(zip(a, b)):
            if x != y: sys.stderr.write(f"loop mismatch at {k}: {x} | {y}\n"); break
        raise SystemExit("loop instances differ")
    mp = {id(y): x for x, y in zip(one, two)}
    for x, y in zip(one, two): x.needs = x.needs + [mp.get(id(z), z) for z in y.needs]
    def keyed(its):
        cnt, out = {}, {}
        for it in its:
            k = (it.T[0], it.ins.text); cnt[k] = cnt.get(k, 0) + 1; out[k + (cnt[k],)] = it
        return out
    old = {k: it for k, it in keyed(items).items() if it.placed and p[id(it.ins)] <= iC2}
    TFIN[0] = 48; TE = 48 + DL
    for d in (QKm, PVm, SMm):
        for k in [k for k in d if k[0] >= 48 and (k[0] >= TE or (k[2] if d is not SMm else 2 * k[1]) not in (2, 3))]: del d[k]
    for T in range(TE - 1 if TE % 2 == 0 else TE, NT + 2): BARm.pop(T, None)
    for j in range(32):
        buf = Kf(0, 0) + 4 * (j % 8)
        VCm[j] = mfma(L(2), buf, buf, j == 0, dk="a")
    tbb = []
    for T in range(48, TE + 1): tbb += backbone_period(T)
    items.clear(); pwriters.clear(); lprev.clear()
    for k in [k for k in unit_free if k[0] == 32]: del unit_free[k]
    for T in range(46, TE): gen_items(T)
    for T in range(48, TE): curT[0] = T; items_kwrite(T)
    endT = I("; end of tail", "label"); endA = I("; group A stored", "label")
    curT[0] = 5000
    if DL: items_epilogue(47, tbb[len(tbb) - cfg.nvc - 20])
    items_epilogue(TE - 1, endT)
    if not cfg.vc1: va = add(valu(f"v_add_u32 v{vVD}, s{sVC}, v{vKR}", [f"v{vKR}"], [f"v{vVD}"]), dead=[PVm[TE - 1, 2, act(TE - 1)[0]]], tag="vc")
    for j in range(cfg.nvc):
        d = R("a", Kf(0, 0) + 4 * (j % 8), 4)
        lastu = [(QKm[TE - 1, (j % 8) // 4, act(TE - 1)[-1], j % 4], 0)] if j < 8 else [(VCm[j - 8], 0)]
        add(I(f"ds_read_b128 {d}, v{vVD} offset:{j*1024}", "dsr", rd=[f"v{vVD}"], wr=[d]), after=[(va.ins, 0)] + lastu, dead=[VCm[j]], tag="vc", prio=-6)
    if cfg.vc1:
        fl = P(1, 4)
        x = I(f"buffer_load_ubyte v{fl}, off, s[{sWS}:{sWS+3}], s2 sc1", "vld", wr=[f"v{fl}"], cost=8); x.fast = True
        add(x, dead=[firstm[49]], tag="vc")
        gx = I("\n    ".join([f"v_cmp_ne_u32 s[6:7], 0, v{fl}",
                               f"v_cmp_lt_u32 vcc, 0x6f800000, v{vHI}",
                               f"v_cmp_gt_u32 s[50:51], 1.0, v{vLO}    ; some l < 1", "s_nop 1",
                               "s_or_b64 vcc, vcc, s[6:7]", "s_or_b64 vcc, vcc, s[50:51]", f"s_cselect_b32 s{sFAIL}, 0x1fffff, s{sFAIL}"]),
               "br", rd=[f"v{vHI}", f"v{vLO}", f"v{fl}"], wr=["vcc", f"v{fl}"], cost=40)
        gx.block = True
        add(gx, after=[(x, 0)] + [(z, 0) for z in lprev] + [x_.after[0] for x_ in tail_stores[-2:]], dead=[endT], tag="ep", prio=5000)
        for x in tail_stores[-2:]: x.after.append((gx, 0))
    elif cfg.tlds:
        assert TE % 4 == 3
        gx = I("\n".join(guard_text()).strip(), "br", rd=[f"v{vHI}", f"v{vLO}", R("a", L(2), 4)], wr=["v[0:7]", "vcc"], cost=200)
        git = add(gx, after=[(VCm[cfg.nvc - 1], 0)] + [(z, 0) for z in lprev], dead=[endT], tag="ep", prio=-5000)
        for x in tail_stores[cfg.exk:]:
            x.after.append((gx, 0)); x.dabs = None
    alias = {}
    for k, it in keyed(items).items():
        if k in old: alias[id(it.ins)] = old[k].ins; it.ins = old[k].ins; it.placed = True
    tfixed = {id(bar_spot(T)): [BARm[T]] for T in range(48, TE) if T in BARm}
    known = {id(x) for x in stream[:iC2 + 1]} | {id(x) for x in tbb} | {id(it.ins) for it in items} | {id(x) for l_ in tfixed.values() for x in l_}
    for it in items: it.after = [(alias.get(id(a_), a_), d_) for a_, d_ in it.after if id(alias.get(id(a_), a_)) in known]
    for T in range(48, TE):
        if T in BARm: bar_needs(T)
    tstream = stream[:iC2 + 1]
    labT = I("L_tail:", "label")
    tm = {0: [labT] + stamp(2, False, 5)}
    if cfg.stamps == 5:
        for T in range(49, TE + 1): tm[tbb.index(firstm[T])] = stamp(T - 46, False, 5)
        if cfg.nvc: tm[tbb.index(VCm[0])] = stamp(8, False, 5)
    if cfg.wbl2:
        pos_ = {1: tbb.index(firstm[TE]), 2: 1, 3: tbb.index(firstm[TE - 1])}[cfg.wbl2]
        tm.setdefault(pos_, []).append(I(f"s_lshl_b32 s{sT1}, s2, 2\n    s_add_u32 s{sT1}, s{sT1}, s{sW}\n    s_and_b32 s{sT1}, s{sT1}, {cfg.wbmask}\n    s_cbranch_scc1 L_nowb\n    buffer_wbl2 sc1\nL_nowb:", "br"))
    tp = {0: tm.pop(0)} if cfg.shadowbr else {}
    Sched(tstream).run(tbb, items, tfixed, tm, endins=endT, post=tp)
    segT = tstream[iC2 + 1:]
    assert segT[0] is labT, segT[:3]
    assert all(it.placed for it in items)
    for x in segT: x.needs = [mp.get(id(z), z) for z in x.needs]
    linear = segP + segL + segB + segL + segB + segL + segT
    waits = insert_waits(linear)
    nops = fix_hazards(linear, waits)
    sys.stderr.write(f"instr: P {len(segP)} L {len(segL)} B {len(segB)} T {len(segT)}; waits {len(waits)}; nops {sum(nops.values())} at {len(nops)} sites\n")
    mk = {id(stream[p[id(bb[start[T]])]]): T for T in range(32 + C)}
    mk.update({id(firstm[T]): T for T in range(48, TE + 1)})
    simulate(segP + segL + segB + segL + segT, waits, nops, mk)
    loop = render(segL, waits, nops) + render(segB, waits, nops)
    if cfg.drop:
        pat = {"v": "ds_read_b64_tr", "k": "ds_read_b128", "w": "ds_write", "s": "v_smfmac", "e": "v_exp", "c": r"v_cvt_pk_bf16_f32 v1[6-9]\d, v20", "q": "v_accvgpr_(write_b32 a\d+, v|mov)",
               "m": "v_mul_f32", "t": "buffer_store", "l": "buffer_load", "b": "s_barrier"}
        for ch in cfg.drop: loop = [x for x in loop if not re.search(pat[ch], x)]
    sk = []
    if cfg.skew:
        sk = [f"    s_mov_b32 s{sT1}, s{sW}" if cfg.skew > 0 else f"    s_lshr_b32 s{sT1}, s{sW}, 1", "L_sk:", f"    s_cmp_eq_u32 s{sT1}, 0", "    s_cbranch_scc1 L_sk2", f"    s_sub_u32 s{sT1}, s{sT1}, 1", f"    s_nop {abs(cfg.skew)}", "    s_branch L_sk", "L_sk2:"]
    body = render(segP, waits, nops) + sk + loop + render(segT, waits, nops)
    return body

HEADER = open("standalone__mha_softmax__near_ridge.s.ref").read().split("; Override launch")[0]
def add_pads(lines):
    import subprocess
    lines = [x for l in lines for x in l.split("\n")]
    src = '.amdgcn_target "amdgcn-amd-amdhsa--gfx950"\n.text\n' + "\n".join(lines) + "\nL_end:\n s_endpgm\n"
    open("_pads.s", "w").write(src)
    subprocess.run(["clang", "-x", "assembler", "-target", "amdgcn-amd-amdhsa", "-mcpu=gfx950", "-c", "_pads.s", "-o", "_pads.o"], check=True)
    d = subprocess.run(["llvm-objdump", "-d", "--mcpu=gfx950", "_pads.o"], capture_output=True, text=True).stdout
    sizes = [4 * len(m.group(1).split()) for m in re.finditer(r"// [0-9A-F]+: ((?:[0-9A-F]{8} ?)+)", d)]
    isins = lambda x: x.startswith("    ") and not x.strip().startswith(";")
    assert len(sizes) == sum(map(isins, lines)) + 1
    warm = ["    s_mov_b64 vcc, -1"] + [y for w in range(3) for y in (f"    s_cmp_eq_u32 s{sW}, {w}", f"    s_cbranch_scc1 L_pad{w}")] + ["    s_branch L_pad3", "L_back:", "    s_mov_b64 vcc, 0"]
    out, k, addr, want, npad, prev_m, stop = [], 0, None, [], 0, False, False
    for x in lines:
        if x.strip() == "; BODY_ALIGN":
            out += ["    s_mov_b64 vcc, 0", "    s_branch L_body", ".p2align 12", "L_body:"]; addr = 0
            want = [p * 4096 + j * cfg.padoff for p in range(1, 32) for j in range(cfg.pads)]
            continue
        if x.strip() == "; WARM_UP":
            out += warm; addr += 4 * (len(warm) - 1); k += 0; continue
        if "V magnitude guard" in x or "slow path" in x: stop = True
        if isins(x):
            if addr is not None and not stop and addr >= want[0] and ((prev_m and not x.strip().startswith("s_")) or addr >= want[0] + 48):
                out += [f"L_pad{npad}:", f"    s_cbranch_vccnz PADNEXT{npad}"]; npad += 1; addr += 4; want.pop(0)
            if addr is not None: addr += sizes[k]
            k += 1
            prev_m = x.strip().startswith(("v_mfma", "v_smfmac"))
        out.append(x)
    assert npad >= 4
    return [re.sub(r"PADNEXT(\d+)", lambda m: f"L_pad{int(m.group(1)) + 4}" if int(m.group(1)) + 4 < npad else "L_back", x) for x in out]

def main():
    body = build()
    if cfg.pads:
        fin = finale()
        body = add_pads(body + fin)
        globals()["finale"] = lambda: []
    out = HEADER + f"""; Design (hand-written via my own scheduling script):
;  * one workgroup (4 waves, 512 registers each) per (batch, head); v_mfma_f32_16x16x32_bf16 throughout.
;  * V stays in LDS (128 KB).  K is scaled once by log2(e)/sqrt(D), kept in registers (a quarter per wave) and
;    re-published to the other waves through a 32 KB LDS ring.  Every wave walks 16-row blocks of Q
;    (5 at a time in the first sweep over the keys, then 4); S^T = K Q^T, P = exp2(S^T), O^T += V^T P,
;    the row sums come from a sparse MFMA with a ones pattern.
;  * softmax guard: the fast path uses shift 0 instead of the row maximum (softmax is shift invariant).  It is
;    only kept when every row sum lies in [1, 2^96] and every |v| < 2^30 (checked at run time, NaN/inf included),
;    which rules out overflow and any loss from underflow; otherwise the wave recomputes its rows in the slow
;    path at the end, which subtracts the true row maximum.
; @launch grid=(256,1,1) block=(256,1,1) lds=163840
.amdgcn_target "amdgcn-amd-amdhsa--gfx950"
.text
.globl {KNAME}
.p2align 8
.type {KNAME},@function
{KNAME}:
""" + "\n".join(body) + "\n" + "\n".join(finale()) + f"""
L_end:
    s_endpgm
.section .rodata,"a"
.p2align 6
.amdhsa_kernel {KNAME}
  .amdhsa_next_free_vgpr 512
  .amdhsa_next_free_sgpr 102
  .amdhsa_accum_offset 256
  .amdhsa_group_segment_fixed_size 0
  .amdhsa_kernarg_size 48
  .amdhsa_user_sgpr_count 2
  .amdhsa_user_sgpr_kernarg_segment_ptr 1
  .amdhsa_system_sgpr_workgroup_id_x 1
.end_amdhsa_kernel
"""
    open(sys.argv[1], "w").write(out)
main()
```

```python
import sys, struct, math, re
from core import *

class Cfg:
    dmap = "A"
    LK = 3
    LV = 2
    delta = 3
    noswap = True
    busy64 = True
    oflagsFA = "="
    oflagsFB = "="
    wr64 = False
    CUT = 10
    leadT = 11
    ta_slow = 250
    ta_fast = 90
    v0first = True
    dsmargin = 7
    st3 = 0
    jitfirst = True
    tq0 = 2
    tstep = 16
    st0 = 60
    tqstep = 10
    ownk = True
    emptybar = False
    shadowbr = True
    splitq = True
    lateA = 0
    lateB = 0
    wmargin = 7
    ymargin = 0
    touch = 0
    toucho = False
    touchkv = False
    order = ""
    nvbar = 1
    pads = 1
    padoff = 128
    k2g = 1
    ksT = 0
    pairld = False
    vc1 = False
    tlds = False
    tpk = False
    tx0 = 8
    txstep = 6
    exk = 5
    nvc = 32
    kvg = True
    ksd = 0
    gs = "246789"
    klin = True
    stE = 50
    drop = ""
    skew = 0
    repf = False
    early0 = 2
    e2T = 11
    e0g = 3
    pf1 = 8
    pf2 = 23
    pf3 = 9
    wbl2 = 0
    wbmask = 0x3e3
    pairst = False
    grow = 0
    stF0 = 20
    stFstep = 12
    jitstep = 2
    qstage = True
    sm0 = True
    tl0 = 6
    tlstep = 5
    wrn = 2
    kdoff = 14
    kstep = 8
    ldslat = 110
    qpf0 = 8
    lead = 0
    qflags = " nt"
    oflags = ""
    kvflags = " nt"
    pfflags = " nt"
    pf_period = 11
    stamps = 0
    spin = 0
    extra = 0
    dbg = -1
    force_fallback = False
    vahead = 2
    codepf = True
cfg = Cfg()
for a in sys.argv[2:]:
    k, v = a.split("=", 1)
    old = getattr(cfg, k)
    setattr(cfg, k, (v == "1") if isinstance(old, bool) else type(old)(v.replace("+", " ")))

if cfg.vc1: cfg.nvc = 0
KNAME = "standalone__mha_softmax__near_ridge_kernel"
SQ, SK, D = 1312, 512, 128
HEADQ = SQ * D * 2
HEADK = SK * D * 2
RING = 131072
CSCALE = struct.unpack("<I", struct.pack("<f", math.log2(math.e) / math.sqrt(D)))[0]

vO, vP, vS, vVf = 0, 160, 200, 208
vVA = 224
vHI, vLO = 226, 227
vKR, vKW, vQA, vOA, vPF, vIDX, vVD = 228, 229, 230, 231, 232, 233, 234
if cfg.ownk:
    assert cfg.noswap and not cfg.repf
    vOA = vQA if cfg.dmap == "A" else 255
    vKC = [228, 229, 235, 231]; vKW = 254
sX = [28, 46, 47, 48]
vT = 235
vKt = [236, 244]; vKx = [252, 253]
vW = [236, 240, 244]
vRI = 248
vL0, vL1, vDUM = 253, 254, 255
if vOA == 255:
    assert not cfg.vc1
    vDUM = 6
aQ, aST, aKf, aL, aSA = 0, 80, 208, 240, 252
def O(qs, b): return vO + 32 * qs + 4 * b
def P(T, qs): return vP + 20 * (T % 2) + 4 * qs
def S(c): return vS + 4 * (c % 2)
def Vf(f): return vVf + 4 * (f % 4)
def Q(qs, s): return aQ + 16 * qs + 4 * s
def Kf(blk, s): return aKf + 16 * blk + 4 * s
def ST(j, e): return aST + 8 * (j % 16) + 4 * e
def KA(T, blk, s): return ST(T, blk) if (cfg.ownk and s == 0) else Kf(blk, s)
def L(p): return aL + 4 * p
sQ, sK, sV, sO = 8, 12, 16, 20
sW = 24; sC = 25; sMASK = 26; sFAIL = 27; sBIT = 28; sCNT = 29
sOr = 30
sQn = 35
sKo, sVo, sM0 = 40, 41, 42
sT0, sT1, sT2 = 43, 44, 45
sLO, sRNG = 46, 47
sTS = 48
def off(s): return 64 * s if cfg.dmap == "A" else 128 * (s >> 1) + 16 * (s & 1)
GST = 16 if cfg.dmap == "A" else 32

DL = cfg.delta
TFIN = [1 << 30]
def act(T):
    if T < 0: return []
    if T < 16: return [0, 1, 2, 3, 4]
    if T >= TFIN[0] + DL: return []
    if T >= TFIN[0]: return [2, 3]
    if T < 16 + DL: return [0, 1]
    if DL and T >= 32 and (T % 16 == 0 or T % 16 == DL - 1): return [2, 3, 0, 1]
    return [0, 1, 2, 3]
def n_of(T): return len(act(T))
def phase(qs): return DL if qs in (2, 3) else 0
def isfirst(T, qs): return T == 0 or (T >= 16 and T % 16 == phase(qs))
def islast(T, qs): return T == 15 or (T > 16 + DL and (T + 1) % 16 == phase(qs))
def nextstart(T, qs):
    return 16 + phase(qs) if T == 15 else T + 1

def mfma(d, a, b, zero, dk="v", ak="a", bk="a"):
    D_, A_, B_ = R(dk, d, 4), R(ak, a, 4), R(bk, b, 4)
    return I(f"v_mfma_f32_16x16x32_bf16 {D_}, {A_}, {B_}, {'0' if zero else D_}", "mfma",
             rd=[A_, B_] + ([] if zero else [D_]), wr=[D_], acc=not zero)
def valu(text, rd, wr, kind="valu"): return I(text, kind, rd=rd, wr=wr)
def salu(text, rd=(), wr=()): return I(text, "salu", rd=rd, wr=wr)

class Item:
    __slots__ = ("ins", "after", "dead", "prio", "early", "tag", "placed", "T", "seq", "soft", "doff", "pace", "dabs", "nb")
    def __init__(self, ins, after=(), dead=None, early=None, tag="", prio=0, doff=0, pace=None):
        self.doff = doff; self.pace = pace; self.dabs = None; self.nb = None
        self.ins = ins; self.after = list(after); self.dead = dead; self.early = early
        self.tag = tag; self.prio = prio; self.placed = False

QKm, PVm, SMm, BARm, VCm = {}, {}, {}, {}, {}
def chain(T, g):
    a = act(T)
    if T == 15: return (g % 2, a[g // 2])
    if T == 0 and cfg.sm0: return [(0, 0), (1, 0), (0, 1), (1, 1), (0, 2), (1, 2), (0, 3), (0, 4), (1, 3), (1, 4)][g]
    return (g // len(a), a[g % len(a)])
def mk_step(T):
    for g in range(2 * n_of(T)):
        blk, qs = chain(T, g)
        for s in range(4):
            QKm[T, blk, qs, s] = mfma(S(g), KA(T, blk, s), Q(qs, s), s == 0)
    for b in range(8):
        for qs in act(T):
            PVm[T, b, qs] = mfma(O(qs, b), Vf(b), P(T, qs), isfirst(T, qs), ak="v", bk="v")
    for p in pairs(T):
        d, b = R("a", L(p), 4), R("v", P(T, pair_lo(p)), 8)
        SMm[T, p] = I(f"v_smfmac_f32_16x16x64_bf16 {d}, {R('a', aSA, 4)}, {b}, v{vIDX}", "smf",
                      rd=[d, b, R("a", aSA, 4), f"v{vIDX}"], wr=[d], acc=True)
def pair_of(qs): return 2 if qs == 4 else qs // 2
def pairs(T):
    out = []
    for qs in act(T):
        if pair_of(qs) not in out: out.append(pair_of(qs))
    return out
def pair_lo(p): return 3 if p == 2 else 2 * p
def pvlist(T): return [PVm[T, b, qs] for b in range(8) for qs in act(T)]
firstm = {}
notes = {}
VC1 = {(T, dh): mfma(Kf(1, 0), Kf(0, 0), Kf(0, 0), T == 0 and dh == 0, dk="a") for T in range(16) for dh in range(2)}

def backbone_period(T):
    tail = n_of(T) == 0
    pv = pvlist(T - 2)[-4:] + (pvlist(T - 1) if tail else pvlist(T - 1)[:-4])
    sm = [SMm[T - 1, p] for p in pairs(T - 1)]
    out = []
    if tail:
        out += pv[:6] + sm + pv[6:] + [VCm[j] for j in range(cfg.nvc)]
        for k, m in enumerate(out): m.pref = "T" if (k < 4) else "D"
        firstm[T] = out[0]
        return out
    n = n_of(T); G = 2 * n
    lead = cfg.leadT if T == 16 else cfg.lead if (T > 16 and any(islast(T - 1, q) for q in act(T - 1))) else 0
    if lead:
        nl = 4 * lead
        head = pv[:nl]; pv = pv[nl:]
        if lead >= 2:
            head = head[:4] + [sm[0]] + head[4:8] + sm[1:] + head[8:]
            sm = []
        for k, m in enumerate(head): m.pref = "T" if k < 4 else "D"
        out += head
    if T == 1: cnt = [0] + [4] * (G - 1)
    elif len(pv) < 4 * G and not lead:
        r = len(pv) - 4; cnt = [min(4, len(pv))] + [r // (G - 1) + (1 if g < r % (G - 1) else 0) for g in range(G - 1)] if len(pv) >= 4 else [0] * G
    else:
        cnt = [len(pv) // G + (1 if g < len(pv) % G else 0) for g in range(G)]
    smpos = {}
    if sm:
        early = any(islast(T - 1, q) for q in act(T - 1)) and len(sm) > 1
        spots = [0 if early else 1, G // 2 + 1, G - 2]
        for m, g in zip(sm, spots): smpos.setdefault(min(g, G - 1), []).append(m)
    if cfg.vc1 and 1 <= T < 16:
        for dh in range(2):
            smpos.setdefault(6 + 2 * dh, []).append(VC1[T, dh])
            if T == 1: smpos.setdefault(2 + 2 * dh, []).append(VC1[0, dh])
    k = 0
    for g in range(G):
        blk, qs = chain(T, g)
        grp = [QKm[T, blk, qs, s] for s in range(4)] + pv[k:k + cnt[g]]
        k += cnt[g]
        L_ = len(grp)
        for j, m in enumerate(grp):
            m.pref = "T" if (L_ >= 8 and j % 2 == 0 and j < 8) or (L_ < 8 and j in {4: (0, 1, 2, 3), 5: (0, 1, 3, 4), 6: (0, 2, 3, 5), 7: (0, 2, 4, 6)}[L_]) else "D"
        out += grp
        for m in smpos.get(g, []):
            m.pref = "D"; out.append(m)
    firstm[T] = out[0]
    return out

items = []
glue = {}
curT = [-200]
ordn = {}
def add(ins, **kw):
    it = Item(ins, **kw); ordn[curT[0]] = ordn.get(curT[0], 0) + 1; it.T = (curT[0], ordn[curT[0]]); it.seq = len(items); items.append(it); return it

cvts = {}
def items_softmax(T):
    n = n_of(T)
    for g in range(2 * n):
        blk, qs = chain(T, g)
        last = QKm[T, blk, qs, 3]
        if g + 2 < 2 * n: nxt = QKm[(T,) + chain(T, g + 2) + (0,)]
        elif n_of(T + 1): nxt = QKm[(T + 1,) + chain(T + 1, g + 2 - 2 * n) + (0,)]
        else: nxt = None
        use = PVm[T, 0, qs]
        ng = QKm[(T,) + chain(T, g + 1) + (0,)] if g + 1 < 2 * n else firstm[T + 1]
        sms = [SMm[T, p] for p in pairs(T) if pair_lo(p) <= qs <= pair_lo(p) + 1]
        ex = []
        for r in range(4):
            v = f"v{S(g)+r}"
            ex.append(add(valu(f"v_exp_f32 {v}, {v}", [v], [v], "trans"), after=[(last, 8), (ng, 0)] + ([(ex[-1].ins, 0)] if ex else []),
                          dead=[nxt, use], tag="sm"))
        for h in range(2):
            d = f"v{P(T, qs) + 2*blk + h}"; a, b = f"v{S(g)+2*h}", f"v{S(g)+2*h+1}"
            aft = [(ex[2*h].ins, 1), (ex[2*h+1].ins, 1)]
            if qs in act(T - 2): aft.append((PVm[T - 2, 7, qs], 0))
            aft += [(SMm[T - 2, p], 0) for p in pairs(T - 2) if pair_lo(p) <= qs <= pair_lo(p) + 1]
            it = add(valu(f"v_cvt_pk_bf16_f32 {d}, {a}, {b}", [a, b], [d]), after=aft, dead=[nxt, use] + sms, tag="sm")
            pwriters.setdefault((T, P(T, qs)), []).append(it)
pwriters = {}

kreads = {}
def bar_pub(T):
    return BARm[T - 1] if T < 16 else BARm[(T // 2) * 2 - 1]
def items_kread(T):
    n = n_of(T)
    for blk in range(2):
        for s in range(4):
            if cfg.ownk and s == 0 and T >= 16: continue
            d = R("a", KA(T, blk, s), 4)
            if cfg.ownk: ins = I(f"ds_read_b128 {d}, v{vKC[s]} offset:{(T % 4) * 8192 + blk * 4096}", "dsr", rd=[f"v{vKC[s]}"], wr=[d])
            else: ins = I(f"ds_read_b128 {d}, v{vKR} offset:{(T % 4) * 8192 + (4*blk+s) * 1024}", "dsr", rd=[f"v{vKR}"], wr=[d])
            aft = [(bar_pub(T), 0)]
            if T >= 1 and not (cfg.ownk and s == 0): aft.append((QKm[T - 1, blk, act(T - 1)[-1], s], 0))
            dl = [QKm[T, blk, act(T)[0], 0]]
            if blk == 1 and T % 2 == 1 and T != 15 and T in BARm: dl.append(BARm[T])
            kreads[T, blk, s] = add(ins, after=aft, dead=dl, tag="qk", prio=-12, doff=cfg.ymargin if len(dl) > 1 else 0)
vreads = {}
vtog = {}
def vbar(T):
    if T == 0: return BARm["V0"]
    return BARm.get(f"V{T}", BARm[T])
def vsel(b):
    return ((b >> 1) & 1, b >> 2, 8 * (b & 1)) if cfg.noswap else (b & 3, b >> 2, 0)
NVA = 2 if cfg.noswap else 4
def items_vread(T):
    for b in range(8):
        f = 8 * T + b
        pT, pb = divmod(f - 4, 8)
        aft = []
        if f >= 4: aft.append((PVm[pT, pb, act(pT)[-1]], 0))
        va = cfg.vahead if n_of(T) > 2 else 3
        aT, ab = divmod(f - va - 1, 8)
        if f - va - 1 >= 0: aft.append((PVm[aT, ab, act(aT)[-1]], 0))
        if T < 16: aft.append((vbar(T), 0))
        c, dh, e8 = vsel(b)
        if T % 8 == 0 and T > 0 and dh == 0: aft.append((vtog[T, c].ins, 0))
        prev = None
        for blk in range(2):
            d = R("v", Vf(f) + 2 * blk, 2)
            ins = I(f"ds_read_b64_tr_b16 {d}, v{vVA+c} offset:{dh*32768 + (T % 8)*4096 + blk*2048 + e8}", "dsr",
                    rd=[f"v{vVA+c}"], wr=[d])
            vreads[T, b, blk] = add(ins, after=aft + ([(prev, 0)] if prev else []), dead=[PVm[T, b, act(T)[0]]], tag="v", prio=-12)
            prev = ins
def items_vtoggle(T):
    for c in range(NVA):
        v = f"v{vVA+c}"
        use = [b for b in range(8) if vsel(b)[0] == c]
        vtog[T, c] = add(valu(f"v_xor_b32 {v}, 0x10000, {v}", [v], [v]), after=[(vreads[T - 1, b, 1].ins, 0) for b in use],
                         dead=[PVm[T, use[0], act(T)[0]]], tag="v", prio=-24, doff=cfg.dsmargin + 4)

kwrites = {}
kloads = {}
def busy(T):
    return T < 26 or T >= TFIN[0] or (T % 16) in (2, 3, 4, 5, 6, 7, 8, 9)
KWE = 128 if cfg.klin else 1024
def items_kwrite(T):
    m = T // 2
    if T < 16: opn, cls = BARm[max(T - 3, -1)], BARm[T - 1]
    else: opn, cls = BARm[2 * m - 3], BARm[2 * m - 1]
    ws = []
    def wr(src, r, nreg, **kw):
        x = R(src[0], src[1] + r, nreg)
        ad, st_ = (vKC[0], 4096) if (cfg.ownk and T >= 16) else (vKW, KWE)
        return add(I(f"ds_write_b{32*nreg} v{ad}, {x} offset:{(T % 4)*8192 + (r//4)*st_ + (r % 4)*4}", "dsw", rd=[f"v{ad}", x],
                     cost={1: 8, 2: 12, 4: 26}[nreg]), tag="qk", **kw)
    nr = cfg.wrn
    if T < 16:
        st = vKt[T % 2]
        prev_w = kwrites.get(T - 2)
        done = []
        for r in range(8):
            a = f"a{ST(T, 0) + r}"; x = f"v{st + r}"; t = f"v{vKx[r % 2]}"
            do = (cfg.kdoff + (7 - r) * cfg.kstep) if T >= 2 else 2 + (7 - r)
            kw = dict(dead=[cls], tag="qk", doff=do + 2)
            aft = [(kloads[T][r // 4], 0)]
            if prev_w: aft.append((prev_w[r * len(prev_w) // 8].ins, 0))
            aft.append(((start_of(T - 1) if T <= cfg.ksT else mid_of(T - 2)) if T >= 3 else (QKm[0, 0, 4, 3] if cfg.k2g < 0 else QKm[1, 0, cfg.k2g, 0]) if T == 2 else QKm[0, 0, 1, 3], 0))
            if not cfg.kvg: aft = [(add(valu(f"v_accvgpr_read_b32 {x}, {a}", [a], [x]), after=aft, prio=-5, **kw).ins, 0)]
            i1 = add(valu(f"v_lshlrev_b32 {t}, 16, {x}", [x], [t]), after=aft + ([(chain_prev[r % 2], 0)] if chain_prev[r % 2] else []), prio=-4, **kw)
            i2 = add(valu(f"v_and_b32 {x}, s{sMASK}, {x}", [x, f"s{sMASK}"], [x]), after=[(i1.ins, 0)], prio=-3, **kw)
            i3 = add(valu(f"v_mul_f32 {t}, s{sC}, {t}", [t, f"s{sC}"], [t]), after=[(i1.ins, 0)], prio=-2, **kw)
            i4 = add(valu(f"v_mul_f32 {x}, s{sC}, {x}", [x, f"s{sC}"], [x]), after=[(i2.ins, 0)], prio=-1, **kw)
            i5 = add(valu(f"v_cvt_pk_bf16_f32 {x}, {t}, {x}", [t, x], [x]), after=[(i3.ins, 0), (i4.ins, 0)], prio=0, **kw)
            chain_prev[r % 2] = i5.ins; done.append(i5.ins)
            if r % nr == nr - 1:
                ws.append(wr(("v", st), r - nr + 1, nr, after=[(opn, 0)] + [(x_, 0) for x_ in done[-nr:]], dead=[cls], doff=max(do - 8, 1)))
        rb = []
        for e in range(0 if cfg.ownk else 2):
            d = R("a", ST(T, e), 4)
            ins = I(f"ds_read_b128 {d}, v{vKW} offset:{(T % 4)*8192 + e*1024}", "dsr", rd=[f"v{vKW}"], wr=[d])
            rb.append(add(ins, after=[(w_.ins, 0) for w_ in ws[e * len(ws) // 2:(e + 1) * len(ws) // 2]], dead=[BARm[T]], tag="qk", prio=0))
        readback[T] = rb
        if cfg.kvg:
            assert cfg.ownk and cfg.LK == 3
            for e, it in enumerate(kload_items.get(T + 2, [])): it.after += [(w_.ins, 0) for w_ in ws[e * len(ws) // 2:(e + 1) * len(ws) // 2]]
    else:
        nw_ = 8 // nr
        for k in range(nw_):
            ws.append(wr(("a", ST(T, 0)), k * nr, nr, after=[(opn, 0)] + ([(ws[-1].ins, 0)] if ws else ([(kwrites[T-1][-1].ins, 0)] if T % 2 else [])),
                         dead=[cls], pace=(opn, ((T % 2) * nw_ + k + 1) / (2.0 * nw_))))
    kwrites[T] = ws
chain_prev = [None, None]
readback = {}
def mid_of(T): return QKm[(T,) + chain(T, n_of(T)) + (0,)]
def bar_spot(T): return QKm[0, 0, 4, 3] if T == 0 else QKm[(T,) + chain(T, n_of(T) - 1) + (3,)]
def start_of(T): return QKm[(T,) + chain(T, 0) + (0,)]

def kload_ins(j):
    out = []
    for e in range(2):
        d = R("v", vKt[j % 2] + 4 * e, 4) if cfg.kvg else R("a", ST(j, e), 4)
        va, o_ = (vVD, 2048 * e) if cfg.klin else (vQA, off(1) * e)
        out.append(I(f"buffer_load_dwordx4 {d}, v{va}, s[{sK}:{sK+3}], s{sKo} offen offset:{o_}{cfg.kvflags}", "vld",
                     rd=[f"v{va}", f"s{sKo}", f"s[{sK}:{sK+3}]"], wr=[d]))
        out[-1].fast = cfg.klin
    return out
def vdma_ins(j):
    out = []
    for dh in range(2):
        m0 = (j >> 3) * 65536 + dh * (32768 - 128) + (j & 7) * 4096
        out.append((salu(f"s_add_u32 m0, s{sM0}, {m0}", [f"s{sM0}"], ["m0", "scc"]),
                    I(f"buffer_load_dwordx4 v{vVD}, s[{sV}:{sV+3}], s{sVo} offen offset:{128*dh}{cfg.kvflags} lds", "dma",
                      rd=[f"v{vVD}", f"s{sVo}", "m0", f"s[{sV}:{sV+3}]"])))
    return out
vdmas = {}
last_vm = [None]
def add_kload(j, after, dead):
    up = add(salu(f"s_add_u32 s{sKo}, s{sKo}, 8192", [f"s{sKo}"], [f"s{sKo}", "scc"]),
             after=after + ([(last_vm[0], 0)] if last_vm[0] else []), dead=dead, tag="ld", prio=-30)
    ins = kload_ins(j); kloads[j] = ins
    prev = up.ins
    for x in ins:
        kload_items.setdefault(j, []).append(add(x, after=[(prev, 0)], dead=dead, tag="ld", prio=-25)); prev = x
    last_vm[0] = prev
kload_items = {}
def add_vdma(j, after, dead):
    prev = last_vm[0]
    if j > 0:
        prev = add(salu(f"s_add_u32 s{sVo}, s{sVo}, 8192", [f"s{sVo}"], [f"s{sVo}", "scc"]),
                   after=after + ([(prev, 0)] if prev else []), dead=dead, tag="ld", prio=-30).ins
    vdmas[j] = []
    for sm0, dm in vdma_ins(j):
        add(sm0, after=after + [(prev, 0)], dead=dead, tag="ld", prio=-28)
        add(dm, after=[(sm0, 1)], dead=dead, tag="ld", prio=-25); prev = dm
        vdmas[j].append(dm)
    last_vm[0] = prev
def items_loads(T):
    if T == 0:
        def spot(g): return QKm[(0,) + chain(0, g) + (0,)], QKm[(0,) + chain(0, g) + (1,)]
        a, d = spot(0)
        prev = last_vm[0]
        for x in q0load(4):
            add(x, after=[(a, 0)] + ([(prev, 1 if x.kind == "dma" else 0)] if prev else []), dead=[d], tag="ld", prio=-50); prev = x
        last_vm[0] = prev
        gs = [int(c) for c in cfg.gs] if cfg.sm0 else [1, 2, 3, 4, 5, 7]
        kj, vj = 2, 0
        if cfg.order:
            for tok in cfg.order.split(","):
                a, d = spot(int(tok[2]))
                if tok[0] == "V": add_vdma(int(tok[1]), [(a, 0)], [d])
                elif tok[1] == "3": add_kload(3, [], [spot(9)[0]])
                else: add_kload(int(tok[1]), [(a, 0)], [d])
            kj, vj = 99, 99
        while kj <= cfg.LK or vj <= cfg.LV:
            a, d = spot(gs.pop(0) if len(gs) > 1 else gs[0])
            if cfg.v0first and vj <= cfg.LV: add_vdma(vj, [(a, 0)], [d]); vj += 1
            if kj <= cfg.LK and not (cfg.kvg and kj == 3): add_kload(kj, [(a, 0)], [d]); kj += 1
            if not cfg.v0first and vj <= cfg.LV: add_vdma(vj, [(a, 0)], [d]); vj += 1
            if cfg.kvg and kj == 3 and vj > cfg.LV: add_kload(3, [], [spot(9)[0]]); kj += 1
        if cfg.qstage:
            for qs in range(5):
                g0 = [chain(0, g) for g in range(10)].index((0, qs))
                aft = [(QKm[(0,) + chain(0, g0 - 1) + (3,)], 0)] if g0 else []
                for s_ in range(4):
                    d_ = R("a", Q(qs, s_), 4)
                    x = I(f"ds_read_b128 {d_}, v{vQR+s_} offset:{qs*4096}", "dsr", rd=[f"v{vQR+s_}"], wr=[d_], needs=qdmas[qs])
                    x.block = True
                    if cfg.pads and qs == 1 and s_ == 0:
                        wu = I("; WARM_UP", "br", cost=4)
                        add(wu, after=aft, dead=[QKm[0, 0, qs, 0]], tag="ld", prio=-200)
                        aft = aft + [(wu, 0)]
                    add(x, after=aft + [(z, 0) for z in qdmas[qs]], dead=[QKm[0, 0, qs, 0]], tag="ld", prio=-100)
        return
    assert cfg.LV <= 3 or not cfg.qstage
    x0, x1 = min(T - 1, cfg.grow), min(T, cfg.grow)
    if x1 > x0 and T + cfg.LV + x0 < 16: add_vdma(T + cfg.LV + x0, [(start_of(T), 0)], [mid_of(T)])
    for j in range(T + cfg.LK + x0, T + cfg.LK + x1 + 1):
        if j < 16: add_kload(j, [(start_of(T), 0)], [start_of(T + 1)])
    if T + cfg.LV + x1 < 16: add_vdma(T + cfg.LV + x1, [(mid_of(T), 0)], [mid_of(T + 1)])

QSTG = 49152
vQD, vQR = 8, 12
sQS = 5
qdmas = {}
def q0load(qs):
    if not cfg.qstage: return qload_ins(qs)
    out = [salu(f"s_add_u32 m0, s{sQS}, {qs*4096}", [f"s{sQS}"], ["m0", "scc"])]
    qdmas[qs] = [I(f"buffer_load_dwordx4 v{vQD+j}, s[{sQ}:{sQ+3}], s{sQn+qs} offen offset:{1024*j}{cfg.qflags} lds", "dma",
                   rd=[f"v{vQD+j}", f"s{sQn+qs}", "m0", f"s[{sQ}:{sQ+3}]"]) for j in range(4)]
    return out + qdmas[qs]
def qload_ins(qs, dst=None):
    out = []
    for s in range(4):
        d = R("a", Q(qs, s), 4) if dst is None else R(dst[s][0], dst[s][1], 4)
        if cfg.ownk:
            out.append(I(f"s_add_u32 s{sT0}, s{sQn+qs}, s{sX[s]}\n    buffer_load_dwordx4 {d}, v{vQA}, s[{sQ}:{sQ+3}], s{sT0} offen{cfg.qflags}", "vld",
                         rd=[f"v{vQA}", f"s{sQn+qs}", f"s[{sQ}:{sQ+3}]"], wr=[d]))
            continue
        out.append(I(f"buffer_load_dwordx4 {d}, v{vQA}, s[{sQ}:{sQ+3}], s{sQn+qs} offen offset:{off(s)}{cfg.qflags}", "vld",
                     rd=[f"v{vQA}", f"s{sQn+qs}", f"s[{sQ}:{sQ+3}]"], wr=[d]))
    return out
def items_qjit():
    prev = None
    early = {}
    if cfg.early0:
        kw_ = lambda t: [(x.ins, 0) for x in kwrites[t]]
        bufs = [(("v", 236 + 4 * k), kw_(14) + (kw_(15) if (k >= 2 or cfg.early0 == 1) else [])) for k in range(4)]
        if cfg.early0 == 2:
            assert cfg.ownk and not cfg.vc1
            bufs = [(("a", Kf(k, 0)), [(vdmas[cfg.e2T + cfg.LV][-1], 0)]) for k in range(2)] + bufs
        for k, (bf_, aft) in enumerate(bufs):
            qs, s_ = divmod(k, 4); early[qs, s_] = bf_
            ins = qload_ins(qs, [bf_] * 4)[s_]
            add(ins, after=aft + ([(prev, 0)] if prev else []), dead=[start_of(15)], tag="qj", prio=-400)
            prev = ins
            for r in range(4):
                d, a_ = f"a{Q(qs, s_) + r}", f"{bf_[0]}{bf_[1] + r}"
                op = "v_accvgpr_write_b32" if bf_[0] == "v" else "v_accvgpr_mov_b32"
                add(valu(f"{op} {d}, {a_}", [a_], [d]), after=[(QKm[15, 1, qs, s_], 0), (QKm[15, 0, cfg.e0g, 0], 0)], dead=[firstm[16]], tag="qc", prio=-3)
    for qs in range(4):
        for s_, ins in enumerate(qload_ins(qs)):
            if (qs, s_) in early: continue
            T1 = nextstart(15, qs)
            dl = [QKm[T1, 0, qs, 0]] + ([firstm[16]] if T1 == 16 and cfg.jitfirst else [])
            it = add(ins, after=[(QKm[15, 1, qs, s_], 0)] + ([(prev, 0)] if prev else []), dead=dl, tag="qj", prio=-400)
            if T1 > 16 and cfg.pairld and s_ % 2: qjit_b[-1].after.append(it.after[0]); glue[id(prev)] = it
            if T1 > 16: qjit_b.append(it)
            elif cfg.jitstep: it.dabs = (QKm[15, 1, qs, 3], 1 + cfg.jitstep * (s_ - len([1 for e in early if e[0] == qs])))
            prev = ins
qjit_b = []
early_done = []
UNITS = [O(4, b) for b in range(8)] + [P(0, 4), P(1, 4), 236, 240, 244]
QBUF = {(qs, s_): ("v", UNITS[4 * qs + s_]) for qs in range(3) for s_ in range(4)}
QBUF.update({(3, s_): ("a", Q(4, s_)) for s_ in range(4)})
unit_free = {}
def items_qpf(base):
    prev = None; hist_ = []
    for qs in range(4):
        T = base + 15 + phase(qs)
        lds_ = qload_ins(qs, [QBUF[qs, s_] for s_ in range(4)])
        for s_, ins in enumerate(lds_):
            k = 4 * qs + s_
            curT[0] = base + cfg.CUT
            pre_ = []
            if cfg.ownk and cfg.splitq:
                a_t, l_t = ins.text.split("\n    ")
                sr = f"s{sT0 if k % 2 == 0 else sT1}"
                ins.text = l_t.replace(f"s{sT0} offen", f"{sr} offen")
                sa = add(salu(a_t.replace(f"s{sT0},", f"{sr},", 1), [], [sr, "scc"]), after=[(rowadv_done[base], 0)] + ([(hist_[-2], 0)] if k >= 2 else []),
                         dead=[start_of(base + 14) if qs < 2 else firstm[base + 16]], tag="qp", prio=-300 + k)
                pre_ = [(sa.ins, 0)]
            hist_.append(ins)
            it_ = add(ins, after=pre_ + [(rowadv_done[base], 0)] + ([(prev, 0)] if prev else []),
                dead=[start_of(base + 14) if qs < 2 else firstm[base + 16]], tag="qp", prio=-200 + k)
            if cfg.pairld and s_ % 2: glue[id(prev)] = it_
            prev = ins
            kind, r0 = QBUF[qs, s_]
            curT[0] = T
            if (T, 1, qs, s_) not in QKm or (T + 1, 0, qs, s_) not in QKm: continue
            for r in range(4):
                d, a_ = f"a{Q(qs, s_) + r}", f"{kind}{r0 + r}"
                op = "v_accvgpr_write_b32" if kind == "v" else "v_accvgpr_mov_b32"
                c = add(valu(f"{op} {d}, {a_}", [a_], [d]), after=[(QKm[T, 1, qs, s_], 0)], dead=[QKm[T + 1, 0, qs, s_]], tag="qc", prio=-3, doff=1)
                if kind == "v": unit_free.setdefault((base, r0), []).append((c.ins, 0))
rowadv_done = {}
sWS = 52
vc_store = []
def items_vcheck():
    assert cfg.ownk
    va = f"v{vPF}"; d = R("a", Kf(0, 0), 4); prev = None; tg = None
    for T in range(16):
        if T == 8: tg = add(valu(f"v_xor_b32 {va}, 0x10000, {va}", [va], [va]), after=[(rd_, 0)], dead=[VC1[8, 0]], tag="vc", doff=14).ins
        for dh in range(2):
            rd_ = I(f"ds_read_b128 {d}, {va} offset:{dh*32768 + (T % 8)*4096}", "dsr", rd=[va], wr=[d], needs=vdmas[T])
            add(rd_, after=[(vbar(T), 0)] + ([(prev, 0)] if prev else []) + ([(tg, 0)] if T == 8 else []), dead=[VC1[T, dh]], tag="vc", prio=-12)
            prev = VC1[T, dh]
    x, y = f"v{vDUM}", f"v{vVD}"; p_ = (prev, 12)
    a = Kf(1, 0)
    sq = [(f"v_accvgpr_read_b32 {x}, a{a}", [f"a{a}"], [x]), (f"v_and_b32 {x}, 0x7fffffff, {x}", [x], [x])]
    for k in range(1, 4):
        sq += [(f"v_accvgpr_read_b32 {y}, a{a+k}", [f"a{a+k}"], [y]), (f"v_and_b32 {y}, 0x7fffffff, {y}", [y], [y]), (f"v_max_u32 {x}, {x}, {y}", [x, y], [x])]
    for tx, r_, w_ in sq: p_ = (add(valu(tx, r_, w_), after=[p_], dead=[start_of(23)], tag="vc").ins, 0)
    blk = I("\n    ".join([f"v_cmp_le_u32 vcc, 0x5d800000, {x}    ; sum of squares >= 2^60 (or NaN)", "s_nop 4", "s_cbranch_vccz L_vok",
                           f"v_mov_b32 {x}, 1", f"buffer_store_byte {x}, off, s[{sWS}:{sWS+3}], s2", "s_waitcnt vmcnt(0)"]) + "\nL_vok:",
            "br", rd=[x], wr=[x, "vcc"], cost=32)
    add(blk, after=[p_], dead=[start_of(24)], tag="vc", doff=1)
def items_codepf(T, label):
    t = f"v{vDUM}"
    a = add(salu(f"s_lshl_b32 s{sT2}, s{sW}, 13\n    s_add_u32 s{sT2}, s{sT2}, {label} - L_pf - {RING * 8}", [], [f"s{sT2}", "scc"]), after=[(start_of(T), 0)], dead=[mid_of(T)], tag="pf")
    a.ins.cost = 8
    b = add(valu(f"v_lshl_add_u32 {t}, v{vKR}, 3, s{sT2}", [f"v{vKR}", f"s{sT2}"], [t]), after=[(a.ins, 0)], dead=[mid_of(T)], tag="pf")
    c = add(valu(f"v_min_u32 {t}, L_end - L_pf, {t}", [t], [t]), after=[(b.ins, 0)], dead=[mid_of(T)], tag="pf")
    x = I(f"global_load_dword v{vDUM}, {t}, s[50:51]", "vld", rd=[t], wr=[f"v{vDUM}"]); x.nowait = True
    add(x, after=[(c.ins, 0)], dead=[start_of(T + 1)], tag="pf")
def items_rowadv(T):
    for qs in range(4):
        a = add(salu(f"s_add_u32 s{sOr+qs}, s{sOr+qs}, {'s3' if cfg.extra else 65536}", [f"s{sOr+qs}"], [f"s{sOr+qs}", "scc"]), after=[(start_of(T), 0)], dead=[mid_of(T)], tag="adv", prio=0)
        b = add(salu(f"s_add_u32 s{sQn+qs}, s{sOr+qs}, {'s4' if cfg.extra else 65536}" + ("\n    s_mov_b32 s3, s4\n    s_cmp_le_u32 s%d, 5\n    s_cselect_b32 s4, 0x10000, 0" % sCNT if cfg.extra and qs == 3 else ""), [f"s{sOr+qs}"], [f"s{sQn+qs}", "scc"]),
                after=[(a.ins, 0)] + ([(rowadv_done[T - T % 16], 0)] if qs else []), dead=[mid_of(T)], tag="adv", prio=0)
        rowadv_done[T - T % 16] = b.ins

lprev = []
def items_epilogue(T, endins):
    slots = sorted(q for q in act(T) if islast(T, q))
    base = (T + 1) // 16 * 16 - 16
    ri = {}
    def over(b, qs):
        T1 = nextstart(T, qs)
        return PVm[T1, b, qs] if qs in act(T1) and qs != 4 else endins
    xs = []
    for qs in slots:
        p = pair_of(qs); h = 1 if qs == 4 else qs % 2
        la, lb = f"a{L(p) + 2*h}", f"a{L(p) + 2*h + 1}"
        x, y, r = f"v{vL0 if qs % 2 == 0 else vPF}", f"v{vL1}", f"v{vRI+qs}"
        kw = dict(dead=[over(0, qs), endins], tag="ep", prio=-400)
        pa = [(z, 0) for z in lprev]
        i0 = add(valu(f"v_accvgpr_read_b32 {x}, {la}", [la], [x]), after=[(SMm[T, p], 12)] + pa, **kw)
        i1 = add(valu(f"v_accvgpr_read_b32 {y}, {lb}", [lb], [y]), after=[(SMm[T, p], 12)] + pa, **kw)
        i2 = add(valu(f"v_add_f32 {x}, {x}, {y}", [x, y], [x]), after=[(i0.ins, 0), (i1.ins, 0)], **kw)
        i3 = add(valu(f"v_rcp_f32 {r}, {x}", [x], [r], "trans"), after=[(i2.ins, 0)], **kw)
        ri[qs] = i3.ins; xs.append((x, i2.ins, i3.ins))
        lprev[:] = [i2.ins]
        if qs % 2 == 1 or qs == 4:
            src = ", ".join(z[0] for z in xs); nm = "3" if len(xs) == 2 else ""
            kw = dict(dead=[endins], tag="ep", prio=-300)
            c1 = add(valu(f"v_max{nm}_u32 v{vHI}, v{vHI}, {src}", [f"v{vHI}"] + [z[0] for z in xs], [f"v{vHI}"]), after=[(z[1], 0) for z in xs], **kw)
            c2 = add(valu(f"v_min{nm}_u32 v{vLO}, v{vLO}, {src}", [f"v{vLO}"] + [z[0] for z in xs], [f"v{vLO}"]), after=[(z[1], 0) for z in xs], **kw)
            lprev[:] = [c1.ins, c2.ins] + [z[2] for z in xs]; xs = []
        T1 = nextstart(T, qs)
        if qs in act(T1) and qs != 4:
            for reg in (la, lb):
                add(valu(f"v_accvgpr_write_b32 {reg}, 0", [], [reg]), after=[(i0.ins, 0), (i1.ins, 0)], dead=[SMm[T1, p], endins], tag="ep", prio=0, doff=1)
    if T == 15:
        def pfree(t, q): return [(PVm[t, 7, q], 0)] + [(SMm[t, p], 0) for p in pairs(t) if pair_lo(p) <= q <= pair_lo(p) + 1]
        pool = [(u, []) for u in (236, 240, 244)] + [(P(14, q), pfree(14, q)) for q in ((4, 2, 3) if DL else (4,))]
        if DL: pool += [(P(15, q), pfree(15, q)) for q in (2, 3)]
    elif slots[0] == 0: pool = [(u, unit_free.get((base, u), [])) for u in (UNITS[:8] if DL else UNITS[-1:] + UNITS[:-1])]
    else: pool = [(u, unit_free.get((base, u), [])) for u in UNITS[12:] + UNITS[8:12] + UNITS[:8]]
    inplace = [q for q in slots if (q == 4 or (T == 15 and phase(q)))] if not endins.text.startswith("; end") else slots
    def seq(sl):
        if cfg.pairst: return [(2 * pp + e, qs) for pp in range(2) for qs in sl for e in range(2)]
        return [(pb, qs) for pb in range(4) for qs in sl]
    order = seq([q for q in slots if q not in inplace]) + seq(inplace)
    tl = cfg.tlds and endins.text.startswith("; end")
    if tl:
        order = [(2 * hf + e, qs) for hf in range(2) for qs in slots for e in range(2)]
        tW, tR, tO = [176, 177], 178, 179
        RB = [[P(0, 0), P(0, 1)], [P(1, 0), P(1, 1)]]
        m_, x_, y_ = "v178", "v176", "v177"
        seqs = [(f"v_mbcnt_lo_u32_b32 {m_}, -1, 0", [], [m_]), (f"v_mbcnt_hi_u32_b32 {m_}, -1, {m_}", [m_], [m_]),
                (f"v_lshrrev_b32 {x_}, 3, {m_}", [m_], [x_]), (f"v_xor_b32 {y_}, {x_}, {m_}", [x_, m_], [y_]), (f"v_and_b32 {y_}, 7, {y_}", [y_], [y_]),
                (f"v_lshlrev_b32 {y_}, 4, {y_}", [y_], [y_]), (f"v_lshl_add_u32 v{tO}, {x_}, 8, {y_}", [x_, y_], [f"v{tO}"]),
                (f"v_lshrrev_b32 {x_}, 4, {m_}", [m_], [x_]), (f"v_xor_b32 {x_}, {x_}, {m_}", [x_, m_], [x_]), (f"v_and_b32 {x_}, 7, {x_}", [x_], [x_]),
                (f"v_and_b32 {y_}, 15, {m_}", [m_], [y_]), (f"v_lshlrev_b32 {y_}, 3, {y_}", [y_], [y_]), (f"v_add_lshl_u32 {x_}, {x_}, {y_}, 4", [x_, y_], [x_]),
                (f"v_add_u32 {x_}, s{sT2}, {x_}", [x_], [x_]), (f"v_xor_b32 {y_}, 64, {x_}", [x_], [y_]),
                (f"v_lshl_add_u32 {m_}, {m_}, 4, s{sT2}", [m_], [m_])]
        pv_ = add(salu(f"s_lshl_b32 s{sT2}, s{sW}, 12\n    s_add_u32 s{sT2}, s{sT2}, {RING}", [], [f"s{sT2}", "scc"]), dead=[firstm[T + 1]], tag="ep").ins
        for tx, rd_, wr_ in seqs: pv_ = add(valu(tx, rd_, wr_), after=[(pv_, 0)], dead=[firstm[T + 1]], tag="ep").ins
        tready = pv_; tws = []; trd = {}; tst = {}
    sts = []
    ofl = cfg.oflags
    if T >= TFIN[0] - 1:
        f_ = cfg.oflagsFA if slots[0] == 0 else cfg.oflagsFB
        if f_ != "=": ofl = f_
    for k, (pb, qs) in enumerate(order):
        inp = qs in inplace
        w, wa = (O(qs, 2 * pb), []) if inp else pool.pop(0)
        cv = []
        for e in range(2):
            b = 2 * pb + e
            kw = dict(dead=[over(2 * pb if inp else b, qs), endins], tag="ep", prio=(-200 + 4 * k) if inp else 0)
            ms = []
            for r in range(4):
                v = f"v{O(qs, b) + r}"
                if tl and cfg.tpk:
                    if r % 2: ms.append(ms[-1]); continue
                    v2 = R("v", O(qs, b) + r, 2); rp = (vRI + qs) & ~1; hi = (vRI + qs) & 1
                    ms.append(add(valu(f"v_pk_mul_f32 {v2}, {v2}, v[{rp}:{rp+1}] op_sel:[0,{hi}] op_sel_hi:[1,{hi}]", [v2, f"v{vRI+qs}"], [v2]),
                                  after=[(PVm[T, b, qs], 8), (PVm[T, 7, act(T)[-1]], 0), (ri[qs], 1)], **kw))
                    continue
                ms.append(add(valu(f"v_mul_f32 {v}, {v}, v{vRI+qs}", [v, f"v{vRI+qs}"], [v]), after=[(PVm[T, b, qs], 8), (ri[qs], 1)], **kw))
            for h in range(2):
                d = f"v{w + 2*e + h}"; a_, b_ = f"v{O(qs, b) + 2*h}", f"v{O(qs, b) + 2*h + 1}"
                aft = [(ms[2*h].ins, 0), (ms[2*h+1].ins, 0)] + wa + ([(cv[-1].ins, 0)] if (inp and cv) else [])
                cv.append(add(valu(f"v_cvt_pk_bf16_f32 {d}, {a_}, {b_}", [a_, b_], [d]), after=aft, **kw))
        kw = dict(dead=[over(2 * pb, qs) if inp else endins, endins], tag="ep", prio=-300 + 8 * k)
        sw = []
        for h in range(0 if cfg.noswap else 2):
            x, y = f"v{w + h}", f"v{w + 2 + h}"
            sw.append(add(valu(f"v_permlane16_swap_b32 {x}, {y}", [x, y], [x, y], "perm"), after=[(cv[h].ins, 2), (cv[2 + h].ins, 2)], **kw))
        if tl:
            u_ = k // 2; bf_ = u_ % 2
            wi = I(f"ds_write_b128 v{tW[pb % 2]}, {R('v', w, 4)} offset:{bf_ * 2048}", "dsw", rd=[f"v{tW[pb % 2]}", R("v", w, 4)], cost=26)
            tws.append(add(wi, after=[(z.ins, 0) for z in cv] + [(tready, 0), (BARm[max(t for t in BARm if isinstance(t, int))], 0)] + [(z, 0) for z in trd.get(u_ - 2, [])], **kw).ins)
            if k % 2 == 0: continue
            for x_ in tail_stores[-2:]: x_.after += [(z, 0) for z in tws[-2:]]; x_.prio = -400 + u_
            for j in range(2):
                d = R("v", RB[bf_][j], 4)
                ri_ = I(f"ds_read_b128 {d}, v{tR} offset:{bf_ * 2048 + j * 1024}", "dsr", rd=[f"v{tR}"], wr=[d])
                aft = [(z, 0) for z in tws[-2:]] + ([(tst[u_ - 2, j], 2)] if u_ >= 2 else [(PVm[47, 7, j], 0), (SMm[47, 0], 0)])
                rit = add(ri_, after=aft, **kw); trd.setdefault(u_, []).append(ri_)
                st = I(f"buffer_store_dwordx4 {d}, v{tO}, s[{sO}:{sO+3}], s{sOr+qs} offen offset:{j * 2048 + (pb // 2) * 128}{ofl}", "vst",
                       rd=[d, f"v{tO}", f"s{sOr+qs}", f"s[{sO}:{sO+3}]"])
                st.fast = True; st.block = True; tst[u_, j] = st
                sit = add(st, after=[(ri_, 0)], **kw)
                rit.prio = -500 + u_
                if cfg.nvc:
                    rit.dabs = (PVm[T, 3, act(T)[-1]], cfg.tx0 + cfg.txstep * u_ * 2)
                    sit.dabs = (PVm[T, 3, act(T)[-1]], cfg.tx0 + cfg.txstep * (u_ * 2 + j + 1))
                tail_stores.append(sit)
            continue
        st = I(f"buffer_store_dwordx4 {R('v', w, 4)}, v{vOA}, s[{sO}:{sO+3}], s{sOr+qs} offen offset:{64*pb}{ofl}", "vst",
               rd=[R("v", w, 4), f"v{vOA}", f"s{sOr+qs}", f"s[{sO}:{sO+3}]"])
        sts.append((add(st, after=[(z.ins, 0) for z in (sw or cv)], **kw), w, inp, pb, qs))
        if not inp:
            pool.append((w, [(st, 2)])); unit_free[base, w] = [(st, 2)]
            for t in range(T + 1, T + 8):
                for it in pwriters.get((t, w), []): it.after.append((st, 2))

    if T == 15 and DL:
        rank = {P(14, 2): 0, P(14, 3): 1, P(15, 2): 4, P(15, 3): 5}
        def key(x):
            it, w, inp, pb, qs = x
            if not inp: return rank.get(w, 100)
            return 200 + pb if qs == 4 else (2 if pb == 0 else 4 + 2 * pb) + qs - 2
        srt = sorted(sts, key=key)
        if cfg.pairst:
            out_ = []
            for x in srt:
                if x not in out_: out_ += sorted([y for y in sts if y[4] == x[4] and y[3] // 2 == x[3] // 2], key=lambda y: y[3])
            srt = out_
        sq = qjit_b + [x[0] for x in srt]
        for k, it in enumerate(sq):
            it.dabs = (firstm[16], cfg.tq0 + cfg.tqstep * min(k, 8) + cfg.tstep * max(k - 8, 0)); it.prio = -1000 + k
    elif not endins.text.startswith("; end"):
        f_ = T >= TFIN[0] - 1
        if cfg.stE and not f_:
            for k, x in enumerate(sts): x[0].nb = (PVm[T, 1, act(T)[-1]], cfg.stE + cfg.tstep * k)
        for k, x in enumerate(sts): x[0].dabs = (PVm[T, 1, act(T)[-1]], (cfg.stF0 if f_ else cfg.st0) + (cfg.stFstep if f_ else cfg.tstep) * (k | 1 if cfg.pairst else k))
        if cfg.lateA and not f_:
            for k, x in enumerate(sts):
                if slots[0] == 0 and k < 3: continue
                o_ = (cfg.lateA + cfg.tstep * (k - 3)) if slots[0] == 0 else (cfg.lateB + cfg.tstep * k)
                x[0].nb = (PVm[T, 1, act(T)[-1]], o_); x[0].dabs = (PVm[T, 1, act(T)[-1]], o_ + 10)
    else:
        for k, x in enumerate(sts): x[0].dabs = (PVm[T, 1, act(T)[-1]], cfg.tl0 + cfg.tlstep * (k | 1 if cfg.pairst else k))

    if cfg.pairst:
        for x in sts:
            if x[3] % 2 == 0:
                y = [z for z in sts if z[4] == x[4] and z[3] == x[3] + 1][0]
                x[0].after += list(y[0].after); y[0].after.append((x[0].ins, 0)); glue[id(x[0].ins)] = y[0]
tail_stores = []

class Sched:
    def __init__(self, stream):
        self.stream = stream
        self.pos = {id(x): k for k, x in enumerate(stream)}
        self.over = 0
        self.cyc = 0; self.ta = 0; self.log = []
    def run(self, bb, its, fixed_after, marks=None, endins=None, post=None):
        stream, pos = self.stream, self.pos
        idx = {id(m): j for j, m in enumerate(bb)}
        for mid, lst in fixed_after.items():
            if mid in idx:
                for f in lst: idx[id(f)] = idx[mid]
        for j, lst in (marks or {}).items():
            for f in lst: idx[id(f)] = j
        for j, lst in (post or {}).items():
            for f in lst: idx[id(f)] = j
        if endins is not None: idx[id(endins)] = len(bb)
        waiting, act, bydead = {}, [], {}
        byins = {id(it.ins): it for it in its if not it.placed}
        lbm = {}
        def lb(it):
            if id(it) not in lbm:
                v = 0
                for a, _ in it.after:
                    if id(a) in pos: continue
                    if id(a) in idx: v = max(v, idx[id(a)] + 1)
                    elif id(a) in byins: v = max(v, lb(byins[id(a)]))
                lbm[id(it)] = v
            return lbm[id(it)]
        sys.setrecursionlimit(100000)
        for it in its:
            if it.placed: continue
            d = min([idx[id(x)] for x in it.dead if x is not None and id(x) in idx] or [1 << 30])
            if it.dabs and id(it.dabs[0]) in idx: d = min(d, max(idx[id(it.dabs[0])] + it.dabs[1], lb(it) + 1))
            if it.doff: d = max(d - it.doff, min(d, lb(it) + 1))
            it.early = d + it.prio
            it.soft = d - (cfg.dsmargin if it.ins.kind in LGKM else -(1 << 20))
            if it.pace and id(it.pace[0]) in idx and d < (1 << 29):
                o_ = idx[id(it.pace[0])]
                it.soft = int(o_ + it.pace[1] * (d - cfg.wmargin - o_)); it.early = it.soft + 4
            bydead.setdefault(d, []).append(it)
            w = {id(a) for a, _ in it.after if id(a) not in pos}
            nw[id(it)] = len(w)
            for a in w: waiting.setdefault(a, []).append(it)
            if not w: act.append(it)
        st = {"budget": 8, "first": True, "valu": False, "mem": False}
        def emit(x):
            pos[id(x)] = len(stream); stream.append(x)
            for it in waiting.pop(id(x), []):
                nw[id(it)] -= 1
                if nw[id(it)] == 0: act.append(it)
        def ready(it):
            n = len(stream)
            return all(n - pos[id(a)] - 1 >= dist for a, dist in it.after)
        def place(it):
            if it.ins.block and it.ins.kind == "dsr":
                while True:
                    a = cands(lambda x: not x.ins.block and x.ins.kind in VALU + LGKM)
                    if not a: break
                    place(a[0])
            c = it.ins.cost; kd = it.ins.kind
            if kd == "salu" and st["first"]: c -= 4
            if kd in LGKM + VM and st["valu"]: c += 8
            elif kd in LGKM + VM and st["mem"]: c += 4
            if kd in LGKM + VM: st["mem"] = True
            if kd in VALU: st["valu"] = True
            act.remove(it); it.placed = True
            if kd in VM:
                now = self.cyc + 8 + (8 - st["budget"])
                self.ta = (max(self.ta, now) if now < self.ta + 1 and it.tag != "ld" else now) + (cfg.ta_fast if (kd == "dma" or it.ins.fast) else cfg.ta_slow)
            emit(it.ins); st["budget"] -= c; st["first"] = False
            g_ = glue.get(id(it.ins))
            if g_ is not None and not g_.placed: place(g_)
        def cands(pred):
            return sorted([it for it in act if pred(it) and ready(it)], key=lambda x: (x.early, x.seq))
        def force(limit):
            while True:
                due = [it for d in list(bydead) if d <= limit for it in bydead[d] if not it.placed]
                for d in [d for d in bydead if d <= limit]:
                    bydead[d] = [it for it in bydead[d] if not it.placed]
                    if not bydead[d]: del bydead[d]
                if not due: return
                stack = list(due); seen = set(); need = []
                while stack:
                    it = stack.pop()
                    if id(it) in seen: continue
                    seen.add(id(it)); need.append(it)
                    for a_, _ in it.after:
                        o = byins.get(id(a_))
                        if o is not None and not o.placed: stack.append(o)
                av = [it for it in need if nw[id(it)] == 0]
                if not av:
                    raise RuntimeError("deadlock: " + "; ".join(it.ins.text + " AFTER " + str([a for a, _ in it.after if id(a) not in pos]) for it in need[:6]))
                rs = [it for it in av if ready(it)]
                if not rs:
                    rs = cands(lambda x: x.ins.kind in VALU)[:1] or av
                rs.sort(key=lambda x: (0 if (x.ins.kind in LGKM + VM and not st["valu"]) else 1, x.early, x.seq))
                place(rs[0])
        if id(bb[0]) not in pos: force(0)
        for k, m in enumerate(bb):
            for f in (marks or {}).get(k, []): emit(f)
            if id(m) not in pos: emit(m)
            st.update(budget=8, first=True, valu=False, mem=False)
            for f in (post or {}).get(k, []):
                emit(f); st["first"] = False
            for f in fixed_after.get(id(m), []):
                emit(f); st["first"] = False
                if cfg.emptybar: st["budget"] = 0
            c = cands(lambda x: x.ins.kind == "salu")
            if c and st["first"] and k + 1 < len(bb) and not getattr(cfg, "nosalu", False): place(c[0])
            vmok = lambda x: x.ins.kind in VM and (x.nb is None or idx.get(id(x.nb[0]), -1000) + x.nb[1] <= k)
            vm = cands(vmok) if (self.ta <= self.cyc and m.pref != "T") else []
            urgent = cands(lambda x: x.soft <= (k - 2 if vm else k + 1))
            if st["budget"] <= 0: urgent = []
            if urgent: place(min(urgent, key=lambda x: (x.soft, x.seq)))
            tr = cands(lambda x: x.ins.kind == "trans")
            if m.pref == "T" and tr and st["budget"] >= (4 if urgent else 8):
                place(tr[0])
            else:
                if not urgent and st["budget"] >= 4:
                    if not vm and self.ta <= self.cyc: vm = cands(vmok)
                    mem = vm or cands(lambda x: x.ins.kind in LGKM)
                    if mem and not vm:
                        rd_ = [x for x in mem if x.ins.kind == "dsr"]; wr_ = [x for x in mem if x.ins.kind == "dsw"]
                        if cands(lambda x: x.ins.kind in ("valu", "perm")): mem = rd_
                        elif wr_ and not (rd_ and rd_[0].soft <= k + 3): mem = wr_
                    if mem: place(mem[0])
                while st["budget"] >= 4:
                    a = cands(lambda x: x.ins.kind in ("valu", "perm") or (x.ins.kind == "trans" and st["budget"] >= 8))
                    if not a: break
                    place(a[0])
            force(k + 1)
            if st["budget"] < 0: self.over -= st["budget"]
            self.cyc += max(16, 16 - st["budget"])
            self.log.append(self.cyc)
        if endins is not None: force(1 << 29)
nw = {}

sVC = 49
sTSB = 60
def stamp(k, cyc=False, mode=1):
    if cfg.stamps != mode: return []
    r = sTSB + 2 * k
    return [I(f"s_mem{'time' if cyc else 'realtime'} s[{r}:{r+1}]", "salu", wr=[f"s[{r}:{r+1}]"])]

def V(text, rd, wr, kind="valu"): return I(text, kind, rd=rd, wr=wr)
def prologue():
    o = []
    o.append(I("s_cmp_ge_u32 s2, 256\n    s_cbranch_scc1 L_end", "br"))
    o += stamp(0) + stamp(1, True) + stamp(0, False, 4) + stamp(1, True, 4) + stamp(0, False, 5)
    if cfg.spin: o.append(salu("s_memrealtime s[98:99]"))
    o.append(salu("s_load_dwordx8 s[52:59], s[0:1], 0"))
    if cfg.vc1: o.append(salu("s_load_dwordx2 s[6:7], s[0:1], 32"))
    l, t, u, g = "v1", "v2", "v3", "v4"
    o += [V(f"v_lshrrev_b32 {t}, 6, v0", ["v0"], [t]),
          V(f"v_and_b32 {l}, 63, v0", ["v0"], [l]),
          V(f"v_readfirstlane_b32 s{sW}, {t}", [t], [f"s{sW}"]),
          V(f"v_lshrrev_b32 {g}, 4, {l}", [l], [g]),
          V(f"v_and_b32 {t}, 15, {l}", [l], [t]),
          V(f"v_lshlrev_b32 {t}, 8, {t}", [t], [t]),
          V(f"v_mul_u32_u24 {u}, {GST}, {g}", [g], [u]),
          V(f"v_add_u32 v{vQA}, {t}, {u}", [t, u], [f"v{vQA}"]),
          ]
    if cfg.noswap:
        if vOA != vQA: o += [V(f"v_lshl_add_u32 v{vOA}, {g}, 4, {t}", [g, t], [f"v{vOA}"])]
        o += [
              V(f"v_and_b32 {u}, 1, {g}", [g], [u]),
              V(f"v_lshlrev_b32 {u}, 2, {u}", [u], [u]),
              V(f"v_xor_b32 {u}, {u}, {l}", [u, l], [u]),
              V(f"v_and_b32 {u}, 7, {u}", [u], [u]),
              V(f"v_lshrrev_b32 {t}, 3, {l}", [l], [t]),
              V(f"v_lshlrev_b32 {t}, 8, {t}", [t], [t]),
              V(f"v_lshl_add_u32 v{vVD}, {u}, 4, {t}", [u, t], [f"v{vVD}"])]
    else:
        o += [
          V(f"v_and_b32 {u}, 1, {g}", [g], [u]),
          V(f"v_lshl_add_u32 {t}, {u}, 5, {t}", [u, t], [t]),
          V(f"v_lshrrev_b32 {u}, 1, {g}", [g], [u]),
          V(f"v_lshl_add_u32 v{vOA}, {u}, 4, {t}", [u, t], [f"v{vOA}"]),
          V(f"v_bfe_u32 {t}, {l}, 1, 2", [l], [t]),
          V(f"v_xor_b32 {t}, {t}, {g}", [t, g], [t]),
          V(f"v_lshlrev_b32 {t}, 5, {t}", [t], [t]),
          V(f"v_lshrrev_b32 {u}, 3, {l}", [l], [u]),
          V(f"v_lshl_add_u32 {t}, {u}, 8, {t}", [u, t], [t]),
          V(f"v_and_b32 {u}, 1, {l}", [l], [u]),
          V(f"v_lshl_add_u32 v{vVD}, {u}, 4, {t}", [u, t], [f"v{vVD}"]),
          ]
    if cfg.qstage:
        o += [V(f"v_and_b32 {t}, 15, {l}", [l], [t]),
              V(f"v_xor_b32 {u}, {t}, {g}", [t, g], [u]),
              V(f"v_lshlrev_b32 {u}, 4, {u}", [u], [u]),
              V(f"v_lshl_add_u32 v{vQD}, {g}, 8, {u}", [g, u], [f"v{vQD}"])]
        o += [V(f"v_xor_b32 v{vQD+j}, {64*j}, v{vQD}", [f"v{vQD}"], [f"v{vQD+j}"]) for j in range(1, 4)]
        o += [salu(f"s_mul_i32 s{sQS}, s{sW}, 20480", [f"s{sW}"], [f"s{sQS}"]), salu(f"s_add_u32 s{sQS}, s{sQS}, {QSTG}")]
        stage2 = [V(f"v_and_b32 {t}, 15, {l}", [l], [t]),
              V(f"v_mul_u32_u24 {u}, {GST // 16}, {g}", [g], [u]),
              V(f"v_xor_b32 {u}, {u}, {t}", [u, t], [u]),
              V(f"v_lshlrev_b32 {u}, 4, {u}", [u], [u]),
              V(f"v_lshl_add_u32 {u}, {t}, 8, {u}", [t, u], [u])]
        stage2 += [V(f"v_xor_b32 v{vQR+k}, {f's{sX[k]}' if cfg.ownk else off(k)}, {u}", [u], [f"v{vQR+k}"]) for k in range(4)]
        stage2 += [V(f"v_add_u32 v{vQR+k}, s{sQS}, v{vQR+k}", [f"v{vQR+k}"], [f"v{vQR+k}"]) for k in range(4)]
    o += [salu(f"s_mul_i32 s{sT0}, s2, {HEADQ}", [], [f"s{sT0}"]),
          salu(f"s_lshl_b32 s{sT1}, s2, 17", [], [f"s{sT1}"]),
          salu(f"s_lshl_b32 s{sM0}, s{sW}, 10", [f"s{sW}"], [f"s{sM0}"]),
          salu(f"s_lshl_b32 s{sVo}, s{sW}, 11", [f"s{sW}"], [f"s{sVo}"]),
          salu(f"s_lshr_b32 s{sKo}, s{sW}, 1", [f"s{sW}"], [f"s{sKo}"]),
          salu(f"s_lshl_b32 s{sKo}, s{sKo}, 12"),
          salu(f"s_and_b32 s{sT2}, s{sW}, 1"),
          salu(f"s_lshl_b32 s{sT2}, s{sT2}, 7"),
          salu(f"s_add_u32 s{sKo}, s{sKo}, s{sT2}"),
          salu(f"s_lshl_b32 s{sOr}, s{sW}, 14"),
          salu(f"s_add_u32 s{sOr+1}, s{sOr}, 4096"),
          salu(f"s_add_u32 s{sOr+2}, s{sOr}, 8192"),
          salu(f"s_add_u32 s{sOr+3}, s{sOr}, 12288"),
          salu(f"s_lshl_b32 s{sOr+4}, s{sW}, 12"),
          salu(f"s_add_u32 s{sOr+4}, s{sOr+4}, {1280*256}"),
          ]
    o += [salu(f"s_mov_b32 s{sQn+k}, s{sOr+k}") for k in range(5)]
    if cfg.ownk:
        if cfg.dmap == "A": o += [salu(f"s_lshl_b32 s{sX[0]}, s{sW}, 6")]
        else: o += [salu(f"s_mul_i32 s{sX[0]}, s{sW}, 0x50"), salu(f"s_and_b32 s{sX[0]}, s{sX[0]}, 0x90")]
        o += [salu(f"s_xor_b32 s{sX[c]}, s{sX[0]}, {off(c)}") for c in range(1, 4)]
    o.append(I("s_waitcnt lgkmcnt(0)", "wait"))
    for srd, p, so, size in ((sK, 54, sT1, HEADK), (sQ, 52, sT0, HEADQ), (sV, 56, sT1, HEADK), (sO, 58, sT0, HEADQ)):
        o += [salu(f"s_add_u32 s{srd}, s{p}, s{so}"), salu(f"s_addc_u32 s{srd+1}, s{p+1}, 0"),
              salu(f"s_mov_b32 s{srd+2}, {size}"), salu(f"s_mov_b32 s{srd+3}, 0x20000")]
    kloads[0] = kload_ins(0); kloads[1] = kload_ins(1)
    k1 = [salu(f"s_add_u32 s{sKo}, s{sKo}, 8192")] + kloads[1]
    if cfg.qstage:
        o += kloads[0] + q0load(0) + q0load(1) + k1
        later = [[], q0load(2), q0load(3)]
    else:
        o += kloads[0] + qload_ins(0) + qload_ins(1)[:2]
        later = [qload_ins(1)[2:] + k1, qload_ins(2), qload_ins(3)]
    if cfg.codepf:
        o.append(I(f"; pull this kernel's code into L2 ahead of the instruction fetch (2 KB per workgroup, value unused)\n    s_getpc_b64 s[50:51]\nL_pf:\n    s_lshr_b32 s{sT2}, s2, 3\n    s_lshl_b32 s{sT2}, s{sT2}, 11", "salu"))
        o.append(V(f"v_lshl_add_u32 v5, {l}, 5, s{sT2}", [l], ["v5"]))
        o.append(V("v_min_u32 v5, L_end - L_pf, v5", ["v5"], ["v5"]))
        x = I(f"global_load_dword v{vDUM}, v5, s[50:51]", "vld", rd=["v5"], wr=[f"v{vDUM}"]); x.nowait = True
        o.append(x)
    if cfg.touch:
        o.append(V(f"v_lshlrev_b32 v7, {cfg.touch}, {l}", [l], ["v7"]))
        for srd in [sQ] + ([sO] if cfg.toucho else []) + ([sK, sV] if cfg.touchkv else []):
            x = I(f"buffer_load_dword v{vDUM}, v7, s[{srd}:{srd+3}], 0 offen nt", "vld", rd=["v7"], wr=[f"v{vDUM}"]); x.nowait = True
            o.append(x)
    if cfg.vc1:
        assert not cfg.extra and cfg.dbg < 0
        o += [salu(f"s_mov_b32 s{sWS}, s6"), salu(f"s_mov_b32 s{sWS+1}, s7"), salu(f"s_mov_b32 s{sWS+2}, 256"), salu(f"s_mov_b32 s{sWS+3}, 0x20000")]
    o += [salu(f"s_mov_b32 s{sC}, {CSCALE:#x}"), salu(f"s_mov_b32 s{sMASK}, 0xffff0000"),
          salu(f"s_mov_b32 s{sFAIL}, {0x1fffff if cfg.force_fallback else 0}"), salu(f"s_mov_b32 s{sCNT}, {4 + cfg.extra if cfg.extra else 3}"), *([salu("s_mov_b32 s3, 0x10000"), salu("s_mov_b32 s4, 0")] if cfg.extra else []),
          salu(f"s_lshl_b32 s{sVC}, s{sW}, 15"), salu(f"s_sub_u32 s{sVC}, s{sVC}, {RING}"),
          salu(f"s_lshl_b32 s{sT2}, s{sW}, 11")]
    if cfg.klin:
        assert cfg.ownk
        o += [V(f"v_lshlrev_b32 {u}, 1, {g}", [g], [u]),
              V(f"v_xor_b32 {t}, {u}, {l}", [u, l], [t]),
              V(f"v_lshlrev_b32 {t}, 4, {t}", [t], [t]),
              V(f"v_add_u32 v{vKR}, {RING}, {t}", [t], [f"v{vKR}"]),
              V(f"v_bfe_u32 {t}, v{vVD}, {4 if cfg.dmap == 'A' else 5}, 2", [f"v{vVD}"], [t]),
              V(f"v_lshlrev_b32 {u}, 1, {t}", [t], [u]),
              V(f"v_lshrrev_b32 v5, 3, {l}", [l], ["v5"]),
              V(f"v_xor_b32 {u}, {u}, v5", [u, "v5"], [u]),
              V(f"v_lshl_add_u32 {u}, {t}, 4, {u}", [t, u], [u]),
              V(f"v_bfe_u32 {t}, v{vVD}, {6 if cfg.dmap == 'A' else 4}, 1", [f"v{vVD}"], [t]),
              V(f"v_lshl_add_u32 {u}, {t}, 6, {u}", [t, u], [u]),
              V(f"v_lshlrev_b32 {u}, 4, {u}", [u], [u]),
              V(f"v_add_u32 {u}, {RING}, {u}", [u], [u]),
              V(f"v_add_u32 v{vKW}, s{sT2}, {u}", [u], [f"v{vKW}"])]
    else:
      o += [V(f"v_lshlrev_b32 {t}, 4, {l}", [l], [t]),
          V(f"v_add_u32 v{vKR}, {RING}, {t}", [t], [f"v{vKR}"]),
          V(f"v_add_u32 v{vKW}, s{sT2}, v{vKR}", [f"v{vKR}"], [f"v{vKW}"])]
    if cfg.ownk:
        o += [V(f"v_add_u32 v{vKC[0]}, s{sM0}, v{vKR}", [f"v{vKR}"], [f"v{vKC[0]}"])]
        o += [V(f"v_xor_b32 v{vKC[c]}, {1024*c}, v{vKC[0]}", [f"v{vKC[0]}"], [f"v{vKC[c]}"]) for c in range(1, 4)]
        o += [salu(f"s_sub_u32 s{sVC}, s{sVC}, s{sM0}")]
        if cfg.vc1: o += [V(f"v_and_b32 v{vPF}, 0xffff, v{vKC[0]}", [f"v{vKC[0]}"], [f"v{vPF}"])]
    o += [
          V(f"v_lshrrev_b32 {t}, 2, {l}", [l], [t]),
          V(f"v_lshlrev_b32 {t}, 7, {t}", [t], [t]),
          V(f"v_and_b32 {u}, 3, {l}", [l], [u])]
    assert cfg.noswap
    o += [V(f"v_lshl_add_u32 {t}, {u}, 4, {t}", [u, t], [t]),
          V(f"v_bfe_u32 {u}, {l}, 3, 1", [l], [u]),
          V(f"v_lshl_add_u32 v{vVA}, {u}, 6, {t}", [u, t], [f"v{vVA}"]),
          V(f"v_xor_b32 v{vVA+1}, 64, v{vVA}", [f"v{vVA}"], [f"v{vVA+1}"]),
          V(f"v_mov_b32 v{vHI}, 0", [], [f"v{vHI}"]), V(f"v_mov_b32 v{vLO}, -1", [], [f"v{vLO}"])]
    o += [V(f"v_lshrrev_b32 {t}, 4, {l}", [l], [t]),
          V(f"v_xor_b32 {t}, {t}, {l}", [t, l], [t]),
          V(f"v_bfe_u32 {t}, {t}, 1, 1", [t], [t]),
          V(f"v_add_u32 {t}, -1, {t}", [t], [t]),
          V(f"v_and_b32 {t}, 0x3f803f80, {t}", [t], [t])]
    o += [V(f"v_accvgpr_write_b32 a{aSA+k}, {t}", [t], [f"a{aSA+k}"]) for k in range(4)]
    o += [V(f"v_and_b32 {u}, 1, {l}", [l], [u]),
          V(f"v_mul_u32_u24 {u}, 0xaaaa, {u}", [u], [u]),
          V(f"v_add_u32 v{vIDX}, 0x4444, {u}", [u], [f"v{vIDX}"])]
    o += [V(f"v_accvgpr_write_b32 a{aL+k}, 0", [], [f"a{aL+k}"]) for k in range(12)]
    if cfg.qstage: o += stage2
    o += later[0]
    if cfg.pads: o.append(I("; BODY_ALIGN", "label"))
    for T in range(1):
        st = vKt[T]; ws = []
        for r in range(8):
            a = f"a{ST(T, 0) + r}"; x = f"v{st + r}"; tt = f"v{vKx[r % 2]}"
            if not cfg.kvg: o += [V(f"v_accvgpr_read_b32 {x}, {a}", [a], [x])]
            o += [V(f"v_lshlrev_b32 {tt}, 16, {x}", [x], [tt]),
                  V(f"v_and_b32 {x}, s{sMASK}, {x}", [x], [x]),
                  V(f"v_mul_f32 {tt}, s{sC}, {tt}", [tt], [tt]),
                  V(f"v_mul_f32 {x}, s{sC}, {x}", [x], [x]),
                  V(f"v_cvt_pk_bf16_f32 {x}, {tt}, {x}", [tt, x], [x])]
        for e in range(2):
            w = I(f"ds_write_b128 v{vKW}, {R('v', st + 4*e, 4)} offset:{T*8192 + e*KWE}", "dsw", rd=[f"v{vKW}", R('v', st + 4*e, 4)])
            o.append(w); ws += [Item(w)] * 4
        rb = []
        for e in range(0 if cfg.ownk else 2):
            d = R("a", ST(T, e), 4)
            x = I(f"ds_read_b128 {d}, v{vKW} offset:{T*8192 + e*1024}", "dsr", rd=[f"v{vKW}"], wr=[d])
            o.append(x); rb.append(Item(x))
        kwrites[T] = ws; readback[T] = rb
    o += later[1]
    pro_tail.extend(later[2] + [salu(f"s_add_u32 s{sQn+k}, s{sOr+k}, 65536") for k in range(4)])
    return o
pro_tail = []

def guard_text():
    a = L(2)
    t = []
    t.append("    ; ---- V magnitude guard: sums of squares must stay below 2^60; shared across the 4 waves")
    if cfg.stamps == 5: t.append("    s_memrealtime s[%d:%d]" % (sTSB + 18, sTSB + 19))
    t.append("    s_nop 7\n    s_nop 3")
    t += [f"    v_accvgpr_read_b32 v{k}, a{a+k}" for k in range(4)]
    t += [f"    v_and_b32 v{k}, 0x7fffffff, v{k}" for k in range(4)]
    t += ["    v_max_u32 v0, v0, v1", "    v_max3_u32 v0, v0, v2, v3",
          "    v_cmp_le_u32 vcc, 0x5d800000, v0",
          "    s_nop 1",
          "    s_cmp_lg_u64 vcc, 0",
          f"    s_cselect_b32 s{sT0}, 1, 0",
          f"    v_cmp_lt_u32 vcc, 0x6f800000, v{vHI}",
          f"    v_cmp_gt_u32 s[6:7], 1.0, v{vLO}",
          "    s_nop 1",
          "    s_or_b64 vcc, vcc, s[6:7]",
          f"    s_cselect_b32 s{sFAIL}, 0x1fffff, s{sFAIL}",
          f"    s_lshl_b32 s{sT1}, s{sW}, 2",
          f"    s_add_u32 s{sT1}, s{sT1}, {FLAGS}",
          f"    v_mov_b32 v0, s{sT0}", f"    v_mov_b32 v1, s{sT1}", f"    v_mov_b32 v2, {FLAGS}",
          "    ds_write_b32 v1, v0", "    s_waitcnt lgkmcnt(0)", "    s_barrier",
          "    ds_read_b128 v[4:7], v2", "    s_waitcnt lgkmcnt(0)",
          "    v_or3_b32 v4, v4, v5, v6", "    v_or_b32 v4, v4, v7", "    s_nop 0",
          f"    v_readfirstlane_b32 s{sT0}, v4", "    s_nop 1",
          f"    s_cmp_lg_u32 s{sT0}, 0",
          f"    s_cselect_b32 s{sFAIL}, 0x1fffff, s{sFAIL}"]
    return t
FLAGS = RING + 3 * 8192 if cfg.tlds else RING
def finale():
    if cfg.stamps == 5 and cfg.vc1: pre_ = ["    s_memrealtime s[%d:%d]" % (sTSB + 18, sTSB + 19)]
    else: pre_ = []
    t = pre_ if (cfg.tlds or cfg.vc1) else guard_text()
    if cfg.stamps in (1, 4, 5):
        t += ["    s_memrealtime s[%d:%d]" % (sTSB + 22, sTSB + 23), "    s_waitcnt vmcnt(0)",
              "    s_memrealtime s[%d:%d]" % (sTSB + 24, sTSB + 25), "    s_memtime s[%d:%d]" % (sTSB + 26, sTSB + 27)]
    if cfg.stamps:
        t += ["    s_load_dwordx2 s[4:5], s[0:1], 40", "    s_waitcnt lgkmcnt(0)",
              "    s_mov_b32 s6, 0x100000", "    s_mov_b32 s7, 0x20000",
              f"    s_lshl_b32 s{sT0}, s2, 2", f"    s_add_u32 s{sT0}, s{sT0}, s{sW}", f"    s_lshl_b32 s{sT0}, s{sT0}, 7",
              "    v_mov_b32 v1, 0"]
        for k in range(21):
            t += [f"    v_mov_b32 v0, s{sTSB + 2*k}", f"    buffer_store_dword v0, v1, s[4:7], s{sT0} offen offset:{4*k}"]
    if cfg.spin:
        t += ["L_spin:", "    s_memrealtime s[100:101]", "    s_waitcnt lgkmcnt(0)", "    s_sub_u32 s100, s100, s98", f"    s_cmp_lt_u32 s100, {cfg.spin * 100}", "    s_cbranch_scc1 L_spin"]
    if cfg.dbg >= 0:
        t += [f"    s_cmp_lg_u32 s2, {cfg.dbg}", "    s_cbranch_scc1 L_nodbg", f"    s_cmp_lg_u32 s{sW}, 0", "    s_cbranch_scc1 L_nodbg",
              "    s_load_dwordx2 s[4:5], s[0:1], 32", "    s_waitcnt lgkmcnt(0)", "    s_mov_b32 s6, 256", "    s_mov_b32 s7, 0x20000"]
        lst = [(2, 0), (3, 0), (4, 0), (5, 0), (9, 0), (8, 0), (7, 0), (6, 0), (11, 0), (12, 0), (10, 1), (13, 10)]
        for k, (a_, b_) in enumerate(lst):
            t += [f"    s_sub_u32 s{sT1}, s{sTSB + 2*a_}, s{sTSB + 2*b_}", f"    v_mov_b32 v0, s{sT1}", f"    buffer_store_dword v0, v1, s[4:7], 0 offen offset:{4*k}"]
        t += ["L_nodbg:"]
    t += [f"    s_cmp_eq_u32 s{sFAIL}, 0", "    s_cbranch_scc1 L_end"]
    sJ, sRow, sKb, sVt = sT0, sT1, sT2, sKo
    f = ["    ; ---- slow path: rows whose unshifted exponent sum left the safe range are redone with the true max",
         "    s_waitcnt vmcnt(0)"]
    f += [f"    v_and_b32 v{vVA+c}, 0xffff, v{vVA+c}" for c in range(NVA)]
    f += ["L_fb_next:",
          f"    s_ff1_i32_b32 s{sJ}, s{sFAIL}", f"    s_bitset0_b32 s{sFAIL}, s{sJ}",
          f"    s_cmp_gt_u32 s{sJ}, 4", f"    s_cselect_b32 s{sKb}, 1, 0", f"    s_sub_u32 s{sKb}, s{sJ}, s{sKb}",
          f"    s_lshr_b32 s{sRow}, s{sKb}, 2", f"    s_lshl_b32 s{sRow}, s{sRow}, 16",
          f"    s_and_b32 s{sKb}, s{sKb}, 3", f"    s_lshl_b32 s{sKb}, s{sKb}, 12", f"    s_add_u32 s{sRow}, s{sRow}, s{sKb}",
          f"    s_lshl_b32 s{sKb}, s{sW}, 14", f"    s_add_u32 s{sRow}, s{sRow}, s{sKb}",
          f"    s_cmp_eq_u32 s{sJ}, 4", f"    s_cselect_b32 s{sRow}, s{sOr+4}, s{sRow}"]
    f += [f"    buffer_load_dwordx4 v[{4*s}:{4*s+3}], v{vQA}, s[{sQ}:{sQ+3}], s{sRow} offen offset:{off(s)}" for s in range(4)]
    def qk(dst, extra):
        r = [f"    buffer_load_dwordx4 v[{20+4*s}:{23+4*s}], v{vQA}, s[{sK}:{sK+3}], s{sKb} offen offset:{off(s)}" for s in range(4)]
        r += ["    s_waitcnt vmcnt(0)"]
        r += [f"    v_mfma_f32_16x16x32_bf16 v[{dst}:{dst+3}], v[{20+4*s}:{23+4*s}], v[{4*s}:{4*s+3}], {'0' if s == 0 else f'v[{dst}:{dst+3}]'}" for s in range(4)]
        r += [f"    s_add_u32 s{sKb}, s{sKb}, 4096", "    s_nop 9"]
        return r
    f += ["    v_mov_b32 v16, 0xff800000", f"    s_mov_b32 s{sKb}, 0", "L_fb_max:"]
    f += qk(36, None)
    f += ["    v_max3_f32 v16, v16, v36, v37", "    v_max3_f32 v16, v16, v38, v39",
          f"    s_cmp_lt_u32 s{sKb}, {HEADK}", "    s_cbranch_scc1 L_fb_max"]
    def xlane(reg, tmp, op):
        return [f"    v_mov_b32 v{tmp}, v{reg}", "    s_nop 1", f"    v_permlane16_swap_b32 v{reg}, v{tmp}", "    s_nop 1", f"    {op} v{reg}, v{reg}, v{tmp}",
                f"    v_mov_b32 v{tmp}, v{reg}", "    s_nop 1", f"    v_permlane32_swap_b32 v{reg}, v{tmp}", "    s_nop 1", f"    {op} v{reg}, v{reg}, v{tmp}"]
    f += xlane(16, 17, "v_max_f32")
    f += [f"    v_mul_f32 v17, s{sC}, v16", "    v_mov_b32 v18, 0"]
    f += [f"    v_mov_b32 v{64+k}, 0" for k in range(32)]
    f += [f"    s_mov_b32 s{sKb}, 0", f"    s_mov_b32 s{sVt}, 0", "L_fb_pv:"]
    f += qk(36, None) + qk(40, None)
    f += [f"    v_fma_f32 v{36+k}, v{36+k}, s{sC}, -v17" for k in range(8)]
    f += [f"    v_exp_f32 v{36+k}, v{36+k}" for k in range(8)]
    f += ["    s_nop 0"] + [f"    v_add_f32 v18, v18, v{36+k}" for k in range(8)]
    f += [f"    v_cvt_pk_bf16_f32 v{44+k}, v{36+2*k}, v{37+2*k}" for k in range(4)]
    f += [f"    v_add_u32 v{52+c}, s{sVt}, v{vVA+c}" for c in range(NVA)]
    for b in range(8):
        f += [f"    ds_read_b64_tr_b16 v[{48+2*blk}:{49+2*blk}], v{52+vsel(b)[0]} offset:{(b>>2)*32768 + blk*2048 + vsel(b)[2]}" for blk in range(2)]
        f += ["    s_waitcnt lgkmcnt(0)", f"    v_mfma_f32_16x16x32_bf16 v[{64+4*b}:{67+4*b}], v[48:51], v[44:47], v[{64+4*b}:{67+4*b}]"]
    f += [f"    s_add_u32 s{sVt}, s{sVt}, 4096", f"    s_cmp_eq_u32 s{sVt}, 32768", f"    s_cselect_b32 s{sVt}, 65536, s{sVt}",
          f"    s_cmp_lt_u32 s{sKb}, {HEADK}", "    s_cbranch_scc1 L_fb_pv"]
    f += xlane(18, 17, "v_add_f32")
    f += ["    v_rcp_f32 v18, v18", "    s_nop 7"]
    f += [f"    v_mul_f32 v{64+k}, v{64+k}, v18" for k in range(32)]
    f += [f"    v_cvt_pk_bf16_f32 v{96+k}, v{64+2*k}, v{65+2*k}" for k in range(16)]
    f += ["    s_nop 1"]
    for pb in range(0 if cfg.noswap else 4):
        f += [f"    v_permlane16_swap_b32 v{96+4*pb+h}, v{98+4*pb+h}" for h in range(2)]
    f += [f"    buffer_store_dwordx4 v[{96+4*pb}:{99+4*pb}], v{vOA}, s[{sO}:{sO+3}], s{sRow} offen offset:{64*pb}" for pb in range(4)]
    f += ["    s_waitcnt vmcnt(0)", f"    s_cmp_lg_u32 s{sFAIL}, 0", "    s_cbranch_scc1 L_fb_next"]
    return t + f

def simulate(linear, waits, nops, marks):
    t = 0; pipe = 0; q = []; lastdone = 0; out = []; t0 = 0; first = False; valu = False; mem = False; cur = None; stall = 0; stl = []; idle = [0]
    for ins in linear:
        if ins.kind == "label": continue
        w = waits.get(id(ins))
        if w:
            if w[1] is not None and len(q) > w[1]:
                need = q[len(q) - w[1] - 1]
                if need > t: stall += need - t; t = need
            t += 0 if first else 4; first = False
        t += 4 * nops.get(id(ins), 0)
        if id(ins) in marks:
            out.append(t - t0); stl.append(stall); t0 = t; stall = 0; idle.append(0)
        k = ins.kind
        if k in MAT:
            idle[-1] += max(0, pipe - t)
            t = max(t, pipe); pipe = t + 16; t += 8; first = True; valu = False; mem = False
        else:
            c = ins.cost
            if k in ("salu", "bar", "br", "wait") and first: c -= 4
            if k in LGKM + VM and valu: c += 8
            elif k in LGKM + VM and mem: c += 4
            if k in LGKM + VM: mem = True
            if k in LGKM:
                svc = 32 if k == "dsw" else (16 if ("b128" in ins.text or cfg.noswap) else 8)
                lastdone = max(lastdone + svc, t + cfg.ldslat); q.append(lastdone)
            if k in VALU: valu = True
            t += c; first = False
    out.append(t - t0); stl.append(stall)
    sys.stderr.write(f"sim cycles/period: {out[1:]}\nsim lgkm stalls : {stl[1:]}\nunused issue cyc: {idle[1:]}\n")

def gen_items(T):
    curT[0] = T
    items_softmax(T); items_kread(T)
    if T % 8 == 0 and T > 0: items_vtoggle(T)
    items_vread(T)
def bar_needs(T):
    pub = (T + 1,) if T < 15 else (T + 1, T + 2)
    nd = [x.ins for t in pub for x in kwrites[t]]
    if T in vdmas and T > 0 and f"V{T}" not in BARm: nd += vdmas[T]
    done = (T - 1, T) if T >= 13 else (T - 1,) if T >= 1 else ()
    nd += [kreads[t, blk, s_].ins for t in done for blk in range(2) for s_ in range(4) if (t, blk, s_) in kreads]
    nd += [x.ins for t in done if t in readback for x in readback[t]]
    BARm[T].needs = nd
def build():
    C = cfg.CUT; NT = 48 + C + 2
    for T in range(NT + 2): mk_step(T)
    BARm[-1] = I("s_barrier", "bar"); BARm["V0"] = I("s_barrier", "bar")
    for T in range(1, cfg.nvbar): BARm[f"V{T}"] = I("s_barrier", "bar")
    for T in list(range(0, 15, 2)) + list(range(1, NT + 2, 2)): BARm[T] = I("s_barrier", "bar")
    pro = prologue()
    pro.append(BARm[-1]); pro += stamp(2) + pro_tail
    bb, start = [], {}
    for T in range(NT):
        start[T] = len(bb); bb += backbone_period(T)
    backbone_period(NT)
    fixed = {id(bar_spot(T)): [BARm[T]] for T in range(NT) if T in BARm}
    fixed[id(QKm[1, 0, 0, 0] if cfg.sm0 else QKm[0, 1, 2, 3])] = [BARm["V0"]]
    for T in range(1, cfg.nvbar): fixed[id(start_of(T + 1))] = [BARm[f"V{T}"]]
    for T, txt in ((1, "first sweep over the keys: 5 row blocks per wave, K is scaled and V streamed in on the way"),
                   (16, "row blocks 0,1 start their second sweep; 2,3 follow three key steps later")):
        notes[T] = I("    ; ---- " + txt, "label")
    labL = I("L_loop:", "label"); labL2 = I("; second instance", "label"); labL3 = I("; third instance", "label")
    def chk():
        pre = ""
        if cfg.stamps == 1:
            r = sTSB + 12
            pre = "".join(f"s_mov_b64 s[{r+2*k+2}:{r+2*k+3}], s[{r+2*k}:{r+2*k+1}]\n    " for k in (2, 1, 0)) + f"s_memrealtime s[{r}:{r+1}]\n    "
        if not cfg.extra: return I(pre + f"s_sub_u32 s{sCNT}, s{sCNT}, 1\n    s_cbranch_scc1 L_tail", "br", cost=8)
        return I(pre + f"s_sub_u32 s{sCNT}, s{sCNT}, 1\n    s_cmp_eq_u32 s{sCNT}, 0\n    s_cbranch_scc1 L_tail", "br")
    chk1, chk2 = chk(), chk()
    brL, brL2 = I("s_branch L_loop", "br"), I("s_branch L_loop", "br")
    ctl = {start[16 + C]: stamp(5) + [labL], start[32]: [chk1], start[32 + C]: [brL, labL2], start[48]: [chk2], start[48 + C]: [brL2, labL3]}
    marks, post = ({}, ctl) if cfg.shadowbr else (ctl, {})
    marks[start[12]] = [I("L_p12:", "label")]
    for T in notes: firstm[T].text = notes[T].text.strip() + "\n    " + firstm[T].text
    if cfg.stamps == 1:
        marks[start[1]] = stamp(3); marks[start[16]] = stamp(4) + stamp(10, True)
    if cfg.stamps == 2:
        for T in range(16 + C, 48 + C): marks.setdefault(start[T], []).append(stamp((T - C) % 16, True, 2)[0])
    if cfg.stamps == 3:
        for T in range(0, min(20, 16 + C - cfg.st3)): marks.setdefault(start[T + cfg.st3], []).insert(0, stamp(T, False, 3)[0])
        pro.insert(1, stamp(20, False, 3)[0])
    for T in range(16): items_loads(T)
    for T in range(NT):
        gen_items(T)
        if T % 16 == C and T > 16: items_rowadv(T)
        if cfg.repf:
            if T == cfg.pf1: items_codepf(T, "L_p12")
            if T == cfg.pf2: items_codepf(T, "L_loop")
            if T > 32 and T % 16 == cfg.pf3: items_codepf(T, "L_tail")
    for base in (16, 32): items_qpf(base)
    for T in range(1, NT + 2): curT[0] = T; items_kwrite(T)
    curT[0] = -50; items_qjit()
    if cfg.vc1: items_vcheck()
    for T in range(NT):
        if any(islast(T, q) for q in act(T)):
            curT[0] = T + 1000
            items_epilogue(T, ctl[start[(T + 1) // 16 * 16 + C]][0])
    BARm[-1].needs = [x.ins for x in kwrites[0]]
    BARm["V0"].needs = list(vdmas[0])
    for T in range(1, cfg.nvbar): BARm[f"V{T}"].needs = list(vdmas[T])
    for T in range(NT):
        if T in BARm: bar_needs(T)
    stream = list(pro)
    Sched(stream).run(bb, items, fixed, marks, post=post)
    p = {id(x): k for k, x in enumerate(stream)}
    ref = {(it.T[0] - 16, it.T[1]): p[id(it.ins)] < p[id(brL)] for it in items if it.placed and 32 + C - 2 <= it.T[0] < 48}
    cut = ctl[start[16 + C]][0]
    for it in items:
        r = ref.get(it.T)
        if r is True: it.dead = list(it.dead) + [cut]
        elif r is False: it.after.append((labL, 0))
        it.placed = False
    stream = list(pro)
    sc = Sched(stream)
    sc.run(bb, items, fixed, marks, post=post)
    p = {id(x): k for k, x in enumerate(stream)}
    iL, iC1, iBr, iL2, iC2, iBr2 = (p[id(x)] for x in (labL, chk1, brL, labL2, chk2, brL2))
    segP = stream[:iL]; segL = stream[iL:iC1 + 1]; segB = stream[iC1 + 1:iBr + 1]
    one, two = stream[iL:iBr + 1], stream[iL2:iBr2 + 1]
    a = [x.text for x in one[1:]]; b = [x.text for x in two[1:]]
    if a != b:
        for k, (x, y) in enumerate(zip(a, b)):
            if x != y: sys.stderr.write(f"loop mismatch at {k}: {x} | {y}\n"); break
        raise SystemExit("loop instances differ")
    mp = {id(y): x for x, y in zip(one, two)}
    for x, y in zip(one, two): x.needs = x.needs + [mp.get(id(z), z) for z in y.needs]
    def keyed(its):
        cnt, out = {}, {}
        for it in its:
            k = (it.T[0], it.ins.text); cnt[k] = cnt.get(k, 0) + 1; out[k + (cnt[k],)] = it
        return out
    old = {k: it for k, it in keyed(items).items() if it.placed and p[id(it.ins)] <= iC2}
    TFIN[0] = 48; TE = 48 + DL
    for d in (QKm, PVm, SMm):
        for k in [k for k in d if k[0] >= 48 and (k[0] >= TE or (k[2] if d is not SMm else 2 * k[1]) not in (2, 3))]: del d[k]
    for T in range(TE - 1 if TE % 2 == 0 else TE, NT + 2): BARm.pop(T, None)
    for j in range(32):
        buf = Kf(0, 0) + 4 * (j % 8)
        VCm[j] = mfma(L(2), buf, buf, j == 0, dk="a")
    tbb = []
    for T in range(48, TE + 1): tbb += backbone_period(T)
    items.clear(); pwriters.clear(); lprev.clear()
    for k in [k for k in unit_free if k[0] == 32]: del unit_free[k]
    for T in range(46, TE): gen_items(T)
    for T in range(48, TE): curT[0] = T; items_kwrite(T)
    endT = I("; end of tail", "label"); endA = I("; group A stored", "label")
    curT[0] = 5000
    if DL: items_epilogue(47, tbb[len(tbb) - cfg.nvc - 20])
    items_epilogue(TE - 1, endT)
    if not cfg.vc1: va = add(valu(f"v_add_u32 v{vVD}, s{sVC}, v{vKR}", [f"v{vKR}"], [f"v{vVD}"]), dead=[PVm[TE - 1, 2, act(TE - 1)[0]]], tag="vc")
    for j in range(cfg.nvc):
        d = R("a", Kf(0, 0) + 4 * (j % 8), 4)
        lastu = [(QKm[TE - 1, (j % 8) // 4, act(TE - 1)[-1], j % 4], 0)] if j < 8 else [(VCm[j - 8], 0)]
        add(I(f"ds_read_b128 {d}, v{vVD} offset:{j*1024}", "dsr", rd=[f"v{vVD}"], wr=[d]), after=[(va.ins, 0)] + lastu, dead=[VCm[j]], tag="vc", prio=-6)
    if cfg.vc1:
        fl = P(1, 4)
        x = I(f"buffer_load_ubyte v{fl}, off, s[{sWS}:{sWS+3}], s2 sc1", "vld", wr=[f"v{fl}"], cost=8); x.fast = True
        add(x, dead=[firstm[49]], tag="vc")
        gx = I("\n    ".join([f"v_cmp_ne_u32 s[6:7], 0, v{fl}",
                               f"v_cmp_lt_u32 vcc, 0x6f800000, v{vHI}",
                               f"v_cmp_gt_u32 s[50:51], 1.0, v{vLO}    ; some l < 1", "s_nop 1",
                               "s_or_b64 vcc, vcc, s[6:7]", "s_or_b64 vcc, vcc, s[50:51]", f"s_cselect_b32 s{sFAIL}, 0x1fffff, s{sFAIL}"]),
               "br", rd=[f"v{vHI}", f"v{vLO}", f"v{fl}"], wr=["vcc", f"v{fl}"], cost=40)
        gx.block = True
        add(gx, after=[(x, 0)] + [(z, 0) for z in lprev] + [x_.after[0] for x_ in tail_stores[-2:]], dead=[endT], tag="ep", prio=5000)
        for x in tail_stores[-2:]: x.after.append((gx, 0))
    elif cfg.tlds:
        assert TE % 4 == 3
        gx = I("\n".join(guard_text()).strip(), "br", rd=[f"v{vHI}", f"v{vLO}", R("a", L(2), 4)], wr=["v[0:7]", "vcc"], cost=200)
        git = add(gx, after=[(VCm[cfg.nvc - 1], 0)] + [(z, 0) for z in lprev], dead=[endT], tag="ep", prio=-5000)
        for x in tail_stores[cfg.exk:]:
            x.after.append((gx, 0)); x.dabs = None
    alias = {}
    for k, it in keyed(items).items():
        if k in old: alias[id(it.ins)] = old[k].ins; it.ins = old[k].ins; it.placed = True
    tfixed = {id(bar_spot(T)): [BARm[T]] for T in range(48, TE) if T in BARm}
    known = {id(x) for x in stream[:iC2 + 1]} | {id(x) for x in tbb} | {id(it.ins) for it in items} | {id(x) for l_ in tfixed.values() for x in l_}
    for it in items: it.after = [(alias.get(id(a_), a_), d_) for a_, d_ in it.after if id(alias.get(id(a_), a_)) in known]
    for T in range(48, TE):
        if T in BARm: bar_needs(T)
    tstream = stream[:iC2 + 1]
    labT = I("L_tail:", "label")
    tm = {0: [labT] + stamp(2, False, 5)}
    if cfg.stamps == 5:
        for T in range(49, TE + 1): tm[tbb.index(firstm[T])] = stamp(T - 46, False, 5)
        if cfg.nvc: tm[tbb.index(VCm[0])] = stamp(8, False, 5)
    if cfg.wbl2:
        pos_ = {1: tbb.index(firstm[TE]), 2: 1, 3: tbb.index(firstm[TE - 1])}[cfg.wbl2]
        tm.setdefault(pos_, []).append(I(f"s_lshl_b32 s{sT1}, s2, 2\n    s_add_u32 s{sT1}, s{sT1}, s{sW}\n    s_and_b32 s{sT1}, s{sT1}, {cfg.wbmask}\n    s_cbranch_scc1 L_nowb\n    buffer_wbl2 sc1\nL_nowb:", "br"))
    tp = {0: tm.pop(0)} if cfg.shadowbr else {}
    Sched(tstream).run(tbb, items, tfixed, tm, endins=endT, post=tp)
    segT = tstream[iC2 + 1:]
    assert segT[0] is labT, segT[:3]
    assert all(it.placed for it in items)
    for x in segT: x.needs = [mp.get(id(z), z) for z in x.needs]
    linear = segP + segL + segB + segL + segB + segL + segT
    waits = insert_waits(linear)
    nops = fix_hazards(linear, waits)
    sys.stderr.write(f"instr: P {len(segP)} L {len(segL)} B {len(segB)} T {len(segT)}; waits {len(waits)}; nops {sum(nops.values())} at {len(nops)} sites\n")
    mk = {id(stream[p[id(bb[start[T]])]]): T for T in range(32 + C)}
    mk.update({id(firstm[T]): T for T in range(48, TE + 1)})
    simulate(segP + segL + segB + segL + segT, waits, nops, mk)
    loop = render(segL, waits, nops) + render(segB, waits, nops)
    if cfg.drop:
        pat = {"v": "ds_read_b64_tr", "k": "ds_read_b128", "w": "ds_write", "s": "v_smfmac", "e": "v_exp", "c": r"v_cvt_pk_bf16_f32 v1[6-9]\d, v20", "q": "v_accvgpr_(write_b32 a\d+, v|mov)",
               "m": "v_mul_f32", "t": "buffer_store", "l": "buffer_load", "b": "s_barrier"}
        for ch in cfg.drop: loop = [x for x in loop if not re.search(pat[ch], x)]
    sk = []
    if cfg.skew:
        sk = [f"    s_mov_b32 s{sT1}, s{sW}" if cfg.skew > 0 else f"    s_lshr_b32 s{sT1}, s{sW}, 1", "L_sk:", f"    s_cmp_eq_u32 s{sT1}, 0", "    s_cbranch_scc1 L_sk2", f"    s_sub_u32 s{sT1}, s{sT1}, 1", f"    s_nop {abs(cfg.skew)}", "    s_branch L_sk", "L_sk2:"]
    body = render(segP, waits, nops) + sk + loop + render(segT, waits, nops)
    return body

HEADER = open("standalone__mha_softmax__near_ridge.s.ref").read().split("; Override launch")[0]
def add_pads(lines):
    import subprocess
    lines = [x for l in lines for x in l.split("\n")]
    src = '.amdgcn_target "amdgcn-amd-amdhsa--gfx950"\n.text\n' + "\n".join(lines) + "\nL_end:\n s_endpgm\n"
    open("_pads.s", "w").write(src)
    subprocess.run(["clang", "-x", "assembler", "-target", "amdgcn-amd-amdhsa", "-mcpu=gfx950", "-c", "_pads.s", "-o", "_pads.o"], check=True)
    d = subprocess.run(["llvm-objdump", "-d", "--mcpu=gfx950", "_pads.o"], capture_output=True, text=True).stdout
    sizes = [4 * len(m.group(1).split()) for m in re.finditer(r"// [0-9A-F]+: ((?:[0-9A-F]{8} ?)+)", d)]
    isins = lambda x: x.startswith("    ") and not x.strip().startswith(";")
    assert len(sizes) == sum(map(isins, lines)) + 1
    warm = ["    s_mov_b64 vcc, -1"] + [y for w in range(3) for y in (f"    s_cmp_eq_u32 s{sW}, {w}", f"    s_cbranch_scc1 L_pad{w}")] + ["    s_branch L_pad3", "L_back:", "    s_mov_b64 vcc, 0"]
    out, k, addr, want, npad, prev_m, stop = [], 0, None, [], 0, False, False
    for x in lines:
        if x.strip() == "; BODY_ALIGN":
            out += ["    s_mov_b64 vcc, 0", "    s_branch L_body", ".p2align 12", "L_body:"]; addr = 0
            want = [p * 4096 + j * cfg.padoff for p in range(1, 32) for j in range(cfg.pads)]
            continue
        if x.strip() == "; WARM_UP":
            out += ["    ; instruction prefetch: while waiting for the next rows, hop once over the never-taken branches L_pad*",
                    "    ; (first line of every 4 KB page of this code; otherwise each first page crossing stalls the fetch)"]
            out += warm; addr += 4 * (len(warm) - 1); k += 0; continue
        if "V magnitude guard" in x or "slow path" in x: stop = True
        if isins(x):
            if addr is not None and not stop and addr >= want[0] and ((prev_m and not x.strip().startswith("s_")) or addr >= want[0] + 48):
                out += [f"L_pad{npad}:", f"    s_cbranch_vccnz PADNEXT{npad}"]; npad += 1; addr += 4; want.pop(0)
            if addr is not None: addr += sizes[k]
            k += 1
            prev_m = x.strip().startswith(("v_mfma", "v_smfmac"))
        out.append(x)
    assert npad >= 4
    return [re.sub(r"PADNEXT(\d+)", lambda m: f"L_pad{int(m.group(1)) + 4}" if int(m.group(1)) + 4 < npad else "L_back", x) for x in out]

def main():
    body = build()
    if cfg.pads:
        fin = finale()
        body = add_pads(body + fin)
        globals()["finale"] = lambda: []
    out = HEADER + f"""; Design (hand-written via my own scheduling script):
;  * one workgroup (4 waves, 512 registers each) per (batch, head); v_mfma_f32_16x16x32_bf16 throughout.
;  * V stays in LDS (128 KB).  K is scaled once by log2(e)/sqrt(D), kept in registers (a quarter per wave) and
;    re-published to the other waves through a 32 KB LDS ring.  Every wave walks 16-row blocks of Q
;    (5 at a time in the first sweep over the keys, then 4); S^T = K Q^T, P = exp2(S^T), O^T += V^T P,
;    the row sums come from a sparse MFMA with a ones pattern.
;  * softmax guard: the fast path uses shift 0 instead of the row maximum (softmax is shift invariant).  It is
;    only kept when every row sum lies in [1, 2^96] and every |v| < 2^30 (checked at run time, NaN/inf included),
;    which rules out overflow and any loss from underflow; otherwise the wave recomputes its rows in the slow
;    path at the end, which subtracts the true row maximum.
; @launch grid=(256,1,1) block=(256,1,1) lds=163840
.amdgcn_target "amdgcn-amd-amdhsa--gfx950"
.text
.globl {KNAME}
.p2align 8
.type {KNAME},@function
{KNAME}:
""" + "\n".join(body) + "\n" + "\n".join(finale()) + f"""
L_end:
    s_endpgm
.section .rodata,"a"
.p2align 6
.amdhsa_kernel {KNAME}
  .amdhsa_next_free_vgpr 512
  .amdhsa_next_free_sgpr 102
  .amdhsa_accum_offset 256
  .amdhsa_group_segment_fixed_size 0
  .amdhsa_kernarg_size 48
  .amdhsa_user_sgpr_count 2
  .amdhsa_user_sgpr_kernarg_segment_ptr 1
  .amdhsa_system_sgpr_workgroup_id_x 1
.end_amdhsa_kernel
"""
    open(sys.argv[1], "w").write(out)
main()
```

```python
import sys, struct, math, re
from core import *

class Cfg:
    dmap = "A"
    LK = 3
    LV = 2
    delta = 3
    noswap = True
    busy64 = True
    oflagsFA = "="
    oflagsFB = "="
    wr64 = False
    CUT = 10
    leadT = 11
    ta_slow = 250
    ta_fast = 90
    v0first = True
    dsmargin = 7
    st3 = 0
    jitfirst = True
    tq0 = 2
    tstep = 16
    st0 = 60
    tqstep = 10
    ownk = True
    fin2 = True
    g2k = 6
    vck = 0
    pkb = 0
    emptybar = False
    shadowbr = True
    splitq = True
    lateA = 0
    lateB = 0
    wmargin = 7
    ymargin = 0
    touch = 0
    toucho = False
    touchkv = False
    order = ""
    nvbar = 1
    pads = 1
    padoff = 128
    k2g = 1
    ksT = 0
    pairld = False
    vc1 = False
    tlds = True
    tpk = True
    tx0 = 8
    txstep = 6
    exk = 5
    nvc = 32
    kvg = True
    ksd = 0
    gs = "246789"
    klin = True
    stE = 50
    drop = ""
    skew = 0
    repf = False
    early0 = 2
    e2T = 11
    e0g = 3
    pf1 = 8
    pf2 = 23
    pf3 = 9
    wbl2 = 0
    wbmask = 0x3e3
    pairst = False
    grow = 0
    stF0 = 20
    stFstep = 12
    jitstep = 2
    qstage = True
    sm0 = True
    tl0 = 6
    tlstep = 5
    wrn = 2
    kdoff = 14
    kstep = 8
    ldslat = 110
    qpf0 = 8
    lead = 0
    qflags = " nt"
    oflags = ""
    kvflags = " nt"
    pfflags = " nt"
    pf_period = 11
    stamps = 0
    spin = 0
    extra = 0
    dbg = -1
    force_fallback = False
    vahead = 2
    codepf = True
cfg = Cfg()
for a in sys.argv[2:]:
    k, v = a.split("=", 1)
    old = getattr(cfg, k)
    setattr(cfg, k, (v == "1") if isinstance(old, bool) else type(old)(v.replace("+", " ")))

if cfg.vc1: cfg.nvc = 0
KNAME = "standalone__mha_softmax__near_ridge_kernel"
SQ, SK, D = 1312, 512, 128
HEADQ = SQ * D * 2
HEADK = SK * D * 2
RING = 131072
CSCALE = struct.unpack("<I", struct.pack("<f", math.log2(math.e) / math.sqrt(D)))[0]

vO, vP, vS, vVf = 0, 160, 200, 208
vVA = 224
vHI, vLO = 226, 227
vKR, vKW, vQA, vOA, vPF, vIDX, vVD = 228, 229, 230, 231, 232, 233, 234
if cfg.ownk:
    assert cfg.noswap and not cfg.repf
    vOA = vQA if cfg.dmap == "A" else 255
    vKC = [228, 229, 235, 231]; vKW = 254
sX = [28, 46, 47, 48]
vT = 235
vKt = [236, 244]; vKx = [252, 253]
vW = [236, 240, 244]
vRI = 248
vL0, vL1, vDUM = 253, 254, 255
if vOA == 255:
    assert not cfg.vc1
    vDUM = 6
aQ, aST, aKf, aL, aSA = 0, 80, 208, 240, 252
def O(qs, b): return vO + 32 * qs + 4 * b
def P(T, qs): return vP + 20 * (T % 2) + 4 * qs
def S(c): return vS + 4 * (c % 2)
def Vf(f): return vVf + 4 * (f % 4)
def Q(qs, s): return aQ + 16 * qs + 4 * s
def Kf(blk, s): return aKf + 16 * blk + 4 * s
def ST(j, e): return aST + 8 * (j % 16) + 4 * e
def KA(T, blk, s): return ST(T, blk) if (cfg.ownk and s == 0) else Kf(blk, s)
def L(p): return aL + 4 * p
sQ, sK, sV, sO = 8, 12, 16, 20
sW = 24; sC = 25; sMASK = 26; sFAIL = 27; sBIT = 28; sCNT = 29
sOr = 30
sQn = 35
sKo, sVo, sM0 = 40, 41, 42
sT0, sT1, sT2 = 43, 44, 45
sLO, sRNG = 46, 47
sTS = 48
def off(s): return 64 * s if cfg.dmap == "A" else 128 * (s >> 1) + 16 * (s & 1)
GST = 16 if cfg.dmap == "A" else 32

DL = cfg.delta
TFIN = [1 << 30]
def act(T):
    if T < 0: return []
    if T < 16: return [0, 1, 2, 3, 4]
    if T >= TFIN[0] + DL: return []
    if T >= TFIN[0]: return [2, 3]
    if T < 16 + DL: return [0, 1]
    if DL and T >= 32 and (T % 16 == 0 or T % 16 == DL - 1): return [2, 3, 0, 1]
    return [0, 1, 2, 3]
def n_of(T): return len(act(T))
def phase(qs): return DL if qs in (2, 3) else 0
def isfirst(T, qs): return T == 0 or (T >= 16 and T % 16 == phase(qs))
def islast(T, qs): return T == 15 or (T > 16 + DL and (T + 1) % 16 == phase(qs))
def nextstart(T, qs):
    return 16 + phase(qs) if T == 15 else T + 1

def mfma(d, a, b, zero, dk="v", ak="a", bk="a"):
    D_, A_, B_ = R(dk, d, 4), R(ak, a, 4), R(bk, b, 4)
    return I(f"v_mfma_f32_16x16x32_bf16 {D_}, {A_}, {B_}, {'0' if zero else D_}", "mfma",
             rd=[A_, B_] + ([] if zero else [D_]), wr=[D_], acc=not zero)
def valu(text, rd, wr, kind="valu"): return I(text, kind, rd=rd, wr=wr)
def salu(text, rd=(), wr=()): return I(text, "salu", rd=rd, wr=wr)

class Item:
    __slots__ = ("ins", "after", "dead", "prio", "early", "tag", "placed", "T", "seq", "soft", "doff", "pace", "dabs", "nb")
    def __init__(self, ins, after=(), dead=None, early=None, tag="", prio=0, doff=0, pace=None):
        self.doff = doff; self.pace = pace; self.dabs = None; self.nb = None
        self.ins = ins; self.after = list(after); self.dead = dead; self.early = early
        self.tag = tag; self.prio = prio; self.placed = False

QKm, PVm, SMm, BARm, VCm = {}, {}, {}, {}, {}
def chain(T, g):
    a = act(T)
    if T == 15: return (g % 2, a[g // 2])
    if T == 0 and cfg.sm0: return [(0, 0), (1, 0), (0, 1), (1, 1), (0, 2), (1, 2), (0, 3), (0, 4), (1, 3), (1, 4)][g]
    return (g // len(a), a[g % len(a)])
def mk_step(T):
    for g in range(2 * n_of(T)):
        blk, qs = chain(T, g)
        for s in range(4):
            QKm[T, blk, qs, s] = mfma(S(g), KA(T, blk, s), Q(qs, s), s == 0)
    for b in range(8):
        for qs in act(T):
            PVm[T, b, qs] = mfma(O(qs, b), Vf(b), P(T, qs), isfirst(T, qs), ak="v", bk="v")
    for p in pairs(T):
        d, b = R("a", L(p), 4), R("v", P(T, pair_lo(p)), 8)
        SMm[T, p] = I(f"v_smfmac_f32_16x16x64_bf16 {d}, {R('a', aSA, 4)}, {b}, v{vIDX}", "smf",
                      rd=[d, b, R("a", aSA, 4), f"v{vIDX}"], wr=[d], acc=True)
def pair_of(qs): return 2 if qs == 4 else qs // 2
def pairs(T):
    out = []
    for qs in act(T):
        if pair_of(qs) not in out: out.append(pair_of(qs))
    return out
def pair_lo(p): return 3 if p == 2 else 2 * p
def pvlist(T): return [PVm[T, b, qs] for b in range(8) for qs in act(T)]
firstm = {}
notes = {}
VC1 = {(T, dh): mfma(Kf(1, 0), Kf(0, 0), Kf(0, 0), T == 0 and dh == 0, dk="a") for T in range(16) for dh in range(2)}

def backbone_period(T):
    tail = n_of(T) == 0
    pv = pvlist(T - 2)[-4:] + (pvlist(T - 1) if tail else pvlist(T - 1)[:-4])
    sm = [SMm[T - 1, p] for p in pairs(T - 1)]
    out = []
    if tail:
        out += pv[:6] + sm + pv[6:] + [VCm[j] for j in range(cfg.nvc)]
        for k, m in enumerate(out): m.pref = "T" if (k < 4) else "D"
        firstm[T] = out[0]
        return out
    n = n_of(T); G = 2 * n
    lead = cfg.leadT if T == 16 else cfg.lead if (T > 16 and any(islast(T - 1, q) for q in act(T - 1))) else 0
    if lead:
        nl = 4 * lead
        head = pv[:nl]; pv = pv[nl:]
        if lead >= 2:
            head = head[:4] + [sm[0]] + head[4:8] + sm[1:] + head[8:]
            sm = []
        for k, m in enumerate(head): m.pref = "T" if k < 4 else "D"
        out += head
    if T == 1: cnt = [0] + [4] * (G - 1)
    elif len(pv) < 4 * G and not lead:
        r = len(pv) - 4; cnt = [min(4, len(pv))] + [r // (G - 1) + (1 if g < r % (G - 1) else 0) for g in range(G - 1)] if len(pv) >= 4 else [0] * G
    else:
        cnt = [len(pv) // G + (1 if g < len(pv) % G else 0) for g in range(G)]
    smpos = {}
    if sm:
        early = any(islast(T - 1, q) for q in act(T - 1)) and len(sm) > 1
        spots = [0 if early else 1, G // 2 + 1, G - 2]
        for m, g in zip(sm, spots): smpos.setdefault(min(g, G - 1), []).append(m)
    if cfg.vc1 and 1 <= T < 16:
        for dh in range(2):
            smpos.setdefault(6 + 2 * dh, []).append(VC1[T, dh])
            if T == 1: smpos.setdefault(2 + 2 * dh, []).append(VC1[0, dh])
    k = 0
    for g in range(G):
        blk, qs = chain(T, g)
        grp = [QKm[T, blk, qs, s] for s in range(4)] + pv[k:k + cnt[g]]
        k += cnt[g]
        L_ = len(grp)
        for j, m in enumerate(grp):
            m.pref = "T" if (L_ >= 8 and j % 2 == 0 and j < 8) or (L_ < 8 and j in {4: (0, 1, 2, 3), 5: (0, 1, 3, 4), 6: (0, 2, 3, 5), 7: (0, 2, 4, 6)}[L_]) else "D"
        out += grp
        for m in smpos.get(g, []):
            m.pref = "D"; out.append(m)
    firstm[T] = out[0]
    return out

items = []
glue = {}
curT = [-200]
ordn = {}
def add(ins, **kw):
    it = Item(ins, **kw); ordn[curT[0]] = ordn.get(curT[0], 0) + 1; it.T = (curT[0], ordn[curT[0]]); it.seq = len(items); items.append(it); return it

cvts = {}
def items_softmax(T):
    n = n_of(T)
    for g in range(2 * n):
        blk, qs = chain(T, g)
        last = QKm[T, blk, qs, 3]
        if g + 2 < 2 * n: nxt = QKm[(T,) + chain(T, g + 2) + (0,)]
        elif n_of(T + 1): nxt = QKm[(T + 1,) + chain(T + 1, g + 2 - 2 * n) + (0,)]
        else: nxt = None
        use = PVm[T, 0, qs]
        ng = QKm[(T,) + chain(T, g + 1) + (0,)] if g + 1 < 2 * n else firstm[T + 1]
        sms = [SMm[T, p] for p in pairs(T) if pair_lo(p) <= qs <= pair_lo(p) + 1]
        ex = []
        for r in range(4):
            v = f"v{S(g)+r}"
            ex.append(add(valu(f"v_exp_f32 {v}, {v}", [v], [v], "trans"), after=[(last, 8), (ng, 0)] + ([(ex[-1].ins, 0)] if ex else []),
                          dead=[nxt, use], tag="sm"))
        for h in range(2):
            d = f"v{P(T, qs) + 2*blk + h}"; a, b = f"v{S(g)+2*h}", f"v{S(g)+2*h+1}"
            aft = [(ex[2*h].ins, 1), (ex[2*h+1].ins, 1)]
            if qs in act(T - 2): aft.append((PVm[T - 2, 7, qs], 0))
            aft += [(SMm[T - 2, p], 0) for p in pairs(T - 2) if pair_lo(p) <= qs <= pair_lo(p) + 1]
            it = add(valu(f"v_cvt_pk_bf16_f32 {d}, {a}, {b}", [a, b], [d]), after=aft, dead=[nxt, use] + sms, tag="sm")
            pwriters.setdefault((T, P(T, qs)), []).append(it)
pwriters = {}

kreads = {}
def bar_pub(T):
    return BARm[T - 1] if T < 16 else BARm[(T // 2) * 2 - 1]
def items_kread(T):
    n = n_of(T)
    for blk in range(2):
        for s in range(4):
            if cfg.ownk and s == 0 and T >= 16: continue
            d = R("a", KA(T, blk, s), 4)
            if cfg.ownk: ins = I(f"ds_read_b128 {d}, v{vKC[s]} offset:{(T % 4) * 8192 + blk * 4096}", "dsr", rd=[f"v{vKC[s]}"], wr=[d])
            else: ins = I(f"ds_read_b128 {d}, v{vKR} offset:{(T % 4) * 8192 + (4*blk+s) * 1024}", "dsr", rd=[f"v{vKR}"], wr=[d])
            aft = [(bar_pub(T), 0)]
            if T >= 1 and not (cfg.ownk and s == 0): aft.append((QKm[T - 1, blk, act(T - 1)[-1], s], 0))
            dl = [QKm[T, blk, act(T)[0], 0]]
            if blk == 1 and T % 2 == 1 and T != 15 and T in BARm: dl.append(BARm[T])
            kreads[T, blk, s] = add(ins, after=aft, dead=dl, tag="qk", prio=-12, doff=cfg.ymargin if len(dl) > 1 else 0)
vreads = {}
vtog = {}
def vbar(T):
    if T == 0: return BARm["V0"]
    return BARm.get(f"V{T}", BARm[T])
def vsel(b):
    return ((b >> 1) & 1, b >> 2, 8 * (b & 1)) if cfg.noswap else (b & 3, b >> 2, 0)
NVA = 2 if cfg.noswap else 4
def items_vread(T):
    for b in range(8):
        f = 8 * T + b
        pT, pb = divmod(f - 4, 8)
        aft = []
        if f >= 4: aft.append((PVm[pT, pb, act(pT)[-1]], 0))
        va = cfg.vahead if n_of(T) > 2 else 3
        aT, ab = divmod(f - va - 1, 8)
        if f - va - 1 >= 0: aft.append((PVm[aT, ab, act(aT)[-1]], 0))
        if T < 16: aft.append((vbar(T), 0))
        c, dh, e8 = vsel(b)
        if T % 8 == 0 and T > 0 and dh == 0: aft.append((vtog[T, c].ins, 0))
        prev = None
        for blk in range(2):
            d = R("v", Vf(f) + 2 * blk, 2)
            ins = I(f"ds_read_b64_tr_b16 {d}, v{vVA+c} offset:{dh*32768 + (T % 8)*4096 + blk*2048 + e8}", "dsr",
                    rd=[f"v{vVA+c}"], wr=[d])
            vreads[T, b, blk] = add(ins, after=aft + ([(prev, 0)] if prev else []), dead=[PVm[T, b, act(T)[0]]], tag="v", prio=-12)
            prev = ins
def items_vtoggle(T):
    for c in range(NVA):
        v = f"v{vVA+c}"
        use = [b for b in range(8) if vsel(b)[0] == c]
        vtog[T, c] = add(valu(f"v_xor_b32 {v}, 0x10000, {v}", [v], [v]), after=[(vreads[T - 1, b, 1].ins, 0) for b in use],
                         dead=[PVm[T, use[0], act(T)[0]]], tag="v", prio=-24, doff=cfg.dsmargin + 4)

kwrites = {}
kloads = {}
def busy(T):
    return T < 26 or T >= TFIN[0] or (T % 16) in (2, 3, 4, 5, 6, 7, 8, 9)
KWE = 128 if cfg.klin else 1024
def items_kwrite(T):
    m = T // 2
    if T < 16: opn, cls = BARm[max(T - 3, -1)], BARm[T - 1]
    else: opn, cls = BARm[2 * m - 3], BARm[2 * m - 1]
    ws = []
    def wr(src, r, nreg, **kw):
        x = R(src[0], src[1] + r, nreg)
        ad, st_ = (vKC[0], 4096) if (cfg.ownk and T >= 16) else (vKW, KWE)
        return add(I(f"ds_write_b{32*nreg} v{ad}, {x} offset:{(T % 4)*8192 + (r//4)*st_ + (r % 4)*4}", "dsw", rd=[f"v{ad}", x],
                     cost={1: 8, 2: 12, 4: 26}[nreg]), tag="qk", **kw)
    nr = cfg.wrn
    if T < 16:
        st = vKt[T % 2]
        prev_w = kwrites.get(T - 2)
        done = []
        for r in range(8):
            a = f"a{ST(T, 0) + r}"; x = f"v{st + r}"; t = f"v{vKx[r % 2]}"
            do = (cfg.kdoff + (7 - r) * cfg.kstep) if T >= 2 else 2 + (7 - r)
            kw = dict(dead=[cls], tag="qk", doff=do + 2)
            aft = [(kloads[T][r // 4], 0)]
            if prev_w: aft.append((prev_w[r * len(prev_w) // 8].ins, 0))
            aft.append(((start_of(T - 1) if T <= cfg.ksT else mid_of(T - 2)) if T >= 3 else (QKm[0, 0, 4, 3] if cfg.k2g < 0 else QKm[1, 0, cfg.k2g, 0]) if T == 2 else QKm[0, 0, 1, 3], 0))
            if not cfg.kvg: aft = [(add(valu(f"v_accvgpr_read_b32 {x}, {a}", [a], [x]), after=aft, prio=-5, **kw).ins, 0)]
            i1 = add(valu(f"v_lshlrev_b32 {t}, 16, {x}", [x], [t]), after=aft + ([(chain_prev[r % 2], 0)] if chain_prev[r % 2] else []), prio=-4, **kw)
            i2 = add(valu(f"v_and_b32 {x}, s{sMASK}, {x}", [x, f"s{sMASK}"], [x]), after=[(i1.ins, 0)], prio=-3, **kw)
            i3 = add(valu(f"v_mul_f32 {t}, s{sC}, {t}", [t, f"s{sC}"], [t]), after=[(i1.ins, 0)], prio=-2, **kw)
            i4 = add(valu(f"v_mul_f32 {x}, s{sC}, {x}", [x, f"s{sC}"], [x]), after=[(i2.ins, 0)], prio=-1, **kw)
            i5 = add(valu(f"v_cvt_pk_bf16_f32 {x}, {t}, {x}", [t, x], [x]), after=[(i3.ins, 0), (i4.ins, 0)], prio=0, **kw)
            chain_prev[r % 2] = i5.ins; done.append(i5.ins)
            if r % nr == nr - 1:
                ws.append(wr(("v", st), r - nr + 1, nr, after=[(opn, 0)] + [(x_, 0) for x_ in done[-nr:]], dead=[cls], doff=max(do - 8, 1)))
        rb = []
        for e in range(0 if cfg.ownk else 2):
            d = R("a", ST(T, e), 4)
            ins = I(f"ds_read_b128 {d}, v{vKW} offset:{(T % 4)*8192 + e*1024}", "dsr", rd=[f"v{vKW}"], wr=[d])
            rb.append(add(ins, after=[(w_.ins, 0) for w_ in ws[e * len(ws) // 2:(e + 1) * len(ws) // 2]], dead=[BARm[T]], tag="qk", prio=0))
        readback[T] = rb
        if cfg.kvg:
            assert cfg.ownk and cfg.LK == 3
            for e, it in enumerate(kload_items.get(T + 2, [])): it.after += [(w_.ins, 0) for w_ in ws[e * len(ws) // 2:(e + 1) * len(ws) // 2]]
    else:
        nw_ = 8 // nr
        for k in range(nw_):
            ws.append(wr(("a", ST(T, 0)), k * nr, nr, after=[(opn, 0)] + ([(ws[-1].ins, 0)] if ws else ([(kwrites[T-1][-1].ins, 0)] if T % 2 else [])),
                         dead=[cls], pace=(opn, ((T % 2) * nw_ + k + 1) / (2.0 * nw_))))
    kwrites[T] = ws
chain_prev = [None, None]
readback = {}
def mid_of(T): return QKm[(T,) + chain(T, n_of(T)) + (0,)]
def bar_spot(T): return QKm[0, 0, 4, 3] if T == 0 else QKm[(T,) + chain(T, n_of(T) - 1) + (3,)]
def start_of(T): return QKm[(T,) + chain(T, 0) + (0,)]

def kload_ins(j):
    out = []
    for e in range(2):
        d = R("v", vKt[j % 2] + 4 * e, 4) if cfg.kvg else R("a", ST(j, e), 4)
        va, o_ = (vVD, 2048 * e) if cfg.klin else (vQA, off(1) * e)
        out.append(I(f"buffer_load_dwordx4 {d}, v{va}, s[{sK}:{sK+3}], s{sKo} offen offset:{o_}{cfg.kvflags}", "vld",
                     rd=[f"v{va}", f"s{sKo}", f"s[{sK}:{sK+3}]"], wr=[d]))
        out[-1].fast = cfg.klin
    return out
def vdma_ins(j):
    out = []
    for dh in range(2):
        m0 = (j >> 3) * 65536 + dh * (32768 - 128) + (j & 7) * 4096
        out.append((salu(f"s_add_u32 m0, s{sM0}, {m0}", [f"s{sM0}"], ["m0", "scc"]),
                    I(f"buffer_load_dwordx4 v{vVD}, s[{sV}:{sV+3}], s{sVo} offen offset:{128*dh}{cfg.kvflags} lds", "dma",
                      rd=[f"v{vVD}", f"s{sVo}", "m0", f"s[{sV}:{sV+3}]"])))
    return out
vdmas = {}
last_vm = [None]
def add_kload(j, after, dead):
    up = add(salu(f"s_add_u32 s{sKo}, s{sKo}, 8192", [f"s{sKo}"], [f"s{sKo}", "scc"]),
             after=after + ([(last_vm[0], 0)] if last_vm[0] else []), dead=dead, tag="ld", prio=-30)
    ins = kload_ins(j); kloads[j] = ins
    prev = up.ins
    for x in ins:
        kload_items.setdefault(j, []).append(add(x, after=[(prev, 0)], dead=dead, tag="ld", prio=-25)); prev = x
    last_vm[0] = prev
kload_items = {}
def add_vdma(j, after, dead):
    prev = last_vm[0]
    if j > 0:
        prev = add(salu(f"s_add_u32 s{sVo}, s{sVo}, 8192", [f"s{sVo}"], [f"s{sVo}", "scc"]),
                   after=after + ([(prev, 0)] if prev else []), dead=dead, tag="ld", prio=-30).ins
    vdmas[j] = []
    for sm0, dm in vdma_ins(j):
        add(sm0, after=after + [(prev, 0)], dead=dead, tag="ld", prio=-28)
        add(dm, after=[(sm0, 1)], dead=dead, tag="ld", prio=-25); prev = dm
        vdmas[j].append(dm)
    last_vm[0] = prev
def items_loads(T):
    if T == 0:
        def spot(g): return QKm[(0,) + chain(0, g) + (0,)], QKm[(0,) + chain(0, g) + (1,)]
        a, d = spot(0)
        prev = last_vm[0]
        for x in q0load(4):
            add(x, after=[(a, 0)] + ([(prev, 1 if x.kind == "dma" else 0)] if prev else []), dead=[d], tag="ld", prio=-50); prev = x
        last_vm[0] = prev
        gs = [int(c) for c in cfg.gs] if cfg.sm0 else [1, 2, 3, 4, 5, 7]
        kj, vj = 2, 0
        if cfg.order:
            for tok in cfg.order.split(","):
                a, d = spot(int(tok[2]))
                if tok[0] == "V": add_vdma(int(tok[1]), [(a, 0)], [d])
                elif tok[1] == "3": add_kload(3, [], [spot(9)[0]])
                else: add_kload(int(tok[1]), [(a, 0)], [d])
            kj, vj = 99, 99
        while kj <= cfg.LK or vj <= cfg.LV:
            a, d = spot(gs.pop(0) if len(gs) > 1 else gs[0])
            if cfg.v0first and vj <= cfg.LV: add_vdma(vj, [(a, 0)], [d]); vj += 1
            if kj <= cfg.LK and not (cfg.kvg and kj == 3): add_kload(kj, [(a, 0)], [d]); kj += 1
            if not cfg.v0first and vj <= cfg.LV: add_vdma(vj, [(a, 0)], [d]); vj += 1
            if cfg.kvg and kj == 3 and vj > cfg.LV: add_kload(3, [], [spot(9)[0]]); kj += 1
        if cfg.qstage:
            for qs in range(5):
                g0 = [chain(0, g) for g in range(10)].index((0, qs))
                aft = [(QKm[(0,) + chain(0, g0 - 1) + (3,)], 0)] if g0 else []
                for s_ in range(4):
                    d_ = R("a", Q(qs, s_), 4)
                    x = I(f"ds_read_b128 {d_}, v{vQR+s_} offset:{qs*4096}", "dsr", rd=[f"v{vQR+s_}"], wr=[d_], needs=qdmas[qs])
                    x.block = True
                    if cfg.pads and qs == 1 and s_ == 0:
                        wu = I("; WARM_UP", "br", cost=4)
                        add(wu, after=aft, dead=[QKm[0, 0, qs, 0]], tag="ld", prio=-200)
                        aft = aft + [(wu, 0)]
                    add(x, after=aft + [(z, 0) for z in qdmas[qs]], dead=[QKm[0, 0, qs, 0]], tag="ld", prio=-100)
        return
    assert cfg.LV <= 3 or not cfg.qstage
    x0, x1 = min(T - 1, cfg.grow), min(T, cfg.grow)
    if x1 > x0 and T + cfg.LV + x0 < 16: add_vdma(T + cfg.LV + x0, [(start_of(T), 0)], [mid_of(T)])
    for j in range(T + cfg.LK + x0, T + cfg.LK + x1 + 1):
        if j < 16: add_kload(j, [(start_of(T), 0)], [start_of(T + 1)])
    if T + cfg.LV + x1 < 16: add_vdma(T + cfg.LV + x1, [(mid_of(T), 0)], [mid_of(T + 1)])

QSTG = 49152
vQD, vQR = 8, 12
sQS = 5
qdmas = {}
def q0load(qs):
    if not cfg.qstage: return qload_ins(qs)
    out = [salu(f"s_add_u32 m0, s{sQS}, {qs*4096}", [f"s{sQS}"], ["m0", "scc"])]
    qdmas[qs] = [I(f"buffer_load_dwordx4 v{vQD+j}, s[{sQ}:{sQ+3}], s{sQn+qs} offen offset:{1024*j}{cfg.qflags} lds", "dma",
                   rd=[f"v{vQD+j}", f"s{sQn+qs}", "m0", f"s[{sQ}:{sQ+3}]"]) for j in range(4)]
    return out + qdmas[qs]
def qload_ins(qs, dst=None):
    out = []
    for s in range(4):
        d = R("a", Q(qs, s), 4) if dst is None else R(dst[s][0], dst[s][1], 4)
        if cfg.ownk:
            out.append(I(f"s_add_u32 s{sT0}, s{sQn+qs}, s{sX[s]}\n    buffer_load_dwordx4 {d}, v{vQA}, s[{sQ}:{sQ+3}], s{sT0} offen{cfg.qflags}", "vld",
                         rd=[f"v{vQA}", f"s{sQn+qs}", f"s[{sQ}:{sQ+3}]"], wr=[d]))
            continue
        out.append(I(f"buffer_load_dwordx4 {d}, v{vQA}, s[{sQ}:{sQ+3}], s{sQn+qs} offen offset:{off(s)}{cfg.qflags}", "vld",
                     rd=[f"v{vQA}", f"s{sQn+qs}", f"s[{sQ}:{sQ+3}]"], wr=[d]))
    return out
def items_qjit():
    prev = None
    early = {}
    if cfg.early0:
        kw_ = lambda t: [(x.ins, 0) for x in kwrites[t]]
        bufs = [(("v", 236 + 4 * k), kw_(14) + (kw_(15) if (k >= 2 or cfg.early0 == 1) else [])) for k in range(4)]
        if cfg.early0 == 2:
            assert cfg.ownk and not cfg.vc1
            bufs = [(("a", Kf(k, 0)), [(vdmas[cfg.e2T + cfg.LV][-1], 0)]) for k in range(2)] + bufs
        for k, (bf_, aft) in enumerate(bufs):
            qs, s_ = divmod(k, 4); early[qs, s_] = bf_
            ins = qload_ins(qs, [bf_] * 4)[s_]
            add(ins, after=aft + ([(prev, 0)] if prev else []), dead=[start_of(15)], tag="qj", prio=-400)
            prev = ins
            for r in range(4):
                d, a_ = f"a{Q(qs, s_) + r}", f"{bf_[0]}{bf_[1] + r}"
                op = "v_accvgpr_write_b32" if bf_[0] == "v" else "v_accvgpr_mov_b32"
                add(valu(f"{op} {d}, {a_}", [a_], [d]), after=[(QKm[15, 1, qs, s_], 0), (QKm[15, 0, cfg.e0g, 0], 0)], dead=[firstm[16]], tag="qc", prio=-3)
    for qs in range(4):
        for s_, ins in enumerate(qload_ins(qs)):
            if (qs, s_) in early: continue
            T1 = nextstart(15, qs)
            dl = [QKm[T1, 0, qs, 0]] + ([firstm[16]] if T1 == 16 and cfg.jitfirst else [])
            it = add(ins, after=[(QKm[15, 1, qs, s_], 0)] + ([(prev, 0)] if prev else []), dead=dl, tag="qj", prio=-400)
            if T1 > 16 and cfg.pairld and s_ % 2: qjit_b[-1].after.append(it.after[0]); glue[id(prev)] = it
            if T1 > 16: qjit_b.append(it)
            elif cfg.jitstep: it.dabs = (QKm[15, 1, qs, 3], 1 + cfg.jitstep * (s_ - len([1 for e in early if e[0] == qs])))
            prev = ins
qjit_b = []
early_done = []
UNITS = [O(4, b) for b in range(8)] + [P(0, 4), P(1, 4), 236, 240, 244]
QBUF = {(qs, s_): ("v", UNITS[4 * qs + s_]) for qs in range(3) for s_ in range(4)}
QBUF.update({(3, s_): ("a", Q(4, s_)) for s_ in range(4)})
unit_free = {}
def items_qpf(base):
    prev = None; hist_ = []
    for qs in range(4):
        T = base + 15 + phase(qs)
        lds_ = qload_ins(qs, [QBUF[qs, s_] for s_ in range(4)])
        for s_, ins in enumerate(lds_):
            k = 4 * qs + s_
            curT[0] = base + cfg.CUT
            pre_ = []
            if cfg.ownk and cfg.splitq:
                a_t, l_t = ins.text.split("\n    ")
                sr = f"s{sT0 if k % 2 == 0 else sT1}"
                ins.text = l_t.replace(f"s{sT0} offen", f"{sr} offen")
                sa = add(salu(a_t.replace(f"s{sT0},", f"{sr},", 1), [], [sr, "scc"]), after=[(rowadv_done[base], 0)] + ([(hist_[-2], 0)] if k >= 2 else []),
                         dead=[start_of(base + 14) if qs < 2 else firstm[base + 16]], tag="qp", prio=-300 + k)
                pre_ = [(sa.ins, 0)]
            hist_.append(ins)
            it_ = add(ins, after=pre_ + [(rowadv_done[base], 0)] + ([(prev, 0)] if prev else []),
                dead=[start_of(base + 14) if qs < 2 else firstm[base + 16]], tag="qp", prio=-200 + k)
            if cfg.pairld and s_ % 2: glue[id(prev)] = it_
            prev = ins
            kind, r0 = QBUF[qs, s_]
            curT[0] = T
            if (T, 1, qs, s_) not in QKm or (T + 1, 0, qs, s_) not in QKm: continue
            for r in range(4):
                d, a_ = f"a{Q(qs, s_) + r}", f"{kind}{r0 + r}"
                op = "v_accvgpr_write_b32" if kind == "v" else "v_accvgpr_mov_b32"
                c = add(valu(f"{op} {d}, {a_}", [a_], [d]), after=[(QKm[T, 1, qs, s_], 0)], dead=[QKm[T + 1, 0, qs, s_]], tag="qc", prio=-3, doff=1)
                if kind == "v": unit_free.setdefault((base, r0), []).append((c.ins, 0))
rowadv_done = {}
sWS = 52
vc_store = []
def items_vcheck():
    assert cfg.ownk
    va = f"v{vPF}"; d = R("a", Kf(0, 0), 4); prev = None; tg = None
    for T in range(16):
        if T == 8: tg = add(valu(f"v_xor_b32 {va}, 0x10000, {va}", [va], [va]), after=[(rd_, 0)], dead=[VC1[8, 0]], tag="vc", doff=14).ins
        for dh in range(2):
            rd_ = I(f"ds_read_b128 {d}, {va} offset:{dh*32768 + (T % 8)*4096}", "dsr", rd=[va], wr=[d], needs=vdmas[T])
            add(rd_, after=[(vbar(T), 0)] + ([(prev, 0)] if prev else []) + ([(tg, 0)] if T == 8 else []), dead=[VC1[T, dh]], tag="vc", prio=-12)
            prev = VC1[T, dh]
    x, y = f"v{vDUM}", f"v{vVD}"; p_ = (prev, 12)
    a = Kf(1, 0)
    sq = [(f"v_accvgpr_read_b32 {x}, a{a}", [f"a{a}"], [x]), (f"v_and_b32 {x}, 0x7fffffff, {x}", [x], [x])]
    for k in range(1, 4):
        sq += [(f"v_accvgpr_read_b32 {y}, a{a+k}", [f"a{a+k}"], [y]), (f"v_and_b32 {y}, 0x7fffffff, {y}", [y], [y]), (f"v_max_u32 {x}, {x}, {y}", [x, y], [x])]
    for tx, r_, w_ in sq: p_ = (add(valu(tx, r_, w_), after=[p_], dead=[start_of(23)], tag="vc").ins, 0)
    blk = I("\n    ".join([f"v_cmp_le_u32 vcc, 0x5d800000, {x}    ; sum of squares >= 2^60 (or NaN)", "s_nop 4", "s_cbranch_vccz L_vok",
                           f"v_mov_b32 {x}, 1", f"buffer_store_byte {x}, off, s[{sWS}:{sWS+3}], s2", "s_waitcnt vmcnt(0)"]) + "\nL_vok:",
            "br", rd=[x], wr=[x, "vcc"], cost=32)
    add(blk, after=[p_], dead=[start_of(24)], tag="vc", doff=1)
def items_codepf(T, label):
    t = f"v{vDUM}"
    a = add(salu(f"s_lshl_b32 s{sT2}, s{sW}, 13\n    s_add_u32 s{sT2}, s{sT2}, {label} - L_pf - {RING * 8}", [], [f"s{sT2}", "scc"]), after=[(start_of(T), 0)], dead=[mid_of(T)], tag="pf")
    a.ins.cost = 8
    b = add(valu(f"v_lshl_add_u32 {t}, v{vKR}, 3, s{sT2}", [f"v{vKR}", f"s{sT2}"], [t]), after=[(a.ins, 0)], dead=[mid_of(T)], tag="pf")
    c = add(valu(f"v_min_u32 {t}, L_end - L_pf, {t}", [t], [t]), after=[(b.ins, 0)], dead=[mid_of(T)], tag="pf")
    x = I(f"global_load_dword v{vDUM}, {t}, s[50:51]", "vld", rd=[t], wr=[f"v{vDUM}"]); x.nowait = True
    add(x, after=[(c.ins, 0)], dead=[start_of(T + 1)], tag="pf")
def items_rowadv(T):
    for qs in range(4):
        a = add(salu(f"s_add_u32 s{sOr+qs}, s{sOr+qs}, {'s3' if cfg.extra else 65536}", [f"s{sOr+qs}"], [f"s{sOr+qs}", "scc"]), after=[(start_of(T), 0)], dead=[mid_of(T)], tag="adv", prio=0)
        b = add(salu(f"s_add_u32 s{sQn+qs}, s{sOr+qs}, {'s4' if cfg.extra else 65536}" + ("\n    s_mov_b32 s3, s4\n    s_cmp_le_u32 s%d, 5\n    s_cselect_b32 s4, 0x10000, 0" % sCNT if cfg.extra and qs == 3 else ""), [f"s{sOr+qs}"], [f"s{sQn+qs}", "scc"]),
                after=[(a.ins, 0)] + ([(rowadv_done[T - T % 16], 0)] if qs else []), dead=[mid_of(T)], tag="adv", prio=0)
        rowadv_done[T - T % 16] = b.ins

lprev = []
def items_epilogue(T, endins):
    slots = sorted(q for q in act(T) if islast(T, q))
    base = (T + 1) // 16 * 16 - 16
    ri = {}
    def over(b, qs):
        T1 = nextstart(T, qs)
        return PVm[T1, b, qs] if qs in act(T1) and qs != 4 else endins
    xs = []
    for qs in slots:
        p = pair_of(qs); h = 1 if qs == 4 else qs % 2
        la, lb = f"a{L(p) + 2*h}", f"a{L(p) + 2*h + 1}"
        x, y, r = f"v{vL0 if qs % 2 == 0 else vPF}", f"v{vL1}", f"v{vRI+qs}"
        kw = dict(dead=[over(0, qs), endins], tag="ep", prio=-400)
        pa = [(z, 0) for z in lprev]
        i0 = add(valu(f"v_accvgpr_read_b32 {x}, {la}", [la], [x]), after=[(SMm[T, p], 12)] + pa, **kw)
        i1 = add(valu(f"v_accvgpr_read_b32 {y}, {lb}", [lb], [y]), after=[(SMm[T, p], 12)] + pa, **kw)
        i2 = add(valu(f"v_add_f32 {x}, {x}, {y}", [x, y], [x]), after=[(i0.ins, 0), (i1.ins, 0)], **kw)
        i3 = add(valu(f"v_rcp_f32 {r}, {x}", [x], [r], "trans"), after=[(i2.ins, 0)], **kw)
        ri[qs] = i3.ins; xs.append((x, i2.ins, i3.ins))
        lprev[:] = [i2.ins]
        if qs % 2 == 1 or qs == 4:
            src = ", ".join(z[0] for z in xs); nm = "3" if len(xs) == 2 else ""
            kw = dict(dead=[endins], tag="ep", prio=-300)
            c1 = add(valu(f"v_max{nm}_u32 v{vHI}, v{vHI}, {src}", [f"v{vHI}"] + [z[0] for z in xs], [f"v{vHI}"]), after=[(z[1], 0) for z in xs], **kw)
            c2 = add(valu(f"v_min{nm}_u32 v{vLO}, v{vLO}, {src}", [f"v{vLO}"] + [z[0] for z in xs], [f"v{vLO}"]), after=[(z[1], 0) for z in xs], **kw)
            lprev[:] = [c1.ins, c2.ins] + [z[2] for z in xs]; xs = []
        T1 = nextstart(T, qs)
        if qs in act(T1) and qs != 4:
            for reg in (la, lb):
                add(valu(f"v_accvgpr_write_b32 {reg}, 0", [], [reg]), after=[(i0.ins, 0), (i1.ins, 0)], dead=[SMm[T1, p], endins], tag="ep", prio=0, doff=1)
    if T == 15:
        def pfree(t, q): return [(PVm[t, 7, q], 0)] + [(SMm[t, p], 0) for p in pairs(t) if pair_lo(p) <= q <= pair_lo(p) + 1]
        pool = [(u, []) for u in (236, 240, 244)] + [(P(14, q), pfree(14, q)) for q in ((4, 2, 3) if DL else (4,))]
        if DL: pool += [(P(15, q), pfree(15, q)) for q in (2, 3)]
    elif slots[0] == 0: pool = [(u, unit_free.get((base, u), [])) for u in (UNITS[:8] if DL else UNITS[-1:] + UNITS[:-1])]
    else: pool = [(u, unit_free.get((base, u), [])) for u in UNITS[12:] + UNITS[8:12] + UNITS[:8]]
    inplace = [q for q in slots if (q == 4 or (T == 15 and phase(q)))] if not endins.text.startswith("; end") else slots
    def seq(sl):
        if cfg.pairst: return [(2 * pp + e, qs) for pp in range(2) for qs in sl for e in range(2)]
        return [(pb, qs) for pb in range(4) for qs in sl]
    order = seq([q for q in slots if q not in inplace]) + seq(inplace)
    tl = cfg.tlds and endins.text.startswith("; end")
    if tl:
        order = [(2 * hf + e, qs) for hf in range(2) for qs in slots for e in range(2)]
        tW, tR, tO = [176, 177], 178, 179
        RB = [[P(0, 0), P(0, 1)], [P(1, 0), P(1, 1)]]
        m_, x_, y_ = "v178", "v176", "v177"
        seqs = [(f"v_mbcnt_lo_u32_b32 {m_}, -1, 0", [], [m_]), (f"v_mbcnt_hi_u32_b32 {m_}, -1, {m_}", [m_], [m_]),
                (f"v_lshrrev_b32 {x_}, 3, {m_}", [m_], [x_]), (f"v_xor_b32 {y_}, {x_}, {m_}", [x_, m_], [y_]), (f"v_and_b32 {y_}, 7, {y_}", [y_], [y_]),
                (f"v_lshlrev_b32 {y_}, 4, {y_}", [y_], [y_]), (f"v_lshl_add_u32 v{tO}, {x_}, 8, {y_}", [x_, y_], [f"v{tO}"]),
                (f"v_lshrrev_b32 {x_}, 4, {m_}", [m_], [x_]), (f"v_xor_b32 {x_}, {x_}, {m_}", [x_, m_], [x_]), (f"v_and_b32 {x_}, 7, {x_}", [x_], [x_]),
                (f"v_and_b32 {y_}, 15, {m_}", [m_], [y_]), (f"v_lshlrev_b32 {y_}, 3, {y_}", [y_], [y_]), (f"v_add_lshl_u32 {x_}, {x_}, {y_}, 4", [x_, y_], [x_]),
                (f"v_add_u32 {x_}, s{sT2}, {x_}", [x_], [x_]), (f"v_xor_b32 {y_}, 64, {x_}", [x_], [y_]),
                (f"v_lshl_add_u32 {m_}, {m_}, 4, s{sT2}", [m_], [m_])]
        pv_ = add(salu(f"s_lshl_b32 s{sT2}, s{sW}, 12\n    s_add_u32 s{sT2}, s{sT2}, {RING}", [], [f"s{sT2}", "scc"]), dead=[firstm[T + 1]], tag="ep").ins
        for tx, rd_, wr_ in seqs: pv_ = add(valu(tx, rd_, wr_), after=[(pv_, 0)], dead=[firstm[T + 1]], tag="ep").ins
        tready = pv_; tws = []; trd = {}; tst = {}
    sts = []; bursts = {}
    ofl = cfg.oflags
    if T >= TFIN[0] - 1:
        f_ = cfg.oflagsFA if slots[0] == 0 else cfg.oflagsFB
        if f_ != "=": ofl = f_
    for k, (pb, qs) in enumerate(order):
        inp = qs in inplace
        w, wa = (O(qs, 2 * pb), []) if inp else pool.pop(0)
        cv = []
        for e in range(2):
            b = 2 * pb + e
            kw = dict(dead=[over(2 * pb if inp else b, qs), endins], tag="ep", prio=(-200 + 4 * k) if inp else 0)
            ms = []
            if cfg.pkb and not tl and qs != 4:
                key_ = (pb if cfg.pkb == 1 else pb // 2, qs // 2)
                if key_ not in bursts:
                    pbs = [pb] if cfg.pkb == 1 else [pb // 2 * 2, pb // 2 * 2 + 1]
                    qq = [q for q in slots if q // 2 == qs // 2 and q != 4]
                    tx, rw = [], []
                    for p_ in pbs:
                        for q in qq:
                            for r in range(0, 8, 2):
                                v2 = R("v", O(q, 2 * p_) + r, 2); rp = (vRI + q) & ~1; hi = (vRI + q) & 1
                                tx.append(f"v_pk_mul_f32 {v2}, {v2}, v[{rp}:{rp+1}] op_sel:[0,{hi}] op_sel_hi:[1,{hi}]"); rw.append(v2)
                    bi = I("\n    ".join(tx), "valu", rd=rw + [f"v{vRI+q}" for q in qq], wr=rw, cost=20 + 4 * len(tx))
                    bursts[key_] = add(bi, after=[(PVm[T, 2 * p_ + e_, q], 8) for p_ in pbs for e_ in range(2) for q in qq] + [(ri[q], 1) for q in qq],
                                       dead=[over(2 * pbs[0], q) for q in qq] + [endins], tag="ep", prio=kw["prio"])
                ms = [bursts[key_]] * 4
            for r in range(0 if ms else 4):
                v = f"v{O(qs, b) + r}"
                if tl and cfg.tpk:
                    if r % 2: ms.append(ms[-1]); continue
                    v2 = R("v", O(qs, b) + r, 2); rp = (vRI + qs) & ~1; hi = (vRI + qs) & 1
                    ms.append(add(valu(f"v_pk_mul_f32 {v2}, {v2}, v[{rp}:{rp+1}] op_sel:[0,{hi}] op_sel_hi:[1,{hi}]", [v2, f"v[{rp}:{rp+1}]"], [v2]),
                                  after=[(PVm[T, b, qs], 8), (PVm[T, 7, act(T)[-1]], 0), (ri[qs], 1)], **kw))
                    continue
                ms.append(add(valu(f"v_mul_f32 {v}, {v}, v{vRI+qs}", [v, f"v{vRI+qs}"], [v]), after=[(PVm[T, b, qs], 8), (ri[qs], 1)], **kw))
            for h in range(2):
                d = f"v{w + 2*e + h}"; a_, b_ = f"v{O(qs, b) + 2*h}", f"v{O(qs, b) + 2*h + 1}"
                aft = [(ms[2*h].ins, 0), (ms[2*h+1].ins, 0)] + wa + ([(cv[-1].ins, 0)] if (inp and cv) else [])
                cv.append(add(valu(f"v_cvt_pk_bf16_f32 {d}, {a_}, {b_}", [a_, b_], [d]), after=aft, **kw))
        kw = dict(dead=[over(2 * pb, qs) if inp else endins, endins], tag="ep", prio=-300 + 8 * k)
        sw = []
        for h in range(0 if cfg.noswap else 2):
            x, y = f"v{w + h}", f"v{w + 2 + h}"
            sw.append(add(valu(f"v_permlane16_swap_b32 {x}, {y}", [x, y], [x, y], "perm"), after=[(cv[h].ins, 2), (cv[2 + h].ins, 2)], **kw))
        if tl:
            u_ = k // 2; bf_ = u_ % 2
            wi = I(f"ds_write_b128 v{tW[pb % 2]}, {R('v', w, 4)} offset:{bf_ * 2048}", "dsw", rd=[f"v{tW[pb % 2]}", R("v", w, 4)], cost=26)
            tws.append(add(wi, after=[(z.ins, 0) for z in cv] + [(tready, 0), (BARm[max(t for t in BARm if isinstance(t, int))], 0)] + [(z, 0) for z in trd.get(u_ - 2, [])], **kw).ins)
            if k % 2 == 0: continue
            for x_ in tail_stores[-2:]: x_.after += [(z, 0) for z in tws[-2:]]; x_.prio = -400 + u_
            for j in range(2):
                d = R("v", RB[bf_][j], 4)
                ri_ = I(f"ds_read_b128 {d}, v{tR} offset:{bf_ * 2048 + j * 1024}", "dsr", rd=[f"v{tR}"], wr=[d])
                aft = [(z, 0) for z in tws[-2:]] + ([(tst[u_ - 2, j], 2)] if u_ >= 2 else [(PVm[47, 7, j], 0), (SMm[47, 0], 0)])
                rit = add(ri_, after=aft, **kw); trd.setdefault(u_, []).append(ri_)
                st = I(f"buffer_store_dwordx4 {d}, v{tO}, s[{sO}:{sO+3}], s{sOr+qs} offen offset:{j * 2048 + (pb // 2) * 128}{ofl}", "vst",
                       rd=[d, f"v{tO}", f"s{sOr+qs}", f"s[{sO}:{sO+3}]"])
                st.fast = True; st.block = True; tst[u_, j] = st
                sit = add(st, after=[(ri_, 0)], **kw)
                rit.prio = -500 + u_
                if cfg.fin2:
                    sit.dead = list(sit.dead) + [VCm[cfg.vck]]
                elif cfg.nvc:
                    rit.dabs = (PVm[T, 3, act(T)[-1]], cfg.tx0 + cfg.txstep * u_ * 2)
                    sit.dabs = (PVm[T, 3, act(T)[-1]], cfg.tx0 + cfg.txstep * (u_ * 2 + j + 1))
                tail_stores.append(sit)
            continue
        st = I(f"buffer_store_dwordx4 {R('v', w, 4)}, v{vOA}, s[{sO}:{sO+3}], s{sOr+qs} offen offset:{64*pb}{ofl}", "vst",
               rd=[R("v", w, 4), f"v{vOA}", f"s{sOr+qs}", f"s[{sO}:{sO+3}]"])
        sts.append((add(st, after=[(z.ins, 0) for z in (sw or cv)], **kw), w, inp, pb, qs))
        if not inp:
            pool.append((w, [(st, 2)])); unit_free[base, w] = [(st, 2)]
            for t in range(T + 1, T + 8):
                for it in pwriters.get((t, w), []): it.after.append((st, 2))

    if T == 15 and DL:
        rank = {P(14, 2): 0, P(14, 3): 1, P(15, 2): 4, P(15, 3): 5}
        def key(x):
            it, w, inp, pb, qs = x
            if not inp: return rank.get(w, 100)
            return 200 + pb if qs == 4 else (2 if pb == 0 else 4 + 2 * pb) + qs - 2
        srt = sorted(sts, key=key)
        if cfg.pairst:
            out_ = []
            for x in srt:
                if x not in out_: out_ += sorted([y for y in sts if y[4] == x[4] and y[3] // 2 == x[3] // 2], key=lambda y: y[3])
            srt = out_
        sq = qjit_b + [x[0] for x in srt]
        for k, it in enumerate(sq):
            it.dabs = (firstm[16], cfg.tq0 + cfg.tqstep * min(k, 8) + cfg.tstep * max(k - 8, 0)); it.prio = -1000 + k
    elif not endins.text.startswith("; end"):
        f_ = T >= TFIN[0] - 1
        if cfg.stE and not f_:
            for k, x in enumerate(sts): x[0].nb = (PVm[T, 1, act(T)[-1]], cfg.stE + cfg.tstep * k)
        for k, x in enumerate(sts): x[0].dabs = (PVm[T, 1, act(T)[-1]], (cfg.stF0 if f_ else cfg.st0) + (cfg.stFstep if f_ else cfg.tstep) * (k | 1 if cfg.pairst else k))
        if cfg.lateA and not f_:
            for k, x in enumerate(sts):
                if slots[0] == 0 and k < 3: continue
                o_ = (cfg.lateA + cfg.tstep * (k - 3)) if slots[0] == 0 else (cfg.lateB + cfg.tstep * k)
                x[0].nb = (PVm[T, 1, act(T)[-1]], o_); x[0].dabs = (PVm[T, 1, act(T)[-1]], o_ + 10)
    else:
        for k, x in enumerate(sts): x[0].dabs = (PVm[T, 1, act(T)[-1]], cfg.tl0 + cfg.tlstep * (k | 1 if cfg.pairst else k))

    if cfg.pairst:
        for x in sts:
            if x[3] % 2 == 0:
                y = [z for z in sts if z[4] == x[4] and z[3] == x[3] + 1][0]
                x[0].after += list(y[0].after); y[0].after.append((x[0].ins, 0)); glue[id(x[0].ins)] = y[0]
tail_stores = []

class Sched:
    def __init__(self, stream):
        self.stream = stream
        self.pos = {id(x): k for k, x in enumerate(stream)}
        self.over = 0
        self.cyc = 0; self.ta = 0; self.log = []
    def run(self, bb, its, fixed_after, marks=None, endins=None, post=None):
        stream, pos = self.stream, self.pos
        idx = {id(m): j for j, m in enumerate(bb)}
        for mid, lst in fixed_after.items():
            if mid in idx:
                for f in lst: idx[id(f)] = idx[mid]
        for j, lst in (marks or {}).items():
            for f in lst: idx[id(f)] = j
        for j, lst in (post or {}).items():
            for f in lst: idx[id(f)] = j
        if endins is not None: idx[id(endins)] = len(bb)
        waiting, act, bydead = {}, [], {}
        byins = {id(it.ins): it for it in its if not it.placed}
        lbm = {}
        def lb(it):
            if id(it) not in lbm:
                v = 0
                for a, _ in it.after:
                    if id(a) in pos: continue
                    if id(a) in idx: v = max(v, idx[id(a)] + 1)
                    elif id(a) in byins: v = max(v, lb(byins[id(a)]))
                lbm[id(it)] = v
            return lbm[id(it)]
        sys.setrecursionlimit(100000)
        for it in its:
            if it.placed: continue
            d = min([idx[id(x)] for x in it.dead if x is not None and id(x) in idx] or [1 << 30])
            if it.dabs and id(it.dabs[0]) in idx: d = min(d, max(idx[id(it.dabs[0])] + it.dabs[1], lb(it) + 1))
            if it.doff: d = max(d - it.doff, min(d, lb(it) + 1))
            it.early = d + it.prio
            it.soft = d - (cfg.dsmargin if it.ins.kind in LGKM else -(1 << 20))
            if it.pace and id(it.pace[0]) in idx and d < (1 << 29):
                o_ = idx[id(it.pace[0])]
                it.soft = int(o_ + it.pace[1] * (d - cfg.wmargin - o_)); it.early = it.soft + 4
            bydead.setdefault(d, []).append(it)
            w = {id(a) for a, _ in it.after if id(a) not in pos}
            nw[id(it)] = len(w)
            for a in w: waiting.setdefault(a, []).append(it)
            if not w: act.append(it)
        st = {"budget": 8, "first": True, "valu": False, "mem": False}
        def emit(x):
            pos[id(x)] = len(stream); stream.append(x)
            for it in waiting.pop(id(x), []):
                nw[id(it)] -= 1
                if nw[id(it)] == 0: act.append(it)
        def ready(it):
            n = len(stream)
            return all(n - pos[id(a)] - 1 >= dist for a, dist in it.after)
        def place(it):
            if it.ins.block and it.ins.kind == "dsr":
                while True:
                    a = cands(lambda x: not x.ins.block and x.ins.kind in VALU + LGKM)
                    if not a: break
                    place(a[0])
            c = it.ins.cost; kd = it.ins.kind
            if kd == "salu" and st["first"]: c -= 4
            if kd in LGKM + VM and st["valu"]: c += 8
            elif kd in LGKM + VM and st["mem"]: c += 4
            if kd in LGKM + VM: st["mem"] = True
            if kd in VALU: st["valu"] = True
            act.remove(it); it.placed = True
            if kd in VM:
                now = self.cyc + 8 + (8 - st["budget"])
                self.ta = (max(self.ta, now) if now < self.ta + 1 and it.tag != "ld" else now) + (cfg.ta_fast if (kd == "dma" or it.ins.fast) else cfg.ta_slow)
            emit(it.ins); st["budget"] -= c; st["first"] = False
            g_ = glue.get(id(it.ins))
            if g_ is not None and not g_.placed: place(g_)
        def cands(pred):
            return sorted([it for it in act if pred(it) and ready(it)], key=lambda x: (x.early, x.seq))
        def force(limit):
            while True:
                due = [it for d in list(bydead) if d <= limit for it in bydead[d] if not it.placed]
                for d in [d for d in bydead if d <= limit]:
                    bydead[d] = [it for it in bydead[d] if not it.placed]
                    if not bydead[d]: del bydead[d]
                if not due: return
                stack = list(due); seen = set(); need = []
                while stack:
                    it = stack.pop()
                    if id(it) in seen: continue
                    seen.add(id(it)); need.append(it)
                    for a_, _ in it.after:
                        o = byins.get(id(a_))
                        if o is not None and not o.placed: stack.append(o)
                av = [it for it in need if nw[id(it)] == 0]
                if not av:
                    raise RuntimeError("deadlock: " + "; ".join(it.ins.text + " AFTER " + str([a for a, _ in it.after if id(a) not in pos]) for it in need[:6]))
                rs = [it for it in av if ready(it)]
                if not rs:
                    rs = cands(lambda x: x.ins.kind in VALU)[:1] or av
                rs.sort(key=lambda x: (0 if (x.ins.kind in LGKM + VM and not st["valu"]) else 1, x.early, x.seq))
                place(rs[0])
        if id(bb[0]) not in pos: force(0)
        for k, m in enumerate(bb):
            for f in (marks or {}).get(k, []): emit(f)
            if id(m) not in pos: emit(m)
            st.update(budget=8, first=True, valu=False, mem=False)
            for f in (post or {}).get(k, []):
                emit(f); st["first"] = False
            for f in fixed_after.get(id(m), []):
                emit(f); st["first"] = False
                if cfg.emptybar: st["budget"] = 0
            c = cands(lambda x: x.ins.kind == "salu")
            if c and st["first"] and k + 1 < len(bb) and not getattr(cfg, "nosalu", False): place(c[0])
            vmok = lambda x: x.ins.kind in VM and (x.nb is None or idx.get(id(x.nb[0]), -1000) + x.nb[1] <= k)
            vm = cands(vmok) if (self.ta <= self.cyc and m.pref != "T") else []
            urgent = cands(lambda x: x.soft <= (k - 2 if vm else k + 1))
            if st["budget"] <= 0: urgent = []
            if urgent: place(min(urgent, key=lambda x: (x.soft, x.seq)))
            tr = cands(lambda x: x.ins.kind == "trans")
            if m.pref == "T" and tr and st["budget"] >= (4 if urgent else 8):
                place(tr[0])
            else:
                if not urgent and st["budget"] >= 4:
                    if not vm and self.ta <= self.cyc: vm = cands(vmok)
                    mem = vm or cands(lambda x: x.ins.kind in LGKM)
                    if mem and not vm:
                        rd_ = [x for x in mem if x.ins.kind == "dsr"]; wr_ = [x for x in mem if x.ins.kind == "dsw"]
                        if cands(lambda x: x.ins.kind in ("valu", "perm")): mem = rd_
                        elif wr_ and not (rd_ and rd_[0].soft <= k + 3): mem = wr_
                    if mem: place(mem[0])
                while st["budget"] >= 4:
                    a = cands(lambda x: (x.ins.kind in ("valu", "perm") and x.ins.cost <= 8) or (x.ins.kind == "trans" and st["budget"] >= 8))
                    if not a: break
                    place(a[0])
            force(k + 1)
            if st["budget"] < 0: self.over -= st["budget"]
            self.cyc += max(16, 16 - st["budget"])
            self.log.append(self.cyc)
        if endins is not None: force(1 << 29)
nw = {}

sVC = 49
sTSB = 60
def stamp(k, cyc=False, mode=1):
    if cfg.stamps != mode: return []
    r = sTSB + 2 * k
    return [I(f"s_mem{'time' if cyc else 'realtime'} s[{r}:{r+1}]", "salu", wr=[f"s[{r}:{r+1}]"])]

def V(text, rd, wr, kind="valu"): return I(text, kind, rd=rd, wr=wr)
def prologue():
    o = []
    o.append(I("s_cmp_ge_u32 s2, 256\n    s_cbranch_scc1 L_end", "br"))
    o += stamp(0) + stamp(1, True) + stamp(0, False, 4) + stamp(1, True, 4) + stamp(0, False, 5)
    if cfg.spin: o.append(salu("s_memrealtime s[98:99]"))
    o.append(salu("s_load_dwordx8 s[52:59], s[0:1], 0"))
    if cfg.vc1: o.append(salu("s_load_dwordx2 s[6:7], s[0:1], 32"))
    l, t, u, g = "v1", "v2", "v3", "v4"
    o += [V(f"v_lshrrev_b32 {t}, 6, v0", ["v0"], [t]),
          V(f"v_and_b32 {l}, 63, v0", ["v0"], [l]),
          V(f"v_readfirstlane_b32 s{sW}, {t}", [t], [f"s{sW}"]),
          V(f"v_lshrrev_b32 {g}, 4, {l}", [l], [g]),
          V(f"v_and_b32 {t}, 15, {l}", [l], [t]),
          V(f"v_lshlrev_b32 {t}, 8, {t}", [t], [t]),
          V(f"v_mul_u32_u24 {u}, {GST}, {g}", [g], [u]),
          V(f"v_add_u32 v{vQA}, {t}, {u}", [t, u], [f"v{vQA}"]),
          ]
    if cfg.noswap:
        if vOA != vQA: o += [V(f"v_lshl_add_u32 v{vOA}, {g}, 4, {t}", [g, t], [f"v{vOA}"])]
        o += [
              V(f"v_and_b32 {u}, 1, {g}", [g], [u]),
              V(f"v_lshlrev_b32 {u}, 2, {u}", [u], [u]),
              V(f"v_xor_b32 {u}, {u}, {l}", [u, l], [u]),
              V(f"v_and_b32 {u}, 7, {u}", [u], [u]),
              V(f"v_lshrrev_b32 {t}, 3, {l}", [l], [t]),
              V(f"v_lshlrev_b32 {t}, 8, {t}", [t], [t]),
              V(f"v_lshl_add_u32 v{vVD}, {u}, 4, {t}", [u, t], [f"v{vVD}"])]
    else:
        o += [
          V(f"v_and_b32 {u}, 1, {g}", [g], [u]),
          V(f"v_lshl_add_u32 {t}, {u}, 5, {t}", [u, t], [t]),
          V(f"v_lshrrev_b32 {u}, 1, {g}", [g], [u]),
          V(f"v_lshl_add_u32 v{vOA}, {u}, 4, {t}", [u, t], [f"v{vOA}"]),
          V(f"v_bfe_u32 {t}, {l}, 1, 2", [l], [t]),
          V(f"v_xor_b32 {t}, {t}, {g}", [t, g], [t]),
          V(f"v_lshlrev_b32 {t}, 5, {t}", [t], [t]),
          V(f"v_lshrrev_b32 {u}, 3, {l}", [l], [u]),
          V(f"v_lshl_add_u32 {t}, {u}, 8, {t}", [u, t], [t]),
          V(f"v_and_b32 {u}, 1, {l}", [l], [u]),
          V(f"v_lshl_add_u32 v{vVD}, {u}, 4, {t}", [u, t], [f"v{vVD}"]),
          ]
    if cfg.qstage:
        o += [V(f"v_and_b32 {t}, 15, {l}", [l], [t]),
              V(f"v_xor_b32 {u}, {t}, {g}", [t, g], [u]),
              V(f"v_lshlrev_b32 {u}, 4, {u}", [u], [u]),
              V(f"v_lshl_add_u32 v{vQD}, {g}, 8, {u}", [g, u], [f"v{vQD}"])]
        o += [V(f"v_xor_b32 v{vQD+j}, {64*j}, v{vQD}", [f"v{vQD}"], [f"v{vQD+j}"]) for j in range(1, 4)]
        o += [salu(f"s_mul_i32 s{sQS}, s{sW}, 20480", [f"s{sW}"], [f"s{sQS}"]), salu(f"s_add_u32 s{sQS}, s{sQS}, {QSTG}")]
        stage2 = [V(f"v_and_b32 {t}, 15, {l}", [l], [t]),
              V(f"v_mul_u32_u24 {u}, {GST // 16}, {g}", [g], [u]),
              V(f"v_xor_b32 {u}, {u}, {t}", [u, t], [u]),
              V(f"v_lshlrev_b32 {u}, 4, {u}", [u], [u]),
              V(f"v_lshl_add_u32 {u}, {t}, 8, {u}", [t, u], [u])]
        stage2 += [V(f"v_xor_b32 v{vQR+k}, {f's{sX[k]}' if cfg.ownk else off(k)}, {u}", [u], [f"v{vQR+k}"]) for k in range(4)]
        stage2 += [V(f"v_add_u32 v{vQR+k}, s{sQS}, v{vQR+k}", [f"v{vQR+k}"], [f"v{vQR+k}"]) for k in range(4)]
    o += [salu(f"s_mul_i32 s{sT0}, s2, {HEADQ}", [], [f"s{sT0}"]),
          salu(f"s_lshl_b32 s{sT1}, s2, 17", [], [f"s{sT1}"]),
          salu(f"s_lshl_b32 s{sM0}, s{sW}, 10", [f"s{sW}"], [f"s{sM0}"]),
          salu(f"s_lshl_b32 s{sVo}, s{sW}, 11", [f"s{sW}"], [f"s{sVo}"]),
          salu(f"s_lshr_b32 s{sKo}, s{sW}, 1", [f"s{sW}"], [f"s{sKo}"]),
          salu(f"s_lshl_b32 s{sKo}, s{sKo}, 12"),
          salu(f"s_and_b32 s{sT2}, s{sW}, 1"),
          salu(f"s_lshl_b32 s{sT2}, s{sT2}, 7"),
          salu(f"s_add_u32 s{sKo}, s{sKo}, s{sT2}"),
          salu(f"s_lshl_b32 s{sOr}, s{sW}, 14"),
          salu(f"s_add_u32 s{sOr+1}, s{sOr}, 4096"),
          salu(f"s_add_u32 s{sOr+2}, s{sOr}, 8192"),
          salu(f"s_add_u32 s{sOr+3}, s{sOr}, 12288"),
          salu(f"s_lshl_b32 s{sOr+4}, s{sW}, 12"),
          salu(f"s_add_u32 s{sOr+4}, s{sOr+4}, {1280*256}"),
          ]
    o += [salu(f"s_mov_b32 s{sQn+k}, s{sOr+k}") for k in range(5)]
    if cfg.ownk:
        if cfg.dmap == "A": o += [salu(f"s_lshl_b32 s{sX[0]}, s{sW}, 6")]
        else: o += [salu(f"s_mul_i32 s{sX[0]}, s{sW}, 0x50"), salu(f"s_and_b32 s{sX[0]}, s{sX[0]}, 0x90")]
        o += [salu(f"s_xor_b32 s{sX[c]}, s{sX[0]}, {off(c)}") for c in range(1, 4)]
    o.append(I("s_waitcnt lgkmcnt(0)", "wait"))
    for srd, p, so, size in ((sK, 54, sT1, HEADK), (sQ, 52, sT0, HEADQ), (sV, 56, sT1, HEADK), (sO, 58, sT0, HEADQ)):
        o += [salu(f"s_add_u32 s{srd}, s{p}, s{so}"), salu(f"s_addc_u32 s{srd+1}, s{p+1}, 0"),
              salu(f"s_mov_b32 s{srd+2}, {size}"), salu(f"s_mov_b32 s{srd+3}, 0x20000")]
    kloads[0] = kload_ins(0); kloads[1] = kload_ins(1)
    k1 = [salu(f"s_add_u32 s{sKo}, s{sKo}, 8192")] + kloads[1]
    if cfg.qstage:
        o += kloads[0] + q0load(0) + q0load(1) + k1
        later = [[], q0load(2), q0load(3)]
    else:
        o += kloads[0] + qload_ins(0) + qload_ins(1)[:2]
        later = [qload_ins(1)[2:] + k1, qload_ins(2), qload_ins(3)]
    if cfg.codepf:
        o.append(I(f"; pull this kernel's code into L2 ahead of the instruction fetch (2 KB per workgroup, value unused)\n    s_getpc_b64 s[50:51]\nL_pf:\n    s_lshr_b32 s{sT2}, s2, 3\n    s_lshl_b32 s{sT2}, s{sT2}, 11", "salu"))
        o.append(V(f"v_lshl_add_u32 v5, {l}, 5, s{sT2}", [l], ["v5"]))
        o.append(V("v_min_u32 v5, L_end - L_pf, v5", ["v5"], ["v5"]))
        x = I(f"global_load_dword v{vDUM}, v5, s[50:51]", "vld", rd=["v5"], wr=[f"v{vDUM}"]); x.nowait = True
        o.append(x)
    if cfg.touch:
        o.append(V(f"v_lshlrev_b32 v7, {cfg.touch}, {l}", [l], ["v7"]))
        for srd in [sQ] + ([sO] if cfg.toucho else []) + ([sK, sV] if cfg.touchkv else []):
            x = I(f"buffer_load_dword v{vDUM}, v7, s[{srd}:{srd+3}], 0 offen nt", "vld", rd=["v7"], wr=[f"v{vDUM}"]); x.nowait = True
            o.append(x)
    if cfg.vc1:
        assert not cfg.extra and cfg.dbg < 0
        o += [salu(f"s_mov_b32 s{sWS}, s6"), salu(f"s_mov_b32 s{sWS+1}, s7"), salu(f"s_mov_b32 s{sWS+2}, 256"), salu(f"s_mov_b32 s{sWS+3}, 0x20000")]
    o += [salu(f"s_mov_b32 s{sC}, {CSCALE:#x}"), salu(f"s_mov_b32 s{sMASK}, 0xffff0000"),
          salu(f"s_mov_b32 s{sFAIL}, {0x1fffff if cfg.force_fallback else 0}"), salu(f"s_mov_b32 s{sCNT}, {4 + cfg.extra if cfg.extra else 3}"), *([salu("s_mov_b32 s3, 0x10000"), salu("s_mov_b32 s4, 0")] if cfg.extra else []),
          salu(f"s_lshl_b32 s{sVC}, s{sW}, 15"), salu(f"s_sub_u32 s{sVC}, s{sVC}, {RING}"),
          salu(f"s_lshl_b32 s{sT2}, s{sW}, 11")]
    if cfg.klin:
        assert cfg.ownk
        o += [V(f"v_lshlrev_b32 {u}, 1, {g}", [g], [u]),
              V(f"v_xor_b32 {t}, {u}, {l}", [u, l], [t]),
              V(f"v_lshlrev_b32 {t}, 4, {t}", [t], [t]),
              V(f"v_add_u32 v{vKR}, {RING}, {t}", [t], [f"v{vKR}"]),
              V(f"v_bfe_u32 {t}, v{vVD}, {4 if cfg.dmap == 'A' else 5}, 2", [f"v{vVD}"], [t]),
              V(f"v_lshlrev_b32 {u}, 1, {t}", [t], [u]),
              V(f"v_lshrrev_b32 v5, 3, {l}", [l], ["v5"]),
              V(f"v_xor_b32 {u}, {u}, v5", [u, "v5"], [u]),
              V(f"v_lshl_add_u32 {u}, {t}, 4, {u}", [t, u], [u]),
              V(f"v_bfe_u32 {t}, v{vVD}, {6 if cfg.dmap == 'A' else 4}, 1", [f"v{vVD}"], [t]),
              V(f"v_lshl_add_u32 {u}, {t}, 6, {u}", [t, u], [u]),
              V(f"v_lshlrev_b32 {u}, 4, {u}", [u], [u]),
              V(f"v_add_u32 {u}, {RING}, {u}", [u], [u]),
              V(f"v_add_u32 v{vKW}, s{sT2}, {u}", [u], [f"v{vKW}"])]
    else:
      o += [V(f"v_lshlrev_b32 {t}, 4, {l}", [l], [t]),
          V(f"v_add_u32 v{vKR}, {RING}, {t}", [t], [f"v{vKR}"]),
          V(f"v_add_u32 v{vKW}, s{sT2}, v{vKR}", [f"v{vKR}"], [f"v{vKW}"])]
    if cfg.ownk:
        o += [V(f"v_add_u32 v{vKC[0]}, s{sM0}, v{vKR}", [f"v{vKR}"], [f"v{vKC[0]}"])]
        o += [V(f"v_xor_b32 v{vKC[c]}, {1024*c}, v{vKC[0]}", [f"v{vKC[0]}"], [f"v{vKC[c]}"]) for c in range(1, 4)]
        o += [salu(f"s_sub_u32 s{sVC}, s{sVC}, s{sM0}")]
        if cfg.vc1: o += [V(f"v_and_b32 v{vPF}, 0xffff, v{vKC[0]}", [f"v{vKC[0]}"], [f"v{vPF}"])]
    o += [
          V(f"v_lshrrev_b32 {t}, 2, {l}", [l], [t]),
          V(f"v_lshlrev_b32 {t}, 7, {t}", [t], [t]),
          V(f"v_and_b32 {u}, 3, {l}", [l], [u])]
    assert cfg.noswap
    o += [V(f"v_lshl_add_u32 {t}, {u}, 4, {t}", [u, t], [t]),
          V(f"v_bfe_u32 {u}, {l}, 3, 1", [l], [u]),
          V(f"v_lshl_add_u32 v{vVA}, {u}, 6, {t}", [u, t], [f"v{vVA}"]),
          V(f"v_xor_b32 v{vVA+1}, 64, v{vVA}", [f"v{vVA}"], [f"v{vVA+1}"]),
          *([V("v_mov_b32 v179, 0", [], ["v179"])] if cfg.tlds else []),
          V(f"v_mov_b32 v{vHI}, 0", [], [f"v{vHI}"]), V(f"v_mov_b32 v{vLO}, -1", [], [f"v{vLO}"])]
    o += [V(f"v_lshrrev_b32 {t}, 4, {l}", [l], [t]),
          V(f"v_xor_b32 {t}, {t}, {l}", [t, l], [t]),
          V(f"v_bfe_u32 {t}, {t}, 1, 1", [t], [t]),
          V(f"v_add_u32 {t}, -1, {t}", [t], [t]),
          V(f"v_and_b32 {t}, 0x3f803f80, {t}", [t], [t])]
    o += [V(f"v_accvgpr_write_b32 a{aSA+k}, {t}", [t], [f"a{aSA+k}"]) for k in range(4)]
    o += [V(f"v_and_b32 {u}, 1, {l}", [l], [u]),
          V(f"v_mul_u32_u24 {u}, 0xaaaa, {u}", [u], [u]),
          V(f"v_add_u32 v{vIDX}, 0x4444, {u}", [u], [f"v{vIDX}"])]
    o += [V(f"v_accvgpr_write_b32 a{aL+k}, 0", [], [f"a{aL+k}"]) for k in range(12)]
    if cfg.qstage: o += stage2
    o += later[0]
    if cfg.pads: o.append(I("; BODY_ALIGN", "label"))
    for T in range(1):
        st = vKt[T]; ws = []
        for r in range(8):
            a = f"a{ST(T, 0) + r}"; x = f"v{st + r}"; tt = f"v{vKx[r % 2]}"
            if not cfg.kvg: o += [V(f"v_accvgpr_read_b32 {x}, {a}", [a], [x])]
            o += [V(f"v_lshlrev_b32 {tt}, 16, {x}", [x], [tt]),
                  V(f"v_and_b32 {x}, s{sMASK}, {x}", [x], [x]),
                  V(f"v_mul_f32 {tt}, s{sC}, {tt}", [tt], [tt]),
                  V(f"v_mul_f32 {x}, s{sC}, {x}", [x], [x]),
                  V(f"v_cvt_pk_bf16_f32 {x}, {tt}, {x}", [tt, x], [x])]
        for e in range(2):
            w = I(f"ds_write_b128 v{vKW}, {R('v', st + 4*e, 4)} offset:{T*8192 + e*KWE}", "dsw", rd=[f"v{vKW}", R('v', st + 4*e, 4)])
            o.append(w); ws += [Item(w)] * 4
        rb = []
        for e in range(0 if cfg.ownk else 2):
            d = R("a", ST(T, e), 4)
            x = I(f"ds_read_b128 {d}, v{vKW} offset:{T*8192 + e*1024}", "dsr", rd=[f"v{vKW}"], wr=[d])
            o.append(x); rb.append(Item(x))
        kwrites[T] = ws; readback[T] = rb
    o += later[1]
    pro_tail.extend(later[2] + [salu(f"s_add_u32 s{sQn+k}, s{sOr+k}, 65536") for k in range(4)])
    return o
pro_tail = []

def guard_text():
    a = L(2)
    t = []
    t.append("    ; ---- V magnitude guard: sums of squares must stay below 2^60; shared across the 4 waves")
    if cfg.stamps == 5: t.append("    s_memrealtime s[%d:%d]" % (sTSB + 18, sTSB + 19))
    t.append("    s_nop 7\n    s_nop 3")
    t += [f"    v_accvgpr_read_b32 v{k}, a{a+k}" for k in range(4)]
    t += [f"    v_and_b32 v{k}, 0x7fffffff, v{k}" for k in range(4)]
    t += ["    v_max_u32 v0, v0, v1", "    v_max3_u32 v0, v0, v2, v3",
          "    v_cmp_le_u32 vcc, 0x5d800000, v0",
          "    s_nop 1",
          "    s_cmp_lg_u64 vcc, 0",
          f"    s_cselect_b32 s{sT0}, 1, 0",
          f"    v_cmp_lt_u32 vcc, 0x6f800000, v{vHI}",
          f"    v_cmp_gt_u32 s[6:7], 1.0, v{vLO}",
          "    s_nop 1",
          "    s_or_b64 vcc, vcc, s[6:7]",
          f"    s_cselect_b32 s{sFAIL}, 0x1fffff, s{sFAIL}",
          f"    s_lshl_b32 s{sT1}, s{sW}, 2",
          f"    s_add_u32 s{sT1}, s{sT1}, {FLAGS}",
          f"    v_mov_b32 v0, s{sT0}", f"    v_mov_b32 v1, s{sT1}", f"    v_mov_b32 v2, {FLAGS}",
          "    ds_write_b32 v1, v0", "    s_waitcnt lgkmcnt(0)", "    s_barrier",
          "    ds_read_b128 v[4:7], v2", "    s_waitcnt lgkmcnt(0)",
          "    v_or3_b32 v4, v4, v5, v6", "    v_or_b32 v4, v4, v7", "    s_nop 0",
          f"    v_readfirstlane_b32 s{sT0}, v4", "    s_nop 1",
          f"    s_cmp_lg_u32 s{sT0}, 0",
          f"    s_cselect_b32 s{sFAIL}, 0x1fffff, s{sFAIL}"]
    return t
sVF = 49
def guard2_text():
    a = L(2)
    t = ["; ---- guard: |v| < 2^30 (sums of squares of this wave's quarter of V below 2^60) and every row sum in [1, 2^96]"]
    t += [f"v_accvgpr_read_b32 v{k}, a{a+k}" for k in range(4)]
    t += [f"v_and_b32 v{k}, 0x7fffffff, v{k}" for k in range(4)]
    t += ["v_max_u32 v0, v0, v1", "v_max3_u32 v0, v0, v2, v3", "v_cmp_le_u32 vcc, 0x5d800000, v0",
          f"v_cmp_gt_u32 s[6:7], 1.0, v{vLO}", "s_nop 0", "s_cmp_lg_u64 vcc, 0", f"s_cselect_b32 s{sVF}, 1, 0",
          f"v_cmp_lt_u32 vcc, 0x6f800000, v{vHI}", "s_nop 1", "s_or_b64 vcc, vcc, s[6:7]", f"s_cselect_b32 s{sFAIL}, 1, s{sFAIL}",
          f"s_or_b32 s{sFAIL}, s{sFAIL}, s{sVF}"]
    return t
FLAGS = RING + 3 * 8192 if cfg.tlds else RING
def finale():
    if cfg.stamps == 5 and cfg.vc1: pre_ = ["    s_memrealtime s[%d:%d]" % (sTSB + 18, sTSB + 19)]
    else: pre_ = []
    t = pre_ if (cfg.tlds or cfg.vc1 or cfg.fin2) else guard_text()
    if cfg.fin2: t = t + ["    s_waitcnt vmcnt(0)", "    s_barrier    ; every wave's stores are done: a slow-path rewrite cannot be overtaken"]
    if cfg.stamps in (1, 4, 5):
        t += ["    s_memrealtime s[%d:%d]" % (sTSB + 22, sTSB + 23), "    s_waitcnt vmcnt(0)",
              "    s_memrealtime s[%d:%d]" % (sTSB + 24, sTSB + 25), "    s_memtime s[%d:%d]" % (sTSB + 26, sTSB + 27)]
    if cfg.stamps:
        t += ["    s_load_dwordx2 s[4:5], s[0:1], 40", "    s_waitcnt lgkmcnt(0)",
              "    s_mov_b32 s6, 0x100000", "    s_mov_b32 s7, 0x20000",
              f"    s_lshl_b32 s{sT0}, s2, 2", f"    s_add_u32 s{sT0}, s{sT0}, s{sW}", f"    s_lshl_b32 s{sT0}, s{sT0}, 7",
              "    v_mov_b32 v1, 0"]
        for k in range(21):
            t += [f"    v_mov_b32 v0, s{sTSB + 2*k}", f"    buffer_store_dword v0, v1, s[4:7], s{sT0} offen offset:{4*k}"]
    if cfg.spin:
        t += ["L_spin:", "    s_memrealtime s[100:101]", "    s_waitcnt lgkmcnt(0)", "    s_sub_u32 s100, s100, s98", f"    s_cmp_lt_u32 s100, {cfg.spin * 100}", "    s_cbranch_scc1 L_spin"]
    if cfg.dbg >= 0:
        t += [f"    s_cmp_lg_u32 s2, {cfg.dbg}", "    s_cbranch_scc1 L_nodbg", f"    s_cmp_lg_u32 s{sW}, 0", "    s_cbranch_scc1 L_nodbg",
              "    s_load_dwordx2 s[4:5], s[0:1], 32", "    s_waitcnt lgkmcnt(0)", "    s_mov_b32 s6, 256", "    s_mov_b32 s7, 0x20000"]
        lst = [(2, 0), (3, 0), (4, 0), (5, 0), (9, 0), (8, 0), (7, 0), (6, 0), (11, 0), (12, 0), (10, 1), (13, 10)]
        for k, (a_, b_) in enumerate(lst):
            t += [f"    s_sub_u32 s{sT1}, s{sTSB + 2*a_}, s{sTSB + 2*b_}", f"    v_mov_b32 v0, s{sT1}", f"    buffer_store_dword v0, v1, s[4:7], 0 offen offset:{4*k}"]
        t += ["L_nodbg:"]
    t += [f"    s_cmp_eq_u32 s{sFAIL}, 0", "    s_cbranch_scc1 L_end"]
    sJ, sRow, sKb, sVt = sT0, sT1, sT2, sKo
    f = ["    ; ---- slow path: rows whose unshifted exponent sum left the safe range are redone with the true max",
         "    s_waitcnt vmcnt(0)"]
    f += [f"    v_and_b32 v{vVA+c}, 0xffff, v{vVA+c}" for c in range(NVA)]
    if cfg.fin2:
        sW_ = 3
        f += [f"    s_cmp_lg_u32 s{sVF}, 0", f"    s_cselect_b32 s{sW_}, 0, s{sW}", f"    s_cselect_b32 s4, 3, s{sW}", "L_fb_wave:", f"    s_mov_b32 s{sFAIL}, 0x1fffff",
              f"    s_lshl_b32 s{sOr+4}, s{sW_}, 12", f"    s_add_u32 s{sOr+4}, s{sOr+4}, {1280*256}"]
    else: sW_ = sW
    f += ["L_fb_next:",
          f"    s_ff1_i32_b32 s{sJ}, s{sFAIL}", f"    s_bitset0_b32 s{sFAIL}, s{sJ}",
          f"    s_cmp_gt_u32 s{sJ}, 4", f"    s_cselect_b32 s{sKb}, 1, 0", f"    s_sub_u32 s{sKb}, s{sJ}, s{sKb}",
          f"    s_lshr_b32 s{sRow}, s{sKb}, 2", f"    s_lshl_b32 s{sRow}, s{sRow}, 16",
          f"    s_and_b32 s{sKb}, s{sKb}, 3", f"    s_lshl_b32 s{sKb}, s{sKb}, 12", f"    s_add_u32 s{sRow}, s{sRow}, s{sKb}",
          f"    s_lshl_b32 s{sKb}, s{sW_}, 14", f"    s_add_u32 s{sRow}, s{sRow}, s{sKb}",
          f"    s_cmp_eq_u32 s{sJ}, 4", f"    s_cselect_b32 s{sRow}, s{sOr+4}, s{sRow}"]
    f += [f"    buffer_load_dwordx4 v[{4*s}:{4*s+3}], v{vQA}, s[{sQ}:{sQ+3}], s{sRow} offen offset:{off(s)}" for s in range(4)]
    def qk(dst, extra):
        r = [f"    buffer_load_dwordx4 v[{20+4*s}:{23+4*s}], v{vQA}, s[{sK}:{sK+3}], s{sKb} offen offset:{off(s)}" for s in range(4)]
        r += ["    s_waitcnt vmcnt(0)"]
        r += [f"    v_mfma_f32_16x16x32_bf16 v[{dst}:{dst+3}], v[{20+4*s}:{23+4*s}], v[{4*s}:{4*s+3}], {'0' if s == 0 else f'v[{dst}:{dst+3}]'}" for s in range(4)]
        r += [f"    s_add_u32 s{sKb}, s{sKb}, 4096", "    s_nop 9"]
        return r
    f += ["    v_mov_b32 v16, 0xff800000", f"    s_mov_b32 s{sKb}, 0", "L_fb_max:"]
    f += qk(36, None)
    f += ["    v_max3_f32 v16, v16, v36, v37", "    v_max3_f32 v16, v16, v38, v39",
          f"    s_cmp_lt_u32 s{sKb}, {HEADK}", "    s_cbranch_scc1 L_fb_max"]
    def xlane(reg, tmp, op):
        return [f"    v_mov_b32 v{tmp}, v{reg}", "    s_nop 1", f"    v_permlane16_swap_b32 v{reg}, v{tmp}", "    s_nop 1", f"    {op} v{reg}, v{reg}, v{tmp}",
                f"    v_mov_b32 v{tmp}, v{reg}", "    s_nop 1", f"    v_permlane32_swap_b32 v{reg}, v{tmp}", "    s_nop 1", f"    {op} v{reg}, v{reg}, v{tmp}"]
    f += xlane(16, 17, "v_max_f32")
    f += [f"    v_mul_f32 v17, s{sC}, v16", "    v_mov_b32 v18, 0"]
    f += [f"    v_mov_b32 v{64+k}, 0" for k in range(32)]
    f += [f"    s_mov_b32 s{sKb}, 0", f"    s_mov_b32 s{sVt}, 0", "L_fb_pv:"]
    f += qk(36, None) + qk(40, None)
    f += [f"    v_fma_f32 v{36+k}, v{36+k}, s{sC}, -v17" for k in range(8)]
    f += [f"    v_exp_f32 v{36+k}, v{36+k}" for k in range(8)]
    f += ["    s_nop 0"] + [f"    v_add_f32 v18, v18, v{36+k}" for k in range(8)]
    f += [f"    v_cvt_pk_bf16_f32 v{44+k}, v{36+2*k}, v{37+2*k}" for k in range(4)]
    f += [f"    v_add_u32 v{52+c}, s{sVt}, v{vVA+c}" for c in range(NVA)]
    for b in range(8):
        f += [f"    ds_read_b64_tr_b16 v[{48+2*blk}:{49+2*blk}], v{52+vsel(b)[0]} offset:{(b>>2)*32768 + blk*2048 + vsel(b)[2]}" for blk in range(2)]
        f += ["    s_waitcnt lgkmcnt(0)", f"    v_mfma_f32_16x16x32_bf16 v[{64+4*b}:{67+4*b}], v[48:51], v[44:47], v[{64+4*b}:{67+4*b}]"]
    f += [f"    s_add_u32 s{sVt}, s{sVt}, 4096", f"    s_cmp_eq_u32 s{sVt}, 32768", f"    s_cselect_b32 s{sVt}, 65536, s{sVt}",
          f"    s_cmp_lt_u32 s{sKb}, {HEADK}", "    s_cbranch_scc1 L_fb_pv"]
    f += xlane(18, 17, "v_add_f32")
    f += ["    v_rcp_f32 v18, v18", "    s_nop 7"]
    f += [f"    v_mul_f32 v{64+k}, v{64+k}, v18" for k in range(32)]
    f += [f"    v_cvt_pk_bf16_f32 v{96+k}, v{64+2*k}, v{65+2*k}" for k in range(16)]
    f += ["    s_nop 1"]
    for pb in range(0 if cfg.noswap else 4):
        f += [f"    v_permlane16_swap_b32 v{96+4*pb+h}, v{98+4*pb+h}" for h in range(2)]
    f += [f"    buffer_store_dwordx4 v[{96+4*pb}:{99+4*pb}], v{vOA}, s[{sO}:{sO+3}], s{sRow} offen offset:{64*pb}" for pb in range(4)]
    f += ["    s_waitcnt vmcnt(0)", f"    s_cmp_lg_u32 s{sFAIL}, 0", "    s_cbranch_scc1 L_fb_next"]
    if cfg.fin2: f += [f"    s_add_u32 s{sW_}, s{sW_}, 1", f"    s_cmp_le_u32 s{sW_}, s4", "    s_cbranch_scc1 L_fb_wave"]
    return t + f

def simulate(linear, waits, nops, marks):
    t = 0; pipe = 0; q = []; lastdone = 0; out = []; t0 = 0; first = False; valu = False; mem = False; cur = None; stall = 0; stl = []; idle = [0]
    for ins in linear:
        if ins.kind == "label": continue
        w = waits.get(id(ins))
        if w:
            if w[1] is not None and len(q) > w[1]:
                need = q[len(q) - w[1] - 1]
                if need > t: stall += need - t; t = need
            t += 0 if first else 4; first = False
        t += 4 * nops.get(id(ins), 0)
        if id(ins) in marks:
            out.append(t - t0); stl.append(stall); t0 = t; stall = 0; idle.append(0)
        k = ins.kind
        if k in MAT:
            idle[-1] += max(0, pipe - t)
            t = max(t, pipe); pipe = t + 16; t += 8; first = True; valu = False; mem = False
        else:
            c = ins.cost
            if k in ("salu", "bar", "br", "wait") and first: c -= 4
            if k in LGKM + VM and valu: c += 8
            elif k in LGKM + VM and mem: c += 4
            if k in LGKM + VM: mem = True
            if k in LGKM:
                svc = 32 if k == "dsw" else (16 if ("b128" in ins.text or cfg.noswap) else 8)
                lastdone = max(lastdone + svc, t + cfg.ldslat); q.append(lastdone)
            if k in VALU: valu = True
            t += c; first = False
    out.append(t - t0); stl.append(stall)
    sys.stderr.write(f"sim cycles/period: {out[1:]}\nsim lgkm stalls : {stl[1:]}\nunused issue cyc: {idle[1:]}\n")

def gen_items(T):
    curT[0] = T
    items_softmax(T); items_kread(T)
    if T % 8 == 0 and T > 0: items_vtoggle(T)
    items_vread(T)
def bar_needs(T):
    pub = (T + 1,) if T < 15 else (T + 1, T + 2)
    nd = [x.ins for t in pub for x in kwrites[t]]
    if T in vdmas and T > 0 and f"V{T}" not in BARm: nd += vdmas[T]
    done = (T - 1, T) if T >= 13 else (T - 1,) if T >= 1 else ()
    nd += [kreads[t, blk, s_].ins for t in done for blk in range(2) for s_ in range(4) if (t, blk, s_) in kreads]
    nd += [x.ins for t in done if t in readback for x in readback[t]]
    BARm[T].needs = nd
def build():
    C = cfg.CUT; NT = 48 + C + 2
    for T in range(NT + 2): mk_step(T)
    BARm[-1] = I("s_barrier", "bar"); BARm["V0"] = I("s_barrier", "bar")
    for T in range(1, cfg.nvbar): BARm[f"V{T}"] = I("s_barrier", "bar")
    for T in list(range(0, 15, 2)) + list(range(1, NT + 2, 2)): BARm[T] = I("s_barrier", "bar")
    pro = prologue()
    pro.append(BARm[-1]); pro += stamp(2) + pro_tail
    bb, start = [], {}
    for T in range(NT):
        start[T] = len(bb); bb += backbone_period(T)
    backbone_period(NT)
    fixed = {id(bar_spot(T)): [BARm[T]] for T in range(NT) if T in BARm}
    fixed[id(QKm[1, 0, 0, 0] if cfg.sm0 else QKm[0, 1, 2, 3])] = [BARm["V0"]]
    for T in range(1, cfg.nvbar): fixed[id(start_of(T + 1))] = [BARm[f"V{T}"]]
    for T, txt in ((1, "first sweep over the keys: 5 row blocks per wave, K is scaled and V streamed in on the way"),
                   (16, "row blocks 0,1 start their second sweep; 2,3 follow three key steps later")):
        notes[T] = I("    ; ---- " + txt, "label")
    labL = I("L_loop:", "label"); labL2 = I("; second instance", "label"); labL3 = I("; third instance", "label")
    def chk():
        pre = ""
        if cfg.stamps == 1:
            r = sTSB + 12
            pre = "".join(f"s_mov_b64 s[{r+2*k+2}:{r+2*k+3}], s[{r+2*k}:{r+2*k+1}]\n    " for k in (2, 1, 0)) + f"s_memrealtime s[{r}:{r+1}]\n    "
        if not cfg.extra: return I(pre + f"s_sub_u32 s{sCNT}, s{sCNT}, 1\n    s_cbranch_scc1 L_tail", "br", cost=8)
        return I(pre + f"s_sub_u32 s{sCNT}, s{sCNT}, 1\n    s_cmp_eq_u32 s{sCNT}, 0\n    s_cbranch_scc1 L_tail", "br")
    chk1, chk2 = chk(), chk()
    brL, brL2 = I("s_branch L_loop", "br"), I("s_branch L_loop", "br")
    ctl = {start[16 + C]: stamp(5) + [labL], start[32]: [chk1], start[32 + C]: [brL, labL2], start[48]: [chk2], start[48 + C]: [brL2, labL3]}
    marks, post = ({}, ctl) if cfg.shadowbr else (ctl, {})
    marks[start[12]] = [I("L_p12:", "label")]
    for T in notes: firstm[T].text = notes[T].text.strip() + "\n    " + firstm[T].text
    if cfg.stamps == 1:
        marks[start[1]] = stamp(3); marks[start[16]] = stamp(4) + stamp(10, True)
    if cfg.stamps == 2:
        for T in range(16 + C, 48 + C): marks.setdefault(start[T], []).append(stamp((T - C) % 16, True, 2)[0])
    if cfg.stamps == 3:
        for T in range(0, min(20, 16 + C - cfg.st3)): marks.setdefault(start[T + cfg.st3], []).insert(0, stamp(T, False, 3)[0])
        pro.insert(1, stamp(20, False, 3)[0])
    for T in range(16): items_loads(T)
    for T in range(NT):
        gen_items(T)
        if T % 16 == C and T > 16: items_rowadv(T)
        if cfg.repf:
            if T == cfg.pf1: items_codepf(T, "L_p12")
            if T == cfg.pf2: items_codepf(T, "L_loop")
            if T > 32 and T % 16 == cfg.pf3: items_codepf(T, "L_tail")
    for base in (16, 32): items_qpf(base)
    for T in range(1, NT + 2): curT[0] = T; items_kwrite(T)
    curT[0] = -50; items_qjit()
    if cfg.vc1: items_vcheck()
    for T in range(NT):
        if any(islast(T, q) for q in act(T)):
            curT[0] = T + 1000
            items_epilogue(T, ctl[start[(T + 1) // 16 * 16 + C]][0])
    BARm[-1].needs = [x.ins for x in kwrites[0]]
    BARm["V0"].needs = list(vdmas[0])
    for T in range(1, cfg.nvbar): BARm[f"V{T}"].needs = list(vdmas[T])
    for T in range(NT):
        if T in BARm: bar_needs(T)
    stream = list(pro)
    Sched(stream).run(bb, items, fixed, marks, post=post)
    p = {id(x): k for k, x in enumerate(stream)}
    ref = {(it.T[0] - 16, it.T[1]): p[id(it.ins)] < p[id(brL)] for it in items if it.placed and 32 + C - 2 <= it.T[0] < 48}
    cut = ctl[start[16 + C]][0]
    for it in items:
        r = ref.get(it.T)
        if r is True: it.dead = list(it.dead) + [cut]
        elif r is False: it.after.append((labL, 0))
        it.placed = False
    stream = list(pro)
    sc = Sched(stream)
    sc.run(bb, items, fixed, marks, post=post)
    p = {id(x): k for k, x in enumerate(stream)}
    iL, iC1, iBr, iL2, iC2, iBr2 = (p[id(x)] for x in (labL, chk1, brL, labL2, chk2, brL2))
    segP = stream[:iL]; segL = stream[iL:iC1 + 1]; segB = stream[iC1 + 1:iBr + 1]
    one, two = stream[iL:iBr + 1], stream[iL2:iBr2 + 1]
    a = [x.text for x in one[1:]]; b = [x.text for x in two[1:]]
    if a != b:
        for k, (x, y) in enumerate(zip(a, b)):
            if x != y: sys.stderr.write(f"loop mismatch at {k}: {x} | {y}\n"); break
        raise SystemExit("loop instances differ")
    mp = {id(y): x for x, y in zip(one, two)}
    for x, y in zip(one, two): x.needs = x.needs + [mp.get(id(z), z) for z in y.needs]
    def keyed(its):
        cnt, out = {}, {}
        for it in its:
            k = (it.T[0], it.ins.text); cnt[k] = cnt.get(k, 0) + 1; out[k + (cnt[k],)] = it
        return out
    old = {k: it for k, it in keyed(items).items() if it.placed and p[id(it.ins)] <= iC2}
    TFIN[0] = 48; TE = 48 + DL
    for d in (QKm, PVm, SMm):
        for k in [k for k in d if k[0] >= 48 and (k[0] >= TE or (k[2] if d is not SMm else 2 * k[1]) not in (2, 3))]: del d[k]
    for T in range(TE - 1 if TE % 2 == 0 else TE, NT + 2): BARm.pop(T, None)
    for j in range(32):
        buf = Kf(0, 0) + 4 * (j % 8)
        VCm[j] = mfma(L(2), buf, buf, j == 0, dk="a")
    tbb = []
    for T in range(48, TE + 1): tbb += backbone_period(T)
    items.clear(); pwriters.clear(); lprev.clear()
    for k in [k for k in unit_free if k[0] == 32]: del unit_free[k]
    for T in range(46, TE): gen_items(T)
    for T in range(48, TE): curT[0] = T; items_kwrite(T)
    endT = I("; end of tail", "label"); endA = I("; group A stored", "label")
    curT[0] = 5000
    if DL: items_epilogue(47, tbb[len(tbb) - cfg.nvc - 20])
    items_epilogue(TE - 1, endT)
    if not cfg.vc1: va = add(valu(f"v_add_u32 v{vVD}, s{sVC}, v{vKR}", [f"v{vKR}"], [f"v{vVD}"]), dead=[PVm[TE - 1, 2, act(TE - 1)[0]]], tag="vc")
    for j in range(cfg.nvc):
        d = R("a", Kf(0, 0) + 4 * (j % 8), 4)
        lastu = [(QKm[TE - 1, (j % 8) // 4, act(TE - 1)[-1], j % 4], 0)] if j < 8 else [(VCm[j - 8], 0)]
        add(I(f"ds_read_b128 {d}, v{vVD} offset:{j*1024}", "dsr", rd=[f"v{vVD}"], wr=[d]), after=[(va.ins, 0)] + lastu, dead=[VCm[j]], tag="vc", prio=-6)
    if cfg.vc1:
        fl = P(1, 4)
        x = I(f"buffer_load_ubyte v{fl}, off, s[{sWS}:{sWS+3}], s2 sc1", "vld", wr=[f"v{fl}"], cost=8); x.fast = True
        add(x, dead=[firstm[49]], tag="vc")
        gx = I("\n    ".join([f"v_cmp_ne_u32 s[6:7], 0, v{fl}",
                               f"v_cmp_lt_u32 vcc, 0x6f800000, v{vHI}",
                               f"v_cmp_gt_u32 s[50:51], 1.0, v{vLO}    ; some l < 1", "s_nop 1",
                               "s_or_b64 vcc, vcc, s[6:7]", "s_or_b64 vcc, vcc, s[50:51]", f"s_cselect_b32 s{sFAIL}, 0x1fffff, s{sFAIL}"]),
               "br", rd=[f"v{vHI}", f"v{vLO}", f"v{fl}"], wr=["vcc", f"v{fl}"], cost=40)
        gx.block = True
        add(gx, after=[(x, 0)] + [(z, 0) for z in lprev] + [x_.after[0] for x_ in tail_stores[-2:]], dead=[endT], tag="ep", prio=5000)
        for x in tail_stores[-2:]: x.after.append((gx, 0))
    elif cfg.fin2:
        gx = I("\n    ".join(guard2_text()), "valu", rd=[f"v{vHI}", f"v{vLO}", R("a", L(2), 4)], wr=["v[0:3]", "vcc"], cost=72)
        add(gx, after=[(VCm[cfg.nvc - 1], 12)] + [(z, 0) for z in lprev], dead=[endT], tag="ep", prio=-5000)
    elif cfg.tlds:
        assert TE % 4 == 3
        gx = I("\n".join(guard_text()).strip(), "br", rd=[f"v{vHI}", f"v{vLO}", R("a", L(2), 4)], wr=["v[0:7]", "vcc"], cost=200)
        git = add(gx, after=[(VCm[cfg.nvc - 1], 0)] + [(z, 0) for z in lprev], dead=[endT], tag="ep", prio=-5000)
        for x in tail_stores[cfg.exk:]:
            x.after.append((gx, 0)); x.dabs = None
    alias = {}
    for k, it in keyed(items).items():
        if k in old: alias[id(it.ins)] = old[k].ins; it.ins = old[k].ins; it.placed = True
    tfixed = {id(bar_spot(T)): [BARm[T]] for T in range(48, TE) if T in BARm}
    known = {id(x) for x in stream[:iC2 + 1]} | {id(x) for x in tbb} | {id(it.ins) for it in items} | {id(x) for l_ in tfixed.values() for x in l_}
    for it in items: it.after = [(alias.get(id(a_), a_), d_) for a_, d_ in it.after if id(alias.get(id(a_), a_)) in known]
    for T in range(48, TE):
        if T in BARm: bar_needs(T)
    tstream = stream[:iC2 + 1]
    labT = I("L_tail:", "label")
    tm = {0: [labT] + stamp(2, False, 5)}
    if cfg.stamps == 5:
        for T in range(49, TE + 1): tm[tbb.index(firstm[T])] = stamp(T - 46, False, 5)
        if cfg.nvc: tm[tbb.index(VCm[0])] = stamp(8, False, 5)
    if cfg.wbl2:
        pos_ = {1: tbb.index(firstm[TE]), 2: 1, 3: tbb.index(firstm[TE - 1])}[cfg.wbl2]
        tm.setdefault(pos_, []).append(I(f"s_lshl_b32 s{sT1}, s2, 2\n    s_add_u32 s{sT1}, s{sT1}, s{sW}\n    s_and_b32 s{sT1}, s{sT1}, {cfg.wbmask}\n    s_cbranch_scc1 L_nowb\n    buffer_wbl2 sc1\nL_nowb:", "br"))
    tp = {0: tm.pop(0)} if cfg.shadowbr else {}
    Sched(tstream).run(tbb, items, tfixed, tm, endins=endT, post=tp)
    segT = tstream[iC2 + 1:]
    assert segT[0] is labT, segT[:3]
    assert all(it.placed for it in items)
    for x in segT: x.needs = [mp.get(id(z), z) for z in x.needs]
    linear = segP + segL + segB + segL + segB + segL + segT
    waits = insert_waits(linear)
    nops = fix_hazards(linear, waits)
    sys.stderr.write(f"instr: P {len(segP)} L {len(segL)} B {len(segB)} T {len(segT)}; waits {len(waits)}; nops {sum(nops.values())} at {len(nops)} sites\n")
    mk = {id(stream[p[id(bb[start[T]])]]): T for T in range(32 + C)}
    mk.update({id(firstm[T]): T for T in range(48, TE + 1)})
    simulate(segP + segL + segB + segL + segT, waits, nops, mk)
    loop = render(segL, waits, nops) + render(segB, waits, nops)
    if cfg.drop:
        pat = {"v": "ds_read_b64_tr", "k": "ds_read_b128", "w": "ds_write", "s": "v_smfmac", "e": "v_exp", "c": r"v_cvt_pk_bf16_f32 v1[6-9]\d, v20", "q": "v_accvgpr_(write_b32 a\d+, v|mov)",
               "m": "v_mul_f32", "t": "buffer_store", "l": "buffer_load", "b": "s_barrier"}
        for ch in cfg.drop: loop = [x for x in loop if not re.search(pat[ch], x)]
    sk = []
    if cfg.skew:
        sk = [f"    s_mov_b32 s{sT1}, s{sW}" if cfg.skew > 0 else f"    s_lshr_b32 s{sT1}, s{sW}, 1", "L_sk:", f"    s_cmp_eq_u32 s{sT1}, 0", "    s_cbranch_scc1 L_sk2", f"    s_sub_u32 s{sT1}, s{sT1}, 1", f"    s_nop {abs(cfg.skew)}", "    s_branch L_sk", "L_sk2:"]
    body = render(segP, waits, nops) + sk + loop + render(segT, waits, nops)
    return body

HEADER = open("standalone__mha_softmax__near_ridge.s.ref").read().split("; Override launch")[0]
def add_pads(lines):
    import subprocess
    lines = [x for l in lines for x in l.split("\n")]
    src = '.amdgcn_target "amdgcn-amd-amdhsa--gfx950"\n.text\n' + "\n".join(lines) + "\nL_end:\n s_endpgm\n"
    open("_pads.s", "w").write(src)
    subprocess.run(["clang", "-x", "assembler", "-target", "amdgcn-amd-amdhsa", "-mcpu=gfx950", "-c", "_pads.s", "-o", "_pads.o"], check=True)
    d = subprocess.run(["llvm-objdump", "-d", "--mcpu=gfx950", "_pads.o"], capture_output=True, text=True).stdout
    sizes = [4 * len(m.group(1).split()) for m in re.finditer(r"// [0-9A-F]+: ((?:[0-9A-F]{8} ?)+)", d)]
    isins = lambda x: x.startswith("    ") and not x.strip().startswith(";")
    assert len(sizes) == sum(map(isins, lines)) + 1
    warm = ["    s_mov_b64 vcc, -1"] + [y for w in range(3) for y in (f"    s_cmp_eq_u32 s{sW}, {w}", f"    s_cbranch_scc1 L_pad{w}")] + ["    s_branch L_pad3", "L_back:", "    s_mov_b64 vcc, 0"]
    out, k, addr, want, npad, prev_m, stop = [], 0, None, [], 0, False, False
    for x in lines:
        if x.strip() == "; BODY_ALIGN":
            out += ["    s_mov_b64 vcc, 0", "    s_branch L_body", ".p2align 12", "L_body:"]; addr = 0
            want = [p * 4096 + j * cfg.padoff for p in range(1, 32) for j in range(cfg.pads)]
            continue
        if x.strip() == "; WARM_UP":
            out += ["    ; instruction prefetch: while waiting for the next rows, hop once over the never-taken branches L_pad*",
                    "    ; (first line of every 4 KB page of this code; otherwise each first page crossing stalls the fetch)"]
            out += warm; addr += 4 * (len(warm) - 1); k += 0; continue
        if "V magnitude guard" in x or "slow path" in x or "---- guard" in x: stop = True
        if isins(x):
            if addr is not None and not stop and addr >= want[0] and ((prev_m and not x.strip().startswith("s_")) or addr >= want[0] + 48):
                out += [f"L_pad{npad}:", f"    s_cbranch_vccnz PADNEXT{npad}"]; npad += 1; addr += 4; want.pop(0)
            if addr is not None: addr += sizes[k]
            k += 1
            prev_m = x.strip().startswith(("v_mfma", "v_smfmac"))
        out.append(x)
    assert npad >= 4
    return [re.sub(r"PADNEXT(\d+)", lambda m: f"L_pad{int(m.group(1)) + 4}" if int(m.group(1)) + 4 < npad else "L_back", x) for x in out]

def main():
    body = build()
    if cfg.pads:
        fin = finale()
        body = add_pads(body + fin)
        globals()["finale"] = lambda: []
    out = HEADER + f"""; Design (hand-written via my own scheduling script):
;  * one workgroup (4 waves, 512 registers each) per (batch, head); v_mfma_f32_16x16x32_bf16 throughout.
;  * V stays in LDS (128 KB).  K is scaled once by log2(e)/sqrt(D), kept in registers (a quarter per wave) and
;    re-published to the other waves through a 32 KB LDS ring.  Every wave walks 16-row blocks of Q
;    (5 at a time in the first sweep over the keys, then 4); S^T = K Q^T, P = exp2(S^T), O^T += V^T P,
;    the row sums come from a sparse MFMA with a ones pattern.
;  * softmax guard: the fast path uses shift 0 instead of the row maximum (softmax is shift invariant).  It is
;    only kept when every row sum lies in [1, 2^96] and every |v| < 2^30 (checked at run time, NaN/inf included),
;    which rules out overflow and any loss from underflow; otherwise the rows concerned are recomputed in the
;    slow path at the end, which subtracts the true row maximum.
; @launch grid=(256,1,1) block=(256,1,1) lds=163840
.amdgcn_target "amdgcn-amd-amdhsa--gfx950"
.text
.globl {KNAME}
.p2align 8
.type {KNAME},@function
{KNAME}:
""" + "\n".join(body) + "\n" + "\n".join(finale()) + f"""
L_end:
    s_endpgm
.section .rodata,"a"
.p2align 6
.amdhsa_kernel {KNAME}
  .amdhsa_next_free_vgpr 512
  .amdhsa_next_free_sgpr 102
  .amdhsa_accum_offset 256
  .amdhsa_group_segment_fixed_size 0
  .amdhsa_kernarg_size 48
  .amdhsa_user_sgpr_count 2
  .amdhsa_user_sgpr_kernarg_segment_ptr 1
  .amdhsa_system_sgpr_workgroup_id_x 1
.end_amdhsa_kernel
"""
    open(sys.argv[1], "w").write(out)
main()
```

```python
import sys, struct, math, re
from core import *

class Cfg:
    dmap = "A"
    LK = 3
    LV = 2
    delta = 3
    noswap = True
    busy64 = True
    oflagsFA = "="
    oflagsFB = "="
    wr64 = False
    CUT = 10
    leadT = 11
    ta_slow = 250
    ta_fast = 90
    v0first = True
    dsmargin = 7
    st3 = 0
    jitfirst = True
    tq0 = 2
    tstep = 16
    st0 = 60
    tqstep = 10
    ownk = True
    fin2 = False
    g2k = 6
    pkb = 0
    emptybar = False
    shadowbr = True
    splitq = True
    lateA = 0
    lateB = 0
    wmargin = 7
    ymargin = 0
    touch = 0
    toucho = False
    touchkv = False
    order = ""
    nvbar = 1
    pads = 1
    padoff = 128
    k2g = 1
    ksT = 0
    pairld = False
    vc1 = False
    tlds = False
    tpk = False
    tx0 = 8
    txstep = 6
    exk = 5
    nvc = 32
    kvg = True
    ksd = 0
    gs = "246789"
    klin = True
    stE = 50
    drop = ""
    skew = 0
    repf = False
    early0 = 2
    e2T = 11
    e0g = 3
    pf1 = 8
    pf2 = 23
    pf3 = 9
    wbl2 = 0
    wbmask = 0x3e3
    pairst = False
    grow = 0
    stF0 = 20
    stFstep = 12
    jitstep = 2
    qstage = True
    sm0 = True
    tl0 = 6
    tlstep = 5
    wrn = 2
    kdoff = 14
    kstep = 8
    ldslat = 110
    qpf0 = 8
    lead = 0
    qflags = " nt"
    oflags = ""
    kvflags = " nt"
    pfflags = " nt"
    pf_period = 11
    stamps = 0
    spin = 0
    extra = 0
    dbg = -1
    force_fallback = False
    vahead = 2
    codepf = True
cfg = Cfg()
for a in sys.argv[2:]:
    k, v = a.split("=", 1)
    old = getattr(cfg, k)
    setattr(cfg, k, (v == "1") if isinstance(old, bool) else type(old)(v.replace("+", " ")))

if cfg.vc1: cfg.nvc = 0
KNAME = "standalone__mha_softmax__near_ridge_kernel"
SQ, SK, D = 1312, 512, 128
HEADQ = SQ * D * 2
HEADK = SK * D * 2
RING = 131072
CSCALE = struct.unpack("<I", struct.pack("<f", math.log2(math.e) / math.sqrt(D)))[0]

vO, vP, vS, vVf = 0, 160, 200, 208
vVA = 224
vHI, vLO = 226, 227
vKR, vKW, vQA, vOA, vPF, vIDX, vVD = 228, 229, 230, 231, 232, 233, 234
if cfg.ownk:
    assert cfg.noswap and not cfg.repf
    vOA = vQA if cfg.dmap == "A" else 255
    vKC = [228, 229, 235, 231]; vKW = 254
sX = [28, 46, 47, 48]
vT = 235
vKt = [236, 244]; vKx = [252, 253]
vW = [236, 240, 244]
vRI = 248
vL0, vL1, vDUM = 253, 254, 255
if vOA == 255:
    assert not cfg.vc1
    vDUM = 6
aQ, aST, aKf, aL, aSA = 0, 80, 208, 240, 252
def O(qs, b): return vO + 32 * qs + 4 * b
def P(T, qs): return vP + 20 * (T % 2) + 4 * qs
def S(c): return vS + 4 * (c % 2)
def Vf(f): return vVf + 4 * (f % 4)
def Q(qs, s): return aQ + 16 * qs + 4 * s
def Kf(blk, s): return aKf + 16 * blk + 4 * s
def ST(j, e): return aST + 8 * (j % 16) + 4 * e
def KA(T, blk, s): return ST(T, blk) if (cfg.ownk and s == 0) else Kf(blk, s)
def L(p): return aL + 4 * p
sQ, sK, sV, sO = 8, 12, 16, 20
sW = 24; sC = 25; sMASK = 26; sFAIL = 27; sBIT = 28; sCNT = 29
sOr = 30
sQn = 35
sKo, sVo, sM0 = 40, 41, 42
sT0, sT1, sT2 = 43, 44, 45
sLO, sRNG = 46, 47
sTS = 48
def off(s): return 64 * s if cfg.dmap == "A" else 128 * (s >> 1) + 16 * (s & 1)
GST = 16 if cfg.dmap == "A" else 32

DL = cfg.delta
TFIN = [1 << 30]
def act(T):
    if T < 0: return []
    if T < 16: return [0, 1, 2, 3, 4]
    if T >= TFIN[0] + DL: return []
    if T >= TFIN[0]: return [2, 3]
    if T < 16 + DL: return [0, 1]
    if DL and T >= 32 and (T % 16 == 0 or T % 16 == DL - 1): return [2, 3, 0, 1]
    return [0, 1, 2, 3]
def n_of(T): return len(act(T))
def phase(qs): return DL if qs in (2, 3) else 0
def isfirst(T, qs): return T == 0 or (T >= 16 and T % 16 == phase(qs))
def islast(T, qs): return T == 15 or (T > 16 + DL and (T + 1) % 16 == phase(qs))
def nextstart(T, qs):
    return 16 + phase(qs) if T == 15 else T + 1

def mfma(d, a, b, zero, dk="v", ak="a", bk="a"):
    D_, A_, B_ = R(dk, d, 4), R(ak, a, 4), R(bk, b, 4)
    return I(f"v_mfma_f32_16x16x32_bf16 {D_}, {A_}, {B_}, {'0' if zero else D_}", "mfma",
             rd=[A_, B_] + ([] if zero else [D_]), wr=[D_], acc=not zero)
def valu(text, rd, wr, kind="valu"): return I(text, kind, rd=rd, wr=wr)
def salu(text, rd=(), wr=()): return I(text, "salu", rd=rd, wr=wr)

class Item:
    __slots__ = ("ins", "after", "dead", "prio", "early", "tag", "placed", "T", "seq", "soft", "doff", "pace", "dabs", "nb")
    def __init__(self, ins, after=(), dead=None, early=None, tag="", prio=0, doff=0, pace=None):
        self.doff = doff; self.pace = pace; self.dabs = None; self.nb = None
        self.ins = ins; self.after = list(after); self.dead = dead; self.early = early
        self.tag = tag; self.prio = prio; self.placed = False

QKm, PVm, SMm, BARm, VCm = {}, {}, {}, {}, {}
def chain(T, g):
    a = act(T)
    if T == 15: return (g % 2, a[g // 2])
    if T == 0 and cfg.sm0: return [(0, 0), (1, 0), (0, 1), (1, 1), (0, 2), (1, 2), (0, 3), (0, 4), (1, 3), (1, 4)][g]
    return (g // len(a), a[g % len(a)])
def mk_step(T):
    for g in range(2 * n_of(T)):
        blk, qs = chain(T, g)
        for s in range(4):
            QKm[T, blk, qs, s] = mfma(S(g), KA(T, blk, s), Q(qs, s), s == 0)
    for b in range(8):
        for qs in act(T):
            PVm[T, b, qs] = mfma(O(qs, b), Vf(b), P(T, qs), isfirst(T, qs), ak="v", bk="v")
    for p in pairs(T):
        d, b = R("a", L(p), 4), R("v", P(T, pair_lo(p)), 8)
        SMm[T, p] = I(f"v_smfmac_f32_16x16x64_bf16 {d}, {R('a', aSA, 4)}, {b}, v{vIDX}", "smf",
                      rd=[d, b, R("a", aSA, 4), f"v{vIDX}"], wr=[d], acc=True)
def pair_of(qs): return 2 if qs == 4 else qs // 2
def pairs(T):
    out = []
    for qs in act(T):
        if pair_of(qs) not in out: out.append(pair_of(qs))
    return out
def pair_lo(p): return 3 if p == 2 else 2 * p
def pvlist(T): return [PVm[T, b, qs] for b in range(8) for qs in act(T)]
firstm = {}
notes = {}
VC1 = {(T, dh): mfma(Kf(1, 0), Kf(0, 0), Kf(0, 0), T == 0 and dh == 0, dk="a") for T in range(16) for dh in range(2)}

def backbone_period(T):
    tail = n_of(T) == 0
    pv = pvlist(T - 2)[-4:] + (pvlist(T - 1) if tail else pvlist(T - 1)[:-4])
    sm = [SMm[T - 1, p] for p in pairs(T - 1)]
    out = []
    if tail:
        out += pv[:6] + sm + pv[6:] + [VCm[j] for j in range(cfg.nvc)]
        for k, m in enumerate(out): m.pref = "T" if (k < 4) else "D"
        firstm[T] = out[0]
        return out
    n = n_of(T); G = 2 * n
    lead = cfg.leadT if T == 16 else cfg.lead if (T > 16 and any(islast(T - 1, q) for q in act(T - 1))) else 0
    if lead:
        nl = 4 * lead
        head = pv[:nl]; pv = pv[nl:]
        if lead >= 2:
            head = head[:4] + [sm[0]] + head[4:8] + sm[1:] + head[8:]
            sm = []
        for k, m in enumerate(head): m.pref = "T" if k < 4 else "D"
        out += head
    if T == 1: cnt = [0] + [4] * (G - 1)
    elif len(pv) < 4 * G and not lead:
        r = len(pv) - 4; cnt = [min(4, len(pv))] + [r // (G - 1) + (1 if g < r % (G - 1) else 0) for g in range(G - 1)] if len(pv) >= 4 else [0] * G
    else:
        cnt = [len(pv) // G + (1 if g < len(pv) % G else 0) for g in range(G)]
    smpos = {}
    if sm:
        early = any(islast(T - 1, q) for q in act(T - 1)) and len(sm) > 1
        spots = [0 if early else 1, G // 2 + 1, G - 2]
        for m, g in zip(sm, spots): smpos.setdefault(min(g, G - 1), []).append(m)
    if cfg.vc1 and 1 <= T < 16:
        for dh in range(2):
            smpos.setdefault(6 + 2 * dh, []).append(VC1[T, dh])
            if T == 1: smpos.setdefault(2 + 2 * dh, []).append(VC1[0, dh])
    k = 0
    for g in range(G):
        blk, qs = chain(T, g)
        grp = [QKm[T, blk, qs, s] for s in range(4)] + pv[k:k + cnt[g]]
        k += cnt[g]
        L_ = len(grp)
        for j, m in enumerate(grp):
            m.pref = "T" if (L_ >= 8 and j % 2 == 0 and j < 8) or (L_ < 8 and j in {4: (0, 1, 2, 3), 5: (0, 1, 3, 4), 6: (0, 2, 3, 5), 7: (0, 2, 4, 6)}[L_]) else "D"
        out += grp
        for m in smpos.get(g, []):
            m.pref = "D"; out.append(m)
    firstm[T] = out[0]
    return out

items = []
glue = {}
curT = [-200]
ordn = {}
def add(ins, **kw):
    it = Item(ins, **kw); ordn[curT[0]] = ordn.get(curT[0], 0) + 1; it.T = (curT[0], ordn[curT[0]]); it.seq = len(items); items.append(it); return it

cvts = {}
def items_softmax(T):
    n = n_of(T)
    for g in range(2 * n):
        blk, qs = chain(T, g)
        last = QKm[T, blk, qs, 3]
        if g + 2 < 2 * n: nxt = QKm[(T,) + chain(T, g + 2) + (0,)]
        elif n_of(T + 1): nxt = QKm[(T + 1,) + chain(T + 1, g + 2 - 2 * n) + (0,)]
        else: nxt = None
        use = PVm[T, 0, qs]
        ng = QKm[(T,) + chain(T, g + 1) + (0,)] if g + 1 < 2 * n else firstm[T + 1]
        sms = [SMm[T, p] for p in pairs(T) if pair_lo(p) <= qs <= pair_lo(p) + 1]
        ex = []
        for r in range(4):
            v = f"v{S(g)+r}"
            ex.append(add(valu(f"v_exp_f32 {v}, {v}", [v], [v], "trans"), after=[(last, 8), (ng, 0)] + ([(ex[-1].ins, 0)] if ex else []),
                          dead=[nxt, use], tag="sm"))
        for h in range(2):
            d = f"v{P(T, qs) + 2*blk + h}"; a, b = f"v{S(g)+2*h}", f"v{S(g)+2*h+1}"
            aft = [(ex[2*h].ins, 1), (ex[2*h+1].ins, 1)]
            if qs in act(T - 2): aft.append((PVm[T - 2, 7, qs], 0))
            aft += [(SMm[T - 2, p], 0) for p in pairs(T - 2) if pair_lo(p) <= qs <= pair_lo(p) + 1]
            it = add(valu(f"v_cvt_pk_bf16_f32 {d}, {a}, {b}", [a, b], [d]), after=aft, dead=[nxt, use] + sms, tag="sm")
            pwriters.setdefault((T, P(T, qs)), []).append(it)
pwriters = {}

kreads = {}
def bar_pub(T):
    return BARm[T - 1] if T < 16 else BARm[(T // 2) * 2 - 1]
def items_kread(T):
    n = n_of(T)
    for blk in range(2):
        for s in range(4):
            if cfg.ownk and s == 0 and T >= 16: continue
            d = R("a", KA(T, blk, s), 4)
            if cfg.ownk: ins = I(f"ds_read_b128 {d}, v{vKC[s]} offset:{(T % 4) * 8192 + blk * 4096}", "dsr", rd=[f"v{vKC[s]}"], wr=[d])
            else: ins = I(f"ds_read_b128 {d}, v{vKR} offset:{(T % 4) * 8192 + (4*blk+s) * 1024}", "dsr", rd=[f"v{vKR}"], wr=[d])
            aft = [(bar_pub(T), 0)]
            if T >= 1 and not (cfg.ownk and s == 0): aft.append((QKm[T - 1, blk, act(T - 1)[-1], s], 0))
            dl = [QKm[T, blk, act(T)[0], 0]]
            if blk == 1 and T % 2 == 1 and T != 15 and T in BARm: dl.append(BARm[T])
            kreads[T, blk, s] = add(ins, after=aft, dead=dl, tag="qk", prio=-12, doff=cfg.ymargin if len(dl) > 1 else 0)
vreads = {}
vtog = {}
def vbar(T):
    if T == 0: return BARm["V0"]
    return BARm.get(f"V{T}", BARm[T])
def vsel(b):
    return ((b >> 1) & 1, b >> 2, 8 * (b & 1)) if cfg.noswap else (b & 3, b >> 2, 0)
NVA = 2 if cfg.noswap else 4
def items_vread(T):
    for b in range(8):
        f = 8 * T + b
        pT, pb = divmod(f - 4, 8)
        aft = []
        if f >= 4: aft.append((PVm[pT, pb, act(pT)[-1]], 0))
        va = cfg.vahead if n_of(T) > 2 else 3
        aT, ab = divmod(f - va - 1, 8)
        if f - va - 1 >= 0: aft.append((PVm[aT, ab, act(aT)[-1]], 0))
        if T < 16: aft.append((vbar(T), 0))
        c, dh, e8 = vsel(b)
        if T % 8 == 0 and T > 0 and dh == 0: aft.append((vtog[T, c].ins, 0))
        prev = None
        for blk in range(2):
            d = R("v", Vf(f) + 2 * blk, 2)
            ins = I(f"ds_read_b64_tr_b16 {d}, v{vVA+c} offset:{dh*32768 + (T % 8)*4096 + blk*2048 + e8}", "dsr",
                    rd=[f"v{vVA+c}"], wr=[d])
            vreads[T, b, blk] = add(ins, after=aft + ([(prev, 0)] if prev else []), dead=[PVm[T, b, act(T)[0]]], tag="v", prio=-12)
            prev = ins
def items_vtoggle(T):
    for c in range(NVA):
        v = f"v{vVA+c}"
        use = [b for b in range(8) if vsel(b)[0] == c]
        vtog[T, c] = add(valu(f"v_xor_b32 {v}, 0x10000, {v}", [v], [v]), after=[(vreads[T - 1, b, 1].ins, 0) for b in use],
                         dead=[PVm[T, use[0], act(T)[0]]], tag="v", prio=-24, doff=cfg.dsmargin + 4)

kwrites = {}
kloads = {}
def busy(T):
    return T < 26 or T >= TFIN[0] or (T % 16) in (2, 3, 4, 5, 6, 7, 8, 9)
KWE = 128 if cfg.klin else 1024
def items_kwrite(T):
    m = T // 2
    if T < 16: opn, cls = BARm[max(T - 3, -1)], BARm[T - 1]
    else: opn, cls = BARm[2 * m - 3], BARm[2 * m - 1]
    ws = []
    def wr(src, r, nreg, **kw):
        x = R(src[0], src[1] + r, nreg)
        ad, st_ = (vKC[0], 4096) if (cfg.ownk and T >= 16) else (vKW, KWE)
        return add(I(f"ds_write_b{32*nreg} v{ad}, {x} offset:{(T % 4)*8192 + (r//4)*st_ + (r % 4)*4}", "dsw", rd=[f"v{ad}", x],
                     cost={1: 8, 2: 12, 4: 26}[nreg]), tag="qk", **kw)
    nr = cfg.wrn
    if T < 16:
        st = vKt[T % 2]
        prev_w = kwrites.get(T - 2)
        done = []
        for r in range(8):
            a = f"a{ST(T, 0) + r}"; x = f"v{st + r}"; t = f"v{vKx[r % 2]}"
            do = (cfg.kdoff + (7 - r) * cfg.kstep) if T >= 2 else 2 + (7 - r)
            kw = dict(dead=[cls], tag="qk", doff=do + 2)
            aft = [(kloads[T][r // 4], 0)]
            if prev_w: aft.append((prev_w[r * len(prev_w) // 8].ins, 0))
            aft.append(((start_of(T - 1) if T <= cfg.ksT else mid_of(T - 2)) if T >= 3 else (QKm[0, 0, 4, 3] if cfg.k2g < 0 else QKm[1, 0, cfg.k2g, 0]) if T == 2 else QKm[0, 0, 1, 3], 0))
            if not cfg.kvg: aft = [(add(valu(f"v_accvgpr_read_b32 {x}, {a}", [a], [x]), after=aft, prio=-5, **kw).ins, 0)]
            i1 = add(valu(f"v_lshlrev_b32 {t}, 16, {x}", [x], [t]), after=aft + ([(chain_prev[r % 2], 0)] if chain_prev[r % 2] else []), prio=-4, **kw)
            i2 = add(valu(f"v_and_b32 {x}, s{sMASK}, {x}", [x, f"s{sMASK}"], [x]), after=[(i1.ins, 0)], prio=-3, **kw)
            i3 = add(valu(f"v_mul_f32 {t}, s{sC}, {t}", [t, f"s{sC}"], [t]), after=[(i1.ins, 0)], prio=-2, **kw)
            i4 = add(valu(f"v_mul_f32 {x}, s{sC}, {x}", [x, f"s{sC}"], [x]), after=[(i2.ins, 0)], prio=-1, **kw)
            i5 = add(valu(f"v_cvt_pk_bf16_f32 {x}, {t}, {x}", [t, x], [x]), after=[(i3.ins, 0), (i4.ins, 0)], prio=0, **kw)
            chain_prev[r % 2] = i5.ins; done.append(i5.ins)
            if r % nr == nr - 1:
                ws.append(wr(("v", st), r - nr + 1, nr, after=[(opn, 0)] + [(x_, 0) for x_ in done[-nr:]], dead=[cls], doff=max(do - 8, 1)))
        rb = []
        for e in range(0 if cfg.ownk else 2):
            d = R("a", ST(T, e), 4)
            ins = I(f"ds_read_b128 {d}, v{vKW} offset:{(T % 4)*8192 + e*1024}", "dsr", rd=[f"v{vKW}"], wr=[d])
            rb.append(add(ins, after=[(w_.ins, 0) for w_ in ws[e * len(ws) // 2:(e + 1) * len(ws) // 2]], dead=[BARm[T]], tag="qk", prio=0))
        readback[T] = rb
        if cfg.kvg:
            assert cfg.ownk and cfg.LK == 3
            for e, it in enumerate(kload_items.get(T + 2, [])): it.after += [(w_.ins, 0) for w_ in ws[e * len(ws) // 2:(e + 1) * len(ws) // 2]]
    else:
        nw_ = 8 // nr
        for k in range(nw_):
            ws.append(wr(("a", ST(T, 0)), k * nr, nr, after=[(opn, 0)] + ([(ws[-1].ins, 0)] if ws else ([(kwrites[T-1][-1].ins, 0)] if T % 2 else [])),
                         dead=[cls], pace=(opn, ((T % 2) * nw_ + k + 1) / (2.0 * nw_))))
    kwrites[T] = ws
chain_prev = [None, None]
readback = {}
def mid_of(T): return QKm[(T,) + chain(T, n_of(T)) + (0,)]
def bar_spot(T): return QKm[0, 0, 4, 3] if T == 0 else QKm[(T,) + chain(T, n_of(T) - 1) + (3,)]
def start_of(T): return QKm[(T,) + chain(T, 0) + (0,)]

def kload_ins(j):
    out = []
    for e in range(2):
        d = R("v", vKt[j % 2] + 4 * e, 4) if cfg.kvg else R("a", ST(j, e), 4)
        va, o_ = (vVD, 2048 * e) if cfg.klin else (vQA, off(1) * e)
        out.append(I(f"buffer_load_dwordx4 {d}, v{va}, s[{sK}:{sK+3}], s{sKo} offen offset:{o_}{cfg.kvflags}", "vld",
                     rd=[f"v{va}", f"s{sKo}", f"s[{sK}:{sK+3}]"], wr=[d]))
        out[-1].fast = cfg.klin
    return out
def vdma_ins(j):
    out = []
    for dh in range(2):
        m0 = (j >> 3) * 65536 + dh * (32768 - 128) + (j & 7) * 4096
        out.append((salu(f"s_add_u32 m0, s{sM0}, {m0}", [f"s{sM0}"], ["m0", "scc"]),
                    I(f"buffer_load_dwordx4 v{vVD}, s[{sV}:{sV+3}], s{sVo} offen offset:{128*dh}{cfg.kvflags} lds", "dma",
                      rd=[f"v{vVD}", f"s{sVo}", "m0", f"s[{sV}:{sV+3}]"])))
    return out
vdmas = {}
last_vm = [None]
def add_kload(j, after, dead):
    up = add(salu(f"s_add_u32 s{sKo}, s{sKo}, 8192", [f"s{sKo}"], [f"s{sKo}", "scc"]),
             after=after + ([(last_vm[0], 0)] if last_vm[0] else []), dead=dead, tag="ld", prio=-30)
    ins = kload_ins(j); kloads[j] = ins
    prev = up.ins
    for x in ins:
        kload_items.setdefault(j, []).append(add(x, after=[(prev, 0)], dead=dead, tag="ld", prio=-25)); prev = x
    last_vm[0] = prev
kload_items = {}
def add_vdma(j, after, dead):
    prev = last_vm[0]
    if j > 0:
        prev = add(salu(f"s_add_u32 s{sVo}, s{sVo}, 8192", [f"s{sVo}"], [f"s{sVo}", "scc"]),
                   after=after + ([(prev, 0)] if prev else []), dead=dead, tag="ld", prio=-30).ins
    vdmas[j] = []
    for sm0, dm in vdma_ins(j):
        add(sm0, after=after + [(prev, 0)], dead=dead, tag="ld", prio=-28)
        add(dm, after=[(sm0, 1)], dead=dead, tag="ld", prio=-25); prev = dm
        vdmas[j].append(dm)
    last_vm[0] = prev
def items_loads(T):
    if T == 0:
        def spot(g): return QKm[(0,) + chain(0, g) + (0,)], QKm[(0,) + chain(0, g) + (1,)]
        a, d = spot(0)
        prev = last_vm[0]
        for x in q0load(4):
            add(x, after=[(a, 0)] + ([(prev, 1 if x.kind == "dma" else 0)] if prev else []), dead=[d], tag="ld", prio=-50); prev = x
        last_vm[0] = prev
        gs = [int(c) for c in cfg.gs] if cfg.sm0 else [1, 2, 3, 4, 5, 7]
        kj, vj = 2, 0
        if cfg.order:
            for tok in cfg.order.split(","):
                a, d = spot(int(tok[2]))
                if tok[0] == "V": add_vdma(int(tok[1]), [(a, 0)], [d])
                elif tok[1] == "3": add_kload(3, [], [spot(9)[0]])
                else: add_kload(int(tok[1]), [(a, 0)], [d])
            kj, vj = 99, 99
        while kj <= cfg.LK or vj <= cfg.LV:
            a, d = spot(gs.pop(0) if len(gs) > 1 else gs[0])
            if cfg.v0first and vj <= cfg.LV: add_vdma(vj, [(a, 0)], [d]); vj += 1
            if kj <= cfg.LK and not (cfg.kvg and kj == 3): add_kload(kj, [(a, 0)], [d]); kj += 1
            if not cfg.v0first and vj <= cfg.LV: add_vdma(vj, [(a, 0)], [d]); vj += 1
            if cfg.kvg and kj == 3 and vj > cfg.LV: add_kload(3, [], [spot(9)[0]]); kj += 1
        if cfg.qstage:
            for qs in range(5):
                g0 = [chain(0, g) for g in range(10)].index((0, qs))
                aft = [(QKm[(0,) + chain(0, g0 - 1) + (3,)], 0)] if g0 else []
                for s_ in range(4):
                    d_ = R("a", Q(qs, s_), 4)
                    x = I(f"ds_read_b128 {d_}, v{vQR+s_} offset:{qs*4096}", "dsr", rd=[f"v{vQR+s_}"], wr=[d_], needs=qdmas[qs])
                    x.block = True
                    if cfg.pads and qs == 1 and s_ == 0:
                        wu = I("; WARM_UP", "br", cost=4)
                        add(wu, after=aft, dead=[QKm[0, 0, qs, 0]], tag="ld", prio=-200)
                        aft = aft + [(wu, 0)]
                    add(x, after=aft + [(z, 0) for z in qdmas[qs]], dead=[QKm[0, 0, qs, 0]], tag="ld", prio=-100)
        return
    assert cfg.LV <= 3 or not cfg.qstage
    x0, x1 = min(T - 1, cfg.grow), min(T, cfg.grow)
    if x1 > x0 and T + cfg.LV + x0 < 16: add_vdma(T + cfg.LV + x0, [(start_of(T), 0)], [mid_of(T)])
    for j in range(T + cfg.LK + x0, T + cfg.LK + x1 + 1):
        if j < 16: add_kload(j, [(start_of(T), 0)], [start_of(T + 1)])
    if T + cfg.LV + x1 < 16: add_vdma(T + cfg.LV + x1, [(mid_of(T), 0)], [mid_of(T + 1)])

QSTG = 49152
vQD, vQR = 8, 12
sQS = 5
qdmas = {}
def q0load(qs):
    if not cfg.qstage: return qload_ins(qs)
    out = [salu(f"s_add_u32 m0, s{sQS}, {qs*4096}", [f"s{sQS}"], ["m0", "scc"])]
    qdmas[qs] = [I(f"buffer_load_dwordx4 v{vQD+j}, s[{sQ}:{sQ+3}], s{sQn+qs} offen offset:{1024*j}{cfg.qflags} lds", "dma",
                   rd=[f"v{vQD+j}", f"s{sQn+qs}", "m0", f"s[{sQ}:{sQ+3}]"]) for j in range(4)]
    return out + qdmas[qs]
def qload_ins(qs, dst=None):
    out = []
    for s in range(4):
        d = R("a", Q(qs, s), 4) if dst is None else R(dst[s][0], dst[s][1], 4)
        if cfg.ownk:
            out.append(I(f"s_add_u32 s{sT0}, s{sQn+qs}, s{sX[s]}\n    buffer_load_dwordx4 {d}, v{vQA}, s[{sQ}:{sQ+3}], s{sT0} offen{cfg.qflags}", "vld",
                         rd=[f"v{vQA}", f"s{sQn+qs}", f"s[{sQ}:{sQ+3}]"], wr=[d]))
            continue
        out.append(I(f"buffer_load_dwordx4 {d}, v{vQA}, s[{sQ}:{sQ+3}], s{sQn+qs} offen offset:{off(s)}{cfg.qflags}", "vld",
                     rd=[f"v{vQA}", f"s{sQn+qs}", f"s[{sQ}:{sQ+3}]"], wr=[d]))
    return out
def items_qjit():
    prev = None
    early = {}
    if cfg.early0:
        kw_ = lambda t: [(x.ins, 0) for x in kwrites[t]]
        bufs = [(("v", 236 + 4 * k), kw_(14) + (kw_(15) if (k >= 2 or cfg.early0 == 1) else [])) for k in range(4)]
        if cfg.early0 == 2:
            assert cfg.ownk and not cfg.vc1
            bufs = [(("a", Kf(k, 0)), [(vdmas[cfg.e2T + cfg.LV][-1], 0)]) for k in range(2)] + bufs
        for k, (bf_, aft) in enumerate(bufs):
            qs, s_ = divmod(k, 4); early[qs, s_] = bf_
            ins = qload_ins(qs, [bf_] * 4)[s_]
            add(ins, after=aft + ([(prev, 0)] if prev else []), dead=[start_of(15)], tag="qj", prio=-400)
            prev = ins
            for r in range(4):
                d, a_ = f"a{Q(qs, s_) + r}", f"{bf_[0]}{bf_[1] + r}"
                op = "v_accvgpr_write_b32" if bf_[0] == "v" else "v_accvgpr_mov_b32"
                add(valu(f"{op} {d}, {a_}", [a_], [d]), after=[(QKm[15, 1, qs, s_], 0), (QKm[15, 0, cfg.e0g, 0], 0)], dead=[firstm[16]], tag="qc", prio=-3)
    for qs in range(4):
        for s_, ins in enumerate(qload_ins(qs)):
            if (qs, s_) in early: continue
            T1 = nextstart(15, qs)
            dl = [QKm[T1, 0, qs, 0]] + ([firstm[16]] if T1 == 16 and cfg.jitfirst else [])
            it = add(ins, after=[(QKm[15, 1, qs, s_], 0)] + ([(prev, 0)] if prev else []), dead=dl, tag="qj", prio=-400)
            if T1 > 16 and cfg.pairld and s_ % 2: qjit_b[-1].after.append(it.after[0]); glue[id(prev)] = it
            if T1 > 16: qjit_b.append(it)
            elif cfg.jitstep: it.dabs = (QKm[15, 1, qs, 3], 1 + cfg.jitstep * (s_ - len([1 for e in early if e[0] == qs])))
            prev = ins
qjit_b = []
early_done = []
UNITS = [O(4, b) for b in range(8)] + [P(0, 4), P(1, 4), 236, 240, 244]
QBUF = {(qs, s_): ("v", UNITS[4 * qs + s_]) for qs in range(3) for s_ in range(4)}
QBUF.update({(3, s_): ("a", Q(4, s_)) for s_ in range(4)})
unit_free = {}
def items_qpf(base):
    prev = None; hist_ = []
    for qs in range(4):
        T = base + 15 + phase(qs)
        lds_ = qload_ins(qs, [QBUF[qs, s_] for s_ in range(4)])
        for s_, ins in enumerate(lds_):
            k = 4 * qs + s_
            curT[0] = base + cfg.CUT
            pre_ = []
            if cfg.ownk and cfg.splitq:
                a_t, l_t = ins.text.split("\n    ")
                sr = f"s{sT0 if k % 2 == 0 else sT1}"
                ins.text = l_t.replace(f"s{sT0} offen", f"{sr} offen")
                sa = add(salu(a_t.replace(f"s{sT0},", f"{sr},", 1), [], [sr, "scc"]), after=[(rowadv_done[base], 0)] + ([(hist_[-2], 0)] if k >= 2 else []),
                         dead=[start_of(base + 14) if qs < 2 else firstm[base + 16]], tag="qp", prio=-300 + k)
                pre_ = [(sa.ins, 0)]
            hist_.append(ins)
            it_ = add(ins, after=pre_ + [(rowadv_done[base], 0)] + ([(prev, 0)] if prev else []),
                dead=[start_of(base + 14) if qs < 2 else firstm[base + 16]], tag="qp", prio=-200 + k)
            if cfg.pairld and s_ % 2: glue[id(prev)] = it_
            prev = ins
            kind, r0 = QBUF[qs, s_]
            curT[0] = T
            if (T, 1, qs, s_) not in QKm or (T + 1, 0, qs, s_) not in QKm: continue
            for r in range(4):
                d, a_ = f"a{Q(qs, s_) + r}", f"{kind}{r0 + r}"
                op = "v_accvgpr_write_b32" if kind == "v" else "v_accvgpr_mov_b32"
                c = add(valu(f"{op} {d}, {a_}", [a_], [d]), after=[(QKm[T, 1, qs, s_], 0)], dead=[QKm[T + 1, 0, qs, s_]], tag="qc", prio=-3, doff=1)
                if kind == "v": unit_free.setdefault((base, r0), []).append((c.ins, 0))
rowadv_done = {}
sWS = 52
vc_store = []
def items_vcheck():
    assert cfg.ownk
    va = f"v{vPF}"; d = R("a", Kf(0, 0), 4); prev = None; tg = None
    for T in range(16):
        if T == 8: tg = add(valu(f"v_xor_b32 {va}, 0x10000, {va}", [va], [va]), after=[(rd_, 0)], dead=[VC1[8, 0]], tag="vc", doff=14).ins
        for dh in range(2):
            rd_ = I(f"ds_read_b128 {d}, {va} offset:{dh*32768 + (T % 8)*4096}", "dsr", rd=[va], wr=[d], needs=vdmas[T])
            add(rd_, after=[(vbar(T), 0)] + ([(prev, 0)] if prev else []) + ([(tg, 0)] if T == 8 else []), dead=[VC1[T, dh]], tag="vc", prio=-12)
            prev = VC1[T, dh]
    x, y = f"v{vDUM}", f"v{vVD}"; p_ = (prev, 12)
    a = Kf(1, 0)
    sq = [(f"v_accvgpr_read_b32 {x}, a{a}", [f"a{a}"], [x]), (f"v_and_b32 {x}, 0x7fffffff, {x}", [x], [x])]
    for k in range(1, 4):
        sq += [(f"v_accvgpr_read_b32 {y}, a{a+k}", [f"a{a+k}"], [y]), (f"v_and_b32 {y}, 0x7fffffff, {y}", [y], [y]), (f"v_max_u32 {x}, {x}, {y}", [x, y], [x])]
    for tx, r_, w_ in sq: p_ = (add(valu(tx, r_, w_), after=[p_], dead=[start_of(23)], tag="vc").ins, 0)
    blk = I("\n    ".join([f"v_cmp_le_u32 vcc, 0x5d800000, {x}    ; sum of squares >= 2^60 (or NaN)", "s_nop 4", "s_cbranch_vccz L_vok",
                           f"v_mov_b32 {x}, 1", f"buffer_store_byte {x}, off, s[{sWS}:{sWS+3}], s2", "s_waitcnt vmcnt(0)"]) + "\nL_vok:",
            "br", rd=[x], wr=[x, "vcc"], cost=32)
    add(blk, after=[p_], dead=[start_of(24)], tag="vc", doff=1)
def items_codepf(T, label):
    t = f"v{vDUM}"
    a = add(salu(f"s_lshl_b32 s{sT2}, s{sW}, 13\n    s_add_u32 s{sT2}, s{sT2}, {label} - L_pf - {RING * 8}", [], [f"s{sT2}", "scc"]), after=[(start_of(T), 0)], dead=[mid_of(T)], tag="pf")
    a.ins.cost = 8
    b = add(valu(f"v_lshl_add_u32 {t}, v{vKR}, 3, s{sT2}", [f"v{vKR}", f"s{sT2}"], [t]), after=[(a.ins, 0)], dead=[mid_of(T)], tag="pf")
    c = add(valu(f"v_min_u32 {t}, L_end - L_pf, {t}", [t], [t]), after=[(b.ins, 0)], dead=[mid_of(T)], tag="pf")
    x = I(f"global_load_dword v{vDUM}, {t}, s[50:51]", "vld", rd=[t], wr=[f"v{vDUM}"]); x.nowait = True
    add(x, after=[(c.ins, 0)], dead=[start_of(T + 1)], tag="pf")
def items_rowadv(T):
    for qs in range(4):
        a = add(salu(f"s_add_u32 s{sOr+qs}, s{sOr+qs}, {'s3' if cfg.extra else 65536}", [f"s{sOr+qs}"], [f"s{sOr+qs}", "scc"]), after=[(start_of(T), 0)], dead=[mid_of(T)], tag="adv", prio=0)
        b = add(salu(f"s_add_u32 s{sQn+qs}, s{sOr+qs}, {'s4' if cfg.extra else 65536}" + ("\n    s_mov_b32 s3, s4\n    s_cmp_le_u32 s%d, 5\n    s_cselect_b32 s4, 0x10000, 0" % sCNT if cfg.extra and qs == 3 else ""), [f"s{sOr+qs}"], [f"s{sQn+qs}", "scc"]),
                after=[(a.ins, 0)] + ([(rowadv_done[T - T % 16], 0)] if qs else []), dead=[mid_of(T)], tag="adv", prio=0)
        rowadv_done[T - T % 16] = b.ins

lprev = []
def items_epilogue(T, endins):
    slots = sorted(q for q in act(T) if islast(T, q))
    base = (T + 1) // 16 * 16 - 16
    ri = {}
    def over(b, qs):
        T1 = nextstart(T, qs)
        return PVm[T1, b, qs] if qs in act(T1) and qs != 4 else endins
    xs = []
    for qs in slots:
        p = pair_of(qs); h = 1 if qs == 4 else qs % 2
        la, lb = f"a{L(p) + 2*h}", f"a{L(p) + 2*h + 1}"
        x, y, r = f"v{vL0 if qs % 2 == 0 else vPF}", f"v{vL1}", f"v{vRI+qs}"
        kw = dict(dead=[over(0, qs), endins], tag="ep", prio=-400)
        pa = [(z, 0) for z in lprev]
        i0 = add(valu(f"v_accvgpr_read_b32 {x}, {la}", [la], [x]), after=[(SMm[T, p], 12)] + pa, **kw)
        i1 = add(valu(f"v_accvgpr_read_b32 {y}, {lb}", [lb], [y]), after=[(SMm[T, p], 12)] + pa, **kw)
        i2 = add(valu(f"v_add_f32 {x}, {x}, {y}", [x, y], [x]), after=[(i0.ins, 0), (i1.ins, 0)], **kw)
        i3 = add(valu(f"v_rcp_f32 {r}, {x}", [x], [r], "trans"), after=[(i2.ins, 0)], **kw)
        ri[qs] = i3.ins; xs.append((x, i2.ins, i3.ins))
        lprev[:] = [i2.ins]
        if qs % 2 == 1 or qs == 4:
            src = ", ".join(z[0] for z in xs); nm = "3" if len(xs) == 2 else ""
            kw = dict(dead=[endins], tag="ep", prio=-300)
            c1 = add(valu(f"v_max{nm}_u32 v{vHI}, v{vHI}, {src}", [f"v{vHI}"] + [z[0] for z in xs], [f"v{vHI}"]), after=[(z[1], 0) for z in xs], **kw)
            c2 = add(valu(f"v_min{nm}_u32 v{vLO}, v{vLO}, {src}", [f"v{vLO}"] + [z[0] for z in xs], [f"v{vLO}"]), after=[(z[1], 0) for z in xs], **kw)
            lprev[:] = [c1.ins, c2.ins] + [z[2] for z in xs]; xs = []
        T1 = nextstart(T, qs)
        if qs in act(T1) and qs != 4:
            for reg in (la, lb):
                add(valu(f"v_accvgpr_write_b32 {reg}, 0", [], [reg]), after=[(i0.ins, 0), (i1.ins, 0)], dead=[SMm[T1, p], endins], tag="ep", prio=0, doff=1)
    if T == 15:
        def pfree(t, q): return [(PVm[t, 7, q], 0)] + [(SMm[t, p], 0) for p in pairs(t) if pair_lo(p) <= q <= pair_lo(p) + 1]
        pool = [(u, []) for u in (236, 240, 244)] + [(P(14, q), pfree(14, q)) for q in ((4, 2, 3) if DL else (4,))]
        if DL: pool += [(P(15, q), pfree(15, q)) for q in (2, 3)]
    elif slots[0] == 0: pool = [(u, unit_free.get((base, u), [])) for u in (UNITS[:8] if DL else UNITS[-1:] + UNITS[:-1])]
    else: pool = [(u, unit_free.get((base, u), [])) for u in UNITS[12:] + UNITS[8:12] + UNITS[:8]]
    inplace = [q for q in slots if (q == 4 or (T == 15 and phase(q)))] if not endins.text.startswith("; end") else slots
    def seq(sl):
        if cfg.pairst: return [(2 * pp + e, qs) for pp in range(2) for qs in sl for e in range(2)]
        return [(pb, qs) for pb in range(4) for qs in sl]
    order = seq([q for q in slots if q not in inplace]) + seq(inplace)
    tl = cfg.tlds and endins.text.startswith("; end")
    if tl:
        order = [(2 * hf + e, qs) for hf in range(2) for qs in slots for e in range(2)]
        tW, tR, tO = [176, 177], 178, 179
        RB = [[P(0, 0), P(0, 1)], [P(1, 0), P(1, 1)]]
        m_, x_, y_ = "v178", "v176", "v177"
        seqs = [(f"v_mbcnt_lo_u32_b32 {m_}, -1, 0", [], [m_]), (f"v_mbcnt_hi_u32_b32 {m_}, -1, {m_}", [m_], [m_]),
                (f"v_lshrrev_b32 {x_}, 3, {m_}", [m_], [x_]), (f"v_xor_b32 {y_}, {x_}, {m_}", [x_, m_], [y_]), (f"v_and_b32 {y_}, 7, {y_}", [y_], [y_]),
                (f"v_lshlrev_b32 {y_}, 4, {y_}", [y_], [y_]), (f"v_lshl_add_u32 v{tO}, {x_}, 8, {y_}", [x_, y_], [f"v{tO}"]),
                (f"v_lshrrev_b32 {x_}, 4, {m_}", [m_], [x_]), (f"v_xor_b32 {x_}, {x_}, {m_}", [x_, m_], [x_]), (f"v_and_b32 {x_}, 7, {x_}", [x_], [x_]),
                (f"v_and_b32 {y_}, 15, {m_}", [m_], [y_]), (f"v_lshlrev_b32 {y_}, 3, {y_}", [y_], [y_]), (f"v_add_lshl_u32 {x_}, {x_}, {y_}, 4", [x_, y_], [x_]),
                (f"v_add_u32 {x_}, s{sT2}, {x_}", [x_], [x_]), (f"v_xor_b32 {y_}, 64, {x_}", [x_], [y_]),
                (f"v_lshl_add_u32 {m_}, {m_}, 4, s{sT2}", [m_], [m_])]
        pv_ = add(salu(f"s_lshl_b32 s{sT2}, s{sW}, 12\n    s_add_u32 s{sT2}, s{sT2}, {RING}", [], [f"s{sT2}", "scc"]), dead=[firstm[T + 1]], tag="ep").ins
        for tx, rd_, wr_ in seqs: pv_ = add(valu(tx, rd_, wr_), after=[(pv_, 0)], dead=[firstm[T + 1]], tag="ep").ins
        tready = pv_; tws = []; trd = {}; tst = {}
    sts = []; bursts = {}
    ofl = cfg.oflags
    if T >= TFIN[0] - 1:
        f_ = cfg.oflagsFA if slots[0] == 0 else cfg.oflagsFB
        if f_ != "=": ofl = f_
    for k, (pb, qs) in enumerate(order):
        inp = qs in inplace
        w, wa = (O(qs, 2 * pb), []) if inp else pool.pop(0)
        cv = []
        for e in range(2):
            b = 2 * pb + e
            kw = dict(dead=[over(2 * pb if inp else b, qs), endins], tag="ep", prio=(-200 + 4 * k) if inp else 0)
            ms = []
            if cfg.pkb and not tl and qs != 4:
                key_ = (pb if cfg.pkb == 1 else pb // 2, qs // 2)
                if key_ not in bursts:
                    pbs = [pb] if cfg.pkb == 1 else [pb // 2 * 2, pb // 2 * 2 + 1]
                    qq = [q for q in slots if q // 2 == qs // 2 and q != 4]
                    tx, rw = [], []
                    for p_ in pbs:
                        for q in qq:
                            for r in range(0, 8, 2):
                                v2 = R("v", O(q, 2 * p_) + r, 2); rp = (vRI + q) & ~1; hi = (vRI + q) & 1
                                tx.append(f"v_pk_mul_f32 {v2}, {v2}, v[{rp}:{rp+1}] op_sel:[0,{hi}] op_sel_hi:[1,{hi}]"); rw.append(v2)
                    bi = I("\n    ".join(tx), "valu", rd=rw + [f"v{vRI+q}" for q in qq], wr=rw, cost=20 + 4 * len(tx))
                    bursts[key_] = add(bi, after=[(PVm[T, 2 * p_ + e_, q], 8) for p_ in pbs for e_ in range(2) for q in qq] + [(ri[q], 1) for q in qq],
                                       dead=[over(2 * pbs[0], q) for q in qq] + [endins], tag="ep", prio=kw["prio"])
                ms = [bursts[key_]] * 4
            for r in range(0 if ms else 4):
                v = f"v{O(qs, b) + r}"
                if tl and cfg.tpk:
                    if r % 2: ms.append(ms[-1]); continue
                    v2 = R("v", O(qs, b) + r, 2); rp = (vRI + qs) & ~1; hi = (vRI + qs) & 1
                    ms.append(add(valu(f"v_pk_mul_f32 {v2}, {v2}, v[{rp}:{rp+1}] op_sel:[0,{hi}] op_sel_hi:[1,{hi}]", [v2, f"v{vRI+qs}"], [v2]),
                                  after=[(PVm[T, b, qs], 8), (PVm[T, 7, act(T)[-1]], 0), (ri[qs], 1)], **kw))
                    continue
                ms.append(add(valu(f"v_mul_f32 {v}, {v}, v{vRI+qs}", [v, f"v{vRI+qs}"], [v]), after=[(PVm[T, b, qs], 8), (ri[qs], 1)], **kw))
            for h in range(2):
                d = f"v{w + 2*e + h}"; a_, b_ = f"v{O(qs, b) + 2*h}", f"v{O(qs, b) + 2*h + 1}"
                aft = [(ms[2*h].ins, 0), (ms[2*h+1].ins, 0)] + wa + ([(cv[-1].ins, 0)] if (inp and cv) else [])
                cv.append(add(valu(f"v_cvt_pk_bf16_f32 {d}, {a_}, {b_}", [a_, b_], [d]), after=aft, **kw))
        kw = dict(dead=[over(2 * pb, qs) if inp else endins, endins], tag="ep", prio=-300 + 8 * k)
        sw = []
        for h in range(0 if cfg.noswap else 2):
            x, y = f"v{w + h}", f"v{w + 2 + h}"
            sw.append(add(valu(f"v_permlane16_swap_b32 {x}, {y}", [x, y], [x, y], "perm"), after=[(cv[h].ins, 2), (cv[2 + h].ins, 2)], **kw))
        if tl:
            u_ = k // 2; bf_ = u_ % 2
            wi = I(f"ds_write_b128 v{tW[pb % 2]}, {R('v', w, 4)} offset:{bf_ * 2048}", "dsw", rd=[f"v{tW[pb % 2]}", R("v", w, 4)], cost=26)
            tws.append(add(wi, after=[(z.ins, 0) for z in cv] + [(tready, 0), (BARm[max(t for t in BARm if isinstance(t, int))], 0)] + [(z, 0) for z in trd.get(u_ - 2, [])], **kw).ins)
            if k % 2 == 0: continue
            for x_ in tail_stores[-2:]: x_.after += [(z, 0) for z in tws[-2:]]; x_.prio = -400 + u_
            for j in range(2):
                d = R("v", RB[bf_][j], 4)
                ri_ = I(f"ds_read_b128 {d}, v{tR} offset:{bf_ * 2048 + j * 1024}", "dsr", rd=[f"v{tR}"], wr=[d])
                aft = [(z, 0) for z in tws[-2:]] + ([(tst[u_ - 2, j], 2)] if u_ >= 2 else [(PVm[47, 7, j], 0), (SMm[47, 0], 0)])
                rit = add(ri_, after=aft, **kw); trd.setdefault(u_, []).append(ri_)
                st = I(f"buffer_store_dwordx4 {d}, v{tO}, s[{sO}:{sO+3}], s{sOr+qs} offen offset:{j * 2048 + (pb // 2) * 128}{ofl}", "vst",
                       rd=[d, f"v{tO}", f"s{sOr+qs}", f"s[{sO}:{sO+3}]"])
                st.fast = True; st.block = True; tst[u_, j] = st
                sit = add(st, after=[(ri_, 0)], **kw)
                rit.prio = -500 + u_
                if cfg.nvc:
                    rit.dabs = (PVm[T, 3, act(T)[-1]], cfg.tx0 + cfg.txstep * u_ * 2)
                    sit.dabs = (PVm[T, 3, act(T)[-1]], cfg.tx0 + cfg.txstep * (u_ * 2 + j + 1))
                tail_stores.append(sit)
            continue
        st = I(f"buffer_store_dwordx4 {R('v', w, 4)}, v{vOA}, s[{sO}:{sO+3}], s{sOr+qs} offen offset:{64*pb}{ofl}", "vst",
               rd=[R("v", w, 4), f"v{vOA}", f"s{sOr+qs}", f"s[{sO}:{sO+3}]"])
        sts.append((add(st, after=[(z.ins, 0) for z in (sw or cv)], **kw), w, inp, pb, qs))
        if not inp:
            pool.append((w, [(st, 2)])); unit_free[base, w] = [(st, 2)]
            for t in range(T + 1, T + 8):
                for it in pwriters.get((t, w), []): it.after.append((st, 2))

    if T == 15 and DL:
        rank = {P(14, 2): 0, P(14, 3): 1, P(15, 2): 4, P(15, 3): 5}
        def key(x):
            it, w, inp, pb, qs = x
            if not inp: return rank.get(w, 100)
            return 200 + pb if qs == 4 else (2 if pb == 0 else 4 + 2 * pb) + qs - 2
        srt = sorted(sts, key=key)
        if cfg.pairst:
            out_ = []
            for x in srt:
                if x not in out_: out_ += sorted([y for y in sts if y[4] == x[4] and y[3] // 2 == x[3] // 2], key=lambda y: y[3])
            srt = out_
        sq = qjit_b + [x[0] for x in srt]
        for k, it in enumerate(sq):
            it.dabs = (firstm[16], cfg.tq0 + cfg.tqstep * min(k, 8) + cfg.tstep * max(k - 8, 0)); it.prio = -1000 + k
    elif not endins.text.startswith("; end"):
        f_ = T >= TFIN[0] - 1
        if cfg.stE and not f_:
            for k, x in enumerate(sts): x[0].nb = (PVm[T, 1, act(T)[-1]], cfg.stE + cfg.tstep * k)
        for k, x in enumerate(sts): x[0].dabs = (PVm[T, 1, act(T)[-1]], (cfg.stF0 if f_ else cfg.st0) + (cfg.stFstep if f_ else cfg.tstep) * (k | 1 if cfg.pairst else k))
        if cfg.lateA and not f_:
            for k, x in enumerate(sts):
                if slots[0] == 0 and k < 3: continue
                o_ = (cfg.lateA + cfg.tstep * (k - 3)) if slots[0] == 0 else (cfg.lateB + cfg.tstep * k)
                x[0].nb = (PVm[T, 1, act(T)[-1]], o_); x[0].dabs = (PVm[T, 1, act(T)[-1]], o_ + 10)
    else:
        for k, x in enumerate(sts): x[0].dabs = (PVm[T, 1, act(T)[-1]], cfg.tl0 + cfg.tlstep * (k | 1 if cfg.pairst else k))

    if cfg.pairst:
        for x in sts:
            if x[3] % 2 == 0:
                y = [z for z in sts if z[4] == x[4] and z[3] == x[3] + 1][0]
                x[0].after += list(y[0].after); y[0].after.append((x[0].ins, 0)); glue[id(x[0].ins)] = y[0]
tail_stores = []

class Sched:
    def __init__(self, stream):
        self.stream = stream
        self.pos = {id(x): k for k, x in enumerate(stream)}
        self.over = 0
        self.cyc = 0; self.ta = 0; self.log = []
    def run(self, bb, its, fixed_after, marks=None, endins=None, post=None):
        stream, pos = self.stream, self.pos
        idx = {id(m): j for j, m in enumerate(bb)}
        for mid, lst in fixed_after.items():
            if mid in idx:
                for f in lst: idx[id(f)] = idx[mid]
        for j, lst in (marks or {}).items():
            for f in lst: idx[id(f)] = j
        for j, lst in (post or {}).items():
            for f in lst: idx[id(f)] = j
        if endins is not None: idx[id(endins)] = len(bb)
        waiting, act, bydead = {}, [], {}
        byins = {id(it.ins): it for it in its if not it.placed}
        lbm = {}
        def lb(it):
            if id(it) not in lbm:
                v = 0
                for a, _ in it.after:
                    if id(a) in pos: continue
                    if id(a) in idx: v = max(v, idx[id(a)] + 1)
                    elif id(a) in byins: v = max(v, lb(byins[id(a)]))
                lbm[id(it)] = v
            return lbm[id(it)]
        sys.setrecursionlimit(100000)
        for it in its:
            if it.placed: continue
            d = min([idx[id(x)] for x in it.dead if x is not None and id(x) in idx] or [1 << 30])
            if it.dabs and id(it.dabs[0]) in idx: d = min(d, max(idx[id(it.dabs[0])] + it.dabs[1], lb(it) + 1))
            if it.doff: d = max(d - it.doff, min(d, lb(it) + 1))
            it.early = d + it.prio
            it.soft = d - (cfg.dsmargin if it.ins.kind in LGKM else -(1 << 20))
            if it.pace and id(it.pace[0]) in idx and d < (1 << 29):
                o_ = idx[id(it.pace[0])]
                it.soft = int(o_ + it.pace[1] * (d - cfg.wmargin - o_)); it.early = it.soft + 4
            bydead.setdefault(d, []).append(it)
            w = {id(a) for a, _ in it.after if id(a) not in pos}
            nw[id(it)] = len(w)
            for a in w: waiting.setdefault(a, []).append(it)
            if not w: act.append(it)
        st = {"budget": 8, "first": True, "valu": False, "mem": False}
        def emit(x):
            pos[id(x)] = len(stream); stream.append(x)
            for it in waiting.pop(id(x), []):
                nw[id(it)] -= 1
                if nw[id(it)] == 0: act.append(it)
        def ready(it):
            n = len(stream)
            return all(n - pos[id(a)] - 1 >= dist for a, dist in it.after)
        def place(it):
            if it.ins.block and it.ins.kind == "dsr":
                while True:
                    a = cands(lambda x: not x.ins.block and x.ins.kind in VALU + LGKM)
                    if not a: break
                    place(a[0])
            c = it.ins.cost; kd = it.ins.kind
            if kd == "salu" and st["first"]: c -= 4
            if kd in LGKM + VM and st["valu"]: c += 8
            elif kd in LGKM + VM and st["mem"]: c += 4
            if kd in LGKM + VM: st["mem"] = True
            if kd in VALU: st["valu"] = True
            act.remove(it); it.placed = True
            if kd in VM:
                now = self.cyc + 8 + (8 - st["budget"])
                self.ta = (max(self.ta, now) if now < self.ta + 1 and it.tag != "ld" else now) + (cfg.ta_fast if (kd == "dma" or it.ins.fast) else cfg.ta_slow)
            emit(it.ins); st["budget"] -= c; st["first"] = False
            g_ = glue.get(id(it.ins))
            if g_ is not None and not g_.placed: place(g_)
        def cands(pred):
            return sorted([it for it in act if pred(it) and ready(it)], key=lambda x: (x.early, x.seq))
        def force(limit):
            while True:
                due = [it for d in list(bydead) if d <= limit for it in bydead[d] if not it.placed]
                for d in [d for d in bydead if d <= limit]:
                    bydead[d] = [it for it in bydead[d] if not it.placed]
                    if not bydead[d]: del bydead[d]
                if not due: return
                stack = list(due); seen = set(); need = []
                while stack:
                    it = stack.pop()
                    if id(it) in seen: continue
                    seen.add(id(it)); need.append(it)
                    for a_, _ in it.after:
                        o = byins.get(id(a_))
                        if o is not None and not o.placed: stack.append(o)
                av = [it for it in need if nw[id(it)] == 0]
                if not av:
                    raise RuntimeError("deadlock: " + "; ".join(it.ins.text + " AFTER " + str([a for a, _ in it.after if id(a) not in pos]) for it in need[:6]))
                rs = [it for it in av if ready(it)]
                if not rs:
                    rs = cands(lambda x: x.ins.kind in VALU)[:1] or av
                rs.sort(key=lambda x: (0 if (x.ins.kind in LGKM + VM and not st["valu"]) else 1, x.early, x.seq))
                place(rs[0])
        if id(bb[0]) not in pos: force(0)
        for k, m in enumerate(bb):
            for f in (marks or {}).get(k, []): emit(f)
            if id(m) not in pos: emit(m)
            st.update(budget=8, first=True, valu=False, mem=False)
            for f in (post or {}).get(k, []):
                emit(f); st["first"] = False
            for f in fixed_after.get(id(m), []):
                emit(f); st["first"] = False
                if cfg.emptybar: st["budget"] = 0
            c = cands(lambda x: x.ins.kind == "salu")
            if c and st["first"] and k + 1 < len(bb) and not getattr(cfg, "nosalu", False): place(c[0])
            vmok = lambda x: x.ins.kind in VM and (x.nb is None or idx.get(id(x.nb[0]), -1000) + x.nb[1] <= k)
            vm = cands(vmok) if (self.ta <= self.cyc and m.pref != "T") else []
            urgent = cands(lambda x: x.soft <= (k - 2 if vm else k + 1))
            if st["budget"] <= 0: urgent = []
            if urgent: place(min(urgent, key=lambda x: (x.soft, x.seq)))
            tr = cands(lambda x: x.ins.kind == "trans")
            if m.pref == "T" and tr and st["budget"] >= (4 if urgent else 8):
                place(tr[0])
            else:
                if not urgent and st["budget"] >= 4:
                    if not vm and self.ta <= self.cyc: vm = cands(vmok)
                    mem = vm or cands(lambda x: x.ins.kind in LGKM)
                    if mem and not vm:
                        rd_ = [x for x in mem if x.ins.kind == "dsr"]; wr_ = [x for x in mem if x.ins.kind == "dsw"]
                        if cands(lambda x: x.ins.kind in ("valu", "perm")): mem = rd_
                        elif wr_ and not (rd_ and rd_[0].soft <= k + 3): mem = wr_
                    if mem: place(mem[0])
                while st["budget"] >= 4:
                    a = cands(lambda x: (x.ins.kind in ("valu", "perm") and x.ins.cost <= 8) or (x.ins.kind == "trans" and st["budget"] >= 8))
                    if not a: break
                    place(a[0])
            force(k + 1)
            if st["budget"] < 0: self.over -= st["budget"]
            self.cyc += max(16, 16 - st["budget"])
            self.log.append(self.cyc)
        if endins is not None: force(1 << 29)
nw = {}

sVC = 49
sTSB = 60
def stamp(k, cyc=False, mode=1):
    if cfg.stamps != mode: return []
    r = sTSB + 2 * k
    return [I(f"s_mem{'time' if cyc else 'realtime'} s[{r}:{r+1}]", "salu", wr=[f"s[{r}:{r+1}]"])]

def V(text, rd, wr, kind="valu"): return I(text, kind, rd=rd, wr=wr)
def prologue():
    o = []
    o.append(I("s_cmp_ge_u32 s2, 256\n    s_cbranch_scc1 L_end", "br"))
    o += stamp(0) + stamp(1, True) + stamp(0, False, 4) + stamp(1, True, 4) + stamp(0, False, 5)
    if cfg.spin: o.append(salu("s_memrealtime s[98:99]"))
    o.append(salu("s_load_dwordx8 s[52:59], s[0:1], 0"))
    if cfg.vc1: o.append(salu("s_load_dwordx2 s[6:7], s[0:1], 32"))
    l, t, u, g = "v1", "v2", "v3", "v4"
    o += [V(f"v_lshrrev_b32 {t}, 6, v0", ["v0"], [t]),
          V(f"v_and_b32 {l}, 63, v0", ["v0"], [l]),
          V(f"v_readfirstlane_b32 s{sW}, {t}", [t], [f"s{sW}"]),
          V(f"v_lshrrev_b32 {g}, 4, {l}", [l], [g]),
          V(f"v_and_b32 {t}, 15, {l}", [l], [t]),
          V(f"v_lshlrev_b32 {t}, 8, {t}", [t], [t]),
          V(f"v_mul_u32_u24 {u}, {GST}, {g}", [g], [u]),
          V(f"v_add_u32 v{vQA}, {t}, {u}", [t, u], [f"v{vQA}"]),
          ]
    if cfg.noswap:
        if vOA != vQA: o += [V(f"v_lshl_add_u32 v{vOA}, {g}, 4, {t}", [g, t], [f"v{vOA}"])]
        o += [
              V(f"v_and_b32 {u}, 1, {g}", [g], [u]),
              V(f"v_lshlrev_b32 {u}, 2, {u}", [u], [u]),
              V(f"v_xor_b32 {u}, {u}, {l}", [u, l], [u]),
              V(f"v_and_b32 {u}, 7, {u}", [u], [u]),
              V(f"v_lshrrev_b32 {t}, 3, {l}", [l], [t]),
              V(f"v_lshlrev_b32 {t}, 8, {t}", [t], [t]),
              V(f"v_lshl_add_u32 v{vVD}, {u}, 4, {t}", [u, t], [f"v{vVD}"])]
    else:
        o += [
          V(f"v_and_b32 {u}, 1, {g}", [g], [u]),
          V(f"v_lshl_add_u32 {t}, {u}, 5, {t}", [u, t], [t]),
          V(f"v_lshrrev_b32 {u}, 1, {g}", [g], [u]),
          V(f"v_lshl_add_u32 v{vOA}, {u}, 4, {t}", [u, t], [f"v{vOA}"]),
          V(f"v_bfe_u32 {t}, {l}, 1, 2", [l], [t]),
          V(f"v_xor_b32 {t}, {t}, {g}", [t, g], [t]),
          V(f"v_lshlrev_b32 {t}, 5, {t}", [t], [t]),
          V(f"v_lshrrev_b32 {u}, 3, {l}", [l], [u]),
          V(f"v_lshl_add_u32 {t}, {u}, 8, {t}", [u, t], [t]),
          V(f"v_and_b32 {u}, 1, {l}", [l], [u]),
          V(f"v_lshl_add_u32 v{vVD}, {u}, 4, {t}", [u, t], [f"v{vVD}"]),
          ]
    if cfg.qstage:
        o += [V(f"v_and_b32 {t}, 15, {l}", [l], [t]),
              V(f"v_xor_b32 {u}, {t}, {g}", [t, g], [u]),
              V(f"v_lshlrev_b32 {u}, 4, {u}", [u], [u]),
              V(f"v_lshl_add_u32 v{vQD}, {g}, 8, {u}", [g, u], [f"v{vQD}"])]
        o += [V(f"v_xor_b32 v{vQD+j}, {64*j}, v{vQD}", [f"v{vQD}"], [f"v{vQD+j}"]) for j in range(1, 4)]
        o += [salu(f"s_mul_i32 s{sQS}, s{sW}, 20480", [f"s{sW}"], [f"s{sQS}"]), salu(f"s_add_u32 s{sQS}, s{sQS}, {QSTG}")]
        stage2 = [V(f"v_and_b32 {t}, 15, {l}", [l], [t]),
              V(f"v_mul_u32_u24 {u}, {GST // 16}, {g}", [g], [u]),
              V(f"v_xor_b32 {u}, {u}, {t}", [u, t], [u]),
              V(f"v_lshlrev_b32 {u}, 4, {u}", [u], [u]),
              V(f"v_lshl_add_u32 {u}, {t}, 8, {u}", [t, u], [u])]
        stage2 += [V(f"v_xor_b32 v{vQR+k}, {f's{sX[k]}' if cfg.ownk else off(k)}, {u}", [u], [f"v{vQR+k}"]) for k in range(4)]
        stage2 += [V(f"v_add_u32 v{vQR+k}, s{sQS}, v{vQR+k}", [f"v{vQR+k}"], [f"v{vQR+k}"]) for k in range(4)]
    o += [salu(f"s_mul_i32 s{sT0}, s2, {HEADQ}", [], [f"s{sT0}"]),
          salu(f"s_lshl_b32 s{sT1}, s2, 17", [], [f"s{sT1}"]),
          salu(f"s_lshl_b32 s{sM0}, s{sW}, 10", [f"s{sW}"], [f"s{sM0}"]),
          salu(f"s_lshl_b32 s{sVo}, s{sW}, 11", [f"s{sW}"], [f"s{sVo}"]),
          salu(f"s_lshr_b32 s{sKo}, s{sW}, 1", [f"s{sW}"], [f"s{sKo}"]),
          salu(f"s_lshl_b32 s{sKo}, s{sKo}, 12"),
          salu(f"s_and_b32 s{sT2}, s{sW}, 1"),
          salu(f"s_lshl_b32 s{sT2}, s{sT2}, 7"),
          salu(f"s_add_u32 s{sKo}, s{sKo}, s{sT2}"),
          salu(f"s_lshl_b32 s{sOr}, s{sW}, 14"),
          salu(f"s_add_u32 s{sOr+1}, s{sOr}, 4096"),
          salu(f"s_add_u32 s{sOr+2}, s{sOr}, 8192"),
          salu(f"s_add_u32 s{sOr+3}, s{sOr}, 12288"),
          salu(f"s_lshl_b32 s{sOr+4}, s{sW}, 12"),
          salu(f"s_add_u32 s{sOr+4}, s{sOr+4}, {1280*256}"),
          ]
    o += [salu(f"s_mov_b32 s{sQn+k}, s{sOr+k}") for k in range(5)]
    if cfg.ownk:
        if cfg.dmap == "A": o += [salu(f"s_lshl_b32 s{sX[0]}, s{sW}, 6")]
        else: o += [salu(f"s_mul_i32 s{sX[0]}, s{sW}, 0x50"), salu(f"s_and_b32 s{sX[0]}, s{sX[0]}, 0x90")]
        o += [salu(f"s_xor_b32 s{sX[c]}, s{sX[0]}, {off(c)}") for c in range(1, 4)]
    o.append(I("s_waitcnt lgkmcnt(0)", "wait"))
    for srd, p, so, size in ((sK, 54, sT1, HEADK), (sQ, 52, sT0, HEADQ), (sV, 56, sT1, HEADK), (sO, 58, sT0, HEADQ)):
        o += [salu(f"s_add_u32 s{srd}, s{p}, s{so}"), salu(f"s_addc_u32 s{srd+1}, s{p+1}, 0"),
              salu(f"s_mov_b32 s{srd+2}, {size}"), salu(f"s_mov_b32 s{srd+3}, 0x20000")]
    kloads[0] = kload_ins(0); kloads[1] = kload_ins(1)
    k1 = [salu(f"s_add_u32 s{sKo}, s{sKo}, 8192")] + kloads[1]
    if cfg.qstage:
        o += kloads[0] + q0load(0) + q0load(1) + k1
        later = [[], q0load(2), q0load(3)]
    else:
        o += kloads[0] + qload_ins(0) + qload_ins(1)[:2]
        later = [qload_ins(1)[2:] + k1, qload_ins(2), qload_ins(3)]
    if cfg.codepf:
        o.append(I(f"; pull this kernel's code into L2 ahead of the instruction fetch (2 KB per workgroup, value unused)\n    s_getpc_b64 s[50:51]\nL_pf:\n    s_lshr_b32 s{sT2}, s2, 3\n    s_lshl_b32 s{sT2}, s{sT2}, 11", "salu"))
        o.append(V(f"v_lshl_add_u32 v5, {l}, 5, s{sT2}", [l], ["v5"]))
        o.append(V("v_min_u32 v5, L_end - L_pf, v5", ["v5"], ["v5"]))
        x = I(f"global_load_dword v{vDUM}, v5, s[50:51]", "vld", rd=["v5"], wr=[f"v{vDUM}"]); x.nowait = True
        o.append(x)
    if cfg.touch:
        o.append(V(f"v_lshlrev_b32 v7, {cfg.touch}, {l}", [l], ["v7"]))
        for srd in [sQ] + ([sO] if cfg.toucho else []) + ([sK, sV] if cfg.touchkv else []):
            x = I(f"buffer_load_dword v{vDUM}, v7, s[{srd}:{srd+3}], 0 offen nt", "vld", rd=["v7"], wr=[f"v{vDUM}"]); x.nowait = True
            o.append(x)
    if cfg.vc1:
        assert not cfg.extra and cfg.dbg < 0
        o += [salu(f"s_mov_b32 s{sWS}, s6"), salu(f"s_mov_b32 s{sWS+1}, s7"), salu(f"s_mov_b32 s{sWS+2}, 256"), salu(f"s_mov_b32 s{sWS+3}, 0x20000")]
    o += [salu(f"s_mov_b32 s{sC}, {CSCALE:#x}"), salu(f"s_mov_b32 s{sMASK}, 0xffff0000"),
          salu(f"s_mov_b32 s{sFAIL}, {0x1fffff if cfg.force_fallback else 0}"), salu(f"s_mov_b32 s{sCNT}, {4 + cfg.extra if cfg.extra else 3}"), *([salu("s_mov_b32 s3, 0x10000"), salu("s_mov_b32 s4, 0")] if cfg.extra else []),
          salu(f"s_lshl_b32 s{sVC}, s{sW}, 15"), salu(f"s_sub_u32 s{sVC}, s{sVC}, {RING}"),
          salu(f"s_lshl_b32 s{sT2}, s{sW}, 11")]
    if cfg.klin:
        assert cfg.ownk
        o += [V(f"v_lshlrev_b32 {u}, 1, {g}", [g], [u]),
              V(f"v_xor_b32 {t}, {u}, {l}", [u, l], [t]),
              V(f"v_lshlrev_b32 {t}, 4, {t}", [t], [t]),
              V(f"v_add_u32 v{vKR}, {RING}, {t}", [t], [f"v{vKR}"]),
              V(f"v_bfe_u32 {t}, v{vVD}, {4 if cfg.dmap == 'A' else 5}, 2", [f"v{vVD}"], [t]),
              V(f"v_lshlrev_b32 {u}, 1, {t}", [t], [u]),
              V(f"v_lshrrev_b32 v5, 3, {l}", [l], ["v5"]),
              V(f"v_xor_b32 {u}, {u}, v5", [u, "v5"], [u]),
              V(f"v_lshl_add_u32 {u}, {t}, 4, {u}", [t, u], [u]),
              V(f"v_bfe_u32 {t}, v{vVD}, {6 if cfg.dmap == 'A' else 4}, 1", [f"v{vVD}"], [t]),
              V(f"v_lshl_add_u32 {u}, {t}, 6, {u}", [t, u], [u]),
              V(f"v_lshlrev_b32 {u}, 4, {u}", [u], [u]),
              V(f"v_add_u32 {u}, {RING}, {u}", [u], [u]),
              V(f"v_add_u32 v{vKW}, s{sT2}, {u}", [u], [f"v{vKW}"])]
    else:
      o += [V(f"v_lshlrev_b32 {t}, 4, {l}", [l], [t]),
          V(f"v_add_u32 v{vKR}, {RING}, {t}", [t], [f"v{vKR}"]),
          V(f"v_add_u32 v{vKW}, s{sT2}, v{vKR}", [f"v{vKR}"], [f"v{vKW}"])]
    if cfg.ownk:
        o += [V(f"v_add_u32 v{vKC[0]}, s{sM0}, v{vKR}", [f"v{vKR}"], [f"v{vKC[0]}"])]
        o += [V(f"v_xor_b32 v{vKC[c]}, {1024*c}, v{vKC[0]}", [f"v{vKC[0]}"], [f"v{vKC[c]}"]) for c in range(1, 4)]
        o += [salu(f"s_sub_u32 s{sVC}, s{sVC}, s{sM0}")]
        if cfg.vc1: o += [V(f"v_and_b32 v{vPF}, 0xffff, v{vKC[0]}", [f"v{vKC[0]}"], [f"v{vPF}"])]
    o += [
          V(f"v_lshrrev_b32 {t}, 2, {l}", [l], [t]),
          V(f"v_lshlrev_b32 {t}, 7, {t}", [t], [t]),
          V(f"v_and_b32 {u}, 3, {l}", [l], [u])]
    assert cfg.noswap
    o += [V(f"v_lshl_add_u32 {t}, {u}, 4, {t}", [u, t], [t]),
          V(f"v_bfe_u32 {u}, {l}, 3, 1", [l], [u]),
          V(f"v_lshl_add_u32 v{vVA}, {u}, 6, {t}", [u, t], [f"v{vVA}"]),
          V(f"v_xor_b32 v{vVA+1}, 64, v{vVA}", [f"v{vVA}"], [f"v{vVA+1}"]),
          V(f"v_mov_b32 v{vHI}, 0", [], [f"v{vHI}"]), V(f"v_mov_b32 v{vLO}, -1", [], [f"v{vLO}"])]
    o += [V(f"v_lshrrev_b32 {t}, 4, {l}", [l], [t]),
          V(f"v_xor_b32 {t}, {t}, {l}", [t, l], [t]),
          V(f"v_bfe_u32 {t}, {t}, 1, 1", [t], [t]),
          V(f"v_add_u32 {t}, -1, {t}", [t], [t]),
          V(f"v_and_b32 {t}, 0x3f803f80, {t}", [t], [t])]
    o += [V(f"v_accvgpr_write_b32 a{aSA+k}, {t}", [t], [f"a{aSA+k}"]) for k in range(4)]
    o += [V(f"v_and_b32 {u}, 1, {l}", [l], [u]),
          V(f"v_mul_u32_u24 {u}, 0xaaaa, {u}", [u], [u]),
          V(f"v_add_u32 v{vIDX}, 0x4444, {u}", [u], [f"v{vIDX}"])]
    o += [V(f"v_accvgpr_write_b32 a{aL+k}, 0", [], [f"a{aL+k}"]) for k in range(12)]
    if cfg.qstage: o += stage2
    o += later[0]
    if cfg.pads: o.append(I("; BODY_ALIGN", "label"))
    for T in range(1):
        st = vKt[T]; ws = []
        for r in range(8):
            a = f"a{ST(T, 0) + r}"; x = f"v{st + r}"; tt = f"v{vKx[r % 2]}"
            if not cfg.kvg: o += [V(f"v_accvgpr_read_b32 {x}, {a}", [a], [x])]
            o += [V(f"v_lshlrev_b32 {tt}, 16, {x}", [x], [tt]),
                  V(f"v_and_b32 {x}, s{sMASK}, {x}", [x], [x]),
                  V(f"v_mul_f32 {tt}, s{sC}, {tt}", [tt], [tt]),
                  V(f"v_mul_f32 {x}, s{sC}, {x}", [x], [x]),
                  V(f"v_cvt_pk_bf16_f32 {x}, {tt}, {x}", [tt, x], [x])]
        for e in range(2):
            w = I(f"ds_write_b128 v{vKW}, {R('v', st + 4*e, 4)} offset:{T*8192 + e*KWE}", "dsw", rd=[f"v{vKW}", R('v', st + 4*e, 4)])
            o.append(w); ws += [Item(w)] * 4
        rb = []
        for e in range(0 if cfg.ownk else 2):
            d = R("a", ST(T, e), 4)
            x = I(f"ds_read_b128 {d}, v{vKW} offset:{T*8192 + e*1024}", "dsr", rd=[f"v{vKW}"], wr=[d])
            o.append(x); rb.append(Item(x))
        kwrites[T] = ws; readback[T] = rb
    o += later[1]
    pro_tail.extend(later[2] + [salu(f"s_add_u32 s{sQn+k}, s{sOr+k}, 65536") for k in range(4)])
    return o
pro_tail = []

def guard_text():
    a = L(2)
    t = []
    t.append("    ; ---- V magnitude guard: sums of squares must stay below 2^60; shared across the 4 waves")
    if cfg.stamps == 5: t.append("    s_memrealtime s[%d:%d]" % (sTSB + 18, sTSB + 19))
    t.append("    s_nop 7\n    s_nop 3")
    t += [f"    v_accvgpr_read_b32 v{k}, a{a+k}" for k in range(4)]
    t += [f"    v_and_b32 v{k}, 0x7fffffff, v{k}" for k in range(4)]
    t += ["    v_max_u32 v0, v0, v1", "    v_max3_u32 v0, v0, v2, v3",
          "    v_cmp_le_u32 vcc, 0x5d800000, v0",
          "    s_nop 1",
          "    s_cmp_lg_u64 vcc, 0",
          f"    s_cselect_b32 s{sT0}, 1, 0",
          f"    v_cmp_lt_u32 vcc, 0x6f800000, v{vHI}",
          f"    v_cmp_gt_u32 s[6:7], 1.0, v{vLO}",
          "    s_nop 1",
          "    s_or_b64 vcc, vcc, s[6:7]",
          f"    s_cselect_b32 s{sFAIL}, 0x1fffff, s{sFAIL}",
          f"    s_lshl_b32 s{sT1}, s{sW}, 2",
          f"    s_add_u32 s{sT1}, s{sT1}, {FLAGS}",
          f"    v_mov_b32 v0, s{sT0}", f"    v_mov_b32 v1, s{sT1}", f"    v_mov_b32 v2, {FLAGS}",
          "    ds_write_b32 v1, v0", "    s_waitcnt lgkmcnt(0)", "    s_barrier",
          "    ds_read_b128 v[4:7], v2", "    s_waitcnt lgkmcnt(0)",
          "    v_or3_b32 v4, v4, v5, v6", "    v_or_b32 v4, v4, v7", "    s_nop 0",
          f"    v_readfirstlane_b32 s{sT0}, v4", "    s_nop 1",
          f"    s_cmp_lg_u32 s{sT0}, 0",
          f"    s_cselect_b32 s{sFAIL}, 0x1fffff, s{sFAIL}"]
    return t
sVF = 49
def guard2_text():
    a = L(2)
    t = ["; ---- guard: |v| < 2^30 (sums of squares of this wave's quarter of V below 2^60) and every row sum in [1, 2^96]"]
    t += [f"v_accvgpr_read_b32 v{k}, a{a+k}" for k in range(4)]
    t += [f"v_and_b32 v{k}, 0x7fffffff, v{k}" for k in range(4)]
    t += ["v_max_u32 v0, v0, v1", "v_max3_u32 v0, v0, v2, v3", "v_cmp_le_u32 vcc, 0x5d800000, v0",
          f"v_cmp_gt_u32 s[6:7], 1.0, v{vLO}", "s_nop 0", "s_cmp_lg_u64 vcc, 0", f"s_cselect_b32 s{sVF}, 1, 0",
          f"v_cmp_lt_u32 vcc, 0x6f800000, v{vHI}", "s_nop 1", "s_or_b64 vcc, vcc, s[6:7]", f"s_cselect_b32 s{sFAIL}, 1, s{sFAIL}",
          f"s_or_b32 s{sFAIL}, s{sFAIL}, s{sVF}"]
    return t
FLAGS = RING + 3 * 8192 if cfg.tlds else RING
def finale():
    if cfg.stamps == 5 and cfg.vc1: pre_ = ["    s_memrealtime s[%d:%d]" % (sTSB + 18, sTSB + 19)]
    else: pre_ = []
    t = pre_ if (cfg.tlds or cfg.vc1 or cfg.fin2) else guard_text()
    if cfg.fin2: t = t + ["    s_waitcnt vmcnt(0)", "    s_barrier    ; every wave's stores are done: a slow-path rewrite cannot be overtaken"]
    if cfg.stamps in (1, 4, 5):
        t += ["    s_memrealtime s[%d:%d]" % (sTSB + 22, sTSB + 23), "    s_waitcnt vmcnt(0)",
              "    s_memrealtime s[%d:%d]" % (sTSB + 24, sTSB + 25), "    s_memtime s[%d:%d]" % (sTSB + 26, sTSB + 27)]
    if cfg.stamps:
        t += ["    s_load_dwordx2 s[4:5], s[0:1], 40", "    s_waitcnt lgkmcnt(0)",
              "    s_mov_b32 s6, 0x100000", "    s_mov_b32 s7, 0x20000",
              f"    s_lshl_b32 s{sT0}, s2, 2", f"    s_add_u32 s{sT0}, s{sT0}, s{sW}", f"    s_lshl_b32 s{sT0}, s{sT0}, 7",
              "    v_mov_b32 v1, 0"]
        for k in range(21):
            t += [f"    v_mov_b32 v0, s{sTSB + 2*k}", f"    buffer_store_dword v0, v1, s[4:7], s{sT0} offen offset:{4*k}"]
    if cfg.spin:
        t += ["L_spin:", "    s_memrealtime s[100:101]", "    s_waitcnt lgkmcnt(0)", "    s_sub_u32 s100, s100, s98", f"    s_cmp_lt_u32 s100, {cfg.spin * 100}", "    s_cbranch_scc1 L_spin"]
    if cfg.dbg >= 0:
        t += [f"    s_cmp_lg_u32 s2, {cfg.dbg}", "    s_cbranch_scc1 L_nodbg", f"    s_cmp_lg_u32 s{sW}, 0", "    s_cbranch_scc1 L_nodbg",
              "    s_load_dwordx2 s[4:5], s[0:1], 32", "    s_waitcnt lgkmcnt(0)", "    s_mov_b32 s6, 256", "    s_mov_b32 s7, 0x20000"]
        lst = [(2, 0), (3, 0), (4, 0), (5, 0), (9, 0), (8, 0), (7, 0), (6, 0), (11, 0), (12, 0), (10, 1), (13, 10)]
        for k, (a_, b_) in enumerate(lst):
            t += [f"    s_sub_u32 s{sT1}, s{sTSB + 2*a_}, s{sTSB + 2*b_}", f"    v_mov_b32 v0, s{sT1}", f"    buffer_store_dword v0, v1, s[4:7], 0 offen offset:{4*k}"]
        t += ["L_nodbg:"]
    t += [f"    s_cmp_eq_u32 s{sFAIL}, 0", "    s_cbranch_scc1 L_end"]
    sJ, sRow, sKb, sVt = sT0, sT1, sT2, sKo
    f = ["    ; ---- slow path: rows whose unshifted exponent sum left the safe range are redone with the true max",
         "    s_waitcnt vmcnt(0)"]
    f += [f"    v_and_b32 v{vVA+c}, 0xffff, v{vVA+c}" for c in range(NVA)]
    if cfg.fin2:
        sW_ = 3
        f += [f"    s_cmp_lg_u32 s{sVF}, 0", f"    s_cselect_b32 s{sW_}, 0, s{sW}", f"    s_cselect_b32 s4, 3, s{sW}", "L_fb_wave:", f"    s_mov_b32 s{sFAIL}, 0x1fffff",
              f"    s_lshl_b32 s{sOr+4}, s{sW_}, 12", f"    s_add_u32 s{sOr+4}, s{sOr+4}, {1280*256}"]
    else: sW_ = sW
    f += ["L_fb_next:",
          f"    s_ff1_i32_b32 s{sJ}, s{sFAIL}", f"    s_bitset0_b32 s{sFAIL}, s{sJ}",
          f"    s_cmp_gt_u32 s{sJ}, 4", f"    s_cselect_b32 s{sKb}, 1, 0", f"    s_sub_u32 s{sKb}, s{sJ}, s{sKb}",
          f"    s_lshr_b32 s{sRow}, s{sKb}, 2", f"    s_lshl_b32 s{sRow}, s{sRow}, 16",
          f"    s_and_b32 s{sKb}, s{sKb}, 3", f"    s_lshl_b32 s{sKb}, s{sKb}, 12", f"    s_add_u32 s{sRow}, s{sRow}, s{sKb}",
          f"    s_lshl_b32 s{sKb}, s{sW_}, 14", f"    s_add_u32 s{sRow}, s{sRow}, s{sKb}",
          f"    s_cmp_eq_u32 s{sJ}, 4", f"    s_cselect_b32 s{sRow}, s{sOr+4}, s{sRow}"]
    f += [f"    buffer_load_dwordx4 v[{4*s}:{4*s+3}], v{vQA}, s[{sQ}:{sQ+3}], s{sRow} offen offset:{off(s)}" for s in range(4)]
    def qk(dst, extra):
        r = [f"    buffer_load_dwordx4 v[{20+4*s}:{23+4*s}], v{vQA}, s[{sK}:{sK+3}], s{sKb} offen offset:{off(s)}" for s in range(4)]
        r += ["    s_waitcnt vmcnt(0)"]
        r += [f"    v_mfma_f32_16x16x32_bf16 v[{dst}:{dst+3}], v[{20+4*s}:{23+4*s}], v[{4*s}:{4*s+3}], {'0' if s == 0 else f'v[{dst}:{dst+3}]'}" for s in range(4)]
        r += [f"    s_add_u32 s{sKb}, s{sKb}, 4096", "    s_nop 9"]
        return r
    f += ["    v_mov_b32 v16, 0xff800000", f"    s_mov_b32 s{sKb}, 0", "L_fb_max:"]
    f += qk(36, None)
    f += ["    v_max3_f32 v16, v16, v36, v37", "    v_max3_f32 v16, v16, v38, v39",
          f"    s_cmp_lt_u32 s{sKb}, {HEADK}", "    s_cbranch_scc1 L_fb_max"]
    def xlane(reg, tmp, op):
        return [f"    v_mov_b32 v{tmp}, v{reg}", "    s_nop 1", f"    v_permlane16_swap_b32 v{reg}, v{tmp}", "    s_nop 1", f"    {op} v{reg}, v{reg}, v{tmp}",
                f"    v_mov_b32 v{tmp}, v{reg}", "    s_nop 1", f"    v_permlane32_swap_b32 v{reg}, v{tmp}", "    s_nop 1", f"    {op} v{reg}, v{reg}, v{tmp}"]
    f += xlane(16, 17, "v_max_f32")
    f += [f"    v_mul_f32 v17, s{sC}, v16", "    v_mov_b32 v18, 0"]
    f += [f"    v_mov_b32 v{64+k}, 0" for k in range(32)]
    f += [f"    s_mov_b32 s{sKb}, 0", f"    s_mov_b32 s{sVt}, 0", "L_fb_pv:"]
    f += qk(36, None) + qk(40, None)
    f += [f"    v_fma_f32 v{36+k}, v{36+k}, s{sC}, -v17" for k in range(8)]
    f += [f"    v_exp_f32 v{36+k}, v{36+k}" for k in range(8)]
    f += ["    s_nop 0"] + [f"    v_add_f32 v18, v18, v{36+k}" for k in range(8)]
    f += [f"    v_cvt_pk_bf16_f32 v{44+k}, v{36+2*k}, v{37+2*k}" for k in range(4)]
    f += [f"    v_add_u32 v{52+c}, s{sVt}, v{vVA+c}" for c in range(NVA)]
    for b in range(8):
        f += [f"    ds_read_b64_tr_b16 v[{48+2*blk}:{49+2*blk}], v{52+vsel(b)[0]} offset:{(b>>2)*32768 + blk*2048 + vsel(b)[2]}" for blk in range(2)]
        f += ["    s_waitcnt lgkmcnt(0)", f"    v_mfma_f32_16x16x32_bf16 v[{64+4*b}:{67+4*b}], v[48:51], v[44:47], v[{64+4*b}:{67+4*b}]"]
    f += [f"    s_add_u32 s{sVt}, s{sVt}, 4096", f"    s_cmp_eq_u32 s{sVt}, 32768", f"    s_cselect_b32 s{sVt}, 65536, s{sVt}",
          f"    s_cmp_lt_u32 s{sKb}, {HEADK}", "    s_cbranch_scc1 L_fb_pv"]
    f += xlane(18, 17, "v_add_f32")
    f += ["    v_rcp_f32 v18, v18", "    s_nop 7"]
    f += [f"    v_mul_f32 v{64+k}, v{64+k}, v18" for k in range(32)]
    f += [f"    v_cvt_pk_bf16_f32 v{96+k}, v{64+2*k}, v{65+2*k}" for k in range(16)]
    f += ["    s_nop 1"]
    for pb in range(0 if cfg.noswap else 4):
        f += [f"    v_permlane16_swap_b32 v{96+4*pb+h}, v{98+4*pb+h}" for h in range(2)]
    f += [f"    buffer_store_dwordx4 v[{96+4*pb}:{99+4*pb}], v{vOA}, s[{sO}:{sO+3}], s{sRow} offen offset:{64*pb}" for pb in range(4)]
    f += ["    s_waitcnt vmcnt(0)", f"    s_cmp_lg_u32 s{sFAIL}, 0", "    s_cbranch_scc1 L_fb_next"]
    if cfg.fin2: f += [f"    s_add_u32 s{sW_}, s{sW_}, 1", f"    s_cmp_le_u32 s{sW_}, s4", "    s_cbranch_scc1 L_fb_wave"]
    return t + f

def simulate(linear, waits, nops, marks):
    t = 0; pipe = 0; q = []; lastdone = 0; out = []; t0 = 0; first = False; valu = False; mem = False; cur = None; stall = 0; stl = []; idle = [0]
    for ins in linear:
        if ins.kind == "label": continue
        w = waits.get(id(ins))
        if w:
            if w[1] is not None and len(q) > w[1]:
                need = q[len(q) - w[1] - 1]
                if need > t: stall += need - t; t = need
            t += 0 if first else 4; first = False
        t += 4 * nops.get(id(ins), 0)
        if id(ins) in marks:
            out.append(t - t0); stl.append(stall); t0 = t; stall = 0; idle.append(0)
        k = ins.kind
        if k in MAT:
            idle[-1] += max(0, pipe - t)
            t = max(t, pipe); pipe = t + 16; t += 8; first = True; valu = False; mem = False
        else:
            c = ins.cost
            if k in ("salu", "bar", "br", "wait") and first: c -= 4
            if k in LGKM + VM and valu: c += 8
            elif k in LGKM + VM and mem: c += 4
            if k in LGKM + VM: mem = True
            if k in LGKM:
                svc = 32 if k == "dsw" else (16 if ("b128" in ins.text or cfg.noswap) else 8)
                lastdone = max(lastdone + svc, t + cfg.ldslat); q.append(lastdone)
            if k in VALU: valu = True
            t += c; first = False
    out.append(t - t0); stl.append(stall)
    sys.stderr.write(f"sim cycles/period: {out[1:]}\nsim lgkm stalls : {stl[1:]}\nunused issue cyc: {idle[1:]}\n")

def gen_items(T):
    curT[0] = T
    items_softmax(T); items_kread(T)
    if T % 8 == 0 and T > 0: items_vtoggle(T)
    items_vread(T)
def bar_needs(T):
    pub = (T + 1,) if T < 15 else (T + 1, T + 2)
    nd = [x.ins for t in pub for x in kwrites[t]]
    if T in vdmas and T > 0 and f"V{T}" not in BARm: nd += vdmas[T]
    done = (T - 1, T) if T >= 13 else (T - 1,) if T >= 1 else ()
    nd += [kreads[t, blk, s_].ins for t in done for blk in range(2) for s_ in range(4) if (t, blk, s_) in kreads]
    nd += [x.ins for t in done if t in readback for x in readback[t]]
    BARm[T].needs = nd
def build():
    C = cfg.CUT; NT = 48 + C + 2
    for T in range(NT + 2): mk_step(T)
    BARm[-1] = I("s_barrier", "bar"); BARm["V0"] = I("s_barrier", "bar")
    for T in range(1, cfg.nvbar): BARm[f"V{T}"] = I("s_barrier", "bar")
    for T in list(range(0, 15, 2)) + list(range(1, NT + 2, 2)): BARm[T] = I("s_barrier", "bar")
    pro = prologue()
    pro.append(BARm[-1]); pro += stamp(2) + pro_tail
    bb, start = [], {}
    for T in range(NT):
        start[T] = len(bb); bb += backbone_period(T)
    backbone_period(NT)
    fixed = {id(bar_spot(T)): [BARm[T]] for T in range(NT) if T in BARm}
    fixed[id(QKm[1, 0, 0, 0] if cfg.sm0 else QKm[0, 1, 2, 3])] = [BARm["V0"]]
    for T in range(1, cfg.nvbar): fixed[id(start_of(T + 1))] = [BARm[f"V{T}"]]
    for T, txt in ((1, "first sweep over the keys: 5 row blocks per wave, K is scaled and V streamed in on the way"),
                   (16, "row blocks 0,1 start their second sweep; 2,3 follow three key steps later")):
        notes[T] = I("    ; ---- " + txt, "label")
    labL = I("L_loop:", "label"); labL2 = I("; second instance", "label"); labL3 = I("; third instance", "label")
    def chk():
        pre = ""
        if cfg.stamps == 1:
            r = sTSB + 12
            pre = "".join(f"s_mov_b64 s[{r+2*k+2}:{r+2*k+3}], s[{r+2*k}:{r+2*k+1}]\n    " for k in (2, 1, 0)) + f"s_memrealtime s[{r}:{r+1}]\n    "
        if not cfg.extra: return I(pre + f"s_sub_u32 s{sCNT}, s{sCNT}, 1\n    s_cbranch_scc1 L_tail", "br", cost=8)
        return I(pre + f"s_sub_u32 s{sCNT}, s{sCNT}, 1\n    s_cmp_eq_u32 s{sCNT}, 0\n    s_cbranch_scc1 L_tail", "br")
    chk1, chk2 = chk(), chk()
    brL, brL2 = I("s_branch L_loop", "br"), I("s_branch L_loop", "br")
    ctl = {start[16 + C]: stamp(5) + [labL], start[32]: [chk1], start[32 + C]: [brL, labL2], start[48]: [chk2], start[48 + C]: [brL2, labL3]}
    marks, post = ({}, ctl) if cfg.shadowbr else (ctl, {})
    marks[start[12]] = [I("L_p12:", "label")]
    for T in notes: firstm[T].text = notes[T].text.strip() + "\n    " + firstm[T].text
    if cfg.stamps == 1:
        marks[start[1]] = stamp(3); marks[start[16]] = stamp(4) + stamp(10, True)
    if cfg.stamps == 2:
        for T in range(16 + C, 48 + C): marks.setdefault(start[T], []).append(stamp((T - C) % 16, True, 2)[0])
    if cfg.stamps == 3:
        for T in range(0, min(20, 16 + C - cfg.st3)): marks.setdefault(start[T + cfg.st3], []).insert(0, stamp(T, False, 3)[0])
        pro.insert(1, stamp(20, False, 3)[0])
    for T in range(16): items_loads(T)
    for T in range(NT):
        gen_items(T)
        if T % 16 == C and T > 16: items_rowadv(T)
        if cfg.repf:
            if T == cfg.pf1: items_codepf(T, "L_p12")
            if T == cfg.pf2: items_codepf(T, "L_loop")
            if T > 32 and T % 16 == cfg.pf3: items_codepf(T, "L_tail")
    for base in (16, 32): items_qpf(base)
    for T in range(1, NT + 2): curT[0] = T; items_kwrite(T)
    curT[0] = -50; items_qjit()
    if cfg.vc1: items_vcheck()
    for T in range(NT):
        if any(islast(T, q) for q in act(T)):
            curT[0] = T + 1000
            items_epilogue(T, ctl[start[(T + 1) // 16 * 16 + C]][0])
    BARm[-1].needs = [x.ins for x in kwrites[0]]
    BARm["V0"].needs = list(vdmas[0])
    for T in range(1, cfg.nvbar): BARm[f"V{T}"].needs = list(vdmas[T])
    for T in range(NT):
        if T in BARm: bar_needs(T)
    stream = list(pro)
    Sched(stream).run(bb, items, fixed, marks, post=post)
    p = {id(x): k for k, x in enumerate(stream)}
    ref = {(it.T[0] - 16, it.T[1]): p[id(it.ins)] < p[id(brL)] for it in items if it.placed and 32 + C - 2 <= it.T[0] < 48}
    cut = ctl[start[16 + C]][0]
    for it in items:
        r = ref.get(it.T)
        if r is True: it.dead = list(it.dead) + [cut]
        elif r is False: it.after.append((labL, 0))
        it.placed = False
    stream = list(pro)
    sc = Sched(stream)
    sc.run(bb, items, fixed, marks, post=post)
    p = {id(x): k for k, x in enumerate(stream)}
    iL, iC1, iBr, iL2, iC2, iBr2 = (p[id(x)] for x in (labL, chk1, brL, labL2, chk2, brL2))
    segP = stream[:iL]; segL = stream[iL:iC1 + 1]; segB = stream[iC1 + 1:iBr + 1]
    one, two = stream[iL:iBr + 1], stream[iL2:iBr2 + 1]
    a = [x.text for x in one[1:]]; b = [x.text for x in two[1:]]
    if a != b:
        for k, (x, y) in enumerate(zip(a, b)):
            if x != y: sys.stderr.write(f"loop mismatch at {k}: {x} | {y}\n"); break
        raise SystemExit("loop instances differ")
    mp = {id(y): x for x, y in zip(one, two)}
    for x, y in zip(one, two): x.needs = x.needs + [mp.get(id(z), z) for z in y.needs]
    def keyed(its):
        cnt, out = {}, {}
        for it in its:
            k = (it.T[0], it.ins.text); cnt[k] = cnt.get(k, 0) + 1; out[k + (cnt[k],)] = it
        return out
    old = {k: it for k, it in keyed(items).items() if it.placed and p[id(it.ins)] <= iC2}
    TFIN[0] = 48; TE = 48 + DL
    for d in (QKm, PVm, SMm):
        for k in [k for k in d if k[0] >= 48 and (k[0] >= TE or (k[2] if d is not SMm else 2 * k[1]) not in (2, 3))]: del d[k]
    for T in range(TE - 1 if TE % 2 == 0 else TE, NT + 2): BARm.pop(T, None)
    for j in range(32):
        buf = Kf(0, 0) + 4 * (j % 8)
        VCm[j] = mfma(L(2), buf, buf, j == 0, dk="a")
    tbb = []
    for T in range(48, TE + 1): tbb += backbone_period(T)
    items.clear(); pwriters.clear(); lprev.clear()
    for k in [k for k in unit_free if k[0] == 32]: del unit_free[k]
    for T in range(46, TE): gen_items(T)
    for T in range(48, TE): curT[0] = T; items_kwrite(T)
    endT = I("; end of tail", "label"); endA = I("; group A stored", "label")
    curT[0] = 5000
    if DL: items_epilogue(47, tbb[len(tbb) - cfg.nvc - 20])
    items_epilogue(TE - 1, endT)
    if not cfg.vc1: va = add(valu(f"v_add_u32 v{vVD}, s{sVC}, v{vKR}", [f"v{vKR}"], [f"v{vVD}"]), dead=[PVm[TE - 1, 2, act(TE - 1)[0]]], tag="vc")
    for j in range(cfg.nvc):
        d = R("a", Kf(0, 0) + 4 * (j % 8), 4)
        lastu = [(QKm[TE - 1, (j % 8) // 4, act(TE - 1)[-1], j % 4], 0)] if j < 8 else [(VCm[j - 8], 0)]
        add(I(f"ds_read_b128 {d}, v{vVD} offset:{j*1024}", "dsr", rd=[f"v{vVD}"], wr=[d]), after=[(va.ins, 0)] + lastu, dead=[VCm[j]], tag="vc", prio=-6)
    if cfg.vc1:
        fl = P(1, 4)
        x = I(f"buffer_load_ubyte v{fl}, off, s[{sWS}:{sWS+3}], s2 sc1", "vld", wr=[f"v{fl}"], cost=8); x.fast = True
        add(x, dead=[firstm[49]], tag="vc")
        gx = I("\n    ".join([f"v_cmp_ne_u32 s[6:7], 0, v{fl}",
                               f"v_cmp_lt_u32 vcc, 0x6f800000, v{vHI}",
                               f"v_cmp_gt_u32 s[50:51], 1.0, v{vLO}    ; some l < 1", "s_nop 1",
                               "s_or_b64 vcc, vcc, s[6:7]", "s_or_b64 vcc, vcc, s[50:51]", f"s_cselect_b32 s{sFAIL}, 0x1fffff, s{sFAIL}"]),
               "br", rd=[f"v{vHI}", f"v{vLO}", f"v{fl}"], wr=["vcc", f"v{fl}"], cost=40)
        gx.block = True
        add(gx, after=[(x, 0)] + [(z, 0) for z in lprev] + [x_.after[0] for x_ in tail_stores[-2:]], dead=[endT], tag="ep", prio=5000)
        for x in tail_stores[-2:]: x.after.append((gx, 0))
    elif cfg.fin2:
        gx = I("\n    ".join(guard2_text()), "valu", rd=[f"v{vHI}", f"v{vLO}", R("a", L(2), 4)], wr=["v[0:3]", "vcc"], cost=72)
        add(gx, after=[(VCm[cfg.nvc - 1], 12)] + [(z, 0) for z in lprev], dead=[endT], tag="ep", prio=-5000)
    elif cfg.tlds:
        assert TE % 4 == 3
        gx = I("\n".join(guard_text()).strip(), "br", rd=[f"v{vHI}", f"v{vLO}", R("a", L(2), 4)], wr=["v[0:7]", "vcc"], cost=200)
        git = add(gx, after=[(VCm[cfg.nvc - 1], 0)] + [(z, 0) for z in lprev], dead=[endT], tag="ep", prio=-5000)
        for x in tail_stores[cfg.exk:]:
            x.after.append((gx, 0)); x.dabs = None
    alias = {}
    for k, it in keyed(items).items():
        if k in old: alias[id(it.ins)] = old[k].ins; it.ins = old[k].ins; it.placed = True
    tfixed = {id(bar_spot(T)): [BARm[T]] for T in range(48, TE) if T in BARm}
    known = {id(x) for x in stream[:iC2 + 1]} | {id(x) for x in tbb} | {id(it.ins) for it in items} | {id(x) for l_ in tfixed.values() for x in l_}
    for it in items: it.after = [(alias.get(id(a_), a_), d_) for a_, d_ in it.after if id(alias.get(id(a_), a_)) in known]
    for T in range(48, TE):
        if T in BARm: bar_needs(T)
    tstream = stream[:iC2 + 1]
    labT = I("L_tail:", "label")
    tm = {0: [labT] + stamp(2, False, 5)}
    if cfg.stamps == 5:
        for T in range(49, TE + 1): tm[tbb.index(firstm[T])] = stamp(T - 46, False, 5)
        if cfg.nvc: tm[tbb.index(VCm[0])] = stamp(8, False, 5)
    if cfg.wbl2:
        pos_ = {1: tbb.index(firstm[TE]), 2: 1, 3: tbb.index(firstm[TE - 1])}[cfg.wbl2]
        tm.setdefault(pos_, []).append(I(f"s_lshl_b32 s{sT1}, s2, 2\n    s_add_u32 s{sT1}, s{sT1}, s{sW}\n    s_and_b32 s{sT1}, s{sT1}, {cfg.wbmask}\n    s_cbranch_scc1 L_nowb\n    buffer_wbl2 sc1\nL_nowb:", "br"))
    tp = {0: tm.pop(0)} if cfg.shadowbr else {}
    Sched(tstream).run(tbb, items, tfixed, tm, endins=endT, post=tp)
    segT = tstream[iC2 + 1:]
    assert segT[0] is labT, segT[:3]
    assert all(it.placed for it in items)
    for x in segT: x.needs = [mp.get(id(z), z) for z in x.needs]
    linear = segP + segL + segB + segL + segB + segL + segT
    waits = insert_waits(linear)
    nops = fix_hazards(linear, waits)
    sys.stderr.write(f"instr: P {len(segP)} L {len(segL)} B {len(segB)} T {len(segT)}; waits {len(waits)}; nops {sum(nops.values())} at {len(nops)} sites\n")
    mk = {id(stream[p[id(bb[start[T]])]]): T for T in range(32 + C)}
    mk.update({id(firstm[T]): T for T in range(48, TE + 1)})
    simulate(segP + segL + segB + segL + segT, waits, nops, mk)
    loop = render(segL, waits, nops) + render(segB, waits, nops)
    if cfg.drop:
        pat = {"v": "ds_read_b64_tr", "k": "ds_read_b128", "w": "ds_write", "s": "v_smfmac", "e": "v_exp", "c": r"v_cvt_pk_bf16_f32 v1[6-9]\d, v20", "q": "v_accvgpr_(write_b32 a\d+, v|mov)",
               "m": "v_mul_f32", "t": "buffer_store", "l": "buffer_load", "b": "s_barrier"}
        for ch in cfg.drop: loop = [x for x in loop if not re.search(pat[ch], x)]
    sk = []
    if cfg.skew:
        sk = [f"    s_mov_b32 s{sT1}, s{sW}" if cfg.skew > 0 else f"    s_lshr_b32 s{sT1}, s{sW}, 1", "L_sk:", f"    s_cmp_eq_u32 s{sT1}, 0", "    s_cbranch_scc1 L_sk2", f"    s_sub_u32 s{sT1}, s{sT1}, 1", f"    s_nop {abs(cfg.skew)}", "    s_branch L_sk", "L_sk2:"]
    body = render(segP, waits, nops) + sk + loop + render(segT, waits, nops)
    return body

HEADER = open("standalone__mha_softmax__near_ridge.s.ref").read().split("; Override launch")[0]
def add_pads(lines):
    import subprocess
    lines = [x for l in lines for x in l.split("\n")]
    src = '.amdgcn_target "amdgcn-amd-amdhsa--gfx950"\n.text\n' + "\n".join(lines) + "\nL_end:\n s_endpgm\n"
    open("_pads.s", "w").write(src)
    subprocess.run(["clang", "-x", "assembler", "-target", "amdgcn-amd-amdhsa", "-mcpu=gfx950", "-c", "_pads.s", "-o", "_pads.o"], check=True)
    d = subprocess.run(["llvm-objdump", "-d", "--mcpu=gfx950", "_pads.o"], capture_output=True, text=True).stdout
    sizes = [4 * len(m.group(1).split()) for m in re.finditer(r"// [0-9A-F]+: ((?:[0-9A-F]{8} ?)+)", d)]
    isins = lambda x: x.startswith("    ") and not x.strip().startswith(";")
    assert len(sizes) == sum(map(isins, lines)) + 1
    warm = ["    s_mov_b64 vcc, -1"] + [y for w in range(3) for y in (f"    s_cmp_eq_u32 s{sW}, {w}", f"    s_cbranch_scc1 L_pad{w}")] + ["    s_branch L_pad3", "L_back:", "    s_mov_b64 vcc, 0"]
    out, k, addr, want, npad, prev_m, stop = [], 0, None, [], 0, False, False
    for x in lines:
        if x.strip() == "; BODY_ALIGN":
            out += ["    s_mov_b64 vcc, 0", "    s_branch L_body", ".p2align 12", "L_body:"]; addr = 0
            want = [p * 4096 + j * cfg.padoff for p in range(1, 32) for j in range(cfg.pads)]
            continue
        if x.strip() == "; WARM_UP":
            out += ["    ; instruction prefetch: while waiting for the next rows, hop once over the never-taken branches L_pad*",
                    "    ; (first line of every 4 KB page of this code; otherwise each first page crossing stalls the fetch)"]
            out += warm; addr += 4 * (len(warm) - 1); k += 0; continue
        if "V magnitude guard" in x or "slow path" in x or "---- guard" in x: stop = True
        if isins(x):
            if addr is not None and not stop and addr >= want[0] and ((prev_m and not x.strip().startswith("s_")) or addr >= want[0] + 48):
                out += [f"L_pad{npad}:", f"    s_cbranch_vccnz PADNEXT{npad}"]; npad += 1; addr += 4; want.pop(0)
            if addr is not None: addr += sizes[k]
            k += 1
            prev_m = x.strip().startswith(("v_mfma", "v_smfmac"))
        out.append(x)
    assert npad >= 4
    return [re.sub(r"PADNEXT(\d+)", lambda m: f"L_pad{int(m.group(1)) + 4}" if int(m.group(1)) + 4 < npad else "L_back", x) for x in out]

def main():
    body = build()
    if cfg.pads:
        fin = finale()
        body = add_pads(body + fin)
        globals()["finale"] = lambda: []
    out = HEADER + f"""; Design (hand-written via my own scheduling script):
;  * one workgroup (4 waves, 512 registers each) per (batch, head); v_mfma_f32_16x16x32_bf16 throughout.
;  * V stays in LDS (128 KB).  K is scaled once by log2(e)/sqrt(D), kept in registers (a quarter per wave) and
;    re-published to the other waves through a 32 KB LDS ring.  Every wave walks 16-row blocks of Q
;    (5 at a time in the first sweep over the keys, then 4); S^T = K Q^T, P = exp2(S^T), O^T += V^T P,
;    the row sums come from a sparse MFMA with a ones pattern.
;  * softmax guard: the fast path uses shift 0 instead of the row maximum (softmax is shift invariant).  It is
;    only kept when every row sum lies in [1, 2^96] and every |v| < 2^30 (checked at run time, NaN/inf included),
;    which rules out overflow and any loss from underflow; otherwise the wave recomputes its rows in the slow
;    path at the end, which subtracts the true row maximum.
; @launch grid=(256,1,1) block=(256,1,1) lds=163840
.amdgcn_target "amdgcn-amd-amdhsa--gfx950"
.text
.globl {KNAME}
.p2align 8
.type {KNAME},@function
{KNAME}:
""" + "\n".join(body) + "\n" + "\n".join(finale()) + f"""
L_end:
    s_endpgm
.section .rodata,"a"
.p2align 6
.amdhsa_kernel {KNAME}
  .amdhsa_next_free_vgpr 512
  .amdhsa_next_free_sgpr 102
  .amdhsa_accum_offset 256
  .amdhsa_group_segment_fixed_size 0
  .amdhsa_kernarg_size 48
  .amdhsa_user_sgpr_count 2
  .amdhsa_user_sgpr_kernarg_segment_ptr 1
  .amdhsa_system_sgpr_workgroup_id_x 1
.end_amdhsa_kernel
"""
    open(sys.argv[1], "w").write(out)
main()
```

```python
import sys, struct, math, re
from core import *

class Cfg:
    dmap = "A"
    LK = 3
    LV = 2
    delta = 3
    noswap = True
    busy64 = True
    oflagsFA = "="
    oflagsFB = "="
    wr64 = False
    CUT = 10
    leadT = 11
    ta_slow = 250
    ta_fast = 90
    v0first = True
    dsmargin = 7
    st3 = 0
    jitfirst = True
    tq0 = 2
    tstep = 16
    st0 = 60
    tqstep = 10
    ownk = True
    fin2 = True
    g2k = 6
    vck = 0
    pkb = 0
    emptybar = False
    shadowbr = True
    splitq = True
    lateA = 0
    lateB = 0
    wmargin = 7
    ymargin = 0
    touch = 0
    toucho = False
    touchkv = False
    order = ""
    nvbar = 1
    pads = 1
    padoff = 128
    k2g = 1
    ksT = 0
    pairld = False
    vc1 = False
    tlds = True
    tpk = True
    tx0 = 8
    txstep = 6
    exk = 5
    nvc = 32
    kvg = True
    ksd = 0
    gs = "246789"
    klin = True
    stE = 50
    drop = ""
    skew = 0
    repf = False
    early0 = 2
    e2T = 11
    e0g = 3
    pf1 = 8
    pf2 = 23
    pf3 = 9
    wbl2 = 0
    wbmask = 0x3e3
    pairst = False
    grow = 0
    stF0 = 20
    stFstep = 12
    jitstep = 2
    qstage = True
    sm0 = True
    tl0 = 6
    tlstep = 5
    wrn = 2
    kdoff = 14
    kstep = 8
    ldslat = 110
    qpf0 = 8
    lead = 0
    qflags = " nt"
    oflags = ""
    kvflags = " nt"
    pfflags = " nt"
    pf_period = 11
    stamps = 0
    spin = 0
    extra = 0
    dbg = -1
    force_fallback = False
    vahead = 2
    codepf = True
cfg = Cfg()
for a in sys.argv[2:]:
    k, v = a.split("=", 1)
    old = getattr(cfg, k)
    setattr(cfg, k, (v == "1") if isinstance(old, bool) else type(old)(v.replace("+", " ")))

if cfg.vc1: cfg.nvc = 0
KNAME = "standalone__mha_softmax__near_ridge_kernel"
SQ, SK, D = 1312, 512, 128
HEADQ = SQ * D * 2
HEADK = SK * D * 2
RING = 131072
CSCALE = struct.unpack("<I", struct.pack("<f", math.log2(math.e) / math.sqrt(D)))[0]

vO, vP, vS, vVf = 0, 160, 200, 208
vVA = 224
vHI, vLO = 226, 227
vKR, vKW, vQA, vOA, vPF, vIDX, vVD = 228, 229, 230, 231, 232, 233, 234
if cfg.ownk:
    assert cfg.noswap and not cfg.repf
    vOA = vQA if cfg.dmap == "A" else 255
    vKC = [228, 229, 235, 231]; vKW = 254
sX = [28, 46, 47, 48]
vT = 235
vKt = [236, 244]; vKx = [252, 253]
vW = [236, 240, 244]
vRI = 248
vL0, vL1, vDUM = 253, 254, 255
if vOA == 255:
    assert not cfg.vc1
    vDUM = 6
aQ, aST, aKf, aL, aSA = 0, 80, 208, 240, 252
def O(qs, b): return vO + 32 * qs + 4 * b
def P(T, qs): return vP + 20 * (T % 2) + 4 * qs
def S(c): return vS + 4 * (c % 2)
def Vf(f): return vVf + 4 * (f % 4)
def Q(qs, s): return aQ + 16 * qs + 4 * s
def Kf(blk, s): return aKf + 16 * blk + 4 * s
def ST(j, e): return aST + 8 * (j % 16) + 4 * e
def KA(T, blk, s): return ST(T, blk) if (cfg.ownk and s == 0) else Kf(blk, s)
def L(p): return aL + 4 * p
sQ, sK, sV, sO = 8, 12, 16, 20
sW = 24; sC = 25; sMASK = 26; sFAIL = 27; sBIT = 28; sCNT = 29
sOr = 30
sQn = 35
sKo, sVo, sM0 = 40, 41, 42
sT0, sT1, sT2 = 43, 44, 45
sLO, sRNG = 46, 47
sTS = 48
def off(s): return 64 * s if cfg.dmap == "A" else 128 * (s >> 1) + 16 * (s & 1)
GST = 16 if cfg.dmap == "A" else 32

DL = cfg.delta
TFIN = [1 << 30]
def act(T):
    if T < 0: return []
    if T < 16: return [0, 1, 2, 3, 4]
    if T >= TFIN[0] + DL: return []
    if T >= TFIN[0]: return [2, 3]
    if T < 16 + DL: return [0, 1]
    if DL and T >= 32 and (T % 16 == 0 or T % 16 == DL - 1): return [2, 3, 0, 1]
    return [0, 1, 2, 3]
def n_of(T): return len(act(T))
def phase(qs): return DL if qs in (2, 3) else 0
def isfirst(T, qs): return T == 0 or (T >= 16 and T % 16 == phase(qs))
def islast(T, qs): return T == 15 or (T > 16 + DL and (T + 1) % 16 == phase(qs))
def nextstart(T, qs):
    return 16 + phase(qs) if T == 15 else T + 1

def mfma(d, a, b, zero, dk="v", ak="a", bk="a"):
    D_, A_, B_ = R(dk, d, 4), R(ak, a, 4), R(bk, b, 4)
    return I(f"v_mfma_f32_16x16x32_bf16 {D_}, {A_}, {B_}, {'0' if zero else D_}", "mfma",
             rd=[A_, B_] + ([] if zero else [D_]), wr=[D_], acc=not zero)
def valu(text, rd, wr, kind="valu"): return I(text, kind, rd=rd, wr=wr)
def salu(text, rd=(), wr=()): return I(text, "salu", rd=rd, wr=wr)

class Item:
    __slots__ = ("ins", "after", "dead", "prio", "early", "tag", "placed", "T", "seq", "soft", "doff", "pace", "dabs", "nb")
    def __init__(self, ins, after=(), dead=None, early=None, tag="", prio=0, doff=0, pace=None):
        self.doff = doff; self.pace = pace; self.dabs = None; self.nb = None
        self.ins = ins; self.after = list(after); self.dead = dead; self.early = early
        self.tag = tag; self.prio = prio; self.placed = False

QKm, PVm, SMm, BARm, VCm = {}, {}, {}, {}, {}
def chain(T, g):
    a = act(T)
    if T == 15: return (g % 2, a[g // 2])
    if T == 0 and cfg.sm0: return [(0, 0), (1, 0), (0, 1), (1, 1), (0, 2), (1, 2), (0, 3), (0, 4), (1, 3), (1, 4)][g]
    return (g // len(a), a[g % len(a)])
def mk_step(T):
    for g in range(2 * n_of(T)):
        blk, qs = chain(T, g)
        for s in range(4):
            QKm[T, blk, qs, s] = mfma(S(g), KA(T, blk, s), Q(qs, s), s == 0)
    for b in range(8):
        for qs in act(T):
            PVm[T, b, qs] = mfma(O(qs, b), Vf(b), P(T, qs), isfirst(T, qs), ak="v", bk="v")
    for p in pairs(T):
        d, b = R("a", L(p), 4), R("v", P(T, pair_lo(p)), 8)
        SMm[T, p] = I(f"v_smfmac_f32_16x16x64_bf16 {d}, {R('a', aSA, 4)}, {b}, v{vIDX}", "smf",
                      rd=[d, b, R("a", aSA, 4), f"v{vIDX}"], wr=[d], acc=True)
def pair_of(qs): return 2 if qs == 4 else qs // 2
def pairs(T):
    out = []
    for qs in act(T):
        if pair_of(qs) not in out: out.append(pair_of(qs))
    return out
def pair_lo(p): return 3 if p == 2 else 2 * p
def pvlist(T): return [PVm[T, b, qs] for b in range(8) for qs in act(T)]
firstm = {}
notes = {}
VC1 = {(T, dh): mfma(Kf(1, 0), Kf(0, 0), Kf(0, 0), T == 0 and dh == 0, dk="a") for T in range(16) for dh in range(2)}

def backbone_period(T):
    tail = n_of(T) == 0
    pv = pvlist(T - 2)[-4:] + (pvlist(T - 1) if tail else pvlist(T - 1)[:-4])
    sm = [SMm[T - 1, p] for p in pairs(T - 1)]
    out = []
    if tail:
        out += pv[:6] + sm + pv[6:] + [VCm[j] for j in range(cfg.nvc)]
        for k, m in enumerate(out): m.pref = "T" if (k < 4) else "D"
        firstm[T] = out[0]
        return out
    n = n_of(T); G = 2 * n
    lead = cfg.leadT if T == 16 else cfg.lead if (T > 16 and any(islast(T - 1, q) for q in act(T - 1))) else 0
    if lead:
        nl = 4 * lead
        head = pv[:nl]; pv = pv[nl:]
        if lead >= 2:
            head = head[:4] + [sm[0]] + head[4:8] + sm[1:] + head[8:]
            sm = []
        for k, m in enumerate(head): m.pref = "T" if k < 4 else "D"
        out += head
    if T == 1: cnt = [0] + [4] * (G - 1)
    elif len(pv) < 4 * G and not lead:
        r = len(pv) - 4; cnt = [min(4, len(pv))] + [r // (G - 1) + (1 if g < r % (G - 1) else 0) for g in range(G - 1)] if len(pv) >= 4 else [0] * G
    else:
        cnt = [len(pv) // G + (1 if g < len(pv) % G else 0) for g in range(G)]
    smpos = {}
    if sm:
        early = any(islast(T - 1, q) for q in act(T - 1)) and len(sm) > 1
        spots = [0 if early else 1, G // 2 + 1, G - 2]
        for m, g in zip(sm, spots): smpos.setdefault(min(g, G - 1), []).append(m)
    if cfg.vc1 and 1 <= T < 16:
        for dh in range(2):
            smpos.setdefault(6 + 2 * dh, []).append(VC1[T, dh])
            if T == 1: smpos.setdefault(2 + 2 * dh, []).append(VC1[0, dh])
    k = 0
    for g in range(G):
        blk, qs = chain(T, g)
        grp = [QKm[T, blk, qs, s] for s in range(4)] + pv[k:k + cnt[g]]
        k += cnt[g]
        L_ = len(grp)
        for j, m in enumerate(grp):
            m.pref = "T" if (L_ >= 8 and j % 2 == 0 and j < 8) or (L_ < 8 and j in {4: (0, 1, 2, 3), 5: (0, 1, 3, 4), 6: (0, 2, 3, 5), 7: (0, 2, 4, 6)}[L_]) else "D"
        out += grp
        for m in smpos.get(g, []):
            m.pref = "D"; out.append(m)
    firstm[T] = out[0]
    return out

items = []
glue = {}
curT = [-200]
ordn = {}
def add(ins, **kw):
    it = Item(ins, **kw); ordn[curT[0]] = ordn.get(curT[0], 0) + 1; it.T = (curT[0], ordn[curT[0]]); it.seq = len(items); items.append(it); return it

cvts = {}
def items_softmax(T):
    n = n_of(T)
    for g in range(2 * n):
        blk, qs = chain(T, g)
        last = QKm[T, blk, qs, 3]
        if g + 2 < 2 * n: nxt = QKm[(T,) + chain(T, g + 2) + (0,)]
        elif n_of(T + 1): nxt = QKm[(T + 1,) + chain(T + 1, g + 2 - 2 * n) + (0,)]
        else: nxt = None
        use = PVm[T, 0, qs]
        ng = QKm[(T,) + chain(T, g + 1) + (0,)] if g + 1 < 2 * n else firstm[T + 1]
        sms = [SMm[T, p] for p in pairs(T) if pair_lo(p) <= qs <= pair_lo(p) + 1]
        ex = []
        for r in range(4):
            v = f"v{S(g)+r}"
            ex.append(add(valu(f"v_exp_f32 {v}, {v}", [v], [v], "trans"), after=[(last, 8), (ng, 0)] + ([(ex[-1].ins, 0)] if ex else []),
                          dead=[nxt, use], tag="sm"))
        for h in range(2):
            d = f"v{P(T, qs) + 2*blk + h}"; a, b = f"v{S(g)+2*h}", f"v{S(g)+2*h+1}"
            aft = [(ex[2*h].ins, 1), (ex[2*h+1].ins, 1)]
            if qs in act(T - 2): aft.append((PVm[T - 2, 7, qs], 0))
            aft += [(SMm[T - 2, p], 0) for p in pairs(T - 2) if pair_lo(p) <= qs <= pair_lo(p) + 1]
            it = add(valu(f"v_cvt_pk_bf16_f32 {d}, {a}, {b}", [a, b], [d]), after=aft, dead=[nxt, use] + sms, tag="sm")
            pwriters.setdefault((T, P(T, qs)), []).append(it)
pwriters = {}

kreads = {}
def bar_pub(T):
    return BARm[T - 1] if T < 16 else BARm[(T // 2) * 2 - 1]
def items_kread(T):
    n = n_of(T)
    for blk in range(2):
        for s in range(4):
            if cfg.ownk and s == 0 and T >= 16: continue
            d = R("a", KA(T, blk, s), 4)
            if cfg.ownk: ins = I(f"ds_read_b128 {d}, v{vKC[s]} offset:{(T % 4) * 8192 + blk * 4096}", "dsr", rd=[f"v{vKC[s]}"], wr=[d])
            else: ins = I(f"ds_read_b128 {d}, v{vKR} offset:{(T % 4) * 8192 + (4*blk+s) * 1024}", "dsr", rd=[f"v{vKR}"], wr=[d])
            aft = [(bar_pub(T), 0)]
            if T >= 1 and not (cfg.ownk and s == 0): aft.append((QKm[T - 1, blk, act(T - 1)[-1], s], 0))
            dl = [QKm[T, blk, act(T)[0], 0]]
            if blk == 1 and T % 2 == 1 and T != 15 and T in BARm: dl.append(BARm[T])
            kreads[T, blk, s] = add(ins, after=aft, dead=dl, tag="qk", prio=-12, doff=cfg.ymargin if len(dl) > 1 else 0)
vreads = {}
vtog = {}
def vbar(T):
    if T == 0: return BARm["V0"]
    return BARm.get(f"V{T}", BARm[T])
def vsel(b):
    return ((b >> 1) & 1, b >> 2, 8 * (b & 1)) if cfg.noswap else (b & 3, b >> 2, 0)
NVA = 2 if cfg.noswap else 4
def items_vread(T):
    for b in range(8):
        f = 8 * T + b
        pT, pb = divmod(f - 4, 8)
        aft = []
        if f >= 4: aft.append((PVm[pT, pb, act(pT)[-1]], 0))
        va = cfg.vahead if n_of(T) > 2 else 3
        aT, ab = divmod(f - va - 1, 8)
        if f - va - 1 >= 0: aft.append((PVm[aT, ab, act(aT)[-1]], 0))
        if T < 16: aft.append((vbar(T), 0))
        c, dh, e8 = vsel(b)
        if T % 8 == 0 and T > 0 and dh == 0: aft.append((vtog[T, c].ins, 0))
        prev = None
        for blk in range(2):
            d = R("v", Vf(f) + 2 * blk, 2)
            ins = I(f"ds_read_b64_tr_b16 {d}, v{vVA+c} offset:{dh*32768 + (T % 8)*4096 + blk*2048 + e8}", "dsr",
                    rd=[f"v{vVA+c}"], wr=[d])
            vreads[T, b, blk] = add(ins, after=aft + ([(prev, 0)] if prev else []), dead=[PVm[T, b, act(T)[0]]], tag="v", prio=-12)
            prev = ins
def items_vtoggle(T):
    for c in range(NVA):
        v = f"v{vVA+c}"
        use = [b for b in range(8) if vsel(b)[0] == c]
        vtog[T, c] = add(valu(f"v_xor_b32 {v}, 0x10000, {v}", [v], [v]), after=[(vreads[T - 1, b, 1].ins, 0) for b in use],
                         dead=[PVm[T, use[0], act(T)[0]]], tag="v", prio=-24, doff=cfg.dsmargin + 4)

kwrites = {}
kloads = {}
def busy(T):
    return T < 26 or T >= TFIN[0] or (T % 16) in (2, 3, 4, 5, 6, 7, 8, 9)
KWE = 128 if cfg.klin else 1024
def items_kwrite(T):
    m = T // 2
    if T < 16: opn, cls = BARm[max(T - 3, -1)], BARm[T - 1]
    else: opn, cls = BARm[2 * m - 3], BARm[2 * m - 1]
    ws = []
    def wr(src, r, nreg, **kw):
        x = R(src[0], src[1] + r, nreg)
        ad, st_ = (vKC[0], 4096) if (cfg.ownk and T >= 16) else (vKW, KWE)
        return add(I(f"ds_write_b{32*nreg} v{ad}, {x} offset:{(T % 4)*8192 + (r//4)*st_ + (r % 4)*4}", "dsw", rd=[f"v{ad}", x],
                     cost={1: 8, 2: 12, 4: 26}[nreg]), tag="qk", **kw)
    nr = cfg.wrn
    if T < 16:
        st = vKt[T % 2]
        prev_w = kwrites.get(T - 2)
        done = []
        for r in range(8):
            a = f"a{ST(T, 0) + r}"; x = f"v{st + r}"; t = f"v{vKx[r % 2]}"
            do = (cfg.kdoff + (7 - r) * cfg.kstep) if T >= 2 else 2 + (7 - r)
            kw = dict(dead=[cls], tag="qk", doff=do + 2)
            aft = [(kloads[T][r // 4], 0)]
            if prev_w: aft.append((prev_w[r * len(prev_w) // 8].ins, 0))
            aft.append(((start_of(T - 1) if T <= cfg.ksT else mid_of(T - 2)) if T >= 3 else (QKm[0, 0, 4, 3] if cfg.k2g < 0 else QKm[1, 0, cfg.k2g, 0]) if T == 2 else QKm[0, 0, 1, 3], 0))
            if not cfg.kvg: aft = [(add(valu(f"v_accvgpr_read_b32 {x}, {a}", [a], [x]), after=aft, prio=-5, **kw).ins, 0)]
            i1 = add(valu(f"v_lshlrev_b32 {t}, 16, {x}", [x], [t]), after=aft + ([(chain_prev[r % 2], 0)] if chain_prev[r % 2] else []), prio=-4, **kw)
            i2 = add(valu(f"v_and_b32 {x}, s{sMASK}, {x}", [x, f"s{sMASK}"], [x]), after=[(i1.ins, 0)], prio=-3, **kw)
            i3 = add(valu(f"v_mul_f32 {t}, s{sC}, {t}", [t, f"s{sC}"], [t]), after=[(i1.ins, 0)], prio=-2, **kw)
            i4 = add(valu(f"v_mul_f32 {x}, s{sC}, {x}", [x, f"s{sC}"], [x]), after=[(i2.ins, 0)], prio=-1, **kw)
            i5 = add(valu(f"v_cvt_pk_bf16_f32 {x}, {t}, {x}", [t, x], [x]), after=[(i3.ins, 0), (i4.ins, 0)], prio=0, **kw)
            chain_prev[r % 2] = i5.ins; done.append(i5.ins)
            if r % nr == nr - 1:
                ws.append(wr(("v", st), r - nr + 1, nr, after=[(opn, 0)] + [(x_, 0) for x_ in done[-nr:]], dead=[cls], doff=max(do - 8, 1)))
        rb = []
        for e in range(0 if cfg.ownk else 2):
            d = R("a", ST(T, e), 4)
            ins = I(f"ds_read_b128 {d}, v{vKW} offset:{(T % 4)*8192 + e*1024}", "dsr", rd=[f"v{vKW}"], wr=[d])
            rb.append(add(ins, after=[(w_.ins, 0) for w_ in ws[e * len(ws) // 2:(e + 1) * len(ws) // 2]], dead=[BARm[T]], tag="qk", prio=0))
        readback[T] = rb
        if cfg.kvg:
            assert cfg.ownk and cfg.LK == 3
            for e, it in enumerate(kload_items.get(T + 2, [])): it.after += [(w_.ins, 0) for w_ in ws[e * len(ws) // 2:(e + 1) * len(ws) // 2]]
    else:
        nw_ = 8 // nr
        for k in range(nw_):
            ws.append(wr(("a", ST(T, 0)), k * nr, nr, after=[(opn, 0)] + ([(ws[-1].ins, 0)] if ws else ([(kwrites[T-1][-1].ins, 0)] if T % 2 else [])),
                         dead=[cls], pace=(opn, ((T % 2) * nw_ + k + 1) / (2.0 * nw_))))
    kwrites[T] = ws
chain_prev = [None, None]
readback = {}
def mid_of(T): return QKm[(T,) + chain(T, n_of(T)) + (0,)]
def bar_spot(T): return QKm[0, 0, 4, 3] if T == 0 else QKm[(T,) + chain(T, n_of(T) - 1) + (3,)]
def start_of(T): return QKm[(T,) + chain(T, 0) + (0,)]

def kload_ins(j):
    out = []
    for e in range(2):
        d = R("v", vKt[j % 2] + 4 * e, 4) if cfg.kvg else R("a", ST(j, e), 4)
        va, o_ = (vVD, 2048 * e) if cfg.klin else (vQA, off(1) * e)
        out.append(I(f"buffer_load_dwordx4 {d}, v{va}, s[{sK}:{sK+3}], s{sKo} offen offset:{o_}{cfg.kvflags}", "vld",
                     rd=[f"v{va}", f"s{sKo}", f"s[{sK}:{sK+3}]"], wr=[d]))
        out[-1].fast = cfg.klin
    return out
def vdma_ins(j):
    out = []
    for dh in range(2):
        m0 = (j >> 3) * 65536 + dh * (32768 - 128) + (j & 7) * 4096
        out.append((salu(f"s_add_u32 m0, s{sM0}, {m0}", [f"s{sM0}"], ["m0", "scc"]),
                    I(f"buffer_load_dwordx4 v{vVD}, s[{sV}:{sV+3}], s{sVo} offen offset:{128*dh}{cfg.kvflags} lds", "dma",
                      rd=[f"v{vVD}", f"s{sVo}", "m0", f"s[{sV}:{sV+3}]"])))
    return out
vdmas = {}
last_vm = [None]
def add_kload(j, after, dead):
    up = add(salu(f"s_add_u32 s{sKo}, s{sKo}, 8192", [f"s{sKo}"], [f"s{sKo}", "scc"]),
             after=after + ([(last_vm[0], 0)] if last_vm[0] else []), dead=dead, tag="ld", prio=-30)
    ins = kload_ins(j); kloads[j] = ins
    prev = up.ins
    for x in ins:
        kload_items.setdefault(j, []).append(add(x, after=[(prev, 0)], dead=dead, tag="ld", prio=-25)); prev = x
    last_vm[0] = prev
kload_items = {}
def add_vdma(j, after, dead):
    prev = last_vm[0]
    if j > 0:
        prev = add(salu(f"s_add_u32 s{sVo}, s{sVo}, 8192", [f"s{sVo}"], [f"s{sVo}", "scc"]),
                   after=after + ([(prev, 0)] if prev else []), dead=dead, tag="ld", prio=-30).ins
    vdmas[j] = []
    for sm0, dm in vdma_ins(j):
        add(sm0, after=after + [(prev, 0)], dead=dead, tag="ld", prio=-28)
        add(dm, after=[(sm0, 1)], dead=dead, tag="ld", prio=-25); prev = dm
        vdmas[j].append(dm)
    last_vm[0] = prev
def items_loads(T):
    if T == 0:
        def spot(g): return QKm[(0,) + chain(0, g) + (0,)], QKm[(0,) + chain(0, g) + (1,)]
        a, d = spot(0)
        prev = last_vm[0]
        for x in q0load(4):
            add(x, after=[(a, 0)] + ([(prev, 1 if x.kind == "dma" else 0)] if prev else []), dead=[d], tag="ld", prio=-50); prev = x
        last_vm[0] = prev
        gs = [int(c) for c in cfg.gs] if cfg.sm0 else [1, 2, 3, 4, 5, 7]
        kj, vj = 2, 0
        if cfg.order:
            for tok in cfg.order.split(","):
                a, d = spot(int(tok[2]))
                if tok[0] == "V": add_vdma(int(tok[1]), [(a, 0)], [d])
                elif tok[1] == "3": add_kload(3, [], [spot(9)[0]])
                else: add_kload(int(tok[1]), [(a, 0)], [d])
            kj, vj = 99, 99
        while kj <= cfg.LK or vj <= cfg.LV:
            a, d = spot(gs.pop(0) if len(gs) > 1 else gs[0])
            if cfg.v0first and vj <= cfg.LV: add_vdma(vj, [(a, 0)], [d]); vj += 1
            if kj <= cfg.LK and not (cfg.kvg and kj == 3): add_kload(kj, [(a, 0)], [d]); kj += 1
            if not cfg.v0first and vj <= cfg.LV: add_vdma(vj, [(a, 0)], [d]); vj += 1
            if cfg.kvg and kj == 3 and vj > cfg.LV: add_kload(3, [], [spot(9)[0]]); kj += 1
        if cfg.qstage:
            for qs in range(5):
                g0 = [chain(0, g) for g in range(10)].index((0, qs))
                aft = [(QKm[(0,) + chain(0, g0 - 1) + (3,)], 0)] if g0 else []
                for s_ in range(4):
                    d_ = R("a", Q(qs, s_), 4)
                    x = I(f"ds_read_b128 {d_}, v{vQR+s_} offset:{qs*4096}", "dsr", rd=[f"v{vQR+s_}"], wr=[d_], needs=qdmas[qs])
                    x.block = True
                    if cfg.pads and qs == 1 and s_ == 0:
                        wu = I("; WARM_UP", "br", cost=4)
                        add(wu, after=aft, dead=[QKm[0, 0, qs, 0]], tag="ld", prio=-200)
                        aft = aft + [(wu, 0)]
                    add(x, after=aft + [(z, 0) for z in qdmas[qs]], dead=[QKm[0, 0, qs, 0]], tag="ld", prio=-100)
        return
    assert cfg.LV <= 3 or not cfg.qstage
    x0, x1 = min(T - 1, cfg.grow), min(T, cfg.grow)
    if x1 > x0 and T + cfg.LV + x0 < 16: add_vdma(T + cfg.LV + x0, [(start_of(T), 0)], [mid_of(T)])
    for j in range(T + cfg.LK + x0, T + cfg.LK + x1 + 1):
        if j < 16: add_kload(j, [(start_of(T), 0)], [start_of(T + 1)])
    if T + cfg.LV + x1 < 16: add_vdma(T + cfg.LV + x1, [(mid_of(T), 0)], [mid_of(T + 1)])

QSTG = 49152
vQD, vQR = 8, 12
sQS = 5
qdmas = {}
def q0load(qs):
    if not cfg.qstage: return qload_ins(qs)
    out = [salu(f"s_add_u32 m0, s{sQS}, {qs*4096}", [f"s{sQS}"], ["m0", "scc"])]
    qdmas[qs] = [I(f"buffer_load_dwordx4 v{vQD+j}, s[{sQ}:{sQ+3}], s{sQn+qs} offen offset:{1024*j}{cfg.qflags} lds", "dma",
                   rd=[f"v{vQD+j}", f"s{sQn+qs}", "m0", f"s[{sQ}:{sQ+3}]"]) for j in range(4)]
    return out + qdmas[qs]
def qload_ins(qs, dst=None):
    out = []
    for s in range(4):
        d = R("a", Q(qs, s), 4) if dst is None else R(dst[s][0], dst[s][1], 4)
        if cfg.ownk:
            out.append(I(f"s_add_u32 s{sT0}, s{sQn+qs}, s{sX[s]}\n    buffer_load_dwordx4 {d}, v{vQA}, s[{sQ}:{sQ+3}], s{sT0} offen{cfg.qflags}", "vld",
                         rd=[f"v{vQA}", f"s{sQn+qs}", f"s[{sQ}:{sQ+3}]"], wr=[d]))
            continue
        out.append(I(f"buffer_load_dwordx4 {d}, v{vQA}, s[{sQ}:{sQ+3}], s{sQn+qs} offen offset:{off(s)}{cfg.qflags}", "vld",
                     rd=[f"v{vQA}", f"s{sQn+qs}", f"s[{sQ}:{sQ+3}]"], wr=[d]))
    return out
def items_qjit():
    prev = None
    early = {}
    if cfg.early0:
        kw_ = lambda t: [(x.ins, 0) for x in kwrites[t]]
        bufs = [(("v", 236 + 4 * k), kw_(14) + (kw_(15) if (k >= 2 or cfg.early0 == 1) else [])) for k in range(4)]
        if cfg.early0 == 2:
            assert cfg.ownk and not cfg.vc1
            bufs = [(("a", Kf(k, 0)), [(vdmas[cfg.e2T + cfg.LV][-1], 0)]) for k in range(2)] + bufs
        for k, (bf_, aft) in enumerate(bufs):
            qs, s_ = divmod(k, 4); early[qs, s_] = bf_
            ins = qload_ins(qs, [bf_] * 4)[s_]
            add(ins, after=aft + ([(prev, 0)] if prev else []), dead=[start_of(15)], tag="qj", prio=-400)
            prev = ins
            for r in range(4):
                d, a_ = f"a{Q(qs, s_) + r}", f"{bf_[0]}{bf_[1] + r}"
                op = "v_accvgpr_write_b32" if bf_[0] == "v" else "v_accvgpr_mov_b32"
                add(valu(f"{op} {d}, {a_}", [a_], [d]), after=[(QKm[15, 1, qs, s_], 0), (QKm[15, 0, cfg.e0g, 0], 0)], dead=[firstm[16]], tag="qc", prio=-3)
    for qs in range(4):
        for s_, ins in enumerate(qload_ins(qs)):
            if (qs, s_) in early: continue
            T1 = nextstart(15, qs)
            dl = [QKm[T1, 0, qs, 0]] + ([firstm[16]] if T1 == 16 and cfg.jitfirst else [])
            it = add(ins, after=[(QKm[15, 1, qs, s_], 0)] + ([(prev, 0)] if prev else []), dead=dl, tag="qj", prio=-400)
            if T1 > 16 and cfg.pairld and s_ % 2: qjit_b[-1].after.append(it.after[0]); glue[id(prev)] = it
            if T1 > 16: qjit_b.append(it)
            elif cfg.jitstep: it.dabs = (QKm[15, 1, qs, 3], 1 + cfg.jitstep * (s_ - len([1 for e in early if e[0] == qs])))
            prev = ins
qjit_b = []
early_done = []
UNITS = [O(4, b) for b in range(8)] + [P(0, 4), P(1, 4), 236, 240, 244]
QBUF = {(qs, s_): ("v", UNITS[4 * qs + s_]) for qs in range(3) for s_ in range(4)}
QBUF.update({(3, s_): ("a", Q(4, s_)) for s_ in range(4)})
unit_free = {}
def items_qpf(base):
    prev = None; hist_ = []
    for qs in range(4):
        T = base + 15 + phase(qs)
        lds_ = qload_ins(qs, [QBUF[qs, s_] for s_ in range(4)])
        for s_, ins in enumerate(lds_):
            k = 4 * qs + s_
            curT[0] = base + cfg.CUT
            pre_ = []
            if cfg.ownk and cfg.splitq:
                a_t, l_t = ins.text.split("\n    ")
                sr = f"s{sT0 if k % 2 == 0 else sT1}"
                ins.text = l_t.replace(f"s{sT0} offen", f"{sr} offen")
                sa = add(salu(a_t.replace(f"s{sT0},", f"{sr},", 1), [], [sr, "scc"]), after=[(rowadv_done[base], 0)] + ([(hist_[-2], 0)] if k >= 2 else []),
                         dead=[start_of(base + 14) if qs < 2 else firstm[base + 16]], tag="qp", prio=-300 + k)
                pre_ = [(sa.ins, 0)]
            hist_.append(ins)
            it_ = add(ins, after=pre_ + [(rowadv_done[base], 0)] + ([(prev, 0)] if prev else []),
                dead=[start_of(base + 14) if qs < 2 else firstm[base + 16]], tag="qp", prio=-200 + k)
            if cfg.pairld and s_ % 2: glue[id(prev)] = it_
            prev = ins
            kind, r0 = QBUF[qs, s_]
            curT[0] = T
            if (T, 1, qs, s_) not in QKm or (T + 1, 0, qs, s_) not in QKm: continue
            for r in range(4):
                d, a_ = f"a{Q(qs, s_) + r}", f"{kind}{r0 + r}"
                op = "v_accvgpr_write_b32" if kind == "v" else "v_accvgpr_mov_b32"
                c = add(valu(f"{op} {d}, {a_}", [a_], [d]), after=[(QKm[T, 1, qs, s_], 0)], dead=[QKm[T + 1, 0, qs, s_]], tag="qc", prio=-3, doff=1)
                if kind == "v": unit_free.setdefault((base, r0), []).append((c.ins, 0))
rowadv_done = {}
sWS = 52
vc_store = []
def items_vcheck():
    assert cfg.ownk
    va = f"v{vPF}"; d = R("a", Kf(0, 0), 4); prev = None; tg = None
    for T in range(16):
        if T == 8: tg = add(valu(f"v_xor_b32 {va}, 0x10000, {va}", [va], [va]), after=[(rd_, 0)], dead=[VC1[8, 0]], tag="vc", doff=14).ins
        for dh in range(2):
            rd_ = I(f"ds_read_b128 {d}, {va} offset:{dh*32768 + (T % 8)*4096}", "dsr", rd=[va], wr=[d], needs=vdmas[T])
            add(rd_, after=[(vbar(T), 0)] + ([(prev, 0)] if prev else []) + ([(tg, 0)] if T == 8 else []), dead=[VC1[T, dh]], tag="vc", prio=-12)
            prev = VC1[T, dh]
    x, y = f"v{vDUM}", f"v{vVD}"; p_ = (prev, 12)
    a = Kf(1, 0)
    sq = [(f"v_accvgpr_read_b32 {x}, a{a}", [f"a{a}"], [x]), (f"v_and_b32 {x}, 0x7fffffff, {x}", [x], [x])]
    for k in range(1, 4):
        sq += [(f"v_accvgpr_read_b32 {y}, a{a+k}", [f"a{a+k}"], [y]), (f"v_and_b32 {y}, 0x7fffffff, {y}", [y], [y]), (f"v_max_u32 {x}, {x}, {y}", [x, y], [x])]
    for tx, r_, w_ in sq: p_ = (add(valu(tx, r_, w_), after=[p_], dead=[start_of(23)], tag="vc").ins, 0)
    blk = I("\n    ".join([f"v_cmp_le_u32 vcc, 0x5d800000, {x}    ; sum of squares >= 2^60 (or NaN)", "s_nop 4", "s_cbranch_vccz L_vok",
                           f"v_mov_b32 {x}, 1", f"buffer_store_byte {x}, off, s[{sWS}:{sWS+3}], s2", "s_waitcnt vmcnt(0)"]) + "\nL_vok:",
            "br", rd=[x], wr=[x, "vcc"], cost=32)
    add(blk, after=[p_], dead=[start_of(24)], tag="vc", doff=1)
def items_codepf(T, label):
    t = f"v{vDUM}"
    a = add(salu(f"s_lshl_b32 s{sT2}, s{sW}, 13\n    s_add_u32 s{sT2}, s{sT2}, {label} - L_pf - {RING * 8}", [], [f"s{sT2}", "scc"]), after=[(start_of(T), 0)], dead=[mid_of(T)], tag="pf")
    a.ins.cost = 8
    b = add(valu(f"v_lshl_add_u32 {t}, v{vKR}, 3, s{sT2}", [f"v{vKR}", f"s{sT2}"], [t]), after=[(a.ins, 0)], dead=[mid_of(T)], tag="pf")
    c = add(valu(f"v_min_u32 {t}, L_end - L_pf, {t}", [t], [t]), after=[(b.ins, 0)], dead=[mid_of(T)], tag="pf")
    x = I(f"global_load_dword v{vDUM}, {t}, s[50:51]", "vld", rd=[t], wr=[f"v{vDUM}"]); x.nowait = True
    add(x, after=[(c.ins, 0)], dead=[start_of(T + 1)], tag="pf")
def items_rowadv(T):
    for qs in range(4):
        a = add(salu(f"s_add_u32 s{sOr+qs}, s{sOr+qs}, {'s3' if cfg.extra else 65536}", [f"s{sOr+qs}"], [f"s{sOr+qs}", "scc"]), after=[(start_of(T), 0)], dead=[mid_of(T)], tag="adv", prio=0)
        b = add(salu(f"s_add_u32 s{sQn+qs}, s{sOr+qs}, {'s4' if cfg.extra else 65536}" + ("\n    s_mov_b32 s3, s4\n    s_cmp_le_u32 s%d, 5\n    s_cselect_b32 s4, 0x10000, 0" % sCNT if cfg.extra and qs == 3 else ""), [f"s{sOr+qs}"], [f"s{sQn+qs}", "scc"]),
                after=[(a.ins, 0)] + ([(rowadv_done[T - T % 16], 0)] if qs else []), dead=[mid_of(T)], tag="adv", prio=0)
        rowadv_done[T - T % 16] = b.ins

lprev = []
def items_epilogue(T, endins):
    slots = sorted(q for q in act(T) if islast(T, q))
    base = (T + 1) // 16 * 16 - 16
    ri = {}
    def over(b, qs):
        T1 = nextstart(T, qs)
        return PVm[T1, b, qs] if qs in act(T1) and qs != 4 else endins
    xs = []
    for qs in slots:
        p = pair_of(qs); h = 1 if qs == 4 else qs % 2
        la, lb = f"a{L(p) + 2*h}", f"a{L(p) + 2*h + 1}"
        x, y, r = f"v{vL0 if qs % 2 == 0 else vPF}", f"v{vL1}", f"v{vRI+qs}"
        kw = dict(dead=[over(0, qs), endins], tag="ep", prio=-400)
        pa = [(z, 0) for z in lprev]
        i0 = add(valu(f"v_accvgpr_read_b32 {x}, {la}", [la], [x]), after=[(SMm[T, p], 12)] + pa, **kw)
        i1 = add(valu(f"v_accvgpr_read_b32 {y}, {lb}", [lb], [y]), after=[(SMm[T, p], 12)] + pa, **kw)
        i2 = add(valu(f"v_add_f32 {x}, {x}, {y}", [x, y], [x]), after=[(i0.ins, 0), (i1.ins, 0)], **kw)
        i3 = add(valu(f"v_rcp_f32 {r}, {x}", [x], [r], "trans"), after=[(i2.ins, 0)], **kw)
        ri[qs] = i3.ins; xs.append((x, i2.ins, i3.ins))
        lprev[:] = [i2.ins]
        if qs % 2 == 1 or qs == 4:
            src = ", ".join(z[0] for z in xs); nm = "3" if len(xs) == 2 else ""
            kw = dict(dead=[endins], tag="ep", prio=-300)
            c1 = add(valu(f"v_max{nm}_u32 v{vHI}, v{vHI}, {src}", [f"v{vHI}"] + [z[0] for z in xs], [f"v{vHI}"]), after=[(z[1], 0) for z in xs], **kw)
            c2 = add(valu(f"v_min{nm}_u32 v{vLO}, v{vLO}, {src}", [f"v{vLO}"] + [z[0] for z in xs], [f"v{vLO}"]), after=[(z[1], 0) for z in xs], **kw)
            lprev[:] = [c1.ins, c2.ins] + [z[2] for z in xs]; xs = []
        T1 = nextstart(T, qs)
        if qs in act(T1) and qs != 4:
            for reg in (la, lb):
                add(valu(f"v_accvgpr_write_b32 {reg}, 0", [], [reg]), after=[(i0.ins, 0), (i1.ins, 0)], dead=[SMm[T1, p], endins], tag="ep", prio=0, doff=1)
    if T == 15:
        def pfree(t, q): return [(PVm[t, 7, q], 0)] + [(SMm[t, p], 0) for p in pairs(t) if pair_lo(p) <= q <= pair_lo(p) + 1]
        pool = [(u, []) for u in (236, 240, 244)] + [(P(14, q), pfree(14, q)) for q in ((4, 2, 3) if DL else (4,))]
        if DL: pool += [(P(15, q), pfree(15, q)) for q in (2, 3)]
    elif slots[0] == 0: pool = [(u, unit_free.get((base, u), [])) for u in (UNITS[:8] if DL else UNITS[-1:] + UNITS[:-1])]
    else: pool = [(u, unit_free.get((base, u), [])) for u in UNITS[12:] + UNITS[8:12] + UNITS[:8]]
    inplace = [q for q in slots if (q == 4 or (T == 15 and phase(q)))] if not endins.text.startswith("; end") else slots
    def seq(sl):
        if cfg.pairst: return [(2 * pp + e, qs) for pp in range(2) for qs in sl for e in range(2)]
        return [(pb, qs) for pb in range(4) for qs in sl]
    order = seq([q for q in slots if q not in inplace]) + seq(inplace)
    tl = cfg.tlds and endins.text.startswith("; end")
    if tl:
        order = [(2 * hf + e, qs) for hf in range(2) for qs in slots for e in range(2)]
        tW, tR, tO = [176, 177], 178, 179
        RB = [[P(0, 0), P(0, 1)], [P(1, 0), P(1, 1)]]
        m_, x_, y_ = "v178", "v176", "v177"
        seqs = [(f"v_mbcnt_lo_u32_b32 {m_}, -1, 0", [], [m_]), (f"v_mbcnt_hi_u32_b32 {m_}, -1, {m_}", [m_], [m_]),
                (f"v_lshrrev_b32 {x_}, 3, {m_}", [m_], [x_]), (f"v_xor_b32 {y_}, {x_}, {m_}", [x_, m_], [y_]), (f"v_and_b32 {y_}, 7, {y_}", [y_], [y_]),
                (f"v_lshlrev_b32 {y_}, 4, {y_}", [y_], [y_]), (f"v_lshl_add_u32 v{tO}, {x_}, 8, {y_}", [x_, y_], [f"v{tO}"]),
                (f"v_lshrrev_b32 {x_}, 4, {m_}", [m_], [x_]), (f"v_xor_b32 {x_}, {x_}, {m_}", [x_, m_], [x_]), (f"v_and_b32 {x_}, 7, {x_}", [x_], [x_]),
                (f"v_and_b32 {y_}, 15, {m_}", [m_], [y_]), (f"v_lshlrev_b32 {y_}, 3, {y_}", [y_], [y_]), (f"v_add_lshl_u32 {x_}, {x_}, {y_}, 4", [x_, y_], [x_]),
                (f"v_add_u32 {x_}, s{sT2}, {x_}", [x_], [x_]), (f"v_xor_b32 {y_}, 64, {x_}", [x_], [y_]),
                (f"v_lshl_add_u32 {m_}, {m_}, 4, s{sT2}", [m_], [m_])]
        pv_ = add(salu(f"s_lshl_b32 s{sT2}, s{sW}, 12\n    s_add_u32 s{sT2}, s{sT2}, {RING}", [], [f"s{sT2}", "scc"]), dead=[firstm[T + 1]], tag="ep").ins
        for tx, rd_, wr_ in seqs: pv_ = add(valu(tx, rd_, wr_), after=[(pv_, 0)], dead=[firstm[T + 1]], tag="ep").ins
        tready = pv_; tws = []; trd = {}; tst = {}
    sts = []; bursts = {}
    ofl = cfg.oflags
    if T >= TFIN[0] - 1:
        f_ = cfg.oflagsFA if slots[0] == 0 else cfg.oflagsFB
        if f_ != "=": ofl = f_
    for k, (pb, qs) in enumerate(order):
        inp = qs in inplace
        w, wa = (O(qs, 2 * pb), []) if inp else pool.pop(0)
        cv = []
        for e in range(2):
            b = 2 * pb + e
            kw = dict(dead=[over(2 * pb if inp else b, qs), endins], tag="ep", prio=(-200 + 4 * k) if inp else 0)
            ms = []
            if cfg.pkb and not tl and qs != 4:
                key_ = (pb if cfg.pkb == 1 else pb // 2, qs // 2)
                if key_ not in bursts:
                    pbs = [pb] if cfg.pkb == 1 else [pb // 2 * 2, pb // 2 * 2 + 1]
                    qq = [q for q in slots if q // 2 == qs // 2 and q != 4]
                    tx, rw = [], []
                    for p_ in pbs:
                        for q in qq:
                            for r in range(0, 8, 2):
                                v2 = R("v", O(q, 2 * p_) + r, 2); rp = (vRI + q) & ~1; hi = (vRI + q) & 1
                                tx.append(f"v_pk_mul_f32 {v2}, {v2}, v[{rp}:{rp+1}] op_sel:[0,{hi}] op_sel_hi:[1,{hi}]"); rw.append(v2)
                    bi = I("\n    ".join(tx), "valu", rd=rw + [f"v{vRI+q}" for q in qq], wr=rw, cost=20 + 4 * len(tx))
                    bursts[key_] = add(bi, after=[(PVm[T, 2 * p_ + e_, q], 8) for p_ in pbs for e_ in range(2) for q in qq] + [(ri[q], 1) for q in qq],
                                       dead=[over(2 * pbs[0], q) for q in qq] + [endins], tag="ep", prio=kw["prio"])
                ms = [bursts[key_]] * 4
            for r in range(0 if ms else 4):
                v = f"v{O(qs, b) + r}"
                if tl and cfg.tpk:
                    if r % 2: ms.append(ms[-1]); continue
                    v2 = R("v", O(qs, b) + r, 2); rp = (vRI + qs) & ~1; hi = (vRI + qs) & 1
                    ms.append(add(valu(f"v_pk_mul_f32 {v2}, {v2}, v[{rp}:{rp+1}] op_sel:[0,{hi}] op_sel_hi:[1,{hi}]", [v2, f"v[{rp}:{rp+1}]"], [v2]),
                                  after=[(PVm[T, b, qs], 8), (PVm[T, 7, act(T)[-1]], 0), (ri[qs], 1)], **kw))
                    continue
                ms.append(add(valu(f"v_mul_f32 {v}, {v}, v{vRI+qs}", [v, f"v{vRI+qs}"], [v]), after=[(PVm[T, b, qs], 8), (ri[qs], 1)], **kw))
            for h in range(2):
                d = f"v{w + 2*e + h}"; a_, b_ = f"v{O(qs, b) + 2*h}", f"v{O(qs, b) + 2*h + 1}"
                aft = [(ms[2*h].ins, 0), (ms[2*h+1].ins, 0)] + wa + ([(cv[-1].ins, 0)] if (inp and cv) else [])
                cv.append(add(valu(f"v_cvt_pk_bf16_f32 {d}, {a_}, {b_}", [a_, b_], [d]), after=aft, **kw))
        kw = dict(dead=[over(2 * pb, qs) if inp else endins, endins], tag="ep", prio=-300 + 8 * k)
        sw = []
        for h in range(0 if cfg.noswap else 2):
            x, y = f"v{w + h}", f"v{w + 2 + h}"
            sw.append(add(valu(f"v_permlane16_swap_b32 {x}, {y}", [x, y], [x, y], "perm"), after=[(cv[h].ins, 2), (cv[2 + h].ins, 2)], **kw))
        if tl:
            u_ = k // 2; bf_ = u_ % 2
            wi = I(f"ds_write_b128 v{tW[pb % 2]}, {R('v', w, 4)} offset:{bf_ * 2048}", "dsw", rd=[f"v{tW[pb % 2]}", R("v", w, 4)], cost=26)
            tws.append(add(wi, after=[(z.ins, 0) for z in cv] + [(tready, 0), (BARm[max(t for t in BARm if isinstance(t, int))], 0)] + [(z, 0) for z in trd.get(u_ - 2, [])], **kw).ins)
            if k % 2 == 0: continue
            for x_ in tail_stores[-2:]: x_.after += [(z, 0) for z in tws[-2:]]; x_.prio = -400 + u_
            for j in range(2):
                d = R("v", RB[bf_][j], 4)
                ri_ = I(f"ds_read_b128 {d}, v{tR} offset:{bf_ * 2048 + j * 1024}", "dsr", rd=[f"v{tR}"], wr=[d])
                aft = [(z, 0) for z in tws[-2:]] + ([(tst[u_ - 2, j], 2)] if u_ >= 2 else [(PVm[47, 7, j], 0), (SMm[47, 0], 0)])
                rit = add(ri_, after=aft, **kw); trd.setdefault(u_, []).append(ri_)
                st = I(f"buffer_store_dwordx4 {d}, v{tO}, s[{sO}:{sO+3}], s{sOr+qs} offen offset:{j * 2048 + (pb // 2) * 128}{ofl}", "vst",
                       rd=[d, f"v{tO}", f"s{sOr+qs}", f"s[{sO}:{sO+3}]"])
                st.fast = True; st.block = True; tst[u_, j] = st
                sit = add(st, after=[(ri_, 0)], **kw)
                rit.prio = -500 + u_
                if cfg.fin2:
                    sit.dead = list(sit.dead) + [VCm[cfg.vck]]
                elif cfg.nvc:
                    rit.dabs = (PVm[T, 3, act(T)[-1]], cfg.tx0 + cfg.txstep * u_ * 2)
                    sit.dabs = (PVm[T, 3, act(T)[-1]], cfg.tx0 + cfg.txstep * (u_ * 2 + j + 1))
                tail_stores.append(sit)
            continue
        st = I(f"buffer_store_dwordx4 {R('v', w, 4)}, v{vOA}, s[{sO}:{sO+3}], s{sOr+qs} offen offset:{64*pb}{ofl}", "vst",
               rd=[R("v", w, 4), f"v{vOA}", f"s{sOr+qs}", f"s[{sO}:{sO+3}]"])
        sts.append((add(st, after=[(z.ins, 0) for z in (sw or cv)], **kw), w, inp, pb, qs))
        if not inp:
            pool.append((w, [(st, 2)])); unit_free[base, w] = [(st, 2)]
            for t in range(T + 1, T + 8):
                for it in pwriters.get((t, w), []): it.after.append((st, 2))

    if T == 15 and DL:
        rank = {P(14, 2): 0, P(14, 3): 1, P(15, 2): 4, P(15, 3): 5}
        def key(x):
            it, w, inp, pb, qs = x
            if not inp: return rank.get(w, 100)
            return 200 + pb if qs == 4 else (2 if pb == 0 else 4 + 2 * pb) + qs - 2
        srt = sorted(sts, key=key)
        if cfg.pairst:
            out_ = []
            for x in srt:
                if x not in out_: out_ += sorted([y for y in sts if y[4] == x[4] and y[3] // 2 == x[3] // 2], key=lambda y: y[3])
            srt = out_
        sq = qjit_b + [x[0] for x in srt]
        for k, it in enumerate(sq):
            it.dabs = (firstm[16], cfg.tq0 + cfg.tqstep * min(k, 8) + cfg.tstep * max(k - 8, 0)); it.prio = -1000 + k
    elif not endins.text.startswith("; end"):
        f_ = T >= TFIN[0] - 1
        if cfg.stE and not f_:
            for k, x in enumerate(sts): x[0].nb = (PVm[T, 1, act(T)[-1]], cfg.stE + cfg.tstep * k)
        for k, x in enumerate(sts): x[0].dabs = (PVm[T, 1, act(T)[-1]], (cfg.stF0 if f_ else cfg.st0) + (cfg.stFstep if f_ else cfg.tstep) * (k | 1 if cfg.pairst else k))
        if cfg.lateA and not f_:
            for k, x in enumerate(sts):
                if slots[0] == 0 and k < 3: continue
                o_ = (cfg.lateA + cfg.tstep * (k - 3)) if slots[0] == 0 else (cfg.lateB + cfg.tstep * k)
                x[0].nb = (PVm[T, 1, act(T)[-1]], o_); x[0].dabs = (PVm[T, 1, act(T)[-1]], o_ + 10)
    else:
        for k, x in enumerate(sts): x[0].dabs = (PVm[T, 1, act(T)[-1]], cfg.tl0 + cfg.tlstep * (k | 1 if cfg.pairst else k))

    if cfg.pairst:
        for x in sts:
            if x[3] % 2 == 0:
                y = [z for z in sts if z[4] == x[4] and z[3] == x[3] + 1][0]
                x[0].after += list(y[0].after); y[0].after.append((x[0].ins, 0)); glue[id(x[0].ins)] = y[0]
tail_stores = []

class Sched:
    def __init__(self, stream):
        self.stream = stream
        self.pos = {id(x): k for k, x in enumerate(stream)}
        self.over = 0
        self.cyc = 0; self.ta = 0; self.log = []
    def run(self, bb, its, fixed_after, marks=None, endins=None, post=None):
        stream, pos = self.stream, self.pos
        idx = {id(m): j for j, m in enumerate(bb)}
        for mid, lst in fixed_after.items():
            if mid in idx:
                for f in lst: idx[id(f)] = idx[mid]
        for j, lst in (marks or {}).items():
            for f in lst: idx[id(f)] = j
        for j, lst in (post or {}).items():
            for f in lst: idx[id(f)] = j
        if endins is not None: idx[id(endins)] = len(bb)
        waiting, act, bydead = {}, [], {}
        byins = {id(it.ins): it for it in its if not it.placed}
        lbm = {}
        def lb(it):
            if id(it) not in lbm:
                v = 0
                for a, _ in it.after:
                    if id(a) in pos: continue
                    if id(a) in idx: v = max(v, idx[id(a)] + 1)
                    elif id(a) in byins: v = max(v, lb(byins[id(a)]))
                lbm[id(it)] = v
            return lbm[id(it)]
        sys.setrecursionlimit(100000)
        for it in its:
            if it.placed: continue
            d = min([idx[id(x)] for x in it.dead if x is not None and id(x) in idx] or [1 << 30])
            if it.dabs and id(it.dabs[0]) in idx: d = min(d, max(idx[id(it.dabs[0])] + it.dabs[1], lb(it) + 1))
            if it.doff: d = max(d - it.doff, min(d, lb(it) + 1))
            it.early = d + it.prio
            it.soft = d - (cfg.dsmargin if it.ins.kind in LGKM else -(1 << 20))
            if it.pace and id(it.pace[0]) in idx and d < (1 << 29):
                o_ = idx[id(it.pace[0])]
                it.soft = int(o_ + it.pace[1] * (d - cfg.wmargin - o_)); it.early = it.soft + 4
            bydead.setdefault(d, []).append(it)
            w = {id(a) for a, _ in it.after if id(a) not in pos}
            nw[id(it)] = len(w)
            for a in w: waiting.setdefault(a, []).append(it)
            if not w: act.append(it)
        st = {"budget": 8, "first": True, "valu": False, "mem": False}
        def emit(x):
            pos[id(x)] = len(stream); stream.append(x)
            for it in waiting.pop(id(x), []):
                nw[id(it)] -= 1
                if nw[id(it)] == 0: act.append(it)
        def ready(it):
            n = len(stream)
            return all(n - pos[id(a)] - 1 >= dist for a, dist in it.after)
        def place(it):
            if it.ins.block and it.ins.kind == "dsr":
                while True:
                    a = cands(lambda x: not x.ins.block and x.ins.kind in VALU + LGKM)
                    if not a: break
                    place(a[0])
            c = it.ins.cost; kd = it.ins.kind
            if kd == "salu" and st["first"]: c -= 4
            if kd in LGKM + VM and st["valu"]: c += 8
            elif kd in LGKM + VM and st["mem"]: c += 4
            if kd in LGKM + VM: st["mem"] = True
            if kd in VALU: st["valu"] = True
            act.remove(it); it.placed = True
            if kd in VM:
                now = self.cyc + 8 + (8 - st["budget"])
                self.ta = (max(self.ta, now) if now < self.ta + 1 and it.tag != "ld" else now) + (cfg.ta_fast if (kd == "dma" or it.ins.fast) else cfg.ta_slow)
            emit(it.ins); st["budget"] -= c; st["first"] = False
            g_ = glue.get(id(it.ins))
            if g_ is not None and not g_.placed: place(g_)
        def cands(pred):
            return sorted([it for it in act if pred(it) and ready(it)], key=lambda x: (x.early, x.seq))
        def force(limit):
            while True:
                due = [it for d in list(bydead) if d <= limit for it in bydead[d] if not it.placed]
                for d in [d for d in bydead if d <= limit]:
                    bydead[d] = [it for it in bydead[d] if not it.placed]
                    if not bydead[d]: del bydead[d]
                if not due: return
                stack = list(due); seen = set(); need = []
                while stack:
                    it = stack.pop()
                    if id(it) in seen: continue
                    seen.add(id(it)); need.append(it)
                    for a_, _ in it.after:
                        o = byins.get(id(a_))
                        if o is not None and not o.placed: stack.append(o)
                av = [it for it in need if nw[id(it)] == 0]
                if not av:
                    raise RuntimeError("deadlock: " + "; ".join(it.ins.text + " AFTER " + str([a for a, _ in it.after if id(a) not in pos]) for it in need[:6]))
                rs = [it for it in av if ready(it)]
                if not rs:
                    rs = cands(lambda x: x.ins.kind in VALU)[:1] or av
                rs.sort(key=lambda x: (0 if (x.ins.kind in LGKM + VM and not st["valu"]) else 1, x.early, x.seq))
                place(rs[0])
        if id(bb[0]) not in pos: force(0)
        for k, m in enumerate(bb):
            for f in (marks or {}).get(k, []): emit(f)
            if id(m) not in pos: emit(m)
            st.update(budget=8, first=True, valu=False, mem=False)
            for f in (post or {}).get(k, []):
                emit(f); st["first"] = False
            for f in fixed_after.get(id(m), []):
                emit(f); st["first"] = False
                if cfg.emptybar: st["budget"] = 0
            c = cands(lambda x: x.ins.kind == "salu")
            if c and st["first"] and k + 1 < len(bb) and not getattr(cfg, "nosalu", False): place(c[0])
            vmok = lambda x: x.ins.kind in VM and (x.nb is None or idx.get(id(x.nb[0]), -1000) + x.nb[1] <= k)
            vm = cands(vmok) if (self.ta <= self.cyc and m.pref != "T") else []
            urgent = cands(lambda x: x.soft <= (k - 2 if vm else k + 1))
            if st["budget"] <= 0: urgent = []
            if urgent: place(min(urgent, key=lambda x: (x.soft, x.seq)))
            tr = cands(lambda x: x.ins.kind == "trans")
            if m.pref == "T" and tr and st["budget"] >= (4 if urgent else 8):
                place(tr[0])
            else:
                if not urgent and st["budget"] >= 4:
                    if not vm and self.ta <= self.cyc: vm = cands(vmok)
                    mem = vm or cands(lambda x: x.ins.kind in LGKM)
                    if mem and not vm:
                        rd_ = [x for x in mem if x.ins.kind == "dsr"]; wr_ = [x for x in mem if x.ins.kind == "dsw"]
                        if cands(lambda x: x.ins.kind in ("valu", "perm")): mem = rd_
                        elif wr_ and not (rd_ and rd_[0].soft <= k + 3): mem = wr_
                    if mem: place(mem[0])
                while st["budget"] >= 4:
                    a = cands(lambda x: (x.ins.kind in ("valu", "perm") and x.ins.cost <= 8) or (x.ins.kind == "trans" and st["budget"] >= 8))
                    if not a: break
                    place(a[0])
            force(k + 1)
            if st["budget"] < 0: self.over -= st["budget"]
            self.cyc += max(16, 16 - st["budget"])
            self.log.append(self.cyc)
        if endins is not None: force(1 << 29)
nw = {}

sVC = 49
sTSB = 60
def stamp(k, cyc=False, mode=1):
    if cfg.stamps != mode: return []
    r = sTSB + 2 * k
    return [I(f"s_mem{'time' if cyc else 'realtime'} s[{r}:{r+1}]", "salu", wr=[f"s[{r}:{r+1}]"])]

def V(text, rd, wr, kind="valu"): return I(text, kind, rd=rd, wr=wr)
def prologue():
    o = []
    o.append(I("s_cmp_ge_u32 s2, 256\n    s_cbranch_scc1 L_end", "br"))
    o += stamp(0) + stamp(1, True) + stamp(0, False, 4) + stamp(1, True, 4) + stamp(0, False, 5)
    if cfg.spin: o.append(salu("s_memrealtime s[98:99]"))
    o.append(salu("s_load_dwordx8 s[52:59], s[0:1], 0"))
    if cfg.vc1: o.append(salu("s_load_dwordx2 s[6:7], s[0:1], 32"))
    l, t, u, g = "v1", "v2", "v3", "v4"
    o += [V(f"v_lshrrev_b32 {t}, 6, v0", ["v0"], [t]),
          V(f"v_and_b32 {l}, 63, v0", ["v0"], [l]),
          V(f"v_readfirstlane_b32 s{sW}, {t}", [t], [f"s{sW}"]),
          V(f"v_lshrrev_b32 {g}, 4, {l}", [l], [g]),
          V(f"v_and_b32 {t}, 15, {l}", [l], [t]),
          V(f"v_lshlrev_b32 {t}, 8, {t}", [t], [t]),
          V(f"v_mul_u32_u24 {u}, {GST}, {g}", [g], [u]),
          V(f"v_add_u32 v{vQA}, {t}, {u}", [t, u], [f"v{vQA}"]),
          ]
    if cfg.noswap:
        if vOA != vQA: o += [V(f"v_lshl_add_u32 v{vOA}, {g}, 4, {t}", [g, t], [f"v{vOA}"])]
        o += [
              V(f"v_and_b32 {u}, 1, {g}", [g], [u]),
              V(f"v_lshlrev_b32 {u}, 2, {u}", [u], [u]),
              V(f"v_xor_b32 {u}, {u}, {l}", [u, l], [u]),
              V(f"v_and_b32 {u}, 7, {u}", [u], [u]),
              V(f"v_lshrrev_b32 {t}, 3, {l}", [l], [t]),
              V(f"v_lshlrev_b32 {t}, 8, {t}", [t], [t]),
              V(f"v_lshl_add_u32 v{vVD}, {u}, 4, {t}", [u, t], [f"v{vVD}"])]
    else:
        o += [
          V(f"v_and_b32 {u}, 1, {g}", [g], [u]),
          V(f"v_lshl_add_u32 {t}, {u}, 5, {t}", [u, t], [t]),
          V(f"v_lshrrev_b32 {u}, 1, {g}", [g], [u]),
          V(f"v_lshl_add_u32 v{vOA}, {u}, 4, {t}", [u, t], [f"v{vOA}"]),
          V(f"v_bfe_u32 {t}, {l}, 1, 2", [l], [t]),
          V(f"v_xor_b32 {t}, {t}, {g}", [t, g], [t]),
          V(f"v_lshlrev_b32 {t}, 5, {t}", [t], [t]),
          V(f"v_lshrrev_b32 {u}, 3, {l}", [l], [u]),
          V(f"v_lshl_add_u32 {t}, {u}, 8, {t}", [u, t], [t]),
          V(f"v_and_b32 {u}, 1, {l}", [l], [u]),
          V(f"v_lshl_add_u32 v{vVD}, {u}, 4, {t}", [u, t], [f"v{vVD}"]),
          ]
    if cfg.qstage:
        o += [V(f"v_and_b32 {t}, 15, {l}", [l], [t]),
              V(f"v_xor_b32 {u}, {t}, {g}", [t, g], [u]),
              V(f"v_lshlrev_b32 {u}, 4, {u}", [u], [u]),
              V(f"v_lshl_add_u32 v{vQD}, {g}, 8, {u}", [g, u], [f"v{vQD}"])]
        o += [V(f"v_xor_b32 v{vQD+j}, {64*j}, v{vQD}", [f"v{vQD}"], [f"v{vQD+j}"]) for j in range(1, 4)]
        o += [salu(f"s_mul_i32 s{sQS}, s{sW}, 20480", [f"s{sW}"], [f"s{sQS}"]), salu(f"s_add_u32 s{sQS}, s{sQS}, {QSTG}")]
        stage2 = [V(f"v_and_b32 {t}, 15, {l}", [l], [t]),
              V(f"v_mul_u32_u24 {u}, {GST // 16}, {g}", [g], [u]),
              V(f"v_xor_b32 {u}, {u}, {t}", [u, t], [u]),
              V(f"v_lshlrev_b32 {u}, 4, {u}", [u], [u]),
              V(f"v_lshl_add_u32 {u}, {t}, 8, {u}", [t, u], [u])]
        stage2 += [V(f"v_xor_b32 v{vQR+k}, {f's{sX[k]}' if cfg.ownk else off(k)}, {u}", [u], [f"v{vQR+k}"]) for k in range(4)]
        stage2 += [V(f"v_add_u32 v{vQR+k}, s{sQS}, v{vQR+k}", [f"v{vQR+k}"], [f"v{vQR+k}"]) for k in range(4)]
    o += [salu(f"s_mul_i32 s{sT0}, s2, {HEADQ}", [], [f"s{sT0}"]),
          salu(f"s_lshl_b32 s{sT1}, s2, 17", [], [f"s{sT1}"]),
          salu(f"s_lshl_b32 s{sM0}, s{sW}, 10", [f"s{sW}"], [f"s{sM0}"]),
          salu(f"s_lshl_b32 s{sVo}, s{sW}, 11", [f"s{sW}"], [f"s{sVo}"]),
          salu(f"s_lshr_b32 s{sKo}, s{sW}, 1", [f"s{sW}"], [f"s{sKo}"]),
          salu(f"s_lshl_b32 s{sKo}, s{sKo}, 12"),
          salu(f"s_and_b32 s{sT2}, s{sW}, 1"),
          salu(f"s_lshl_b32 s{sT2}, s{sT2}, 7"),
          salu(f"s_add_u32 s{sKo}, s{sKo}, s{sT2}"),
          salu(f"s_lshl_b32 s{sOr}, s{sW}, 14"),
          salu(f"s_add_u32 s{sOr+1}, s{sOr}, 4096"),
          salu(f"s_add_u32 s{sOr+2}, s{sOr}, 8192"),
          salu(f"s_add_u32 s{sOr+3}, s{sOr}, 12288"),
          salu(f"s_lshl_b32 s{sOr+4}, s{sW}, 12"),
          salu(f"s_add_u32 s{sOr+4}, s{sOr+4}, {1280*256}"),
          ]
    o += [salu(f"s_mov_b32 s{sQn+k}, s{sOr+k}") for k in range(5)]
    if cfg.ownk:
        if cfg.dmap == "A": o += [salu(f"s_lshl_b32 s{sX[0]}, s{sW}, 6")]
        else: o += [salu(f"s_mul_i32 s{sX[0]}, s{sW}, 0x50"), salu(f"s_and_b32 s{sX[0]}, s{sX[0]}, 0x90")]
        o += [salu(f"s_xor_b32 s{sX[c]}, s{sX[0]}, {off(c)}") for c in range(1, 4)]
    o.append(I("s_waitcnt lgkmcnt(0)", "wait"))
    for srd, p, so, size in ((sK, 54, sT1, HEADK), (sQ, 52, sT0, HEADQ), (sV, 56, sT1, HEADK), (sO, 58, sT0, HEADQ)):
        o += [salu(f"s_add_u32 s{srd}, s{p}, s{so}"), salu(f"s_addc_u32 s{srd+1}, s{p+1}, 0"),
              salu(f"s_mov_b32 s{srd+2}, {size}"), salu(f"s_mov_b32 s{srd+3}, 0x20000")]
    kloads[0] = kload_ins(0); kloads[1] = kload_ins(1)
    k1 = [salu(f"s_add_u32 s{sKo}, s{sKo}, 8192")] + kloads[1]
    if cfg.qstage:
        o += kloads[0] + q0load(0) + q0load(1) + k1
        later = [[], q0load(2), q0load(3)]
    else:
        o += kloads[0] + qload_ins(0) + qload_ins(1)[:2]
        later = [qload_ins(1)[2:] + k1, qload_ins(2), qload_ins(3)]
    if cfg.codepf:
        o.append(I(f"; pull this kernel's code into L2 ahead of the instruction fetch (2 KB per workgroup, value unused)\n    s_getpc_b64 s[50:51]\nL_pf:\n    s_lshr_b32 s{sT2}, s2, 3\n    s_lshl_b32 s{sT2}, s{sT2}, 11", "salu"))
        o.append(V(f"v_lshl_add_u32 v5, {l}, 5, s{sT2}", [l], ["v5"]))
        o.append(V("v_min_u32 v5, L_end - L_pf, v5", ["v5"], ["v5"]))
        x = I(f"global_load_dword v{vDUM}, v5, s[50:51]", "vld", rd=["v5"], wr=[f"v{vDUM}"]); x.nowait = True
        o.append(x)
    if cfg.touch:
        o.append(V(f"v_lshlrev_b32 v7, {cfg.touch}, {l}", [l], ["v7"]))
        for srd in [sQ] + ([sO] if cfg.toucho else []) + ([sK, sV] if cfg.touchkv else []):
            x = I(f"buffer_load_dword v{vDUM}, v7, s[{srd}:{srd+3}], 0 offen nt", "vld", rd=["v7"], wr=[f"v{vDUM}"]); x.nowait = True
            o.append(x)
    if cfg.vc1:
        assert not cfg.extra and cfg.dbg < 0
        o += [salu(f"s_mov_b32 s{sWS}, s6"), salu(f"s_mov_b32 s{sWS+1}, s7"), salu(f"s_mov_b32 s{sWS+2}, 256"), salu(f"s_mov_b32 s{sWS+3}, 0x20000")]
    o += [salu(f"s_mov_b32 s{sC}, {CSCALE:#x}"), salu(f"s_mov_b32 s{sMASK}, 0xffff0000"),
          salu(f"s_mov_b32 s{sFAIL}, {0x1fffff if cfg.force_fallback else 0}"), salu(f"s_mov_b32 s{sCNT}, {4 + cfg.extra if cfg.extra else 3}"), *([salu("s_mov_b32 s3, 0x10000"), salu("s_mov_b32 s4, 0")] if cfg.extra else []),
          salu(f"s_lshl_b32 s{sVC}, s{sW}, 15"), salu(f"s_sub_u32 s{sVC}, s{sVC}, {RING}"),
          salu(f"s_lshl_b32 s{sT2}, s{sW}, 11")]
    if cfg.klin:
        assert cfg.ownk
        o += [V(f"v_lshlrev_b32 {u}, 1, {g}", [g], [u]),
              V(f"v_xor_b32 {t}, {u}, {l}", [u, l], [t]),
              V(f"v_lshlrev_b32 {t}, 4, {t}", [t], [t]),
              V(f"v_add_u32 v{vKR}, {RING}, {t}", [t], [f"v{vKR}"]),
              V(f"v_bfe_u32 {t}, v{vVD}, {4 if cfg.dmap == 'A' else 5}, 2", [f"v{vVD}"], [t]),
              V(f"v_lshlrev_b32 {u}, 1, {t}", [t], [u]),
              V(f"v_lshrrev_b32 v5, 3, {l}", [l], ["v5"]),
              V(f"v_xor_b32 {u}, {u}, v5", [u, "v5"], [u]),
              V(f"v_lshl_add_u32 {u}, {t}, 4, {u}", [t, u], [u]),
              V(f"v_bfe_u32 {t}, v{vVD}, {6 if cfg.dmap == 'A' else 4}, 1", [f"v{vVD}"], [t]),
              V(f"v_lshl_add_u32 {u}, {t}, 6, {u}", [t, u], [u]),
              V(f"v_lshlrev_b32 {u}, 4, {u}", [u], [u]),
              V(f"v_add_u32 {u}, {RING}, {u}", [u], [u]),
              V(f"v_add_u32 v{vKW}, s{sT2}, {u}", [u], [f"v{vKW}"])]
    else:
      o += [V(f"v_lshlrev_b32 {t}, 4, {l}", [l], [t]),
          V(f"v_add_u32 v{vKR}, {RING}, {t}", [t], [f"v{vKR}"]),
          V(f"v_add_u32 v{vKW}, s{sT2}, v{vKR}", [f"v{vKR}"], [f"v{vKW}"])]
    if cfg.ownk:
        o += [V(f"v_add_u32 v{vKC[0]}, s{sM0}, v{vKR}", [f"v{vKR}"], [f"v{vKC[0]}"])]
        o += [V(f"v_xor_b32 v{vKC[c]}, {1024*c}, v{vKC[0]}", [f"v{vKC[0]}"], [f"v{vKC[c]}"]) for c in range(1, 4)]
        o += [salu(f"s_sub_u32 s{sVC}, s{sVC}, s{sM0}")]
        if cfg.vc1: o += [V(f"v_and_b32 v{vPF}, 0xffff, v{vKC[0]}", [f"v{vKC[0]}"], [f"v{vPF}"])]
    o += [
          V(f"v_lshrrev_b32 {t}, 2, {l}", [l], [t]),
          V(f"v_lshlrev_b32 {t}, 7, {t}", [t], [t]),
          V(f"v_and_b32 {u}, 3, {l}", [l], [u])]
    assert cfg.noswap
    o += [V(f"v_lshl_add_u32 {t}, {u}, 4, {t}", [u, t], [t]),
          V(f"v_bfe_u32 {u}, {l}, 3, 1", [l], [u]),
          V(f"v_lshl_add_u32 v{vVA}, {u}, 6, {t}", [u, t], [f"v{vVA}"]),
          V(f"v_xor_b32 v{vVA+1}, 64, v{vVA}", [f"v{vVA}"], [f"v{vVA+1}"]),
          *([V("v_mov_b32 v179, 0", [], ["v179"])] if cfg.tlds else []),
          V(f"v_mov_b32 v{vHI}, 0", [], [f"v{vHI}"]), V(f"v_mov_b32 v{vLO}, -1", [], [f"v{vLO}"])]
    o += [V(f"v_lshrrev_b32 {t}, 4, {l}", [l], [t]),
          V(f"v_xor_b32 {t}, {t}, {l}", [t, l], [t]),
          V(f"v_bfe_u32 {t}, {t}, 1, 1", [t], [t]),
          V(f"v_add_u32 {t}, -1, {t}", [t], [t]),
          V(f"v_and_b32 {t}, 0x3f803f80, {t}", [t], [t])]
    o += [V(f"v_accvgpr_write_b32 a{aSA+k}, {t}", [t], [f"a{aSA+k}"]) for k in range(4)]
    o += [V(f"v_and_b32 {u}, 1, {l}", [l], [u]),
          V(f"v_mul_u32_u24 {u}, 0xaaaa, {u}", [u], [u]),
          V(f"v_add_u32 v{vIDX}, 0x4444, {u}", [u], [f"v{vIDX}"])]
    o += [V(f"v_accvgpr_write_b32 a{aL+k}, 0", [], [f"a{aL+k}"]) for k in range(12)]
    if cfg.qstage: o += stage2
    o += later[0]
    if cfg.pads: o.append(I("; BODY_ALIGN", "label"))
    for T in range(1):
        st = vKt[T]; ws = []
        for r in range(8):
            a = f"a{ST(T, 0) + r}"; x = f"v{st + r}"; tt = f"v{vKx[r % 2]}"
            if not cfg.kvg: o += [V(f"v_accvgpr_read_b32 {x}, {a}", [a], [x])]
            o += [V(f"v_lshlrev_b32 {tt}, 16, {x}", [x], [tt]),
                  V(f"v_and_b32 {x}, s{sMASK}, {x}", [x], [x]),
                  V(f"v_mul_f32 {tt}, s{sC}, {tt}", [tt], [tt]),
                  V(f"v_mul_f32 {x}, s{sC}, {x}", [x], [x]),
                  V(f"v_cvt_pk_bf16_f32 {x}, {tt}, {x}", [tt, x], [x])]
        for e in range(2):
            w = I(f"ds_write_b128 v{vKW}, {R('v', st + 4*e, 4)} offset:{T*8192 + e*KWE}", "dsw", rd=[f"v{vKW}", R('v', st + 4*e, 4)])
            o.append(w); ws += [Item(w)] * 4
        rb = []
        for e in range(0 if cfg.ownk else 2):
            d = R("a", ST(T, e), 4)
            x = I(f"ds_read_b128 {d}, v{vKW} offset:{T*8192 + e*1024}", "dsr", rd=[f"v{vKW}"], wr=[d])
            o.append(x); rb.append(Item(x))
        kwrites[T] = ws; readback[T] = rb
    o += later[1]
    pro_tail.extend(later[2] + [salu(f"s_add_u32 s{sQn+k}, s{sOr+k}, 65536") for k in range(4)])
    return o
pro_tail = []

def guard_text():
    a = L(2)
    t = []
    t.append("    ; ---- V magnitude guard: sums of squares must stay below 2^60; shared across the 4 waves")
    if cfg.stamps == 5: t.append("    s_memrealtime s[%d:%d]" % (sTSB + 18, sTSB + 19))
    t.append("    s_nop 7\n    s_nop 3")
    t += [f"    v_accvgpr_read_b32 v{k}, a{a+k}" for k in range(4)]
    t += [f"    v_and_b32 v{k}, 0x7fffffff, v{k}" for k in range(4)]
    t += ["    v_max_u32 v0, v0, v1", "    v_max3_u32 v0, v0, v2, v3",
          "    v_cmp_le_u32 vcc, 0x5d800000, v0",
          "    s_nop 1",
          "    s_cmp_lg_u64 vcc, 0",
          f"    s_cselect_b32 s{sT0}, 1, 0",
          f"    v_cmp_lt_u32 vcc, 0x6f800000, v{vHI}",
          f"    v_cmp_gt_u32 s[6:7], 1.0, v{vLO}",
          "    s_nop 1",
          "    s_or_b64 vcc, vcc, s[6:7]",
          f"    s_cselect_b32 s{sFAIL}, 0x1fffff, s{sFAIL}",
          f"    s_lshl_b32 s{sT1}, s{sW}, 2",
          f"    s_add_u32 s{sT1}, s{sT1}, {FLAGS}",
          f"    v_mov_b32 v0, s{sT0}", f"    v_mov_b32 v1, s{sT1}", f"    v_mov_b32 v2, {FLAGS}",
          "    ds_write_b32 v1, v0", "    s_waitcnt lgkmcnt(0)", "    s_barrier",
          "    ds_read_b128 v[4:7], v2", "    s_waitcnt lgkmcnt(0)",
          "    v_or3_b32 v4, v4, v5, v6", "    v_or_b32 v4, v4, v7", "    s_nop 0",
          f"    v_readfirstlane_b32 s{sT0}, v4", "    s_nop 1",
          f"    s_cmp_lg_u32 s{sT0}, 0",
          f"    s_cselect_b32 s{sFAIL}, 0x1fffff, s{sFAIL}"]
    return t
sVF = 49
def guard2_text():
    a = L(2)
    t = ["; ---- guard: |v| < 2^30 (sums of squares of this wave's quarter of V below 2^60) and every row sum in [1, 2^96]"]
    t += [f"v_accvgpr_read_b32 v{k}, a{a+k}" for k in range(4)]
    t += [f"v_and_b32 v{k}, 0x7fffffff, v{k}" for k in range(4)]
    t += ["v_max_u32 v0, v0, v1", "v_max3_u32 v0, v0, v2, v3", "v_cmp_le_u32 vcc, 0x5d800000, v0",
          f"v_cmp_gt_u32 s[6:7], 1.0, v{vLO}", "s_nop 0", "s_cmp_lg_u64 vcc, 0", f"s_cselect_b32 s{sVF}, 1, 0",
          f"v_cmp_lt_u32 vcc, 0x6f800000, v{vHI}", "s_nop 1", "s_or_b64 vcc, vcc, s[6:7]", f"s_cselect_b32 s{sFAIL}, 1, s{sFAIL}",
          f"s_or_b32 s{sFAIL}, s{sFAIL}, s{sVF}"]
    return t
FLAGS = RING + 3 * 8192 if cfg.tlds else RING
def finale():
    if cfg.stamps == 5 and cfg.vc1: pre_ = ["    s_memrealtime s[%d:%d]" % (sTSB + 18, sTSB + 19)]
    else: pre_ = []
    t = pre_ if (cfg.tlds or cfg.vc1 or cfg.fin2) else guard_text()
    if cfg.fin2: t = t + ["    s_waitcnt vmcnt(0)", "    s_barrier    ; every wave's stores are done: a slow-path rewrite cannot be overtaken"]
    if cfg.stamps in (1, 4, 5):
        t += ["    s_memrealtime s[%d:%d]" % (sTSB + 22, sTSB + 23), "    s_waitcnt vmcnt(0)",
              "    s_memrealtime s[%d:%d]" % (sTSB + 24, sTSB + 25), "    s_memtime s[%d:%d]" % (sTSB + 26, sTSB + 27)]
    if cfg.stamps:
        t += ["    s_load_dwordx2 s[4:5], s[0:1], 40", "    s_waitcnt lgkmcnt(0)",
              "    s_mov_b32 s6, 0x100000", "    s_mov_b32 s7, 0x20000",
              f"    s_lshl_b32 s{sT0}, s2, 2", f"    s_add_u32 s{sT0}, s{sT0}, s{sW}", f"    s_lshl_b32 s{sT0}, s{sT0}, 7",
              "    v_mov_b32 v1, 0"]
        for k in range(21):
            t += [f"    v_mov_b32 v0, s{sTSB + 2*k}", f"    buffer_store_dword v0, v1, s[4:7], s{sT0} offen offset:{4*k}"]
    if cfg.spin:
        t += ["L_spin:", "    s_memrealtime s[100:101]", "    s_waitcnt lgkmcnt(0)", "    s_sub_u32 s100, s100, s98", f"    s_cmp_lt_u32 s100, {cfg.spin * 100}", "    s_cbranch_scc1 L_spin"]
    if cfg.dbg >= 0:
        t += [f"    s_cmp_lg_u32 s2, {cfg.dbg}", "    s_cbranch_scc1 L_nodbg", f"    s_cmp_lg_u32 s{sW}, 0", "    s_cbranch_scc1 L_nodbg",
              "    s_load_dwordx2 s[4:5], s[0:1], 32", "    s_waitcnt lgkmcnt(0)", "    s_mov_b32 s6, 256", "    s_mov_b32 s7, 0x20000"]
        lst = [(2, 0), (3, 0), (4, 0), (5, 0), (9, 0), (8, 0), (7, 0), (6, 0), (11, 0), (12, 0), (10, 1), (13, 10)]
        for k, (a_, b_) in enumerate(lst):
            t += [f"    s_sub_u32 s{sT1}, s{sTSB + 2*a_}, s{sTSB + 2*b_}", f"    v_mov_b32 v0, s{sT1}", f"    buffer_store_dword v0, v1, s[4:7], 0 offen offset:{4*k}"]
        t += ["L_nodbg:"]
    t += [f"    s_cmp_eq_u32 s{sFAIL}, 0", "    s_cbranch_scc1 L_end"]
    sJ, sRow, sKb, sVt = sT0, sT1, sT2, sKo
    f = ["    ; ---- slow path: rows whose unshifted exponent sum left the safe range are redone with the true max",
         "    s_waitcnt vmcnt(0)"]
    f += [f"    v_and_b32 v{vVA+c}, 0xffff, v{vVA+c}" for c in range(NVA)]
    if cfg.fin2:
        sW_ = 3
        f += [f"    s_cmp_lg_u32 s{sVF}, 0", f"    s_cselect_b32 s{sW_}, 0, s{sW}", f"    s_cselect_b32 s4, 3, s{sW}", "L_fb_wave:", f"    s_mov_b32 s{sFAIL}, 0x1fffff",
              f"    s_lshl_b32 s{sOr+4}, s{sW_}, 12", f"    s_add_u32 s{sOr+4}, s{sOr+4}, {1280*256}"]
    else: sW_ = sW
    f += ["L_fb_next:",
          f"    s_ff1_i32_b32 s{sJ}, s{sFAIL}", f"    s_bitset0_b32 s{sFAIL}, s{sJ}",
          f"    s_cmp_gt_u32 s{sJ}, 4", f"    s_cselect_b32 s{sKb}, 1, 0", f"    s_sub_u32 s{sKb}, s{sJ}, s{sKb}",
          f"    s_lshr_b32 s{sRow}, s{sKb}, 2", f"    s_lshl_b32 s{sRow}, s{sRow}, 16",
          f"    s_and_b32 s{sKb}, s{sKb}, 3", f"    s_lshl_b32 s{sKb}, s{sKb}, 12", f"    s_add_u32 s{sRow}, s{sRow}, s{sKb}",
          f"    s_lshl_b32 s{sKb}, s{sW_}, 14", f"    s_add_u32 s{sRow}, s{sRow}, s{sKb}",
          f"    s_cmp_eq_u32 s{sJ}, 4", f"    s_cselect_b32 s{sRow}, s{sOr+4}, s{sRow}"]
    f += [f"    buffer_load_dwordx4 v[{4*s}:{4*s+3}], v{vQA}, s[{sQ}:{sQ+3}], s{sRow} offen offset:{off(s)}" for s in range(4)]
    def qk(dst, extra):
        r = [f"    buffer_load_dwordx4 v[{20+4*s}:{23+4*s}], v{vQA}, s[{sK}:{sK+3}], s{sKb} offen offset:{off(s)}" for s in range(4)]
        r += ["    s_waitcnt vmcnt(0)"]
        r += [f"    v_mfma_f32_16x16x32_bf16 v[{dst}:{dst+3}], v[{20+4*s}:{23+4*s}], v[{4*s}:{4*s+3}], {'0' if s == 0 else f'v[{dst}:{dst+3}]'}" for s in range(4)]
        r += [f"    s_add_u32 s{sKb}, s{sKb}, 4096", "    s_nop 9"]
        return r
    f += ["    v_mov_b32 v16, 0xff800000", f"    s_mov_b32 s{sKb}, 0", "L_fb_max:"]
    f += qk(36, None)
    f += ["    v_max3_f32 v16, v16, v36, v37", "    v_max3_f32 v16, v16, v38, v39",
          f"    s_cmp_lt_u32 s{sKb}, {HEADK}", "    s_cbranch_scc1 L_fb_max"]
    def xlane(reg, tmp, op):
        return [f"    v_mov_b32 v{tmp}, v{reg}", "    s_nop 1", f"    v_permlane16_swap_b32 v{reg}, v{tmp}", "    s_nop 1", f"    {op} v{reg}, v{reg}, v{tmp}",
                f"    v_mov_b32 v{tmp}, v{reg}", "    s_nop 1", f"    v_permlane32_swap_b32 v{reg}, v{tmp}", "    s_nop 1", f"    {op} v{reg}, v{reg}, v{tmp}"]
    f += xlane(16, 17, "v_max_f32")
    f += [f"    v_mul_f32 v17, s{sC}, v16", "    v_mov_b32 v18, 0"]
    f += [f"    v_mov_b32 v{64+k}, 0" for k in range(32)]
    f += [f"    s_mov_b32 s{sKb}, 0", f"    s_mov_b32 s{sVt}, 0", "L_fb_pv:"]
    f += qk(36, None) + qk(40, None)
    f += [f"    v_fma_f32 v{36+k}, v{36+k}, s{sC}, -v17" for k in range(8)]
    f += [f"    v_exp_f32 v{36+k}, v{36+k}" for k in range(8)]
    f += ["    s_nop 0"] + [f"    v_add_f32 v18, v18, v{36+k}" for k in range(8)]
    f += [f"    v_cvt_pk_bf16_f32 v{44+k}, v{36+2*k}, v{37+2*k}" for k in range(4)]
    f += [f"    v_add_u32 v{52+c}, s{sVt}, v{vVA+c}" for c in range(NVA)]
    for b in range(8):
        f += [f"    ds_read_b64_tr_b16 v[{48+2*blk}:{49+2*blk}], v{52+vsel(b)[0]} offset:{(b>>2)*32768 + blk*2048 + vsel(b)[2]}" for blk in range(2)]
        f += ["    s_waitcnt lgkmcnt(0)", f"    v_mfma_f32_16x16x32_bf16 v[{64+4*b}:{67+4*b}], v[48:51], v[44:47], v[{64+4*b}:{67+4*b}]"]
    f += [f"    s_add_u32 s{sVt}, s{sVt}, 4096", f"    s_cmp_eq_u32 s{sVt}, 32768", f"    s_cselect_b32 s{sVt}, 65536, s{sVt}",
          f"    s_cmp_lt_u32 s{sKb}, {HEADK}", "    s_cbranch_scc1 L_fb_pv"]
    f += xlane(18, 17, "v_add_f32")
    f += ["    v_rcp_f32 v18, v18", "    s_nop 7"]
    f += [f"    v_mul_f32 v{64+k}, v{64+k}, v18" for k in range(32)]
    f += [f"    v_cvt_pk_bf16_f32 v{96+k}, v{64+2*k}, v{65+2*k}" for k in range(16)]
    f += ["    s_nop 1"]
    for pb in range(0 if cfg.noswap else 4):
        f += [f"    v_permlane16_swap_b32 v{96+4*pb+h}, v{98+4*pb+h}" for h in range(2)]
    f += [f"    buffer_store_dwordx4 v[{96+4*pb}:{99+4*pb}], v{vOA}, s[{sO}:{sO+3}], s{sRow} offen offset:{64*pb}" for pb in range(4)]
    f += ["    s_waitcnt vmcnt(0)", f"    s_cmp_lg_u32 s{sFAIL}, 0", "    s_cbranch_scc1 L_fb_next"]
    if cfg.fin2: f += [f"    s_add_u32 s{sW_}, s{sW_}, 1", f"    s_cmp_le_u32 s{sW_}, s4", "    s_cbranch_scc1 L_fb_wave"]
    return t + f

def simulate(linear, waits, nops, marks):
    t = 0; pipe = 0; q = []; lastdone = 0; out = []; t0 = 0; first = False; valu = False; mem = False; cur = None; stall = 0; stl = []; idle = [0]
    for ins in linear:
        if ins.kind == "label": continue
        w = waits.get(id(ins))
        if w:
            if w[1] is not None and len(q) > w[1]:
                need = q[len(q) - w[1] - 1]
                if need > t: stall += need - t; t = need
            t += 0 if first else 4; first = False
        t += 4 * nops.get(id(ins), 0)
        if id(ins) in marks:
            out.append(t - t0); stl.append(stall); t0 = t; stall = 0; idle.append(0)
        k = ins.kind
        if k in MAT:
            idle[-1] += max(0, pipe - t)
            t = max(t, pipe); pipe = t + 16; t += 8; first = True; valu = False; mem = False
        else:
            c = ins.cost
            if k in ("salu", "bar", "br", "wait") and first: c -= 4
            if k in LGKM + VM and valu: c += 8
            elif k in LGKM + VM and mem: c += 4
            if k in LGKM + VM: mem = True
            if k in LGKM:
                svc = 32 if k == "dsw" else (16 if ("b128" in ins.text or cfg.noswap) else 8)
                lastdone = max(lastdone + svc, t + cfg.ldslat); q.append(lastdone)
            if k in VALU: valu = True
            t += c; first = False
    out.append(t - t0); stl.append(stall)
    sys.stderr.write(f"sim cycles/period: {out[1:]}\nsim lgkm stalls : {stl[1:]}\nunused issue cyc: {idle[1:]}\n")

def gen_items(T):
    curT[0] = T
    items_softmax(T); items_kread(T)
    if T % 8 == 0 and T > 0: items_vtoggle(T)
    items_vread(T)
def bar_needs(T):
    pub = (T + 1,) if T < 15 else (T + 1, T + 2)
    nd = [x.ins for t in pub for x in kwrites[t]]
    if T in vdmas and T > 0 and f"V{T}" not in BARm: nd += vdmas[T]
    done = (T - 1, T) if T >= 13 else (T - 1,) if T >= 1 else ()
    nd += [kreads[t, blk, s_].ins for t in done for blk in range(2) for s_ in range(4) if (t, blk, s_) in kreads]
    nd += [x.ins for t in done if t in readback for x in readback[t]]
    BARm[T].needs = nd
def build():
    C = cfg.CUT; NT = 48 + C + 2
    for T in range(NT + 2): mk_step(T)
    BARm[-1] = I("s_barrier", "bar"); BARm["V0"] = I("s_barrier", "bar")
    for T in range(1, cfg.nvbar): BARm[f"V{T}"] = I("s_barrier", "bar")
    for T in list(range(0, 15, 2)) + list(range(1, NT + 2, 2)): BARm[T] = I("s_barrier", "bar")
    pro = prologue()
    pro.append(BARm[-1]); pro += stamp(2) + pro_tail
    bb, start = [], {}
    for T in range(NT):
        start[T] = len(bb); bb += backbone_period(T)
    backbone_period(NT)
    fixed = {id(bar_spot(T)): [BARm[T]] for T in range(NT) if T in BARm}
    fixed[id(QKm[1, 0, 0, 0] if cfg.sm0 else QKm[0, 1, 2, 3])] = [BARm["V0"]]
    for T in range(1, cfg.nvbar): fixed[id(start_of(T + 1))] = [BARm[f"V{T}"]]
    for T, txt in ((1, "first sweep over the keys: 5 row blocks per wave, K is scaled and V streamed in on the way"),
                   (16, "row blocks 0,1 start their second sweep; 2,3 follow three key steps later")):
        notes[T] = I("    ; ---- " + txt, "label")
    labL = I("L_loop:", "label"); labL2 = I("; second instance", "label"); labL3 = I("; third instance", "label")
    def chk():
        pre = ""
        if cfg.stamps == 1:
            r = sTSB + 12
            pre = "".join(f"s_mov_b64 s[{r+2*k+2}:{r+2*k+3}], s[{r+2*k}:{r+2*k+1}]\n    " for k in (2, 1, 0)) + f"s_memrealtime s[{r}:{r+1}]\n    "
        if not cfg.extra: return I(pre + f"s_sub_u32 s{sCNT}, s{sCNT}, 1\n    s_cbranch_scc1 L_tail", "br", cost=8)
        return I(pre + f"s_sub_u32 s{sCNT}, s{sCNT}, 1\n    s_cmp_eq_u32 s{sCNT}, 0\n    s_cbranch_scc1 L_tail", "br")
    chk1, chk2 = chk(), chk()
    brL, brL2 = I("s_branch L_loop", "br"), I("s_branch L_loop", "br")
    ctl = {start[16 + C]: stamp(5) + [labL], start[32]: [chk1], start[32 + C]: [brL, labL2], start[48]: [chk2], start[48 + C]: [brL2, labL3]}
    marks, post = ({}, ctl) if cfg.shadowbr else (ctl, {})
    marks[start[12]] = [I("L_p12:", "label")]
    for T in notes: firstm[T].text = notes[T].text.strip() + "\n    " + firstm[T].text
    if cfg.stamps == 1:
        marks[start[1]] = stamp(3); marks[start[16]] = stamp(4) + stamp(10, True)
    if cfg.stamps == 2:
        for T in range(16 + C, 48 + C): marks.setdefault(start[T], []).append(stamp((T - C) % 16, True, 2)[0])
    if cfg.stamps == 3:
        for T in range(0, min(20, 16 + C - cfg.st3)): marks.setdefault(start[T + cfg.st3], []).insert(0, stamp(T, False, 3)[0])
        pro.insert(1, stamp(20, False, 3)[0])
    for T in range(16): items_loads(T)
    for T in range(NT):
        gen_items(T)
        if T % 16 == C and T > 16: items_rowadv(T)
        if cfg.repf:
            if T == cfg.pf1: items_codepf(T, "L_p12")
            if T == cfg.pf2: items_codepf(T, "L_loop")
            if T > 32 and T % 16 == cfg.pf3: items_codepf(T, "L_tail")
    for base in (16, 32): items_qpf(base)
    for T in range(1, NT + 2): curT[0] = T; items_kwrite(T)
    curT[0] = -50; items_qjit()
    if cfg.vc1: items_vcheck()
    for T in range(NT):
        if any(islast(T, q) for q in act(T)):
            curT[0] = T + 1000
            items_epilogue(T, ctl[start[(T + 1) // 16 * 16 + C]][0])
    BARm[-1].needs = [x.ins for x in kwrites[0]]
    BARm["V0"].needs = list(vdmas[0])
    for T in range(1, cfg.nvbar): BARm[f"V{T}"].needs = list(vdmas[T])
    for T in range(NT):
        if T in BARm: bar_needs(T)
    stream = list(pro)
    Sched(stream).run(bb, items, fixed, marks, post=post)
    p = {id(x): k for k, x in enumerate(stream)}
    ref = {(it.T[0] - 16, it.T[1]): p[id(it.ins)] < p[id(brL)] for it in items if it.placed and 32 + C - 2 <= it.T[0] < 48}
    cut = ctl[start[16 + C]][0]
    for it in items:
        r = ref.get(it.T)
        if r is True: it.dead = list(it.dead) + [cut]
        elif r is False: it.after.append((labL, 0))
        it.placed = False
    stream = list(pro)
    sc = Sched(stream)
    sc.run(bb, items, fixed, marks, post=post)
    p = {id(x): k for k, x in enumerate(stream)}
    iL, iC1, iBr, iL2, iC2, iBr2 = (p[id(x)] for x in (labL, chk1, brL, labL2, chk2, brL2))
    segP = stream[:iL]; segL = stream[iL:iC1 + 1]; segB = stream[iC1 + 1:iBr + 1]
    one, two = stream[iL:iBr + 1], stream[iL2:iBr2 + 1]
    a = [x.text for x in one[1:]]; b = [x.text for x in two[1:]]
    if a != b:
        for k, (x, y) in enumerate(zip(a, b)):
            if x != y: sys.stderr.write(f"loop mismatch at {k}: {x} | {y}\n"); break
        raise SystemExit("loop instances differ")
    mp = {id(y): x for x, y in zip(one, two)}
    for x, y in zip(one, two): x.needs = x.needs + [mp.get(id(z), z) for z in y.needs]
    def keyed(its):
        cnt, out = {}, {}
        for it in its:
            k = (it.T[0], it.ins.text); cnt[k] = cnt.get(k, 0) + 1; out[k + (cnt[k],)] = it
        return out
    old = {k: it for k, it in keyed(items).items() if it.placed and p[id(it.ins)] <= iC2}
    TFIN[0] = 48; TE = 48 + DL
    for d in (QKm, PVm, SMm):
        for k in [k for k in d if k[0] >= 48 and (k[0] >= TE or (k[2] if d is not SMm else 2 * k[1]) not in (2, 3))]: del d[k]
    for T in range(max(TE - 1 if TE % 2 == 0 else TE, 50 if cfg.tlds else 0), NT + 2): BARm.pop(T, None)
    for j in range(32):
        buf = Kf(0, 0) + 4 * (j % 8)
        VCm[j] = mfma(L(2), buf, buf, j == 0, dk="a")
    tbb = []
    for T in range(48, TE + 1): tbb += backbone_period(T)
    items.clear(); pwriters.clear(); lprev.clear()
    for k in [k for k in unit_free if k[0] == 32]: del unit_free[k]
    for T in range(46, TE): gen_items(T)
    for T in range(48, TE): curT[0] = T; items_kwrite(T)
    endT = I("; end of tail", "label"); endA = I("; group A stored", "label")
    curT[0] = 5000
    if DL: items_epilogue(47, tbb[len(tbb) - cfg.nvc - 20])
    items_epilogue(TE - 1, endT)
    if not cfg.vc1: va = add(valu(f"v_add_u32 v{vVD}, s{sVC}, v{vKR}", [f"v{vKR}"], [f"v{vVD}"]), dead=[PVm[TE - 1, 2, act(TE - 1)[0]]], tag="vc")
    for j in range(cfg.nvc):
        d = R("a", Kf(0, 0) + 4 * (j % 8), 4)
        lastu = [(QKm[TE - 1, (j % 8) // 4, act(TE - 1)[-1], j % 4], 0)] if j < 8 else [(VCm[j - 8], 0)]
        add(I(f"ds_read_b128 {d}, v{vVD} offset:{j*1024}", "dsr", rd=[f"v{vVD}"], wr=[d]), after=[(va.ins, 0)] + lastu, dead=[VCm[j]], tag="vc", prio=-6)
    if cfg.vc1:
        fl = P(1, 4)
        x = I(f"buffer_load_ubyte v{fl}, off, s[{sWS}:{sWS+3}], s2 sc1", "vld", wr=[f"v{fl}"], cost=8); x.fast = True
        add(x, dead=[firstm[49]], tag="vc")
        gx = I("\n    ".join([f"v_cmp_ne_u32 s[6:7], 0, v{fl}",
                               f"v_cmp_lt_u32 vcc, 0x6f800000, v{vHI}",
                               f"v_cmp_gt_u32 s[50:51], 1.0, v{vLO}    ; some l < 1", "s_nop 1",
                               "s_or_b64 vcc, vcc, s[6:7]", "s_or_b64 vcc, vcc, s[50:51]", f"s_cselect_b32 s{sFAIL}, 0x1fffff, s{sFAIL}"]),
               "br", rd=[f"v{vHI}", f"v{vLO}", f"v{fl}"], wr=["vcc", f"v{fl}"], cost=40)
        gx.block = True
        add(gx, after=[(x, 0)] + [(z, 0) for z in lprev] + [x_.after[0] for x_ in tail_stores[-2:]], dead=[endT], tag="ep", prio=5000)
        for x in tail_stores[-2:]: x.after.append((gx, 0))
    elif cfg.fin2:
        gx = I("\n    ".join(guard2_text()), "valu", rd=[f"v{vHI}", f"v{vLO}", R("a", L(2), 4)], wr=["v[0:3]", "vcc"], cost=72)
        add(gx, after=[(VCm[cfg.nvc - 1], 12)] + [(z, 0) for z in lprev], dead=[endT], tag="ep", prio=-5000)
    elif cfg.tlds:
        assert TE % 4 == 3
        gx = I("\n".join(guard_text()).strip(), "br", rd=[f"v{vHI}", f"v{vLO}", R("a", L(2), 4)], wr=["v[0:7]", "vcc"], cost=200)
        git = add(gx, after=[(VCm[cfg.nvc - 1], 0)] + [(z, 0) for z in lprev], dead=[endT], tag="ep", prio=-5000)
        for x in tail_stores[cfg.exk:]:
            x.after.append((gx, 0)); x.dabs = None
    alias = {}
    for k, it in keyed(items).items():
        if k in old: alias[id(it.ins)] = old[k].ins; it.ins = old[k].ins; it.placed = True
    tfixed = {id(bar_spot(T)): [BARm[T]] for T in range(48, TE) if T in BARm}
    known = {id(x) for x in stream[:iC2 + 1]} | {id(x) for x in tbb} | {id(it.ins) for it in items} | {id(x) for l_ in tfixed.values() for x in l_}
    for it in items: it.after = [(alias.get(id(a_), a_), d_) for a_, d_ in it.after if id(alias.get(id(a_), a_)) in known]
    for T in range(48, TE):
        if T in BARm: bar_needs(T)
    tstream = stream[:iC2 + 1]
    labT = I("L_tail:", "label")
    tm = {0: [labT] + stamp(2, False, 5)}
    if cfg.stamps == 5:
        for T in range(49, TE + 1): tm[tbb.index(firstm[T])] = stamp(T - 46, False, 5)
        if cfg.nvc: tm[tbb.index(VCm[0])] = stamp(8, False, 5)
    if cfg.wbl2:
        pos_ = {1: tbb.index(firstm[TE]), 2: 1, 3: tbb.index(firstm[TE - 1])}[cfg.wbl2]
        tm.setdefault(pos_, []).append(I(f"s_lshl_b32 s{sT1}, s2, 2\n    s_add_u32 s{sT1}, s{sT1}, s{sW}\n    s_and_b32 s{sT1}, s{sT1}, {cfg.wbmask}\n    s_cbranch_scc1 L_nowb\n    buffer_wbl2 sc1\nL_nowb:", "br"))
    tp = {0: tm.pop(0)} if cfg.shadowbr else {}
    Sched(tstream).run(tbb, items, tfixed, tm, endins=endT, post=tp)
    segT = tstream[iC2 + 1:]
    assert segT[0] is labT, segT[:3]
    assert all(it.placed for it in items)
    for x in segT: x.needs = [mp.get(id(z), z) for z in x.needs]
    linear = segP + segL + segB + segL + segB + segL + segT
    waits = insert_waits(linear)
    nops = fix_hazards(linear, waits)
    sys.stderr.write(f"instr: P {len(segP)} L {len(segL)} B {len(segB)} T {len(segT)}; waits {len(waits)}; nops {sum(nops.values())} at {len(nops)} sites\n")
    mk = {id(stream[p[id(bb[start[T]])]]): T for T in range(32 + C)}
    mk.update({id(firstm[T]): T for T in range(48, TE + 1)})
    simulate(segP + segL + segB + segL + segT, waits, nops, mk)
    loop = render(segL, waits, nops) + render(segB, waits, nops)
    if cfg.drop:
        pat = {"v": "ds_read_b64_tr", "k": "ds_read_b128", "w": "ds_write", "s": "v_smfmac", "e": "v_exp", "c": r"v_cvt_pk_bf16_f32 v1[6-9]\d, v20", "q": "v_accvgpr_(write_b32 a\d+, v|mov)",
               "m": "v_mul_f32", "t": "buffer_store", "l": "buffer_load", "b": "s_barrier"}
        for ch in cfg.drop: loop = [x for x in loop if not re.search(pat[ch], x)]
    sk = []
    if cfg.skew:
        sk = [f"    s_mov_b32 s{sT1}, s{sW}" if cfg.skew > 0 else f"    s_lshr_b32 s{sT1}, s{sW}, 1", "L_sk:", f"    s_cmp_eq_u32 s{sT1}, 0", "    s_cbranch_scc1 L_sk2", f"    s_sub_u32 s{sT1}, s{sT1}, 1", f"    s_nop {abs(cfg.skew)}", "    s_branch L_sk", "L_sk2:"]
    body = render(segP, waits, nops) + sk + loop + render(segT, waits, nops)
    return body

HEADER = open("standalone__mha_softmax__near_ridge.s.ref").read().split("; Override launch")[0]
def add_pads(lines):
    import subprocess
    lines = [x for l in lines for x in l.split("\n")]
    src = '.amdgcn_target "amdgcn-amd-amdhsa--gfx950"\n.text\n' + "\n".join(lines) + "\nL_end:\n s_endpgm\n"
    open("_pads.s", "w").write(src)
    subprocess.run(["clang", "-x", "assembler", "-target", "amdgcn-amd-amdhsa", "-mcpu=gfx950", "-c", "_pads.s", "-o", "_pads.o"], check=True)
    d = subprocess.run(["llvm-objdump", "-d", "--mcpu=gfx950", "_pads.o"], capture_output=True, text=True).stdout
    sizes = [4 * len(m.group(1).split()) for m in re.finditer(r"// [0-9A-F]+: ((?:[0-9A-F]{8} ?)+)", d)]
    isins = lambda x: x.startswith("    ") and not x.strip().startswith(";")
    assert len(sizes) == sum(map(isins, lines)) + 1
    warm = ["    s_mov_b64 vcc, -1"] + [y for w in range(3) for y in (f"    s_cmp_eq_u32 s{sW}, {w}", f"    s_cbranch_scc1 L_pad{w}")] + ["    s_branch L_pad3", "L_back:", "    s_mov_b64 vcc, 0"]
    out, k, addr, want, npad, prev_m, stop = [], 0, None, [], 0, False, False
    for x in lines:
        if x.strip() == "; BODY_ALIGN":
            out += ["    s_mov_b64 vcc, 0", "    s_branch L_body", ".p2align 12", "L_body:"]; addr = 0
            want = [p * 4096 + j * cfg.padoff for p in range(1, 32) for j in range(cfg.pads)]
            continue
        if x.strip() == "; WARM_UP":
            out += ["    ; instruction prefetch: while waiting for the next rows, hop once over the never-taken branches L_pad*",
                    "    ; (first line of every 4 KB page of this code; otherwise each first page crossing stalls the fetch)"]
            out += warm; addr += 4 * (len(warm) - 1); k += 0; continue
        if "V magnitude guard" in x or "slow path" in x or "---- guard" in x: stop = True
        if isins(x):
            if addr is not None and not stop and addr >= want[0] and ((prev_m and not x.strip().startswith("s_")) or addr >= want[0] + 48):
                out += [f"L_pad{npad}:", f"    s_cbranch_vccnz PADNEXT{npad}"]; npad += 1; addr += 4; want.pop(0)
            if addr is not None: addr += sizes[k]
            k += 1
            prev_m = x.strip().startswith(("v_mfma", "v_smfmac"))
        out.append(x)
    assert npad >= 4
    return [re.sub(r"PADNEXT(\d+)", lambda m: f"L_pad{int(m.group(1)) + 4}" if int(m.group(1)) + 4 < npad else "L_back", x) for x in out]

def main():
    body = build()
    if cfg.pads:
        fin = finale()
        body = add_pads(body + fin)
        globals()["finale"] = lambda: []
    out = HEADER + f"""; Design (hand-written via my own scheduling script):
;  * one workgroup (4 waves, 512 registers each) per (batch, head); v_mfma_f32_16x16x32_bf16 throughout.
;  * V stays in LDS (128 KB).  K is scaled once by log2(e)/sqrt(D), kept in registers (a quarter per wave) and
;    re-published to the other waves through a 32 KB LDS ring.  Every wave walks 16-row blocks of Q
;    (5 at a time in the first sweep over the keys, then 4); S^T = K Q^T, P = exp2(S^T), O^T += V^T P,
;    the row sums come from a sparse MFMA with a ones pattern.
;  * softmax guard: the fast path uses shift 0 instead of the row maximum (softmax is shift invariant).  It is
;    only kept when every row sum lies in [1, 2^96] and every |v| < 2^30 (checked at run time, NaN/inf included),
;    which rules out overflow and any loss from underflow; otherwise the rows concerned are recomputed in the
;    slow path at the end, which subtracts the true row maximum.
; @launch grid=(256,1,1) block=(256,1,1) lds=163840
.amdgcn_target "amdgcn-amd-amdhsa--gfx950"
.text
.globl {KNAME}
.p2align 8
.type {KNAME},@function
{KNAME}:
""" + "\n".join(body) + "\n" + "\n".join(finale()) + f"""
L_end:
    s_endpgm
.section .rodata,"a"
.p2align 6
.amdhsa_kernel {KNAME}
  .amdhsa_next_free_vgpr 512
  .amdhsa_next_free_sgpr 102
  .amdhsa_accum_offset 256
  .amdhsa_group_segment_fixed_size 0
  .amdhsa_kernarg_size 48
  .amdhsa_user_sgpr_count 2
  .amdhsa_user_sgpr_kernarg_segment_ptr 1
  .amdhsa_system_sgpr_workgroup_id_x 1
.end_amdhsa_kernel
"""
    open(sys.argv[1], "w").write(out)
main()
```
